```python
import torch

def _softmax(x, axis=-1):
    return torch.softmax(x, dim=axis)
def _gelu(x):
    return torch.nn.functional.gelu(x, approximate="tanh")
def _silu(x):
    return torch.nn.functional.silu(x)
def _sigmoid(x):
    return torch.sigmoid(x)
def _layernorm(x, axis=-1, eps=1e-5):
    m = x.mean(dim=axis, keepdim=True)
    v = x.var(dim=axis, keepdim=True, unbiased=False)
    return (x - m) / torch.sqrt(v + eps)
def _scatter_add(tgt, idx, src, axis=0):
    return tgt.clone().index_add_(axis, idx, src)
def _segment_sum(src, seg, n):
    out = torch.zeros((n,) + src.shape[1:], dtype=src.dtype)
    return out.index_add_(0, seg, src)
def _pad(x, pw):
    flat = tuple(v for pair in reversed(pw) for v in pair)
    return torch.nn.functional.pad(x, flat)

kernel_name = 'concat_heads__softmax_full_mha__softmax_full_mha__prompt'

def setup_inputs():

    _w = (lambda a: (lambda t: t.to(torch.bfloat16) if t.is_floating_point() else t)(torch.as_tensor(a)))
    def _A_setup():
        B, S, D = 1, 2048, 448
        return {
            "x": _w((lambda *s: torch.randn(*s, dtype=torch.bfloat16) * 0.2)(B, S, D)),
            "wqkv": _w((lambda *s: torch.randn(*s, dtype=torch.bfloat16) * 0.2)(D, 3 * D)),
            "wo": _w((lambda *s: torch.randn(*s, dtype=torch.bfloat16) * 0.05)(D, D)),
        }
    _A_in = _A_setup()

    def _B_setup():
        B, S, D = 1, 2048, 448
        return {
            "x": _w((lambda *s: torch.randn(*s, dtype=torch.bfloat16) * 0.2)(B, S, D)),
            "wqkv": _w((lambda *s: torch.randn(*s, dtype=torch.bfloat16) * 0.2)(D, 3 * D)),
            "wo": _w((lambda *s: torch.randn(*s, dtype=torch.bfloat16) * 0.05)(D, D)),
        }
    _B_in = _B_setup()

    return {
        "A_x": _A_in["x"],
        "A_wqkv": _A_in["wqkv"],
        "A_wo": _A_in["wo"],
        "B_x": _B_in["x"],
        "B_wqkv": _B_in["wqkv"],
        "B_wo": _B_in["wo"],
    }

def reference(A_x, A_wqkv, A_wo, B_x, B_wqkv, B_wo):
    def _A_ref(x, wqkv, wo):
        B, S, D = x.shape
        H = 16; Dh = D // H
        qkv = (lambda x, *d: x.permute(*d))((x @ wqkv).reshape(B, S, 3, H, Dh), 2, 0, 3, 1, 4)
        q, k, v = qkv[0], qkv[1], qkv[2]
        scale = Dh ** -0.5
        scores = torch.einsum("bhqd,bhkd->bhqk", q, k) * scale
        p = _softmax(scores, axis=-1)
        o = torch.einsum("bhqk,bhkd->bhqd", p, v)
        return (lambda x, *d: x.permute(*d))(o, 0, 2, 1, 3).reshape(B, S, D) @ wo

    def _B_ref(x, wqkv, wo):
        B, S, D = x.shape
        H = 16; Dh = D // H
        qkv = (lambda x, *d: x.permute(*d))((x @ wqkv).reshape(B, S, 3, H, Dh), 2, 0, 3, 1, 4)
        q, k, v = qkv[0], qkv[1], qkv[2]
        scale = Dh ** -0.5
        scores = torch.einsum("bhqd,bhkd->bhqk", q, k) * scale
        p = _softmax(scores, axis=-1)
        o = torch.einsum("bhqk,bhkd->bhqd", p, v)
        return (lambda x, *d: x.permute(*d))(o, 0, 2, 1, 3).reshape(B, S, D) @ wo

    a = _A_ref(A_x, A_wqkv, A_wo)
    b = _B_ref(B_x, B_wqkv, B_wo)
    return torch.concatenate([a, b], axis=-1)
```

```python
import sys
NAME = "concat_heads__softmax_full_mha__softmax_full_mha__prompt"
CSCALE = 0x3E8B9800
import struct, math
def f2u(x): return struct.unpack("<I", struct.pack("<f", x))[0]
CSCALE = f2u(28 ** -0.5 * math.log2(math.e))

WS_QF = 0
WS_KV = 4 << 20
WS_OF = 12 << 20

class A:
    def __init__(self): self.l = []
    def __call__(self, s): self.l.append("    " + s)
    def lab(self, s): self.l.append(s + ":")
    def raw(self, s): self.l.append(s)
    def text(self): return "\n".join(self.l) + "\n"

def vr(b, n): return f"v[{b}:{b+n-1}]"
def sr(b, n): return f"s[{b}:{b+n-1}]"

def load_ptrs(a):
    a("s_load_dwordx16 s[4:19], s[0:1], 0")
    a("s_load_dwordx2 s[20:21], s[0:1], 64")

def srd(a, d, lo, hi, nrec):
    a(f"s_mov_b32 s{d}, {lo}")
    a(f"s_mov_b32 s{d+1}, {hi}")
    a(f"s_mov_b32 s{d+2}, {nrec}")
    a(f"s_mov_b32 s{d+3}, 0x00020000")

def kdesc(name, vgpr, sgpr=96):
    acc = (vgpr + 3) // 4 * 4
    return f""".section .rodata,"a"
.p2align 6
.amdhsa_kernel {name}
  .amdhsa_next_free_vgpr {vgpr}
  .amdhsa_next_free_sgpr {sgpr}
  .amdhsa_accum_offset {acc}
  .amdhsa_group_segment_fixed_size 0
  .amdhsa_kernarg_size 72
  .amdhsa_user_sgpr_count 2
  .amdhsa_user_sgpr_kernarg_segment_ptr 1
  .amdhsa_system_sgpr_workgroup_id_x 1
.end_amdhsa_kernel
.text
"""

def khead(a, name):
    a.raw(f".globl {name}\n.p2align 8\n.type {name},@function")
    a.lab(name)

STAGE = 37888
XOFF = 21504
K1_LDS = 4 * STAGE + 64
def k1():
    a = A(); n = "qkv_kernel"
    khead(a, n)
    a("s_cmp_ge_u32 s2, 256")
    a("s_cbranch_scc1 K1_end")
    load_ptrs(a)
    a("s_and_b32 s40, s2, 7")
    a("s_lshr_b32 s41, s2, 3")
    a("s_lshr_b32 s42, s40, 2")
    a("s_bfe_u32 s43, s40, 0x10001")
    a("s_lshl_b32 s43, s43, 3")
    a("s_and_b32 s44, s41, 7")
    a("s_add_u32 s43, s43, s44")
    a("s_and_b32 s44, s40, 1")
    a("s_lshl_b32 s44, s44, 2")
    a("s_lshr_b32 s45, s41, 3")
    a("s_add_u32 s44, s44, s45")
    a("v_lshrrev_b32 v1, 6, v0")
    a("v_and_b32 v0, 63, v0")
    a("v_readfirstlane_b32 s46, v1")
    a("v_lshrrev_b32 v4, 3, v0")
    a("s_lshl_b32 s47, s43, 7")
    a("s_lshl_b32 s48, s46, 4")
    a("s_add_u32 s47, s47, s48")
    a("v_add_u32 v4, s47, v4")
    a("v_mul_u32_u24 v4, 896, v4")
    a("v_lshrrev_b32 v5, 4, v0")
    a("v_and_b32 v6, 7, v0")
    a("v_xor_b32 v6, v6, v5")
    a("v_lshl_add_u32 v2, v6, 4, v4")
    a("v_xor_b32 v6, 4, v6")
    a("v_lshl_add_u32 v3, v6, 4, v4")
    a("v_add_u32 v3, 7168, v3")
    a("s_min_u32 s48, s46, 6")
    a("s_mul_i32 s49, s48, 192")
    a("s_mul_i32 s50, s44, 336")
    for i in range(3):
        a(f"v_add_u32 v4, s49, v0")
        if i: a(f"v_add_u32 v4, {64*i}, v4")
        a("v_mul_u32_u24 v5, 3121, v4")
        a("v_lshrrev_b32 v5, 16, v5")
        a("v_mul_u32_u24 v6, 21, v5")
        a("v_sub_u32 v4, v4, v6")
        a("v_and_b32 v6, 48, v5")
        a("v_and_b32 v7, 3, v5")
        a("v_lshl_add_u32 v6, v7, 2, v6")
        a("v_bfe_u32 v7, v5, 2, 2")
        a("v_add_u32 v6, v6, v7")
        a("v_mul_u32_u24 v6, 2688, v6")
        a("v_lshl_add_u32 v6, v4, 4, v6")
        a(f"v_add_u32 v{8+i}, s50, v6")
    a("s_waitcnt lgkmcnt(0)")
    a("s_cmp_eq_u32 s42, 0")
    a("s_cselect_b32 s24, s4, s10")
    a("s_cselect_b32 s25, s5, s11")
    a("s_mov_b32 s26, 1835008")
    a("s_mov_b32 s27, 0x00020000")
    a("s_cselect_b32 s28, s6, s12")
    a("s_cselect_b32 s29, s7, s13")
    a("s_mov_b32 s30, 1204224")
    a("s_mov_b32 s31, 0x00020000")
    srd(a, 32, "s20", "s21", 12 << 20)
    a("s_mul_i32 s51, s48, 3072")
    a("s_lshl_b32 s52, s46, 11")
    a(f"s_add_u32 s52, s52, {XOFF}")
    def dma(ch):
        st = (ch % 4) * STAGE
        a(f"s_mov_b32 s53, {ch*172032}")
        for i in range(3):
            a(f"s_add_u32 m0, s51, {st + 1024*i}")
            a("s_nop 0")
            a(f"buffer_load_dwordx4 v{8+i}, s[28:31], s53 offen lds")
        a(f"s_mov_b32 s53, {ch*128}")
        for i in range(2):
            a(f"s_add_u32 m0, s52, {st + 1024*i}")
            a("s_nop 0")
            a(f"buffer_load_dwordx4 v{2+i}, s[24:27], s53 offen lds")
    for ch in range(4): dma(ch)
    a("s_and_b32 s54, s46, 3")
    a("s_lshr_b32 s55, s46, 2")
    a("v_and_b32 v4, 31, v0")
    a("s_lshl_b32 s56, s54, 5")
    a("v_add_u32 v4, s56, v4")
    a("v_bfe_u32 v5, v4, 1, 3")
    a("v_lshrrev_b32 v6, 5, v0")
    a("v_xor_b32 v5, v5, v6")
    a("v_lshlrev_b32 v5, 4, v5")
    a("v_lshl_add_u32 v5, v4, 7, v5")
    for ks in range(4):
        a(f"v_xor_b32 v{12+ks}, {32*ks}, v5")
        a(f"v_add_u32 v{12+ks}, {XOFF}, v{12+ks}")
        a(f"v_add_u32 v{16+ks}, {2*STAGE}, v{12+ks}")
    a("v_bfe_u32 v4, v0, 2, 2")
    a("v_lshlrev_b32 v4, 1, v4")
    a("v_add_u32 v4, v4, v6")
    a("v_mul_u32_u24 v4, 672, v4")
    a("v_bfe_u32 v5, v0, 4, 1")
    a("v_lshl_add_u32 v4, v5, 5, v4")
    a("v_and_b32 v5, 3, v0")
    a("v_lshl_add_u32 v4, v5, 3, v4")
    a("s_mul_i32 s56, s55, 168")
    a("v_add_u32 v20, s56, v4")
    a(f"v_add_u32 v21, {2*STAGE}, v20")
    a("v_and_b32 v4, 0x33, v0")
    a("v_bfe_u32 v5, v0, 2, 1")
    a("v_lshl_add_u32 v4, v5, 3, v4")
    a("v_bfe_u32 v5, v0, 3, 1")
    a("v_lshl_add_u32 v4, v5, 2, v4")
    a("v_lshlrev_b32 v22, 4, v4")
    a("v_lshlrev_b32 v23, 4, v0")
    a("v_and_b32 v4, 31, v0")
    a("v_mov_b32 v24, 0")
    a("v_mov_b32 v5, 0x3f803f80")
    a("v_cmp_eq_u32 vcc, 28, v4")
    a("s_nop 1")
    a("v_cndmask_b32 v24, v24, v5, vcc")
    a("s_lshl_b32 s57, s44, 1")
    a("s_add_u32 s57, s57, s55")
    ACC = [32, 48, 64]
    FR = [80, 144]
    for c in range(3):
        for r in range(16): a(f"v_mov_b32 v{ACC[c]+r}, 0")
    a("s_cmp_lt_u32 s57, 10")
    a("s_cbranch_scc1 K1_v0")
    a("s_cmp_eq_u32 s57, 10")
    a("s_cbranch_scc1 K1_v1")
    a("s_branch K1_v2")
    def reads(ch):
        st = ch % 4
        xa = 12 if st < 2 else 16
        wa = 20 if st < 2 else 21
        so = (st % 2) * STAGE
        fr = FR[ch % 2]
        out = []
        for ks in range(4):
            b = fr + 16 * ks
            out.append(f"ds_read_b128 {vr(b,4)}, v{xa+ks} offset:{so}")
            for c in range(3):
                for h in range(2):
                    out.append(f"ds_read_b64_tr_b16 {vr(b+4+4*c+2*h,2)}, v{wa} offset:{so + (16*ks+h)*336 + 56*c}")
        return out
    def mfmas(ch, ori):
        fr = FR[ch % 2]
        out = []
        for ks in range(4):
            b = fr + 16 * ks
            for c in range(3):
                x = vr(b, 4); w = vr(b + 4 + 4 * c, 4)
                p, q = (w, x) if ori[c] == 'n' else (x, w)
                out.append(f"v_mfma_f32_32x32x16_bf16 {vr(ACC[c],16)}, {p}, {q}, {vr(ACC[c],16)}")
        return out
    vm = [15, 10, 10, 10, 10, 5, 0]
    for v, ori in enumerate(["nnn", "nnv", "vvv"]):
        a.lab(f"K1_v{v}")
        for ch in range(8):
            if ch < 7:
                a(f"s_waitcnt vmcnt({vm[ch]}) lgkmcnt(0)")
                a("s_barrier")
                if 1 <= ch <= 3: dma(ch + 3)
                rd = reads(ch)
            else:
                a("s_waitcnt lgkmcnt(0)")
                rd = []
            mf = mfmas(ch - 1, ori) if ch >= 1 else []
            i = 0
            for m in mf:
                a(m)
                for _ in range(3):
                    if i < len(rd): a(rd[i]); i += 1
            while i < len(rd): a(rd[i]); i += 1
        a("s_nop 15")
        for c in range(3):
            P = 80 + 8 * c
            a(f"s_mul_i32 s58, s57, 3")
            a(f"s_add_u32 s58, s58, {c}")
            a("s_and_b32 s59, s58, 15")
            a("s_lshl_b32 s60, s42, 4")
            a("s_add_u32 s59, s59, s60")
            a("s_lshl_b32 s60, s43, 2")
            a("s_add_u32 s60, s60, s54")
            a("s_lshl_b32 s59, s59, 6")
            a("s_add_u32 s59, s59, s60")
            if ori[c] == 'n':
                a("s_cmp_lt_u32 s58, 16")
                a(f"s_cselect_b32 s61, {CSCALE:#x}, 1.0")
                a("s_cselect_b32 s62, 0, 0x3f80")
                a("s_cselect_b32 s63, 11, 12")
                a(f"s_cselect_b32 s64, {WS_QF}, {WS_KV}")
                a("s_lshl_b32 s59, s59, s63")
                a("s_add_u32 s59, s59, s64")
                for r in range(16): a(f"v_mul_f32 v{ACC[c]+r}, s61, v{ACC[c]+r}")
                for i in range(8): a(f"v_cvt_pk_bf16_f32 v{P+i}, v{ACC[c]+2*i}, v{ACC[c]+2*i+1}")
                a("s_mov_b64 exec, 0xffffffff00000000") if False else None
                a("s_mov_b32 exec_lo, 0")
                a(f"v_mov_b32 v{P+6}, s62")
                a(f"v_mov_b32 v{P+7}, 0")
                a("s_mov_b32 exec_lo, -1")
                a(f"buffer_store_dwordx4 {vr(P,4)}, v22, s[32:35], s59 offen")
                a(f"buffer_store_dwordx4 {vr(P+4,4)}, v22, s[32:35], s59 offen offset:1024")
            else:
                a("s_lshl_b32 s59, s59, 12")
                a(f"s_add_u32 s59, s59, {WS_KV}")
                for i in range(8): a(f"v_cvt_pk_bf16_f32 v{P+i}, v{ACC[c]+2*i}, v{ACC[c]+2*i+1}")
                a("s_mov_b32 exec_lo, 0xf0000000")
                a("s_mov_b32 exec_hi, 0xf0000000")
                for i in range(8): a(f"v_mov_b32 v{P+i}, v24")
                a("s_mov_b64 exec, -1")
                a(f"buffer_store_dwordx4 {vr(P,4)}, v23, s[32:35], s59 offen offset:2048")
                a(f"buffer_store_dwordx4 {vr(P+4,4)}, v23, s[32:35], s59 offen offset:3072")
        a("s_endpgm")
    a.lab("K1_end")
    a("s_endpgm")
    return a.text() + kdesc(n, 208)

K2_LDS = 131072
def k2():
    a = A(); n = "attn_kernel"
    khead(a, n)
    a("s_cmp_ge_u32 s2, 256")
    a("s_cbranch_scc1 K2_end")
    a("s_load_dwordx2 s[20:21], s[0:1], 64")
    a("s_and_b32 s40, s2, 7")
    a("s_lshl_b32 s40, s40, 2")
    a("s_bfe_u32 s41, s2, 0x20003")
    a("s_add_u32 s40, s40, s41")
    a("s_lshr_b32 s41, s2, 5")
    a("v_lshrrev_b32 v1, 6, v0")
    a("v_and_b32 v0, 63, v0")
    a("v_readfirstlane_b32 s42, v1")
    a("v_lshlrev_b32 v1, 4, v0")
    a("s_lshl_b32 s43, s41, 3")
    a("s_add_u32 s43, s43, s42")
    a("s_waitcnt lgkmcnt(0)")
    a("s_lshl_b32 s44, s40, 18")
    a(f"s_add_u32 s44, s44, {WS_KV}")
    a("s_add_u32 s24, s20, s44")
    a("s_addc_u32 s25, s21, 0")
    a("s_mov_b32 s26, 262144")
    a("s_mov_b32 s27, 0x00020000")
    srd(a, 28, "s20", "s21", 16 << 20)
    Q = 4
    IDX = 2
    LA = 3
    KB = [12, 20]
    VB = [28, 36, 44, 52]
    SB = [64, 80, 96, 112]
    O = 128
    T = 144
    a("s_lshl_b32 s45, s40, 6")
    a("s_add_u32 s45, s45, s43")
    a("s_lshl_b32 s45, s45, 11")
    a(f"buffer_load_dwordx4 {vr(Q,4)}, v1, s[28:31], s45 offen")
    a(f"buffer_load_dwordx4 {vr(Q+4,4)}, v1, s[28:31], s45 offen offset:1024")
    a("s_lshl_b32 s46, s42, 12")
    a("s_mov_b32 s47, s46")
    def dma():
        a("s_mov_b32 m0, s47")
        a("s_add_u32 s47, s47, 32768")
        for i in range(4):
            a(f"buffer_load_dwordx4 v1, s[24:27], s46 offen offset:{1024*i} lds")
        a("s_and_b32 s47, s47, 0x1ffff")
        a("s_add_u32 s46, s46, 32768")
    for c in range(3): dma()
    a(f"v_mov_b32 v{IDX}, 0xdddddddd")
    for r in range(16): a(f"v_mov_b32 v{O+r}, 0")
    a(f"v_mov_b32 v{LA}, v1")
    def qk(t, first_only=None):
        s = SB[t % 4]; k = KB[t % 2]
        return [f"v_mfma_f32_32x32x16_bf16 {vr(s,16)}, {vr(k,4)}, {vr(Q,4)}, 0",
                f"v_mfma_f32_32x32x16_bf16 {vr(s,16)}, {vr(k+4,4)}, {vr(Q+4,4)}, {vr(s,16)}"]
    def pv(t):
        s = SB[t % 4]; v = VB[t % 4]
        return [f"v_smfmac_f32_32x32x32_bf16 {vr(O,16)}, {vr(v,4)}, {vr(s,8)}, v{IDX}",
                f"v_smfmac_f32_32x32x32_bf16 {vr(O,16)}, {vr(v+4,4)}, {vr(s+8,8)}, v{IDX}"]
    def rd(t):
        k = KB[t % 2]; v = VB[t % 4]; o = (t % 8) * 4096
        return [f"ds_read_b128 {vr(k,4)}, v{LA} offset:{o}", f"ds_read_b128 {vr(k+4,4)}, v{LA} offset:{o+1024}",
                f"ds_read_b128 {vr(v,4)}, v{LA} offset:{o+2048}", f"ds_read_b128 {vr(v+4,4)}, v{LA} offset:{o+3072}"]
    def phase(p, do_exp=True, do_qk=True, do_pv=True, do_rd=True, wait=True):
        s = SB[p % 4]
        ms = (qk(p + 1) if do_qk else [None, None]) + (pv(p - 1) if do_pv else [None, None])
        rs = rd(p + 2) if do_rd else [None] * 4
        if wait: a("s_waitcnt lgkmcnt(2)")
        for g in range(4):
            if ms[g]: a(ms[g])
            if rs[g]: a(rs[g])
            if do_exp:
                for j in range(4): a(f"v_exp_f32 v{s+4*g+j}, v{s+4*g+j}")
    def chunk_head():
        a("s_waitcnt vmcnt(8) lgkmcnt(0)")
        a("s_barrier")
        dma()
    chunk_head()
    for x in rd(0): a(x)
    a("s_waitcnt lgkmcnt(2)")
    for x in qk(0): a(x)
    for x in rd(1): a(x)
    a("s_nop 15")
    s = SB[0]
    a(f"v_max3_f32 v{T}, v{s}, v{s+1}, v{s+2}")
    for i in range(3, 15, 2): a(f"v_max3_f32 v{T}, v{T}, v{s+i}, v{s+i+1}")
    a(f"v_max_f32 v{T}, v{T}, v{s+15}")
    a(f"v_mov_b32 v{T+1}, v{T}")
    a("s_nop 1")
    a(f"v_permlane32_swap_b32 v{T}, v{T+1}")
    a(f"v_max_f32 v{T}, v{T}, v{T+1}")
    a(f"v_xor_b32 v{T}, 0x80000000, v{T}")
    a("s_mov_b32 exec_lo, 0")
    a(f"v_lshrrev_b32 v{Q+6}, 16, v{T}")
    a("s_mov_b32 exec_lo, -1")
    a("s_nop 4")
    for x in qk(0): a(x)
    a("s_nop 15")
    phase(0, do_pv=False)
    for p in range(1, 6): phase(p)
    a("s_mov_b32 s48, 7")
    a.raw(".p2align 6")
    a.lab("K2_loop")
    chunk_head()
    a(f"v_add_u32 v{LA}, 32768, v{LA}")
    a(f"v_and_b32 v{LA}, 0x1ffff, v{LA}")
    for p in range(6, 14): phase(p, wait=(p != 6))
    a("s_sub_u32 s48, s48, 1")
    a("s_cmp_lg_u32 s48, 0")
    a("s_cbranch_scc1 K2_loop")
    a("s_waitcnt lgkmcnt(0)")
    phase(62, do_rd=False, wait=False)
    phase(63, do_rd=False, do_qk=False, wait=False)
    a("s_nop 1")
    for x in pv(63): a(x)
    a("s_nop 15")
    a.lab("K2_fin")
    a(f"v_mov_b32 v{T}, v{O+12}")
    a(f"v_mov_b32 v{T+1}, v{O+12}")
    a("s_nop 1")
    a(f"v_permlane32_swap_b32 v{T}, v{T+1}")
    a(f"v_rcp_f32 v{T+2}, v{T+1}")
    a("s_nop 0")
    for r in range(16): a(f"v_mul_f32 v{O+r}, v{O+r}, v{T+2}")
    P = T + 4
    for i in range(8): a(f"v_cvt_pk_bf16_f32 v{P+i}, v{O+2*i}, v{O+2*i+1}")
    a("s_and_b32 s50, s40, 15")
    a("s_mul_i32 s50, s50, 7")
    a("s_lshr_b32 s51, s40, 4")
    a("s_lshl_b32 s51, s51, 6")
    a("s_add_u32 s51, s51, s43")
    a("s_mul_i32 s51, s51, 28672")
    a(f"s_add_u32 s51, s51, {WS_OF}")
    a(f"v_and_b32 v{T}, 0x13, v0")
    a(f"v_bfe_u32 v{T+1}, v0, 2, 1")
    a(f"v_lshl_add_u32 v{T}, v{T+1}, 3, v{T}")
    a(f"v_bfe_u32 v{T+1}, v0, 3, 1")
    a(f"v_lshl_add_u32 v{T}, v{T+1}, 2, v{T}")
    a(f"v_lshlrev_b32 v{T}, 4, v{T}")
    a(f"v_lshrrev_b32 v{T+1}, 5, v0")
    a(f"v_add_u32 v{T+1}, s50, v{T+1}")
    for g in range(4):
        AD = P + 8 + g
        if g: a(f"v_add_u32 v{T+1}, 2, v{T+1}")
        a(f"v_lshrrev_b32 v{T+2}, 1, v{T+1}")
        a(f"v_lshl_add_u32 v{AD}, v{T+2}, 9, v{T}")
        a(f"v_and_b32 v{T+2}, 1, v{T+1}")
        a(f"v_lshl_add_u32 v{AD}, v{T+2}, 3, v{AD}")
        if g == 3: a("s_mov_b32 exec_hi, 0")
        a(f"buffer_store_dwordx2 {vr(P+2*g,2)}, v{AD}, s[28:31], s51 offen")
    a.lab("K2_end")
    a("s_endpgm")
    return a.text() + kdesc(n, 168)

K3_LDS = 57344
def k3():
    a = A(); n = "oproj_kernel"
    khead(a, n)
    a("s_cmp_ge_u32 s2, 224")
    a("s_cbranch_scc1 K3_end")
    load_ptrs(a)
    a("s_and_b32 s40, s2, 7")
    a("s_lshr_b32 s41, s2, 3")
    a("s_lshr_b32 s42, s40, 2")
    a("s_and_b32 s43, s40, 3")
    a("s_lshl_b32 s43, s43, 2")
    a("s_and_b32 s44, s41, 3")
    a("s_add_u32 s43, s43, s44")
    a("s_lshr_b32 s44, s41, 2")
    a("v_lshrrev_b32 v1, 6, v0")
    a("v_and_b32 v0, 63, v0")
    a("v_readfirstlane_b32 s46, v1")
    a("v_lshlrev_b32 v1, 4, v0")
    a("v_lshrrev_b32 v4, 3, v0")
    a("s_mul_i32 s47, s46, 56")
    a("v_add_u32 v4, s47, v4")
    a("v_mul_u32_u24 v4, 896, v4")
    a("v_bfe_u32 v5, v0, 4, 1")
    a("v_lshlrev_b32 v5, 2, v5")
    a("v_and_b32 v6, 7, v0")
    a("v_xor_b32 v6, v6, v5")
    a("v_lshl_add_u32 v2, v6, 4, v4")
    a("s_lshl_b32 s47, s44, 7")
    a("v_add_u32 v2, s47, v2")
    a("s_waitcnt lgkmcnt(0)")
    a("s_cmp_eq_u32 s42, 0")
    a("s_cselect_b32 s24, s8, s14")
    a("s_cselect_b32 s25, s9, s15")
    a("s_mov_b32 s26, 401408")
    a("s_mov_b32 s27, 0x00020000")
    srd(a, 28, "s20", "s21", 16 << 20)
    srd(a, 32, "s16", "s17", 2048 * 896 * 2)
    a("s_mul_i32 s48, s46, 7168")
    for i in range(7):
        a(f"s_add_u32 m0, s48, {1024*i}")
        a(f"s_mov_b32 s49, {7168*i}")
        a(f"buffer_load_dwordx4 v2, s[24:27], s49 offen lds")
    a("s_and_b32 s50, s46, 3")
    a("s_lshr_b32 s51, s46, 2")
    a("s_lshl_b32 s52, s42, 6")
    a("s_lshl_b32 s53, s43, 2")
    a("s_add_u32 s53, s53, s50")
    a("s_add_u32 s52, s52, s53")
    a("s_mul_i32 s52, s52, 28672")
    a(f"s_add_u32 s52, s52, {WS_OF}")
    OFR = 32
    for ks in range(28):
        if ks % 4 == 0 and ks: a("s_add_u32 s52, s52, 4096")
        a(f"buffer_load_dwordx4 {vr(OFR+4*ks,4)}, v1, s[28:31], s52 offen offset:{(ks%4)*1024}")
    a("v_bfe_u32 v4, v0, 2, 2")
    a("v_lshrrev_b32 v5, 5, v0")
    a("v_lshl_add_u32 v6, v5, 3, v4")
    a("v_lshlrev_b32 v6, 7, v6")
    a("v_lshrrev_b32 v4, 1, v4")
    a("v_xor_b32 v4, s51, v4")
    a("v_lshl_add_u32 v6, v4, 6, v6")
    a("v_and_b32 v4, 1, v0")
    a("v_lshl_add_u32 v6, v4, 5, v6")
    a("v_bfe_u32 v4, v0, 4, 1")
    a("v_lshl_add_u32 v6, v4, 4, v6")
    a("v_bfe_u32 v4, v0, 1, 1")
    a("v_lshl_add_u32 v3, v4, 3, v6")
    a("v_and_b32 v4, 31, v0")
    a("s_lshl_b32 s54, s53, 5")
    a("v_add_u32 v4, s54, v4")
    a("v_mul_u32_u24 v4, 1792, v4")
    a("v_lshl_add_u32 v7, v5, 5, v4")
    a("s_mul_i32 s54, s42, 896")
    a("s_lshl_b32 s55, s44, 7")
    a("s_add_u32 s54, s54, s55")
    a("s_lshl_b32 s55, s51, 6")
    a("s_add_u32 s54, s54, s55")
    ACC = 8
    WB = 144
    a("s_waitcnt vmcnt(28)")
    a("s_barrier")
    for ks in range(28):
        for h in range(2):
            a(f"ds_read_b64_tr_b16 {vr(WB+4*ks+2*h,2)}, v3 offset:{(16*ks+4*h)*128}")
    for ks in range(28):
        lg = min(15, 2 * (27 - ks))
        a(f"s_waitcnt vmcnt({27-ks}) lgkmcnt({lg})")
        c = "0" if ks == 0 else vr(ACC, 16)
        a(f"v_mfma_f32_32x32x16_bf16 {vr(ACC,16)}, {vr(WB+4*ks,4)}, {vr(OFR+4*ks,4)}, {c}")
    a("s_nop 15")
    for i in range(8): a(f"v_cvt_pk_bf16_f32 v{24+i}, v{ACC+2*i}, v{ACC+2*i+1}")
    a(f"buffer_store_dwordx4 v[24:27], v7, s[32:35], s54 offen")
    a(f"buffer_store_dwordx4 v[28:31], v7, s[32:35], s54 offen offset:16")
    a.lab("K3_end")
    a("s_endpgm")
    return a.text() + kdesc(n, 256)

hdr = f"""; @launch kernel=qkv_kernel grid=(256,1,1) block=(512,1,1) lds={K1_LDS}
; @launch kernel=attn_kernel grid=(256,1,1) block=(512,1,1) lds={K2_LDS}
; @launch kernel=oproj_kernel grid=(224,1,1) block=(512,1,1) lds={K3_LDS}
.amdgcn_target "amdgcn-amd-amdhsa--gfx950"
.text
"""
out = hdr + k1() + k2() + k3()
open(sys.argv[1] if len(sys.argv) > 1 else "v1.s", "w").write(out)
```

```python
import sys, os, struct, math
NAME = "concat_heads__softmax_full_mha__softmax_full_mha__prompt"
def f2u(x): return struct.unpack("<I", struct.pack("<f", x))[0]
CSCALE = f2u(28 ** -0.5 * math.log2(math.e))
E = os.environ.get
STAMP = E("STAMP", "0") == "1"
STL = E("STL", "c0,p1end,ack1,poll1,loop0,loop1,flag2,poll2,oland").split(",")
INIT = int(E("INIT", "1"))
DIST = int(E("DIST", "2"))
DPOS = E("DPOS", "mid")
F2SP = int(E("F2SP", "32"))
FORCEFB = E("FORCEFB", "0") == "1"
LOCAL = E("LOCAL", "1") == "1"
PRET = int(E("PRET", "3"))
SLEEP = int(E("SLEEP", "0"))
ROTA, ROTB, ROTC, ROTN, ROTS = [int(v) for v in E("ROTP", "1,4,0,7,1").split(",")]

X_KV = 0; X_QF = 1 << 20; X_F1 = 3 << 19
B_BASE = 16 << 20; B_F2 = 1835008
STAGE = 37888; XOFF = 21504
CB = 64512; QX = 113664; OS = 100352; LDS = 163840
SPIN = 1 << 22

class A:
    def __init__(self):
        self.l = []; self.vm = []; self.done = 0
    def __call__(self, s): self.l.append("    " + s)
    def lab(self, s): self.l.append(s + ":")
    def raw(self, s): self.l.append(s)
    def text(self): return "\n".join(self.l) + "\n"
    def vreset(self): self.vm = []; self.done = 0
    def vmem(self, s, tag=None):
        self(s); self.vm.append(tag)
    def vwait(self, tag, extra=""):
        idx = [i for i, t in enumerate(self.vm) if t == tag]
        assert idx, tag
        last = idx[-1] + 1
        if last <= self.done:
            if extra: self(f"s_waitcnt {extra}")
            return
        self.done = last
        n = len(self.vm) - last
        assert n < 64
        self(f"s_waitcnt vmcnt({n}) {extra}".rstrip())
    def vall(self, extra=""):
        self.done = len(self.vm); self(f"s_waitcnt vmcnt(0) {extra}".rstrip())

def vr(b, n): return f"v[{b}:{b+n-1}]"
def S4(b): return f"s[{b}:{b+3}]"
def S2(b): return f"s[{b}:{b+1}]"
def stamp(a, name):
    if STAMP and name in STL:
        i = STL.index(name)
        a(f"s_memtime s[{80+2*i}:{81+2*i}]")

rX, rW, rWS, rWO, rOUT, rDBG, rKV, rBR = 24, 28, 32, 36, 64, 68, 72, 12
XM = 4
sLOC = 6
sRT = 7
sOUTO = 8
sQT = 9
sF1O = 10
sQO = 11
sx, sidx, sb, srb, shalf, sXS, sw, shl, swp, sqb, sg, sWL, sXL, sWS_, stt, scg, skq, su = range(40, 58)
t0, t1, sDL, t2, sROT, t3 = 58, 59, 60, 61, 62, 63
NONCE = 76; RT = 78
sKVO, sWOS, sWOL, sOO, sF2O = 16, 17, 18, 19, 22
L16, IDX, WOA, F1A, F2A, OUTA, QW, QR, PW, PR, TAU = 1, 2, 3, 4, 5, 6, 7, 8, 11, 14, 15
T = 240
XD, WD, XA, WA1, VPAD, NV, NA, PTA = 16, 18, 21, 29, 31, 232, 234, 235
ACC = [32, 48, 64]; FR = [80, 144]; P1 = 208
Q = [16, 24, 32, 40]; O = [48, 64, 80, 96]; SB = [112, 128, 144, 160]; KB = [176, 184, 192, 200]; VB = [208, 216, 224, 232]

def poll(a, name, vaddr, srd):
    a(f"s_mov_b32 s{t3}, {SPIN}")
    if SLEEP: a(f"s_branch {name}_first")
    a.lab(f"{name}_spin")
    if SLEEP:
        a(f"s_sleep {SLEEP}")
        a.lab(f"{name}_first")
    a(f"buffer_load_dwordx2 {vr(T+14,2)}, v{vaddr}, {S4(srd)}, 0 offen sc1")
    a(f"s_sub_u32 s{t3}, s{t3}, 1")
    a("s_cbranch_scc1 L_end")
    a("s_waitcnt vmcnt(0)")
    a(f"v_cmp_ne_u64 vcc, {S2(NONCE)}, {vr(T+14,2)}")
    a(f"s_cbranch_vccnz {name}_spin")

def gen():
    a = A(); n = NAME + "_kernel"
    u0, u1, u2, u3, u4 = T, T + 1, T + 2, T + 3, T + 4
    a.raw(f".globl {n}\n.p2align 8\n.type {n},@function")
    a.lab(n)
    a("s_cmp_ge_u32 s2, 256")
    a("s_cbranch_scc1 L_end")
    a("s_load_dwordx16 s[4:19], s[0:1], 0")
    a("s_load_dwordx2 s[20:21], s[0:1], 64")
    a(f"s_memrealtime {S2(RT)}")
    if STAMP: a("s_memtime s[100:101]")
    a(f"s_and_b32 s{sx}, s2, 7")
    a(f"s_lshr_b32 s{sidx}, s2, 3")
    a(f"s_lshr_b32 s{sb}, s{sx}, 2")
    a(f"s_lshr_b32 s{srb}, s{sidx}, 1")
    a(f"s_and_b32 s{shalf}, s{sidx}, 1")
    a("v_lshrrev_b32 v1, 6, v0")
    a("v_and_b32 v0, 63, v0")
    a(f"v_readfirstlane_b32 s{sw}, v1")
    a(f"v_lshrrev_b32 v{u0}, 3, v0")
    a(f"s_lshl_b32 s{t0}, s{srb}, 7")
    a(f"s_lshl_b32 s{t1}, s{sw}, 4")
    a(f"s_add_u32 s{t0}, s{t0}, s{t1}")
    a(f"v_add_u32 v{u0}, s{t0}, v{u0}")
    a(f"v_mul_u32_u24 v{u0}, 896, v{u0}")
    a(f"v_lshrrev_b32 v{u1}, 4, v0")
    a(f"v_and_b32 v{u2}, 7, v0")
    a(f"v_xor_b32 v{u2}, v{u2}, v{u1}")
    a(f"v_lshl_add_u32 v{XD}, v{u2}, 4, v{u0}")
    a(f"v_xor_b32 v{u2}, 4, v{u2}")
    a(f"v_lshl_add_u32 v{XD+1}, v{u2}, 4, v{u0}")
    a(f"v_add_u32 v{XD+1}, 7168, v{XD+1}")
    a(f"s_min_u32 s{swp}, s{sw}, 6")
    a(f"s_mul_i32 s{t0}, s{swp}, 192")
    a(f"s_and_b32 s{t1}, s{sx}, 3")
    a(f"s_mul_i32 s{t1}, s{t1}, 224")
    a(f"s_mul_i32 s{t2}, s{shalf}, 1008")
    a(f"s_add_u32 s{t1}, s{t1}, s{t2}")
    a(f"s_lshr_b32 s{t2}, 14, s{shalf}")
    a(f"v_mov_b32 v{u4}, 672")
    for i in range(3):
        a(f"v_add_u32 v{u0}, s{t0}, v0")
        if i: a(f"v_add_u32 v{u0}, {64*i}, v{u0}")
        a(f"v_mul_u32_u24 v{u1}, 3121, v{u0}")
        a(f"v_lshrrev_b32 v{u1}, 16, v{u1}")
        a(f"v_mul_u32_u24 v{u2}, 21, v{u1}")
        a(f"v_sub_u32 v{u0}, v{u0}, v{u2}")
        a(f"v_and_b32 v{u2}, 48, v{u1}")
        a(f"v_and_b32 v{u3}, 3, v{u1}")
        a(f"v_lshl_add_u32 v{u2}, v{u3}, 2, v{u2}")
        a(f"v_bfe_u32 v{u3}, v{u1}, 2, 2")
        a(f"v_add_u32 v{u2}, v{u2}, v{u3}")
        a(f"v_mul_u32_u24 v{u2}, 2688, v{u2}")
        a(f"v_cmp_le_u32 vcc, s{t2}, v{u0}")
        a(f"v_lshl_add_u32 v{u2}, v{u0}, 4, v{u2}")
        a(f"v_add_u32 v{u2}, s{t1}, v{u2}")
        a(f"v_cndmask_b32 v{u3}, 0, v{u4}, vcc")
        a(f"v_add_u32 v{WD+i}, v{u2}, v{u3}")
    a(f"s_mul_i32 s{sROT}, s{srb}, {ROTA}")
    a(f"s_mul_i32 s{t2}, s{shalf}, {ROTB}")
    a(f"s_add_u32 s{sROT}, s{sROT}, s{t2}")
    a(f"s_and_b32 s{t2}, s{sx}, 3")
    a(f"s_mul_i32 s{t2}, s{t2}, {ROTC}")
    a(f"s_add_u32 s{sROT}, s{sROT}, s{t2}")
    a(f"s_mul_i32 s{t2}, s{sROT}, {(65536 + ROTN - 1)//ROTN}")
    a(f"s_lshr_b32 s{t2}, s{t2}, 16")
    a(f"s_mul_i32 s{t2}, s{t2}, {ROTN}")
    a(f"s_sub_u32 s{sROT}, s{sROT}, s{t2}")
    a(f"s_mul_i32 s{sROT}, s{sROT}, {ROTS}")
    assert (ROTN - 1) * ROTS < 7
    a(f"s_mul_i32 s{sWL}, s{swp}, 3072")
    a(f"s_lshl_b32 s{sXL}, s{sw}, 11")
    a(f"s_add_u32 s{sXL}, s{sXL}, {XOFF}")
    a("s_waitcnt lgkmcnt(0)")
    a(f"s_cmp_eq_u32 s{sb}, 0")
    a(f"s_cselect_b32 s{rX}, s4, s10")
    a(f"s_cselect_b32 s{rX+1}, s5, s11")
    a(f"s_mov_b32 s{rX+2}, 1835008")
    a(f"s_mov_b32 s{rX+3}, 0x00020000")
    a(f"s_cselect_b32 s{rW}, s6, s12")
    a(f"s_cselect_b32 s{rW+1}, s7, s13")
    a(f"s_mov_b32 s{rW+2}, 1204224")
    a(f"s_mov_b32 s{rW+3}, 0x00020000")
    def dma_parts(ch):
        st = (ch % 4) * STAGE
        parts = []
        def part(pre, ins, post=()):
            def f():
                for x in pre: a(x)
                a.vmem(ins, ("c", ch))
                for x in post: a(x)
            parts.append(f)
        part([f"s_add_u32 m0, s{sXL}, {st}", f"s_lshl_b32 s{sXS}, s{sROT}, 7"], f"buffer_load_dwordx4 v{XD}, {S4(rX)}, s{sXS} offen lds")
        part([f"s_add_u32 m0, s{sXL}, {st+1024}", f"s_mul_i32 s{sWS_}, s{sROT}, 172032"], f"buffer_load_dwordx4 v{XD+1}, {S4(rX)}, s{sXS} offen lds")
        part([f"s_add_u32 m0, s{sWL}, {st}", f"s_add_u32 s{sROT}, s{sROT}, 1"], f"buffer_load_dwordx4 v{WD}, {S4(rW)}, s{sWS_} offen lds")
        part([f"s_add_u32 m0, s{sWL}, {st+1024}", "s_nop 0"], f"buffer_load_dwordx4 v{WD+1}, {S4(rW)}, s{sWS_} offen lds")
        part([f"s_add_u32 m0, s{sWL}, {st+2048}", f"s_cmp_eq_u32 s{sROT}, 7"], f"buffer_load_dwordx4 v{WD+2}, {S4(rW)}, s{sWS_} offen lds",
             [f"s_cselect_b32 s{sROT}, 0, s{sROT}"])
        return parts
    def dma(ch):
        for f in dma_parts(ch): f()
    dma(0)
    a(f"s_cmp_eq_u32 s{sb}, 0")
    a(f"s_cselect_b32 s{rWO}, s8, s14")
    a(f"s_cselect_b32 s{rWO+1}, s9, s15")
    a(f"s_mov_b32 s{rWO+2}, 401408")
    a(f"s_mov_b32 s{rWO+3}, 0x00020000")
    for d, lo, sz in ((rOUT, 16, 2048 * 896 * 2), (rDBG, 18, 256)):
        a(f"s_mov_b32 s{d}, s{lo}"); a(f"s_mov_b32 s{d+1}, s{lo+1}"); a(f"s_mov_b32 s{d+2}, {sz}"); a(f"s_mov_b32 s{d+3}, 0x00020000")
    a(f"s_lshl_b32 s{t2}, s{sx}, 21")
    a(f"s_add_u32 s{rWS}, s20, s{t2}")
    a(f"s_addc_u32 s{rWS+1}, s21, 0")
    a(f"s_mov_b32 s{rWS+2}, {2<<20}")
    a(f"s_mov_b32 s{rWS+3}, 0x00020000")
    a(f"s_lshl_b32 s{t2}, s{sb}, 21")
    a(f"s_add_u32 s{t2}, s{t2}, {B_BASE}")
    a(f"s_add_u32 s{rBR}, s20, s{t2}")
    a(f"s_addc_u32 s{rBR+1}, s21, 0")
    a(f"s_mov_b32 s{rBR+2}, {2<<20}")
    a(f"s_mov_b32 s{rBR+3}, 0x00020000")
    a(f"s_and_b32 s{shl}, s{sidx}, 3")
    a(f"s_lshl_b32 s{t2}, s{shl}, 18")
    a(f"s_add_u32 s{rKV}, s{rWS}, s{t2}")
    a(f"s_addc_u32 s{rKV+1}, s{rWS+1}, 0")
    a(f"s_mov_b32 s{rKV+2}, 262144")
    a(f"s_mov_b32 s{rKV+3}, 0x00020000")
    a(f"s_lshl_b32 s{sDL}, s{sb}, 3")
    a(f"s_getreg_b32 s{XM}, hwreg(HW_REG_XCC_ID)")
    a(f"s_and_b32 s{XM}, s{XM}, 15")
    a(f"s_lshl_b32 s{t0}, s{sx}, 4")
    a(f"s_or_b32 s{XM}, s{XM}, s{t0}")
    a(f"s_or_b32 s{XM}, s{XM}, 0x80")
    a(f"s_mul_i32 s{XM}, s{XM}, 0x01010101")
    a(f"s_mov_b32 s{XM+1}, s{XM}")
    a(f"s_and_b32 s{t1}, s{sx}, 3")
    a(f"s_lshl_b32 s{t1}, s{t1}, 5")
    a(f"s_add_u32 s{t1}, s{t1}, 128")
    a(f"v_and_b32 v{NA}, 3, v0")
    a(f"v_lshlrev_b32 v{NA}, 3, v{NA}")
    a(f"v_add_u32 v{NA}, s{t1}, v{NA}")
    a("s_mov_b64 exec, 1")
    a(f"v_mov_b32 v{NA}, s{sDL}")
    a("s_mov_b64 exec, -1")
    a(f"s_cmp_lg_u32 s{sw}, 7")
    a("s_cbranch_scc1 L_noprop")
    a(f"v_mov_b32 v{NV}, s{XM}")
    a(f"s_add_u32 s{t2}, s{t1}, s{sidx}")
    a("s_mov_b64 exec, 1")
    a(f"buffer_store_byte v{NV}, off, {S4(rDBG)}, s{t2}")
    a("s_mov_b64 exec, -1")
    a(f"s_cmp_lg_u32 s{sidx}, 0")
    a("s_cbranch_scc1 L_noprop")
    a(f"s_or_b32 s{t0}, s{RT}, 1")
    a(f"s_or_b32 s{t2}, s{RT+1}, 1")
    a(f"v_mov_b32 v236, s{t0}")
    a(f"v_mov_b32 v237, s{t2}")
    a("v_mov_b32 v238, 0")
    a("v_mov_b32 v239, 0")
    a("s_mov_b64 exec, 1")
    a(f"buffer_atomic_cmpswap_x2 v[236:239], off, {S4(rDBG)}, s{sDL} sc1")
    a("s_mov_b64 exec, -1")
    a.lab("L_noprop")
    for ch in range(1, INIT): dma(ch)
    a(f"s_and_b32 s{stt}, s{sw}, 3")
    a(f"s_lshr_b32 s{scg}, s{sw}, 2")
    a(f"v_and_b32 v{u0}, 31, v0")
    a(f"s_lshl_b32 s{t0}, s{stt}, 5")
    a(f"v_add_u32 v{u0}, s{t0}, v{u0}")
    a(f"v_bfe_u32 v{u1}, v{u0}, 1, 3")
    a(f"v_lshrrev_b32 v{u2}, 5, v0")
    a(f"v_xor_b32 v{u1}, v{u1}, v{u2}")
    a(f"v_lshlrev_b32 v{u1}, 4, v{u1}")
    a(f"v_lshl_add_u32 v{u1}, v{u0}, 7, v{u1}")
    for ks in range(4):
        a(f"v_xor_b32 v{XA+ks}, {32*ks}, v{u1}")
        a(f"v_add_u32 v{XA+ks}, {XOFF}, v{XA+ks}")
        a(f"v_add_u32 v{XA+4+ks}, {2*STAGE}, v{XA+ks}")
    a(f"v_bfe_u32 v{u0}, v0, 2, 2")
    a(f"v_lshlrev_b32 v{u0}, 1, v{u0}")
    a(f"v_add_u32 v{u0}, v{u0}, v{u2}")
    a(f"v_mul_u32_u24 v{u0}, 672, v{u0}")
    a(f"v_bfe_u32 v{u1}, v0, 4, 1")
    a(f"v_lshl_add_u32 v{u0}, v{u1}, 5, v{u0}")
    a(f"v_and_b32 v{u1}, 3, v0")
    a(f"v_lshl_add_u32 v{u0}, v{u1}, 3, v{u0}")
    a(f"s_mul_i32 s{t0}, s{scg}, 168")
    a(f"v_add_u32 v{WA1}, s{t0}, v{u0}")
    a(f"v_add_u32 v{WA1+1}, {2*STAGE}, v{WA1}")
    a(f"v_and_b32 v{u0}, 0x33, v0")
    a(f"v_bfe_u32 v{u1}, v0, 2, 1")
    a(f"v_lshl_add_u32 v{u0}, v{u1}, 3, v{u0}")
    a(f"v_bfe_u32 v{u1}, v0, 3, 1")
    a(f"v_lshl_add_u32 v{u0}, v{u1}, 2, v{u0}")
    a(f"v_lshlrev_b32 v{TAU}, 4, v{u0}")
    a(f"v_lshlrev_b32 v{L16}, 4, v0")
    a(f"v_and_b32 v{u0}, 31, v0")
    a(f"v_mov_b32 v{u1}, 0x3f803f80")
    a(f"v_cmp_eq_u32 vcc, 28, v{u0}")
    a(f"s_lshl_b32 s{su}, s{shalf}, 1")
    a(f"s_add_u32 s{su}, s{su}, s{scg}")
    a(f"v_cndmask_b32 v{VPAD}, 0, v{u1}, vcc")
    a(f"v_mov_b32 v{IDX}, 0xdddddddd")
    a(f"s_lshr_b32 s{sqb}, s{sidx}, 2")
    a(f"s_and_b32 s{sg}, s{sw}, 1")
    a(f"s_lshr_b32 s{skq}, s{sw}, 1")
    a(f"s_lshl_b32 s{t3}, s{sg}, 2")
    a(f"s_add_u32 s{t0}, s{t3}, s{skq}")
    a(f"s_lshl_b32 s{sQT}, s{sqb}, 3")
    a(f"s_add_u32 s{sQT}, s{sQT}, s{t0}")
    a(f"s_lshl_b32 s{t1}, s{t0}, 11")
    a(f"s_add_u32 s{t1}, s{t1}, {QX}")
    a(f"v_add_u32 v{QW}, s{t1}, v{L16}")
    a(f"s_mul_i32 s{t1}, s{t0}, 12288")
    a(f"s_add_u32 s{t1}, s{t1}, {CB}")
    a(f"v_add_u32 v{PR}, s{t1}, v{L16}")
    for i in range(3):
        a(f"s_add_u32 s{t0}, s{skq}, {1+i}")
        a(f"s_and_b32 s{t0}, s{t0}, 3")
        a(f"s_add_u32 s{t0}, s{t0}, s{t3}")
        a(f"s_lshl_b32 s{t1}, s{t0}, 11")
        a(f"s_add_u32 s{t1}, s{t1}, {QX}")
        a(f"v_add_u32 v{QR+i}, s{t1}, v{L16}")
        a(f"s_mul_i32 s{t1}, s{t0}, 12288")
        a(f"s_add_u32 s{t1}, s{t1}, {CB + 4096*i}")
        a(f"v_add_u32 v{PW+i}, s{t1}, v{L16}")
    a(f"s_lshl_b32 s{sKVO}, s{skq}, 16")
    a(f"s_lshl_b32 s{sQO}, s{shl}, 6")
    a(f"s_add_u32 s{sQO}, s{sQO}, s{sQT}")
    a(f"s_lshl_b32 s{sQO}, s{sQO}, 11")
    a(f"s_add_u32 s{sQO}, s{sQO}, {X_QF}")
    a(f"s_lshl_b32 s{sF1O}, s{su}, 4")
    a(f"s_add_u32 s{sF1O}, s{sF1O}, s{srb}")
    a(f"s_lshl_b32 s{sF1O}, s{sF1O}, 7")
    a(f"s_lshl_b32 s{t0}, s{stt}, 3")
    a(f"s_add_u32 s{sF1O}, s{sF1O}, s{t0}")
    a(f"s_add_u32 s{sF1O}, s{sF1O}, {X_F1}")
    a(f"s_mul_i32 s{t2}, s{shl}, 43")
    a(f"s_lshr_b32 s{t0}, s{t2}, 7")
    a(f"s_add_u32 s{t2}, s{t2}, {4*43}")
    a(f"s_lshr_b32 s{t1}, s{t2}, 7")
    a(f"s_add_u32 s{t2}, s{t2}, {4*43}")
    a(f"s_lshr_b32 s{t3}, s{t2}, 7")
    a(f"v_and_b32 v{u0}, 15, v0")
    a(f"s_lshl_b32 s{t2}, s{skq}, 4")
    a(f"v_add_u32 v{u0}, s{t2}, v{u0}")
    a(f"v_mov_b32 v{u1}, s{t1}")
    a("s_mov_b32 exec_lo, 0xffff0000")
    a(f"v_mov_b32 v{u1}, s{t3}")
    a("s_mov_b32 exec_lo, 0")
    a(f"v_mov_b32 v{u1}, s{t0}")
    a(f"v_mov_b32 v{u0}, s{sQT}")
    a("s_mov_b32 exec_lo, -1")
    a(f"v_lshlrev_b32 v{u1}, 11, v{u1}")
    a(f"v_lshrrev_b32 v{u3}, 2, v{u0}")
    a(f"v_lshl_add_u32 v{u1}, v{u3}, 7, v{u1}")
    a(f"v_and_b32 v{u0}, 3, v{u0}")
    a(f"v_lshl_add_u32 v{u0}, v{u0}, 3, v{u1}")
    a(f"v_add_u32 v{F1A}, {X_F1}, v{u0}")
    a(f"s_lshl_b32 s{t0}, s{shl}, 18")
    a(f"s_add_u32 s{t0}, s{t0}, s{sKVO}")
    a(f"s_lshl_b32 s{t1}, s{sqb}, 1")
    a(f"s_add_u32 s{t1}, s{t1}, s{sg}")
    a(f"s_lshl_b32 s{t1}, s{t1}, 7")
    a(f"s_add_u32 s{t0}, s{t0}, s{t1}")
    a(f"v_subrev_u32 v{u0}, 16, v0")
    a(f"v_lshlrev_b32 v{u0}, 11, v{u0}")
    a(f"v_add_u32 v{PTA}, s{t0}, v{u0}")
    a("s_mov_b64 exec, 0xffff")
    a(f"v_lshlrev_b32 v{u0}, 7, v0")
    a(f"v_add_u32 v{PTA}, s{sQO}, v{u0}")
    a("s_mov_b64 exec, -1")
    a(f"s_lshl_b32 s{t0}, s{swp}, 6")
    a(f"v_add_u32 v{u0}, s{t0}, v0")
    a(f"v_mul_u32_u24 v{u1}, 4682, v{u0}")
    a(f"v_lshrrev_b32 v{u1}, 16, v{u1}")
    a(f"v_mul_u32_u24 v{u3}, 14, v{u1}")
    a(f"v_sub_u32 v{u0}, v{u0}, v{u3}")
    a(f"v_and_b32 v{u3}, 24, v{u1}")
    a(f"v_and_b32 v{u4}, 1, v{u1}")
    a(f"v_lshl_add_u32 v{u3}, v{u4}, 2, v{u3}")
    a(f"v_bfe_u32 v{u4}, v{u1}, 1, 2")
    a(f"v_add_u32 v{u3}, v{u3}, v{u4}")
    a(f"v_mul_u32_u24 v{u3}, 896, v{u3}")
    a(f"v_lshl_add_u32 v{u3}, v{u0}, 4, v{u3}")
    a(f"s_mul_i32 s{t0}, s{shl}, 224")
    a(f"v_add_u32 v{WOA}, s{t0}, v{u3}")
    a(f"s_lshl_b32 s{swp}, s{swp}, 10")
    a(f"s_mov_b32 s{sWOS}, 0")
    a(f"s_mov_b32 s{sWOL}, s{swp}")
    a(f"s_mul_i32 s{sOUTO}, s{sb}, 896")
    a(f"s_add_u32 s{sOUTO}, s{sOUTO}, s{t0}")
    a(f"s_lshl_b32 s{t1}, s{skq}, 6")
    a(f"s_add_u32 s{sOUTO}, s{sOUTO}, s{t1}")
    a(f"s_and_b32 s{t0}, s{sx}, 3")
    a(f"s_lshl_b32 s{t1}, s{t0}, 3")
    a(f"s_add_u32 s{t1}, s{t1}, s{sqb}")
    a(f"s_lshl_b32 s{t1}, s{t1}, 1")
    a(f"s_add_u32 s{sRT}, s{t1}, s{sg}")
    a(f"s_lshl_b32 s{t0}, s{t0}, 2")
    a(f"s_add_u32 s{t0}, s{t0}, s{shl}")
    a(f"s_lshl_b32 s{t1}, s{sQT}, 4")
    a(f"s_add_u32 s{t1}, s{t1}, s{t0}")
    a(f"s_mul_i32 s{sOO}, s{t1}, 1792")
    a(f"s_mul_i32 s{sF2O}, s{t1}, {F2SP}")
    a(f"s_add_u32 s{sF2O}, s{sF2O}, {B_F2}")
    a(f"s_lshl_b32 s{t0}, s{sRT}, 4")
    a(f"s_lshl_b32 s{t1}, s{skq}, 2")
    a(f"s_add_u32 s{t0}, s{t0}, s{t1}")
    a(f"v_and_b32 v{u0}, 3, v0")
    a(f"v_add_u32 v{u0}, s{t0}, v{u0}")
    a(f"v_mul_u32_u24 v{u0}, {F2SP}, v{u0}")
    a(f"v_add_u32 v{F2A}, {B_F2}, v{u0}")
    a(f"v_and_b32 v{u0}, 31, v0")
    a(f"s_lshl_b32 s{t0}, s{sRT}, 5")
    a(f"v_add_u32 v{u0}, s{t0}, v{u0}")
    a(f"v_mul_u32_u24 v{u0}, 1792, v{u0}")
    a(f"v_lshl_add_u32 v{OUTA}, v{u2}, 5, v{u0}")
    stamp(a, "setup")
    a(f"s_cmp_lt_u32 s{su}, 2")
    a("s_cbranch_scc1 P1_v0")
    a(f"s_cmp_eq_u32 s{su}, 2")
    a("s_cbranch_scc1 P1_v1")
    a("s_branch P1_v2")
    def reads(ch):
        st = ch % 4
        xa = XA if st < 2 else XA + 4
        wa = WA1 if st < 2 else WA1 + 1
        so = (st % 2) * STAGE
        fr = FR[ch % 2]
        out = []
        for ks in range(4):
            b = fr + 16 * ks
            out.append(f"ds_read_b128 {vr(b,4)}, v{xa+ks} offset:{so}")
            for c in range(3):
                for h in range(2):
                    out.append(f"ds_read_b64_tr_b16 {vr(b+4+4*c+2*h,2)}, v{wa} offset:{so + (16*ks+h)*336 + 56*c}")
        return out
    def mfmas(ch, ori):
        fr = FR[ch % 2]
        out = []
        order = [(ks, c) for ks in range(4) for c in range(3)] if ch < 6 else [(ks, c) for c in range(3) for ks in range(4)]
        for ks, c in order:
            b = fr + 16 * ks
            x = vr(b, 4); w = vr(b + 4 + 4 * c, 4)
            p, q = (w, x) if ori[c] == 'n' else (x, w)
            cc = "0" if (ch == 0 and ks == 0) else vr(ACC[c], 16)
            out.append(f"v_mfma_f32_32x32x16_bf16 {vr(ACC[c],16)}, {p}, {q}, {cc}")
        return out
    vm0, done0 = list(a.vm), a.done
    for v, ori in enumerate(["nnn", "nnv", "vvv"]):
        a.vm, a.done = list(vm0), done0
        a.lab(f"P1_v{v}")
        issued = INIT
        for ch in range(7):
            a.vwait(("c", ch), "lgkmcnt(0)")
            a("s_barrier")
            stamp(a, f"c{ch}")
            parts = []
            while issued <= min(6, ch + DIST):
                assert issued - 4 < ch
                parts += dma_parts(issued); issued += 1
            if ch == 5:
                assert not parts
                a.vmem(f"buffer_load_dwordx2 {vr(NV,2)}, v{NA}, {S4(rDBG)}, 0 offen sc1", "nonce")
                a.vmem(f"buffer_load_dword v{T+9}, v{F1A}, {S4(rWS)}, 0 offen sc1", "warm")
                if PRET:
                    a(f"s_mov_b64 exec, {(1 << (16 + 2*PRET)) - 1:#x}")
                    a.vmem(f"buffer_load_dword v{T+8}, v{PTA}, {S4(rWS)}, 0 offen sc1", "warm")
                    a("s_mov_b64 exec, -1")
            rd = reads(ch)
            mf = mfmas(ch - 1, ori) if ch >= 1 else []
            if DPOS == "begin" or (ch == 0 and INIT == 1):
                k = len(parts) if DPOS == "begin" else 5
                for f in parts[:k]: f()
                parts = parts[k:]
            i = 0
            for mi, m in enumerate(mf):
                a(m)
                for _ in range(3):
                    if i < len(rd): a(rd[i]); i += 1
                if DPOS == "mid" and parts and mi % 2 == 1:
                    parts.pop(0)()
            while i < len(rd): a(rd[i]); i += 1
            for f in parts: f()
        a.vwait("nonce", "lgkmcnt(0)")
        mf = mfmas(6, ori)
        for m in mf[0:4]: a(m)
        a(f"v_cmp_eq_u64 vcc, {S2(XM)}, {vr(NV,2)}")
        a(f"s_and_b32 s{t0}, vcc_lo, 0xf0")
        a(f"s_cmp_eq_u32 s{t0}, 0xf0")
        a(f"s_cselect_b32 s{sLOC}, {1 if LOCAL else 0}, 0")
        def st2(P, va, off, tag):
            a(f"s_cmp_eq_u32 s{sLOC}, 0")
            a(f"s_cbranch_scc1 L_wt{tag}")
            a(f"buffer_store_dwordx4 {vr(P,4)}, v{va}, {S4(rWS)}, s{t1} offen offset:{off}")
            a(f"buffer_store_dwordx4 {vr(P+4,4)}, v{va}, {S4(rWS)}, s{t1} offen offset:{off+1024}")
            a.lab(f"L_st{tag}")
            tails.append((tag, P, va, off))
        def epi(c):
            P = P1 + 8 * c
            a(f"s_mul_i32 s{t0}, s{su}, 3")
            a(f"s_add_u32 s{t0}, s{t0}, {c}")
            a(f"s_and_b32 s{t1}, s{t0}, 3")
            a(f"s_lshl_b32 s{t2}, s{srb}, 2")
            a(f"s_add_u32 s{t2}, s{t2}, s{stt}")
            a(f"s_lshl_b32 s{t1}, s{t1}, 6")
            a(f"s_add_u32 s{t1}, s{t1}, s{t2}")
            if ori[c] == 'n':
                a(f"s_cmp_lt_u32 s{t0}, 4")
                a(f"s_cselect_b32 s{t2}, {CSCALE:#x}, 1.0")
                a(f"s_cselect_b32 s{sROT}, 0, 0x3f80")
                a(f"s_cselect_b32 s{t3}, 11, 12")
                a(f"s_cselect_b32 s{t0}, {X_QF}, {X_KV}")
                a(f"s_lshl_b32 s{t1}, s{t1}, s{t3}")
                a(f"s_add_u32 s{t1}, s{t1}, s{t0}")
                if v == 0:
                    for r in range(16): a(f"v_mul_f32 v{ACC[c]+r}, s{t2}, v{ACC[c]+r}")
                for i in range(8): a(f"v_cvt_pk_bf16_f32 v{P+i}, v{ACC[c]+2*i}, v{ACC[c]+2*i+1}")
                a("s_mov_b32 exec_lo, 0")
                a(f"v_mov_b32 v{P+6}, s{sROT}")
                a(f"v_mov_b32 v{P+7}, 0")
                a("s_mov_b32 exec_lo, -1")
                st2(P, TAU, 0, f"{v}_{c}")
            else:
                a(f"s_lshl_b32 s{t1}, s{t1}, 12")
                a("s_nop 4")
                for i in range(8): a(f"v_cvt_pk_bf16_f32 v{P+i}, v{ACC[c]+2*i}, v{ACC[c]+2*i+1}")
                a("s_mov_b32 exec_lo, 0xf0000000")
                a("s_mov_b32 exec_hi, 0xf0000000")
                for i in range(8): a(f"v_mov_b32 v{P+i}, v{VPAD}")
                a("s_mov_b64 exec, -1")
                st2(P, L16, 2048, f"{v}_{c}")
        for m in mf[4:8]: a(m)
        epi(0)
        for m in mf[8:12]: a(m)
        epi(1)
        stamp(a, "p1end")
        epi(2)
        if v < 2: a("s_branch P1_done")
    a.lab("P1_done")
    a.vreset()
    for i in range(4):
        for r in range(16): a(f"v_mov_b32 v{O[i]+r}, 0")
    a(f"s_mov_b32 s{t3}, {SPIN}")
    a.lab("L_nonce")
    a(f"v_readfirstlane_b32 s{NONCE}, v{NV}")
    a(f"v_readfirstlane_b32 s{NONCE+1}, v{NV+1}")
    a(f"s_cmp_lg_u32 s{NONCE}, 0")
    a(f"s_cselect_b32 s{t2}, s{NONCE+1}, 0")
    a(f"s_cmp_lg_u32 s{t2}, 0")
    a("s_cbranch_scc0 L_nonce_retry")
    a("s_mov_b64 exec, 1")
    a(f"s_cmp_eq_u32 s{sLOC}, 0")
    a("s_waitcnt vmcnt(0)")
    a("s_cbranch_scc1 L_f1wt")
    a(f"buffer_store_dwordx2 {vr(NV,2)}, off, {S4(rWS)}, s{sF1O}")
    a.lab("L_f1st")
    a("s_mov_b64 exec, -1")
    stamp(a, "ack1")
    poll(a, "L_f1", F1A, rWS)
    stamp(a, "poll1")
    def ldK(kt, f): a.vmem(f"buffer_load_dwordx4 {vr(KB[kt%4]+4*f,4)}, v{L16}, {S4(rKV)}, s{sKVO} offen offset:{1024*f} sc1", ("K", kt))
    def ldV(kt, f): a.vmem(f"buffer_load_dwordx4 {vr(VB[kt%4]+4*f,4)}, v{L16}, {S4(rKV)}, s{sKVO} offen offset:{2048+1024*f} sc1", ("V", kt))
    def adv(): a(f"s_add_u32 s{sKVO}, s{sKVO}, 4096")
    def qk(p):
        kt, i = divmod(p, 4)
        s = SB[p % 4]; k = KB[kt % 4]
        return [f"v_mfma_f32_32x32x16_bf16 {vr(s,16)}, {vr(k,4)}, {vr(Q[i],4)}, 0",
                f"v_mfma_f32_32x32x16_bf16 {vr(s,16)}, {vr(k+4,4)}, {vr(Q[i]+4,4)}, {vr(s,16)}"]
    def pv(p):
        kt, i = divmod(p, 4)
        s = SB[p % 4]; v = VB[kt % 4]
        return [f"v_smfmac_f32_32x32x32_bf16 {vr(O[i],16)}, {vr(v,4)}, {vr(s,8)}, v{IDX}",
                f"v_smfmac_f32_32x32x32_bf16 {vr(O[i],16)}, {vr(v+4,4)}, {vr(s+8,8)}, v{IDX}"]
    a.vmem(f"buffer_load_dwordx4 {vr(Q[3],4)}, v{L16}, {S4(rWS)}, s{sQO} offen sc1", "Q")
    ldK(0, 0)
    a.vmem(f"buffer_load_dwordx4 {vr(Q[3]+4,4)}, v{L16}, {S4(rWS)}, s{sQO} offen offset:1024 sc1", "Q")
    ldK(0, 1)
    a.vwait(("K", 0))
    stamp(a, "k0")
    for x in qk(3): a(x)
    a(f"ds_write_b128 v{QW}, {vr(Q[3],4)}")
    ldV(0, 0); ldV(0, 1); adv(); ldK(1, 0); ldK(1, 1)
    a("s_nop 5")
    s = SB[3]
    a(f"v_max3_f32 v{T}, v{s}, v{s+1}, v{s+2}")
    a(f"v_max3_f32 v{T+1}, v{s+3}, v{s+4}, v{s+5}")
    for i in range(6, 14, 4):
        a(f"v_max3_f32 v{T}, v{T}, v{s+i}, v{s+i+1}")
        a(f"v_max3_f32 v{T+1}, v{T+1}, v{s+i+2}, v{s+i+3}")
    a(f"v_max3_f32 v{T}, v{T}, v{s+14}, v{s+15}")
    a(f"v_max_f32 v{T}, v{T}, v{T+1}")
    a(f"v_mov_b32 v{T+1}, v{T}")
    a("s_nop 1")
    a(f"v_permlane32_swap_b32 v{T}, v{T+1}")
    a(f"v_max_f32 v{T}, v{T}, v{T+1}")
    if FORCEFB: a(f"v_add_f32 v{T}, 0x43480000, v{T}")
    a(f"v_xor_b32 v{T}, 0x80000000, v{T}")
    a("s_mov_b32 exec_lo, 0")
    a(f"v_lshrrev_b32 v{Q[3]+6}, 16, v{T}")
    a("s_mov_b32 exec_lo, -1")
    a(f"ds_write_b128 v{QW}, {vr(Q[3]+4,4)} offset:1024")
    stamp(a, "max")
    a("s_waitcnt lgkmcnt(0)")
    a("s_barrier")
    stamp(a, "bq1")
    for i in range(3):
        a(f"ds_read_b128 {vr(Q[i],4)}, v{QR+i}")
        a(f"ds_read_b128 {vr(Q[i]+4,4)}, v{QR+i} offset:1024")
    a("s_waitcnt lgkmcnt(4)")
    for x in qk(0): a(x)
    a(f"s_mul_i32 s{t0}, s{sRT}, 57344")
    a("s_waitcnt lgkmcnt(0)")
    a("s_barrier")
    a("s_nop 7")
    lq = [(lambda: ldV(1, 0), 0), (lambda: (ldV(1, 1), adv()), 0)]
    for k in range(2, 16):
        lq += [(lambda k=k: ldK(k, 0), 4 * (k - 4) + 3), (lambda k=k: ldK(k, 1), 4 * (k - 4) + 3),
               (lambda k=k: ldV(k, 0), 4 * (k - 4) + 5), (lambda k=k: (ldV(k, 1), adv()), 4 * (k - 4) + 5)]
    stamp(a, "loop0")
    NP = 64
    for p in range(NP):
        kt, i = divmod(p, 4)
        s = SB[p % 4]
        stamp(a, f"ph{p}")
        ms = (qk(p + 1) if p + 1 < NP else [None, None]) + (pv(p - 1) if p >= 1 else [None, None])
        extra = [[], [], [], []]
        for g in ((0, 1) if p < 6 else (0,)):
            if lq and lq[0][1] <= p: extra[g].append(lq.pop(0)[0])
        if i == 1 and kt < 14:
            if kt < 9:
                extra[1].append(lambda: a(f"s_mov_b32 m0, s{sWOL}"))
                extra[2].append(lambda: a.vmem(f"buffer_load_dwordx4 v{WOA}, {S4(rWO)}, s{sWOS} offen lds", "wo"))
                extra[3].append(lambda: (a(f"s_add_u32 s{sWOS}, s{sWOS}, 28672"), a(f"s_add_u32 s{sWOL}, s{sWOL}, 7168")))
            else:
                extra[2].append(lambda: a.vmem(f"buffer_load_dword v{T+8}, v{WOA}, {S4(rWO)}, s{sWOS} offen", "wo"))
                extra[3].append(lambda: a(f"s_add_u32 s{sWOS}, s{sWOS}, 28672"))
        if i == 2 and kt == 13:
            extra[1].append(lambda: a.vmem(f"buffer_load_dword v{T+9}, v{F2A}, {S4(rBR)}, 0 offen sc1", "warm"))
            extra[2].append(lambda: a.vmem(f"buffer_load_dword v{T+10}, off, {S4(rOUT)}, s{t0}", "warm"))
        if p >= 62:
            sl = p - 62
            for g in range(4):
                extra[3].append(lambda g=g, sl=sl: a(f"ds_write_b128 v{PW+sl}, {vr(O[sl]+4*g,4)} offset:{1024*g}"))
        for g in range(4):
            if ms[g]:
                if g == 0 and (p + 1) % 4 == 0: a.vwait(("K", (p + 1) // 4))
                if g == 2 and (p - 1) % 4 == 0: a.vwait(("V", (p - 1) // 4))
                a(ms[g])
            for f in extra[g]: f()
            for jj in range(4): a(f"v_exp_f32 v{s+4*g+jj}, v{s+4*g+jj}")
    a("s_nop 1")
    for x in pv(63): a(x)
    a("s_nop 0")
    for g in range(4): a(f"ds_write_b128 v{PW+2}, {vr(O[2]+4*g,4)} offset:{1024*g}")
    stamp(a, "loop1")
    a.vall("lgkmcnt(0)")
    a("s_barrier")
    stamp(a, "b1")
    R = 112
    OO = O[3]
    for i in range(12): a(f"ds_read_b128 {vr(R+4*i,4)}, v{PR} offset:{1024*i}")
    a(f"v_lshrrev_b32 v{T+3}, 1, v{TAU}")
    for i in range(3):
        a(f"s_waitcnt lgkmcnt({8-4*i})")
        for r in range(0, 16, 2): a(f"v_pk_add_f32 {vr(OO+r,2)}, {vr(OO+r,2)}, {vr(R+16*i+r,2)}")
    a(f"v_mov_b32 v{T}, v{OO+12}")
    a(f"v_mov_b32 v{T+1}, v{OO+12}")
    a(f"v_pk_mul_f32 {vr(T+4,2)}, {vr(OO,2)}, 0")
    for r in range(2, 16, 2): a(f"v_pk_fma_f32 {vr(T+4,2)}, {vr(OO+r,2)}, 0, {vr(T+4,2)}")
    a(f"v_permlane32_swap_b32 v{T}, v{T+1}")
    a(f"v_add3_u32 v{T+2}, 0, 0, 0") if False else None
    a(f"v_add_f32 v{T+4}, v{T+4}, v{T+5}")
    a(f"v_add_f32 v{T+4}, v{T+4}, v{T+1}")
    a(f"v_cmp_nlt_f32 vcc, 0x35800000, v{T+4}")
    a(f"s_mov_b64 {S2(sROT)}, vcc")
    a(f"v_cmp_ngt_f32 vcc, 0x71800000, v{T+4}")
    a(f"s_or_b64 vcc, vcc, {S2(sROT)}")
    a("s_cbranch_vccnz L_fallback")
    a.lab("L_norm")
    a(f"v_rcp_f32 v{T}, v{T+1}")
    a("s_nop 0")
    P = T + 4
    for i in range(8):
        a(f"v_pk_mul_f32 {vr(OO+2*i,2)}, {vr(OO+2*i,2)}, {vr(T,2)} op_sel_hi:[1,0]")
    for i in range(4): a(f"v_cvt_pk_bf16_f32 v{P+i}, v{OO+2*i}, v{OO+2*i+1}")
    a(f"buffer_store_dwordx4 {vr(P,4)}, v{TAU}, {S4(rBR)}, s{sOO} offen sc1")
    for i in range(4, 8): a(f"v_cvt_pk_bf16_f32 v{P+i}, v{OO+2*i}, v{OO+2*i+1}")
    a("s_mov_b32 exec_hi, 0")
    a(f"buffer_store_dwordx4 {vr(P+4,4)}, v{TAU}, {S4(rBR)}, s{sOO} offen offset:1024 sc1")
    a("s_not_b64 exec, exec")
    a(f"buffer_store_dwordx2 {vr(P+4,2)}, v{T+3}, {S4(rBR)}, s{sOO} offen offset:1280 sc1")
    a("s_mov_b64 exec, -1")
    stamp(a, "ost")
    WA = 16; OA = 24; NF = 28
    a(f"v_mov_b32 v{NF}, s{NONCE}")
    a(f"v_mov_b32 v{NF+1}, s{NONCE+1}")
    a(f"v_bfe_u32 v{u0}, v0, 2, 2")
    a(f"v_mul_u32_u24 v{u1}, 448, v{u0}")
    a(f"s_lshl_b32 s{t0}, s{skq}, 6")
    a(f"v_add_u32 v{u1}, s{t0}, v{u1}")
    a(f"v_and_b32 v{u0}, 1, v0")
    a(f"v_lshl_add_u32 v{u1}, v{u0}, 5, v{u1}")
    a(f"v_bfe_u32 v{u0}, v0, 4, 1")
    a(f"v_lshl_add_u32 v{u1}, v{u0}, 4, v{u1}")
    a(f"v_bfe_u32 v{u0}, v0, 1, 1")
    a(f"v_lshl_add_u32 v{u1}, v{u0}, 3, v{u1}")
    a(f"v_lshrrev_b32 v{u2}, 5, v0")
    HSTEP = [1, 7, 25, 56]
    for t in range(4):
        a(f"v_mul_u32_u24 v{u0}, {HSTEP[t]*224}, v{u2}")
        a(f"v_add_u32 v{WA+t}, v{u1}, v{u0}")
        a(f"v_add_u32 v{WA+4+t}, 50176, v{WA+t}")
    WB = 128
    def pos(G): return 8 * (G >> 1) + (G & 1)
    steps = []
    for q in range(4):
        for hd in range(4 * q, 4 * q + 4):
            steps.append((hd & 1, lambda h, aa, hd=hd: 7 * hd + 2 * aa + h, ("A", hd)))
        for i in range(2 * q, 2 * q + 2):
            steps.append((2, lambda h, aa, i=i: 7 * (2 * i + h) + 4 + 2 * aa, ("B", 2 * i)))
        steps.append((3, lambda h, aa, q=q: 7 * (4 * q + 2 * h + aa) + 5, ("C", 4 * q)))
    def wread(ks):
        t, G, _ = steps[ks]
        for aa in range(2):
            assert pos(G(1, aa)) - pos(G(0, aa)) == HSTEP[t]
            off = pos(G(0, aa)) * 224
            ad = WA + t
            if off >= 50176: off -= 50176; ad += 4
            a(f"ds_read_b64_tr_b16 {vr(WB+4*ks+2*aa,2)}, v{ad} offset:{off}")
    early = [ks for ks in range(28) if max(steps[ks][1](h, aa) for h in (0, 1) for aa in (0, 1)) * 4 + 3 < 287]
    late = [ks for ks in range(28) if ks not in early]
    sOS, sOL = t0, t1
    a(f"s_mul_i32 s{sOS}, s{sRT}, 28672")
    a(f"s_mul_i32 s{t2}, s{skq}, 7168")
    a(f"s_add_u32 s{sOS}, s{sOS}, s{t2}")
    a(f"s_mul_i32 s{sOL}, s{sg}, 28672")
    a(f"s_add_u32 s{sOL}, s{sOL}, {OS}")
    a(f"v_add_u32 v{OA}, s{sOL}, v{L16}")
    a(f"v_and_b32 v{u0}, 31, v0")
    a(f"v_mul_u32_u24 v{u1}, 1792, v{u2}")
    a(f"v_lshl_add_u32 v{u1}, v{u0}, 4, v{u1}")
    a(f"v_add_u32 v{OA+1}, s{sOL}, v{u1}")
    a(f"v_mul_u32_u24 v{u1}, 3584, v{u2}")
    a(f"v_lshl_add_u32 v{u1}, v{u0}, 3, v{u1}")
    a(f"v_add_u32 v{OA+2}, s{sOL}, v{u1}")
    a(f"s_add_u32 s{sOL}, s{sOL}, s{t2}")
    a("s_mov_b64 exec, 1")
    a("s_waitcnt vmcnt(0)")
    a(f"buffer_store_dwordx2 {vr(NF,2)}, off, {S4(rBR)}, s{sF2O} sc1")
    a("s_mov_b64 exec, -1")
    stamp(a, "flag2")
    a("s_barrier")
    a(f"s_mov_b32 s{sWOS}, {9*28672}")
    for g in range(9, 14):
        a(f"s_add_u32 m0, s{swp}, {g*7168}")
        if g > 9: a(f"s_add_u32 s{sWOS}, s{sWOS}, 28672")
        else: a("s_nop 0")
        a(f"buffer_load_dwordx4 v{WOA}, {S4(rWO)}, s{sWOS} offen lds")
    for ks in early: wread(ks)
    a("s_waitcnt vmcnt(0)")
    a("s_barrier")
    stamp(a, "b3")
    for ks in late: wread(ks)
    poll(a, "L_f2", F2A, rBR)
    stamp(a, "poll2")
    a(f"s_mov_b32 m0, s{sOL}")
    a("s_nop 0")
    for i in range(4): a(f"buffer_load_dwordx4 v{L16}, {S4(rBR)}, s{sOS} offen offset:{1024*i} sc1 lds")
    a(f"s_add_u32 m0, s{sOL}, 4096")
    a(f"s_add_u32 s{sOS}, s{sOS}, 4096")
    for i in range(3): a(f"buffer_load_dwordx4 v{L16}, {S4(rBR)}, s{sOS} offen offset:{1024*i} sc1 lds")
    a("s_waitcnt vmcnt(0) lgkmcnt(0)")
    stamp(a, "oown")
    a("s_barrier")
    stamp(a, "oland")
    ACC3 = 96; OB = 32; NB = 10
    lg = []
    def oread(ks):
        kind, hd = steps[ks][2]
        d = OB + 4 * (ks % NB)
        if kind == "A": a(f"ds_read_b128 {vr(d,4)}, v{OA} offset:{hd*1792}"); lg.append(ks)
        elif kind == "B": a(f"ds_read_b128 {vr(d,4)}, v{OA+1} offset:{hd*1792+1024}"); lg.append(ks)
        else:
            for aa in range(2):
                a(f"ds_read_b64 {vr(d+2*aa,2)}, v{OA+2} offset:{(hd+aa)*1792+1536}"); lg.append(ks)
    for ks in range(NB): oread(ks)
    for ks in range(28):
        out = sum(1 for k in lg if k > ks)
        assert out < 16
        a(f"s_waitcnt lgkmcnt({out})")
        c = "0" if ks == 0 else vr(ACC3, 16)
        a(f"v_mfma_f32_32x32x16_bf16 {vr(ACC3,16)}, {vr(WB+4*ks,4)}, {vr(OB+4*(ks%NB),4)}, {c}")
        if ks + NB < 28: oread(ks + NB)
    stamp(a, "mf3")
    a(f"s_cmp_eq_u32 s{skq}, 3")
    a(f"s_cselect_b32 s{t1}, 0, -1")
    a("s_nop 10")
    for i in range(8): a(f"v_cvt_pk_bf16_f32 v{80+i}, v{ACC3+2*i}, v{ACC3+2*i+1}")
    a(f"s_mov_b32 exec_hi, s{t1}")
    a(f"buffer_store_dwordx4 v[80:83], v{OUTA}, {S4(rOUT)}, s{sOUTO} offen")
    a(f"buffer_store_dwordx4 v[84:87], v{OUTA}, {S4(rOUT)}, s{sOUTO} offen offset:16")
    if STAMP:
        a("s_waitcnt vmcnt(0)")
        a("s_memrealtime s[22:23]")
        a("s_memtime s[98:99]")
        a("s_waitcnt lgkmcnt(0)")
        a("s_mov_b64 exec, 1")
        a(f"s_mov_b32 s{rWS}, s20"); a(f"s_mov_b32 s{rWS+1}, s21"); a(f"s_mov_b32 s{rWS+2}, 0x10000000")
        a(f"s_lshl_b32 s{t1}, s2, 9")
        a(f"s_add_u32 s{t1}, s{t1}, {64<<20}")
        a(f"s_lshl_b32 s{t0}, s{sw}, 6")
        a(f"s_add_u32 s{t1}, s{t1}, s{t0}")
        for i, r in enumerate([RT, 22, 100, 98] + [80 + 2 * k for k in range(9)] + [sLOC]):
            a(f"v_mov_b32 v1, s{r}")
            a(f"buffer_store_dword v1, off, {S4(rWS)}, s{t1} offset:{4*i}")
    a.lab("L_end")
    a("s_endpgm")
    for tag, P_, va, off in tails:
        a.lab(f"L_wt{tag}")
        a(f"buffer_store_dwordx4 {vr(P_,4)}, v{va}, {S4(rWS)}, s{t1} offen offset:{off} sc1")
        a(f"buffer_store_dwordx4 {vr(P_+4,4)}, v{va}, {S4(rWS)}, s{t1} offen offset:{off+1024} sc1")
        a(f"s_branch L_st{tag}")
    a.lab("L_f1wt")
    a(f"buffer_store_dwordx2 {vr(NV,2)}, off, {S4(rWS)}, s{sF1O} sc1")
    a("s_branch L_f1st")
    a.lab("L_nonce_retry")
    a(f"buffer_load_dwordx2 {vr(NV,2)}, off, {S4(rDBG)}, s{sDL} sc1")
    a(f"s_sub_u32 s{t3}, s{t3}, 1")
    a("s_cbranch_scc1 L_end")
    a("s_waitcnt vmcnt(0)")
    a("s_branch L_nonce")
    a.lab("L_fallback")
    QO = Q[3]; S0 = SB[0]; K0 = KB[0]; V0 = VB[0]; M = T + 4
    a("s_mov_b32 exec_lo, 0")
    a(f"v_mov_b32 v{QO+6}, 0")
    a("s_mov_b32 exec_lo, -1")
    for r in range(16): a(f"v_mov_b32 v{OO+r}, 0")
    a(f"v_mov_b32 v{M}, 0xff7fffff")
    a(f"s_mov_b32 s{sKVO}, 0")
    a.lab("L_fb_loop")
    a(f"buffer_load_dwordx4 {vr(K0,4)}, v{L16}, {S4(rKV)}, s{sKVO} offen sc1")
    a(f"buffer_load_dwordx4 {vr(K0+4,4)}, v{L16}, {S4(rKV)}, s{sKVO} offen offset:1024 sc1")
    a(f"buffer_load_dwordx4 {vr(V0,4)}, v{L16}, {S4(rKV)}, s{sKVO} offen offset:2048 sc1")
    a(f"buffer_load_dwordx4 {vr(V0+4,4)}, v{L16}, {S4(rKV)}, s{sKVO} offen offset:3072 sc1")
    a("s_waitcnt vmcnt(0)")
    a(f"v_mfma_f32_32x32x16_bf16 {vr(S0,16)}, {vr(K0,4)}, {vr(QO,4)}, 0")
    a(f"v_mfma_f32_32x32x16_bf16 {vr(S0,16)}, {vr(K0+4,4)}, {vr(QO+4,4)}, {vr(S0,16)}")
    a("s_nop 15")
    a(f"v_max3_f32 v{T}, v{M}, v{S0}, v{S0+1}")
    for i in range(2, 16, 2): a(f"v_max3_f32 v{T}, v{T}, v{S0+i}, v{S0+i+1}")
    a(f"v_mov_b32 v{T+1}, v{T}")
    a("s_nop 1")
    a(f"v_permlane32_swap_b32 v{T}, v{T+1}")
    a(f"v_max_f32 v{T}, v{T}, v{T+1}")
    a(f"v_sub_f32 v{T+1}, v{M}, v{T}")
    a(f"v_exp_f32 v{T+1}, v{T+1}")
    a(f"v_mov_b32 v{M}, v{T}")
    for r in range(16): a(f"v_sub_f32 v{S0+r}, v{S0+r}, v{T}")
    for r in range(16): a(f"v_exp_f32 v{S0+r}, v{S0+r}")
    for r in range(16): a(f"v_mul_f32 v{OO+r}, v{OO+r}, v{T+1}")
    a("s_nop 1")
    a(f"v_smfmac_f32_32x32x32_bf16 {vr(OO,16)}, {vr(V0,4)}, {vr(S0,8)}, v{IDX}")
    a(f"v_smfmac_f32_32x32x32_bf16 {vr(OO,16)}, {vr(V0+4,4)}, {vr(S0+8,8)}, v{IDX}")
    a(f"s_add_u32 s{sKVO}, s{sKVO}, 4096")
    a(f"s_cmp_lt_u32 s{sKVO}, 262144")
    a("s_nop 15")
    a("s_cbranch_scc1 L_fb_loop")
    a(f"v_mov_b32 v{T}, v{OO+12}")
    a(f"v_mov_b32 v{T+1}, v{OO+12}")
    a("s_nop 1")
    a(f"v_permlane32_swap_b32 v{T}, v{T+1}")
    a("s_branch L_norm")
    kd = f""".section .rodata,"a"
.p2align 6
.amdhsa_kernel {n}
  .amdhsa_next_free_vgpr 256
  .amdhsa_next_free_sgpr 102
  .amdhsa_accum_offset 256
  .amdhsa_group_segment_fixed_size 0
  .amdhsa_kernarg_size 72
  .amdhsa_user_sgpr_count 2
  .amdhsa_user_sgpr_kernarg_segment_ptr 1
  .amdhsa_system_sgpr_workgroup_id_x 1
.end_amdhsa_kernel
"""
    return a.text() + kd

tails = []
hdr = f"""; @launch grid=(256,1,1) block=(512,1,1) lds={LDS}
.amdgcn_target "amdgcn-amd-amdhsa--gfx950"
.text
"""
open(sys.argv[1] if len(sys.argv) > 1 else "v4.s", "w").write(hdr + gen())
```

```python
import sys, os, struct, math
NAME = "concat_heads__softmax_full_mha__softmax_full_mha__prompt"
def f2u(x): return struct.unpack("<I", struct.pack("<f", x))[0]
CSCALE = f2u(28 ** -0.5 * math.log2(math.e))
E = os.environ.get
STAMP = E("STAMP", "0") == "1"
DBGST = E("STAMP", "0") == "2"
STL = E("STL", "c0,p1end,ack1,poll1,loop0,loop1,flag2,poll2,oland").split(",")
INIT = int(E("INIT", "2"))
DIST = int(E("DIST", "2"))
DPOS = E("DPOS", "mid")
F2SP = int(E("F2SP", "32"))
FORCEFB = E("FORCEFB", "0") == "1"
LOCAL = E("LOCAL", "1") == "1"
PRET = int(E("PRET", "3"))
SLEEP = int(E("SLEEP", "0"))
WBL2 = E("WBL2", "0")
OUTF = E("OUTF", "")
ROTA, ROTB, ROTC, ROTN, ROTS = [int(v) for v in E("ROTP", "1,1,2,7,1").split(",")]

X_KV = 0; X_QF = 1 << 20; X_F1 = 3 << 19
B_BASE = 16 << 20; B_F2 = 1835008
STAGE = 37888; XOFF = 21504
CB = 64512; QX = 113664; OS = 100352; LDS = 163840
SPIN = 1 << 22

class A:
    def __init__(self):
        self.l = []; self.vm = []; self.done = 0
    def __call__(self, s): self.l.append("    " + s)
    def lab(self, s): self.l.append(s + ":")
    def raw(self, s): self.l.append(s)
    def text(self): return "\n".join(self.l) + "\n"
    def vreset(self): self.vm = []; self.done = 0
    def vmem(self, s, tag=None):
        self(s); self.vm.append(tag)
    def vwait(self, tag, extra=""):
        idx = [i for i, t in enumerate(self.vm) if t == tag]
        assert idx, tag
        last = idx[-1] + 1
        if last <= self.done:
            if extra: self(f"s_waitcnt {extra}")
            return
        self.done = last
        n = len(self.vm) - last
        assert n < 64
        self(f"s_waitcnt vmcnt({n}) {extra}".rstrip())
    def vall(self, extra=""):
        self.done = len(self.vm); self(f"s_waitcnt vmcnt(0) {extra}".rstrip())

def vr(b, n): return f"v[{b}:{b+n-1}]"
def S4(b): return f"s[{b}:{b+3}]"
def S2(b): return f"s[{b}:{b+1}]"
def stamp(a, name):
    if STAMP and name in STL:
        i = STL.index(name)
        a(f"s_memtime s[{80+2*i}:{81+2*i}]")
    if DBGST and name in STL:
        i = STL.index(name)
        a(f"s_memrealtime s[{80+2*i}:{81+2*i}]")

rX, rW, rWS, rWO, rOUT, rDBG, rKV, rBR = 24, 28, 32, 36, 64, 68, 72, 12
XM = 4
sLOC = 6
sRT = 7
sOUTO = 8
sQT = 9
sF1O = 10
sQO = 11
sx, sidx, sb, srb, shalf, sXS, sw, shl, swp, sqb, sg, sWL, sXL, sWS_, stt, scg, skq, su = range(40, 58)
t0, t1, sDL, t2, sROT, t3 = 58, 59, 60, 61, 62, 63
NONCE = 76; RT = 78
sKVO, sWOS, sWOL, sOO, sF2O = 16, 17, 18, 19, 22
L16, IDX, WOA, F1A, F2A, OUTA, QW, QR, PW, PR, TAU = 1, 2, 3, 4, 5, 6, 7, 8, 11, 14, 15
T = 240
XD, WD, XA, WA1, VPAD, NV, NA, PTA = 16, 18, 21, 29, 31, 232, 234, 235
ACC = [32, 48, 64]; FR = [80, 144]; P1 = 208
Q = [16, 24, 32, 40]; O = [48, 64, 80, 96]; SB = [112, 128, 144, 160]; KB = [176, 184, 192, 200]; VB = [208, 216, 224, 232]

def poll(a, name, vaddr, srd):
    a(f"s_mov_b32 s{t3}, {SPIN}")
    if SLEEP: a(f"s_branch {name}_first")
    a.lab(f"{name}_spin")
    if SLEEP:
        a(f"s_sleep {SLEEP}")
        a.lab(f"{name}_first")
    a(f"buffer_load_dwordx2 {vr(T+14,2)}, v{vaddr}, {S4(srd)}, 0 offen sc1")
    a(f"s_sub_u32 s{t3}, s{t3}, 1")
    a("s_cbranch_scc1 L_end")
    a("s_waitcnt vmcnt(0)")
    a(f"v_cmp_ne_u64 vcc, {S2(NONCE)}, {vr(T+14,2)}")
    a(f"s_cbranch_vccnz {name}_spin")

def gen():
    a = A(); n = NAME + "_kernel"
    u0, u1, u2, u3, u4 = T, T + 1, T + 2, T + 3, T + 4
    a.raw(f".globl {n}\n.p2align 8\n.type {n},@function")
    a.lab(n)
    a("s_cmp_ge_u32 s2, 256")
    a("s_cbranch_scc1 L_end")
    a("s_load_dwordx16 s[4:19], s[0:1], 0")
    a("s_load_dwordx2 s[20:21], s[0:1], 64")
    a(f"s_memrealtime {S2(RT)}")
    if STAMP: a("s_memtime s[100:101]")
    a(f"s_and_b32 s{sx}, s2, 7")
    a(f"s_lshr_b32 s{sidx}, s2, 3")
    a(f"s_lshr_b32 s{sb}, s{sx}, 2")
    a(f"s_lshr_b32 s{srb}, s{sidx}, 1")
    a(f"s_and_b32 s{shalf}, s{sidx}, 1")
    a("v_lshrrev_b32 v1, 6, v0")
    a("v_and_b32 v0, 63, v0")
    a(f"v_readfirstlane_b32 s{sw}, v1")
    a(f"v_lshrrev_b32 v{u0}, 3, v0")
    a(f"s_lshl_b32 s{t0}, s{srb}, 7")
    a(f"s_lshl_b32 s{t1}, s{sw}, 4")
    a(f"s_add_u32 s{t0}, s{t0}, s{t1}")
    a(f"v_add_u32 v{u0}, s{t0}, v{u0}")
    a(f"v_mul_u32_u24 v{u0}, 896, v{u0}")
    a(f"v_lshrrev_b32 v{u1}, 4, v0")
    a(f"v_and_b32 v{u2}, 7, v0")
    a(f"v_xor_b32 v{u2}, v{u2}, v{u1}")
    a(f"v_lshl_add_u32 v{XD}, v{u2}, 4, v{u0}")
    a(f"v_xor_b32 v{u2}, 4, v{u2}")
    a(f"v_lshl_add_u32 v{XD+1}, v{u2}, 4, v{u0}")
    a(f"v_add_u32 v{XD+1}, 7168, v{XD+1}")
    a(f"s_min_u32 s{swp}, s{sw}, 6")
    a(f"s_mul_i32 s{t0}, s{swp}, 192")
    a(f"s_and_b32 s{t1}, s{sx}, 3")
    a(f"s_mul_i32 s{t1}, s{t1}, 224")
    a(f"s_mul_i32 s{t2}, s{shalf}, 1008")
    a(f"s_add_u32 s{t1}, s{t1}, s{t2}")
    a(f"s_lshr_b32 s{t2}, 14, s{shalf}")
    a(f"v_mov_b32 v{u4}, 672")
    for i in range(3):
        a(f"v_add_u32 v{u0}, s{t0}, v0")
        if i: a(f"v_add_u32 v{u0}, {64*i}, v{u0}")
        a(f"v_mul_u32_u24 v{u1}, 3121, v{u0}")
        a(f"v_lshrrev_b32 v{u1}, 16, v{u1}")
        a(f"v_mul_u32_u24 v{u2}, 21, v{u1}")
        a(f"v_sub_u32 v{u0}, v{u0}, v{u2}")
        a(f"v_and_b32 v{u2}, 48, v{u1}")
        a(f"v_and_b32 v{u3}, 3, v{u1}")
        a(f"v_lshl_add_u32 v{u2}, v{u3}, 2, v{u2}")
        a(f"v_bfe_u32 v{u3}, v{u1}, 2, 2")
        a(f"v_add_u32 v{u2}, v{u2}, v{u3}")
        a(f"v_mul_u32_u24 v{u2}, 2688, v{u2}")
        a(f"v_cmp_le_u32 vcc, s{t2}, v{u0}")
        a(f"v_lshl_add_u32 v{u2}, v{u0}, 4, v{u2}")
        a(f"v_add_u32 v{u2}, s{t1}, v{u2}")
        a(f"v_cndmask_b32 v{u3}, 0, v{u4}, vcc")
        a(f"v_add_u32 v{WD+i}, v{u2}, v{u3}")
    a(f"s_mul_i32 s{sROT}, s{srb}, {ROTA}")
    a(f"s_mul_i32 s{t2}, s{shalf}, {ROTB}")
    a(f"s_add_u32 s{sROT}, s{sROT}, s{t2}")
    a(f"s_and_b32 s{t2}, s{sx}, 3")
    a(f"s_mul_i32 s{t2}, s{t2}, {ROTC}")
    a(f"s_add_u32 s{sROT}, s{sROT}, s{t2}")
    a(f"s_mul_i32 s{t2}, s{sROT}, {(65536 + ROTN - 1)//ROTN}")
    a(f"s_lshr_b32 s{t2}, s{t2}, 16")
    a(f"s_mul_i32 s{t2}, s{t2}, {ROTN}")
    a(f"s_sub_u32 s{sROT}, s{sROT}, s{t2}")
    a(f"s_mul_i32 s{sROT}, s{sROT}, {ROTS}")
    assert (ROTN - 1) * ROTS < 7
    a(f"s_mul_i32 s{sWL}, s{swp}, 3072")
    a(f"s_lshl_b32 s{sXL}, s{sw}, 11")
    a(f"s_add_u32 s{sXL}, s{sXL}, {XOFF}")
    a("s_waitcnt lgkmcnt(0)")
    a(f"s_cmp_eq_u32 s{sb}, 0")
    a(f"s_cselect_b32 s{rX}, s4, s10")
    a(f"s_cselect_b32 s{rX+1}, s5, s11")
    a(f"s_mov_b32 s{rX+2}, 1835008")
    a(f"s_mov_b32 s{rX+3}, 0x00020000")
    a(f"s_cselect_b32 s{rW}, s6, s12")
    a(f"s_cselect_b32 s{rW+1}, s7, s13")
    a(f"s_mov_b32 s{rW+2}, 1204224")
    a(f"s_mov_b32 s{rW+3}, 0x00020000")
    def dma_parts(ch):
        st = (ch % 4) * STAGE
        parts = []
        def part(pre, ins, post=()):
            def f():
                for x in pre: a(x)
                a.vmem(ins, ("c", ch))
                for x in post: a(x)
            parts.append(f)
        part([f"s_add_u32 m0, s{sXL}, {st}", f"s_lshl_b32 s{sXS}, s{sROT}, 7"], f"buffer_load_dwordx4 v{XD}, {S4(rX)}, s{sXS} offen lds")
        part([f"s_add_u32 m0, s{sXL}, {st+1024}", f"s_mul_i32 s{sWS_}, s{sROT}, 172032"], f"buffer_load_dwordx4 v{XD+1}, {S4(rX)}, s{sXS} offen lds")
        part([f"s_add_u32 m0, s{sWL}, {st}", f"s_add_u32 s{sROT}, s{sROT}, 1"], f"buffer_load_dwordx4 v{WD}, {S4(rW)}, s{sWS_} offen lds")
        part([f"s_add_u32 m0, s{sWL}, {st+1024}", "s_nop 0"], f"buffer_load_dwordx4 v{WD+1}, {S4(rW)}, s{sWS_} offen lds")
        part([f"s_add_u32 m0, s{sWL}, {st+2048}", f"s_cmp_eq_u32 s{sROT}, 7"], f"buffer_load_dwordx4 v{WD+2}, {S4(rW)}, s{sWS_} offen lds",
             [f"s_cselect_b32 s{sROT}, 0, s{sROT}"])
        return parts
    def dma(ch):
        for f in dma_parts(ch): f()
    dma(0)
    a(f"s_cmp_eq_u32 s{sb}, 0")
    a(f"s_cselect_b32 s{rWO}, s8, s14")
    a(f"s_cselect_b32 s{rWO+1}, s9, s15")
    a(f"s_mov_b32 s{rWO+2}, 401408")
    a(f"s_mov_b32 s{rWO+3}, 0x00020000")
    for d, lo, sz in ((rOUT, 16, 2048 * 896 * 2), (rDBG, 18, 256)):
        a(f"s_mov_b32 s{d}, s{lo}"); a(f"s_mov_b32 s{d+1}, s{lo+1}"); a(f"s_mov_b32 s{d+2}, {sz}"); a(f"s_mov_b32 s{d+3}, 0x00020000")
    a(f"s_lshl_b32 s{t2}, s{sx}, 21")
    a(f"s_add_u32 s{rWS}, s20, s{t2}")
    a(f"s_addc_u32 s{rWS+1}, s21, 0")
    a(f"s_mov_b32 s{rWS+2}, {2<<20}")
    a(f"s_mov_b32 s{rWS+3}, 0x00020000")
    a(f"s_lshl_b32 s{t2}, s{sb}, 21")
    a(f"s_add_u32 s{t2}, s{t2}, {B_BASE}")
    a(f"s_add_u32 s{rBR}, s20, s{t2}")
    a(f"s_addc_u32 s{rBR+1}, s21, 0")
    a(f"s_mov_b32 s{rBR+2}, {2<<20}")
    a(f"s_mov_b32 s{rBR+3}, 0x00020000")
    a(f"s_and_b32 s{shl}, s{sidx}, 3")
    a(f"s_lshl_b32 s{t2}, s{shl}, 18")
    a(f"s_add_u32 s{rKV}, s{rWS}, s{t2}")
    a(f"s_addc_u32 s{rKV+1}, s{rWS+1}, 0")
    a(f"s_mov_b32 s{rKV+2}, 262144")
    a(f"s_mov_b32 s{rKV+3}, 0x00020000")
    a(f"s_lshl_b32 s{sDL}, s{sb}, 3")
    a(f"s_getreg_b32 s{XM}, hwreg(HW_REG_XCC_ID)")
    a(f"s_and_b32 s{XM}, s{XM}, 15")
    a(f"s_lshl_b32 s{t0}, s{sx}, 4")
    a(f"s_or_b32 s{XM}, s{XM}, s{t0}")
    a(f"s_or_b32 s{XM}, s{XM}, 0x80")
    a(f"s_mul_i32 s{XM}, s{XM}, 0x01010101")
    a(f"s_mov_b32 s{XM+1}, s{XM}")
    a(f"s_and_b32 s{t1}, s{sx}, 3")
    a(f"s_lshl_b32 s{t1}, s{t1}, 5")
    a(f"s_add_u32 s{t1}, s{t1}, 128")
    a(f"v_and_b32 v{NA}, 3, v0")
    a(f"v_lshlrev_b32 v{NA}, 3, v{NA}")
    a(f"v_add_u32 v{NA}, s{t1}, v{NA}")
    a("s_mov_b64 exec, 1")
    a(f"v_mov_b32 v{NA}, s{sDL}")
    a("s_mov_b64 exec, -1")
    a(f"s_cmp_lg_u32 s{sw}, 7")
    a("s_cbranch_scc1 L_noprop")
    a(f"v_mov_b32 v{NV}, s{XM}")
    a(f"s_add_u32 s{t2}, s{t1}, s{sidx}")
    a("s_mov_b64 exec, 1")
    a(f"buffer_store_byte v{NV}, off, {S4(rDBG)}, s{t2}")
    a("s_mov_b64 exec, -1")
    a(f"s_cmp_lg_u32 s{sidx}, 0")
    a("s_cbranch_scc1 L_noprop")
    a(f"s_or_b32 s{t0}, s{RT}, 1")
    a(f"s_or_b32 s{t2}, s{RT+1}, 1")
    a(f"v_mov_b32 v236, s{t0}")
    a(f"v_mov_b32 v237, s{t2}")
    a("v_mov_b32 v238, 0")
    a("v_mov_b32 v239, 0")
    a("s_mov_b64 exec, 1")
    a(f"buffer_atomic_cmpswap_x2 v[236:239], off, {S4(rDBG)}, s{sDL} sc1")
    a("s_mov_b64 exec, -1")
    a.lab("L_noprop")
    for ch in range(1, INIT): dma(ch)
    a(f"s_and_b32 s{stt}, s{sw}, 3")
    a(f"s_lshr_b32 s{scg}, s{sw}, 2")
    a(f"v_and_b32 v{u0}, 31, v0")
    a(f"s_lshl_b32 s{t0}, s{stt}, 5")
    a(f"v_add_u32 v{u0}, s{t0}, v{u0}")
    a(f"v_bfe_u32 v{u1}, v{u0}, 1, 3")
    a(f"v_lshrrev_b32 v{u2}, 5, v0")
    a(f"v_xor_b32 v{u1}, v{u1}, v{u2}")
    a(f"v_lshlrev_b32 v{u1}, 4, v{u1}")
    a(f"v_lshl_add_u32 v{u1}, v{u0}, 7, v{u1}")
    for ks in range(4):
        a(f"v_xor_b32 v{XA+ks}, {32*ks}, v{u1}")
        a(f"v_add_u32 v{XA+ks}, {XOFF}, v{XA+ks}")
        a(f"v_add_u32 v{XA+4+ks}, {2*STAGE}, v{XA+ks}")
    a(f"v_bfe_u32 v{u0}, v0, 2, 2")
    a(f"v_lshlrev_b32 v{u0}, 1, v{u0}")
    a(f"v_add_u32 v{u0}, v{u0}, v{u2}")
    a(f"v_mul_u32_u24 v{u0}, 672, v{u0}")
    a(f"v_bfe_u32 v{u1}, v0, 4, 1")
    a(f"v_lshl_add_u32 v{u0}, v{u1}, 5, v{u0}")
    a(f"v_and_b32 v{u1}, 3, v0")
    a(f"v_lshl_add_u32 v{u0}, v{u1}, 3, v{u0}")
    a(f"s_mul_i32 s{t0}, s{scg}, 168")
    a(f"v_add_u32 v{WA1}, s{t0}, v{u0}")
    a(f"v_add_u32 v{WA1+1}, {2*STAGE}, v{WA1}")
    a(f"v_and_b32 v{u0}, 0x33, v0")
    a(f"v_bfe_u32 v{u1}, v0, 2, 1")
    a(f"v_lshl_add_u32 v{u0}, v{u1}, 3, v{u0}")
    a(f"v_bfe_u32 v{u1}, v0, 3, 1")
    a(f"v_lshl_add_u32 v{u0}, v{u1}, 2, v{u0}")
    a(f"v_lshlrev_b32 v{TAU}, 4, v{u0}")
    a(f"v_lshlrev_b32 v{L16}, 4, v0")
    a(f"v_and_b32 v{u0}, 31, v0")
    a(f"v_mov_b32 v{u1}, 0x3f803f80")
    a(f"v_cmp_eq_u32 vcc, 28, v{u0}")
    a(f"s_lshl_b32 s{su}, s{shalf}, 1")
    a(f"s_add_u32 s{su}, s{su}, s{scg}")
    a(f"v_cndmask_b32 v{VPAD}, 0, v{u1}, vcc")
    a(f"v_mov_b32 v{IDX}, 0xdddddddd")
    a(f"s_lshr_b32 s{sqb}, s{sidx}, 2")
    a(f"s_and_b32 s{sg}, s{sw}, 1")
    a(f"s_lshr_b32 s{skq}, s{sw}, 1")
    a(f"s_lshl_b32 s{t3}, s{sg}, 2")
    a(f"s_add_u32 s{t0}, s{t3}, s{skq}")
    a(f"s_lshl_b32 s{sQT}, s{sqb}, 3")
    a(f"s_add_u32 s{sQT}, s{sQT}, s{t0}")
    a(f"s_lshl_b32 s{t1}, s{t0}, 11")
    a(f"s_add_u32 s{t1}, s{t1}, {QX}")
    a(f"v_add_u32 v{QW}, s{t1}, v{L16}")
    a(f"s_mul_i32 s{t1}, s{t0}, 12288")
    a(f"s_add_u32 s{t1}, s{t1}, {CB}")
    a(f"v_add_u32 v{PR}, s{t1}, v{L16}")
    for i in range(3):
        a(f"s_add_u32 s{t0}, s{skq}, {1+i}")
        a(f"s_and_b32 s{t0}, s{t0}, 3")
        a(f"s_add_u32 s{t0}, s{t0}, s{t3}")
        a(f"s_lshl_b32 s{t1}, s{t0}, 11")
        a(f"s_add_u32 s{t1}, s{t1}, {QX}")
        a(f"v_add_u32 v{QR+i}, s{t1}, v{L16}")
        a(f"s_mul_i32 s{t1}, s{t0}, 12288")
        a(f"s_add_u32 s{t1}, s{t1}, {CB + 4096*i}")
        a(f"v_add_u32 v{PW+i}, s{t1}, v{L16}")
    a(f"s_lshl_b32 s{sKVO}, s{skq}, 16")
    a(f"s_lshl_b32 s{sQO}, s{shl}, 6")
    a(f"s_add_u32 s{sQO}, s{sQO}, s{sQT}")
    a(f"s_lshl_b32 s{sQO}, s{sQO}, 11")
    a(f"s_add_u32 s{sQO}, s{sQO}, {X_QF}")
    a(f"s_lshl_b32 s{sF1O}, s{su}, 4")
    a(f"s_add_u32 s{sF1O}, s{sF1O}, s{srb}")
    a(f"s_lshl_b32 s{sF1O}, s{sF1O}, 7")
    a(f"s_lshl_b32 s{t0}, s{stt}, 3")
    a(f"s_add_u32 s{sF1O}, s{sF1O}, s{t0}")
    a(f"s_add_u32 s{sF1O}, s{sF1O}, {X_F1}")
    a(f"s_mul_i32 s{t2}, s{shl}, 43")
    a(f"s_lshr_b32 s{t0}, s{t2}, 7")
    a(f"s_add_u32 s{t2}, s{t2}, {4*43}")
    a(f"s_lshr_b32 s{t1}, s{t2}, 7")
    a(f"s_add_u32 s{t2}, s{t2}, {4*43}")
    a(f"s_lshr_b32 s{t3}, s{t2}, 7")
    a(f"v_and_b32 v{u0}, 15, v0")
    a(f"s_lshl_b32 s{t2}, s{skq}, 4")
    a(f"v_add_u32 v{u0}, s{t2}, v{u0}")
    a(f"v_mov_b32 v{u1}, s{t1}")
    a("s_mov_b32 exec_lo, 0xffff0000")
    a(f"v_mov_b32 v{u1}, s{t3}")
    a("s_mov_b32 exec_lo, 0")
    a(f"v_mov_b32 v{u1}, s{t0}")
    a(f"v_mov_b32 v{u0}, s{sQT}")
    a("s_mov_b32 exec_lo, -1")
    a(f"v_lshlrev_b32 v{u1}, 11, v{u1}")
    a(f"v_lshrrev_b32 v{u3}, 2, v{u0}")
    a(f"v_lshl_add_u32 v{u1}, v{u3}, 7, v{u1}")
    a(f"v_and_b32 v{u0}, 3, v{u0}")
    a(f"v_lshl_add_u32 v{u0}, v{u0}, 3, v{u1}")
    a(f"v_add_u32 v{F1A}, {X_F1}, v{u0}")
    a(f"s_lshl_b32 s{t0}, s{shl}, 18")
    a(f"s_add_u32 s{t0}, s{t0}, s{sKVO}")
    a(f"s_lshl_b32 s{t1}, s{sqb}, 1")
    a(f"s_add_u32 s{t1}, s{t1}, s{sg}")
    a(f"s_lshl_b32 s{t1}, s{t1}, 7")
    a(f"s_add_u32 s{t0}, s{t0}, s{t1}")
    a(f"v_subrev_u32 v{u0}, 16, v0")
    a(f"v_lshlrev_b32 v{u0}, 11, v{u0}")
    a(f"v_add_u32 v{PTA}, s{t0}, v{u0}")
    a("s_mov_b64 exec, 0xffff")
    a(f"v_lshlrev_b32 v{u0}, 7, v0")
    a(f"v_add_u32 v{PTA}, s{sQO}, v{u0}")
    a("s_mov_b64 exec, -1")
    a(f"s_lshl_b32 s{t0}, s{swp}, 6")
    a(f"v_add_u32 v{u0}, s{t0}, v0")
    a(f"v_mul_u32_u24 v{u1}, 4682, v{u0}")
    a(f"v_lshrrev_b32 v{u1}, 16, v{u1}")
    a(f"v_mul_u32_u24 v{u3}, 14, v{u1}")
    a(f"v_sub_u32 v{u0}, v{u0}, v{u3}")
    a(f"v_and_b32 v{u3}, 24, v{u1}")
    a(f"v_and_b32 v{u4}, 1, v{u1}")
    a(f"v_lshl_add_u32 v{u3}, v{u4}, 2, v{u3}")
    a(f"v_bfe_u32 v{u4}, v{u1}, 1, 2")
    a(f"v_add_u32 v{u3}, v{u3}, v{u4}")
    a(f"v_mul_u32_u24 v{u3}, 896, v{u3}")
    a(f"v_lshl_add_u32 v{u3}, v{u0}, 4, v{u3}")
    a(f"s_mul_i32 s{t0}, s{shl}, 224")
    a(f"v_add_u32 v{WOA}, s{t0}, v{u3}")
    a(f"s_lshl_b32 s{swp}, s{swp}, 10")
    a(f"s_mov_b32 s{sWOS}, 0")
    a(f"s_mov_b32 s{sWOL}, s{swp}")
    a(f"s_mul_i32 s{sOUTO}, s{sb}, 896")
    a(f"s_add_u32 s{sOUTO}, s{sOUTO}, s{t0}")
    a(f"s_lshl_b32 s{t1}, s{skq}, 6")
    a(f"s_add_u32 s{sOUTO}, s{sOUTO}, s{t1}")
    a(f"s_and_b32 s{t0}, s{sx}, 3")
    a(f"s_lshl_b32 s{t1}, s{t0}, 3")
    a(f"s_add_u32 s{t1}, s{t1}, s{sqb}")
    a(f"s_lshl_b32 s{t1}, s{t1}, 1")
    a(f"s_add_u32 s{sRT}, s{t1}, s{sg}")
    a(f"s_lshl_b32 s{t0}, s{t0}, 2")
    a(f"s_add_u32 s{t0}, s{t0}, s{shl}")
    a(f"s_lshl_b32 s{t1}, s{sQT}, 4")
    a(f"s_add_u32 s{t1}, s{t1}, s{t0}")
    a(f"s_mul_i32 s{sOO}, s{t1}, 1792")
    a(f"s_mul_i32 s{sF2O}, s{t1}, {F2SP}")
    a(f"s_add_u32 s{sF2O}, s{sF2O}, {B_F2}")
    a(f"s_lshl_b32 s{t0}, s{sRT}, 4")
    a(f"s_lshl_b32 s{t1}, s{skq}, 2")
    a(f"s_add_u32 s{t0}, s{t0}, s{t1}")
    a(f"v_and_b32 v{u0}, 3, v0")
    a(f"v_add_u32 v{u0}, s{t0}, v{u0}")
    a(f"v_mul_u32_u24 v{u0}, {F2SP}, v{u0}")
    a(f"v_add_u32 v{F2A}, {B_F2}, v{u0}")
    a(f"v_and_b32 v{u0}, 31, v0")
    a(f"s_lshl_b32 s{t0}, s{sRT}, 5")
    a(f"v_add_u32 v{u0}, s{t0}, v{u0}")
    a(f"v_mul_u32_u24 v{u0}, 1792, v{u0}")
    a(f"v_lshl_add_u32 v{OUTA}, v{u2}, 5, v{u0}")
    stamp(a, "setup")
    a(f"s_cmp_lt_u32 s{su}, 2")
    a("s_cbranch_scc1 P1_v0")
    a(f"s_cmp_eq_u32 s{su}, 2")
    a("s_cbranch_scc1 P1_v1")
    a("s_branch P1_v2")
    def reads(ch):
        st = ch % 4
        xa = XA if st < 2 else XA + 4
        wa = WA1 if st < 2 else WA1 + 1
        so = (st % 2) * STAGE
        fr = FR[ch % 2]
        out = []
        for ks in range(4):
            b = fr + 16 * ks
            out.append(f"ds_read_b128 {vr(b,4)}, v{xa+ks} offset:{so}")
            for c in range(3):
                for h in range(2):
                    out.append(f"ds_read_b64_tr_b16 {vr(b+4+4*c+2*h,2)}, v{wa} offset:{so + (16*ks+h)*336 + 56*c}")
        return out
    def mfmas(ch, ori):
        fr = FR[ch % 2]
        out = []
        order = [(ks, c) for ks in range(4) for c in range(3)] if ch < 6 else [(ks, c) for c in range(3) for ks in range(4)]
        for ks, c in order:
            b = fr + 16 * ks
            x = vr(b, 4); w = vr(b + 4 + 4 * c, 4)
            p, q = (w, x) if ori[c] == 'n' else (x, w)
            cc = "0" if (ch == 0 and ks == 0) else vr(ACC[c], 16)
            out.append(f"v_mfma_f32_32x32x16_bf16 {vr(ACC[c],16)}, {p}, {q}, {cc}")
        return out
    vm0, done0 = list(a.vm), a.done
    for v, ori in enumerate(["nnn", "nnv", "vvv"]):
        a.vm, a.done = list(vm0), done0
        a.lab(f"P1_v{v}")
        issued = INIT
        for ch in range(7):
            a.vwait(("c", ch), "lgkmcnt(0)")
            a("s_barrier")
            stamp(a, f"c{ch}")
            parts = []
            while issued <= min(6, ch + DIST):
                assert issued - 4 < ch
                parts += dma_parts(issued); issued += 1
            if ch == 5:
                assert not parts
                a.vmem(f"buffer_load_dwordx2 {vr(NV,2)}, v{NA}, {S4(rDBG)}, 0 offen sc1", "nonce")
                a.vmem(f"buffer_load_dword v{T+9}, v{F1A}, {S4(rWS)}, 0 offen sc1", "warm")
                if PRET:
                    a(f"s_mov_b64 exec, {(1 << (16 + 2*PRET)) - 1:#x}")
                    a.vmem(f"buffer_load_dword v{T+8}, v{PTA}, {S4(rWS)}, 0 offen sc1", "warm")
                    a("s_mov_b64 exec, -1")
            rd = reads(ch)
            mf = mfmas(ch - 1, ori) if ch >= 1 else []
            if DPOS == "begin" or (ch == 0 and INIT == 1):
                k = len(parts) if DPOS == "begin" else 5
                for f in parts[:k]: f()
                parts = parts[k:]
            i = 0
            for mi, m in enumerate(mf):
                a(m)
                for _ in range(3):
                    if i < len(rd): a(rd[i]); i += 1
                if DPOS == "mid" and parts and mi % 2 == 1:
                    parts.pop(0)()
            while i < len(rd): a(rd[i]); i += 1
            for f in parts: f()
        a.vwait("nonce", "lgkmcnt(0)")
        mf = mfmas(6, ori)
        for m in mf[0:4]: a(m)
        a(f"v_cmp_eq_u64 vcc, {S2(XM)}, {vr(NV,2)}")
        a(f"s_and_b32 s{t0}, vcc_lo, 0xf0")
        a(f"s_cmp_eq_u32 s{t0}, 0xf0")
        a(f"s_cselect_b32 s{sLOC}, {1 if LOCAL else 0}, 0")
        def st2(P, va, off, tag):
            a(f"s_cmp_eq_u32 s{sLOC}, 0")
            a(f"s_cbranch_scc1 L_wt{tag}")
            a(f"buffer_store_dwordx4 {vr(P,4)}, v{va}, {S4(rWS)}, s{t1} offen offset:{off}")
            a(f"buffer_store_dwordx4 {vr(P+4,4)}, v{va}, {S4(rWS)}, s{t1} offen offset:{off+1024}")
            a.lab(f"L_st{tag}")
            tails.append((tag, P, va, off))
        def epi(c):
            P = P1 + 8 * c
            a(f"s_mul_i32 s{t0}, s{su}, 3")
            a(f"s_add_u32 s{t0}, s{t0}, {c}")
            a(f"s_and_b32 s{t1}, s{t0}, 3")
            a(f"s_lshl_b32 s{t2}, s{srb}, 2")
            a(f"s_add_u32 s{t2}, s{t2}, s{stt}")
            a(f"s_lshl_b32 s{t1}, s{t1}, 6")
            a(f"s_add_u32 s{t1}, s{t1}, s{t2}")
            if ori[c] == 'n':
                a(f"s_cmp_lt_u32 s{t0}, 4")
                a(f"s_cselect_b32 s{t2}, {CSCALE:#x}, 1.0")
                a(f"s_cselect_b32 s{sROT}, 0, 0x3f80")
                a(f"s_cselect_b32 s{t3}, 11, 12")
                a(f"s_cselect_b32 s{t0}, {X_QF}, {X_KV}")
                a(f"s_lshl_b32 s{t1}, s{t1}, s{t3}")
                a(f"s_add_u32 s{t1}, s{t1}, s{t0}")
                if v == 0:
                    for r in range(16): a(f"v_mul_f32 v{ACC[c]+r}, s{t2}, v{ACC[c]+r}")
                for i in range(8): a(f"v_cvt_pk_bf16_f32 v{P+i}, v{ACC[c]+2*i}, v{ACC[c]+2*i+1}")
                a("s_mov_b32 exec_lo, 0")
                a(f"v_mov_b32 v{P+6}, s{sROT}")
                a(f"v_mov_b32 v{P+7}, 0")
                a("s_mov_b32 exec_lo, -1")
                st2(P, TAU, 0, f"{v}_{c}")
            else:
                a(f"s_lshl_b32 s{t1}, s{t1}, 12")
                a("s_nop 4")
                for i in range(8): a(f"v_cvt_pk_bf16_f32 v{P+i}, v{ACC[c]+2*i}, v{ACC[c]+2*i+1}")
                a("s_mov_b32 exec_lo, 0xf0000000")
                a("s_mov_b32 exec_hi, 0xf0000000")
                for i in range(8): a(f"v_mov_b32 v{P+i}, v{VPAD}")
                a("s_mov_b64 exec, -1")
                st2(P, L16, 2048, f"{v}_{c}")
        for m in mf[4:8]: a(m)
        epi(0)
        for m in mf[8:12]: a(m)
        epi(1)
        stamp(a, "p1end")
        epi(2)
        if v < 2: a("s_branch P1_done")
    a.lab("P1_done")
    a.vreset()
    for i in range(4):
        for r in range(16): a(f"v_mov_b32 v{O[i]+r}, 0")
    a(f"s_mov_b32 s{t3}, {SPIN}")
    a.lab("L_nonce")
    a(f"v_readfirstlane_b32 s{NONCE}, v{NV}")
    a(f"v_readfirstlane_b32 s{NONCE+1}, v{NV+1}")
    a(f"s_cmp_lg_u32 s{NONCE}, 0")
    a(f"s_cselect_b32 s{t2}, s{NONCE+1}, 0")
    a(f"s_cmp_lg_u32 s{t2}, 0")
    a("s_cbranch_scc0 L_nonce_retry")
    a("s_mov_b64 exec, 1")
    a(f"s_cmp_eq_u32 s{sLOC}, 0")
    a("s_waitcnt vmcnt(0)")
    a("s_cbranch_scc1 L_f1wt")
    a(f"buffer_store_dwordx2 {vr(NV,2)}, off, {S4(rWS)}, s{sF1O}")
    a.lab("L_f1st")
    a("s_mov_b64 exec, -1")
    stamp(a, "ack1")
    poll(a, "L_f1", F1A, rWS)
    stamp(a, "poll1")
    def ldK(kt, f): a.vmem(f"buffer_load_dwordx4 {vr(KB[kt%4]+4*f,4)}, v{L16}, {S4(rKV)}, s{sKVO} offen offset:{1024*f} sc1", ("K", kt))
    def ldV(kt, f): a.vmem(f"buffer_load_dwordx4 {vr(VB[kt%4]+4*f,4)}, v{L16}, {S4(rKV)}, s{sKVO} offen offset:{2048+1024*f} sc1", ("V", kt))
    def adv(): a(f"s_add_u32 s{sKVO}, s{sKVO}, 4096")
    def qk(p):
        kt, i = divmod(p, 4)
        s = SB[p % 4]; k = KB[kt % 4]
        return [f"v_mfma_f32_32x32x16_bf16 {vr(s,16)}, {vr(k,4)}, {vr(Q[i],4)}, 0",
                f"v_mfma_f32_32x32x16_bf16 {vr(s,16)}, {vr(k+4,4)}, {vr(Q[i]+4,4)}, {vr(s,16)}"]
    def pv(p):
        kt, i = divmod(p, 4)
        s = SB[p % 4]; v = VB[kt % 4]
        return [f"v_smfmac_f32_32x32x32_bf16 {vr(O[i],16)}, {vr(v,4)}, {vr(s,8)}, v{IDX}",
                f"v_smfmac_f32_32x32x32_bf16 {vr(O[i],16)}, {vr(v+4,4)}, {vr(s+8,8)}, v{IDX}"]
    a.vmem(f"buffer_load_dwordx4 {vr(Q[3],4)}, v{L16}, {S4(rWS)}, s{sQO} offen sc1", "Q")
    ldK(0, 0)
    a.vmem(f"buffer_load_dwordx4 {vr(Q[3]+4,4)}, v{L16}, {S4(rWS)}, s{sQO} offen offset:1024 sc1", "Q")
    ldK(0, 1)
    a.vwait(("K", 0))
    stamp(a, "k0")
    for x in qk(3): a(x)
    a(f"ds_write_b128 v{QW}, {vr(Q[3],4)}")
    ldV(0, 0); ldV(0, 1); adv(); ldK(1, 0); ldK(1, 1)
    a("s_nop 5")
    s = SB[3]
    a(f"v_max3_f32 v{T}, v{s}, v{s+1}, v{s+2}")
    a(f"v_max3_f32 v{T+1}, v{s+3}, v{s+4}, v{s+5}")
    for i in range(6, 14, 4):
        a(f"v_max3_f32 v{T}, v{T}, v{s+i}, v{s+i+1}")
        a(f"v_max3_f32 v{T+1}, v{T+1}, v{s+i+2}, v{s+i+3}")
    a(f"v_max3_f32 v{T}, v{T}, v{s+14}, v{s+15}")
    a(f"v_max_f32 v{T}, v{T}, v{T+1}")
    a(f"v_mov_b32 v{T+1}, v{T}")
    a("s_nop 1")
    a(f"v_permlane32_swap_b32 v{T}, v{T+1}")
    a(f"v_max_f32 v{T}, v{T}, v{T+1}")
    if FORCEFB: a(f"v_add_f32 v{T}, 0x43480000, v{T}")
    a(f"v_xor_b32 v{T}, 0x80000000, v{T}")
    a("s_mov_b32 exec_lo, 0")
    a(f"v_lshrrev_b32 v{Q[3]+6}, 16, v{T}")
    a("s_mov_b32 exec_lo, -1")
    a(f"ds_write_b128 v{QW}, {vr(Q[3]+4,4)} offset:1024")
    stamp(a, "max")
    a("s_waitcnt lgkmcnt(0)")
    a("s_barrier")
    stamp(a, "bq1")
    for i in range(3):
        a(f"ds_read_b128 {vr(Q[i],4)}, v{QR+i}")
        a(f"ds_read_b128 {vr(Q[i]+4,4)}, v{QR+i} offset:1024")
    a("s_waitcnt lgkmcnt(4)")
    for x in qk(0): a(x)
    a(f"s_mul_i32 s{t0}, s{sRT}, 57344")
    a("s_waitcnt lgkmcnt(0)")
    a("s_barrier")
    a("s_nop 7")
    lq = [(lambda: ldV(1, 0), 0), (lambda: (ldV(1, 1), adv()), 0)]
    for k in range(2, 16):
        lq += [(lambda k=k: ldK(k, 0), 4 * (k - 4) + 3), (lambda k=k: ldK(k, 1), 4 * (k - 4) + 3),
               (lambda k=k: ldV(k, 0), 4 * (k - 4) + 5), (lambda k=k: (ldV(k, 1), adv()), 4 * (k - 4) + 5)]
    stamp(a, "loop0")
    NP = 64
    for p in range(NP):
        kt, i = divmod(p, 4)
        s = SB[p % 4]
        stamp(a, f"ph{p}")
        ms = (qk(p + 1) if p + 1 < NP else [None, None]) + (pv(p - 1) if p >= 1 else [None, None])
        extra = [[], [], [], []]
        for g in ((0, 1) if p < 6 else (0,)):
            if lq and lq[0][1] <= p: extra[g].append(lq.pop(0)[0])
        if i == 1 and kt < 14:
            if kt < 9:
                extra[1].append(lambda: a(f"s_mov_b32 m0, s{sWOL}"))
                extra[2].append(lambda: a.vmem(f"buffer_load_dwordx4 v{WOA}, {S4(rWO)}, s{sWOS} offen lds", "wo"))
                extra[3].append(lambda: (a(f"s_add_u32 s{sWOS}, s{sWOS}, 28672"), a(f"s_add_u32 s{sWOL}, s{sWOL}, 7168")))
            else:
                extra[2].append(lambda: a.vmem(f"buffer_load_dword v{T+8}, v{WOA}, {S4(rWO)}, s{sWOS} offen", "wo"))
                extra[3].append(lambda: a(f"s_add_u32 s{sWOS}, s{sWOS}, 28672"))
        if i == 2 and kt == 13:
            extra[1].append(lambda: a.vmem(f"buffer_load_dword v{T+9}, v{F2A}, {S4(rBR)}, 0 offen sc1", "warm"))
            extra[2].append(lambda: a.vmem(f"buffer_load_dword v{T+10}, off, {S4(rOUT)}, s{t0}", "warm"))
        if p >= 62:
            sl = p - 62
            for g in range(4):
                extra[3].append(lambda g=g, sl=sl: a(f"ds_write_b128 v{PW+sl}, {vr(O[sl]+4*g,4)} offset:{1024*g}"))
        for g in range(4):
            if ms[g]:
                if g == 0 and (p + 1) % 4 == 0: a.vwait(("K", (p + 1) // 4))
                if g == 2 and (p - 1) % 4 == 0: a.vwait(("V", (p - 1) // 4))
                a(ms[g])
            for f in extra[g]: f()
            for jj in range(4): a(f"v_exp_f32 v{s+4*g+jj}, v{s+4*g+jj}")
    a("s_nop 1")
    for x in pv(63): a(x)
    a("s_nop 0")
    for g in range(4): a(f"ds_write_b128 v{PW+2}, {vr(O[2]+4*g,4)} offset:{1024*g}")
    stamp(a, "loop1")
    if WBL2 != "0":
        a(f"s_cmp_lg_u32 s{sw}, 0")
        a("s_cbranch_scc1 L_nowb")
        if WBL2 == "1":
            a(f"s_cmp_lg_u32 s{sidx}, 0")
            a("s_cbranch_scc1 L_nowb")
        a("buffer_wbl2 sc1")
        a.lab("L_nowb")
    a.vall("lgkmcnt(0)")
    a("s_barrier")
    stamp(a, "b1")
    R = 112
    OO = O[3]
    for i in range(12): a(f"ds_read_b128 {vr(R+4*i,4)}, v{PR} offset:{1024*i}")
    a(f"v_lshrrev_b32 v{T+3}, 1, v{TAU}")
    for i in range(3):
        a(f"s_waitcnt lgkmcnt({8-4*i})")
        for r in range(0, 16, 2): a(f"v_pk_add_f32 {vr(OO+r,2)}, {vr(OO+r,2)}, {vr(R+16*i+r,2)}")
    a(f"v_mov_b32 v{T}, v{OO+12}")
    a(f"v_mov_b32 v{T+1}, v{OO+12}")
    a(f"v_pk_mul_f32 {vr(T+4,2)}, {vr(OO,2)}, 0")
    for r in range(2, 16, 2): a(f"v_pk_fma_f32 {vr(T+4,2)}, {vr(OO+r,2)}, 0, {vr(T+4,2)}")
    a(f"v_permlane32_swap_b32 v{T}, v{T+1}")
    a(f"v_add3_u32 v{T+2}, 0, 0, 0") if False else None
    a(f"v_add_f32 v{T+4}, v{T+4}, v{T+5}")
    a(f"v_add_f32 v{T+4}, v{T+4}, v{T+1}")
    a(f"v_cmp_nlt_f32 vcc, 0x35800000, v{T+4}")
    a(f"s_mov_b64 {S2(sROT)}, vcc")
    a(f"v_cmp_ngt_f32 vcc, 0x71800000, v{T+4}")
    a(f"s_or_b64 vcc, vcc, {S2(sROT)}")
    a("s_cbranch_vccnz L_fallback")
    a.lab("L_norm")
    a(f"v_rcp_f32 v{T}, v{T+1}")
    a("s_nop 0")
    P = T + 4
    for i in range(8):
        a(f"v_pk_mul_f32 {vr(OO+2*i,2)}, {vr(OO+2*i,2)}, {vr(T,2)} op_sel_hi:[1,0]")
    for i in range(4): a(f"v_cvt_pk_bf16_f32 v{P+i}, v{OO+2*i}, v{OO+2*i+1}")
    a(f"buffer_store_dwordx4 {vr(P,4)}, v{TAU}, {S4(rBR)}, s{sOO} offen sc1")
    for i in range(4, 8): a(f"v_cvt_pk_bf16_f32 v{P+i}, v{OO+2*i}, v{OO+2*i+1}")
    a("s_mov_b32 exec_hi, 0")
    a(f"buffer_store_dwordx4 {vr(P+4,4)}, v{TAU}, {S4(rBR)}, s{sOO} offen offset:1024 sc1")
    a("s_not_b64 exec, exec")
    a(f"buffer_store_dwordx2 {vr(P+4,2)}, v{T+3}, {S4(rBR)}, s{sOO} offen offset:1280 sc1")
    a("s_mov_b64 exec, -1")
    stamp(a, "ost")
    WA = 16; OA = 24; NF = 28
    a(f"v_mov_b32 v{NF}, s{NONCE}")
    a(f"v_mov_b32 v{NF+1}, s{NONCE+1}")
    a(f"v_bfe_u32 v{u0}, v0, 2, 2")
    a(f"v_mul_u32_u24 v{u1}, 448, v{u0}")
    a(f"s_lshl_b32 s{t0}, s{skq}, 6")
    a(f"v_add_u32 v{u1}, s{t0}, v{u1}")
    a(f"v_and_b32 v{u0}, 1, v0")
    a(f"v_lshl_add_u32 v{u1}, v{u0}, 5, v{u1}")
    a(f"v_bfe_u32 v{u0}, v0, 4, 1")
    a(f"v_lshl_add_u32 v{u1}, v{u0}, 4, v{u1}")
    a(f"v_bfe_u32 v{u0}, v0, 1, 1")
    a(f"v_lshl_add_u32 v{u1}, v{u0}, 3, v{u1}")
    a(f"v_lshrrev_b32 v{u2}, 5, v0")
    HSTEP = [1, 7, 25, 56]
    for t in range(4):
        a(f"v_mul_u32_u24 v{u0}, {HSTEP[t]*224}, v{u2}")
        a(f"v_add_u32 v{WA+t}, v{u1}, v{u0}")
        a(f"v_add_u32 v{WA+4+t}, 50176, v{WA+t}")
    WB = 128
    def pos(G): return 8 * (G >> 1) + (G & 1)
    steps = []
    for q in range(4):
        for hd in range(4 * q, 4 * q + 4):
            steps.append((hd & 1, lambda h, aa, hd=hd: 7 * hd + 2 * aa + h, ("A", hd)))
        for i in range(2 * q, 2 * q + 2):
            steps.append((2, lambda h, aa, i=i: 7 * (2 * i + h) + 4 + 2 * aa, ("B", 2 * i)))
        steps.append((3, lambda h, aa, q=q: 7 * (4 * q + 2 * h + aa) + 5, ("C", 4 * q)))
    def wread(ks):
        t, G, _ = steps[ks]
        for aa in range(2):
            assert pos(G(1, aa)) - pos(G(0, aa)) == HSTEP[t]
            off = pos(G(0, aa)) * 224
            ad = WA + t
            if off >= 50176: off -= 50176; ad += 4
            a(f"ds_read_b64_tr_b16 {vr(WB+4*ks+2*aa,2)}, v{ad} offset:{off}")
    early = [ks for ks in range(28) if max(steps[ks][1](h, aa) for h in (0, 1) for aa in (0, 1)) * 4 + 3 < 287]
    late = [ks for ks in range(28) if ks not in early]
    sOS, sOL = t0, t1
    a(f"s_mul_i32 s{sOS}, s{sRT}, 28672")
    a(f"s_mul_i32 s{t2}, s{skq}, 7168")
    a(f"s_add_u32 s{sOS}, s{sOS}, s{t2}")
    a(f"s_mul_i32 s{sOL}, s{sg}, 28672")
    a(f"s_add_u32 s{sOL}, s{sOL}, {OS}")
    a(f"v_add_u32 v{OA}, s{sOL}, v{L16}")
    a(f"v_and_b32 v{u0}, 31, v0")
    a(f"v_mul_u32_u24 v{u1}, 1792, v{u2}")
    a(f"v_lshl_add_u32 v{u1}, v{u0}, 4, v{u1}")
    a(f"v_add_u32 v{OA+1}, s{sOL}, v{u1}")
    a(f"v_mul_u32_u24 v{u1}, 3584, v{u2}")
    a(f"v_lshl_add_u32 v{u1}, v{u0}, 3, v{u1}")
    a(f"v_add_u32 v{OA+2}, s{sOL}, v{u1}")
    a(f"s_add_u32 s{sOL}, s{sOL}, s{t2}")
    a("s_mov_b64 exec, 1")
    a("s_waitcnt vmcnt(0)")
    a(f"buffer_store_dwordx2 {vr(NF,2)}, off, {S4(rBR)}, s{sF2O} sc1")
    a("s_mov_b64 exec, -1")
    stamp(a, "flag2")
    a("s_barrier")
    a(f"s_mov_b32 s{sWOS}, {9*28672}")
    for g in range(9, 14):
        a(f"s_add_u32 m0, s{swp}, {g*7168}")
        if g > 9: a(f"s_add_u32 s{sWOS}, s{sWOS}, 28672")
        else: a("s_nop 0")
        a(f"buffer_load_dwordx4 v{WOA}, {S4(rWO)}, s{sWOS} offen lds")
    for ks in early: wread(ks)
    a("s_waitcnt vmcnt(0)")
    a("s_barrier")
    stamp(a, "b3")
    for ks in late: wread(ks)
    poll(a, "L_f2", F2A, rBR)
    stamp(a, "poll2")
    a(f"s_mov_b32 m0, s{sOL}")
    a("s_nop 0")
    for i in range(4): a(f"buffer_load_dwordx4 v{L16}, {S4(rBR)}, s{sOS} offen offset:{1024*i} sc1 lds")
    a(f"s_add_u32 m0, s{sOL}, 4096")
    a(f"s_add_u32 s{sOS}, s{sOS}, 4096")
    for i in range(3): a(f"buffer_load_dwordx4 v{L16}, {S4(rBR)}, s{sOS} offen offset:{1024*i} sc1 lds")
    a("s_waitcnt vmcnt(0) lgkmcnt(0)")
    stamp(a, "oown")
    a("s_barrier")
    stamp(a, "oland")
    ACC3 = 96; OB = 32; NB = 10
    lg = []
    def oread(ks):
        kind, hd = steps[ks][2]
        d = OB + 4 * (ks % NB)
        if kind == "A": a(f"ds_read_b128 {vr(d,4)}, v{OA} offset:{hd*1792}"); lg.append(ks)
        elif kind == "B": a(f"ds_read_b128 {vr(d,4)}, v{OA+1} offset:{hd*1792+1024}"); lg.append(ks)
        else:
            for aa in range(2):
                a(f"ds_read_b64 {vr(d+2*aa,2)}, v{OA+2} offset:{(hd+aa)*1792+1536}"); lg.append(ks)
    for ks in range(NB): oread(ks)
    for ks in range(28):
        out = sum(1 for k in lg if k > ks)
        assert out < 16
        a(f"s_waitcnt lgkmcnt({out})")
        c = "0" if ks == 0 else vr(ACC3, 16)
        a(f"v_mfma_f32_32x32x16_bf16 {vr(ACC3,16)}, {vr(WB+4*ks,4)}, {vr(OB+4*(ks%NB),4)}, {c}")
        if ks + NB < 28: oread(ks + NB)
    stamp(a, "mf3")
    a(f"s_cmp_eq_u32 s{skq}, 3")
    a(f"s_cselect_b32 s{t1}, 0, -1")
    a("s_nop 10")
    for i in range(8): a(f"v_cvt_pk_bf16_f32 v{80+i}, v{ACC3+2*i}, v{ACC3+2*i+1}")
    a(f"s_mov_b32 exec_hi, s{t1}")
    a(f"buffer_store_dwordx4 v[80:83], v{OUTA}, {S4(rOUT)}, s{sOUTO} offen {OUTF}")
    a(f"buffer_store_dwordx4 v[84:87], v{OUTA}, {S4(rOUT)}, s{sOUTO} offen offset:16 {OUTF}")
    if STAMP:
        a("s_waitcnt vmcnt(0)")
        a("s_memrealtime s[22:23]")
        a("s_memtime s[98:99]")
        a("s_waitcnt lgkmcnt(0)")
        a("s_mov_b64 exec, 1")
        a(f"s_mov_b32 s{rWS}, s20"); a(f"s_mov_b32 s{rWS+1}, s21"); a(f"s_mov_b32 s{rWS+2}, 0x10000000")
        a(f"s_lshl_b32 s{t1}, s2, 9")
        a(f"s_add_u32 s{t1}, s{t1}, {64<<20}")
        a(f"s_lshl_b32 s{t0}, s{sw}, 6")
        a(f"s_add_u32 s{t1}, s{t1}, s{t0}")
        for i, r in enumerate([RT, 22, 100, 98] + [80 + 2 * k for k in range(9)] + [sLOC]):
            a(f"v_mov_b32 v1, s{r}")
            a(f"buffer_store_dword v1, off, {S4(rWS)}, s{t1} offset:{4*i}")
    if DBGST:
        a("s_waitcnt vmcnt(0)")
        a("s_memrealtime s[98:99]")
        a("s_waitcnt lgkmcnt(0)")
        a(f"s_cmp_lg_u32 s{sw}, 7")
        a("s_cbranch_scc1 L_end")
        a(f"s_not_b32 s{t0}, s{RT}")
        a(f"v_mov_b32 v1, s{t0}")
        for i, r in enumerate([RT] + [80 + 2 * k for k in range(9)] + [98]):
            a(f"v_writelane_b32 v1, s{r}, {i+1}")
        a("v_lshlrev_b32 v2, 2, v0")
        a("s_mov_b64 exec, 0xfff")
        a(f"buffer_atomic_umax v1, v2, {S4(rDBG)}, 0 offen offset:16 sc1")
    a.lab("L_end")
    a("s_endpgm")
    for tag, P_, va, off in tails:
        a.lab(f"L_wt{tag}")
        a(f"buffer_store_dwordx4 {vr(P_,4)}, v{va}, {S4(rWS)}, s{t1} offen offset:{off} sc1")
        a(f"buffer_store_dwordx4 {vr(P_+4,4)}, v{va}, {S4(rWS)}, s{t1} offen offset:{off+1024} sc1")
        a(f"s_branch L_st{tag}")
    a.lab("L_f1wt")
    a(f"buffer_store_dwordx2 {vr(NV,2)}, off, {S4(rWS)}, s{sF1O} sc1")
    a("s_branch L_f1st")
    a.lab("L_nonce_retry")
    a(f"buffer_load_dwordx2 {vr(NV,2)}, off, {S4(rDBG)}, s{sDL} sc1")
    a(f"s_sub_u32 s{t3}, s{t3}, 1")
    a("s_cbranch_scc1 L_end")
    a("s_waitcnt vmcnt(0)")
    a("s_branch L_nonce")
    a.lab("L_fallback")
    QO = Q[3]; S0 = SB[0]; K0 = KB[0]; V0 = VB[0]; M = T + 4
    a("s_mov_b32 exec_lo, 0")
    a(f"v_mov_b32 v{QO+6}, 0")
    a("s_mov_b32 exec_lo, -1")
    for r in range(16): a(f"v_mov_b32 v{OO+r}, 0")
    a(f"v_mov_b32 v{M}, 0xff7fffff")
    a(f"s_mov_b32 s{sKVO}, 0")
    a.lab("L_fb_loop")
    a(f"buffer_load_dwordx4 {vr(K0,4)}, v{L16}, {S4(rKV)}, s{sKVO} offen sc1")
    a(f"buffer_load_dwordx4 {vr(K0+4,4)}, v{L16}, {S4(rKV)}, s{sKVO} offen offset:1024 sc1")
    a(f"buffer_load_dwordx4 {vr(V0,4)}, v{L16}, {S4(rKV)}, s{sKVO} offen offset:2048 sc1")
    a(f"buffer_load_dwordx4 {vr(V0+4,4)}, v{L16}, {S4(rKV)}, s{sKVO} offen offset:3072 sc1")
    a("s_waitcnt vmcnt(0)")
    a(f"v_mfma_f32_32x32x16_bf16 {vr(S0,16)}, {vr(K0,4)}, {vr(QO,4)}, 0")
    a(f"v_mfma_f32_32x32x16_bf16 {vr(S0,16)}, {vr(K0+4,4)}, {vr(QO+4,4)}, {vr(S0,16)}")
    a("s_nop 15")
    a(f"v_max3_f32 v{T}, v{M}, v{S0}, v{S0+1}")
    for i in range(2, 16, 2): a(f"v_max3_f32 v{T}, v{T}, v{S0+i}, v{S0+i+1}")
    a(f"v_mov_b32 v{T+1}, v{T}")
    a("s_nop 1")
    a(f"v_permlane32_swap_b32 v{T}, v{T+1}")
    a(f"v_max_f32 v{T}, v{T}, v{T+1}")
    a(f"v_sub_f32 v{T+1}, v{M}, v{T}")
    a(f"v_exp_f32 v{T+1}, v{T+1}")
    a(f"v_mov_b32 v{M}, v{T}")
    for r in range(16): a(f"v_sub_f32 v{S0+r}, v{S0+r}, v{T}")
    for r in range(16): a(f"v_exp_f32 v{S0+r}, v{S0+r}")
    for r in range(16): a(f"v_mul_f32 v{OO+r}, v{OO+r}, v{T+1}")
    a("s_nop 1")
    a(f"v_smfmac_f32_32x32x32_bf16 {vr(OO,16)}, {vr(V0,4)}, {vr(S0,8)}, v{IDX}")
    a(f"v_smfmac_f32_32x32x32_bf16 {vr(OO,16)}, {vr(V0+4,4)}, {vr(S0+8,8)}, v{IDX}")
    a(f"s_add_u32 s{sKVO}, s{sKVO}, 4096")
    a(f"s_cmp_lt_u32 s{sKVO}, 262144")
    a("s_nop 15")
    a("s_cbranch_scc1 L_fb_loop")
    a(f"v_mov_b32 v{T}, v{OO+12}")
    a(f"v_mov_b32 v{T+1}, v{OO+12}")
    a("s_nop 1")
    a(f"v_permlane32_swap_b32 v{T}, v{T+1}")
    a("s_branch L_norm")
    kd = f""".section .rodata,"a"
.p2align 6
.amdhsa_kernel {n}
  .amdhsa_next_free_vgpr 256
  .amdhsa_next_free_sgpr 102
  .amdhsa_accum_offset 256
  .amdhsa_group_segment_fixed_size 0
  .amdhsa_kernarg_size 72
  .amdhsa_user_sgpr_count 2
  .amdhsa_user_sgpr_kernarg_segment_ptr 1
  .amdhsa_system_sgpr_workgroup_id_x 1
.end_amdhsa_kernel
"""
    return a.text() + kd

tails = []
hdr = f"""; @launch grid=(256,1,1) block=(512,1,1) lds={LDS}
.amdgcn_target "amdgcn-amd-amdhsa--gfx950"
.text
"""
open(sys.argv[1] if len(sys.argv) > 1 else "v4.s", "w").write(hdr + gen())
```

```python
import sys, os, struct, math
NAME = "concat_heads__softmax_full_mha__softmax_full_mha__prompt"
def f2u(x): return struct.unpack("<I", struct.pack("<f", x))[0]
CSCALE = f2u(28 ** -0.5 * math.log2(math.e))
E = os.environ.get
STAMP = E("STAMP", "0") == "1"
DBGST = E("STAMP", "0") == "2"
DIAG = E("DIAG", "")
STL = E("STL", "c0,p1end,ack1,poll1,loop0,loop1,flag2,poll2,oland").split(",")
INIT = int(E("INIT", "2"))
DIST = int(E("DIST", "2"))
DPOS = E("DPOS", "mid")
F2SP = int(E("F2SP", "32"))
FORCEFB = E("FORCEFB", "0") == "1"
LOCAL = E("LOCAL", "1") == "1"
PRET = int(E("PRET", "3"))
SLEEP = int(E("SLEEP", "0"))
WBL2 = E("WBL2", "0")
OUTF = E("OUTF", "")
ROTA, ROTB, ROTC, ROTN, ROTS = [int(v) for v in E("ROTP", "1,1,2,7,1").split(",")]

X_KV = 0; X_QF = 1 << 20; X_F1 = 3 << 19
B_BASE = 16 << 20; B_F2 = 1835008
STAGE = 37888; XOFF = 21504
CB = 64512; QX = 113664; OS = 100352; LDS = 163840
SPIN = 1 << 22

class A:
    def __init__(self):
        self.l = []; self.vm = []; self.done = 0
    def __call__(self, s): self.l.append("    " + s)
    def lab(self, s): self.l.append(s + ":")
    def raw(self, s): self.l.append(s)
    def text(self): return "\n".join(self.l) + "\n"
    def vreset(self): self.vm = []; self.done = 0
    def vmem(self, s, tag=None):
        self(s); self.vm.append(tag)
    def vwait(self, tag, extra=""):
        idx = [i for i, t in enumerate(self.vm) if t == tag]
        assert idx, tag
        last = idx[-1] + 1
        if last <= self.done:
            if extra: self(f"s_waitcnt {extra}")
            return
        self.done = last
        n = len(self.vm) - last
        assert n < 64
        self(f"s_waitcnt vmcnt({n}) {extra}".rstrip())
    def vall(self, extra=""):
        self.done = len(self.vm); self(f"s_waitcnt vmcnt(0) {extra}".rstrip())

def vr(b, n): return f"v[{b}:{b+n-1}]"
def S4(b): return f"s[{b}:{b+3}]"
def S2(b): return f"s[{b}:{b+1}]"
def stamp(a, name):
    if DIAG == name:
        a("s_memrealtime s[80:81]")
    if STAMP and name in STL:
        i = STL.index(name)
        a(f"s_memtime s[{80+2*i}:{81+2*i}]")
    if DBGST and name in STL:
        i = STL.index(name)
        a(f"s_memrealtime s[{80+2*i}:{81+2*i}]")

rX, rW, rWS, rWO, rOUT, rDBG, rKV, rBR = 24, 28, 32, 36, 64, 68, 72, 12
XM = 4
sLOC = 6
sRT = 7
sOUTO = 8
sQT = 9
sF1O = 10
sQO = 11
sx, sidx, sb, srb, shalf, sXS, sw, shl, swp, sqb, sg, sWL, sXL, sWS_, stt, scg, skq, su = range(40, 58)
t0, t1, sDL, t2, sROT, t3 = 58, 59, 60, 61, 62, 63
NONCE = 76; RT = 78
sKVO, sWOS, sWOL, sOO, sF2O = 16, 17, 18, 19, 22
L16, IDX, WOA, F1A, F2A, OUTA, QW, QR, PW, PR, TAU = 1, 2, 3, 4, 5, 6, 7, 8, 11, 14, 15
T = 240
XD, WD, XA, WA1, VPAD, NV, NA, PTA = 16, 18, 21, 29, 31, 232, 234, 235
ACC = [32, 48, 64]; FR = [80, 144]; P1 = 208
Q = [16, 24, 32, 40]; O = [48, 64, 80, 96]; SB = [112, 128, 144, 160]; KB = [176, 184, 192, 200]; VB = [208, 216, 224, 232]

def poll(a, name, vaddr, srd):
    a(f"s_mov_b32 s{t3}, {SPIN}")
    if SLEEP: a(f"s_branch {name}_first")
    a.lab(f"{name}_spin")
    if SLEEP:
        a(f"s_sleep {SLEEP}")
        a.lab(f"{name}_first")
    a(f"buffer_load_dwordx2 {vr(T+14,2)}, v{vaddr}, {S4(srd)}, 0 offen sc1")
    a(f"s_sub_u32 s{t3}, s{t3}, 1")
    a("s_cbranch_scc1 L_end")
    a("s_waitcnt vmcnt(0)")
    a(f"v_cmp_ne_u64 vcc, {S2(NONCE)}, {vr(T+14,2)}")
    a(f"s_cbranch_vccnz {name}_spin")

def gen():
    a = A(); n = NAME + "_kernel"
    u0, u1, u2, u3, u4 = T, T + 1, T + 2, T + 3, T + 4
    a.raw(f".globl {n}\n.p2align 8\n.type {n},@function")
    a.lab(n)
    a("s_cmp_ge_u32 s2, 256")
    a("s_cbranch_scc1 L_end")
    a("s_load_dwordx16 s[4:19], s[0:1], 0")
    a("s_load_dwordx2 s[20:21], s[0:1], 64")
    a(f"s_memrealtime {S2(RT)}")
    if STAMP: a("s_memtime s[100:101]")
    a(f"s_and_b32 s{sx}, s2, 7")
    a(f"s_lshr_b32 s{sidx}, s2, 3")
    a(f"s_lshr_b32 s{sb}, s{sx}, 2")
    a(f"s_lshr_b32 s{srb}, s{sidx}, 1")
    a(f"s_and_b32 s{shalf}, s{sidx}, 1")
    a("v_lshrrev_b32 v1, 6, v0")
    a("v_and_b32 v0, 63, v0")
    a(f"v_readfirstlane_b32 s{sw}, v1")
    a(f"v_lshrrev_b32 v{u0}, 3, v0")
    a(f"s_lshl_b32 s{t0}, s{srb}, 7")
    a(f"s_lshl_b32 s{t1}, s{sw}, 4")
    a(f"s_add_u32 s{t0}, s{t0}, s{t1}")
    a(f"v_add_u32 v{u0}, s{t0}, v{u0}")
    a(f"v_mul_u32_u24 v{u0}, 896, v{u0}")
    a(f"v_lshrrev_b32 v{u1}, 4, v0")
    a(f"v_and_b32 v{u2}, 7, v0")
    a(f"v_xor_b32 v{u2}, v{u2}, v{u1}")
    a(f"v_lshl_add_u32 v{XD}, v{u2}, 4, v{u0}")
    a(f"v_xor_b32 v{u2}, 4, v{u2}")
    a(f"v_lshl_add_u32 v{XD+1}, v{u2}, 4, v{u0}")
    a(f"v_add_u32 v{XD+1}, 7168, v{XD+1}")
    a(f"s_min_u32 s{swp}, s{sw}, 6")
    a(f"s_mul_i32 s{t0}, s{swp}, 192")
    a(f"s_and_b32 s{t1}, s{sx}, 3")
    a(f"s_mul_i32 s{t1}, s{t1}, 224")
    a(f"s_mul_i32 s{t2}, s{shalf}, 1008")
    a(f"s_add_u32 s{t1}, s{t1}, s{t2}")
    a(f"s_lshr_b32 s{t2}, 14, s{shalf}")
    a(f"v_mov_b32 v{u4}, 672")
    for i in range(3):
        a(f"v_add_u32 v{u0}, s{t0}, v0")
        if i: a(f"v_add_u32 v{u0}, {64*i}, v{u0}")
        a(f"v_mul_u32_u24 v{u1}, 3121, v{u0}")
        a(f"v_lshrrev_b32 v{u1}, 16, v{u1}")
        a(f"v_mul_u32_u24 v{u2}, 21, v{u1}")
        a(f"v_sub_u32 v{u0}, v{u0}, v{u2}")
        a(f"v_and_b32 v{u2}, 48, v{u1}")
        a(f"v_and_b32 v{u3}, 3, v{u1}")
        a(f"v_lshl_add_u32 v{u2}, v{u3}, 2, v{u2}")
        a(f"v_bfe_u32 v{u3}, v{u1}, 2, 2")
        a(f"v_add_u32 v{u2}, v{u2}, v{u3}")
        a(f"v_mul_u32_u24 v{u2}, 2688, v{u2}")
        a(f"v_cmp_le_u32 vcc, s{t2}, v{u0}")
        a(f"v_lshl_add_u32 v{u2}, v{u0}, 4, v{u2}")
        a(f"v_add_u32 v{u2}, s{t1}, v{u2}")
        a(f"v_cndmask_b32 v{u3}, 0, v{u4}, vcc")
        a(f"v_add_u32 v{WD+i}, v{u2}, v{u3}")
    a(f"s_mul_i32 s{sROT}, s{srb}, {ROTA}")
    a(f"s_mul_i32 s{t2}, s{shalf}, {ROTB}")
    a(f"s_add_u32 s{sROT}, s{sROT}, s{t2}")
    a(f"s_and_b32 s{t2}, s{sx}, 3")
    a(f"s_mul_i32 s{t2}, s{t2}, {ROTC}")
    a(f"s_add_u32 s{sROT}, s{sROT}, s{t2}")
    a(f"s_mul_i32 s{t2}, s{sROT}, {(65536 + ROTN - 1)//ROTN}")
    a(f"s_lshr_b32 s{t2}, s{t2}, 16")
    a(f"s_mul_i32 s{t2}, s{t2}, {ROTN}")
    a(f"s_sub_u32 s{sROT}, s{sROT}, s{t2}")
    a(f"s_mul_i32 s{sROT}, s{sROT}, {ROTS}")
    assert (ROTN - 1) * ROTS < 7
    a(f"s_mul_i32 s{sWL}, s{swp}, 3072")
    a(f"s_lshl_b32 s{sXL}, s{sw}, 11")
    a(f"s_add_u32 s{sXL}, s{sXL}, {XOFF}")
    a("s_waitcnt lgkmcnt(0)")
    a(f"s_cmp_eq_u32 s{sb}, 0")
    a(f"s_cselect_b32 s{rX}, s4, s10")
    a(f"s_cselect_b32 s{rX+1}, s5, s11")
    a(f"s_mov_b32 s{rX+2}, 1835008")
    a(f"s_mov_b32 s{rX+3}, 0x00020000")
    a(f"s_cselect_b32 s{rW}, s6, s12")
    a(f"s_cselect_b32 s{rW+1}, s7, s13")
    a(f"s_mov_b32 s{rW+2}, 1204224")
    a(f"s_mov_b32 s{rW+3}, 0x00020000")
    def dma_parts(ch):
        st = (ch % 4) * STAGE
        parts = []
        def part(pre, ins, post=()):
            def f():
                for x in pre: a(x)
                a.vmem(ins, ("c", ch))
                for x in post: a(x)
            parts.append(f)
        part([f"s_add_u32 m0, s{sXL}, {st}", f"s_lshl_b32 s{sXS}, s{sROT}, 7"], f"buffer_load_dwordx4 v{XD}, {S4(rX)}, s{sXS} offen lds")
        part([f"s_add_u32 m0, s{sXL}, {st+1024}", f"s_mul_i32 s{sWS_}, s{sROT}, 172032"], f"buffer_load_dwordx4 v{XD+1}, {S4(rX)}, s{sXS} offen lds")
        part([f"s_add_u32 m0, s{sWL}, {st}", f"s_add_u32 s{sROT}, s{sROT}, 1"], f"buffer_load_dwordx4 v{WD}, {S4(rW)}, s{sWS_} offen lds")
        part([f"s_add_u32 m0, s{sWL}, {st+1024}", "s_nop 0"], f"buffer_load_dwordx4 v{WD+1}, {S4(rW)}, s{sWS_} offen lds")
        part([f"s_add_u32 m0, s{sWL}, {st+2048}", f"s_cmp_eq_u32 s{sROT}, 7"], f"buffer_load_dwordx4 v{WD+2}, {S4(rW)}, s{sWS_} offen lds",
             [f"s_cselect_b32 s{sROT}, 0, s{sROT}"])
        return parts
    def dma(ch):
        for f in dma_parts(ch): f()
    dma(0)
    a(f"s_cmp_eq_u32 s{sb}, 0")
    a(f"s_cselect_b32 s{rWO}, s8, s14")
    a(f"s_cselect_b32 s{rWO+1}, s9, s15")
    a(f"s_mov_b32 s{rWO+2}, 401408")
    a(f"s_mov_b32 s{rWO+3}, 0x00020000")
    for d, lo, sz in ((rOUT, 16, 2048 * 896 * 2), (rDBG, 18, 256)):
        a(f"s_mov_b32 s{d}, s{lo}"); a(f"s_mov_b32 s{d+1}, s{lo+1}"); a(f"s_mov_b32 s{d+2}, {sz}"); a(f"s_mov_b32 s{d+3}, 0x00020000")
    a(f"s_lshl_b32 s{t2}, s{sx}, 21")
    a(f"s_add_u32 s{rWS}, s20, s{t2}")
    a(f"s_addc_u32 s{rWS+1}, s21, 0")
    a(f"s_mov_b32 s{rWS+2}, {2<<20}")
    a(f"s_mov_b32 s{rWS+3}, 0x00020000")
    a(f"s_lshl_b32 s{t2}, s{sb}, 21")
    a(f"s_add_u32 s{t2}, s{t2}, {B_BASE}")
    a(f"s_add_u32 s{rBR}, s20, s{t2}")
    a(f"s_addc_u32 s{rBR+1}, s21, 0")
    a(f"s_mov_b32 s{rBR+2}, {2<<20}")
    a(f"s_mov_b32 s{rBR+3}, 0x00020000")
    a(f"s_and_b32 s{shl}, s{sidx}, 3")
    a(f"s_lshl_b32 s{t2}, s{shl}, 18")
    a(f"s_add_u32 s{rKV}, s{rWS}, s{t2}")
    a(f"s_addc_u32 s{rKV+1}, s{rWS+1}, 0")
    a(f"s_mov_b32 s{rKV+2}, 262144")
    a(f"s_mov_b32 s{rKV+3}, 0x00020000")
    a(f"s_lshl_b32 s{sDL}, s{sb}, 3")
    a(f"s_getreg_b32 s{XM}, hwreg(HW_REG_XCC_ID)")
    a(f"s_and_b32 s{XM}, s{XM}, 15")
    a(f"s_lshl_b32 s{t0}, s{sx}, 4")
    a(f"s_or_b32 s{XM}, s{XM}, s{t0}")
    a(f"s_or_b32 s{XM}, s{XM}, 0x80")
    a(f"s_mul_i32 s{XM}, s{XM}, 0x01010101")
    a(f"s_mov_b32 s{XM+1}, s{XM}")
    a(f"s_and_b32 s{t1}, s{sx}, 3")
    a(f"s_lshl_b32 s{t1}, s{t1}, 5")
    a(f"s_add_u32 s{t1}, s{t1}, 128")
    a(f"v_and_b32 v{NA}, 3, v0")
    a(f"v_lshlrev_b32 v{NA}, 3, v{NA}")
    a(f"v_add_u32 v{NA}, s{t1}, v{NA}")
    a("s_mov_b64 exec, 1")
    a(f"v_mov_b32 v{NA}, s{sDL}")
    a("s_mov_b64 exec, -1")
    a(f"s_cmp_lg_u32 s{sw}, 7")
    a("s_cbranch_scc1 L_noprop")
    a(f"v_mov_b32 v{NV}, s{XM}")
    a(f"s_add_u32 s{t2}, s{t1}, s{sidx}")
    a("s_mov_b64 exec, 1")
    a(f"buffer_store_byte v{NV}, off, {S4(rDBG)}, s{t2}")
    a("s_mov_b64 exec, -1")
    a(f"s_cmp_lg_u32 s{sidx}, 0")
    a("s_cbranch_scc1 L_noprop")
    a(f"s_or_b32 s{t0}, s{RT}, 1")
    a(f"s_or_b32 s{t2}, s{RT+1}, 1")
    a(f"v_mov_b32 v236, s{t0}")
    a(f"v_mov_b32 v237, s{t2}")
    a("v_mov_b32 v238, 0")
    a("v_mov_b32 v239, 0")
    a("s_mov_b64 exec, 1")
    a(f"buffer_atomic_cmpswap_x2 v[236:239], off, {S4(rDBG)}, s{sDL} sc1")
    a("s_mov_b64 exec, -1")
    a.lab("L_noprop")
    for ch in range(1, INIT): dma(ch)
    a(f"s_and_b32 s{stt}, s{sw}, 3")
    a(f"s_lshr_b32 s{scg}, s{sw}, 2")
    a(f"v_and_b32 v{u0}, 31, v0")
    a(f"s_lshl_b32 s{t0}, s{stt}, 5")
    a(f"v_add_u32 v{u0}, s{t0}, v{u0}")
    a(f"v_bfe_u32 v{u1}, v{u0}, 1, 3")
    a(f"v_lshrrev_b32 v{u2}, 5, v0")
    a(f"v_xor_b32 v{u1}, v{u1}, v{u2}")
    a(f"v_lshlrev_b32 v{u1}, 4, v{u1}")
    a(f"v_lshl_add_u32 v{u1}, v{u0}, 7, v{u1}")
    for ks in range(4):
        a(f"v_xor_b32 v{XA+ks}, {32*ks}, v{u1}")
        a(f"v_add_u32 v{XA+ks}, {XOFF}, v{XA+ks}")
        a(f"v_add_u32 v{XA+4+ks}, {2*STAGE}, v{XA+ks}")
    a(f"v_bfe_u32 v{u0}, v0, 2, 2")
    a(f"v_lshlrev_b32 v{u0}, 1, v{u0}")
    a(f"v_add_u32 v{u0}, v{u0}, v{u2}")
    a(f"v_mul_u32_u24 v{u0}, 672, v{u0}")
    a(f"v_bfe_u32 v{u1}, v0, 4, 1")
    a(f"v_lshl_add_u32 v{u0}, v{u1}, 5, v{u0}")
    a(f"v_and_b32 v{u1}, 3, v0")
    a(f"v_lshl_add_u32 v{u0}, v{u1}, 3, v{u0}")
    a(f"s_mul_i32 s{t0}, s{scg}, 168")
    a(f"v_add_u32 v{WA1}, s{t0}, v{u0}")
    a(f"v_add_u32 v{WA1+1}, {2*STAGE}, v{WA1}")
    a(f"v_and_b32 v{u0}, 0x33, v0")
    a(f"v_bfe_u32 v{u1}, v0, 2, 1")
    a(f"v_lshl_add_u32 v{u0}, v{u1}, 3, v{u0}")
    a(f"v_bfe_u32 v{u1}, v0, 3, 1")
    a(f"v_lshl_add_u32 v{u0}, v{u1}, 2, v{u0}")
    a(f"v_lshlrev_b32 v{TAU}, 4, v{u0}")
    a(f"v_lshlrev_b32 v{L16}, 4, v0")
    a(f"v_and_b32 v{u0}, 31, v0")
    a(f"v_mov_b32 v{u1}, 0x3f803f80")
    a(f"v_cmp_eq_u32 vcc, 28, v{u0}")
    a(f"s_lshl_b32 s{su}, s{shalf}, 1")
    a(f"s_add_u32 s{su}, s{su}, s{scg}")
    a(f"v_cndmask_b32 v{VPAD}, 0, v{u1}, vcc")
    a(f"v_mov_b32 v{IDX}, 0xdddddddd")
    a(f"s_lshr_b32 s{sqb}, s{sidx}, 2")
    a(f"s_and_b32 s{sg}, s{sw}, 1")
    a(f"s_lshr_b32 s{skq}, s{sw}, 1")
    a(f"s_lshl_b32 s{t3}, s{sg}, 2")
    a(f"s_add_u32 s{t0}, s{t3}, s{skq}")
    a(f"s_lshl_b32 s{sQT}, s{sqb}, 3")
    a(f"s_add_u32 s{sQT}, s{sQT}, s{t0}")
    a(f"s_lshl_b32 s{t1}, s{t0}, 11")
    a(f"s_add_u32 s{t1}, s{t1}, {QX}")
    a(f"v_add_u32 v{QW}, s{t1}, v{L16}")
    a(f"s_mul_i32 s{t1}, s{t0}, 12288")
    a(f"s_add_u32 s{t1}, s{t1}, {CB}")
    a(f"v_add_u32 v{PR}, s{t1}, v{L16}")
    for i in range(3):
        a(f"s_add_u32 s{t0}, s{skq}, {1+i}")
        a(f"s_and_b32 s{t0}, s{t0}, 3")
        a(f"s_add_u32 s{t0}, s{t0}, s{t3}")
        a(f"s_lshl_b32 s{t1}, s{t0}, 11")
        a(f"s_add_u32 s{t1}, s{t1}, {QX}")
        a(f"v_add_u32 v{QR+i}, s{t1}, v{L16}")
        a(f"s_mul_i32 s{t1}, s{t0}, 12288")
        a(f"s_add_u32 s{t1}, s{t1}, {CB + 4096*i}")
        a(f"v_add_u32 v{PW+i}, s{t1}, v{L16}")
    a(f"s_lshl_b32 s{sKVO}, s{skq}, 16")
    a(f"s_lshl_b32 s{sQO}, s{shl}, 6")
    a(f"s_add_u32 s{sQO}, s{sQO}, s{sQT}")
    a(f"s_lshl_b32 s{sQO}, s{sQO}, 11")
    a(f"s_add_u32 s{sQO}, s{sQO}, {X_QF}")
    a(f"s_lshl_b32 s{sF1O}, s{su}, 4")
    a(f"s_add_u32 s{sF1O}, s{sF1O}, s{srb}")
    a(f"s_lshl_b32 s{sF1O}, s{sF1O}, 7")
    a(f"s_lshl_b32 s{t0}, s{stt}, 3")
    a(f"s_add_u32 s{sF1O}, s{sF1O}, s{t0}")
    a(f"s_add_u32 s{sF1O}, s{sF1O}, {X_F1}")
    a(f"s_mul_i32 s{t2}, s{shl}, 43")
    a(f"s_lshr_b32 s{t0}, s{t2}, 7")
    a(f"s_add_u32 s{t2}, s{t2}, {4*43}")
    a(f"s_lshr_b32 s{t1}, s{t2}, 7")
    a(f"s_add_u32 s{t2}, s{t2}, {4*43}")
    a(f"s_lshr_b32 s{t3}, s{t2}, 7")
    a(f"v_and_b32 v{u0}, 15, v0")
    a(f"s_lshl_b32 s{t2}, s{skq}, 4")
    a(f"v_add_u32 v{u0}, s{t2}, v{u0}")
    a(f"v_mov_b32 v{u1}, s{t1}")
    a("s_mov_b32 exec_lo, 0xffff0000")
    a(f"v_mov_b32 v{u1}, s{t3}")
    a("s_mov_b32 exec_lo, 0")
    a(f"v_mov_b32 v{u1}, s{t0}")
    a(f"v_mov_b32 v{u0}, s{sQT}")
    a("s_mov_b32 exec_lo, -1")
    a(f"v_lshlrev_b32 v{u1}, 11, v{u1}")
    a(f"v_lshrrev_b32 v{u3}, 2, v{u0}")
    a(f"v_lshl_add_u32 v{u1}, v{u3}, 7, v{u1}")
    a(f"v_and_b32 v{u0}, 3, v{u0}")
    a(f"v_lshl_add_u32 v{u0}, v{u0}, 3, v{u1}")
    a(f"v_add_u32 v{F1A}, {X_F1}, v{u0}")
    a(f"s_lshl_b32 s{t0}, s{shl}, 18")
    a(f"s_add_u32 s{t0}, s{t0}, s{sKVO}")
    a(f"s_lshl_b32 s{t1}, s{sqb}, 1")
    a(f"s_add_u32 s{t1}, s{t1}, s{sg}")
    a(f"s_lshl_b32 s{t1}, s{t1}, 7")
    a(f"s_add_u32 s{t0}, s{t0}, s{t1}")
    a(f"v_subrev_u32 v{u0}, 16, v0")
    a(f"v_lshlrev_b32 v{u0}, 11, v{u0}")
    a(f"v_add_u32 v{PTA}, s{t0}, v{u0}")
    a("s_mov_b64 exec, 0xffff")
    a(f"v_lshlrev_b32 v{u0}, 7, v0")
    a(f"v_add_u32 v{PTA}, s{sQO}, v{u0}")
    a("s_mov_b64 exec, -1")
    a(f"s_lshl_b32 s{t0}, s{swp}, 6")
    a(f"v_add_u32 v{u0}, s{t0}, v0")
    a(f"v_mul_u32_u24 v{u1}, 4682, v{u0}")
    a(f"v_lshrrev_b32 v{u1}, 16, v{u1}")
    a(f"v_mul_u32_u24 v{u3}, 14, v{u1}")
    a(f"v_sub_u32 v{u0}, v{u0}, v{u3}")
    a(f"v_and_b32 v{u3}, 24, v{u1}")
    a(f"v_and_b32 v{u4}, 1, v{u1}")
    a(f"v_lshl_add_u32 v{u3}, v{u4}, 2, v{u3}")
    a(f"v_bfe_u32 v{u4}, v{u1}, 1, 2")
    a(f"v_add_u32 v{u3}, v{u3}, v{u4}")
    a(f"v_mul_u32_u24 v{u3}, 896, v{u3}")
    a(f"v_lshl_add_u32 v{u3}, v{u0}, 4, v{u3}")
    a(f"s_mul_i32 s{t0}, s{shl}, 224")
    a(f"v_add_u32 v{WOA}, s{t0}, v{u3}")
    a(f"s_lshl_b32 s{swp}, s{swp}, 10")
    a(f"s_mov_b32 s{sWOS}, 0")
    a(f"s_mov_b32 s{sWOL}, s{swp}")
    a(f"s_mul_i32 s{sOUTO}, s{sb}, 896")
    a(f"s_add_u32 s{sOUTO}, s{sOUTO}, s{t0}")
    a(f"s_lshl_b32 s{t1}, s{skq}, 6")
    a(f"s_add_u32 s{sOUTO}, s{sOUTO}, s{t1}")
    a(f"s_and_b32 s{t0}, s{sx}, 3")
    a(f"s_lshl_b32 s{t1}, s{t0}, 3")
    a(f"s_add_u32 s{t1}, s{t1}, s{sqb}")
    a(f"s_lshl_b32 s{t1}, s{t1}, 1")
    a(f"s_add_u32 s{sRT}, s{t1}, s{sg}")
    a(f"s_lshl_b32 s{t0}, s{t0}, 2")
    a(f"s_add_u32 s{t0}, s{t0}, s{shl}")
    a(f"s_lshl_b32 s{t1}, s{sQT}, 4")
    a(f"s_add_u32 s{t1}, s{t1}, s{t0}")
    a(f"s_mul_i32 s{sOO}, s{t1}, 1792")
    a(f"s_mul_i32 s{sF2O}, s{t1}, {F2SP}")
    a(f"s_add_u32 s{sF2O}, s{sF2O}, {B_F2}")
    a(f"s_lshl_b32 s{t0}, s{sRT}, 4")
    a(f"s_lshl_b32 s{t1}, s{skq}, 2")
    a(f"s_add_u32 s{t0}, s{t0}, s{t1}")
    a(f"v_and_b32 v{u0}, 3, v0")
    a(f"v_add_u32 v{u0}, s{t0}, v{u0}")
    a(f"v_mul_u32_u24 v{u0}, {F2SP}, v{u0}")
    a(f"v_add_u32 v{F2A}, {B_F2}, v{u0}")
    a(f"v_and_b32 v{u0}, 31, v0")
    a(f"s_lshl_b32 s{t0}, s{sRT}, 5")
    a(f"v_add_u32 v{u0}, s{t0}, v{u0}")
    a(f"v_mul_u32_u24 v{u0}, 1792, v{u0}")
    a(f"v_lshl_add_u32 v{OUTA}, v{u2}, 5, v{u0}")
    stamp(a, "setup")
    a(f"s_cmp_lt_u32 s{su}, 2")
    a("s_cbranch_scc1 P1_v0")
    a(f"s_cmp_eq_u32 s{su}, 2")
    a("s_cbranch_scc1 P1_v1")
    a("s_branch P1_v2")
    def reads(ch):
        st = ch % 4
        xa = XA if st < 2 else XA + 4
        wa = WA1 if st < 2 else WA1 + 1
        so = (st % 2) * STAGE
        fr = FR[ch % 2]
        out = []
        for ks in range(4):
            b = fr + 16 * ks
            out.append(f"ds_read_b128 {vr(b,4)}, v{xa+ks} offset:{so}")
            for c in range(3):
                for h in range(2):
                    out.append(f"ds_read_b64_tr_b16 {vr(b+4+4*c+2*h,2)}, v{wa} offset:{so + (16*ks+h)*336 + 56*c}")
        return out
    def mfmas(ch, ori):
        fr = FR[ch % 2]
        out = []
        order = [(ks, c) for ks in range(4) for c in range(3)] if ch < 6 else [(ks, c) for c in range(3) for ks in range(4)]
        for ks, c in order:
            b = fr + 16 * ks
            x = vr(b, 4); w = vr(b + 4 + 4 * c, 4)
            p, q = (w, x) if ori[c] == 'n' else (x, w)
            cc = "0" if (ch == 0 and ks == 0) else vr(ACC[c], 16)
            out.append(f"v_mfma_f32_32x32x16_bf16 {vr(ACC[c],16)}, {p}, {q}, {cc}")
        return out
    vm0, done0 = list(a.vm), a.done
    for v, ori in enumerate(["nnn", "nnv", "vvv"]):
        a.vm, a.done = list(vm0), done0
        a.lab(f"P1_v{v}")
        issued = INIT
        for ch in range(7):
            a.vwait(("c", ch), "lgkmcnt(0)")
            a("s_barrier")
            stamp(a, f"c{ch}")
            parts = []
            while issued <= min(6, ch + DIST):
                assert issued - 4 < ch
                parts += dma_parts(issued); issued += 1
            if ch == 5:
                assert not parts
                a.vmem(f"buffer_load_dwordx2 {vr(NV,2)}, v{NA}, {S4(rDBG)}, 0 offen sc1", "nonce")
                a.vmem(f"buffer_load_dword v{T+9}, v{F1A}, {S4(rWS)}, 0 offen sc1", "warm")
                if PRET:
                    a(f"s_mov_b64 exec, {(1 << (16 + 2*PRET)) - 1:#x}")
                    a.vmem(f"buffer_load_dword v{T+8}, v{PTA}, {S4(rWS)}, 0 offen sc1", "warm")
                    a("s_mov_b64 exec, -1")
            rd = reads(ch)
            mf = mfmas(ch - 1, ori) if ch >= 1 else []
            if DPOS == "begin" or (ch == 0 and INIT == 1):
                k = len(parts) if DPOS == "begin" else 5
                for f in parts[:k]: f()
                parts = parts[k:]
            i = 0
            for mi, m in enumerate(mf):
                a(m)
                for _ in range(3):
                    if i < len(rd): a(rd[i]); i += 1
                if DPOS == "mid" and parts and mi % 2 == 1:
                    parts.pop(0)()
            while i < len(rd): a(rd[i]); i += 1
            for f in parts: f()
        a.vwait("nonce", "lgkmcnt(0)")
        mf = mfmas(6, ori)
        for m in mf[0:4]: a(m)
        a(f"v_cmp_eq_u64 vcc, {S2(XM)}, {vr(NV,2)}")
        a(f"s_and_b32 s{t0}, vcc_lo, 0xf0")
        a(f"s_cmp_eq_u32 s{t0}, 0xf0")
        a(f"s_cselect_b32 s{sLOC}, {1 if LOCAL else 0}, 0")
        def st2(P, va, off, tag):
            a(f"s_cmp_eq_u32 s{sLOC}, 0")
            a(f"s_cbranch_scc1 L_wt{tag}")
            a(f"buffer_store_dwordx4 {vr(P,4)}, v{va}, {S4(rWS)}, s{t1} offen offset:{off}")
            a(f"buffer_store_dwordx4 {vr(P+4,4)}, v{va}, {S4(rWS)}, s{t1} offen offset:{off+1024}")
            a.lab(f"L_st{tag}")
            tails.append((tag, P, va, off))
        def epi(c):
            P = P1 + 8 * c
            a(f"s_mul_i32 s{t0}, s{su}, 3")
            a(f"s_add_u32 s{t0}, s{t0}, {c}")
            a(f"s_and_b32 s{t1}, s{t0}, 3")
            a(f"s_lshl_b32 s{t2}, s{srb}, 2")
            a(f"s_add_u32 s{t2}, s{t2}, s{stt}")
            a(f"s_lshl_b32 s{t1}, s{t1}, 6")
            a(f"s_add_u32 s{t1}, s{t1}, s{t2}")
            if ori[c] == 'n':
                a(f"s_cmp_lt_u32 s{t0}, 4")
                a(f"s_cselect_b32 s{t2}, {CSCALE:#x}, 1.0")
                a(f"s_cselect_b32 s{sROT}, 0, 0x3f80")
                a(f"s_cselect_b32 s{t3}, 11, 12")
                a(f"s_cselect_b32 s{t0}, {X_QF}, {X_KV}")
                a(f"s_lshl_b32 s{t1}, s{t1}, s{t3}")
                a(f"s_add_u32 s{t1}, s{t1}, s{t0}")
                if v == 0:
                    for r in range(16): a(f"v_mul_f32 v{ACC[c]+r}, s{t2}, v{ACC[c]+r}")
                for i in range(8): a(f"v_cvt_pk_bf16_f32 v{P+i}, v{ACC[c]+2*i}, v{ACC[c]+2*i+1}")
                a("s_mov_b32 exec_lo, 0")
                a(f"v_mov_b32 v{P+6}, s{sROT}")
                a(f"v_mov_b32 v{P+7}, 0")
                a("s_mov_b32 exec_lo, -1")
                st2(P, TAU, 0, f"{v}_{c}")
            else:
                a(f"s_lshl_b32 s{t1}, s{t1}, 12")
                a("s_nop 4")
                for i in range(8): a(f"v_cvt_pk_bf16_f32 v{P+i}, v{ACC[c]+2*i}, v{ACC[c]+2*i+1}")
                a("s_mov_b32 exec_lo, 0xf0000000")
                a("s_mov_b32 exec_hi, 0xf0000000")
                for i in range(8): a(f"v_mov_b32 v{P+i}, v{VPAD}")
                a("s_mov_b64 exec, -1")
                st2(P, L16, 2048, f"{v}_{c}")
        for m in mf[4:8]: a(m)
        epi(0)
        for m in mf[8:12]: a(m)
        epi(1)
        stamp(a, "p1end")
        epi(2)
        if v < 2: a("s_branch P1_done")
    a.lab("P1_done")
    a.vreset()
    for i in range(4):
        for r in range(16): a(f"v_mov_b32 v{O[i]+r}, 0")
    a(f"s_mov_b32 s{t3}, {SPIN}")
    a.lab("L_nonce")
    a(f"v_readfirstlane_b32 s{NONCE}, v{NV}")
    a(f"v_readfirstlane_b32 s{NONCE+1}, v{NV+1}")
    a(f"s_cmp_lg_u32 s{NONCE}, 0")
    a(f"s_cselect_b32 s{t2}, s{NONCE+1}, 0")
    a(f"s_cmp_lg_u32 s{t2}, 0")
    a("s_cbranch_scc0 L_nonce_retry")
    a("s_mov_b64 exec, 1")
    a(f"s_cmp_eq_u32 s{sLOC}, 0")
    a("s_waitcnt vmcnt(0)")
    a("s_cbranch_scc1 L_f1wt")
    a(f"buffer_store_dwordx2 {vr(NV,2)}, off, {S4(rWS)}, s{sF1O}")
    a.lab("L_f1st")
    a("s_mov_b64 exec, -1")
    stamp(a, "ack1")
    poll(a, "L_f1", F1A, rWS)
    stamp(a, "poll1")
    def ldK(kt, f): a.vmem(f"buffer_load_dwordx4 {vr(KB[kt%4]+4*f,4)}, v{L16}, {S4(rKV)}, s{sKVO} offen offset:{1024*f} sc1", ("K", kt))
    def ldV(kt, f): a.vmem(f"buffer_load_dwordx4 {vr(VB[kt%4]+4*f,4)}, v{L16}, {S4(rKV)}, s{sKVO} offen offset:{2048+1024*f} sc1", ("V", kt))
    def adv(): a(f"s_add_u32 s{sKVO}, s{sKVO}, 4096")
    def qk(p):
        kt, i = divmod(p, 4)
        s = SB[p % 4]; k = KB[kt % 4]
        return [f"v_mfma_f32_32x32x16_bf16 {vr(s,16)}, {vr(k,4)}, {vr(Q[i],4)}, 0",
                f"v_mfma_f32_32x32x16_bf16 {vr(s,16)}, {vr(k+4,4)}, {vr(Q[i]+4,4)}, {vr(s,16)}"]
    def pv(p):
        kt, i = divmod(p, 4)
        s = SB[p % 4]; v = VB[kt % 4]
        return [f"v_smfmac_f32_32x32x32_bf16 {vr(O[i],16)}, {vr(v,4)}, {vr(s,8)}, v{IDX}",
                f"v_smfmac_f32_32x32x32_bf16 {vr(O[i],16)}, {vr(v+4,4)}, {vr(s+8,8)}, v{IDX}"]
    a.vmem(f"buffer_load_dwordx4 {vr(Q[3],4)}, v{L16}, {S4(rWS)}, s{sQO} offen sc1", "Q")
    ldK(0, 0)
    a.vmem(f"buffer_load_dwordx4 {vr(Q[3]+4,4)}, v{L16}, {S4(rWS)}, s{sQO} offen offset:1024 sc1", "Q")
    ldK(0, 1)
    a.vwait(("K", 0))
    stamp(a, "k0")
    for x in qk(3): a(x)
    a(f"ds_write_b128 v{QW}, {vr(Q[3],4)}")
    ldV(0, 0); ldV(0, 1); adv(); ldK(1, 0); ldK(1, 1)
    a("s_nop 5")
    s = SB[3]
    a(f"v_max3_f32 v{T}, v{s}, v{s+1}, v{s+2}")
    a(f"v_max3_f32 v{T+1}, v{s+3}, v{s+4}, v{s+5}")
    for i in range(6, 14, 4):
        a(f"v_max3_f32 v{T}, v{T}, v{s+i}, v{s+i+1}")
        a(f"v_max3_f32 v{T+1}, v{T+1}, v{s+i+2}, v{s+i+3}")
    a(f"v_max3_f32 v{T}, v{T}, v{s+14}, v{s+15}")
    a(f"v_max_f32 v{T}, v{T}, v{T+1}")
    a(f"v_mov_b32 v{T+1}, v{T}")
    a("s_nop 1")
    a(f"v_permlane32_swap_b32 v{T}, v{T+1}")
    a(f"v_max_f32 v{T}, v{T}, v{T+1}")
    if FORCEFB: a(f"v_add_f32 v{T}, 0x43480000, v{T}")
    a(f"v_xor_b32 v{T}, 0x80000000, v{T}")
    a("s_mov_b32 exec_lo, 0")
    a(f"v_lshrrev_b32 v{Q[3]+6}, 16, v{T}")
    a("s_mov_b32 exec_lo, -1")
    a(f"ds_write_b128 v{QW}, {vr(Q[3]+4,4)} offset:1024")
    stamp(a, "max")
    a("s_waitcnt lgkmcnt(0)")
    a("s_barrier")
    stamp(a, "bq1")
    for i in range(3):
        a(f"ds_read_b128 {vr(Q[i],4)}, v{QR+i}")
        a(f"ds_read_b128 {vr(Q[i]+4,4)}, v{QR+i} offset:1024")
    a("s_waitcnt lgkmcnt(4)")
    for x in qk(0): a(x)
    a(f"s_mul_i32 s{t0}, s{sRT}, 57344")
    a("s_waitcnt lgkmcnt(0)")
    a("s_barrier")
    a("s_nop 7")
    lq = [(lambda: ldV(1, 0), 0), (lambda: (ldV(1, 1), adv()), 0)]
    for k in range(2, 16):
        lq += [(lambda k=k: ldK(k, 0), 4 * (k - 4) + 3), (lambda k=k: ldK(k, 1), 4 * (k - 4) + 3),
               (lambda k=k: ldV(k, 0), 4 * (k - 4) + 5), (lambda k=k: (ldV(k, 1), adv()), 4 * (k - 4) + 5)]
    stamp(a, "loop0")
    NP = 64
    for p in range(NP):
        kt, i = divmod(p, 4)
        s = SB[p % 4]
        stamp(a, f"ph{p}")
        ms = (qk(p + 1) if p + 1 < NP else [None, None]) + (pv(p - 1) if p >= 1 else [None, None])
        extra = [[], [], [], []]
        for g in ((0, 1) if p < 6 else (0,)):
            if lq and lq[0][1] <= p: extra[g].append(lq.pop(0)[0])
        if i == 1 and kt < 14:
            if kt < 9:
                extra[1].append(lambda: a(f"s_mov_b32 m0, s{sWOL}"))
                extra[2].append(lambda: a.vmem(f"buffer_load_dwordx4 v{WOA}, {S4(rWO)}, s{sWOS} offen lds", "wo"))
                extra[3].append(lambda: (a(f"s_add_u32 s{sWOS}, s{sWOS}, 28672"), a(f"s_add_u32 s{sWOL}, s{sWOL}, 7168")))
            else:
                extra[2].append(lambda: a.vmem(f"buffer_load_dword v{T+8}, v{WOA}, {S4(rWO)}, s{sWOS} offen", "wo"))
                extra[3].append(lambda: a(f"s_add_u32 s{sWOS}, s{sWOS}, 28672"))
        if i == 2 and kt == 13:
            extra[1].append(lambda: a.vmem(f"buffer_load_dword v{T+9}, v{F2A}, {S4(rBR)}, 0 offen sc1", "warm"))
            extra[2].append(lambda: a.vmem(f"buffer_load_dword v{T+10}, off, {S4(rOUT)}, s{t0}", "warm"))
        if p >= 62:
            sl = p - 62
            for g in range(4):
                extra[3].append(lambda g=g, sl=sl: a(f"ds_write_b128 v{PW+sl}, {vr(O[sl]+4*g,4)} offset:{1024*g}"))
        for g in range(4):
            if ms[g]:
                if g == 0 and (p + 1) % 4 == 0: a.vwait(("K", (p + 1) // 4))
                if g == 2 and (p - 1) % 4 == 0: a.vwait(("V", (p - 1) // 4))
                a(ms[g])
            for f in extra[g]: f()
            for jj in range(4): a(f"v_exp_f32 v{s+4*g+jj}, v{s+4*g+jj}")
    a("s_nop 1")
    for x in pv(63): a(x)
    a("s_nop 0")
    for g in range(4): a(f"ds_write_b128 v{PW+2}, {vr(O[2]+4*g,4)} offset:{1024*g}")
    stamp(a, "loop1")
    if WBL2 != "0":
        a(f"s_cmp_lg_u32 s{sw}, 0")
        a("s_cbranch_scc1 L_nowb")
        if WBL2 == "1":
            a(f"s_cmp_lg_u32 s{sidx}, 0")
            a("s_cbranch_scc1 L_nowb")
        a("buffer_wbl2 sc1")
        a.lab("L_nowb")
    a.vall("lgkmcnt(0)")
    a("s_barrier")
    stamp(a, "b1")
    R = 112
    OO = O[3]
    for i in range(12): a(f"ds_read_b128 {vr(R+4*i,4)}, v{PR} offset:{1024*i}")
    a(f"v_lshrrev_b32 v{T+3}, 1, v{TAU}")
    for i in range(3):
        a(f"s_waitcnt lgkmcnt({8-4*i})")
        for r in range(0, 16, 2): a(f"v_pk_add_f32 {vr(OO+r,2)}, {vr(OO+r,2)}, {vr(R+16*i+r,2)}")
    a(f"v_mov_b32 v{T}, v{OO+12}")
    a(f"v_mov_b32 v{T+1}, v{OO+12}")
    a(f"v_pk_mul_f32 {vr(T+4,2)}, {vr(OO,2)}, 0")
    for r in range(2, 16, 2): a(f"v_pk_fma_f32 {vr(T+4,2)}, {vr(OO+r,2)}, 0, {vr(T+4,2)}")
    a(f"v_permlane32_swap_b32 v{T}, v{T+1}")
    a(f"v_add3_u32 v{T+2}, 0, 0, 0") if False else None
    a(f"v_add_f32 v{T+4}, v{T+4}, v{T+5}")
    a(f"v_add_f32 v{T+4}, v{T+4}, v{T+1}")
    a(f"v_cmp_nlt_f32 vcc, 0x35800000, v{T+4}")
    a(f"s_mov_b64 {S2(sROT)}, vcc")
    a(f"v_cmp_ngt_f32 vcc, 0x71800000, v{T+4}")
    a(f"s_or_b64 vcc, vcc, {S2(sROT)}")
    a("s_cbranch_vccnz L_fallback")
    a.lab("L_norm")
    a(f"v_rcp_f32 v{T}, v{T+1}")
    a("s_nop 0")
    P = T + 4
    for i in range(8):
        a(f"v_pk_mul_f32 {vr(OO+2*i,2)}, {vr(OO+2*i,2)}, {vr(T,2)} op_sel_hi:[1,0]")
    for i in range(4): a(f"v_cvt_pk_bf16_f32 v{P+i}, v{OO+2*i}, v{OO+2*i+1}")
    a(f"buffer_store_dwordx4 {vr(P,4)}, v{TAU}, {S4(rBR)}, s{sOO} offen sc1")
    for i in range(4, 8): a(f"v_cvt_pk_bf16_f32 v{P+i}, v{OO+2*i}, v{OO+2*i+1}")
    a("s_mov_b32 exec_hi, 0")
    a(f"buffer_store_dwordx4 {vr(P+4,4)}, v{TAU}, {S4(rBR)}, s{sOO} offen offset:1024 sc1")
    a("s_not_b64 exec, exec")
    a(f"buffer_store_dwordx2 {vr(P+4,2)}, v{T+3}, {S4(rBR)}, s{sOO} offen offset:1280 sc1")
    a("s_mov_b64 exec, -1")
    stamp(a, "ost")
    WA = 16; OA = 24; NF = 28
    a(f"v_mov_b32 v{NF}, s{NONCE}")
    a(f"v_mov_b32 v{NF+1}, s{NONCE+1}")
    a(f"v_bfe_u32 v{u0}, v0, 2, 2")
    a(f"v_mul_u32_u24 v{u1}, 448, v{u0}")
    a(f"s_lshl_b32 s{t0}, s{skq}, 6")
    a(f"v_add_u32 v{u1}, s{t0}, v{u1}")
    a(f"v_and_b32 v{u0}, 1, v0")
    a(f"v_lshl_add_u32 v{u1}, v{u0}, 5, v{u1}")
    a(f"v_bfe_u32 v{u0}, v0, 4, 1")
    a(f"v_lshl_add_u32 v{u1}, v{u0}, 4, v{u1}")
    a(f"v_bfe_u32 v{u0}, v0, 1, 1")
    a(f"v_lshl_add_u32 v{u1}, v{u0}, 3, v{u1}")
    a(f"v_lshrrev_b32 v{u2}, 5, v0")
    HSTEP = [1, 7, 25, 56]
    for t in range(4):
        a(f"v_mul_u32_u24 v{u0}, {HSTEP[t]*224}, v{u2}")
        a(f"v_add_u32 v{WA+t}, v{u1}, v{u0}")
        a(f"v_add_u32 v{WA+4+t}, 50176, v{WA+t}")
    WB = 128
    def pos(G): return 8 * (G >> 1) + (G & 1)
    steps = []
    for q in range(4):
        for hd in range(4 * q, 4 * q + 4):
            steps.append((hd & 1, lambda h, aa, hd=hd: 7 * hd + 2 * aa + h, ("A", hd)))
        for i in range(2 * q, 2 * q + 2):
            steps.append((2, lambda h, aa, i=i: 7 * (2 * i + h) + 4 + 2 * aa, ("B", 2 * i)))
        steps.append((3, lambda h, aa, q=q: 7 * (4 * q + 2 * h + aa) + 5, ("C", 4 * q)))
    def wread(ks):
        t, G, _ = steps[ks]
        for aa in range(2):
            assert pos(G(1, aa)) - pos(G(0, aa)) == HSTEP[t]
            off = pos(G(0, aa)) * 224
            ad = WA + t
            if off >= 50176: off -= 50176; ad += 4
            a(f"ds_read_b64_tr_b16 {vr(WB+4*ks+2*aa,2)}, v{ad} offset:{off}")
    early = [ks for ks in range(28) if max(steps[ks][1](h, aa) for h in (0, 1) for aa in (0, 1)) * 4 + 3 < 287]
    late = [ks for ks in range(28) if ks not in early]
    sOS, sOL = t0, t1
    a(f"s_mul_i32 s{sOS}, s{sRT}, 28672")
    a(f"s_mul_i32 s{t2}, s{skq}, 7168")
    a(f"s_add_u32 s{sOS}, s{sOS}, s{t2}")
    a(f"s_mul_i32 s{sOL}, s{sg}, 28672")
    a(f"s_add_u32 s{sOL}, s{sOL}, {OS}")
    a(f"v_add_u32 v{OA}, s{sOL}, v{L16}")
    a(f"v_and_b32 v{u0}, 31, v0")
    a(f"v_mul_u32_u24 v{u1}, 1792, v{u2}")
    a(f"v_lshl_add_u32 v{u1}, v{u0}, 4, v{u1}")
    a(f"v_add_u32 v{OA+1}, s{sOL}, v{u1}")
    a(f"v_mul_u32_u24 v{u1}, 3584, v{u2}")
    a(f"v_lshl_add_u32 v{u1}, v{u0}, 3, v{u1}")
    a(f"v_add_u32 v{OA+2}, s{sOL}, v{u1}")
    a(f"s_add_u32 s{sOL}, s{sOL}, s{t2}")
    a("s_mov_b64 exec, 1")
    a("s_waitcnt vmcnt(0)")
    a(f"buffer_store_dwordx2 {vr(NF,2)}, off, {S4(rBR)}, s{sF2O} sc1")
    a("s_mov_b64 exec, -1")
    stamp(a, "flag2")
    a("s_barrier")
    a(f"s_mov_b32 s{sWOS}, {9*28672}")
    for g in range(9, 14):
        a(f"s_add_u32 m0, s{swp}, {g*7168}")
        if g > 9: a(f"s_add_u32 s{sWOS}, s{sWOS}, 28672")
        else: a("s_nop 0")
        a(f"buffer_load_dwordx4 v{WOA}, {S4(rWO)}, s{sWOS} offen lds")
    for ks in early: wread(ks)
    a("s_waitcnt vmcnt(0)")
    a("s_barrier")
    stamp(a, "b3")
    for ks in late: wread(ks)
    poll(a, "L_f2", F2A, rBR)
    stamp(a, "poll2")
    a(f"s_mov_b32 m0, s{sOL}")
    a("s_nop 0")
    for i in range(4): a(f"buffer_load_dwordx4 v{L16}, {S4(rBR)}, s{sOS} offen offset:{1024*i} sc1 lds")
    a(f"s_add_u32 m0, s{sOL}, 4096")
    a(f"s_add_u32 s{sOS}, s{sOS}, 4096")
    for i in range(3): a(f"buffer_load_dwordx4 v{L16}, {S4(rBR)}, s{sOS} offen offset:{1024*i} sc1 lds")
    a("s_waitcnt vmcnt(0) lgkmcnt(0)")
    stamp(a, "oown")
    a("s_barrier")
    stamp(a, "oland")
    ACC3 = 96; OB = 32; NB = 10
    lg = []
    def oread(ks):
        kind, hd = steps[ks][2]
        d = OB + 4 * (ks % NB)
        if kind == "A": a(f"ds_read_b128 {vr(d,4)}, v{OA} offset:{hd*1792}"); lg.append(ks)
        elif kind == "B": a(f"ds_read_b128 {vr(d,4)}, v{OA+1} offset:{hd*1792+1024}"); lg.append(ks)
        else:
            for aa in range(2):
                a(f"ds_read_b64 {vr(d+2*aa,2)}, v{OA+2} offset:{(hd+aa)*1792+1536}"); lg.append(ks)
    for ks in range(NB): oread(ks)
    for ks in range(28):
        out = sum(1 for k in lg if k > ks)
        assert out < 16
        a(f"s_waitcnt lgkmcnt({out})")
        c = "0" if ks == 0 else vr(ACC3, 16)
        a(f"v_mfma_f32_32x32x16_bf16 {vr(ACC3,16)}, {vr(WB+4*ks,4)}, {vr(OB+4*(ks%NB),4)}, {c}")
        if ks + NB < 28: oread(ks + NB)
    stamp(a, "mf3")
    a(f"s_cmp_eq_u32 s{skq}, 3")
    a(f"s_cselect_b32 s{t1}, 0, -1")
    a("s_nop 10")
    for i in range(8): a(f"v_cvt_pk_bf16_f32 v{80+i}, v{ACC3+2*i}, v{ACC3+2*i+1}")
    a(f"s_mov_b32 exec_hi, s{t1}")
    a(f"buffer_store_dwordx4 v[80:83], v{OUTA}, {S4(rOUT)}, s{sOUTO} offen {OUTF}")
    a(f"buffer_store_dwordx4 v[84:87], v{OUTA}, {S4(rOUT)}, s{sOUTO} offen offset:16 {OUTF}")
    if STAMP:
        a("s_waitcnt vmcnt(0)")
        a("s_memrealtime s[22:23]")
        a("s_memtime s[98:99]")
        a("s_waitcnt lgkmcnt(0)")
        a("s_mov_b64 exec, 1")
        a(f"s_mov_b32 s{rWS}, s20"); a(f"s_mov_b32 s{rWS+1}, s21"); a(f"s_mov_b32 s{rWS+2}, 0x10000000")
        a(f"s_lshl_b32 s{t1}, s2, 9")
        a(f"s_add_u32 s{t1}, s{t1}, {64<<20}")
        a(f"s_lshl_b32 s{t0}, s{sw}, 6")
        a(f"s_add_u32 s{t1}, s{t1}, s{t0}")
        for i, r in enumerate([RT, 22, 100, 98] + [80 + 2 * k for k in range(9)] + [sLOC]):
            a(f"v_mov_b32 v1, s{r}")
            a(f"buffer_store_dword v1, off, {S4(rWS)}, s{t1} offset:{4*i}")
    if DIAG:
        a("s_waitcnt vmcnt(0)")
        if DIAG == "end": a("s_memrealtime s[80:81]")
        if DIAG == "none": a(f"s_mov_b32 s80, s{NONCE}")
        if DIAG == "start": a(f"s_mov_b32 s80, s{RT}")
        a("s_waitcnt lgkmcnt(0)")
        a("s_add_u32 s80, s80, 6000")
        a.lab("L_diag")
        a("s_sleep 2")
        a("s_memrealtime s[82:83]")
        a("s_waitcnt lgkmcnt(0)")
        a("s_sub_u32 s82, s82, s80")
        a("s_cmp_lt_i32 s82, 0")
        a("s_cbranch_scc1 L_diag")
    if DBGST:
        a("s_waitcnt vmcnt(0)")
        a("s_memrealtime s[98:99]")
        a("s_waitcnt lgkmcnt(0)")
        a(f"s_cmp_lg_u32 s{sw}, 7")
        a("s_cbranch_scc1 L_end")
        a(f"s_not_b32 s{t0}, s{RT}")
        a(f"v_mov_b32 v1, s{t0}")
        for i, r in enumerate([RT] + [80 + 2 * k for k in range(9)] + [98]):
            a(f"v_writelane_b32 v1, s{r}, {i+1}")
        a("v_lshlrev_b32 v2, 2, v0")
        a("s_mov_b64 exec, 0xfff")
        a(f"buffer_atomic_umax v1, v2, {S4(rDBG)}, 0 offen offset:16 sc1")
    a.lab("L_end")
    a("s_endpgm")
    for tag, P_, va, off in tails:
        a.lab(f"L_wt{tag}")
        a(f"buffer_store_dwordx4 {vr(P_,4)}, v{va}, {S4(rWS)}, s{t1} offen offset:{off} sc1")
        a(f"buffer_store_dwordx4 {vr(P_+4,4)}, v{va}, {S4(rWS)}, s{t1} offen offset:{off+1024} sc1")
        a(f"s_branch L_st{tag}")
    a.lab("L_f1wt")
    a(f"buffer_store_dwordx2 {vr(NV,2)}, off, {S4(rWS)}, s{sF1O} sc1")
    a("s_branch L_f1st")
    a.lab("L_nonce_retry")
    a(f"buffer_load_dwordx2 {vr(NV,2)}, off, {S4(rDBG)}, s{sDL} sc1")
    a(f"s_sub_u32 s{t3}, s{t3}, 1")
    a("s_cbranch_scc1 L_end")
    a("s_waitcnt vmcnt(0)")
    a("s_branch L_nonce")
    a.lab("L_fallback")
    QO = Q[3]; S0 = SB[0]; K0 = KB[0]; V0 = VB[0]; M = T + 4
    a("s_mov_b32 exec_lo, 0")
    a(f"v_mov_b32 v{QO+6}, 0")
    a("s_mov_b32 exec_lo, -1")
    for r in range(16): a(f"v_mov_b32 v{OO+r}, 0")
    a(f"v_mov_b32 v{M}, 0xff7fffff")
    a(f"s_mov_b32 s{sKVO}, 0")
    a.lab("L_fb_loop")
    a(f"buffer_load_dwordx4 {vr(K0,4)}, v{L16}, {S4(rKV)}, s{sKVO} offen sc1")
    a(f"buffer_load_dwordx4 {vr(K0+4,4)}, v{L16}, {S4(rKV)}, s{sKVO} offen offset:1024 sc1")
    a(f"buffer_load_dwordx4 {vr(V0,4)}, v{L16}, {S4(rKV)}, s{sKVO} offen offset:2048 sc1")
    a(f"buffer_load_dwordx4 {vr(V0+4,4)}, v{L16}, {S4(rKV)}, s{sKVO} offen offset:3072 sc1")
    a("s_waitcnt vmcnt(0)")
    a(f"v_mfma_f32_32x32x16_bf16 {vr(S0,16)}, {vr(K0,4)}, {vr(QO,4)}, 0")
    a(f"v_mfma_f32_32x32x16_bf16 {vr(S0,16)}, {vr(K0+4,4)}, {vr(QO+4,4)}, {vr(S0,16)}")
    a("s_nop 15")
    a(f"v_max3_f32 v{T}, v{M}, v{S0}, v{S0+1}")
    for i in range(2, 16, 2): a(f"v_max3_f32 v{T}, v{T}, v{S0+i}, v{S0+i+1}")
    a(f"v_mov_b32 v{T+1}, v{T}")
    a("s_nop 1")
    a(f"v_permlane32_swap_b32 v{T}, v{T+1}")
    a(f"v_max_f32 v{T}, v{T}, v{T+1}")
    a(f"v_sub_f32 v{T+1}, v{M}, v{T}")
    a(f"v_exp_f32 v{T+1}, v{T+1}")
    a(f"v_mov_b32 v{M}, v{T}")
    for r in range(16): a(f"v_sub_f32 v{S0+r}, v{S0+r}, v{T}")
    for r in range(16): a(f"v_exp_f32 v{S0+r}, v{S0+r}")
    for r in range(16): a(f"v_mul_f32 v{OO+r}, v{OO+r}, v{T+1}")
    a("s_nop 1")
    a(f"v_smfmac_f32_32x32x32_bf16 {vr(OO,16)}, {vr(V0,4)}, {vr(S0,8)}, v{IDX}")
    a(f"v_smfmac_f32_32x32x32_bf16 {vr(OO,16)}, {vr(V0+4,4)}, {vr(S0+8,8)}, v{IDX}")
    a(f"s_add_u32 s{sKVO}, s{sKVO}, 4096")
    a(f"s_cmp_lt_u32 s{sKVO}, 262144")
    a("s_nop 15")
    a("s_cbranch_scc1 L_fb_loop")
    a(f"v_mov_b32 v{T}, v{OO+12}")
    a(f"v_mov_b32 v{T+1}, v{OO+12}")
    a("s_nop 1")
    a(f"v_permlane32_swap_b32 v{T}, v{T+1}")
    a("s_branch L_norm")
    kd = f""".section .rodata,"a"
.p2align 6
.amdhsa_kernel {n}
  .amdhsa_next_free_vgpr 256
  .amdhsa_next_free_sgpr 102
  .amdhsa_accum_offset 256
  .amdhsa_group_segment_fixed_size 0
  .amdhsa_kernarg_size 72
  .amdhsa_user_sgpr_count 2
  .amdhsa_user_sgpr_kernarg_segment_ptr 1
  .amdhsa_system_sgpr_workgroup_id_x 1
.end_amdhsa_kernel
"""
    return a.text() + kd

tails = []
hdr = f"""; @launch grid=(256,1,1) block=(512,1,1) lds={LDS}
.amdgcn_target "amdgcn-amd-amdhsa--gfx950"
.text
"""
open(sys.argv[1] if len(sys.argv) > 1 else "v4.s", "w").write(hdr + gen())
```

```python
import sys, os, struct, math
NAME = "concat_heads__softmax_full_mha__softmax_full_mha__prompt"
def f2u(x): return struct.unpack("<I", struct.pack("<f", x))[0]
CSCALE = f2u(28 ** -0.5 * math.log2(math.e))
E = os.environ.get
STAMP = E("STAMP", "0") in ("1", "3")
RTS = E("STAMP", "0") == "3"
DBGST = E("STAMP", "0") == "2"
DIAG = E("DIAG", "")
STL = E("STL", "c0,p1end,ack1,poll1,loop0,loop1,flag2,poll2,oland").split(",")
INIT = int(E("INIT", "2"))
DIST = int(E("DIST", "2"))
DPOS = E("DPOS", "mid")
F2SP = int(E("F2SP", "32"))
FORCEFB = E("FORCEFB", "0") == "1"
LOCAL = E("LOCAL", "1") == "1"
PRET = int(E("PRET", "3"))
SLEEP = int(E("SLEEP", "0"))
WBL2 = E("WBL2", "0")
OUTF = E("OUTF", "")
ROTA, ROTB, ROTC, ROTN, ROTS = [int(v) for v in E("ROTP", "1,1,2,7,1").split(",")]

X_KV = 0; X_QF = 1 << 20; X_F1 = 3 << 19
B_BASE = 16 << 20; B_F2 = 1835008
STAGE = 37888; XOFF = 21504
WOB = 49152; QX = 49152; PB0 = 113664; LDS = 163840; GBC = 163824
LAG = E("LAG", "q")
W7 = E("W7", "1") == "1"
PRIO = int(E("PRIO", "1"))
WOFL = int(E("WOFL", "2"))
CPF = int(E("CPF", "1"))
NOWN = int(E("NOWN", "4"))
PTPOS = int(E("PTPOS", "4"))
NPOS = int(E("NPOS", "2"))
SCHED = [int(v) for v in E("SCHED", "3,4,5,6,6,6,6").split(",")]
SPIN = 1 << 22

class A:
    def __init__(self):
        self.l = []; self.vm = []; self.done = 0
    def __call__(self, s): self.l.append("    " + s)
    def lab(self, s): self.l.append(s + ":")
    def raw(self, s): self.l.append(s)
    def text(self): return "\n".join(self.l) + "\n"
    def vreset(self): self.vm = []; self.done = 0
    def vmem(self, s, tag=None):
        self(s); self.vm.append(tag)
    def vwait(self, tag, extra=""):
        idx = [i for i, t in enumerate(self.vm) if t == tag]
        assert idx, tag
        last = idx[-1] + 1
        if last <= self.done:
            if extra: self(f"s_waitcnt {extra}")
            return
        self.done = last
        n = len(self.vm) - last
        assert n < 64
        self(f"s_waitcnt vmcnt({n}) {extra}".rstrip())
    def vall(self, extra=""):
        self.done = len(self.vm); self(f"s_waitcnt vmcnt(0) {extra}".rstrip())

def vr(b, n): return f"v[{b}:{b+n-1}]"
def S4(b): return f"s[{b}:{b+3}]"
def S2(b): return f"s[{b}:{b+1}]"
def stamp(a, name):
    if DIAG == name:
        a("s_memrealtime s[80:81]")
    if STAMP and name in STL:
        i = STL.index(name)
        a(f"{'s_memrealtime' if RTS else 's_memtime'} s[{80+2*i}:{81+2*i}]")
    if DBGST and name in STL:
        i = STL.index(name)
        a(f"s_memrealtime s[{80+2*i}:{81+2*i}]")

rX, rW, rWS, rWO, rOUT, rDBG, rKV, rBR = 24, 28, 32, 36, 64, 68, 72, 12
XM = 4
sLOC = 6
sRT = 7
sOUTO = 8
sQT = 9
sF1O = 10
sQO = 11
sx, sidx, sb, srb, shalf, sXS, sw, shl, swp, sqb, sg, sWL, sXL, sWS_, stt, scg, skq, su = range(40, 58)
t0, t1, sDL, t2, sROT, t3 = 58, 59, 60, 61, 62, 63
NONCE = 76; RT = 78
sKVO, sWOS, sWOL, sOO, sF2O = 16, 17, 18, 19, 22
sGB = 23
KT = [24, 25, 26, 27, 28, 29, 30, 31, 43, 44, 45, 51, 52, 53, 54, 55]
L16, IDX, WOA, F1A, F2A, OUTA, QW, QR, PW, PR, TAU = 1, 2, 3, 4, 5, 6, 7, 8, 11, 14, 15
T = 240
XD, WD, XA, WA1, VPAD, NV, NA, PTA = 16, 18, 21, 29, 31, 232, 234, 235
ACC = [32, 48, 64]; FR = [80, 144]; P1 = 208
Q = [16, 24, 32, 40]; O = [48, 64, 80, 96]; SB = [112, 128, 144]; KB = [176, 184, 192, 200]; VB = [208, 216, 224, 232]

WA, OA, WO2, CA, ONE, TAU8 = 160, 168, 171, 172, 173, 174
def lwait(a, name, off, target, sleep=2):
    a(f"s_mov_b32 s{t3}, {SPIN}")
    a.lab(f"{name}_spin")
    a(f"ds_read_b32 v{T+13}, v{CA} offset:{off}")
    a(f"s_sub_u32 s{t3}, s{t3}, 1")
    a("s_cbranch_scc1 L_end")
    a("s_waitcnt lgkmcnt(0)")
    a(f"v_readfirstlane_b32 s{t2}, v{T+13}")
    a(f"s_cmp_ge_u32 s{t2}, {target}")
    a(f"s_cbranch_scc1 {name}_done")
    a(f"s_sleep {sleep}")
    a(f"s_branch {name}_spin")
    a.lab(f"{name}_done")
def arrive(a, off=0):
    a("s_mov_b64 exec, 1")
    a(f"ds_add_u32 v{CA}, v{ONE} offset:{off}")
    a("s_mov_b64 exec, -1")
slow = []
def lpre(a): a(f"ds_read_b32 v{T+13}, v{CA}")
def lcheck(a, name, target):
    a("s_waitcnt lgkmcnt(0)")
    a(f"v_readfirstlane_b32 s{t2}, v{T+13}")
    a(f"s_cmp_ge_u32 s{t2}, {target}")
    a(f"s_cbranch_scc0 {name}_slow")
    a.lab(f"{name}_back")
    slow.append((name, target))

def poll(a, name, vaddr, srd):
    a(f"s_mov_b32 s{t3}, {SPIN}")
    if SLEEP: a(f"s_branch {name}_first")
    a.lab(f"{name}_spin")
    if SLEEP:
        a(f"s_sleep {SLEEP}")
        a.lab(f"{name}_first")
    a(f"buffer_load_dwordx2 {vr(T+14,2)}, v{vaddr}, {S4(srd)}, 0 offen sc1")
    a(f"s_sub_u32 s{t3}, s{t3}, 1")
    a("s_cbranch_scc1 L_end")
    a("s_waitcnt vmcnt(0)")
    a(f"v_cmp_ne_u64 vcc, {S2(NONCE)}, {vr(T+14,2)}")
    a(f"s_cbranch_vccnz {name}_spin")

def gbar(a, name, k):
    arrive(a)
    lwait(a, name, 0, 4 * k)

def gen():
    a = A(); n = NAME + "_kernel"
    u0, u1, u2, u3, u4 = T, T + 1, T + 2, T + 3, T + 4
    a.raw(f".globl {n}\n.p2align 8\n.type {n},@function")
    a.lab(n)
    a("s_cmp_ge_u32 s2, 256")
    a("s_cbranch_scc1 L_end")
    a("s_load_dwordx16 s[4:19], s[0:1], 0")
    a("s_load_dwordx2 s[20:21], s[0:1], 64")
    a(f"s_memrealtime {S2(RT)}")
    if STAMP: a("s_memtime s[100:101]")
    a(f"s_and_b32 s{sx}, s2, 7")
    a(f"s_lshr_b32 s{sidx}, s2, 3")
    a(f"s_lshr_b32 s{sb}, s{sx}, 2")
    a(f"s_lshr_b32 s{srb}, s{sidx}, 1")
    a(f"s_and_b32 s{shalf}, s{sidx}, 1")
    a("v_lshrrev_b32 v1, 6, v0")
    a("v_and_b32 v0, 63, v0")
    a(f"v_readfirstlane_b32 s{sw}, v1")
    a(f"v_lshrrev_b32 v{u0}, 3, v0")
    a(f"s_lshl_b32 s{t0}, s{srb}, 7")
    a(f"s_lshl_b32 s{t1}, s{sw}, 4")
    a(f"s_add_u32 s{t0}, s{t0}, s{t1}")
    a(f"v_add_u32 v{u0}, s{t0}, v{u0}")
    a(f"v_mul_u32_u24 v{u0}, 896, v{u0}")
    a(f"v_lshrrev_b32 v{u1}, 4, v0")
    a(f"v_and_b32 v{u2}, 7, v0")
    a(f"v_xor_b32 v{u2}, v{u2}, v{u1}")
    a(f"v_lshl_add_u32 v{XD}, v{u2}, 4, v{u0}")
    a(f"v_xor_b32 v{u2}, 4, v{u2}")
    a(f"v_lshl_add_u32 v{XD+1}, v{u2}, 4, v{u0}")
    a(f"v_add_u32 v{XD+1}, 7168, v{XD+1}")
    a(f"s_mul_i32 s{sROT}, s{srb}, {ROTA}")
    a(f"s_mul_i32 s{t2}, s{shalf}, {ROTB}")
    a(f"s_add_u32 s{sROT}, s{sROT}, s{t2}")
    a(f"s_and_b32 s{t2}, s{sx}, 3")
    a(f"s_mul_i32 s{t2}, s{t2}, {ROTC}")
    a(f"s_add_u32 s{sROT}, s{sROT}, s{t2}")
    a(f"s_mul_i32 s{t2}, s{sROT}, {(65536 + ROTN - 1)//ROTN}")
    a(f"s_lshr_b32 s{t2}, s{t2}, 16")
    a(f"s_mul_i32 s{t2}, s{t2}, {ROTN}")
    a(f"s_sub_u32 s{sROT}, s{sROT}, s{t2}")
    if ROTS != 1: a(f"s_mul_i32 s{sROT}, s{sROT}, {ROTS}")
    assert (ROTN - 1) * ROTS < 7
    a(f"s_lshl_b32 s{sXL}, s{sw}, 11")
    a(f"s_add_u32 s{sXL}, s{sXL}, {XOFF}")
    a(f"s_mov_b32 s{rX+2}, 1835008")
    a(f"s_mov_b32 s{rX+3}, 0x00020000")
    a(f"s_mov_b32 s{rW+2}, 1204224")
    a(f"s_mov_b32 s{rW+3}, 0x00020000")
    a(f"s_cmp_eq_u32 s{sb}, 0")
    a("s_waitcnt lgkmcnt(0)")
    a(f"s_cselect_b32 s{rX}, s4, s10")
    a(f"s_cselect_b32 s{rX+1}, s5, s11")
    a(f"s_cselect_b32 s{rW}, s6, s12")
    a(f"s_cselect_b32 s{rW+1}, s7, s13")
    nlab = [0]
    if DIAG: a(f"s_mov_b32 s80, s{RT}")
    if STAMP:
        for k in range(9): a(f"s_mov_b32 s{80+2*k}, s{RT if RTS else 100}")
    def dma_parts(ch):
        st = (ch % 4) * STAGE
        parts = []
        def part(pre, ins, tag, post=()):
            def f():
                skip = W7 and tag == "w"
                if skip:
                    nlab[0] += 1
                    a(f"s_cbranch_vccnz L_sk{nlab[0]}")
                for x in pre: a(x)
                a.vmem(ins, (tag, ch))
                if skip: a.lab(f"L_sk{nlab[0]}")
                for x in post: a(x)
            parts.append(f)
        part([f"s_add_u32 m0, s{sXL}, {st}", f"s_lshl_b32 s{sXS}, s{sROT}, 7"], f"buffer_load_dwordx4 v{XD}, {S4(rX)}, s{sXS} offen lds", "x")
        part([f"s_add_u32 m0, s{sXL}, {st+1024}", f"s_mul_i32 s{sWS_}, s{sROT}, 172032"], f"buffer_load_dwordx4 v{XD+1}, {S4(rX)}, s{sXS} offen lds", "x",
             [f"s_add_u32 s{sROT}, s{sROT}, 1", f"s_cmp_eq_u32 s{sROT}, 7", f"s_cselect_b32 s{sROT}, 0, s{sROT}"])
        for i in range(3):
            part([f"s_add_u32 m0, s{sWL}, {st+1024*i}", "s_nop 0"], f"buffer_load_dwordx4 v{WD+i}, {S4(rW)}, s{sWS_} offen lds", "w")
        return parts
    def dma(ch):
        for f in dma_parts(ch): f()
    def cwait(ch):
        if W7:
            last = max(i for i, t in enumerate(a.vm) if t == ("x", ch))
            n7 = sum(1 for t in a.vm[last+1:] if not (isinstance(t, tuple) and t[0] == "w"))
            nlab[0] += 1
            a(f"s_cbranch_vccz L_sk{nlab[0]}")
            a(f"s_waitcnt vmcnt({n7})")
            a.lab(f"L_sk{nlab[0]}")
        a.vwait(("w", ch), "lgkmcnt(0)")
    p0 = dma_parts(0)
    p0[0](); p0[1]()
    a(f"s_min_u32 s{swp}, s{sw}, 6")
    a(f"s_mul_i32 s{t0}, s{swp}, 192")
    a(f"s_and_b32 s{t1}, s{sx}, 3")
    a(f"s_mul_i32 s{t1}, s{t1}, 224")
    a(f"s_mul_i32 s{t2}, s{shalf}, 1008")
    a(f"s_add_u32 s{t1}, s{t1}, s{t2}")
    a(f"s_lshr_b32 s{t2}, 14, s{shalf}")
    a(f"s_mul_i32 s{sWL}, s{swp}, 3072")
    a(f"v_mov_b32 v{u4}, 672")
    a(f"s_cmp_eq_u32 s{sw}, 7")
    a(f"s_cselect_b64 vcc, -1, 0")
    for i in range(3):
        a(f"v_add_u32 v{u0}, s{t0}, v0")
        if i: a(f"v_add_u32 v{u0}, {64*i}, v{u0}")
        a(f"v_mul_u32_u24 v{u1}, 3121, v{u0}")
        a(f"v_lshrrev_b32 v{u1}, 16, v{u1}")
        a(f"v_mul_u32_u24 v{u2}, 21, v{u1}")
        a(f"v_sub_u32 v{u0}, v{u0}, v{u2}")
        a(f"v_and_b32 v{u2}, 48, v{u1}")
        a(f"v_and_b32 v{u3}, 3, v{u1}")
        a(f"v_lshl_add_u32 v{u2}, v{u3}, 2, v{u2}")
        a(f"v_bfe_u32 v{u3}, v{u1}, 2, 2")
        a(f"v_add_u32 v{u2}, v{u2}, v{u3}")
        a(f"v_mul_u32_u24 v{u2}, 2688, v{u2}")
        a(f"v_cmp_le_u32 {S2(NONCE)}, s{t2}, v{u0}")
        a(f"v_lshl_add_u32 v{u2}, v{u0}, 4, v{u2}")
        a(f"v_add_u32 v{u2}, s{t1}, v{u2}")
        a(f"v_cndmask_b32 v{u3}, 0, v{u4}, {S2(NONCE)}")
        a(f"v_add_u32 v{WD+i}, v{u2}, v{u3}")
        p0[2+i]()
    stamp(a, "iss0")
    a(f"s_cmp_eq_u32 s{sb}, 0")
    a(f"s_cselect_b32 s{rWO}, s8, s14")
    a(f"s_cselect_b32 s{rWO+1}, s9, s15")
    a(f"s_mov_b32 s{rWO+2}, 401408")
    a(f"s_mov_b32 s{rWO+3}, 0x00020000")
    for d, lo, sz in ((rOUT, 16, 2048 * 896 * 2), (rDBG, 18, 256)):
        a(f"s_mov_b32 s{d}, s{lo}"); a(f"s_mov_b32 s{d+1}, s{lo+1}"); a(f"s_mov_b32 s{d+2}, {sz}"); a(f"s_mov_b32 s{d+3}, 0x00020000")
    a(f"s_lshl_b32 s{t2}, s{sx}, 21")
    a(f"s_add_u32 s{rWS}, s20, s{t2}")
    a(f"s_addc_u32 s{rWS+1}, s21, 0")
    a(f"s_mov_b32 s{rWS+2}, {2<<20}")
    a(f"s_mov_b32 s{rWS+3}, 0x00020000")
    a(f"s_lshl_b32 s{t2}, s{sb}, 21")
    a(f"s_add_u32 s{t2}, s{t2}, {B_BASE}")
    a(f"s_add_u32 s{rBR}, s20, s{t2}")
    a(f"s_addc_u32 s{rBR+1}, s21, 0")
    a(f"s_mov_b32 s{rBR+2}, {2<<20}")
    a(f"s_mov_b32 s{rBR+3}, 0x00020000")
    a(f"s_and_b32 s{shl}, s{sidx}, 3")
    a(f"s_lshl_b32 s{t2}, s{shl}, 18")
    a(f"s_add_u32 s{rKV}, s{rWS}, s{t2}")
    a(f"s_addc_u32 s{rKV+1}, s{rWS+1}, 0")
    a(f"s_mov_b32 s{rKV+2}, 262144")
    a(f"s_mov_b32 s{rKV+3}, 0x00020000")
    a(f"s_lshl_b32 s{sDL}, s{sb}, 3")
    a(f"s_getreg_b32 s{XM}, hwreg(HW_REG_XCC_ID)")
    a(f"s_and_b32 s{XM}, s{XM}, 15")
    a(f"s_lshl_b32 s{t0}, s{sx}, 4")
    a(f"s_or_b32 s{XM}, s{XM}, s{t0}")
    a(f"s_or_b32 s{XM}, s{XM}, 0x80")
    a(f"s_mul_i32 s{XM}, s{XM}, 0x01010101")
    a(f"s_mov_b32 s{XM+1}, s{XM}")
    a(f"s_and_b32 s{t1}, s{sx}, 3")
    a(f"s_lshl_b32 s{t1}, s{t1}, 5")
    a(f"s_add_u32 s{t1}, s{t1}, 128")
    a(f"v_and_b32 v{NA}, 3, v0")
    a(f"v_lshlrev_b32 v{NA}, 3, v{NA}")
    a(f"v_add_u32 v{NA}, s{t1}, v{NA}")
    a("s_mov_b64 exec, 1")
    a(f"v_mov_b32 v{NA}, s{sDL}")
    a("s_mov_b64 exec, -1")
    a(f"s_cmp_lg_u32 s{sw}, 7")
    a("s_cbranch_scc1 L_noprop")
    a(f"v_mov_b32 v{NV}, s{XM}")
    a(f"s_add_u32 s{t2}, s{t1}, s{sidx}")
    a("s_mov_b64 exec, 1")
    a(f"buffer_store_byte v{NV}, off, {S4(rDBG)}, s{t2}")
    a("s_mov_b64 exec, -1")
    a(f"s_cmp_lg_u32 s{sidx}, 0")
    a("s_cbranch_scc1 L_noprop")
    a(f"s_or_b32 s{t0}, s{RT}, 1")
    a(f"s_or_b32 s{t2}, s{RT+1}, 1")
    a(f"v_mov_b32 v236, s{t0}")
    a(f"v_mov_b32 v237, s{t2}")
    a("v_mov_b32 v238, 0")
    a("v_mov_b32 v239, 0")
    a("s_mov_b64 exec, 1")
    a(f"buffer_atomic_cmpswap_x2 v[236:239], off, {S4(rDBG)}, s{sDL} sc1")
    a("s_mov_b64 exec, -1")
    a.lab("L_noprop")
    a(f"s_and_b32 s{stt}, s{sw}, 3")
    a(f"s_lshr_b32 s{scg}, s{sw}, 2")
    a(f"v_and_b32 v{u0}, 31, v0")
    a(f"s_lshl_b32 s{t0}, s{stt}, 5")
    a(f"v_add_u32 v{u0}, s{t0}, v{u0}")
    a(f"v_bfe_u32 v{u1}, v{u0}, 1, 3")
    a(f"v_lshrrev_b32 v{u2}, 5, v0")
    a(f"v_xor_b32 v{u1}, v{u1}, v{u2}")
    a(f"v_lshlrev_b32 v{u1}, 4, v{u1}")
    a(f"v_lshl_add_u32 v{u1}, v{u0}, 7, v{u1}")
    for ks in range(4):
        a(f"v_xor_b32 v{XA+ks}, {32*ks}, v{u1}")
        a(f"v_add_u32 v{XA+ks}, {XOFF}, v{XA+ks}")
        a(f"v_add_u32 v{XA+4+ks}, {2*STAGE}, v{XA+ks}")
    a(f"v_bfe_u32 v{u0}, v0, 2, 2")
    a(f"v_lshlrev_b32 v{u0}, 1, v{u0}")
    a(f"v_add_u32 v{u0}, v{u0}, v{u2}")
    a(f"v_mul_u32_u24 v{u0}, 672, v{u0}")
    a(f"v_bfe_u32 v{u1}, v0, 4, 1")
    a(f"v_lshl_add_u32 v{u0}, v{u1}, 5, v{u0}")
    a(f"v_and_b32 v{u1}, 3, v0")
    a(f"v_lshl_add_u32 v{u0}, v{u1}, 3, v{u0}")
    a(f"s_mul_i32 s{t0}, s{scg}, 168")
    a(f"v_add_u32 v{WA1}, s{t0}, v{u0}")
    a(f"v_add_u32 v{WA1+1}, {2*STAGE}, v{WA1}")
    a(f"v_and_b32 v{u0}, 0x33, v0")
    a(f"v_bfe_u32 v{u1}, v0, 2, 1")
    a(f"v_lshl_add_u32 v{u0}, v{u1}, 3, v{u0}")
    a(f"v_bfe_u32 v{u1}, v0, 3, 1")
    a(f"v_lshl_add_u32 v{u0}, v{u1}, 2, v{u0}")
    a(f"v_lshlrev_b32 v{TAU}, 4, v{u0}")
    a(f"v_lshlrev_b32 v{L16}, 4, v0")
    a(f"v_and_b32 v{u0}, 31, v0")
    a(f"v_mov_b32 v{u1}, 0x3f803f80")
    a(f"v_cmp_eq_u32 {S2(NONCE)}, 28, v{u0}")
    a(f"s_lshl_b32 s{su}, s{shalf}, 1")
    a(f"s_add_u32 s{su}, s{su}, s{scg}")
    a(f"v_cndmask_b32 v{VPAD}, 0, v{u1}, {S2(NONCE)}")
    a(f"v_mov_b32 v{IDX}, 0xdddddddd")
    a(f"s_lshr_b32 s{sqb}, s{sidx}, 2")
    a(f"s_lshr_b32 s{sg}, s{sw}, 2")
    a(f"s_and_b32 s{skq}, s{sw}, 3")
    a(f"s_lshl_b32 s{sQT}, s{sqb}, 3")
    a(f"s_add_u32 s{sQT}, s{sQT}, s{sw}")
    a(f"s_lshl_b32 s{t1}, s{sw}, 11")
    a(f"s_add_u32 s{t1}, s{t1}, {QX}")
    a(f"v_add_u32 v{QW}, s{t1}, v{L16}")
    a(f"s_cmp_eq_u32 s{sg}, 0")
    a(f"s_cselect_b32 s{t3}, {PB0}, 0")
    a(f"s_lshl_b32 s{t2}, s{sg}, 13")
    a(f"s_add_u32 s{t2}, s{t2}, {QX}")
    a(f"s_mul_i32 s{t1}, s{skq}, 12288")
    a(f"s_add_u32 s{t1}, s{t1}, s{t3}")
    a(f"v_add_u32 v{PR}, s{t1}, v{L16}")
    for i in range(3):
        a(f"s_add_u32 s{t0}, s{skq}, {1+i}")
        a(f"s_and_b32 s{t0}, s{t0}, 3")
        a(f"s_lshl_b32 s{t1}, s{t0}, 11")
        a(f"s_add_u32 s{t1}, s{t1}, s{t2}")
        a(f"v_add_u32 v{QR+i}, s{t1}, v{L16}")
        a(f"s_mul_i32 s{t1}, s{t0}, 12288")
        a(f"s_add_u32 s{t1}, s{t1}, s{t3}")
        a(f"s_add_u32 s{t1}, s{t1}, {4096*i}")
        a(f"v_add_u32 v{PW+i}, s{t1}, v{L16}")
    a(f"s_lshl_b32 s{t0}, s{sg}, 2")
    a(f"s_add_u32 s{t0}, s{t0}, {GBC}")
    a(f"v_mov_b32 v{CA}, s{t0}")
    a(f"v_mov_b32 v{ONE}, 0")
    a(f"ds_write_b32 v{CA}, v{ONE}")
    a(f"ds_write_b32 v{CA}, v{ONE} offset:8")
    a(f"v_lshrrev_b32 v{TAU8}, 1, v{TAU}")
    a(f"s_lshl_b32 s{sKVO}, s{skq}, 16")
    a(f"s_lshl_b32 s{sQO}, s{shl}, 6")
    a(f"s_add_u32 s{sQO}, s{sQO}, s{sQT}")
    a(f"s_lshl_b32 s{sQO}, s{sQO}, 11")
    a(f"s_add_u32 s{sQO}, s{sQO}, {X_QF}")
    a(f"s_lshl_b32 s{sF1O}, s{su}, 4")
    a(f"s_add_u32 s{sF1O}, s{sF1O}, s{srb}")
    a(f"s_lshl_b32 s{sF1O}, s{sF1O}, 7")
    a(f"s_lshl_b32 s{t0}, s{stt}, 3")
    a(f"s_add_u32 s{sF1O}, s{sF1O}, s{t0}")
    a(f"s_add_u32 s{sF1O}, s{sF1O}, {X_F1}")
    a(f"s_mul_i32 s{t2}, s{shl}, 43")
    a(f"s_lshr_b32 s{t0}, s{t2}, 7")
    a(f"s_add_u32 s{t2}, s{t2}, {4*43}")
    a(f"s_lshr_b32 s{t1}, s{t2}, 7")
    a(f"s_add_u32 s{t2}, s{t2}, {4*43}")
    a(f"s_lshr_b32 s{t3}, s{t2}, 7")
    a(f"v_and_b32 v{u0}, 15, v0")
    a(f"s_lshl_b32 s{t2}, s{skq}, 4")
    a(f"v_add_u32 v{u0}, s{t2}, v{u0}")
    a(f"v_mov_b32 v{u1}, s{t1}")
    a("s_mov_b32 exec_lo, 0xffff0000")
    a(f"v_mov_b32 v{u1}, s{t3}")
    a("s_mov_b32 exec_lo, 0")
    a(f"v_mov_b32 v{u1}, s{t0}")
    a(f"v_mov_b32 v{u0}, s{sQT}")
    a("s_mov_b32 exec_lo, -1")
    a(f"v_lshlrev_b32 v{u1}, 11, v{u1}")
    a(f"v_lshrrev_b32 v{u3}, 2, v{u0}")
    a(f"v_lshl_add_u32 v{u1}, v{u3}, 7, v{u1}")
    a(f"v_and_b32 v{u0}, 3, v{u0}")
    a(f"v_lshl_add_u32 v{u0}, v{u0}, 3, v{u1}")
    a(f"v_add_u32 v{F1A}, {X_F1}, v{u0}")
    a(f"s_lshl_b32 s{t0}, s{shl}, 18")
    a(f"s_add_u32 s{t0}, s{t0}, s{sKVO}")
    a(f"s_lshl_b32 s{t1}, s{sqb}, 1")
    a(f"s_add_u32 s{t1}, s{t1}, s{sg}")
    a(f"s_lshl_b32 s{t1}, s{t1}, 7")
    a(f"s_add_u32 s{t0}, s{t0}, s{t1}")
    a(f"v_subrev_u32 v{u0}, 16, v0")
    a(f"v_lshlrev_b32 v{u0}, 11, v{u0}")
    a(f"v_add_u32 v{PTA}, s{t0}, v{u0}")
    a("s_mov_b64 exec, 0xffff")
    a(f"v_lshlrev_b32 v{u0}, 7, v0")
    a(f"v_add_u32 v{PTA}, s{sQO}, v{u0}")
    a("s_mov_b64 exec, -1")
    a(f"s_and_b32 s{t0}, s{sx}, 3")
    a(f"s_lshl_b32 s{t0}, s{t0}, 2")
    a(f"s_add_u32 s{t0}, s{t0}, s{shl}")
    a(f"s_lshl_b32 s{t1}, s{sQT}, 4")
    a(f"s_add_u32 s{t1}, s{t1}, s{t0}")
    a(f"s_mul_i32 s{sOO}, s{t1}, 1792")
    a(f"s_mul_i32 s{sF2O}, s{t1}, {F2SP}")
    a(f"s_add_u32 s{sF2O}, s{sF2O}, {B_F2}")
    for ch in range(1, INIT): dma(ch)
    if CPF:
        a(f"s_cmp_lg_u32 s{sw}, 7")
        a("s_cbranch_scc1 L_nocpf")
        a(f"s_sub_u32 s{t0}, s{sidx}, 1")
        a(f"s_cmp_ge_u32 s{t0}, 3")
        a("s_cbranch_scc1 L_nocpf")
        a(f"s_getpc_b64 {S2(NONCE)}")
        a.lab("L_pc")
        a(f"s_lshl_b32 s{t0}, s{t0}, 13")
        a(f"v_lshlrev_b32 v{u0}, 7, v0")
        a(f"v_add_u32 v{u0}, s{t0}, v{u0}")
        a(f"v_min_u32 v{u0}, L_code_end-L_pc-4, v{u0}")
        a(f"v_mov_b32 v{u1}, s{NONCE+1}")
        a(f"v_add_co_u32 v{u0}, {S2(t0)}, s{NONCE}, v{u0}")
        a("s_nop 1")
        a(f"v_addc_co_u32 v{u1}, {S2(t0)}, 0, v{u1}, {S2(t0)}")
        a(f"global_load_dword v{T+10}, {vr(u0,2)}, off")
        a.lab("L_nocpf")
    a(f"v_mov_b32 v{ONE}, 1")
    a(f"s_mul_i32 s{t1}, s{shl}, 224")
    for j, d in ((0, WOA), (4, WO2)):
        a(f"s_add_u32 s{t0}, s{skq}, {j}")
        a(f"s_min_u32 s{t0}, s{t0}, 6")
        a(f"s_lshl_b32 s{t0}, s{t0}, 6")
        a(f"v_add_u32 v{u0}, s{t0}, v0")
        a(f"v_mul_u32_u24 v{u1}, 4682, v{u0}")
        a(f"v_lshrrev_b32 v{u1}, 16, v{u1}")
        a(f"v_mul_u32_u24 v{u3}, 14, v{u1}")
        a(f"v_sub_u32 v{u0}, v{u0}, v{u3}")
        a(f"v_and_b32 v{u3}, 24, v{u1}")
        a(f"v_and_b32 v{u4}, 1, v{u1}")
        a(f"v_lshl_add_u32 v{u3}, v{u4}, 2, v{u3}")
        a(f"v_bfe_u32 v{u4}, v{u1}, 1, 2")
        a(f"v_add_u32 v{u3}, v{u3}, v{u4}")
        a(f"v_mul_u32_u24 v{u3}, 896, v{u3}")
        a(f"v_lshl_add_u32 v{u3}, v{u0}, 4, v{u3}")
        a(f"v_add_u32 v{d}, s{t1}, v{u3}")
    a(f"v_bfe_u32 v{u0}, v0, 2, 2")
    a(f"v_mul_u32_u24 v{u1}, 448, v{u0}")
    a(f"s_lshl_b32 s{t0}, s{skq}, 6")
    a(f"s_add_u32 s{t0}, s{t0}, {WOB}")
    a(f"v_add_u32 v{u1}, s{t0}, v{u1}")
    a(f"v_and_b32 v{u0}, 1, v0")
    a(f"v_lshl_add_u32 v{u1}, v{u0}, 5, v{u1}")
    a(f"v_bfe_u32 v{u0}, v0, 4, 1")
    a(f"v_lshl_add_u32 v{u1}, v{u0}, 4, v{u1}")
    a(f"v_bfe_u32 v{u0}, v0, 1, 1")
    a(f"v_lshl_add_u32 v{u1}, v{u0}, 3, v{u1}")
    HSTEP = [1, 7, 25, 56]
    for t in range(4):
        a(f"v_mul_u32_u24 v{u0}, {HSTEP[t]*224}, v{u2}")
        a(f"v_add_u32 v{WA+t}, v{u1}, v{u0}")
        a(f"v_add_u32 v{WA+4+t}, 50176, v{WA+t}")
    a(f"s_and_b32 s{t0}, s{sx}, 3")
    a(f"s_lshl_b32 s{t0}, s{t0}, 4")
    a(f"s_and_b32 s{t2}, s{sqb}, 4")
    a(f"s_add_u32 s{t0}, s{t0}, s{t2}")
    a(f"s_add_u32 s{sRT}, s{t0}, s{sqb}")
    a(f"v_add_u32 v{OA}, {WOB}, v{L16}")
    a(f"v_and_b32 v{u0}, 31, v0")
    a(f"v_mul_u32_u24 v{u1}, 1792, v{u2}")
    a(f"v_lshl_add_u32 v{u1}, v{u0}, 4, v{u1}")
    a(f"v_add_u32 v{OA+1}, {WOB}, v{u1}")
    a(f"v_mul_u32_u24 v{u1}, 3584, v{u2}")
    a(f"v_lshl_add_u32 v{u1}, v{u0}, 3, v{u1}")
    a(f"v_add_u32 v{OA+2}, {WOB}, v{u1}")
    a(f"s_lshl_b32 s{t0}, s{sRT}, 5")
    a(f"v_add_u32 v{u0}, s{t0}, v{u0}")
    a(f"v_mul_u32_u24 v{u0}, 1792, v{u0}")
    a(f"v_lshl_add_u32 v{OUTA}, v{u2}, 5, v{u0}")
    a(f"s_mul_i32 s{sOUTO}, s{sb}, 896")
    a(f"s_add_u32 s{sOUTO}, s{sOUTO}, s{t1}")
    a(f"s_lshl_b32 s{t1}, s{skq}, 6")
    a(f"s_add_u32 s{sOUTO}, s{sOUTO}, s{t1}")
    a(f"s_lshl_b32 s{t0}, s{sRT}, 4")
    a(f"s_lshl_b32 s{t1}, s{skq}, 2")
    a(f"s_add_u32 s{t0}, s{t0}, s{t1}")
    a(f"v_and_b32 v{u0}, 3, v0")
    a(f"v_add_u32 v{u0}, s{t0}, v{u0}")
    a(f"v_mul_u32_u24 v{u0}, {F2SP}, v{u0}")
    a(f"v_add_u32 v{F2A}, {B_F2}, v{u0}")
    def touch():
        a.vmem(f"buffer_load_dword v{T+9}, v{F1A}, {S4(rWS)}, 0 offen sc1", "warm")
        if PRET:
            a(f"s_mov_b64 exec, {(1 << (16 + 2*PRET)) - 1:#x}")
            a.vmem(f"buffer_load_dword v{T+8}, v{PTA}, {S4(rWS)}, 0 offen sc1", "warm")
            a("s_mov_b64 exec, -1")
    if PTPOS < 0: touch()
    stamp(a, "setup")
    a(f"s_cmp_lt_u32 s{su}, 2")
    a("s_cbranch_scc1 P1_v0")
    a(f"s_cmp_eq_u32 s{su}, 2")
    a("s_cbranch_scc1 P1_v1")
    a("s_branch P1_v2")
    def fbase(ch, ks):
        return FR[0] + 16 * ks if ks < 3 else FR[0] + 48 + 16 * (ch % 2)
    def reads(ch, ks):
        st = ch % 4
        xa = XA if st < 2 else XA + 4
        wa = WA1 if st < 2 else WA1 + 1
        so = (st % 2) * STAGE
        b = fbase(ch, ks)
        out = [f"ds_read_b128 {vr(b,4)}, v{xa+ks} offset:{so}"]
        for c in range(3):
            for h in range(2):
                out.append(f"ds_read_b64_tr_b16 {vr(b+4+4*c+2*h,2)}, v{wa} offset:{so + (16*ks+h)*336 + 56*c}")
        return out
    def mfma1(ch, ks, c, ori):
        b = fbase(ch, ks)
        x = vr(b, 4); w = vr(b + 4 + 4 * c, 4)
        p, q = (w, x) if ori[c] == 'n' else (x, w)
        cc = "0" if (ch == 0 and ks == 0) else vr(ACC[c], 16)
        return f"v_mfma_f32_32x32x16_bf16 {vr(ACC[c],16)}, {p}, {q}, {cc}"
    vm0, done0 = list(a.vm), a.done
    for v, ori in enumerate(["nnn", "nnv", "vvv"]):
        a.vm, a.done = list(vm0), done0
        a.lab(f"P1_v{v}")
        issued = INIT
        for ch in range(7):
            cwait(ch)
            a("s_barrier")
            stamp(a, f"c{ch}")
            parts = []
            while issued <= SCHED[ch]:
                assert issued - 4 < ch
                parts += dma_parts(issued); issued += 1
            if ch == NPOS:
                parts.append(lambda: a.vmem(f"buffer_load_dwordx2 {vr(NV,2)}, v{NA}, {S4(rDBG)}, 0 offen sc1", "nonce"))
            if ch == PTPOS: parts.append(touch)
            for x in reads(ch, 0): a(x)
            groups = [((ch - 1, 3) if ch else None, 1, None), ((ch, 0), 2, 7), ((ch, 1), 3, 7), ((ch, 2), None, 7)]
            if ch == 6: groups = groups[:3]
            for mk, rk, wt in groups:
                rd = reads(ch, rk) if rk is not None else []
                if wt is not None: a(f"s_waitcnt lgkmcnt({wt})")
                for c in range(3):
                    if mk: a(mfma1(mk[0], mk[1], c, ori))
                    for x in rd[3*c:3*c+3] if c < 2 else rd[6:]: a(x)
                    if parts and c != 1: parts.pop(0)()
            for f in parts: f()
        assert NPOS < SCHED.index(6) + 1 or True
        li = max(i for i, t in enumerate(a.vm) if t == "nonce")
        lx = max(i for i, t in enumerate(a.vm) if t == ("x", 6))
        if li < lx: a("s_waitcnt lgkmcnt(0)")
        else:
            assert not any(isinstance(t, tuple) and t[0] == "w" for t in a.vm[li:])
            a.done = min(a.done, li)
            a.vwait("nonce", "lgkmcnt(0)")
        mf = [mfma1(6, ks, c, ori) for c in range(3) for ks in (2, 3)]
        for m in mf[0:2]: a(m)
        a(f"v_cmp_eq_u64 vcc, {S2(XM)}, {vr(NV,2)}")
        a(f"s_and_b32 s{t0}, vcc_lo, 0xf0")
        a(f"s_cmp_eq_u32 s{t0}, 0xf0")
        a(f"s_cselect_b32 s{sLOC}, {1 if LOCAL else 0}, 0")
        def st2(P, va, off, tag):
            a(f"s_cmp_eq_u32 s{sLOC}, 0")
            a(f"s_cbranch_scc1 L_wt{tag}")
            a(f"buffer_store_dwordx4 {vr(P,4)}, v{va}, {S4(rWS)}, s{t1} offen offset:{off}")
            a(f"buffer_store_dwordx4 {vr(P+4,4)}, v{va}, {S4(rWS)}, s{t1} offen offset:{off+1024}")
            a.lab(f"L_st{tag}")
            tails.append((tag, P, va, off))
        def epi(c):
            P = P1 + 8 * c
            a(f"s_mul_i32 s{t0}, s{su}, 3")
            a(f"s_add_u32 s{t0}, s{t0}, {c}")
            a(f"s_and_b32 s{t1}, s{t0}, 3")
            a(f"s_lshl_b32 s{t2}, s{srb}, 2")
            a(f"s_add_u32 s{t2}, s{t2}, s{stt}")
            a(f"s_lshl_b32 s{t1}, s{t1}, 6")
            a(f"s_add_u32 s{t1}, s{t1}, s{t2}")
            if ori[c] == 'n':
                a(f"s_cmp_lt_u32 s{t0}, 4")
                a(f"s_cselect_b32 s{t2}, {CSCALE:#x}, 1.0")
                a(f"s_cselect_b32 s{sROT}, 0, 0x3f80")
                a(f"s_cselect_b32 s{t3}, 11, 12")
                a(f"s_cselect_b32 s{t0}, {X_QF}, {X_KV}")
                a(f"s_lshl_b32 s{t1}, s{t1}, s{t3}")
                a(f"s_add_u32 s{t1}, s{t1}, s{t0}")
                if v == 0:
                    for r in range(16): a(f"v_mul_f32 v{ACC[c]+r}, s{t2}, v{ACC[c]+r}")
                for i in range(8): a(f"v_cvt_pk_bf16_f32 v{P+i}, v{ACC[c]+2*i}, v{ACC[c]+2*i+1}")
                a("s_mov_b32 exec_lo, 0")
                a(f"v_mov_b32 v{P+6}, s{sROT}")
                a(f"v_mov_b32 v{P+7}, 0")
                a("s_mov_b32 exec_lo, -1")
                st2(P, TAU, 0, f"{v}_{c}")
            else:
                a(f"s_lshl_b32 s{t1}, s{t1}, 12")
                a("s_nop 4")
                for i in range(8): a(f"v_cvt_pk_bf16_f32 v{P+i}, v{ACC[c]+2*i}, v{ACC[c]+2*i+1}")
                a("s_mov_b32 exec_lo, 0xf0000000")
                a("s_mov_b32 exec_hi, 0xf0000000")
                for i in range(8): a(f"v_mov_b32 v{P+i}, v{VPAD}")
                a("s_mov_b64 exec, -1")
                st2(P, L16, 2048, f"{v}_{c}")
        for m in mf[2:6]: a(m)
        epi(0)
        epi(1)
        stamp(a, "p1end")
        epi(2)
        if v < 2: a("s_branch P1_done")
    a.lab("P1_done")
    a.vreset()
    for i in range(4):
        for r in range(16): a(f"v_mov_b32 v{O[i]+r}, 0")
    for k in range(16): a(f"s_add_u32 s{KT[k]}, s{sKVO}, {4096*k}")
    a(f"s_mov_b32 s{t3}, {SPIN}")
    a.lab("L_nonce")
    a(f"v_readfirstlane_b32 s{NONCE}, v{NV}")
    a(f"v_readfirstlane_b32 s{NONCE+1}, v{NV+1}")
    a(f"s_cmp_lg_u32 s{NONCE}, 0")
    a(f"s_cselect_b32 s{t2}, s{NONCE+1}, 0")
    a(f"s_cmp_lg_u32 s{t2}, 0")
    a("s_cbranch_scc0 L_nonce_retry")
    a("s_mov_b64 exec, 1")
    a(f"s_cmp_eq_u32 s{sLOC}, 0")
    a("s_waitcnt vmcnt(0)")
    a("s_cbranch_scc1 L_f1wt")
    a(f"buffer_store_dwordx2 {vr(NV,2)}, off, {S4(rWS)}, s{sF1O}")
    a.lab("L_f1st")
    a("s_mov_b64 exec, -1")
    stamp(a, "ack1")
    poll(a, "L_f1", F1A, rWS)
    stamp(a, "poll1")
    def ldK(kt, f): a.vmem(f"buffer_load_dwordx4 {vr(KB[kt%4]+4*f,4)}, v{L16}, {S4(rKV)}, s{KT[kt]} offen offset:{1024*f} sc1", ("K", kt))
    def ldV(kt, f): a.vmem(f"buffer_load_dwordx4 {vr(VB[kt%4]+4*f,4)}, v{L16}, {S4(rKV)}, s{KT[kt]} offen offset:{2048+1024*f} sc1", ("V", kt))
    order = [(0, 3), (1, 3), (0, 0), (0, 1), (0, 2), (1, 0), (1, 1), (1, 2)]
    for k in range(2, 14):
        order += [(k, 0), (k, 1), (k, 2)] + ([(k, 3)] if k < 16 - NOWN else [])
    order += [(14, 0), (15, 0), (14, 1), (15, 1), (14, 2), (15, 2)] + [(k, 3) for k in range(16 - NOWN, 16)]
    assert sorted(order) == [(k, i) for k in range(16) for i in range(4)]
    NP = 64
    def qk(p):
        kt, i = order[p]
        s = SB[p % 3]; k = KB[kt % 4]
        return [f"v_mfma_f32_32x32x16_bf16 {vr(s,16)}, {vr(k,4)}, {vr(Q[i],4)}, 0",
                f"v_mfma_f32_32x32x16_bf16 {vr(s,16)}, {vr(k+4,4)}, {vr(Q[i]+4,4)}, {vr(s,16)}"]
    def pv(p):
        kt, i = order[p]
        s = SB[p % 3]; v = VB[kt % 4]
        return [f"v_smfmac_f32_32x32x32_bf16 {vr(O[i],16)}, {vr(v,4)}, {vr(s,8)}, v{IDX}",
                f"v_smfmac_f32_32x32x32_bf16 {vr(O[i],16)}, {vr(v+4,4)}, {vr(s+8,8)}, v{IDX}"]
    a.vmem(f"buffer_load_dwordx4 {vr(Q[3],4)}, v{L16}, {S4(rWS)}, s{sQO} offen sc1", "Q")
    ldK(0, 0)
    a.vmem(f"buffer_load_dwordx4 {vr(Q[3]+4,4)}, v{L16}, {S4(rWS)}, s{sQO} offen offset:1024 sc1", "Q")
    ldK(0, 1)
    a(f"s_cmp_eq_u32 s{sg}, 0")
    a("s_cbranch_scc0 L_prio1")
    a("s_setprio 2")
    a.lab("L_prio0")
    a.vwait(("K", 0))
    stamp(a, "k0")
    for x in qk(0): a(x)
    a(f"ds_write_b128 v{QW}, {vr(Q[3],4)}")
    ldK(1, 0); ldK(1, 1); ldV(0, 0); ldV(0, 1)
    a("s_nop 6")
    s = SB[0]
    a(f"v_max3_f32 v{T}, v{s}, v{s+1}, v{s+2}")
    a(f"v_max3_f32 v{T+1}, v{s+3}, v{s+4}, v{s+5}")
    for i in range(6, 14, 4):
        a(f"v_max3_f32 v{T}, v{T}, v{s+i}, v{s+i+1}")
        a(f"v_max3_f32 v{T+1}, v{T+1}, v{s+i+2}, v{s+i+3}")
    a(f"v_max3_f32 v{T}, v{T}, v{s+14}, v{s+15}")
    a(f"v_max_f32 v{T}, v{T}, v{T+1}")
    a(f"v_mov_b32 v{T+1}, v{T}")
    a("s_nop 1")
    a(f"v_permlane32_swap_b32 v{T}, v{T+1}")
    a(f"v_max_f32 v{T}, v{T}, v{T+1}")
    if FORCEFB: a(f"v_add_f32 v{T}, 0x43480000, v{T}")
    a(f"v_xor_b32 v{T}, 0x80000000, v{T}")
    a("s_mov_b32 exec_lo, 0")
    a(f"v_lshrrev_b32 v{Q[3]+6}, 16, v{T}")
    a("s_mov_b32 exec_lo, -1")
    a(f"ds_write_b128 v{QW}, {vr(Q[3]+4,4)} offset:1024")
    arrive(a)
    for x in qk(0): a(x)
    ldV(1, 0); ldV(1, 1)
    a("s_nop 8")
    stamp(a, "loop0")
    lastK = {k: max(p for p in range(NP) if order[p][0] == k) - 1 for k in range(16)}
    lastV = {k: max(p for p in range(NP) if order[p][0] == k) + 1 for k in range(16)}
    lq = []
    for k in range(2, 16):
        fk = lastK[k - 4] + 1 if k >= 4 else 0
        fv = lastV[k - 4] + 1 if k >= 4 else 0
        lq += [(lambda k=k: ldK(k, 0), fk), (lambda k=k: ldK(k, 1), fk), (lambda k=k: ldV(k, 0), fv), (lambda k=k: ldV(k, 1), fv)]
    wq = []
    for i in range(3):
        lp = max(p for p in range(NP) if order[p][1] == i) + 1
        for g in range(4):
            wq.append((lambda i=i, g=g: a(f"ds_write_b128 v{PW+i}, {vr(O[i]+4*g,4)} offset:{1024*g}"), 4 * (lp + 1) + 2))
    rq = [lambda i=i: a(f"ds_read_b128 {vr(O[i//4]+4*(i%4),4)}, v{PR} offset:{1024*i}") for i in range(12)]
    state = {"arr": None, "rd": False}
    for p in range(NP):
        s = SB[p % 3]
        stamp(a, f"ph{p}")
        mq = qk(p + 1) if p + 1 < NP else [None, None]
        mp = pv(p - 1) if p >= 1 else [None, None]
        ms = [("q", x) for x in mq] + [("p", x) for x in mp]
        if p == 1: ms = ms[2:] + ms[:2]
        if p == 1:
            lcheck(a, "L_q", 4)
            stamp(a, "bq1")
            for i in range(3):
                a(f"ds_read_b128 {vr(Q[i],4)}, v{QR+i}")
                a(f"ds_read_b128 {vr(Q[i]+4,4)}, v{QR+i} offset:1024")
        if p == 2:
            a("s_waitcnt lgkmcnt(0)")
            arrive(a, 8)
            a("s_nop 2")
        for g in range(4):
            kind, m = ms[g]
            if m:
                if kind == "q":
                    k1 = order[p + 1][0]
                    a.vwait(("V", k1) if (k1 >= 2 and sum(1 for t in a.vm if t == ("V", k1)) == 2) else ("K", k1))
                    if p == 1 and g == 2: a("s_waitcnt lgkmcnt(4)")
                else:
                    a.vwait(("V", order[p - 1][0]))
                a(m)
            slot = 4 * p + g
            if slot == 3: lpre(a)
            if lq and lq[0][1] <= p and (g == 0 or (g == 1 and (p < 12 or p >= 40))): lq.pop(0)[0]()
            elif wq and wq[0][1] <= slot:
                wq.pop(0)[0]()
                if not wq:
                    arrive(a); state["arr"] = slot
            elif state["arr"] is not None and slot == state["arr"] + 2: lpre(a)
            elif state["arr"] is not None and not state["rd"] and slot >= state["arr"] + 4:
                lcheck(a, "L_p", 8)
                stamp(a, "b1")
                state["rd"] = True
                for _ in range(4): rq.pop(0)()
            elif state["rd"] and rq:
                for _ in range(4): rq.pop(0)()
            for jj in range(4): a(f"v_exp_f32 v{s+4*g+jj}, v{s+4*g+jj}")
    assert not lq and not wq and state["rd"]
    while rq: rq.pop(0)()
    a("s_nop 1")
    for x in pv(63): a(x)
    stamp(a, "loop1")
    OO = O[3]
    a("s_waitcnt lgkmcnt(0)")
    arrive(a)
    for r in range(16): a(f"v_add_f32 v{O[0]+r}, v{O[0]+r}, v{O[1]+r}")
    for r in range(16): a(f"v_add_f32 v{O[0]+r}, v{O[0]+r}, v{O[2]+r}")
    a(f"v_add_f32 v{OO+12}, v{OO+12}, v{O[0]+12}")
    a(f"v_mov_b32 v{T}, v{OO+12}")
    a(f"v_mov_b32 v{T+1}, v{OO+12}")
    for r in range(0, 4): a(f"v_add_f32 v{OO+r}, v{OO+r}, v{O[0]+r}")
    a(f"v_permlane32_swap_b32 v{T}, v{T+1}")
    for r in range(4, 16):
        if r != 12: a(f"v_add_f32 v{OO+r}, v{OO+r}, v{O[0]+r}")
    a(f"s_mov_b32 s{sGB}, 0")
    a.lab("L_norm")
    a(f"v_rcp_f32 v{T}, v{T+1}")
    a("s_nop 0")
    P = T + 4
    for r in range(8): a(f"v_mul_f32 v{OO+r}, v{OO+r}, v{T}")
    for i in range(4): a(f"v_cvt_pk_bf16_f32 v{P+i}, v{OO+2*i}, v{OO+2*i+1}")
    a(f"buffer_store_dwordx4 {vr(P,4)}, v{TAU}, {S4(rBR)}, s{sOO} offen sc1")
    for r in range(8, 16): a(f"v_mul_f32 v{OO+r}, v{OO+r}, v{T}")
    for i in range(4, 8): a(f"v_cvt_pk_bf16_f32 v{P+i}, v{OO+2*i}, v{OO+2*i+1}")
    a("s_mov_b32 exec_hi, 0")
    a(f"buffer_store_dwordx4 {vr(P+4,4)}, v{TAU}, {S4(rBR)}, s{sOO} offen offset:1024 sc1")
    a("s_not_b64 exec, exec")
    a(f"buffer_store_dwordx2 {vr(P+4,2)}, v{TAU8}, {S4(rBR)}, s{sOO} offen offset:1280 sc1")
    a("s_mov_b64 exec, -1")
    stamp(a, "ost")
    a(f"s_cmp_lg_u32 s{sGB}, 0")
    a("s_cbranch_scc1 L_checked")
    a(f"v_mul_f32 v{T+2}, 0, v{OO}")
    a(f"v_mul_f32 v{T+3}, 0, v{OO+1}")
    for r in range(2, 16): a(f"v_fma_f32 v{T+2+(r&1)}, 0, v{OO+r}, v{T+2+(r&1)}")
    a(f"v_add_f32 v{T+2}, v{T+2}, v{T+3}")
    a(f"v_add_f32 v{T+2}, v{T+2}, v{T+1}")
    a(f"v_cmp_nlt_f32 vcc, 0x35800000, v{T+2}")
    a(f"s_mov_b64 {S2(sROT)}, vcc")
    a(f"v_cmp_ngt_f32 vcc, 0x71800000, v{T+2}")
    a(f"s_or_b64 vcc, vcc, {S2(sROT)}")
    a("s_cbranch_vccnz L_fallback")
    a.lab("L_checked")
    NF = T + 2
    a(f"v_mov_b32 v{NF}, s{NONCE}")
    a(f"v_mov_b32 v{NF+1}, s{NONCE+1}")
    a("s_mov_b64 exec, 1")
    a(f"s_cmp_eq_u32 s{sg}, 0")
    a("s_waitcnt vmcnt(0)")
    a(f"buffer_store_dwordx2 {vr(NF,2)}, off, {S4(rBR)}, s{sF2O} sc1")
    a("s_mov_b64 exec, -1")
    stamp(a, "flag2")
    a("s_cbranch_scc0 L_fin1" if DIAG else "s_cbranch_scc0 L_fin")
    lwait(a, "L_g4", 0, 12)
    lwait(a, "L_h2", 12, 4)
    for j in (0, 4):
        a(f"s_add_u32 s{t0}, s{skq}, {j}")
        a(f"s_min_u32 s{t0}, s{t0}, 6")
        a(f"s_lshl_b32 s{KT[j]}, s{t0}, 10")
        a(f"s_add_u32 s{KT[j]}, s{KT[j]}, {WOB}")
    a(f"s_lshl_b32 s{sROT}, s{sqb}, 1")
    a(f"s_min_u32 s{sROT}, s{sROT}, 13")
    a(f"s_mov_b32 s{t1}, 14")
    a("s_setprio 0")
    a.lab("L_wo")
    a(f"s_mul_i32 s{sWOL}, s{sROT}, 7168")
    a(f"s_mul_i32 s{sWOS}, s{sROT}, 28672")
    a(f"s_add_u32 m0, s{sWOL}, s{KT[0]}")
    a(f"s_add_u32 s{sROT}, s{sROT}, 1")
    a(f"buffer_load_dwordx4 v{WOA}, {S4(rWO)}, s{sWOS} offen lds")
    a(f"s_add_u32 m0, s{sWOL}, s{KT[4]}")
    a(f"s_cmp_eq_u32 s{sROT}, 14")
    a(f"buffer_load_dwordx4 v{WO2}, {S4(rWO)}, s{sWOS} offen lds")
    a(f"s_cselect_b32 s{sROT}, 0, s{sROT}")
    a(f"s_sub_u32 s{t1}, s{t1}, 1")
    a(f"s_cmp_lg_u32 s{t1}, 0")
    a(f"s_waitcnt vmcnt({WOFL})")
    a("s_cbranch_scc1 L_wo")
    WB = 16
    def pos(G): return 8 * (G >> 1) + (G & 1)
    steps = []
    for q in range(4):
        for hd in range(4 * q, 4 * q + 4):
            steps.append((hd & 1, lambda h, aa, hd=hd: 7 * hd + 2 * aa + h, ("A", hd)))
        for i in range(2 * q, 2 * q + 2):
            steps.append((2, lambda h, aa, i=i: 7 * (2 * i + h) + 4 + 2 * aa, ("B", 2 * i)))
        steps.append((3, lambda h, aa, q=q: 7 * (4 * q + 2 * h + aa) + 5, ("C", 4 * q)))
    def wread(ks):
        t, G, _ = steps[ks]
        for aa in range(2):
            assert pos(G(1, aa)) - pos(G(0, aa)) == HSTEP[t]
            off = pos(G(0, aa)) * 224
            ad = WA + t
            if off >= 50176: off -= 50176; ad += 4
            a(f"ds_read_b64_tr_b16 {vr(WB+4*ks+2*aa,2)}, v{ad} offset:{off}")
    sOS, sOL, sIT = KT[1], KT[2], KT[3]
    a(f"s_mul_i32 s{sOS}, s{sRT}, 28672")
    a(f"s_mul_i32 s{t2}, s{skq}, 7168")
    a(f"s_add_u32 s{sOS}, s{sOS}, s{t2}")
    a(f"s_add_u32 s{sOL}, s{t2}, {WOB}")
    a(f"s_mov_b32 s{sIT}, 0")
    a("s_waitcnt vmcnt(0)")
    a("s_setprio 2")
    gbar(a, "L_g5", 4)
    stamp(a, "woland")
    for ks in range(28): wread(ks)
    a("s_waitcnt lgkmcnt(0)")
    gbar(a, "L_g6", 5)
    a.lab("L_tile")
    poll(a, "L_f2", F2A, rBR)
    stamp(a, "poll2")
    a(f"s_mov_b32 m0, s{sOL}")
    a(f"s_add_u32 s{t0}, s{sOS}, 4096")
    for i in range(4): a(f"buffer_load_dwordx4 v{L16}, {S4(rBR)}, s{sOS} offen offset:{1024*i} sc1 lds")
    a(f"s_add_u32 m0, s{sOL}, 4096")
    a(f"s_cmp_eq_u32 s{sIT}, 0")
    for i in range(3): a(f"buffer_load_dwordx4 v{L16}, {S4(rBR)}, s{t0} offen offset:{1024*i} sc1 lds")
    a("s_waitcnt vmcnt(0)")
    stamp(a, "oown")
    a("s_cbranch_scc1 L_g7")
    a("s_barrier")
    a.lab("L_g7done")
    stamp(a, "oland")
    ACC3 = 216; OB = 176; NB = 10; PK = 232
    lg = []
    def oread(ks):
        kind, hd = steps[ks][2]
        d = OB + 4 * (ks % NB)
        if kind == "A": a(f"ds_read_b128 {vr(d,4)}, v{OA} offset:{hd*1792}"); lg.append(ks)
        elif kind == "B": a(f"ds_read_b128 {vr(d,4)}, v{OA+1} offset:{hd*1792+1024}"); lg.append(ks)
        else:
            for aa in range(2):
                a(f"ds_read_b64 {vr(d+2*aa,2)}, v{OA+2} offset:{(hd+aa)*1792+1536}"); lg.append(ks)
    for ks in range(NB): oread(ks)
    for ks in range(28):
        out = sum(1 for k in lg if k > ks)
        assert out < 16
        a(f"s_waitcnt lgkmcnt({out})")
        c = "0" if ks == 0 else vr(ACC3, 16)
        a(f"v_mfma_f32_32x32x16_bf16 {vr(ACC3,16)}, {vr(WB+4*ks,4)}, {vr(OB+4*(ks%NB),4)}, {c}")
        if ks + NB < 28: oread(ks + NB)
    stamp(a, "mf3")
    a(f"s_cmp_eq_u32 s{skq}, 3")
    a(f"s_cselect_b32 s{t1}, 0, -1")
    a("s_nop 10")
    for i in range(8): a(f"v_cvt_pk_bf16_f32 v{PK+i}, v{ACC3+2*i}, v{ACC3+2*i+1}")
    a(f"s_mov_b32 exec_hi, s{t1}")
    a(f"buffer_store_dwordx4 {vr(PK,4)}, v{OUTA}, {S4(rOUT)}, s{sOUTO} offen {OUTF}")
    a(f"buffer_store_dwordx4 {vr(PK+4,4)}, v{OUTA}, {S4(rOUT)}, s{sOUTO} offen offset:16 {OUTF}")
    a(f"s_mov_b32 exec_hi, -1")
    a(f"s_cmp_lg_u32 s{sIT}, 0")
    a("s_cbranch_scc1 L_fin")
    stamp(a, "tileA")
    a(f"s_mov_b32 s{sIT}, 1")
    a(f"s_add_u32 s{sOS}, s{sOS}, {4*28672}")
    a(f"s_add_u32 s{sOL}, s{sOL}, 28672")
    a(f"s_add_u32 s{sOUTO}, s{sOUTO}, {128*1792}")
    for i in range(3): a(f"v_add_u32 v{OA+i}, 28672, v{OA+i}")
    a(f"v_add_u32 v{F2A}, {64*F2SP}, v{F2A}")
    a("s_branch L_tile")
    a.lab("L_fin")
    if STAMP:
        a("s_waitcnt vmcnt(0)")
        a("s_memrealtime s[22:23]")
        a("s_memtime s[98:99]")
        a("s_waitcnt lgkmcnt(0)")
        a("s_mov_b64 exec, 1")
        a(f"s_mov_b32 s{rWS}, s20"); a(f"s_mov_b32 s{rWS+1}, s21"); a(f"s_mov_b32 s{rWS+2}, 0x10000000")
        a(f"s_lshl_b32 s{t1}, s2, 9")
        a(f"s_add_u32 s{t1}, s{t1}, {64<<20}")
        a(f"s_lshl_b32 s{t0}, s{sw}, 6")
        a(f"s_add_u32 s{t1}, s{t1}, s{t0}")
        for i, r in enumerate([RT, 22, 100, 98] + [80 + 2 * k for k in range(9)] + [sLOC]):
            a(f"v_mov_b32 v1, s{r}")
            a(f"buffer_store_dword v1, off, {S4(rWS)}, s{t1} offset:{4*i}")
    if DIAG:
        a("s_waitcnt vmcnt(0)")
        if DIAG == "end": a("s_memrealtime s[80:81]")
        if DIAG == "none": a(f"s_mov_b32 s80, s{NONCE}")
        if DIAG == "start": a(f"s_mov_b32 s80, s{RT}")
        a("s_waitcnt lgkmcnt(0)")
        a("s_add_u32 s80, s80, 6000")
        a.lab("L_diag")
        a("s_sleep 2")
        a("s_memrealtime s[82:83]")
        a("s_waitcnt lgkmcnt(0)")
        a("s_sub_u32 s82, s82, s80")
        a("s_cmp_lt_i32 s82, 0")
        a("s_cbranch_scc1 L_diag")
    if DBGST:
        a("s_waitcnt vmcnt(0)")
        a("s_memrealtime s[98:99]")
        a("s_waitcnt lgkmcnt(0)")
        a(f"s_cmp_lg_u32 s{sw}, 7")
        a("s_cbranch_scc1 L_end")
        a(f"s_not_b32 s{t0}, s{RT}")
        a(f"v_mov_b32 v1, s{t0}")
        for i, r in enumerate([RT] + [80 + 2 * k for k in range(9)] + [98]):
            a(f"v_writelane_b32 v1, s{r}, {i+1}")
        a("v_lshlrev_b32 v2, 2, v0")
        a("s_mov_b64 exec, 0xfff")
        a(f"buffer_atomic_umax v1, v2, {S4(rDBG)}, 0 offen offset:16 sc1")
    a.lab("L_end")
    a("s_endpgm")
    for tag, P_, va, off in tails:
        a.lab(f"L_wt{tag}")
        a(f"buffer_store_dwordx4 {vr(P_,4)}, v{va}, {S4(rWS)}, s{t1} offen offset:{off} sc1")
        a(f"buffer_store_dwordx4 {vr(P_+4,4)}, v{va}, {S4(rWS)}, s{t1} offen offset:{off+1024} sc1")
        a(f"s_branch L_st{tag}")
    if DIAG:
        a.lab("L_fin1")
        a("s_barrier")
        a("s_branch L_fin")
    for name, target in slow:
        a.lab(f"{name}_slow")
        lwait(a, name, 0, target, 1)
        a(f"s_branch {name}_back")
    a.lab("L_prio1")
    a("s_setprio 1")
    a("s_branch L_prio0")
    a.lab("L_g7")
    gbar(a, "L_g7b", 6)
    stamp(a, "aland")
    lwait(a, "L_h4", 4, 12, 4)
    a("s_setprio 0")
    a("s_branch L_g7done")
    a.lab("L_f1wt")
    a(f"buffer_store_dwordx2 {vr(NV,2)}, off, {S4(rWS)}, s{sF1O} sc1")
    a("s_branch L_f1st")
    a.lab("L_nonce_retry")
    a(f"buffer_load_dwordx2 {vr(NV,2)}, off, {S4(rDBG)}, s{sDL} sc1")
    a(f"s_sub_u32 s{t3}, s{t3}, 1")
    a("s_cbranch_scc1 L_end")
    a("s_waitcnt vmcnt(0)")
    a("s_branch L_nonce")
    a.lab("L_fallback")
    QO = Q[3]; S0 = SB[0]; K0 = KB[0]; V0 = VB[0]; M = T + 2
    a("s_waitcnt vmcnt(0)")
    a(f"s_mov_b32 s{sGB}, 1")
    a("s_mov_b32 exec_lo, 0")
    a(f"v_mov_b32 v{QO+6}, 0")
    a("s_mov_b32 exec_lo, -1")
    for r in range(16): a(f"v_mov_b32 v{OO+r}, 0")
    a(f"v_mov_b32 v{M}, 0xff7fffff")
    a(f"s_mov_b32 s{sKVO}, 0")
    a.lab("L_fb_loop")
    a(f"buffer_load_dwordx4 {vr(K0,4)}, v{L16}, {S4(rKV)}, s{sKVO} offen sc1")
    a(f"buffer_load_dwordx4 {vr(K0+4,4)}, v{L16}, {S4(rKV)}, s{sKVO} offen offset:1024 sc1")
    a(f"buffer_load_dwordx4 {vr(V0,4)}, v{L16}, {S4(rKV)}, s{sKVO} offen offset:2048 sc1")
    a(f"buffer_load_dwordx4 {vr(V0+4,4)}, v{L16}, {S4(rKV)}, s{sKVO} offen offset:3072 sc1")
    a("s_waitcnt vmcnt(0)")
    a(f"v_mfma_f32_32x32x16_bf16 {vr(S0,16)}, {vr(K0,4)}, {vr(QO,4)}, 0")
    a(f"v_mfma_f32_32x32x16_bf16 {vr(S0,16)}, {vr(K0+4,4)}, {vr(QO+4,4)}, {vr(S0,16)}")
    a("s_nop 15")
    a(f"v_max3_f32 v{T}, v{M}, v{S0}, v{S0+1}")
    for i in range(2, 16, 2): a(f"v_max3_f32 v{T}, v{T}, v{S0+i}, v{S0+i+1}")
    a(f"v_mov_b32 v{T+1}, v{T}")
    a("s_nop 1")
    a(f"v_permlane32_swap_b32 v{T}, v{T+1}")
    a(f"v_max_f32 v{T}, v{T}, v{T+1}")
    a(f"v_sub_f32 v{T+1}, v{M}, v{T}")
    a(f"v_exp_f32 v{T+1}, v{T+1}")
    a(f"v_mov_b32 v{M}, v{T}")
    for r in range(16): a(f"v_sub_f32 v{S0+r}, v{S0+r}, v{T}")
    for r in range(16): a(f"v_exp_f32 v{S0+r}, v{S0+r}")
    for r in range(16): a(f"v_mul_f32 v{OO+r}, v{OO+r}, v{T+1}")
    a("s_nop 1")
    a(f"v_smfmac_f32_32x32x32_bf16 {vr(OO,16)}, {vr(V0,4)}, {vr(S0,8)}, v{IDX}")
    a(f"v_smfmac_f32_32x32x32_bf16 {vr(OO,16)}, {vr(V0+4,4)}, {vr(S0+8,8)}, v{IDX}")
    a(f"s_add_u32 s{sKVO}, s{sKVO}, 4096")
    a(f"s_cmp_lt_u32 s{sKVO}, 262144")
    a("s_nop 15")
    a("s_cbranch_scc1 L_fb_loop")
    a(f"v_mov_b32 v{T}, v{OO+12}")
    a(f"v_mov_b32 v{T+1}, v{OO+12}")
    a("s_nop 1")
    a(f"v_permlane32_swap_b32 v{T}, v{T+1}")
    a("s_branch L_norm")
    a.lab("L_code_end")
    a("s_endpgm")
    kd = f""".section .rodata,"a"
.p2align 6
.amdhsa_kernel {n}
  .amdhsa_next_free_vgpr 256
  .amdhsa_next_free_sgpr 102
  .amdhsa_accum_offset 256
  .amdhsa_group_segment_fixed_size 0
  .amdhsa_kernarg_size 72
  .amdhsa_user_sgpr_count 2
  .amdhsa_user_sgpr_kernarg_segment_ptr 1
  .amdhsa_system_sgpr_workgroup_id_x 1
.end_amdhsa_kernel
"""
    return a.text() + kd

tails = []
hdr = f"""; @launch grid=(256,1,1) block=(512,1,1) lds={LDS}
.amdgcn_target "amdgcn-amd-amdhsa--gfx950"
.text
"""
open(sys.argv[1] if len(sys.argv) > 1 else "v6.s", "w").write(hdr + gen())
```

```python
import sys, os, struct, math
NAME = "concat_heads__softmax_full_mha__softmax_full_mha__prompt"
def f2u(x): return struct.unpack("<I", struct.pack("<f", x))[0]
CSCALE = f2u(28 ** -0.5 * math.log2(math.e))
E = os.environ.get
STAMP = E("STAMP", "0") in ("1", "3")
RTS = E("STAMP", "0") == "3"
DBGST = E("STAMP", "0") == "2"
DIAG = E("DIAG", "")
STL = E("STL", "c0,p1end,ack1,poll1,loop0,loop1,flag2,poll2,oland").split(",")
INIT = int(E("INIT", "2"))
DIST = int(E("DIST", "2"))
DPOS = E("DPOS", "mid")
F2SP = int(E("F2SP", "32"))
FORCEFB = E("FORCEFB", "0") == "1"
LOCAL = E("LOCAL", "1") == "1"
PRET = int(E("PRET", "3"))
SLEEP = int(E("SLEEP", "0"))
WBL2 = E("WBL2", "0")
OUTF = E("OUTF", "")
ROTA, ROTB, ROTC, ROTN, ROTS = [int(v) for v in E("ROTP", "1,1,2,7,1").split(",")]

X_KV = 0; X_QF = 1 << 20; X_F1 = 3 << 19
B_BASE = 16 << 20; B_F2 = 1835008
STAGE = 40960; XOFF = 24576
WOB = 0; PB0 = 40960; QX = 90112; PB1 = 113664; LDS = 163840; GBC = 163824
LAG = E("LAG", "q")
W7 = E("W7", "1") == "1"
PRIO = int(E("PRIO", "1"))
WOFL = int(E("WOFL", "2"))
CPF = int(E("CPF", "1"))
NOWN = int(E("NOWN", "4"))
PTPOS = int(E("PTPOS", "4"))
NPOS = int(E("NPOS", "3"))
SCHED = [int(v) for v in E("SCHED", "3,4,5,6,6,6,6").split(",")]
SPIN = 1 << 22

class A:
    def __init__(self):
        self.l = []; self.vm = []; self.done = 0
    def __call__(self, s): self.l.append("    " + s)
    def lab(self, s): self.l.append(s + ":")
    def raw(self, s): self.l.append(s)
    def text(self): return "\n".join(self.l) + "\n"
    def vreset(self): self.vm = []; self.done = 0
    def vmem(self, s, tag=None):
        self(s); self.vm.append(tag)
    def vwait(self, tag, extra=""):
        idx = [i for i, t in enumerate(self.vm) if t == tag]
        assert idx, tag
        last = idx[-1] + 1
        if last <= self.done:
            if extra: self(f"s_waitcnt {extra}")
            return
        self.done = last
        n = len(self.vm) - last
        assert n < 64
        self(f"s_waitcnt vmcnt({n}) {extra}".rstrip())
    def vall(self, extra=""):
        self.done = len(self.vm); self(f"s_waitcnt vmcnt(0) {extra}".rstrip())

def vr(b, n): return f"v[{b}:{b+n-1}]"
def S4(b): return f"s[{b}:{b+3}]"
def S2(b): return f"s[{b}:{b+1}]"
def stamp(a, name):
    if DIAG == name:
        a("s_memrealtime s[80:81]")
    if STAMP and name in STL:
        i = STL.index(name)
        a(f"{'s_memrealtime' if RTS else 's_memtime'} s[{80+2*i}:{81+2*i}]")
    if DBGST and name in STL:
        i = STL.index(name)
        a(f"s_memrealtime s[{80+2*i}:{81+2*i}]")

rX, rW, rWS, rWO, rOUT, rDBG, rKV, rBR = 24, 28, 32, 36, 64, 68, 72, 12
XM = 4
sLOC = 6
sRT = 7
sOUTO = 8
sQT = 9
sF1O = 10
sQO = 11
sx, sidx, sb, srb, shalf, sXS, sw, shl, swp, sqb, sg, sWL, sXL, sWS_, stt, scg, skq, su = range(40, 58)
t0, t1, sDL, t2, sROT, t3 = 58, 59, 60, 61, 62, 63
NONCE = 76; RT = 78
sKVO, sWOS, sWOL, sOO, sF2O = 16, 17, 18, 19, 22
sGB = 23
KT = [24, 25, 26, 27, 28, 29, 30, 31, 43, 44, 45, 51, 52, 53, 54, 55]
L16, IDX, CA, F1A, ONE, TAU8, QW, QR, PW, PR, TAU = 1, 2, 3, 4, 5, 6, 7, 8, 11, 14, 15
T = 240
XD, WD, XA, WA1, NV, NA, PTA = 16, 18, 16, 20, 232, 234, 235
ACC = 32; FR = 128; P1 = 208
Q = [16, 24, 32, 40]; O = [48, 64, 80, 96]; SB = [112, 128, 144]; KB = [176, 184, 192, 200]; VB = [208, 216, 224, 232]

WA, OA, WO2, WOA, F2A, OUTA = 160, 168, 171, 172, 173, 174
def lwait(a, name, off, target, sleep=2):
    a(f"s_mov_b32 s{t3}, {SPIN}")
    a.lab(f"{name}_spin")
    a(f"ds_read_b32 v{T+13}, v{CA} offset:{off}")
    a(f"s_sub_u32 s{t3}, s{t3}, 1")
    a("s_cbranch_scc1 L_end")
    a("s_waitcnt lgkmcnt(0)")
    a(f"v_readfirstlane_b32 s{t2}, v{T+13}")
    a(f"s_cmp_ge_u32 s{t2}, {target}")
    a(f"s_cbranch_scc1 {name}_done")
    a(f"s_sleep {sleep}")
    a(f"s_branch {name}_spin")
    a.lab(f"{name}_done")
def arrive(a, off=0):
    a("s_mov_b64 exec, 1")
    a(f"ds_add_u32 v{CA}, v{ONE} offset:{off}")
    a("s_mov_b64 exec, -1")
slow = []
def lpre(a): a(f"ds_read_b32 v{T+13}, v{CA}")
def lcheck(a, name, target):
    a("s_waitcnt lgkmcnt(0)")
    a(f"v_readfirstlane_b32 s{t2}, v{T+13}")
    a(f"s_cmp_ge_u32 s{t2}, {target}")
    a(f"s_cbranch_scc0 {name}_slow")
    a.lab(f"{name}_back")
    slow.append((name, target))

def poll(a, name, vaddr, srd):
    a(f"s_mov_b32 s{t3}, {SPIN}")
    if SLEEP: a(f"s_branch {name}_first")
    a.lab(f"{name}_spin")
    if SLEEP:
        a(f"s_sleep {SLEEP}")
        a.lab(f"{name}_first")
    a(f"buffer_load_dwordx2 {vr(T+14,2)}, v{vaddr}, {S4(srd)}, 0 offen sc1")
    a(f"s_sub_u32 s{t3}, s{t3}, 1")
    a("s_cbranch_scc1 L_end")
    a("s_waitcnt vmcnt(0)")
    a(f"v_cmp_ne_u64 vcc, {S2(NONCE)}, {vr(T+14,2)}")
    a(f"s_cbranch_vccnz {name}_spin")

def gbar(a, name, k):
    arrive(a)
    lwait(a, name, 0, 4 * k)

def gen():
    a = A(); n = NAME + "_kernel"
    u0, u1, u2, u3, u4 = T, T + 1, T + 2, T + 3, T + 4
    a.raw(f".globl {n}\n.p2align 8\n.type {n},@function")
    a.lab(n)
    a("s_cmp_ge_u32 s2, 256")
    a("s_cbranch_scc1 L_end")
    a("s_load_dwordx16 s[4:19], s[0:1], 0")
    a("s_load_dwordx2 s[20:21], s[0:1], 64")
    a(f"s_memrealtime {S2(RT)}")
    if STAMP: a("s_memtime s[100:101]")
    a(f"s_and_b32 s{sx}, s2, 7")
    a(f"s_lshr_b32 s{sidx}, s2, 3")
    a("v_lshrrev_b32 v1, 6, v0")
    a("v_and_b32 v0, 63, v0")
    a(f"v_readfirstlane_b32 s{sw}, v1")
    a(f"s_lshr_b32 s{sb}, s{sx}, 2")
    a(f"s_lshr_b32 s{srb}, s{sidx}, 1")
    a(f"s_and_b32 s{shalf}, s{sidx}, 1")
    a(f"s_cmp_ge_u32 s{sw}, 4")
    a("s_cbranch_scc1 L_comp")
    def stamp_init():
        if DIAG: a(f"s_mov_b32 s80, s{RT}")
        if STAMP:
            for k in range(9): a(f"s_mov_b32 s{80+2*k}, s{RT if RTS else 100}")
    def descriptors():
        a(f"s_cmp_eq_u32 s{sb}, 0")
        a(f"s_cselect_b32 s{rWO}, s8, s14")
        a(f"s_cselect_b32 s{rWO+1}, s9, s15")
        a(f"s_mov_b32 s{rWO+2}, 401408")
        a(f"s_mov_b32 s{rWO+3}, 0x00020000")
        a(f"s_mov_b32 s{rOUT}, s16"); a(f"s_mov_b32 s{rOUT+1}, s17"); a(f"s_mov_b32 s{rOUT+2}, {2048*896*2}"); a(f"s_mov_b32 s{rOUT+3}, 0x00020000")
        a(f"s_lshl_b32 s{t2}, s{sx}, 21")
        a(f"s_add_u32 s{rWS}, s20, s{t2}")
        a(f"s_addc_u32 s{rWS+1}, s21, 0")
        a(f"s_mov_b32 s{rWS+2}, {2<<20}")
        a(f"s_mov_b32 s{rWS+3}, 0x00020000")
        a(f"s_lshl_b32 s{t2}, s{sb}, 21")
        a(f"s_add_u32 s{t2}, s{t2}, {B_BASE}")
        a(f"s_add_u32 s{rBR}, s20, s{t2}")
        a(f"s_addc_u32 s{rBR+1}, s21, 0")
        a(f"s_mov_b32 s{rBR+2}, {2<<20}")
        a(f"s_mov_b32 s{rBR+3}, 0x00020000")
        a(f"s_and_b32 s{shl}, s{sidx}, 3")
        a(f"s_lshl_b32 s{t2}, s{shl}, 18")
        a(f"s_add_u32 s{rKV}, s{rWS}, s{t2}")
        a(f"s_addc_u32 s{rKV+1}, s{rWS+1}, 0")
        a(f"s_mov_b32 s{rKV+2}, 262144")
        a(f"s_mov_b32 s{rKV+3}, 0x00020000")
    def dbg_desc():
        a(f"s_mov_b32 s{rDBG}, s18"); a(f"s_mov_b32 s{rDBG+1}, s19"); a(f"s_mov_b32 s{rDBG+2}, 256"); a(f"s_mov_b32 s{rDBG+3}, 0x00020000")
        a(f"s_lshl_b32 s{sDL}, s{sb}, 3")
    def regcode(d):
        a(f"s_getreg_b32 s{d}, hwreg(HW_REG_XCC_ID)")
        a(f"s_and_b32 s{d}, s{d}, 15")
        a(f"s_lshl_b32 s{t0}, s{sx}, 4")
        a(f"s_or_b32 s{d}, s{d}, s{t0}")
        a(f"s_or_b32 s{d}, s{d}, 0x80")
        a(f"s_and_b32 s{t1}, s{sx}, 3")
        a(f"s_lshl_b32 s{t1}, s{t1}, 5")
        a(f"s_add_u32 s{t1}, s{t1}, 128")
    def ids2a(g):
        a(f"s_lshr_b32 s{sqb}, s{sidx}, 2")
        a(f"s_mov_b32 s{sg}, {g}")
        a(f"s_and_b32 s{skq}, s{sw}, 3")
        a(f"s_lshl_b32 s{sQT}, s{sqb}, 3")
        a(f"s_add_u32 s{sQT}, s{sQT}, s{sw}")
        a(f"s_lshl_b32 s{sKVO}, s{skq}, 16")
        a(f"s_lshl_b32 s{sQO}, s{shl}, 6")
        a(f"s_add_u32 s{sQO}, s{sQO}, s{sQT}")
        a(f"s_lshl_b32 s{sQO}, s{sQO}, 11")
        a(f"s_add_u32 s{sQO}, s{sQO}, {X_QF}")
        a(f"s_lshr_b32 s{t0}, s{shl}, 1")
        a(f"s_add_u32 s{t3}, s{t0}, 2")
        a(f"v_and_b32 v{u0}, 15, v0")
        a(f"s_lshl_b32 s{t2}, s{skq}, 4")
        a(f"v_add_u32 v{u0}, s{t2}, v{u0}")
        a(f"v_mov_b32 v{u1}, s{shl}")
        a("s_mov_b32 exec_lo, 0xffff0000")
        a(f"v_mov_b32 v{u1}, s{t3}")
        a("s_mov_b32 exec_lo, 0")
        a(f"v_mov_b32 v{u1}, s{t0}")
        a(f"v_mov_b32 v{u0}, s{sQT}")
        a("s_mov_b32 exec_lo, -1")
        a(f"v_lshlrev_b32 v{u1}, 11, v{u1}")
        a(f"v_lshrrev_b32 v{u3}, 2, v{u0}")
        a(f"v_lshl_add_u32 v{u1}, v{u3}, 7, v{u1}")
        a(f"v_and_b32 v{u0}, 2, v{u0}")
        a(f"v_lshl_add_u32 v{u0}, v{u0}, 2, v{u1}")
        a(f"v_add_u32 v{F1A}, {X_F1}, v{u0}")
    def ids2b(g):
        a(f"v_and_b32 v{u0}, 0x33, v0")
        a(f"v_bfe_u32 v{u1}, v0, 2, 1")
        a(f"v_lshl_add_u32 v{u0}, v{u1}, 3, v{u0}")
        a(f"v_bfe_u32 v{u1}, v0, 3, 1")
        a(f"v_lshl_add_u32 v{u0}, v{u1}, 2, v{u0}")
        a(f"v_lshlrev_b32 v{TAU}, 4, v{u0}")
        a(f"v_lshlrev_b32 v{TAU8}, 3, v{u0}")
        a(f"v_lshlrev_b32 v{L16}, 4, v0")
        a(f"v_mov_b32 v{IDX}, 0xdddddddd")
        pb = PB1 if g else PB0; qx = QX + 8192 * g
        a(f"s_lshl_b32 s{t1}, s{skq}, 11")
        a(f"s_add_u32 s{t1}, s{t1}, {qx}")
        a(f"v_add_u32 v{QW}, s{t1}, v{L16}")
        a(f"s_mul_i32 s{t1}, s{skq}, 12288")
        a(f"s_add_u32 s{t1}, s{t1}, {pb}")
        a(f"v_add_u32 v{PR}, s{t1}, v{L16}")
        for i in range(3):
            a(f"s_add_u32 s{t0}, s{skq}, {1+i}")
            a(f"s_and_b32 s{t0}, s{t0}, 3")
            a(f"s_lshl_b32 s{t1}, s{t0}, 11")
            a(f"s_add_u32 s{t1}, s{t1}, {qx}")
            a(f"v_add_u32 v{QR+i}, s{t1}, v{L16}")
            a(f"s_mul_i32 s{t1}, s{t0}, 12288")
            a(f"s_add_u32 s{t1}, s{t1}, {pb + 4096*i}")
            a(f"v_add_u32 v{PW+i}, s{t1}, v{L16}")
        a(f"v_mov_b32 v{CA}, {GBC + 4*g}")
        a(f"v_mov_b32 v{ONE}, 1")
        a(f"s_and_b32 s{t0}, s{sx}, 3")
        a(f"s_lshl_b32 s{t0}, s{t0}, 2")
        a(f"s_add_u32 s{t0}, s{t0}, s{shl}")
        a(f"s_lshl_b32 s{t1}, s{sQT}, 4")
        a(f"s_add_u32 s{t1}, s{t1}, s{t0}")
        a(f"s_mul_i32 s{sOO}, s{t1}, 1792")
        a(f"s_mul_i32 s{sF2O}, s{t1}, {F2SP}")
        a(f"s_add_u32 s{sF2O}, s{sF2O}, {B_F2}")
    def pre2():
        for i in range(4):
            for r in range(16): a(f"v_mov_b32 v{O[i]+r}, 0")
        for k in range(16): a(f"s_add_u32 s{KT[k]}, s{sKVO}, {4096*k}")
    def nonce(tag):
        a(f"s_mov_b32 s{t3}, {SPIN}")
        a.lab(f"L_nonce{tag}")
        a(f"v_readfirstlane_b32 s{NONCE}, v{NV}")
        a(f"v_readfirstlane_b32 s{NONCE+1}, v{NV+1}")
        a(f"s_cmp_lg_u32 s{NONCE}, 0")
        a(f"s_cselect_b32 s{t2}, s{NONCE+1}, 0")
        a(f"s_cmp_lg_u32 s{t2}, 0")
        a(f"s_cbranch_scc0 L_nonce_retry{tag}")
    a(f"v_lshrrev_b32 v{u0}, 3, v0")
    a(f"v_lshrrev_b32 v{u1}, 4, v0")
    a(f"v_and_b32 v{u2}, 7, v0")
    a(f"s_lshl_b32 s{t0}, s{srb}, 7")
    a(f"s_lshl_b32 s{t1}, s{sw}, 5")
    a(f"s_add_u32 s{t0}, s{t0}, s{t1}")
    a(f"v_add_u32 v{u3}, s{t0}, v{u0}")
    a(f"v_mul_u32_u24 v{u3}, 896, v{u3}")
    a(f"v_xor_b32 v{u4}, v{u2}, v{u1}")
    a(f"v_lshl_add_u32 v{XD}, v{u4}, 4, v{u3}")
    a(f"v_xor_b32 v{XD+1}, 64, v{XD}")
    a(f"v_add_u32 v{XD+1}, 7168, v{XD+1}")
    a(f"s_and_b32 s{t2}, s{sx}, 3")
    a(f"s_mul_i32 s{t0}, s{t2}, 224")
    a(f"s_mul_i32 s{t1}, s{sw}, {16*2688}")
    a(f"s_add_u32 s{t0}, s{t0}, s{t1}")
    a(f"s_mul_i32 s{t1}, s{shalf}, 1792")
    a(f"s_add_u32 s{t1}, s{t1}, s{t0}")
    a(f"v_lshlrev_b32 v{u3}, 2, v{u1}")
    a(f"v_and_b32 v{u4}, 15, v0")
    a(f"v_xor_b32 v{u4}, v{u4}, v{u3}")
    a(f"v_min_u32 v{u4}, 13, v{u4}")
    a(f"v_mul_u32_u24 v{u1}, 2688, v{u1}")
    a(f"v_lshl_add_u32 v{u1}, v{u4}, 4, v{u1}")
    a(f"v_add_u32 v{WD}, s{t1}, v{u1}")
    a(f"s_mul_i32 s{t1}, s{shalf}, 112")
    a(f"s_add_u32 s{t1}, s{t1}, s{t0}")
    a(f"s_add_u32 s{t1}, s{t1}, 896")
    a(f"v_and_b32 v{u3}, 4, v{u3}")
    a(f"v_xor_b32 v{u2}, v{u2}, v{u3}")
    a(f"v_min_u32 v{u2}, 6, v{u2}")
    a(f"v_mul_u32_u24 v{u0}, 2688, v{u0}")
    a(f"v_lshl_add_u32 v{u0}, v{u2}, 4, v{u0}")
    a(f"v_add_u32 v{WD+1}, s{t1}, v{u0}")
    if ROTN > 1:
        a(f"s_mul_i32 s{sROT}, s{srb}, {ROTA}")
        a(f"s_mul_i32 s{t0}, s{shalf}, {ROTB}")
        a(f"s_add_u32 s{sROT}, s{sROT}, s{t0}")
        a(f"s_mul_i32 s{t2}, s{t2}, {ROTC}")
        a(f"s_add_u32 s{sROT}, s{sROT}, s{t2}")
        a(f"s_mul_i32 s{t2}, s{sROT}, {(65536 + ROTN - 1)//ROTN}")
        a(f"s_lshr_b32 s{t2}, s{t2}, 16")
        a(f"s_mul_i32 s{t2}, s{t2}, {ROTN}")
        a(f"s_sub_u32 s{sROT}, s{sROT}, s{t2}")
        if ROTS != 1: a(f"s_mul_i32 s{sROT}, s{sROT}, {ROTS}")
    else:
        a(f"s_mov_b32 s{sROT}, 0")
    assert (ROTN - 1) * ROTS < 7
    a(f"s_lshl_b32 s{sXL}, s{sw}, 12")
    a(f"s_add_u32 s{sXL}, s{sXL}, {XOFF}")
    a(f"s_mul_i32 s{sWL}, s{sw}, 6144")
    a(f"s_mov_b32 s{stt}, 0")
    a(f"s_mov_b32 s{rX+2}, 1835008")
    a(f"s_mov_b32 s{rX+3}, 0x00020000")
    a(f"s_mov_b32 s{rW+2}, 1204224")
    a(f"s_mov_b32 s{rW+3}, 0x00020000")
    a(f"s_cmp_eq_u32 s{sb}, 0")
    a("s_waitcnt lgkmcnt(0)")
    a(f"s_cselect_b32 s{rX}, s4, s10")
    a(f"s_cselect_b32 s{rX+1}, s5, s11")
    a(f"s_cselect_b32 s{rW}, s6, s12")
    a(f"s_cselect_b32 s{rW+1}, s7, s13")
    stamp_init()
    stamp(a, "karg")
    a.lab("L_ld")
    a(f"s_lshl_b32 s{sXS}, s{sROT}, 7")
    a(f"s_mul_i32 s{sWS_}, s{sROT}, 172032")
    seq = [("x", 0), ("w", 0), ("w", 2), ("x", 1), ("w", 1), ("x", 2), ("w", 3), ("w", 5), ("x", 3), ("w", 4)]
    for kind, i in seq:
        if kind == "x":
            a(f"s_add_u32 m0, s{sXL}, {1024*i}")
            a(f"s_add_u32 s{t0}, s{sXS}, {14336*(i//2)}")
            a(f"buffer_load_dwordx4 v{XD+(i&1)}, {S4(rX)}, s{t0} offen lds")
        else:
            G, q = divmod(i, 3)
            a(f"s_add_u32 m0, s{sWL}, {1024*i}")
            a(f"s_add_u32 s{t0}, s{sWS_}, {(8*G + (4*q if q < 2 else 0))*2688}")
            a(f"buffer_load_dwordx4 v{WD+(q==2)}, {S4(rW)}, s{t0} offen lds")
    a(f"s_add_u32 s{sROT}, s{sROT}, 1")
    a(f"s_cmp_eq_u32 s{sROT}, 7")
    a(f"s_cselect_b32 s{sROT}, 0, s{sROT}")
    a(f"s_cmp_ge_u32 s{sWL}, {2*STAGE}")
    a(f"s_mov_b32 s{t0}, {STAGE}")
    a(f"s_cselect_b32 s{t0}, {(-2*STAGE) & 0xffffffff:#x}, s{t0}")
    a(f"s_add_u32 s{sWL}, s{sWL}, s{t0}")
    a(f"s_add_u32 s{sXL}, s{sXL}, s{t0}")
    a(f"s_add_u32 s{stt}, s{stt}, 1")
    a(f"s_cmp_eq_u32 s{stt}, 1")
    a("s_cbranch_scc1 L_first")
    a(f"s_cmp_lt_u32 s{stt}, 7")
    a("s_waitcnt vmcnt(10)")
    a("s_barrier")
    a("s_cbranch_scc1 L_ld")
    descriptors()
    dbg_desc()
    ids2a(0)
    a(f"s_lshl_b32 s{t0}, s{shl}, 18")
    a(f"s_add_u32 s{t0}, s{t0}, s{sKVO}")
    a(f"s_lshl_b32 s{t1}, s{sqb}, 7")
    a(f"s_add_u32 s{t0}, s{t0}, s{t1}")
    a(f"v_subrev_u32 v{u0}, 32, v0")
    a(f"v_lshlrev_b32 v{u0}, 10, v{u0}")
    a(f"v_add_u32 v{PTA}, s{t0}, v{u0}")
    a("s_mov_b32 exec_hi, 0")
    a(f"v_and_b32 v{u0}, 15, v0")
    a(f"v_lshlrev_b32 v{u0}, 7, v{u0}")
    a(f"v_bfe_u32 v{u1}, v0, 4, 1")
    a(f"v_lshl_add_u32 v{u0}, v{u1}, 13, v{u0}")
    a(f"v_add_u32 v{PTA}, s{sQO}, v{u0}")
    a("s_mov_b32 exec_hi, -1")
    a(f"buffer_load_dwordx2 {vr(NV,2)}, off, {S4(rDBG)}, s{sDL} sc1")
    a(f"buffer_load_dword v{T+9}, v{F1A}, {S4(rWS)}, 0 offen sc1")
    a(f"s_mov_b32 exec_hi, {(1 << (4*PRET)) - 1:#x}")
    a(f"buffer_load_dword v{T+8}, v{PTA}, {S4(rWS)}, 0 offen sc1")
    a("s_mov_b32 exec_hi, -1")
    a("s_waitcnt vmcnt(3)")
    a("s_barrier")
    stamp(a, "lb6")
    ids2b(0)
    a(f"v_lshrrev_b32 v{u2}, 5, v0")
    a(f"s_mul_i32 s{t1}, s{shl}, 224")
    for j, d in ((0, WOA), (4, WO2)):
        a(f"s_add_u32 s{t0}, s{skq}, {j}")
        a(f"s_min_u32 s{t0}, s{t0}, 6")
        a(f"s_lshl_b32 s{t0}, s{t0}, 6")
        a(f"v_add_u32 v{u0}, s{t0}, v0")
        a(f"v_mul_u32_u24 v{u1}, 4682, v{u0}")
        a(f"v_lshrrev_b32 v{u1}, 16, v{u1}")
        a(f"v_mul_u32_u24 v{u3}, 14, v{u1}")
        a(f"v_sub_u32 v{u0}, v{u0}, v{u3}")
        a(f"v_and_b32 v{u3}, 24, v{u1}")
        a(f"v_and_b32 v{u4}, 1, v{u1}")
        a(f"v_lshl_add_u32 v{u3}, v{u4}, 2, v{u3}")
        a(f"v_bfe_u32 v{u4}, v{u1}, 1, 2")
        a(f"v_add_u32 v{u3}, v{u3}, v{u4}")
        a(f"v_mul_u32_u24 v{u3}, 896, v{u3}")
        a(f"v_lshl_add_u32 v{u3}, v{u0}, 4, v{u3}")
        a(f"v_add_u32 v{d}, s{t1}, v{u3}")
    a(f"v_bfe_u32 v{u0}, v0, 2, 2")
    a(f"v_mul_u32_u24 v{u1}, 448, v{u0}")
    a(f"s_lshl_b32 s{t0}, s{skq}, 6")
    a(f"s_add_u32 s{t0}, s{t0}, {WOB}")
    a(f"v_add_u32 v{u1}, s{t0}, v{u1}")
    a(f"v_and_b32 v{u0}, 1, v0")
    a(f"v_lshl_add_u32 v{u1}, v{u0}, 5, v{u1}")
    a(f"v_bfe_u32 v{u0}, v0, 4, 1")
    a(f"v_lshl_add_u32 v{u1}, v{u0}, 4, v{u1}")
    a(f"v_bfe_u32 v{u0}, v0, 1, 1")
    a(f"v_lshl_add_u32 v{u1}, v{u0}, 3, v{u1}")
    HSTEP = [1, 7, 25, 56]
    for t in range(4):
        a(f"v_mul_u32_u24 v{u0}, {HSTEP[t]*224}, v{u2}")
        a(f"v_add_u32 v{WA+t}, v{u1}, v{u0}")
        a(f"v_add_u32 v{WA+4+t}, 50176, v{WA+t}")
    a(f"s_and_b32 s{t0}, s{sx}, 3")
    a(f"s_lshl_b32 s{t0}, s{t0}, 4")
    a(f"s_and_b32 s{t2}, s{sqb}, 4")
    a(f"s_add_u32 s{t0}, s{t0}, s{t2}")
    a(f"s_add_u32 s{sRT}, s{t0}, s{sqb}")
    a(f"v_add_u32 v{OA}, {WOB}, v{L16}")
    a(f"v_and_b32 v{u0}, 31, v0")
    a(f"v_mul_u32_u24 v{u1}, 1792, v{u2}")
    a(f"v_lshl_add_u32 v{u1}, v{u0}, 4, v{u1}")
    a(f"v_add_u32 v{OA+1}, {WOB}, v{u1}")
    a(f"v_mul_u32_u24 v{u1}, 3584, v{u2}")
    a(f"v_lshl_add_u32 v{u1}, v{u0}, 3, v{u1}")
    a(f"v_add_u32 v{OA+2}, {WOB}, v{u1}")
    a(f"s_lshl_b32 s{t0}, s{sRT}, 5")
    a(f"v_add_u32 v{u0}, s{t0}, v{u0}")
    a(f"v_mul_u32_u24 v{u0}, 1792, v{u0}")
    a(f"v_lshl_add_u32 v{OUTA}, v{u2}, 5, v{u0}")
    a(f"s_mul_i32 s{sOUTO}, s{sb}, 896")
    a(f"s_add_u32 s{sOUTO}, s{sOUTO}, s{t1}")
    a(f"s_lshl_b32 s{t1}, s{skq}, 6")
    a(f"s_add_u32 s{sOUTO}, s{sOUTO}, s{t1}")
    a(f"s_lshl_b32 s{t0}, s{sRT}, 4")
    a(f"s_lshl_b32 s{t1}, s{skq}, 2")
    a(f"s_add_u32 s{t0}, s{t0}, s{t1}")
    a(f"v_and_b32 v{u0}, 3, v0")
    a(f"v_add_u32 v{u0}, s{t0}, v{u0}")
    a(f"v_mul_u32_u24 v{u0}, {F2SP}, v{u0}")
    a(f"v_add_u32 v{F2A}, {B_F2}, v{u0}")
    pre2()
    a("s_waitcnt vmcnt(2)")
    nonce("L")
    a("s_setprio 2")
    stamp(a, "lready")
    a("s_branch L_ph2")
    a.lab("L_first")
    stamp(a, "iss0")
    dbg_desc()
    a(f"s_cmp_eq_u32 s{sw}, 1")
    a("s_cbranch_scc1 L_prop")
    a(f"s_cmp_eq_u32 s{sw}, 2")
    a("s_cbranch_scc1 L_cpf")
    a(f"s_cmp_lg_u32 s{sw}, 0")
    a("s_cbranch_scc1 L_ld")
    regcode(t2)
    a(f"v_mov_b32 v{NV}, s{t2}")
    a(f"s_add_u32 s{t2}, s{t1}, s{sidx}")
    a("s_mov_b64 exec, 1")
    a(f"buffer_store_byte v{NV}, off, {S4(rDBG)}, s{t2}")
    a("s_mov_b64 exec, -1")
    a("s_branch L_ld")
    a.lab("L_prop")
    a(f"s_cmp_lg_u32 s{sidx}, 0")
    a("s_cbranch_scc1 L_ld")
    a(f"s_or_b32 s{t0}, s{RT}, 1")
    a(f"s_or_b32 s{t2}, s{RT+1}, 1")
    a(f"v_mov_b32 v236, s{t0}")
    a(f"v_mov_b32 v237, s{t2}")
    a("v_mov_b32 v238, 0")
    a("v_mov_b32 v239, 0")
    a("s_mov_b64 exec, 1")
    a(f"buffer_atomic_cmpswap_x2 v[236:239], off, {S4(rDBG)}, s{sDL} sc1")
    a("s_mov_b64 exec, -1")
    a("s_branch L_ld")
    a.lab("L_cpf")
    if CPF:
        a(f"s_sub_u32 s{t0}, s{sidx}, 1")
        a(f"s_cmp_ge_u32 s{t0}, 3")
        a("s_cbranch_scc1 L_ld")
        a(f"s_getpc_b64 {S2(NONCE)}")
        a.lab("L_pc")
        a(f"s_lshl_b32 s{t0}, s{t0}, 13")
        a(f"v_lshlrev_b32 v{u0}, 7, v0")
        a(f"v_add_u32 v{u0}, s{t0}, v{u0}")
        a(f"v_min_u32 v{u0}, L_code_end-L_pc-4, v{u0}")
        a(f"v_mov_b32 v{u1}, s{NONCE+1}")
        a(f"v_add_co_u32 v{u0}, vcc, s{NONCE}, v{u0}")
        a("s_nop 1")
        a(f"v_addc_co_u32 v{u1}, vcc, 0, v{u1}, vcc")
        a(f"global_load_dword v{T+10}, {vr(u0,2)}, off")
    a("s_branch L_ld")
    a.lab("L_comp")
    a("s_setprio 3")
    a(f"s_and_b32 s{stt}, s{sw}, 1")
    a(f"s_bfe_u32 s{scg}, s{sw}, 0x10001")
    a(f"v_and_b32 v{u0}, 31, v0")
    a(f"v_bfe_u32 v{u1}, v0, 1, 3")
    a(f"v_lshrrev_b32 v{u2}, 5, v0")
    a(f"v_xor_b32 v{u1}, v{u1}, v{u2}")
    a(f"v_lshlrev_b32 v{u1}, 4, v{u1}")
    a(f"v_lshl_add_u32 v{u1}, v{u0}, 7, v{u1}")
    a(f"s_lshl_b32 s{t0}, s{stt}, 13")
    a(f"s_add_u32 s{t0}, s{t0}, {XOFF}")
    for ks in range(4):
        a(f"v_xor_b32 v{XA+ks}, {32*ks}, v{u1}")
        a(f"v_add_u32 v{XA+ks}, s{t0}, v{XA+ks}")
    a(f"v_bfe_u32 v{u0}, v0, 4, 1")
    a(f"v_and_b32 v{u1}, 3, v0")
    a(f"v_lshlrev_b32 v{u1}, 3, v{u1}")
    a(f"v_lshl_add_u32 v{u0}, v{u0}, 5, v{u1}")
    a(f"v_bfe_u32 v{u1}, v0, 2, 2")
    a(f"v_mul_u32_u24 v{u2}, 3072, v{u2}")
    a(f"v_lshl_add_u32 v{u3}, v{u1}, 8, v{u2}")
    a(f"v_lshlrev_b32 v{u4}, 6, v{u1}")
    a(f"s_mul_i32 s{t0}, s{scg}, 112")
    for c in range(2):
        a(f"v_add_u32 v{WA1+c}, s{t0}, v{u0}")
        if c: a(f"v_add_u32 v{WA1+c}, 56, v{WA1+c}")
        a(f"v_xor_b32 v{WA1+c}, v{WA1+c}, v{u4}")
        a(f"v_add_u32 v{WA1+c}, v{WA1+c}, v{u3}")
    a(f"v_lshl_add_u32 v{u3}, v{u1}, 7, v{u2}")
    a(f"v_lshlrev_b32 v{u4}, 5, v{u1}")
    a(f"v_and_b32 v{u4}, 64, v{u4}")
    a(f"s_mul_i32 s{t0}, s{scg}, 56")
    a(f"v_add_u32 v{WA1+2}, s{t0}, v{u0}")
    a(f"v_xor_b32 v{WA1+2}, v{WA1+2}, v{u4}")
    a(f"v_add_u32 v{WA1+2}, v{WA1+2}, v{u3}")
    for r in range(96): a(f"v_mov_b32 v{ACC+r}, 0")
    for r in range(20): a(f"v_mov_b32 v{FR+60+r}, 0")
    a(f"v_mov_b32 v{u0}, {GBC}")
    a(f"ds_write_b128 v{u0}, {vr(ACC,4)}")
    a("s_waitcnt lgkmcnt(0)")
    stamp_init()
    descriptors()
    dbg_desc()
    regcode(XM)
    a(f"s_mul_i32 s{XM}, s{XM}, 0x01010101")
    a(f"s_mov_b32 s{XM+1}, s{XM}")
    a(f"v_and_b32 v{NA}, 3, v0")
    a(f"v_lshlrev_b32 v{NA}, 3, v{NA}")
    a(f"v_add_u32 v{NA}, s{t1}, v{NA}")
    a("s_mov_b64 exec, 1")
    a(f"v_mov_b32 v{NA}, s{sDL}")
    a("s_mov_b64 exec, -1")
    ids2a(1)
    ids2b(1)
    sE0, sE2, sDLT, sCNT = sXS, sWS_, sWL, sXL
    a(f"s_lshl_b32 s{su}, s{shalf}, 1")
    a(f"s_add_u32 s{su}, s{su}, s{scg}")
    a(f"s_lshl_b32 s{sF1O}, s{su}, 4")
    a(f"s_add_u32 s{sF1O}, s{sF1O}, s{srb}")
    a(f"s_lshl_b32 s{sF1O}, s{sF1O}, 7")
    a(f"s_lshl_b32 s{t0}, s{stt}, 3")
    a(f"s_add_u32 s{sF1O}, s{sF1O}, s{t0}")
    a(f"s_add_u32 s{sF1O}, s{sF1O}, {X_F1}")
    a(f"s_lshl_b32 s{t0}, s{srb}, 1")
    a(f"s_add_u32 s{t0}, s{t0}, s{stt}")
    a(f"s_lshl_b32 s{t0}, s{t0}, 1")
    a(f"s_lshl_b32 s{t1}, s{su}, 6")
    a(f"s_add_u32 s{t1}, s{t1}, s{t0}")
    a(f"s_lshl_b32 s{sE2}, s{t1}, 12")
    a(f"s_lshl_b32 s{t1}, s{scg}, 7")
    a(f"s_add_u32 s{sE0}, s{t1}, s{t0}")
    a(f"v_mov_b32 v{P1+22}, 0x3f80")
    a(f"v_mov_b32 v{P1+23}, 0")
    a(f"s_mov_b32 s{sCNT}, 0")
    a(f"s_mov_b32 s{sDLT}, 0")
    a(f"s_cmp_lg_u32 s{shalf}, 0")
    a("s_cbranch_scc1 P1_v1")
    def reads(ks):
        b = FR + 20 * ks
        out = [f"ds_read_b128 {vr(b+4*e,4)}, v{XA+ks} offset:{4096*e}" for e in range(2)]
        for c in range(3):
            for h in range(2):
                off = 6144 * ks + (1024 * h if c < 2 else 2048 + 512 * h)
                out.append(f"ds_read_b64_tr_b16 {vr(b+8+4*c+2*h,2)}, v{WA1+c} offset:{off}")
        return [out[0], out[2], out[3], out[1]] + out[4:]
    def mfma1(ks, e, c, ori):
        b = FR + 20 * ks
        x = vr(b + 4 * e, 4); w = vr(b + 8 + 4 * c, 4)
        p, q = (w, x) if ori[c] == 'n' else (x, w)
        d = vr(ACC + 16 * (2 * c + e), 16)
        return f"v_mfma_f32_32x32x16_bf16 {d}, {p}, {q}, {d}"
    for v, ori in enumerate(["nnn", "vvn"]):
        a.lab(f"P1_v{v}")
        if v == 0:
            a(f"s_lshl_b32 s{sE0}, s{sE0}, 11")
            a(f"s_add_u32 s{sE0}, s{sE0}, {X_QF}")
            for c in range(2):
                a(f"v_mov_b32 v{P1+8*c+6}, 0"); a(f"v_mov_b32 v{P1+8*c+7}, 0")
            a(f"s_mov_b32 s{scg}, {CSCALE:#x}")
        else:
            a(f"s_lshl_b32 s{sE0}, s{sE0}, 12")
            a(f"s_add_u32 s{sE0}, s{sE0}, 2048")
            a(f"v_and_b32 v{u0}, 31, v0")
            a(f"v_mov_b32 v{u1}, 0x3f803f80")
            a(f"v_cmp_eq_u32 vcc, 28, v{u0}")
            a("s_nop 1")
            a(f"v_cndmask_b32 v{P1}, 0, v{u1}, vcc")
            for r in range(1, 16): a(f"v_mov_b32 v{P1+r}, v{P1}")
        stamp(a, "setup")
        a.raw(".p2align 6")
        a.lab(f"P1_loop{v}")
        a("s_barrier")
        if STAMP or DIAG:
            for nm in STL + [DIAG]:
                if len(nm) == 2 and nm[0] == "c":
                    a(f"s_cmp_lg_u32 s{sCNT}, {int(nm[1])}")
                    a(f"s_cbranch_scc1 L_ns{v}{nm}")
                    stamp(a, nm)
                    a.lab(f"L_ns{v}{nm}")
        mm = [(e, c) for c in range(3) for e in range(2)]
        a(mfma1(3, 0, 0, ori))
        for i in range(7): a(f"v_add_u32 v{XA+i}, s{sDLT}, v{XA+i}")
        rd = reads(0) + reads(1)
        for j, (e, c) in enumerate(mm[1:]):
            n_ = 4 if j < 3 else 2
            for x in rd[:n_]: a(x)
            rd = rd[n_:]
            a(mfma1(3, e, c, ori))
        assert not rd
        a(f"s_add_u32 s{sCNT}, s{sCNT}, 1")
        a(f"s_mov_b32 s{sDLT}, {STAGE}")
        for ks in range(2):
            rd = reads(ks + 2)
            a("s_waitcnt lgkmcnt(8)")
            for j, (e, c) in enumerate(mm):
                a(mfma1(ks, e, c, ori))
                for x in rd[2*j:2*j+2]: a(x)
                if ks == 0 and j == 4:
                    a(f"s_cmp_eq_u32 s{sCNT}, 3")
                    a(f"s_cselect_b32 s{sDLT}, {(-2*STAGE) & 0xffffffff:#x}, s{sDLT}")
                    a(f"s_cmp_eq_u32 s{sCNT}, 6")
                    a(f"s_cselect_b32 s{sDLT}, {(-2*STAGE) & 0xffffffff:#x}, s{sDLT}")
                if ks == 1 and j == 4:
                    a(f"s_cmp_lg_u32 s{sCNT}, {NPOS+1}")
                    a(f"s_cbranch_scc1 L_nn{v}")
                    a(f"buffer_load_dwordx2 {vr(NV,2)}, v{NA}, {S4(rDBG)}, 0 offen sc1")
                    a.lab(f"L_nn{v}")
        a(f"s_cmp_eq_u32 s{sCNT}, 7")
        a("s_waitcnt lgkmcnt(8)")
        a(f"s_cbranch_scc1 P1_last{v}")
        for j, (e, c) in enumerate(mm[:5]): a(mfma1(2, e, c, ori))
        a("s_waitcnt lgkmcnt(0)")
        a(mfma1(2, *mm[5], ori))
        a(f"s_branch P1_loop{v}")
        a.lab(f"P1_last{v}")
        tiles = [(0, 2), (1, 2), (0, 0), (1, 0), (0, 1), (1, 1)]
        def st2(P, va, so, off, tag):
            a(f"s_cbranch_vccz L_wt{tag}")
            a(f"buffer_store_dwordx4 {vr(P,4)}, v{va}, {S4(rWS)}, s{so} offen offset:{off}")
            a(f"buffer_store_dwordx4 {vr(P+4,4)}, v{va}, {S4(rWS)}, s{so} offen offset:{off+1024}")
            a.lab(f"L_st{tag}")
            tails.append((tag, P, va, so, off))
        def epi(e, c):
            d = ACC + 16 * (2 * c + e)
            P = P1 + 8 * (2 if c == 2 else e)
            isq = (v == 0 and c < 2)
            if isq:
                for r in range(16): a(f"v_mul_f32 v{d+r}, s{scg}, v{d+r}")
            if ori[c] == 'n':
                for i in range(6): a(f"v_cvt_pk_bf16_f32 v{P+i}, v{d+2*i}, v{d+2*i+1}")
                a("s_mov_b32 exec_hi, 0")
                for i in range(6, 8): a(f"v_cvt_pk_bf16_f32 v{P+i}, v{d+2*i}, v{d+2*i+1}")
                a("s_mov_b32 exec_hi, -1")
            else:
                a(f"s_mov_b64 exec, {S2(t0)}")
                for i in range(8): a(f"v_cvt_pk_bf16_f32 v{P+i}, v{d+2*i}, v{d+2*i+1}")
                a("s_mov_b64 exec, -1")
            if isq:
                if c == 1 and e == 0: a(f"s_add_u32 s{sE0}, s{sE0}, {64*2048}")
                st2(P, TAU, sE0, 2048 * e, f"{v}{e}{c}")
            elif c == 2:
                if e == 1: a(f"s_add_u32 s{sE2}, s{sE2}, 4096")
                st2(P, TAU, sE2, 0, f"{v}{e}{c}")
            else:
                if (e, c) != (0, 0): a(f"s_add_u32 s{sE0}, s{sE0}, {4096 if e == 1 else 63*4096}")
                st2(P, L16, sE0, 0, f"{v}{e}{c}")
        a(mfma1(2, *tiles[0], ori))
        a(mfma1(2, *tiles[1], ori))
        a("s_waitcnt vmcnt(0) lgkmcnt(0)")
        a(mfma1(3, *tiles[0], ori))
        a(f"v_cmp_eq_u64 vcc, {S2(XM)}, {vr(NV,2)}")
        a(f"s_and_b32 s{t0}, vcc_lo, 0xf0")
        a(f"s_cmp_eq_u32 s{t0}, 0xf0")
        a(f"s_cselect_b32 s{sLOC}, {1 if LOCAL else 0}, 0")
        a(mfma1(3, *tiles[1], ori))
        a(f"s_cselect_b64 vcc, {-1 if LOCAL else 0}, 0")
        a(f"s_mov_b32 s{t0}, 0x0fffffff")
        a(f"s_mov_b32 s{t1}, 0x0fffffff")
        for k in (2, 3): a(mfma1(k, *tiles[2], ori))
        a("s_nop 1")
        for t_ in range(6):
            epi(*tiles[t_])
            if t_ + 3 < 6:
                for k in (2, 3): a(mfma1(k, *tiles[t_ + 3], ori))
            if t_ == 4: stamp(a, "p1end")
        if v == 0: a("s_branch P1_done")
    a.lab("P1_done")
    pre2()
    nonce("C")
    a("s_mov_b64 exec, 1")
    a(f"s_cmp_eq_u32 s{sLOC}, 0")
    a("s_waitcnt vmcnt(0)")
    a("s_cbranch_scc1 L_f1wt")
    a(f"buffer_store_dwordx2 {vr(NV,2)}, off, {S4(rWS)}, s{sF1O}")
    a.lab("L_f1st")
    a("s_mov_b64 exec, -1")
    a("s_setprio 1")
    stamp(a, "ack1")
    a.lab("L_ph2")
    a.vreset()
    poll(a, "L_f1", F1A, rWS)
    stamp(a, "poll1")
    def ldK(kt, f): a.vmem(f"buffer_load_dwordx4 {vr(KB[kt%4]+4*f,4)}, v{L16}, {S4(rKV)}, s{KT[kt]} offen offset:{1024*f} sc1", ("K", kt))
    def ldV(kt, f): a.vmem(f"buffer_load_dwordx4 {vr(VB[kt%4]+4*f,4)}, v{L16}, {S4(rKV)}, s{KT[kt]} offen offset:{2048+1024*f} sc1", ("V", kt))
    order = [(0, 3), (1, 3), (0, 0), (0, 1), (0, 2), (1, 0), (1, 1), (1, 2)]
    for k in range(2, 14):
        order += [(k, 0), (k, 1), (k, 2)] + ([(k, 3)] if k < 16 - NOWN else [])
    order += [(14, 0), (15, 0), (14, 1), (15, 1), (14, 2), (15, 2)] + [(k, 3) for k in range(16 - NOWN, 16)]
    assert sorted(order) == [(k, i) for k in range(16) for i in range(4)]
    NP = 64
    def qk(p):
        kt, i = order[p]
        s = SB[p % 3]; k = KB[kt % 4]
        return [f"v_mfma_f32_32x32x16_bf16 {vr(s,16)}, {vr(k,4)}, {vr(Q[i],4)}, 0",
                f"v_mfma_f32_32x32x16_bf16 {vr(s,16)}, {vr(k+4,4)}, {vr(Q[i]+4,4)}, {vr(s,16)}"]
    def pv(p):
        kt, i = order[p]
        s = SB[p % 3]; v = VB[kt % 4]
        return [f"v_smfmac_f32_32x32x32_bf16 {vr(O[i],16)}, {vr(v,4)}, {vr(s,8)}, v{IDX}",
                f"v_smfmac_f32_32x32x32_bf16 {vr(O[i],16)}, {vr(v+4,4)}, {vr(s+8,8)}, v{IDX}"]
    a.vmem(f"buffer_load_dwordx4 {vr(Q[3],4)}, v{L16}, {S4(rWS)}, s{sQO} offen sc1", "Q")
    ldK(0, 0)
    a.vmem(f"buffer_load_dwordx4 {vr(Q[3]+4,4)}, v{L16}, {S4(rWS)}, s{sQO} offen offset:1024 sc1", "Q")
    ldK(0, 1)
    a.vwait(("K", 0))
    stamp(a, "k0")
    for x in qk(0): a(x)
    a(f"ds_write_b128 v{QW}, {vr(Q[3],4)}")
    ldK(1, 0); ldK(1, 1); ldV(0, 0); ldV(0, 1)
    a("s_nop 6")
    s = SB[0]
    a(f"v_max3_f32 v{T}, v{s}, v{s+1}, v{s+2}")
    a(f"v_max3_f32 v{T+1}, v{s+3}, v{s+4}, v{s+5}")
    for i in range(6, 14, 4):
        a(f"v_max3_f32 v{T}, v{T}, v{s+i}, v{s+i+1}")
        a(f"v_max3_f32 v{T+1}, v{T+1}, v{s+i+2}, v{s+i+3}")
    a(f"v_max3_f32 v{T}, v{T}, v{s+14}, v{s+15}")
    a(f"v_max_f32 v{T}, v{T}, v{T+1}")
    a(f"v_mov_b32 v{T+1}, v{T}")
    a("s_nop 1")
    a(f"v_permlane32_swap_b32 v{T}, v{T+1}")
    a(f"v_max_f32 v{T}, v{T}, v{T+1}")
    if FORCEFB: a(f"v_add_f32 v{T}, 0x43480000, v{T}")
    a(f"v_xor_b32 v{T}, 0x80000000, v{T}")
    a("s_mov_b32 exec_lo, 0")
    a(f"v_lshrrev_b32 v{Q[3]+6}, 16, v{T}")
    a("s_mov_b32 exec_lo, -1")
    a(f"ds_write_b128 v{QW}, {vr(Q[3]+4,4)} offset:1024")
    arrive(a)
    for x in qk(0): a(x)
    ldV(1, 0); ldV(1, 1)
    a("s_nop 8")
    stamp(a, "loop0")
    lastK = {k: max(p for p in range(NP) if order[p][0] == k) - 1 for k in range(16)}
    lastV = {k: max(p for p in range(NP) if order[p][0] == k) + 1 for k in range(16)}
    lq = []
    for k in range(2, 16):
        fk = lastK[k - 4] + 1 if k >= 4 else 0
        fv = lastV[k - 4] + 1 if k >= 4 else 0
        lq += [(lambda k=k: ldK(k, 0), fk), (lambda k=k: ldK(k, 1), fk), (lambda k=k: ldV(k, 0), fv), (lambda k=k: ldV(k, 1), fv)]
    wq = []
    for i in range(3):
        lp = max(p for p in range(NP) if order[p][1] == i) + 1
        for g in range(4):
            wq.append((lambda i=i, g=g: a(f"ds_write_b128 v{PW+i}, {vr(O[i]+4*g,4)} offset:{1024*g}"), 4 * (lp + 1) + 2))
    rq = [lambda i=i: a(f"ds_read_b128 {vr(O[i//4]+4*(i%4),4)}, v{PR} offset:{1024*i}") for i in range(12)]
    state = {"arr": None, "rd": False}
    for p in range(NP):
        s = SB[p % 3]
        stamp(a, f"ph{p}")
        mq = qk(p + 1) if p + 1 < NP else [None, None]
        mp = pv(p - 1) if p >= 1 else [None, None]
        ms = [("q", x) for x in mq] + [("p", x) for x in mp]
        if p == 1: ms = ms[2:] + ms[:2]
        if p == 1:
            lcheck(a, "L_q", 4)
            stamp(a, "bq1")
            for i in range(3):
                a(f"ds_read_b128 {vr(Q[i],4)}, v{QR+i}")
                a(f"ds_read_b128 {vr(Q[i]+4,4)}, v{QR+i} offset:1024")
        if p == 2:
            a("s_waitcnt lgkmcnt(0)")
            arrive(a, 8)
            a("s_nop 2")
        for g in range(4):
            kind, m = ms[g]
            if m:
                if kind == "q":
                    k1 = order[p + 1][0]
                    a.vwait(("V", k1) if (k1 >= 2 and sum(1 for t in a.vm if t == ("V", k1)) == 2) else ("K", k1))
                    if p == 1 and g == 2: a("s_waitcnt lgkmcnt(4)")
                else:
                    a.vwait(("V", order[p - 1][0]))
                a(m)
            slot = 4 * p + g
            if slot == 3: lpre(a)
            if lq and lq[0][1] <= p and (g == 0 or (g == 1 and (p < 12 or p >= 40))): lq.pop(0)[0]()
            elif wq and wq[0][1] <= slot:
                wq.pop(0)[0]()
                if not wq:
                    arrive(a); state["arr"] = slot
            elif state["arr"] is not None and slot == state["arr"] + 2: lpre(a)
            elif state["arr"] is not None and not state["rd"] and slot >= state["arr"] + 4:
                lcheck(a, "L_p", 8)
                stamp(a, "b1")
                state["rd"] = True
                for _ in range(4): rq.pop(0)()
            elif state["rd"] and rq:
                for _ in range(4): rq.pop(0)()
            for jj in range(4): a(f"v_exp_f32 v{s+4*g+jj}, v{s+4*g+jj}")
    assert not lq and not wq and state["rd"]
    while rq: rq.pop(0)()
    a("s_nop 1")
    for x in pv(63): a(x)
    stamp(a, "loop1")
    OO = O[3]
    a("s_waitcnt lgkmcnt(0)")
    arrive(a)
    for r in range(16): a(f"v_add_f32 v{O[0]+r}, v{O[0]+r}, v{O[1]+r}")
    for r in range(16): a(f"v_add_f32 v{O[0]+r}, v{O[0]+r}, v{O[2]+r}")
    a(f"v_add_f32 v{OO+12}, v{OO+12}, v{O[0]+12}")
    a(f"v_mov_b32 v{T}, v{OO+12}")
    a(f"v_mov_b32 v{T+1}, v{OO+12}")
    for r in range(0, 4): a(f"v_add_f32 v{OO+r}, v{OO+r}, v{O[0]+r}")
    a(f"v_permlane32_swap_b32 v{T}, v{T+1}")
    for r in range(4, 16):
        if r != 12: a(f"v_add_f32 v{OO+r}, v{OO+r}, v{O[0]+r}")
    a(f"s_mov_b32 s{sGB}, 0")
    a.lab("L_norm")
    a(f"v_rcp_f32 v{T}, v{T+1}")
    a("s_nop 0")
    P = T + 4
    for r in range(8): a(f"v_mul_f32 v{OO+r}, v{OO+r}, v{T}")
    for i in range(4): a(f"v_cvt_pk_bf16_f32 v{P+i}, v{OO+2*i}, v{OO+2*i+1}")
    a(f"buffer_store_dwordx4 {vr(P,4)}, v{TAU}, {S4(rBR)}, s{sOO} offen sc1")
    for r in range(8, 16): a(f"v_mul_f32 v{OO+r}, v{OO+r}, v{T}")
    for i in range(4, 8): a(f"v_cvt_pk_bf16_f32 v{P+i}, v{OO+2*i}, v{OO+2*i+1}")
    a("s_mov_b32 exec_hi, 0")
    a(f"buffer_store_dwordx4 {vr(P+4,4)}, v{TAU}, {S4(rBR)}, s{sOO} offen offset:1024 sc1")
    a("s_not_b64 exec, exec")
    a(f"buffer_store_dwordx2 {vr(P+4,2)}, v{TAU8}, {S4(rBR)}, s{sOO} offen offset:1280 sc1")
    a("s_mov_b64 exec, -1")
    stamp(a, "ost")
    a(f"s_cmp_lg_u32 s{sGB}, 0")
    a("s_cbranch_scc1 L_checked")
    a(f"v_mul_f32 v{T+2}, 0, v{OO}")
    a(f"v_mul_f32 v{T+3}, 0, v{OO+1}")
    for r in range(2, 16): a(f"v_fma_f32 v{T+2+(r&1)}, 0, v{OO+r}, v{T+2+(r&1)}")
    a(f"v_add_f32 v{T+2}, v{T+2}, v{T+3}")
    a(f"v_add_f32 v{T+2}, v{T+2}, v{T+1}")
    a(f"v_cmp_nlt_f32 vcc, 0x35800000, v{T+2}")
    a(f"s_mov_b64 {S2(sROT)}, vcc")
    a(f"v_cmp_ngt_f32 vcc, 0x71800000, v{T+2}")
    a(f"s_or_b64 vcc, vcc, {S2(sROT)}")
    a("s_cbranch_vccnz L_fallback")
    a.lab("L_checked")
    NF = T + 2
    a(f"v_mov_b32 v{NF}, s{NONCE}")
    a(f"v_mov_b32 v{NF+1}, s{NONCE+1}")
    a("s_mov_b64 exec, 1")
    a(f"s_cmp_eq_u32 s{sg}, 0")
    a("s_waitcnt vmcnt(0)")
    a(f"buffer_store_dwordx2 {vr(NF,2)}, off, {S4(rBR)}, s{sF2O} sc1")
    a("s_mov_b64 exec, -1")
    stamp(a, "flag2")
    a("s_cbranch_scc0 L_fin1" if DIAG else "s_cbranch_scc0 L_fin")
    lwait(a, "L_g4", 0, 12)
    lwait(a, "L_h2", 12, 4)
    for j in (0, 4):
        a(f"s_add_u32 s{t0}, s{skq}, {j}")
        a(f"s_min_u32 s{t0}, s{t0}, 6")
        a(f"s_lshl_b32 s{KT[j]}, s{t0}, 10")
        a(f"s_add_u32 s{KT[j]}, s{KT[j]}, {WOB}")
    a(f"s_lshl_b32 s{sROT}, s{sqb}, 1")
    a(f"s_min_u32 s{sROT}, s{sROT}, 13")
    a(f"s_mov_b32 s{t1}, 14")
    a("s_setprio 0")
    a.lab("L_wo")
    a(f"s_mul_i32 s{sWOL}, s{sROT}, 7168")
    a(f"s_mul_i32 s{sWOS}, s{sROT}, 28672")
    a(f"s_add_u32 m0, s{sWOL}, s{KT[0]}")
    a(f"s_add_u32 s{sROT}, s{sROT}, 1")
    a(f"buffer_load_dwordx4 v{WOA}, {S4(rWO)}, s{sWOS} offen lds")
    a(f"s_add_u32 m0, s{sWOL}, s{KT[4]}")
    a(f"s_cmp_eq_u32 s{sROT}, 14")
    a(f"buffer_load_dwordx4 v{WO2}, {S4(rWO)}, s{sWOS} offen lds")
    a(f"s_cselect_b32 s{sROT}, 0, s{sROT}")
    a(f"s_sub_u32 s{t1}, s{t1}, 1")
    a(f"s_cmp_lg_u32 s{t1}, 0")
    a(f"s_waitcnt vmcnt({WOFL})")
    a("s_cbranch_scc1 L_wo")
    WB = 16
    def pos(G): return 8 * (G >> 1) + (G & 1)
    steps = []
    for q in range(4):
        for hd in range(4 * q, 4 * q + 4):
            steps.append((hd & 1, lambda h, aa, hd=hd: 7 * hd + 2 * aa + h, ("A", hd)))
        for i in range(2 * q, 2 * q + 2):
            steps.append((2, lambda h, aa, i=i: 7 * (2 * i + h) + 4 + 2 * aa, ("B", 2 * i)))
        steps.append((3, lambda h, aa, q=q: 7 * (4 * q + 2 * h + aa) + 5, ("C", 4 * q)))
    def wread(ks):
        t, G, _ = steps[ks]
        for aa in range(2):
            assert pos(G(1, aa)) - pos(G(0, aa)) == HSTEP[t]
            off = pos(G(0, aa)) * 224
            ad = WA + t
            if off >= 50176: off -= 50176; ad += 4
            a(f"ds_read_b64_tr_b16 {vr(WB+4*ks+2*aa,2)}, v{ad} offset:{off}")
    sOS, sOL, sIT = KT[1], KT[2], KT[3]
    a(f"s_mul_i32 s{sOS}, s{sRT}, 28672")
    a(f"s_mul_i32 s{t2}, s{skq}, 7168")
    a(f"s_add_u32 s{sOS}, s{sOS}, s{t2}")
    a(f"s_add_u32 s{sOL}, s{t2}, {WOB}")
    a(f"s_mov_b32 s{sIT}, 0")
    a("s_waitcnt vmcnt(0)")
    a("s_setprio 2")
    gbar(a, "L_g5", 4)
    stamp(a, "woland")
    for ks in range(28): wread(ks)
    a("s_waitcnt lgkmcnt(0)")
    gbar(a, "L_g6", 5)
    a.lab("L_tile")
    poll(a, "L_f2", F2A, rBR)
    stamp(a, "poll2")
    a(f"s_mov_b32 m0, s{sOL}")
    a(f"s_add_u32 s{t0}, s{sOS}, 4096")
    for i in range(4): a(f"buffer_load_dwordx4 v{L16}, {S4(rBR)}, s{sOS} offen offset:{1024*i} sc1 lds")
    a(f"s_add_u32 m0, s{sOL}, 4096")
    a(f"s_cmp_eq_u32 s{sIT}, 0")
    for i in range(3): a(f"buffer_load_dwordx4 v{L16}, {S4(rBR)}, s{t0} offen offset:{1024*i} sc1 lds")
    a("s_waitcnt vmcnt(0)")
    stamp(a, "oown")
    a("s_cbranch_scc1 L_g7")
    a("s_barrier")
    a.lab("L_g7done")
    stamp(a, "oland")
    ACC3 = 216; OB = 176; NB = 10; PK = 232
    lg = []
    def oread(ks):
        kind, hd = steps[ks][2]
        d = OB + 4 * (ks % NB)
        if kind == "A": a(f"ds_read_b128 {vr(d,4)}, v{OA} offset:{hd*1792}"); lg.append(ks)
        elif kind == "B": a(f"ds_read_b128 {vr(d,4)}, v{OA+1} offset:{hd*1792+1024}"); lg.append(ks)
        else:
            for aa in range(2):
                a(f"ds_read_b64 {vr(d+2*aa,2)}, v{OA+2} offset:{(hd+aa)*1792+1536}"); lg.append(ks)
    for ks in range(NB): oread(ks)
    for ks in range(28):
        out = sum(1 for k in lg if k > ks)
        assert out < 16
        a(f"s_waitcnt lgkmcnt({out})")
        c = "0" if ks == 0 else vr(ACC3, 16)
        a(f"v_mfma_f32_32x32x16_bf16 {vr(ACC3,16)}, {vr(WB+4*ks,4)}, {vr(OB+4*(ks%NB),4)}, {c}")
        if ks + NB < 28: oread(ks + NB)
    stamp(a, "mf3")
    a(f"s_cmp_eq_u32 s{skq}, 3")
    a(f"s_cselect_b32 s{t1}, 0, -1")
    a("s_nop 10")
    for i in range(8): a(f"v_cvt_pk_bf16_f32 v{PK+i}, v{ACC3+2*i}, v{ACC3+2*i+1}")
    a(f"s_mov_b32 exec_hi, s{t1}")
    a(f"buffer_store_dwordx4 {vr(PK,4)}, v{OUTA}, {S4(rOUT)}, s{sOUTO} offen {OUTF}")
    a(f"buffer_store_dwordx4 {vr(PK+4,4)}, v{OUTA}, {S4(rOUT)}, s{sOUTO} offen offset:16 {OUTF}")
    a(f"s_mov_b32 exec_hi, -1")
    a(f"s_cmp_lg_u32 s{sIT}, 0")
    a("s_cbranch_scc1 L_fin")
    stamp(a, "tileA")
    a(f"s_mov_b32 s{sIT}, 1")
    a(f"s_add_u32 s{sOS}, s{sOS}, {4*28672}")
    a(f"s_add_u32 s{sOL}, s{sOL}, 28672")
    a(f"s_add_u32 s{sOUTO}, s{sOUTO}, {128*1792}")
    for i in range(3): a(f"v_add_u32 v{OA+i}, 28672, v{OA+i}")
    a(f"v_add_u32 v{F2A}, {64*F2SP}, v{F2A}")
    a("s_branch L_tile")
    a.lab("L_fin")
    if STAMP:
        a("s_waitcnt vmcnt(0)")
        a("s_memrealtime s[22:23]")
        a("s_memtime s[98:99]")
        a("s_waitcnt lgkmcnt(0)")
        a("s_mov_b64 exec, 1")
        a(f"s_mov_b32 s{rWS}, s20"); a(f"s_mov_b32 s{rWS+1}, s21"); a(f"s_mov_b32 s{rWS+2}, 0x10000000")
        a(f"s_lshl_b32 s{t1}, s2, 9")
        a(f"s_add_u32 s{t1}, s{t1}, {64<<20}")
        a(f"s_lshl_b32 s{t0}, s{sw}, 6")
        a(f"s_add_u32 s{t1}, s{t1}, s{t0}")
        for i, r in enumerate([RT, 22, 100, 98] + [80 + 2 * k for k in range(9)] + [sLOC]):
            a(f"v_mov_b32 v1, s{r}")
            a(f"buffer_store_dword v1, off, {S4(rWS)}, s{t1} offset:{4*i}")
    if DIAG:
        a("s_waitcnt vmcnt(0)")
        if DIAG == "end": a("s_memrealtime s[80:81]")
        if DIAG == "none": a(f"s_mov_b32 s80, s{NONCE}")
        if DIAG == "start": a(f"s_mov_b32 s80, s{RT}")
        a("s_waitcnt lgkmcnt(0)")
        a("s_add_u32 s80, s80, 6000")
        a.lab("L_diag")
        a("s_sleep 2")
        a("s_memrealtime s[82:83]")
        a("s_waitcnt lgkmcnt(0)")
        a("s_sub_u32 s82, s82, s80")
        a("s_cmp_lt_i32 s82, 0")
        a("s_cbranch_scc1 L_diag")
    if DBGST:
        a("s_waitcnt vmcnt(0)")
        a("s_memrealtime s[98:99]")
        a("s_waitcnt lgkmcnt(0)")
        a(f"s_cmp_lg_u32 s{sw}, 7")
        a("s_cbranch_scc1 L_end")
        a(f"s_not_b32 s{t0}, s{RT}")
        a(f"v_mov_b32 v1, s{t0}")
        for i, r in enumerate([RT] + [80 + 2 * k for k in range(9)] + [98]):
            a(f"v_writelane_b32 v1, s{r}, {i+1}")
        a("v_lshlrev_b32 v2, 2, v0")
        a("s_mov_b64 exec, 0xfff")
        a(f"buffer_atomic_umax v1, v2, {S4(rDBG)}, 0 offen offset:16 sc1")
    a.lab("L_end")
    a("s_endpgm")
    for tag, P_, va, so, off in tails:
        a.lab(f"L_wt{tag}")
        a(f"buffer_store_dwordx4 {vr(P_,4)}, v{va}, {S4(rWS)}, s{so} offen offset:{off} sc1")
        a(f"buffer_store_dwordx4 {vr(P_+4,4)}, v{va}, {S4(rWS)}, s{so} offen offset:{off+1024} sc1")
        a(f"s_branch L_st{tag}")
    if DIAG:
        a.lab("L_fin1")
        a("s_barrier")
        a("s_branch L_fin")
    for name, target in slow:
        a.lab(f"{name}_slow")
        lwait(a, name, 0, target, 1)
        a(f"s_branch {name}_back")
    a.lab("L_g7")
    gbar(a, "L_g7b", 6)
    stamp(a, "aland")
    lwait(a, "L_h4", 4, 12, 4)
    a("s_setprio 0")
    a("s_branch L_g7done")
    a.lab("L_f1wt")
    a(f"buffer_store_dwordx2 {vr(NV,2)}, off, {S4(rWS)}, s{sF1O} sc1")
    a("s_branch L_f1st")
    for tag in "LC":
        a.lab(f"L_nonce_retry{tag}")
        a(f"buffer_load_dwordx2 {vr(NV,2)}, off, {S4(rDBG)}, s{sDL} sc1")
        a(f"s_sub_u32 s{t3}, s{t3}, 1")
        a("s_cbranch_scc1 L_end")
        a("s_waitcnt vmcnt(0)")
        a(f"s_branch L_nonce{tag}")
    a.lab("L_fallback")
    QO = Q[3]; S0 = SB[0]; K0 = KB[0]; V0 = VB[0]; M = T + 2
    a("s_waitcnt vmcnt(0)")
    a(f"s_mov_b32 s{sGB}, 1")
    a("s_mov_b32 exec_lo, 0")
    a(f"v_mov_b32 v{QO+6}, 0")
    a("s_mov_b32 exec_lo, -1")
    for r in range(16): a(f"v_mov_b32 v{OO+r}, 0")
    a(f"v_mov_b32 v{M}, 0xff7fffff")
    a(f"s_mov_b32 s{sKVO}, 0")
    a.lab("L_fb_loop")
    a(f"buffer_load_dwordx4 {vr(K0,4)}, v{L16}, {S4(rKV)}, s{sKVO} offen sc1")
    a(f"buffer_load_dwordx4 {vr(K0+4,4)}, v{L16}, {S4(rKV)}, s{sKVO} offen offset:1024 sc1")
    a(f"buffer_load_dwordx4 {vr(V0,4)}, v{L16}, {S4(rKV)}, s{sKVO} offen offset:2048 sc1")
    a(f"buffer_load_dwordx4 {vr(V0+4,4)}, v{L16}, {S4(rKV)}, s{sKVO} offen offset:3072 sc1")
    a("s_waitcnt vmcnt(0)")
    a(f"v_mfma_f32_32x32x16_bf16 {vr(S0,16)}, {vr(K0,4)}, {vr(QO,4)}, 0")
    a(f"v_mfma_f32_32x32x16_bf16 {vr(S0,16)}, {vr(K0+4,4)}, {vr(QO+4,4)}, {vr(S0,16)}")
    a("s_nop 15")
    a(f"v_max3_f32 v{T}, v{M}, v{S0}, v{S0+1}")
    for i in range(2, 16, 2): a(f"v_max3_f32 v{T}, v{T}, v{S0+i}, v{S0+i+1}")
    a(f"v_mov_b32 v{T+1}, v{T}")
    a("s_nop 1")
    a(f"v_permlane32_swap_b32 v{T}, v{T+1}")
    a(f"v_max_f32 v{T}, v{T}, v{T+1}")
    a(f"v_sub_f32 v{T+1}, v{M}, v{T}")
    a(f"v_exp_f32 v{T+1}, v{T+1}")
    a(f"v_mov_b32 v{M}, v{T}")
    for r in range(16): a(f"v_sub_f32 v{S0+r}, v{S0+r}, v{T}")
    for r in range(16): a(f"v_exp_f32 v{S0+r}, v{S0+r}")
    for r in range(16): a(f"v_mul_f32 v{OO+r}, v{OO+r}, v{T+1}")
    a("s_nop 1")
    a(f"v_smfmac_f32_32x32x32_bf16 {vr(OO,16)}, {vr(V0,4)}, {vr(S0,8)}, v{IDX}")
    a(f"v_smfmac_f32_32x32x32_bf16 {vr(OO,16)}, {vr(V0+4,4)}, {vr(S0+8,8)}, v{IDX}")
    a(f"s_add_u32 s{sKVO}, s{sKVO}, 4096")
    a(f"s_cmp_lt_u32 s{sKVO}, 262144")
    a("s_nop 15")
    a("s_cbranch_scc1 L_fb_loop")
    a(f"v_mov_b32 v{T}, v{OO+12}")
    a(f"v_mov_b32 v{T+1}, v{OO+12}")
    a("s_nop 1")
    a(f"v_permlane32_swap_b32 v{T}, v{T+1}")
    a("s_branch L_norm")
    a.lab("L_code_end")
    a("s_endpgm")
    kd = f""".section .rodata,"a"
.p2align 6
.amdhsa_kernel {n}
  .amdhsa_next_free_vgpr 256
  .amdhsa_next_free_sgpr 102
  .amdhsa_accum_offset 256
  .amdhsa_group_segment_fixed_size 0
  .amdhsa_kernarg_size 72
  .amdhsa_user_sgpr_count 2
  .amdhsa_user_sgpr_kernarg_segment_ptr 1
  .amdhsa_system_sgpr_workgroup_id_x 1
.end_amdhsa_kernel
"""
    return a.text() + kd

tails = []
hdr = f"""; @launch grid=(256,1,1) block=(512,1,1) lds={LDS}
.amdgcn_target "amdgcn-amd-amdhsa--gfx950"
.text
"""
open(sys.argv[1] if len(sys.argv) > 1 else "v7.s", "w").write(hdr + gen())
```

```python
import sys, os, struct, math
NAME = "concat_heads__softmax_full_mha__softmax_full_mha__prompt"
def f2u(x): return struct.unpack("<I", struct.pack("<f", x))[0]
CSCALE = f2u(28 ** -0.5 * math.log2(math.e))
E = os.environ.get
STAMP = E("STAMP", "0") in ("1", "3")
RTS = E("STAMP", "0") == "3"
DIAG = E("DIAG", "")
STL = E("STL", "c0,p1end,ack1,poll1,loop0,loop1,flag2,poll2,oland").split(",")
F2SP = int(E("F2SP", "32"))
FORCEFB = E("FORCEFB", "0") == "1"
LOCAL = E("LOCAL", "1") == "1"
PRET = int(E("PRET", "3"))
SLEEP = int(E("SLEEP", "0"))
OUTF = E("OUTF", "")
ROTA, ROTB, ROTC, ROTN, ROTS = [int(v) for v in E("ROTP", "1,0,1,4,2").split(",")]
WOFL = int(E("WOFL", "2"))
NOWN = int(E("NOWN", "4"))
NPOS = int(E("NPOS", "5"))
ARR3 = E("ARR3", "late")
OUTW = int(E("OUTW", "1"))
WOT = int(E("WOT", "10"))
HB = int(E("HB", "1"))
BPOS = int(E("BPOS", "2"))
SPIN = 1 << 22

X_F1 = 1 << 20
B_BASE = 16 << 20; B_F2 = 1835008
STAGE = 40960; XOFF = 24576
PB0 = 40960; QX = 90112; MX = 106496; PB1 = 113664; TX = 57344; LDS = 163840; GBC = 163824

class A:
    def __init__(self):
        self.l = []; self.vm = []; self.done = 0
    def __call__(self, s): self.l.append("    " + s)
    def lab(self, s): self.l.append(s + ":")
    def raw(self, s): self.l.append(s)
    def text(self): return "\n".join(self.l) + "\n"
    def vreset(self): self.vm = []; self.done = 0
    def vmem(self, s, tag=None):
        self(s); self.vm.append(tag)
    def vwait(self, tag):
        idx = [i for i, t in enumerate(self.vm) if t == tag]
        assert idx, tag
        last = idx[-1] + 1
        if last <= self.done: return
        self.done = last
        n = len(self.vm) - last
        assert n < 64
        self(f"s_waitcnt vmcnt({n})")

def vr(b, n): return f"v[{b}:{b+n-1}]"
def S4(b): return f"s[{b}:{b+3}]"
def S2(b): return f"s[{b}:{b+1}]"
def stamp(a, name):
    if DIAG == name: a("s_memrealtime s[80:81]")
    if STAMP and name in STL:
        i = STL.index(name)
        a(f"{'s_memrealtime' if RTS else 's_memtime'} s[{80+2*i}:{81+2*i}]")

rX, rW, rWS, rWO, rOUT, rDBG, rKV, rBR = 24, 28, 32, 36, 64, 68, 72, 12
XM = 4
sLOC, sRT, sOUTO, sQT, sF1O, sPE = 6, 7, 8, 9, 10, 11
sKVO, sWOS, sWOL, sOO, sF2O, sFB = 16, 17, 18, 19, 22, 23
sx, sidx, sb, srb, shalf, sXS, sw, shl, shs, sg4, sg, sWL, sXL, sWS_, stt, scg, skq, su = range(40, 58)
t0, t1, sDL, t2, sROT, t3 = 58, 59, 60, 61, 62, 63
NONCE = 76; RT = 78
KT = [24, 25, 26, 27, 28, 29, 30, 31, 43, 44, 45, 51, 52, 53, 54, 55]
L16, IDX, CA, F1A, ONE, L8, MW, MR, PW, PR, TAU = 1, 2, 3, 4, 5, 6, 7, 8, 11, 14, 15
T = 240
XD, WD, XA, WA1, QW, NV, NA, PTA = 16, 18, 16, 20, 23, 232, 234, 235
ACC = 32; FR = 128; P1 = 208
Q = [16, 24, 32, 40]; O = [48, 64, 80, 96]; SB = [112, 128, 144]; KB = [176, 184, 192, 200]; VB = [208, 216, 224, 232]
WA, TW, OA, WO2, WOA, F2A, OUTA, TR = 160, 166, 168, 171, 172, 173, 174, 175

def lwait(a, name, off, target, sleep=2):
    a(f"s_mov_b32 s{t3}, {SPIN}")
    a.lab(f"{name}_spin")
    a(f"ds_read_b32 v{T+13}, v{CA} offset:{off}")
    a(f"s_sub_u32 s{t3}, s{t3}, 1")
    a("s_cbranch_scc1 L_end")
    a("s_waitcnt lgkmcnt(0)")
    a(f"v_readfirstlane_b32 s{t2}, v{T+13}")
    a(f"s_cmp_ge_u32 s{t2}, {target}")
    a(f"s_cbranch_scc1 {name}_done")
    a(f"s_sleep {sleep}")
    a(f"s_branch {name}_spin")
    a.lab(f"{name}_done")
def arrive(a, off=0):
    a("s_mov_b64 exec, 1")
    a(f"ds_add_u32 v{CA}, v{ONE} offset:{off}")
    a("s_mov_b64 exec, -1")
slow = []
def lpre(a): a(f"ds_read_b32 v{T+13}, v{CA}")
def lcheck(a, name, target):
    a("s_waitcnt lgkmcnt(0)")
    a(f"v_readfirstlane_b32 s{t2}, v{T+13}")
    a(f"s_cmp_ge_u32 s{t2}, {target}")
    a(f"s_cbranch_scc0 {name}_slow")
    a.lab(f"{name}_back")
    slow.append((name, target))
def gbar(a, name, k):
    arrive(a)
    lwait(a, name, 0, 4 * k)
def poll(a, name, vaddr, srd):
    a(f"s_mov_b32 s{t3}, {SPIN}")
    if SLEEP: a(f"s_branch {name}_first")
    a.lab(f"{name}_spin")
    if SLEEP:
        a(f"s_sleep {SLEEP}")
        a.lab(f"{name}_first")
    a(f"buffer_load_dwordx2 {vr(T+14,2)}, v{vaddr}, {S4(srd)}, 0 offen sc1")
    a(f"s_sub_u32 s{t3}, s{t3}, 1")
    a("s_cbranch_scc1 L_end")
    a("s_waitcnt vmcnt(0)")
    a(f"v_cmp_ne_u64 vcc, {S2(NONCE)}, {vr(T+14,2)}")
    a(f"s_cbranch_vccnz {name}_spin")

def gen():
    a = A(); n = NAME + "_kernel"
    tails = []; stails = []
    u0, u1, u2, u3, u4 = T, T + 1, T + 2, T + 3, T + 4
    a.raw(f".globl {n}\n.p2align 8\n.type {n},@function")
    a.lab(n)
    a("s_cmp_ge_u32 s2, 256")
    a("s_cbranch_scc1 L_end")
    a("s_load_dwordx16 s[4:19], s[0:1], 0")
    a("s_load_dwordx2 s[20:21], s[0:1], 64")
    a(f"s_memrealtime {S2(RT)}")
    if STAMP: a("s_memtime s[100:101]")
    a(f"s_and_b32 s{sx}, s2, 7")
    a(f"s_lshr_b32 s{sidx}, s2, 3")
    a("v_lshrrev_b32 v1, 6, v0")
    a("v_and_b32 v0, 63, v0")
    a(f"v_readfirstlane_b32 s{sw}, v1")
    a(f"s_lshr_b32 s{sb}, s{sx}, 2")
    a(f"s_and_b32 s{sg4}, s{sx}, 3")
    a(f"s_lshr_b32 s{srb}, s{sidx}, 1")
    a(f"s_and_b32 s{shalf}, s{sidx}, 1")
    a(f"s_cmp_ge_u32 s{sw}, 4")
    a("s_cbranch_scc1 L_comp")
    def stamp_init():
        if DIAG: a(f"s_mov_b32 s80, s{RT}")
        if STAMP:
            for k in range(9): a(f"s_mov_b32 s{80+2*k}, s{RT if RTS else 100}")
    def dbg_desc():
        a(f"s_mov_b32 s{rDBG}, s18"); a(f"s_mov_b32 s{rDBG+1}, s19"); a(f"s_mov_b32 s{rDBG+2}, 256"); a(f"s_mov_b32 s{rDBG+3}, 0x00020000")
        a(f"s_lshl_b32 s{sDL}, s{sb}, 3")
    def ids2a(g):
        a(f"s_cmp_eq_u32 s{sb}, 0")
        a(f"s_cselect_b32 s{rWO}, s8, s14")
        a(f"s_cselect_b32 s{rWO+1}, s9, s15")
        a(f"s_mov_b32 s{rWO+2}, 401408")
        a(f"s_mov_b32 s{rWO+3}, 0x00020000")
        a(f"s_mov_b32 s{rOUT}, s16"); a(f"s_mov_b32 s{rOUT+1}, s17"); a(f"s_mov_b32 s{rOUT+2}, {2048*896*2}"); a(f"s_mov_b32 s{rOUT+3}, 0x00020000")
        a(f"s_lshl_b32 s{t2}, s{sx}, 21")
        a(f"s_add_u32 s{rWS}, s20, s{t2}")
        a(f"s_addc_u32 s{rWS+1}, s21, 0")
        a(f"s_mov_b32 s{rWS+2}, {2<<20}")
        a(f"s_mov_b32 s{rWS+3}, 0x00020000")
        a(f"s_lshl_b32 s{t2}, s{sb}, 21")
        a(f"s_add_u32 s{t2}, s{t2}, {B_BASE}")
        a(f"s_add_u32 s{rBR}, s20, s{t2}")
        a(f"s_addc_u32 s{rBR+1}, s21, 0")
        a(f"s_mov_b32 s{rBR+2}, {2<<20}")
        a(f"s_mov_b32 s{rBR+3}, 0x00020000")
        a(f"s_mov_b32 s{sg}, {g}")
        a(f"s_and_b32 s{shs}, s{srb}, 1")
        if g: a(f"s_xor_b32 s{shs}, s{shs}, 1")
        a(f"s_lshl_b32 s{shl}, s{shalf}, 1")
        a(f"s_add_u32 s{shl}, s{shl}, s{shs}")
        a(f"s_lshl_b32 s{t2}, s{shl}, 18")
        a(f"s_add_u32 s{rKV}, s{rWS}, s{t2}")
        a(f"s_addc_u32 s{rKV+1}, s{rWS+1}, 0")
        a(f"s_mov_b32 s{rKV+2}, 262144")
        a(f"s_mov_b32 s{rKV+3}, 0x00020000")
        a(f"s_and_b32 s{skq}, s{sw}, 3")
        a(f"s_lshl_b32 s{sKVO}, s{skq}, 16")
        a(f"v_and_b32 v{u0}, 1, v0")
        a(f"v_lshlrev_b32 v{u0}, 3, v{u0}")
        a(f"v_bfe_u32 v{u1}, v0, 1, 2")
        a(f"v_lshl_add_u32 v{u0}, v{u1}, 7, v{u0}")
        a(f"v_bfe_u32 v{u1}, v0, 3, 1")
        a(f"v_lshl_add_u32 v{u0}, v{u1}, 12, v{u0}")
        a(f"s_lshl_b32 s{t0}, s{shalf}, 11")
        a(f"s_lshl_b32 s{t1}, s{skq}, 9")
        a(f"s_add_u32 s{t0}, s{t0}, s{t1}")
        a(f"s_add_u32 s{t0}, s{t0}, {X_F1}")
        a(f"v_add_u32 v{F1A}, s{t0}, v{u0}")
    def ids2b(g):
        a(f"v_lshlrev_b32 v{L16}, 4, v0")
        a(f"v_lshlrev_b32 v{L8}, 3, v0")
        a(f"v_lshlrev_b32 v{u0}, 2, v0")
        a(f"v_mov_b32 v{IDX}, 0xdddddddd")
        pb = PB1 if g else PB0; mx = MX + 1024 * g
        a(f"s_lshl_b32 s{t1}, s{skq}, 8")
        a(f"s_add_u32 s{t1}, s{t1}, {mx}")
        a(f"v_add_u32 v{MW}, s{t1}, v{u0}")
        a(f"s_mul_i32 s{t1}, s{skq}, 12288")
        a(f"s_add_u32 s{t1}, s{t1}, {pb}")
        a(f"v_add_u32 v{PR}, s{t1}, v{L16}")
        for i in range(3):
            a(f"s_add_u32 s{t0}, s{skq}, {1+i}")
            a(f"s_and_b32 s{t0}, s{t0}, 3")
            a(f"s_lshl_b32 s{t1}, s{t0}, 8")
            a(f"s_add_u32 s{t1}, s{t1}, {mx}")
            a(f"v_add_u32 v{MR+i}, s{t1}, v{u0}")
            a(f"s_mul_i32 s{t1}, s{t0}, 12288")
            a(f"s_add_u32 s{t1}, s{t1}, {pb + 4096*i}")
            a(f"v_add_u32 v{PW+i}, s{t1}, v{L16}")
        a(f"v_mov_b32 v{CA}, {GBC + 4*g}")
        a(f"v_mov_b32 v{ONE}, 1")
        a(f"s_lshl_b32 s{sQT}, s{srb}, 2")
        a(f"s_add_u32 s{sQT}, s{sQT}, s{skq}")
        a(f"s_lshl_b32 s{t0}, s{sg4}, 1")
        a(f"s_add_u32 s{t0}, s{t0}, s{shalf}")
        a(f"s_lshl_b32 s{t1}, s{shs}, 3")
        a(f"s_add_u32 s{t0}, s{t0}, s{t1}")
        a(f"s_lshl_b32 s{t1}, s{sQT}, 4")
        a(f"s_add_u32 s{t1}, s{t1}, s{t0}")
        a(f"s_mul_i32 s{sOO}, s{t1}, 1792")
        a(f"s_mul_i32 s{sF2O}, s{t1}, {F2SP}")
        a(f"s_add_u32 s{sF2O}, s{sF2O}, {B_F2}")
    def pre2():
        for i in range(4):
            for r in range(16): a(f"v_mov_b32 v{O[i]+r}, 0")
        for k in range(16): a(f"s_add_u32 s{KT[k]}, s{sKVO}, {4096*k}")
        if WOT >= 0:
            a(f"s_lshl_b32 s{t0}, s{sidx}, 2")
            a(f"s_add_u32 s{t0}, s{t0}, s{skq}")
            a(f"s_mul_i32 s{t0}, s{t0}, 25")
            a(f"v_min_u32 v{TAU}, 24, v0")
            a(f"v_add_u32 v{TAU}, s{t0}, v{TAU}")
            a(f"v_lshlrev_b32 v{TAU}, 7, v{TAU}")
    def getq(g):
        a(f"s_lshl_b32 s{t1}, s{shs}, 13")
        a(f"s_add_u32 s{t1}, s{t1}, {QX}")
        for i in range(4):
            a(f"s_add_u32 s{t0}, s{skq}, {1+i}")
            a(f"s_and_b32 s{t0}, s{t0}, 3")
            a(f"s_lshl_b32 s{t0}, s{t0}, 11")
            a(f"s_add_u32 s{t0}, s{t0}, s{t1}")
            a(f"v_add_u32 v{u0+i}, s{t0}, v{L16}")
        lwait(a, f"L_q{g}", 8 - 4 * g, 4, 1)
        for i in range(4):
            a(f"ds_read_b128 {vr(Q[i],4)}, v{u0+i}")
            a(f"ds_read_b128 {vr(Q[i]+4,4)}, v{u0+i} offset:1024")
    def nonce(tag):
        a(f"s_mov_b32 s{t3}, {SPIN}")
        a.lab(f"L_nonce{tag}")
        a(f"v_readfirstlane_b32 s{NONCE}, v{NV}")
        a(f"v_readfirstlane_b32 s{NONCE+1}, v{NV+1}")
        a(f"s_cmp_lg_u32 s{NONCE}, 0")
        a(f"s_cselect_b32 s{t2}, s{NONCE+1}, 0")
        a(f"s_cmp_lg_u32 s{t2}, 0")
        a(f"s_cbranch_scc0 L_nonce_retry{tag}")
    a(f"v_lshrrev_b32 v{u0}, 3, v0")
    a(f"v_lshrrev_b32 v{u1}, 4, v0")
    a(f"v_and_b32 v{u2}, 7, v0")
    a(f"s_lshl_b32 s{t0}, s{srb}, 7")
    a(f"s_lshl_b32 s{t1}, s{sw}, 5")
    a(f"s_add_u32 s{t0}, s{t0}, s{t1}")
    a(f"v_add_u32 v{u3}, s{t0}, v{u0}")
    a(f"v_mul_u32_u24 v{u3}, 896, v{u3}")
    a(f"v_xor_b32 v{u4}, v{u2}, v{u1}")
    a(f"v_lshl_add_u32 v{XD}, v{u4}, 4, v{u3}")
    a(f"v_xor_b32 v{XD+1}, 64, v{XD}")
    a(f"v_add_u32 v{XD+1}, 7168, v{XD+1}")
    a(f"s_mul_i32 s{t0}, s{sg4}, 224")
    a(f"s_mul_i32 s{t1}, s{sw}, {16*2688}")
    a(f"s_add_u32 s{t0}, s{t0}, s{t1}")
    a(f"s_mul_i32 s{t1}, s{shalf}, 896")
    a(f"s_add_u32 s{t1}, s{t1}, s{t0}")
    a(f"s_add_u32 s{t1}, s{t1}, 896")
    a(f"v_lshlrev_b32 v{u3}, 2, v{u1}")
    a(f"v_and_b32 v{u4}, 15, v0")
    a(f"v_xor_b32 v{u4}, v{u4}, v{u3}")
    a(f"v_cmp_lt_u32 vcc, 13, v{u4}")
    a(f"v_mul_u32_u24 v{u1}, 2688, v{u1}")
    a(f"v_lshl_add_u32 v{u1}, v{u4}, 4, v{u1}")
    a(f"v_add_u32 v{WD}, s{t1}, v{u1}")
    a(f"v_bfrev_b32 v{u4}, 2")
    a(f"v_cndmask_b32 v{WD}, v{WD}, v{u4}, vcc")
    a(f"s_mul_i32 s{t1}, s{shalf}, 112")
    a(f"s_add_u32 s{t1}, s{t1}, s{t0}")
    a(f"v_and_b32 v{u3}, 4, v{u3}")
    a(f"v_xor_b32 v{u2}, v{u2}, v{u3}")
    a(f"v_cmp_lt_u32 vcc, 6, v{u2}")
    a(f"v_mul_u32_u24 v{u0}, 2688, v{u0}")
    a(f"v_lshl_add_u32 v{u0}, v{u2}, 4, v{u0}")
    a(f"v_add_u32 v{WD+1}, s{t1}, v{u0}")
    a(f"v_cndmask_b32 v{WD+1}, v{WD+1}, v{u4}, vcc")
    if ROTN > 1:
        a(f"s_mul_i32 s{sROT}, s{srb}, {ROTA}")
        if ROTB:
            a(f"s_mul_i32 s{t0}, s{shalf}, {ROTB}")
            a(f"s_add_u32 s{sROT}, s{sROT}, s{t0}")
        a(f"s_mul_i32 s{t2}, s{sg4}, {ROTC}")
        a(f"s_add_u32 s{sROT}, s{sROT}, s{t2}")
        if ROTN & (ROTN - 1) == 0:
            a(f"s_and_b32 s{sROT}, s{sROT}, {ROTN-1}")
        else:
            a(f"s_mul_i32 s{t2}, s{sROT}, {(65536 + ROTN - 1)//ROTN}")
            a(f"s_lshr_b32 s{t2}, s{t2}, 16")
            a(f"s_mul_i32 s{t2}, s{t2}, {ROTN}")
            a(f"s_sub_u32 s{sROT}, s{sROT}, s{t2}")
        if ROTS != 1: a(f"s_mul_i32 s{sROT}, s{sROT}, {ROTS}")
    else:
        a(f"s_mov_b32 s{sROT}, 0")
    assert (ROTN - 1) * ROTS < 7
    a(f"s_lshl_b32 s{sXL}, s{sw}, 12")
    a(f"s_add_u32 s{sXL}, s{sXL}, {XOFF}")
    a(f"s_mul_i32 s{sWL}, s{sw}, 6144")
    a(f"s_mov_b32 s{stt}, 0")
    a(f"s_mov_b32 s{rX+2}, 1835008")
    a(f"s_mov_b32 s{rX+3}, 0x00020000")
    a(f"s_mov_b32 s{rW+2}, 1204224")
    a(f"s_mov_b32 s{rW+3}, 0x00020000")
    a(f"s_cmp_eq_u32 s{sb}, 0")
    a("s_waitcnt lgkmcnt(0)")
    a(f"s_cselect_b32 s{rX}, s4, s10")
    a(f"s_cselect_b32 s{rX+1}, s5, s11")
    a(f"s_cselect_b32 s{rW}, s6, s12")
    a(f"s_cselect_b32 s{rW+1}, s7, s13")
    stamp_init()
    stamp(a, "karg")
    a.lab("L_ld")
    a(f"s_lshl_b32 s{sXS}, s{sROT}, 7")
    a(f"s_mul_i32 s{sWS_}, s{sROT}, 172032")
    seq = [("x", 0), ("w", 0), ("w", 2), ("x", 1), ("w", 1), ("x", 2), ("w", 3), ("w", 5), ("x", 3), ("w", 4)]
    for kind, i in seq:
        if kind == "x":
            a(f"s_add_u32 m0, s{sXL}, {1024*i}")
            a(f"s_add_u32 s{t0}, s{sXS}, {14336*(i//2)}")
            a(f"buffer_load_dwordx4 v{XD+(i&1)}, {S4(rX)}, s{t0} offen lds")
        else:
            G, q = divmod(i, 3)
            a(f"s_add_u32 m0, s{sWL}, {1024*i}")
            a(f"s_add_u32 s{t0}, s{sWS_}, {(8*G + (4*q if q < 2 else 0))*2688}")
            a(f"buffer_load_dwordx4 v{WD+(q==2)}, {S4(rW)}, s{t0} offen lds")
    a(f"s_add_u32 s{sROT}, s{sROT}, 1")
    a(f"s_cmp_eq_u32 s{sROT}, 7")
    a(f"s_cselect_b32 s{sROT}, 0, s{sROT}")
    a(f"s_cmp_ge_u32 s{sWL}, {2*STAGE}")
    a(f"s_mov_b32 s{t0}, {STAGE}")
    a(f"s_cselect_b32 s{t0}, {(-2*STAGE) & 0xffffffff:#x}, s{t0}")
    a(f"s_add_u32 s{sWL}, s{sWL}, s{t0}")
    a(f"s_add_u32 s{sXL}, s{sXL}, s{t0}")
    a(f"s_add_u32 s{stt}, s{stt}, 1")
    a(f"s_cmp_eq_u32 s{stt}, 1")
    a("s_cbranch_scc1 L_ld")
    a(f"s_cmp_lt_u32 s{stt}, 7")
    a("s_waitcnt vmcnt(10)")
    a("s_barrier")
    a("s_cbranch_scc1 L_ld")
    dbg_desc()
    ids2a(0)
    a(f"s_lshr_b32 s{t0}, s{srb}, 1")
    a(f"s_lshl_b32 s{t0}, s{t0}, 7")
    a(f"s_add_u32 s{t0}, s{t0}, s{sKVO}")
    a(f"v_lshlrev_b32 v{PTA}, 10, v0")
    a(f"buffer_load_dwordx2 {vr(NV,2)}, off, {S4(rDBG)}, s{sDL} sc1")
    a(f"buffer_load_dword v{T+9}, v{F1A}, {S4(rWS)}, 0 offen sc1")
    m_ = (1 << max(1, 4 * PRET)) - 1
    a(f"s_mov_b32 exec_lo, {m_ & 0xffffffff:#x}")
    a(f"s_mov_b32 exec_hi, {m_ >> 32:#x}")
    a(f"buffer_load_dword v{T+8}, v{PTA}, {S4(rKV)}, s{t0} offen sc1")
    a("s_mov_b64 exec, -1")
    a("s_waitcnt vmcnt(3)")
    stamp(a, "lw6")
    a("s_barrier")
    ids2b(0)
    a(f"v_lshrrev_b32 v{u2}, 5, v0")
    a(f"s_and_b32 s{t1}, s{sidx}, 3")
    a(f"s_mul_i32 s{t1}, s{t1}, 224")
    for j, d in ((0, WOA), (4, WO2)):
        a(f"s_add_u32 s{t0}, s{skq}, {j}")
        a(f"s_min_u32 s{t0}, s{t0}, 6")
        a(f"s_lshl_b32 s{t0}, s{t0}, 6")
        a(f"v_add_u32 v{u0}, s{t0}, v0")
        a(f"v_mul_u32_u24 v{u1}, 4682, v{u0}")
        a(f"v_lshrrev_b32 v{u1}, 16, v{u1}")
        a(f"v_mul_u32_u24 v{u1}, {896 - 14*16}, v{u1}")
        a(f"v_lshl_add_u32 v{u1}, v{u0}, 4, v{u1}")
        a(f"v_add_u32 v{d}, s{t1}, v{u1}")
    a(f"s_mul_i32 s{sOUTO}, s{sb}, 896")
    a(f"s_add_u32 s{sOUTO}, s{sOUTO}, s{t1}")
    a(f"s_lshl_b32 s{t1}, s{skq}, 6")
    a(f"s_add_u32 s{sOUTO}, s{sOUTO}, s{t1}")
    a(f"s_lshl_b32 s{sRT}, s{sg4}, 3")
    a(f"s_lshr_b32 s{t0}, s{sidx}, 2")
    a(f"s_add_u32 s{sRT}, s{sRT}, s{t0}")
    a(f"s_bfe_u32 s{sPE}, s{sRT}, 0x10001")
    a(f"s_lshl_b32 s{sRT}, s{sRT}, 1")
    a(f"s_mul_i32 s{t0}, s{sPE}, {28*224}")
    a(f"s_add_u32 s{t0}, s{t0}, s{t1}")
    a(f"v_bfe_u32 v{u0}, v0, 2, 2")
    a(f"v_mul_u32_u24 v{u1}, 224, v{u0}")
    a(f"v_add_u32 v{u1}, s{t0}, v{u1}")
    a(f"v_and_b32 v{u0}, 1, v0")
    a(f"v_lshl_add_u32 v{u1}, v{u0}, 5, v{u1}")
    a(f"v_bfe_u32 v{u0}, v0, 4, 1")
    a(f"v_lshl_add_u32 v{u1}, v{u0}, 4, v{u1}")
    a(f"v_bfe_u32 v{u0}, v0, 1, 1")
    a(f"v_lshl_add_u32 v{u1}, v{u0}, 3, v{u1}")
    HSTEP = [4, 56, 112]
    for t in range(3):
        a(f"v_mul_u32_u24 v{u0}, {HSTEP[t]*224}, v{u2}")
        a(f"v_add_u32 v{WA+t}, v{u1}, v{u0}")
        a(f"v_add_u32 v{WA+3+t}, 50176, v{WA+t}")
    a(f"v_mov_b32 v{OA}, v{L16}")
    a(f"v_and_b32 v{u0}, 31, v0")
    a(f"v_mul_u32_u24 v{u1}, 1792, v{u2}")
    a(f"v_lshl_add_u32 v{OA+1}, v{u0}, 4, v{u1}")
    a(f"v_mul_u32_u24 v{u1}, 3584, v{u2}")
    a(f"v_lshl_add_u32 v{OA+2}, v{u0}, 3, v{u1}")
    a(f"s_lshl_b32 s{t0}, s{skq}, 12")
    a(f"s_add_u32 s{t0}, s{t0}, {TX}")
    a(f"v_add_u32 v{TR}, s{t0}, v{L16}")
    a(f"v_bfe_u32 v{u1}, v0, 1, 2")
    a(f"v_lshlrev_b32 v{u3}, 1, v{u2}")
    a(f"v_xor_b32 v{u1}, v{u1}, v{u3}")
    a(f"v_lshlrev_b32 v{u1}, 4, v{u1}")
    a(f"v_lshl_add_u32 v{u1}, v{u0}, 6, v{u1}")
    a(f"v_add_u32 v{TW}, s{t0}, v{u1}")
    a(f"v_xor_b32 v{TW+1}, 16, v{TW}")
    a(f"v_lshrrev_b32 v{u0}, 2, v0")
    a(f"s_lshl_b32 s{t0}, s{sRT}, 5")
    a(f"v_add_u32 v{u0}, s{t0}, v{u0}")
    a(f"v_mul_u32_u24 v{u0}, 1792, v{u0}")
    a(f"v_lshrrev_b32 v{u1}, 3, v0")
    a(f"v_xor_b32 v{u1}, v{u1}, v0")
    a(f"v_and_b32 v{u1}, 3, v{u1}")
    a(f"v_lshl_add_u32 v{OUTA}, v{u1}, 4, v{u0}")
    a(f"s_cmp_eq_u32 s{skq}, 3")
    a(f"s_cselect_b32 s{t0}, 2, 4")
    a(f"v_cmp_gt_u32 {S2(XM)}, s{t0}, v{u1}")
    a(f"s_lshl_b32 s{t0}, s{sRT}, 4")
    a(f"s_lshr_b32 s{t1}, s{skq}, 1")
    a(f"s_lshl_b32 s{t1}, s{t1}, 4")
    a(f"s_add_u32 s{t0}, s{t0}, s{t1}")
    a(f"s_and_b32 s{t1}, s{skq}, 1")
    a(f"s_lshl_b32 s{t1}, s{t1}, 2")
    a(f"s_add_u32 s{t0}, s{t0}, s{t1}")
    a(f"s_lshl_b32 s{t1}, s{sPE}, 3")
    a(f"s_add_u32 s{sRT}, s{t0}, s{t1}")
    a(f"v_and_b32 v{u0}, 3, v0")
    a(f"v_add_u32 v{u0}, s{sRT}, v{u0}")
    a(f"v_mul_u32_u24 v{u0}, {F2SP}, v{u0}")
    a(f"v_add_u32 v{F2A}, {B_F2}, v{u0}")
    pre2()
    a("s_waitcnt vmcnt(2)")
    nonce("L")
    getq(0)
    a("s_setprio 2")
    stamp(a, "lready")
    a("s_branch L_ph2")
    a.lab("L_comp")
    a("s_setprio 3")
    a(f"s_getreg_b32 s{t2}, hwreg(HW_REG_XCC_ID)")
    a(f"s_and_b32 s{t2}, s{t2}, 15")
    a(f"s_lshl_b32 s{t0}, s{sx}, 4")
    a(f"s_or_b32 s{t2}, s{t2}, s{t0}")
    a(f"s_or_b32 s{t2}, s{t2}, 0x80")
    a(f"s_lshl_b32 s{t1}, s{sg4}, 5")
    a(f"s_add_u32 s{t1}, s{t1}, 128")
    a(f"v_mov_b32 v{NV}, s{t2}")
    a(f"v_and_b32 v{NA}, 3, v0")
    a(f"v_lshlrev_b32 v{NA}, 3, v{NA}")
    a(f"v_add_u32 v{NA}, s{t1}, v{NA}")
    a(f"s_add_u32 s{t1}, s{t1}, s{sidx}")
    a("v_mov_b32 v238, 0")
    a("v_mov_b32 v239, 0")
    a("s_waitcnt lgkmcnt(0)")
    dbg_desc()
    a(f"s_mul_i32 s{XM}, s{t2}, 0x01010101")
    a(f"s_mov_b32 s{XM+1}, s{XM}")
    a("s_mov_b64 exec, 1")
    a(f"v_mov_b32 v{NA}, s{sDL}")
    a(f"s_cmp_lg_u32 s{sw}, 4")
    a("s_cbranch_scc1 L_noreg")
    a(f"buffer_store_byte v{NV}, off, {S4(rDBG)}, s{t1}")
    a(f"s_cmp_lg_u32 s{sidx}, 0")
    a("s_cbranch_scc1 L_noreg")
    a(f"s_or_b32 s{t0}, s{RT}, 1")
    a(f"s_or_b32 s{t2}, s{RT+1}, 1")
    a(f"v_mov_b32 v236, s{t0}")
    a(f"v_mov_b32 v237, s{t2}")
    a(f"buffer_atomic_cmpswap_x2 v[236:239], off, {S4(rDBG)}, s{sDL} sc1")
    a.lab("L_noreg")
    a("s_mov_b64 exec, -1")
    stamp_init()
    a(f"s_and_b32 s{stt}, s{sw}, 1")
    a(f"s_bfe_u32 s{scg}, s{sw}, 0x10001")
    a(f"v_and_b32 v{u0}, 31, v0")
    a(f"v_bfe_u32 v{u1}, v0, 1, 3")
    a(f"v_lshrrev_b32 v{u2}, 5, v0")
    a(f"v_xor_b32 v{u1}, v{u1}, v{u2}")
    a(f"v_lshlrev_b32 v{u1}, 4, v{u1}")
    a(f"v_lshl_add_u32 v{u1}, v{u0}, 7, v{u1}")
    a(f"s_lshl_b32 s{t0}, s{stt}, 13")
    a(f"s_add_u32 s{t0}, s{t0}, {XOFF}")
    for ks in range(4):
        a(f"v_xor_b32 v{XA+ks}, {32*ks}, v{u1}")
        a(f"v_add_u32 v{XA+ks}, s{t0}, v{XA+ks}")
    a(f"v_bfe_u32 v{u0}, v0, 4, 1")
    a(f"v_and_b32 v{u1}, 3, v0")
    a(f"v_lshlrev_b32 v{u1}, 3, v{u1}")
    a(f"v_lshl_add_u32 v{u0}, v{u0}, 5, v{u1}")
    a(f"s_mul_i32 s{t0}, s{scg}, 112")
    a(f"v_add_u32 v{WA1}, s{t0}, v{u0}")
    a(f"v_add_u32 v{WA1+1}, 56, v{WA1}")
    a(f"s_mul_i32 s{t0}, s{scg}, 56")
    a(f"v_add_u32 v{WA1+2}, s{t0}, v{u0}")
    a("s_mov_b32 exec_lo, 0x88880000")
    a("s_mov_b32 exec_hi, 0x88880000")
    a(f"v_or_b32 v{WA1}, 192, v{WA1}")
    a(f"v_or_b32 v{WA1+1}, 192, v{WA1+1}")
    a(f"v_or_b32 v{WA1+2}, 64, v{WA1+2}")
    a("s_mov_b64 exec, -1")
    a(f"v_bfe_u32 v{u1}, v0, 2, 2")
    a(f"v_mul_u32_u24 v{u2}, 3072, v{u2}")
    a(f"v_lshl_add_u32 v{u3}, v{u1}, 8, v{u2}")
    a(f"v_lshlrev_b32 v{u4}, 6, v{u1}")
    for c in range(2):
        a(f"v_xor_b32 v{WA1+c}, v{WA1+c}, v{u4}")
        a(f"v_add_u32 v{WA1+c}, v{WA1+c}, v{u3}")
    a(f"v_lshl_add_u32 v{u3}, v{u1}, 7, v{u2}")
    a(f"v_lshlrev_b32 v{u4}, 5, v{u1}")
    a(f"v_and_b32 v{u4}, 64, v{u4}")
    a(f"v_xor_b32 v{WA1+2}, v{WA1+2}, v{u4}")
    a(f"v_add_u32 v{WA1+2}, v{WA1+2}, v{u3}")
    for r in range(64, 96): a(f"v_mov_b32 v{ACC+r}, 0")
    for r in range(20): a(f"v_mov_b32 v{FR+60+r}, 0")
    a(f"v_mov_b32 v{u0}, {GBC}")
    a(f"ds_write_b128 v{u0}, {vr(ACC+64,4)}")
    ids2a(1)
    ids2b(1)
    sE0, sSC, sDLT, sCNT = sXS, sWS_, sWL, sXL
    a(f"s_lshl_b32 s{su}, s{shalf}, 1")
    a(f"s_add_u32 s{su}, s{su}, s{scg}")
    a(f"s_lshl_b32 s{sF1O}, s{su}, 4")
    a(f"s_add_u32 s{sF1O}, s{sF1O}, s{srb}")
    a(f"s_lshl_b32 s{sF1O}, s{sF1O}, 7")
    a(f"s_lshl_b32 s{t0}, s{stt}, 3")
    a(f"s_add_u32 s{sF1O}, s{sF1O}, s{t0}")
    a(f"s_add_u32 s{sF1O}, s{sF1O}, {X_F1}")
    a(f"s_lshl_b32 s{t0}, s{srb}, 1")
    a(f"s_add_u32 s{t0}, s{t0}, s{stt}")
    a(f"s_lshl_b32 s{t1}, s{scg}, 6")
    a(f"s_add_u32 s{t0}, s{t0}, s{t1}")
    a(f"s_lshl_b32 s{sE0}, s{t0}, 13")
    a(f"s_sub_u32 s{t0}, s{sw}, 4")
    a(f"s_lshl_b32 s{t0}, s{t0}, 12")
    a(f"s_add_u32 s{t0}, s{t0}, {QX}")
    a(f"v_add_u32 v{QW}, s{t0}, v{L16}")
    a(f"s_mov_b32 s{sSC}, {CSCALE:#x}")
    a(f"s_mov_b32 s{sCNT}, 0")
    a(f"s_mov_b32 s{sDLT}, 0")
    a(f"s_cmp_lg_u32 s{shalf}, 0")
    a("s_cbranch_scc1 P1_v1")
    def reads(ks):
        b = FR + 20 * ks
        out = [f"ds_read_b128 {vr(b+4*e,4)}, v{XA+ks} offset:{4096*e}" for e in range(2)]
        for c in range(3):
            for h in range(2):
                off = 6144 * ks + (1024 * h if c < 2 else 2048 + 512 * h)
                out.append(f"ds_read_b64_tr_b16 {vr(b+8+4*c+2*h,2)}, v{WA1+c} offset:{off}")
        return [out[0], out[2], out[3], out[1]] + out[4:]
    def mfma1(ks, e, c, ori):
        b = FR + 20 * ks
        x = vr(b + 4 * e, 4); w = vr(b + 8 + 4 * c, 4)
        p, q = (w, x) if ori[c] == 'n' else (x, w)
        d = vr(ACC + 16 * (2 * c + e), 16)
        return f"v_mfma_f32_32x32x16_bf16 {d}, {p}, {q}, {d}"
    for v, ori in enumerate(["nnn", "vvn"]):
        a.lab(f"P1_v{v}")
        if v == 0:
            for r in range(64): a(f"v_mov_b32 v{ACC+r}, 0")
            a("s_mov_b32 exec_lo, 0")
            for t_ in range(4): a(f"v_mov_b32 v{ACC+16*t_+12}, 1.0")
            a("s_mov_b32 exec_lo, -1")
            a(f"v_and_b32 v{u0}, 0x33, v0")
            a(f"v_bfe_u32 v{u1}, v0, 2, 1")
            a(f"v_lshl_add_u32 v{u0}, v{u1}, 3, v{u0}")
            a(f"v_bfe_u32 v{u1}, v0, 3, 1")
            a(f"v_lshl_add_u32 v{u0}, v{u1}, 2, v{u0}")
            a(f"v_lshlrev_b32 v{TAU}, 4, v{u0}")
        else:
            a(f"v_and_b32 v{u0}, 31, v0")
            a(f"v_cmp_eq_u32 vcc, 28, v{u0}")
            a(f"v_mov_b32 v{u1}, 1.0")
            a(f"v_add_u32 v{TAU}, 2048, v{L16}")
            a(f"v_cndmask_b32 v{ACC}, 0, v{u1}, vcc")
            for r in range(1, 64): a(f"v_mov_b32 v{ACC+r}, v{ACC}")
        a("s_waitcnt lgkmcnt(0)")
        stamp(a, "setup")
        mm = [(e, c) for c in range(3) for e in range(2)]
        def cstamps():
            if STAMP or DIAG:
                for nm in STL + [DIAG]:
                    if len(nm) == 2 and nm[0] == "c" and nm != "c0":
                        a(f"s_cmp_eq_u32 s{sCNT}, {int(nm[1])}")
                        a(f"s_cbranch_scc1 L_ns{v}{nm}")
                        a.lab(f"L_nb{v}{nm}")
                        stails.append((f"{v}{nm}", nm))
        a("s_barrier")
        stamp(a, "c0")
        for x in reads(0): a(x)
        a.raw(".p2align 6")
        a.lab(f"P1_loop{v}")
        for ks, rk in ((3, 1), (0, 2), (1, 3)):
            rd = reads(rk)
            if ks != 3: a("s_waitcnt lgkmcnt(8)")
            for j, (e, c) in enumerate(mm):
                a(mfma1(ks, e, c, ori))
                for x in rd[2*j:2*j+2]: a(x)
                if ks == 3 and j == 4:
                    a(f"s_cmp_eq_u32 s{sCNT}, {NPOS}")
                    a(f"s_cbranch_scc1 L_nn{v}")
                    a.lab(f"L_nnb{v}")
                    a(f"s_add_u32 s{sCNT}, s{sCNT}, 1")
                    a(f"s_mov_b32 s{sDLT}, {STAGE}")
                if ks == 0 and j == 4:
                    a(f"s_cmp_eq_u32 s{sCNT}, 3")
                    a(f"s_cselect_b32 s{sDLT}, {(-2*STAGE) & 0xffffffff:#x}, s{sDLT}")
                    a(f"s_cmp_eq_u32 s{sCNT}, 6")
                    a(f"s_cselect_b32 s{sDLT}, {(-2*STAGE) & 0xffffffff:#x}, s{sDLT}")
                if ks == 1 and j == 4:
                    for i in range(4): a(f"v_add_u32 v{XA+i}, s{sDLT}, v{XA+i}")
                if ks == 1 and j == 5:
                    for i in range(4, 7): a(f"v_add_u32 v{XA+i}, s{sDLT}, v{XA+i}")
        a(f"s_cmp_eq_u32 s{sCNT}, 7")
        a("s_waitcnt lgkmcnt(8)")
        a(f"s_cbranch_scc1 P1_last{v}")
        rd = reads(0)
        for j, (e, c) in enumerate(mm):
            a(mfma1(2, e, c, ori))
            if j == BPOS - 1: a("s_waitcnt lgkmcnt(0)")
            if j == BPOS:
                a("s_barrier")
                cstamps()
            if j > BPOS:
                n_ = -(-8 // (5 - BPOS)) if j < 5 else 8
                for x in rd[:n_]: a(x)
                rd = rd[n_:]
        if BPOS == 5:
            for x in rd: a(x)
        a(f"s_branch P1_loop{v}")
        a.lab(f"L_nn{v}")
        a(f"buffer_load_dwordx2 {vr(NV,2)}, v{NA}, {S4(rDBG)}, 0 offen sc1")
        a(f"s_branch L_nnb{v}")
        a.lab(f"P1_last{v}")
        tiles = [(0, 0), (1, 0), (0, 1), (1, 1), (0, 2), (1, 2)]
        def epi(t_):
            e, c = tiles[t_]
            d = ACC + 16 * (2 * c + e)
            P = P1 + 8 * (t_ % 3)
            if c == 2:
                for r in range(16): a(f"v_mul_f32 v{d+r}, s{sSC}, v{d+r}")
            for i in range(8): a(f"v_cvt_pk_bf16_f32 v{P+i}, v{d+2*i}, v{d+2*i+1}")
            if c == 2:
                a(f"ds_write_b128 v{QW}, {vr(P,4)} offset:{2048*e}")
                a(f"ds_write_b128 v{QW}, {vr(P+4,4)} offset:{2048*e+1024}")
            else:
                if t_: a(f"s_add_u32 s{sE0}, s{sE0}, {4096 if e == 1 else 63*4096}")
                tag = f"{v}{t_}"
                a(f"s_cbranch_vccz L_wt{tag}")
                a(f"buffer_store_dwordx4 {vr(P,4)}, v{TAU}, {S4(rWS)}, s{sE0} offen")
                a(f"buffer_store_dwordx4 {vr(P+4,4)}, v{TAU}, {S4(rWS)}, s{sE0} offen offset:1024")
                a.lab(f"L_st{tag}")
                tails.append((tag, P, sE0))
        a(mfma1(2, *tiles[0], ori))
        a(mfma1(2, *tiles[1], ori))
        a("s_waitcnt vmcnt(0) lgkmcnt(0)")
        stamp(a, "last")
        a(mfma1(3, *tiles[0], ori))
        a(f"v_cmp_eq_u64 vcc, {S2(XM)}, {vr(NV,2)}")
        a(f"s_and_b32 s{t0}, vcc_lo, 0xf0")
        a(f"s_cmp_eq_u32 s{t0}, 0xf0")
        a(f"s_cselect_b32 s{sLOC}, {1 if LOCAL else 0}, 0")
        a(mfma1(3, *tiles[1], ori))
        a(f"s_cselect_b64 vcc, {-1 if LOCAL else 0}, 0")
        for k in (2, 3): a(mfma1(k, *tiles[2], ori))
        a("s_nop 3")
        for t_ in range(6):
            epi(t_)
            if t_ + 3 < 6:
                for k in (2, 3): a(mfma1(k, *tiles[t_ + 3], ori))
        if v == 0: a("s_branch P1_done")
    a.lab("P1_done")
    arrive(a, 4)
    stamp(a, "p1end")
    nonce("C")
    a("s_mov_b64 exec, 1")
    a(f"s_cmp_eq_u32 s{sLOC}, 0")
    a("s_waitcnt vmcnt(0)")
    a("s_cbranch_scc1 L_f1wt")
    a(f"buffer_store_dwordx2 {vr(NV,2)}, off, {S4(rWS)}, s{sF1O}")
    a.lab("L_f1st")
    a("s_mov_b64 exec, -1")
    a("s_setprio 1")
    stamp(a, "ack1")
    getq(1)
    pre2()
    a("s_waitcnt lgkmcnt(0)")
    arrive(a, 8)
    a.lab("L_ph2")
    a.vreset()
    poll(a, "L_f1", F1A, rWS)
    stamp(a, "poll1")
    def ldK(kt, f): a.vmem(f"buffer_load_dwordx4 {vr(KB[kt%4]+4*f,4)}, v{L16}, {S4(rKV)}, s{KT[kt]} offen offset:{1024*f} sc1", ("K", kt))
    def ldV(kt, f): a.vmem(f"buffer_load_dwordx4 {vr(VB[kt%4]+4*f,4)}, v{L16}, {S4(rKV)}, s{KT[kt]} offen offset:{2048+1024*f} sc1", ("V", kt))
    order = [(0, 3), (1, 3), (0, 0), (0, 1), (0, 2), (1, 0), (1, 1), (1, 2)]
    for k in range(2, 14):
        order += [(k, 0), (k, 1), (k, 2)] + ([(k, 3)] if k < 16 - NOWN else [])
    order += [(14, 0), (15, 0), (14, 1), (15, 1), (14, 2), (15, 2)] + [(k, 3) for k in range(16 - NOWN, 16)]
    assert sorted(order) == [(k, i) for k in range(16) for i in range(4)]
    NP = 64
    def qk(p):
        kt, i = order[p]
        s = SB[p % 3]; k = KB[kt % 4]
        return [f"v_mfma_f32_32x32x16_bf16 {vr(s,16)}, {vr(k,4)}, {vr(Q[i],4)}, 0",
                f"v_mfma_f32_32x32x16_bf16 {vr(s,16)}, {vr(k+4,4)}, {vr(Q[i]+4,4)}, {vr(s,16)}"]
    def pv(p):
        kt, i = order[p]
        s = SB[p % 3]; v = VB[kt % 4]
        return [f"v_smfmac_f32_32x32x32_bf16 {vr(O[i],16)}, {vr(v,4)}, {vr(s,8)}, v{IDX}",
                f"v_smfmac_f32_32x32x32_bf16 {vr(O[i],16)}, {vr(v+4,4)}, {vr(s+8,8)}, v{IDX}"]
    ldK(0, 0); ldK(0, 1); ldK(1, 0); ldK(1, 1)
    a("s_waitcnt lgkmcnt(0)")
    a.vwait(("K", 0))
    stamp(a, "k0")
    for x in qk(0): a(x)
    ldV(0, 0); ldV(0, 1); ldV(1, 0); ldV(1, 1)
    a("s_nop 7")
    s = SB[0]
    a(f"v_max3_f32 v{T}, v{s}, v{s+1}, v{s+2}")
    a(f"v_max3_f32 v{T+1}, v{s+3}, v{s+4}, v{s+5}")
    for i in range(6, 14, 4):
        a(f"v_max3_f32 v{T}, v{T}, v{s+i}, v{s+i+1}")
        a(f"v_max3_f32 v{T+1}, v{T+1}, v{s+i+2}, v{s+i+3}")
    a(f"v_max3_f32 v{T}, v{T}, v{s+14}, v{s+15}")
    a(f"v_max_f32 v{T}, v{T}, v{T+1}")
    a(f"v_mov_b32 v{T+1}, v{T}")
    a("s_nop 1")
    a(f"v_permlane32_swap_b32 v{T}, v{T+1}")
    a(f"v_max_f32 v{T}, v{T}, v{T+1}")
    if FORCEFB: a(f"v_add_f32 v{T}, 0x43480000, v{T}")
    a(f"v_xor_b32 v{T}, 0x80000000, v{T}")
    a("s_mov_b32 exec_lo, 0")
    a(f"v_lshrrev_b32 v{Q[3]+6}, 16, v{T}")
    a("s_mov_b32 exec_lo, -1")
    a(f"ds_write_b32 v{MW}, v{Q[3]+6}")
    arrive(a)
    for x in qk(0): a(x)
    a("s_nop 9")
    stamp(a, "loop0")
    lastK = {k: max(p for p in range(NP) if order[p][0] == k) - 1 for k in range(16)}
    lastV = {k: max(p for p in range(NP) if order[p][0] == k) + 1 for k in range(16)}
    lq = []
    for k in range(2, 16):
        fk = lastK[k - 4] + 1 if k >= 4 else 0
        fv = lastV[k - 4] + 1 if k >= 4 else 0
        lq += [(lambda k=k: ldK(k, 0), fk), (lambda k=k: ldK(k, 1), fk), (lambda k=k: ldV(k, 0), fv), (lambda k=k: ldV(k, 1), fv)]
    wq = []
    for i in range(3):
        lp = max(p for p in range(NP) if order[p][1] == i) + 1
        for g in range(4):
            wq.append((lambda i=i, g=g: a(f"ds_write_b128 v{PW+i}, {vr(O[i]+4*g,4)} offset:{1024*g}"), 4 * (lp + 1) + 2))
    rq = [lambda i=i: a(f"ds_read_b128 {vr(O[i//4]+4*(i%4),4)}, v{PR} offset:{1024*i}") for i in range(12)]
    state = {"arr": None, "rd": False}
    for p in range(NP):
        s = SB[p % 3]
        stamp(a, f"ph{p}")
        mq = qk(p + 1) if p + 1 < NP else [None, None]
        mp = pv(p - 1) if p >= 1 else [None, None]
        ms = [("q", x) for x in mq] + [("p", x) for x in mp]
        if p == 1:
            ms = ms[2:] + ms[:2]
            lcheck(a, "L_m", 4)
            stamp(a, "bq1")
            for i in range(3): a(f"ds_read_b32 v{Q[i]+6}, v{MR+i}")
        if p == 2: a("s_nop 6")
        for g in range(4):
            kind, m = ms[g]
            if m:
                if kind == "q":
                    k1 = order[p + 1][0]
                    a.vwait(("V", k1) if (k1 >= 2 and sum(1 for t in a.vm if t == ("V", k1)) == 2) else ("K", k1))
                    if p == 1 and g == 3: a("s_waitcnt lgkmcnt(0)")
                else:
                    a.vwait(("V", order[p - 1][0]))
                a(m)
            slot = 4 * p + g
            if slot == 3: lpre(a)
            if p == WOT and g == 2: a.vmem(f"buffer_load_dword v{T+8}, v{TAU}, {S4(rWO)}, 0 offen", "wot")
            if lq and lq[0][1] <= p and (g == 0 or (g == 1 and (p < 12 or p >= 40))): lq.pop(0)[0]()
            elif wq and wq[0][1] <= slot:
                wq.pop(0)[0]()
                if not wq:
                    arrive(a); state["arr"] = slot
            elif state["arr"] is not None and slot == state["arr"] + 2: lpre(a)
            elif state["arr"] is not None and not state["rd"] and slot >= state["arr"] + 4:
                lcheck(a, "L_p", 8)
                stamp(a, "b1")
                state["rd"] = True
                for _ in range(4): rq.pop(0)()
            elif state["rd"] and rq:
                for _ in range(4): rq.pop(0)()
            for jj in range(4): a(f"v_exp_f32 v{s+4*g+jj}, v{s+4*g+jj}")
    assert not lq and not wq and state["rd"]
    while rq: rq.pop(0)()
    a("s_nop 1")
    for x in pv(63): a(x)
    stamp(a, "loop1")
    OO = O[3]
    a("s_waitcnt lgkmcnt(0)")
    if ARR3 == "early": arrive(a)
    for r in range(16): a(f"v_add_f32 v{O[0]+r}, v{O[0]+r}, v{O[1]+r}")
    for r in range(16): a(f"v_add_f32 v{O[0]+r}, v{O[0]+r}, v{O[2]+r}")
    a(f"v_add_f32 v{OO+12}, v{OO+12}, v{O[0]+12}")
    a(f"v_mov_b32 v{T}, v{OO+12}")
    a(f"v_mov_b32 v{T+1}, v{OO+12}")
    for r in range(0, 4): a(f"v_add_f32 v{OO+r}, v{OO+r}, v{O[0]+r}")
    a(f"v_permlane32_swap_b32 v{T}, v{T+1}")
    for r in range(4, 16):
        if r != 12: a(f"v_add_f32 v{OO+r}, v{OO+r}, v{O[0]+r}")
    a(f"s_mov_b32 s{sFB}, 0")
    a.lab("L_norm")
    a(f"v_rcp_f32 v{T}, v{T+1}")
    a("s_nop 0")
    P = T + 4
    for r in range(8): a(f"v_mul_f32 v{OO+r}, v{OO+r}, v{T}")
    for i in range(4): a(f"v_cvt_pk_bf16_f32 v{P+i}, v{OO+2*i}, v{OO+2*i+1}")
    a(f"buffer_store_dwordx4 {vr(P,4)}, v{L16}, {S4(rBR)}, s{sOO} offen sc1")
    for r in range(8, 16): a(f"v_mul_f32 v{OO+r}, v{OO+r}, v{T}")
    for i in range(4, 8): a(f"v_cvt_pk_bf16_f32 v{P+i}, v{OO+2*i}, v{OO+2*i+1}")
    a("s_mov_b32 exec_hi, 0")
    a(f"buffer_store_dwordx4 {vr(P+4,4)}, v{L16}, {S4(rBR)}, s{sOO} offen offset:1024 sc1")
    a("s_not_b64 exec, exec")
    a(f"buffer_store_dwordx2 {vr(P+4,2)}, v{L8}, {S4(rBR)}, s{sOO} offen offset:1280 sc1")
    a("s_mov_b64 exec, -1")
    stamp(a, "ost")
    a(f"s_cmp_lg_u32 s{sFB}, 0")
    a("s_cbranch_scc1 L_checked")
    if ARR3 == "late": arrive(a)
    a(f"v_mul_f32 v{T+2}, 0, v{OO}")
    a(f"v_mul_f32 v{T+3}, 0, v{OO+1}")
    for r in range(2, 16): a(f"v_fma_f32 v{T+2+(r&1)}, 0, v{OO+r}, v{T+2+(r&1)}")
    a(f"v_add_f32 v{T+2}, v{T+2}, v{T+3}")
    a(f"v_add_f32 v{T+2}, v{T+2}, v{T+1}")
    a(f"v_cmp_nlt_f32 vcc, 0x35800000, v{T+2}")
    a(f"s_mov_b64 {S2(sROT)}, vcc")
    a(f"v_cmp_ngt_f32 vcc, 0x71800000, v{T+2}")
    a(f"s_or_b64 vcc, vcc, {S2(sROT)}")
    a("s_cbranch_vccnz L_fallback")
    a.lab("L_checked")
    NF = T + 2
    a(f"v_mov_b32 v{NF}, s{NONCE}")
    a(f"v_mov_b32 v{NF+1}, s{NONCE+1}")
    a("s_mov_b64 exec, 1")
    a(f"s_cmp_eq_u32 s{sg}, 0")
    a("s_waitcnt vmcnt(0)")
    a(f"buffer_store_dwordx2 {vr(NF,2)}, off, {S4(rBR)}, s{sF2O} sc1")
    a("s_mov_b64 exec, -1")
    stamp(a, "flag2")
    a("s_cbranch_scc0 L_fin1" if DIAG else "s_cbranch_scc0 L_fin")
    lwait(a, "L_g3", 0, 12)
    lwait(a, "L_h2", 12, 4)
    for j in (0, 4):
        a(f"s_add_u32 s{t0}, s{skq}, {j}")
        a(f"s_min_u32 s{t0}, s{t0}, 6")
        a(f"s_lshl_b32 s{KT[j]}, s{t0}, 10")
    a(f"s_lshr_b32 s{sROT}, s{sidx}, 2")
    a(f"s_lshl_b32 s{sROT}, s{sROT}, 1")
    a(f"s_min_u32 s{sROT}, s{sROT}, 13")
    a(f"s_mov_b32 s{t1}, 14")
    a("s_setprio 0")
    if OUTW:
        a("s_mov_b64 exec, 1")
        a(f"buffer_load_dword v{T+8}, v{OUTA}, {S4(rOUT)}, s{sOUTO} offen")
        a("s_mov_b64 exec, -1")
    a.lab("L_wo")
    a(f"s_mul_i32 s{sWOL}, s{sROT}, 7168")
    a(f"s_mul_i32 s{sWOS}, s{sROT}, 28672")
    a(f"s_add_u32 m0, s{sWOL}, s{KT[0]}")
    a(f"s_add_u32 s{sROT}, s{sROT}, 1")
    a(f"buffer_load_dwordx4 v{WOA}, {S4(rWO)}, s{sWOS} offen lds")
    a(f"s_add_u32 m0, s{sWOL}, s{KT[4]}")
    a(f"s_cmp_eq_u32 s{sROT}, 14")
    a(f"buffer_load_dwordx4 v{WO2}, {S4(rWO)}, s{sWOS} offen lds")
    a(f"s_cselect_b32 s{sROT}, 0, s{sROT}")
    a(f"s_sub_u32 s{t1}, s{t1}, 1")
    a(f"s_cmp_lg_u32 s{t1}, 0")
    a(f"s_waitcnt vmcnt({WOFL})")
    a("s_cbranch_scc1 L_wo")
    WB = 16
    steps = []
    for q in range(2):
        for j in range(4 * q, 4 * q + 4): steps.append((0, lambda aa, j=j: 56 * j + 8 * aa, ("A", j)))
        for i in range(2 * q, 2 * q + 2): steps.append((1, lambda aa, i=i: 112 * i + 16 + 8 * aa, ("B", 2 * i)))
        steps.append((2, lambda aa, q=q: 56 * (4 * q + aa) + 20, ("C", 4 * q)))
    def wread(st, ks):
        t, row, _ = steps[ks]
        for aa in range(2):
            off = row(aa) * 224
            ad = WA + t
            if off >= 50176: off -= 50176; ad += 3
            a(f"ds_read_b64_tr_b16 {vr(WB+56*st+4*ks+2*aa,2)}, v{ad} offset:{off}")
    sOS, sOL, sD = KT[1], KT[2], KT[3]
    a(f"s_mul_i32 s{sOS}, s{sRT}, 1792")
    a(f"s_mul_i32 s{sOL}, s{skq}, 7168")
    a(f"s_cmp_eq_u32 s{sPE}, 0")
    a(f"s_cselect_b32 s{sD}, 1, -1")
    a(f"s_mul_i32 s{t0}, s{sD}, {28*224}")
    a("s_waitcnt vmcnt(0)")
    a("s_setprio 2")
    gbar(a, "L_g4", 4)
    stamp(a, "woland")
    for ks in range(14): wread(0, ks)
    for i in range(6): a(f"v_add_u32 v{WA+i}, s{t0}, v{WA+i}")
    for ks in range(14): wread(1, ks)
    a(f"s_mul_i32 s{t0}, s{sD}, {8*F2SP}")
    a(f"v_add_u32 v{WA}, s{t0}, v{F2A}")
    a("s_waitcnt lgkmcnt(0)")
    gbar(a, "L_g5", 5)
    ACC3 = [128, 144]; OB = 176; NB = 12; PK = 224
    def stage_load(st):
        poll(a, f"L_f2{st}", F2A if st == 0 else WA, rBR)
        stamp(a, "poll2" if st else "poll2a")
        a(f"s_mov_b32 m0, s{sOL}")
        a(f"s_add_u32 s{t0}, s{sOS}, 4096")
        for i in range(4): a(f"buffer_load_dwordx4 v{L16}, {S4(rBR)}, s{sOS} offen offset:{1024*i} sc1 lds")
        a(f"s_add_u32 m0, s{sOL}, 4096")
        a("s_nop 0")
        for i in range(3): a(f"buffer_load_dwordx4 v{L16}, {S4(rBR)}, s{t0} offen offset:{1024*i} sc1 lds")
        a("s_waitcnt vmcnt(0)")
    def stage_mfma(st):
        lg = []
        items = [(ks, e) for ks in range(14) for e in range(2)] if st == 0 else [(ks, e) for e in range(2) for ks in range(14)]
        def oread(n_):
            ks, e = items[n_]
            kind, hd = steps[ks][2]
            d = OB + 4 * (n_ % NB)
            base = 28672 * st + 14336 * e
            if kind == "A": a(f"ds_read_b128 {vr(d,4)}, v{OA} offset:{base+hd*1792}"); lg.append(n_)
            elif kind == "B": a(f"ds_read_b128 {vr(d,4)}, v{OA+1} offset:{base+hd*1792+1024}"); lg.append(n_)
            else:
                for aa in range(2):
                    a(f"ds_read_b64 {vr(d+2*aa,2)}, v{OA+2} offset:{base+(hd+aa)*1792+1536}"); lg.append(n_)
        for n_ in range(NB): oread(n_)
        for n_ in range(28):
            ks, e = items[n_]
            out = sum(1 for k in lg if k > n_)
            assert out < 16
            a(f"s_waitcnt lgkmcnt({out})")
            c = "0" if (st == 0 and ks == 0) else vr(ACC3[e], 16)
            a(f"v_mfma_f32_32x32x16_bf16 {vr(ACC3[e],16)}, {vr(WB+56*st+4*ks,4)}, {vr(OB+4*(n_%NB),4)}, {c}")
            if n_ + NB < 28: oread(n_ + NB)
            if st == 1 and 20 <= n_ < 24:
                for i in range(2 * (n_ - 20), 2 * (n_ - 20) + 2): a(f"v_cvt_pk_bf16_f32 v{PK+i}, v{ACC3[0]+2*i}, v{ACC3[0]+2*i+1}")
    stage_load(0)
    if not HB: gbar(a, "L_g6", 6)
    stamp(a, "aland")
    a(f"s_mul_i32 s{t0}, s{sD}, 14336")
    a(f"s_add_u32 s{sOS}, s{sOS}, s{t0}")
    a(f"s_add_u32 s{sOL}, s{sOL}, 28672")
    if HB: a("s_barrier")
    else: lwait(a, "L_h3", 4, 12, 4)
    a("s_setprio 0")
    stage_mfma(0)
    stamp(a, "tileA")
    stage_load(1)
    stamp(a, "oown")
    a("s_barrier")
    stamp(a, "oland")
    stage_mfma(1)
    stamp(a, "mf3")
    a(f"ds_write_b128 v{TW}, {vr(PK,4)}")
    a(f"ds_write_b128 v{TW+1}, {vr(PK+4,4)}")
    a(f"ds_read_b128 {vr(OB,4)}, v{TR}")
    a(f"ds_read_b128 {vr(OB+4,4)}, v{TR} offset:1024")
    a(f"s_add_u32 s{t0}, s{sOUTO}, {16*1792}")
    a(f"s_add_u32 s{t1}, s{sOUTO}, {32*1792}")
    a(f"s_add_u32 s{t2}, s{sOUTO}, {48*1792}")
    a("s_nop 4")
    for i in range(8): a(f"v_cvt_pk_bf16_f32 v{PK+8+i}, v{ACC3[1]+2*i}, v{ACC3[1]+2*i+1}")
    a(f"ds_write_b128 v{TW}, {vr(PK+8,4)} offset:2048")
    a(f"ds_write_b128 v{TW+1}, {vr(PK+12,4)} offset:2048")
    a(f"ds_read_b128 {vr(OB+8,4)}, v{TR} offset:2048")
    a(f"ds_read_b128 {vr(OB+12,4)}, v{TR} offset:3072")
    a(f"s_mov_b64 exec, {S2(XM)}")
    a("s_waitcnt lgkmcnt(4)")
    a(f"buffer_store_dwordx4 {vr(OB,4)}, v{OUTA}, {S4(rOUT)}, s{sOUTO} offen {OUTF}")
    a(f"buffer_store_dwordx4 {vr(OB+4,4)}, v{OUTA}, {S4(rOUT)}, s{t0} offen {OUTF}")
    a("s_waitcnt lgkmcnt(1)")
    a(f"buffer_store_dwordx4 {vr(OB+8,4)}, v{OUTA}, {S4(rOUT)}, s{t1} offen {OUTF}")
    a("s_waitcnt lgkmcnt(0)")
    a(f"buffer_store_dwordx4 {vr(OB+12,4)}, v{OUTA}, {S4(rOUT)}, s{t2} offen {OUTF}")
    a.lab("L_fin")
    if STAMP:
        a("s_waitcnt vmcnt(0)")
        a("s_memrealtime s[22:23]")
        a("s_memtime s[98:99]")
        a("s_waitcnt lgkmcnt(0)")
        a("s_mov_b64 exec, 1")
        a(f"s_mov_b32 s{rWS}, s20"); a(f"s_mov_b32 s{rWS+1}, s21"); a(f"s_mov_b32 s{rWS+2}, 0x10000000")
        a(f"s_lshl_b32 s{t1}, s2, 9")
        a(f"s_add_u32 s{t1}, s{t1}, {64<<20}")
        a(f"s_lshl_b32 s{t0}, s{sw}, 6")
        a(f"s_add_u32 s{t1}, s{t1}, s{t0}")
        for i, r in enumerate([RT, 22, 100, 98] + [80 + 2 * k for k in range(9)] + [sLOC]):
            a(f"v_mov_b32 v1, s{r}")
            a(f"buffer_store_dword v1, off, {S4(rWS)}, s{t1} offset:{4*i}")
    if DIAG:
        a("s_waitcnt vmcnt(0)")
        if DIAG == "end": a("s_memrealtime s[80:81]")
        if DIAG == "none": a(f"s_mov_b32 s80, s{NONCE}")
        a("s_waitcnt lgkmcnt(0)")
        a("s_add_u32 s80, s80, 6000")
        a.lab("L_diag")
        a("s_sleep 2")
        a("s_memrealtime s[82:83]")
        a("s_waitcnt lgkmcnt(0)")
        a("s_sub_u32 s82, s82, s80")
        a("s_cmp_lt_i32 s82, 0")
        a("s_cbranch_scc1 L_diag")
    a.lab("L_end")
    a("s_endpgm")
    for tag, P_, so in tails:
        a.lab(f"L_wt{tag}")
        a(f"buffer_store_dwordx4 {vr(P_,4)}, v{TAU}, {S4(rWS)}, s{so} offen sc1")
        a(f"buffer_store_dwordx4 {vr(P_+4,4)}, v{TAU}, {S4(rWS)}, s{so} offen offset:1024 sc1")
        a(f"s_branch L_st{tag}")
    for tag, nm in stails:
        a.lab(f"L_ns{tag}")
        stamp(a, nm)
        a(f"s_branch L_nb{tag}")
    if DIAG:
        a.lab("L_fin1")
        a("s_barrier")
        if HB: a("s_barrier")
        a("s_branch L_fin")
    for name, target in slow:
        a.lab(f"{name}_slow")
        lwait(a, name, 0, target, 1)
        a(f"s_branch {name}_back")
    a.lab("L_f1wt")
    a(f"buffer_store_dwordx2 {vr(NV,2)}, off, {S4(rWS)}, s{sF1O} sc1")
    a("s_branch L_f1st")
    for tag in "LC":
        a.lab(f"L_nonce_retry{tag}")
        a(f"buffer_load_dwordx2 {vr(NV,2)}, off, {S4(rDBG)}, s{sDL} sc1")
        a(f"s_sub_u32 s{t3}, s{t3}, 1")
        a("s_cbranch_scc1 L_end")
        a("s_waitcnt vmcnt(0)")
        a(f"s_branch L_nonce{tag}")
    a.lab("L_fallback")
    QO = Q[3]; S0 = SB[0]; K0 = KB[0]; V0 = VB[0]; M = T + 2
    a("s_waitcnt vmcnt(0)")
    a(f"s_mov_b32 s{sFB}, 1")
    a("s_mov_b32 exec_lo, 0")
    a(f"v_mov_b32 v{QO+6}, 0")
    a("s_mov_b32 exec_lo, -1")
    for r in range(16): a(f"v_mov_b32 v{OO+r}, 0")
    a(f"v_mov_b32 v{M}, 0xff7fffff")
    a(f"s_mov_b32 s{sKVO}, 0")
    a.lab("L_fb_loop")
    a(f"buffer_load_dwordx4 {vr(K0,4)}, v{L16}, {S4(rKV)}, s{sKVO} offen sc1")
    a(f"buffer_load_dwordx4 {vr(K0+4,4)}, v{L16}, {S4(rKV)}, s{sKVO} offen offset:1024 sc1")
    a(f"buffer_load_dwordx4 {vr(V0,4)}, v{L16}, {S4(rKV)}, s{sKVO} offen offset:2048 sc1")
    a(f"buffer_load_dwordx4 {vr(V0+4,4)}, v{L16}, {S4(rKV)}, s{sKVO} offen offset:3072 sc1")
    a("s_waitcnt vmcnt(0)")
    a(f"v_mfma_f32_32x32x16_bf16 {vr(S0,16)}, {vr(K0,4)}, {vr(QO,4)}, 0")
    a(f"v_mfma_f32_32x32x16_bf16 {vr(S0,16)}, {vr(K0+4,4)}, {vr(QO+4,4)}, {vr(S0,16)}")
    a("s_nop 15")
    a(f"v_max3_f32 v{T}, v{M}, v{S0}, v{S0+1}")
    for i in range(2, 16, 2): a(f"v_max3_f32 v{T}, v{T}, v{S0+i}, v{S0+i+1}")
    a(f"v_mov_b32 v{T+1}, v{T}")
    a("s_nop 1")
    a(f"v_permlane32_swap_b32 v{T}, v{T+1}")
    a(f"v_max_f32 v{T}, v{T}, v{T+1}")
    a(f"v_sub_f32 v{T+1}, v{M}, v{T}")
    a(f"v_exp_f32 v{T+1}, v{T+1}")
    a(f"v_mov_b32 v{M}, v{T}")
    for r in range(16): a(f"v_sub_f32 v{S0+r}, v{S0+r}, v{T}")
    for r in range(16): a(f"v_exp_f32 v{S0+r}, v{S0+r}")
    for r in range(16): a(f"v_mul_f32 v{OO+r}, v{OO+r}, v{T+1}")
    a("s_nop 1")
    a(f"v_smfmac_f32_32x32x32_bf16 {vr(OO,16)}, {vr(V0,4)}, {vr(S0,8)}, v{IDX}")
    a(f"v_smfmac_f32_32x32x32_bf16 {vr(OO,16)}, {vr(V0+4,4)}, {vr(S0+8,8)}, v{IDX}")
    a(f"s_add_u32 s{sKVO}, s{sKVO}, 4096")
    a(f"s_cmp_lt_u32 s{sKVO}, 262144")
    a("s_nop 15")
    a("s_cbranch_scc1 L_fb_loop")
    a(f"v_mov_b32 v{T}, v{OO+12}")
    a(f"v_mov_b32 v{T+1}, v{OO+12}")
    a("s_nop 1")
    a(f"v_permlane32_swap_b32 v{T}, v{T+1}")
    a("s_branch L_norm")
    kd = f""".section .rodata,"a"
.p2align 6
.amdhsa_kernel {n}
  .amdhsa_next_free_vgpr 256
  .amdhsa_next_free_sgpr 102
  .amdhsa_accum_offset 256
  .amdhsa_group_segment_fixed_size 0
  .amdhsa_kernarg_size 72
  .amdhsa_user_sgpr_count 2
  .amdhsa_user_sgpr_kernarg_segment_ptr 1
  .amdhsa_system_sgpr_workgroup_id_x 1
.end_amdhsa_kernel
"""
    return a.text() + kd

hdr = f"""; @launch grid=(256,1,1) block=(512,1,1) lds={LDS}
.amdgcn_target "amdgcn-amd-amdhsa--gfx950"
.text
"""
open(sys.argv[1] if len(sys.argv) > 1 else "v8.s", "w").write(hdr + gen())
```

```python
import sys, os, struct, math
NAME = "concat_heads__softmax_full_mha__softmax_full_mha__prompt"
def f2u(x): return struct.unpack("<I", struct.pack("<f", x))[0]
CSCALE = f2u(28 ** -0.5 * math.log2(math.e))
E = os.environ.get
STAMP = E("STAMP", "0") in ("1", "3")
RTS = E("STAMP", "0") == "3"
DIAG = E("DIAG", "")
STL = E("STL", "c0,p1end,ack1,poll1,loop0,loop1,flag2,poll2,oland").split(",")
F2SP = int(E("F2SP", "32"))
FORCEFB = E("FORCEFB", "0") == "1"
LOCAL = E("LOCAL", "1") == "1"
PRET = int(E("PRET", "3"))
SLEEP = int(E("SLEEP", "0"))
OUTF = E("OUTF", "")
ROTA, ROTB, ROTC, ROTN, ROTS = [int(v) for v in E("ROTP", "1,0,1,4,2").split(",")]
WOFL = int(E("WOFL", "2"))
NOWN = int(E("NOWN", "4"))
NPOS = int(E("NPOS", "5"))
ARR3 = E("ARR3", "late")
OUTW = int(E("OUTW", "1"))
WOT = int(E("WOT", "10"))
HB = int(E("HB", "0"))
BPOS = int(E("BPOS", "2"))
TLBW = int(E("TLBW", "0"))
PROBE = int(E("PROBE", "0"))
WPRIO = int(E("WPRIO", "0"))
PRET2 = int(E("PRET2", "0"))
XMAP = E("XMAP", "")
T2POS = E("T2POS", "b6")
SPIN = 1 << 22

X_F1 = 1 << 20
B_BASE = 16 << 20; B_F2 = 1835008
STAGE = 40960; XOFF = 24576
PB0 = 40960; QX = 90112; MX = 106496; PB1 = 113664; TX = 57344; LDS = 163840; GBC = 163824

class A:
    def __init__(self):
        self.l = []; self.vm = []; self.done = 0
    def __call__(self, s): self.l.append("    " + s)
    def lab(self, s): self.l.append(s + ":")
    def raw(self, s): self.l.append(s)
    def text(self): return "\n".join(self.l) + "\n"
    def vreset(self): self.vm = []; self.done = 0
    def vmem(self, s, tag=None):
        self(s); self.vm.append(tag)
    def vwait(self, tag):
        idx = [i for i, t in enumerate(self.vm) if t == tag]
        assert idx, tag
        last = idx[-1] + 1
        if last <= self.done: return
        self.done = last
        n = len(self.vm) - last
        assert n < 64
        self(f"s_waitcnt vmcnt({n})")

def vr(b, n): return f"v[{b}:{b+n-1}]"
def S4(b): return f"s[{b}:{b+3}]"
def S2(b): return f"s[{b}:{b+1}]"
def stamp(a, name):
    if DIAG == name: a("s_memrealtime s[80:81]")
    if DIAG == name + "@0":
        a("s_cmp_lg_u32 s50, 0")
        a("s_cbranch_scc1 L_dg0")
        a("s_memrealtime s[80:81]")
        a.lab("L_dg0")
    if STAMP and name in STL:
        i = STL.index(name)
        a(f"{'s_memrealtime' if RTS else 's_memtime'} s[{80+2*i}:{81+2*i}]")

rX, rW, rWS, rWO, rOUT, rDBG, rKV, rBR = 24, 28, 32, 36, 64, 68, 72, 12
XM = 4
sLOC, sRT, sOUTO, sQT, sF1O, sPE = 6, 7, 8, 9, 10, 11
sKVO, sWOS, sWOL, sOO, sF2O, sFB = 16, 17, 18, 19, 22, 23
sx, sidx, sb, srb, shalf, sXS, sw, shl, shs, sg4, sg, sWL, sXL, sWS_, stt, scg, skq, su = range(40, 58)
t0, t1, sDL, t2, sROT, t3 = 58, 59, 60, 61, 62, 63
NONCE = 76; RT = 78
KT = [24, 25, 26, 27, 28, 29, 30, 31, 43, 44, 45, 51, 52, 53, 54, 55]
L16, IDX, CA, F1A, ONE, L8, MW, MR, PW, PR, TAU = 1, 2, 3, 4, 5, 6, 7, 8, 11, 14, 15
T = 240
XD, WD, XA, WA1, QW, NV, NA, PTA = 16, 18, 16, 20, 23, 232, 234, 235
ACC = 32; FR = 128; P1 = 208
Q = [16, 24, 32, 40]; O = [48, 64, 80, 96]; SB = [112, 128, 144]; KB = [176, 184, 192, 200]; VB = [208, 216, 224, 232]
WA, TW, OA, WO2, WOA, F2A, OUTA, TR = 160, 166, 168, 171, 172, 173, 174, 175

def lwait(a, name, off, target, sleep=2):
    a(f"s_mov_b32 s{t3}, {SPIN}")
    a.lab(f"{name}_spin")
    a(f"ds_read_b32 v{T+13}, v{CA} offset:{off}")
    a(f"s_sub_u32 s{t3}, s{t3}, 1")
    a("s_cbranch_scc1 L_end")
    a("s_waitcnt lgkmcnt(0)")
    a(f"v_readfirstlane_b32 s{t2}, v{T+13}")
    a(f"s_cmp_ge_u32 s{t2}, {target}")
    a(f"s_cbranch_scc1 {name}_done")
    a(f"s_sleep {sleep}")
    a(f"s_branch {name}_spin")
    a.lab(f"{name}_done")
def arrive(a, off=0):
    a("s_mov_b64 exec, 1")
    a(f"ds_add_u32 v{CA}, v{ONE} offset:{off}")
    a("s_mov_b64 exec, -1")
slow = []
def lpre(a): a(f"ds_read_b32 v{T+13}, v{CA}")
def lcheck(a, name, target):
    a("s_waitcnt lgkmcnt(0)")
    a(f"v_readfirstlane_b32 s{t2}, v{T+13}")
    a(f"s_cmp_ge_u32 s{t2}, {target}")
    a(f"s_cbranch_scc0 {name}_slow")
    a.lab(f"{name}_back")
    slow.append((name, target))
def gbar(a, name, k):
    arrive(a)
    lwait(a, name, 0, 4 * k)
def poll(a, name, vaddr, srd):
    a(f"s_mov_b32 s{t3}, {SPIN}")
    if SLEEP: a(f"s_branch {name}_first")
    a.lab(f"{name}_spin")
    if SLEEP:
        a(f"s_sleep {SLEEP}")
        a.lab(f"{name}_first")
    a(f"buffer_load_dwordx2 {vr(T+14,2)}, v{vaddr}, {S4(srd)}, 0 offen sc1")
    a(f"s_sub_u32 s{t3}, s{t3}, 1")
    a("s_cbranch_scc1 L_end")
    a("s_waitcnt vmcnt(0)")
    a(f"v_cmp_ne_u64 vcc, {S2(NONCE)}, {vr(T+14,2)}")
    a(f"s_cbranch_vccnz {name}_spin")

def gen():
    a = A(); n = NAME + "_kernel"
    tails = []; stails = []
    u0, u1, u2, u3, u4 = T, T + 1, T + 2, T + 3, T + 4
    a.raw(f".globl {n}\n.p2align 8\n.type {n},@function")
    a.lab(n)
    a("s_cmp_ge_u32 s2, 256")
    a("s_cbranch_scc1 L_end")
    a("s_load_dwordx16 s[4:19], s[0:1], 0")
    a("s_load_dwordx2 s[20:21], s[0:1], 64")
    a(f"s_memrealtime {S2(RT)}")
    if STAMP: a("s_memtime s[100:101]")
    a(f"s_and_b32 s{sx}, s2, 7")
    a(f"s_lshr_b32 s{sidx}, s2, 3")
    a("v_lshrrev_b32 v1, 6, v0")
    a("v_and_b32 v0, 63, v0")
    a(f"v_readfirstlane_b32 s{sw}, v1")
    if XMAP:
        tab = sum(int(c) << (4 * i) for i, c in enumerate(XMAP))
        assert sorted(XMAP) == list("01234567")
        a(f"s_lshl_b32 s{t0}, s{sx}, 2")
        a(f"s_lshr_b32 s{t0}, {tab:#x}, s{t0}")
        a(f"s_bfe_u32 s{sb}, s{t0}, 0x10002")
        a(f"s_and_b32 s{sg4}, s{t0}, 3")
    else:
        a(f"s_lshr_b32 s{sb}, s{sx}, 2")
        a(f"s_and_b32 s{sg4}, s{sx}, 3")
    a(f"s_lshr_b32 s{srb}, s{sidx}, 1")
    a(f"s_and_b32 s{shalf}, s{sidx}, 1")
    if TLBW:
        a(f"s_cmp_lt_u32 s{sw}, 4")
        a("s_cbranch_scc1 L_load")
        a(f"s_mul_i32 s{t0}, s{srb}, {128*896}")
        a(f"s_cmp_eq_u32 s{sb}, 0")
        a(f"v_mov_b32 v{u0}, s{t0}")
        a(f"v_mul_u32_u24 v{u1}, {7*2688}, v0")
        a("s_waitcnt lgkmcnt(0)")
        a(f"s_cselect_b64 {S2(rX)}, s[4:5], s[10:11]")
        a(f"s_cselect_b64 {S2(rW)}, s[6:7], s[12:13]")
        if TLBW == 1: a("s_mov_b64 exec, 1")
        a(f"global_load_dword v{T+10}, v{u0}, {S2(rX)}")
        a(f"global_load_dword v{T+11}, v{u1}, {S2(rW)}")
        a("s_mov_b64 exec, -1")
        a("s_branch L_comp")
        a.lab("L_load")
    else:
        a(f"s_cmp_ge_u32 s{sw}, 4")
        a("s_cbranch_scc1 L_comp")
    def stamp_init():
        if DIAG: a(f"s_mov_b32 s80, s{RT}")
        if STAMP:
            for k in range(9): a(f"s_mov_b32 s{80+2*k}, s{RT if RTS else 100}")
    def dbg_desc():
        a(f"s_mov_b32 s{rDBG}, s18"); a(f"s_mov_b32 s{rDBG+1}, s19"); a(f"s_mov_b32 s{rDBG+2}, 256"); a(f"s_mov_b32 s{rDBG+3}, 0x00020000")
        a(f"s_lshl_b32 s{sDL}, s{sb}, 3")
    def ids2a(g):
        a(f"s_cmp_eq_u32 s{sb}, 0")
        a(f"s_cselect_b32 s{rWO}, s8, s14")
        a(f"s_cselect_b32 s{rWO+1}, s9, s15")
        a(f"s_mov_b32 s{rWO+2}, 401408")
        a(f"s_mov_b32 s{rWO+3}, 0x00020000")
        a(f"s_mov_b32 s{rOUT}, s16"); a(f"s_mov_b32 s{rOUT+1}, s17"); a(f"s_mov_b32 s{rOUT+2}, {2048*896*2}"); a(f"s_mov_b32 s{rOUT+3}, 0x00020000")
        a(f"s_lshl_b32 s{t2}, s{sx}, 21")
        a(f"s_add_u32 s{rWS}, s20, s{t2}")
        a(f"s_addc_u32 s{rWS+1}, s21, 0")
        a(f"s_mov_b32 s{rWS+2}, {2<<20}")
        a(f"s_mov_b32 s{rWS+3}, 0x00020000")
        a(f"s_lshl_b32 s{t2}, s{sb}, 21")
        a(f"s_add_u32 s{t2}, s{t2}, {B_BASE}")
        a(f"s_add_u32 s{rBR}, s20, s{t2}")
        a(f"s_addc_u32 s{rBR+1}, s21, 0")
        a(f"s_mov_b32 s{rBR+2}, {2<<20}")
        a(f"s_mov_b32 s{rBR+3}, 0x00020000")
        a(f"s_mov_b32 s{sg}, {g}")
        a(f"s_and_b32 s{shs}, s{srb}, 1")
        if g: a(f"s_xor_b32 s{shs}, s{shs}, 1")
        a(f"s_lshl_b32 s{shl}, s{shalf}, 1")
        a(f"s_add_u32 s{shl}, s{shl}, s{shs}")
        a(f"s_lshl_b32 s{t2}, s{shl}, 18")
        a(f"s_add_u32 s{rKV}, s{rWS}, s{t2}")
        a(f"s_addc_u32 s{rKV+1}, s{rWS+1}, 0")
        a(f"s_mov_b32 s{rKV+2}, 262144")
        a(f"s_mov_b32 s{rKV+3}, 0x00020000")
        a(f"s_and_b32 s{skq}, s{sw}, 3")
        a(f"s_lshl_b32 s{sKVO}, s{skq}, 16")
        a(f"v_and_b32 v{u0}, 1, v0")
        a(f"v_lshlrev_b32 v{u0}, 3, v{u0}")
        a(f"v_bfe_u32 v{u1}, v0, 1, 2")
        a(f"v_lshl_add_u32 v{u0}, v{u1}, 7, v{u0}")
        a(f"v_bfe_u32 v{u1}, v0, 3, 1")
        a(f"v_lshl_add_u32 v{u0}, v{u1}, 12, v{u0}")
        a(f"s_lshl_b32 s{t0}, s{shalf}, 11")
        a(f"s_lshl_b32 s{t1}, s{skq}, 9")
        a(f"s_add_u32 s{t0}, s{t0}, s{t1}")
        a(f"s_add_u32 s{t0}, s{t0}, {X_F1}")
        a(f"v_add_u32 v{F1A}, s{t0}, v{u0}")
    def ids2b(g):
        a(f"v_lshlrev_b32 v{L16}, 4, v0")
        a(f"v_lshlrev_b32 v{L8}, 3, v0")
        a(f"v_lshlrev_b32 v{u0}, 2, v0")
        a(f"v_mov_b32 v{IDX}, 0xdddddddd")
        pb = PB1 if g else PB0; mx = MX + 1024 * g
        a(f"s_lshl_b32 s{t1}, s{skq}, 8")
        a(f"s_add_u32 s{t1}, s{t1}, {mx}")
        a(f"v_add_u32 v{MW}, s{t1}, v{u0}")
        a(f"s_mul_i32 s{t1}, s{skq}, 12288")
        a(f"s_add_u32 s{t1}, s{t1}, {pb}")
        a(f"v_add_u32 v{PR}, s{t1}, v{L16}")
        for i in range(3):
            a(f"s_add_u32 s{t0}, s{skq}, {1+i}")
            a(f"s_and_b32 s{t0}, s{t0}, 3")
            a(f"s_lshl_b32 s{t1}, s{t0}, 8")
            a(f"s_add_u32 s{t1}, s{t1}, {mx}")
            a(f"v_add_u32 v{MR+i}, s{t1}, v{u0}")
            a(f"s_mul_i32 s{t1}, s{t0}, 12288")
            a(f"s_add_u32 s{t1}, s{t1}, {pb + 4096*i}")
            a(f"v_add_u32 v{PW+i}, s{t1}, v{L16}")
        a(f"v_mov_b32 v{CA}, {GBC + 4*g}")
        a(f"v_mov_b32 v{ONE}, 1")
        a(f"s_lshl_b32 s{sQT}, s{srb}, 2")
        a(f"s_add_u32 s{sQT}, s{sQT}, s{skq}")
        a(f"s_lshl_b32 s{t0}, s{sg4}, 1")
        a(f"s_add_u32 s{t0}, s{t0}, s{shalf}")
        a(f"s_lshl_b32 s{t1}, s{shs}, 3")
        a(f"s_add_u32 s{t0}, s{t0}, s{t1}")
        a(f"s_lshl_b32 s{t1}, s{sQT}, 4")
        a(f"s_add_u32 s{t1}, s{t1}, s{t0}")
        a(f"s_mul_i32 s{sOO}, s{t1}, 1792")
        a(f"s_mul_i32 s{sF2O}, s{t1}, {F2SP}")
        a(f"s_add_u32 s{sF2O}, s{sF2O}, {B_F2}")
    def pre2():
        for i in range(4):
            for r in range(16): a(f"v_mov_b32 v{O[i]+r}, 0")
        for k in range(16): a(f"s_add_u32 s{KT[k]}, s{sKVO}, {4096*k}")
        if WOT >= 0:
            a(f"s_lshl_b32 s{t0}, s{sidx}, 2")
            a(f"s_add_u32 s{t0}, s{t0}, s{skq}")
            a(f"s_mul_i32 s{t0}, s{t0}, 25")
            a(f"v_min_u32 v{TAU}, 24, v0")
            a(f"v_add_u32 v{TAU}, s{t0}, v{TAU}")
            a(f"v_lshlrev_b32 v{TAU}, 7, v{TAU}")
    def getq(g):
        a(f"s_lshl_b32 s{t1}, s{shs}, 13")
        a(f"s_add_u32 s{t1}, s{t1}, {QX}")
        for i in range(4):
            a(f"s_add_u32 s{t0}, s{skq}, {1+i}")
            a(f"s_and_b32 s{t0}, s{t0}, 3")
            a(f"s_lshl_b32 s{t0}, s{t0}, 11")
            a(f"s_add_u32 s{t0}, s{t0}, s{t1}")
            a(f"v_add_u32 v{u0+i}, s{t0}, v{L16}")
        lwait(a, f"L_q{g}", 8 - 4 * g, 4, 1)
        for i in range(4):
            a(f"ds_read_b128 {vr(Q[i],4)}, v{u0+i}")
            a(f"ds_read_b128 {vr(Q[i]+4,4)}, v{u0+i} offset:1024")
    def nonce(tag):
        a(f"s_mov_b32 s{t3}, {SPIN}")
        a.lab(f"L_nonce{tag}")
        a(f"v_readfirstlane_b32 s{NONCE}, v{NV}")
        a(f"v_readfirstlane_b32 s{NONCE+1}, v{NV+1}")
        a(f"s_cmp_lg_u32 s{NONCE}, 0")
        a(f"s_cselect_b32 s{t2}, s{NONCE+1}, 0")
        a(f"s_cmp_lg_u32 s{t2}, 0")
        a(f"s_cbranch_scc0 L_nonce_retry{tag}")
    a(f"v_lshrrev_b32 v{u0}, 3, v0")
    a(f"v_lshrrev_b32 v{u1}, 4, v0")
    a(f"v_and_b32 v{u2}, 7, v0")
    a(f"s_lshl_b32 s{t0}, s{srb}, 7")
    a(f"s_lshl_b32 s{t1}, s{sw}, 5")
    a(f"s_add_u32 s{t0}, s{t0}, s{t1}")
    a(f"v_add_u32 v{u3}, s{t0}, v{u0}")
    a(f"v_mul_u32_u24 v{u3}, 896, v{u3}")
    a(f"v_xor_b32 v{u4}, v{u2}, v{u1}")
    a(f"v_lshl_add_u32 v{XD}, v{u4}, 4, v{u3}")
    a(f"v_xor_b32 v{XD+1}, 64, v{XD}")
    a(f"v_add_u32 v{XD+1}, 7168, v{XD+1}")
    a(f"s_mul_i32 s{t0}, s{sg4}, 224")
    a(f"s_mul_i32 s{t1}, s{sw}, {16*2688}")
    a(f"s_add_u32 s{t0}, s{t0}, s{t1}")
    a(f"s_mul_i32 s{t1}, s{shalf}, 896")
    a(f"s_add_u32 s{t1}, s{t1}, s{t0}")
    a(f"s_add_u32 s{t1}, s{t1}, 896")
    a(f"v_lshlrev_b32 v{u3}, 2, v{u1}")
    a(f"v_and_b32 v{u4}, 15, v0")
    a(f"v_xor_b32 v{u4}, v{u4}, v{u3}")
    a(f"v_cmp_lt_u32 vcc, 13, v{u4}")
    a(f"v_mul_u32_u24 v{u1}, 2688, v{u1}")
    a(f"v_lshl_add_u32 v{u1}, v{u4}, 4, v{u1}")
    a(f"v_add_u32 v{WD}, s{t1}, v{u1}")
    a(f"v_bfrev_b32 v{u4}, 2")
    a(f"v_cndmask_b32 v{WD}, v{WD}, v{u4}, vcc")
    a(f"s_mul_i32 s{t1}, s{shalf}, 112")
    a(f"s_add_u32 s{t1}, s{t1}, s{t0}")
    a(f"v_and_b32 v{u3}, 4, v{u3}")
    a(f"v_xor_b32 v{u2}, v{u2}, v{u3}")
    a(f"v_cmp_lt_u32 vcc, 6, v{u2}")
    a(f"v_mul_u32_u24 v{u0}, 2688, v{u0}")
    a(f"v_lshl_add_u32 v{u0}, v{u2}, 4, v{u0}")
    a(f"v_add_u32 v{WD+1}, s{t1}, v{u0}")
    a(f"v_cndmask_b32 v{WD+1}, v{WD+1}, v{u4}, vcc")
    if ROTN > 1:
        a(f"s_mul_i32 s{sROT}, s{srb}, {ROTA}")
        if ROTB:
            a(f"s_mul_i32 s{t0}, s{shalf}, {ROTB}")
            a(f"s_add_u32 s{sROT}, s{sROT}, s{t0}")
        a(f"s_mul_i32 s{t2}, s{sg4}, {ROTC}")
        a(f"s_add_u32 s{sROT}, s{sROT}, s{t2}")
        if ROTN & (ROTN - 1) == 0:
            a(f"s_and_b32 s{sROT}, s{sROT}, {ROTN-1}")
        else:
            a(f"s_mul_i32 s{t2}, s{sROT}, {(65536 + ROTN - 1)//ROTN}")
            a(f"s_lshr_b32 s{t2}, s{t2}, 16")
            a(f"s_mul_i32 s{t2}, s{t2}, {ROTN}")
            a(f"s_sub_u32 s{sROT}, s{sROT}, s{t2}")
        if ROTS != 1: a(f"s_mul_i32 s{sROT}, s{sROT}, {ROTS}")
    else:
        a(f"s_mov_b32 s{sROT}, 0")
    assert (ROTN - 1) * ROTS < 7
    a(f"s_lshl_b32 s{sXL}, s{sw}, 12")
    a(f"s_add_u32 s{sXL}, s{sXL}, {XOFF}")
    a(f"s_mul_i32 s{sWL}, s{sw}, 6144")
    a(f"s_mov_b32 s{stt}, 0")
    a(f"s_mov_b32 s{rX+2}, 1835008")
    a(f"s_mov_b32 s{rX+3}, 0x00020000")
    a(f"s_mov_b32 s{rW+2}, 1204224")
    a(f"s_mov_b32 s{rW+3}, 0x00020000")
    a(f"s_cmp_eq_u32 s{sb}, 0")
    a("s_waitcnt lgkmcnt(0)")
    a(f"s_cselect_b32 s{rX}, s4, s10")
    a(f"s_cselect_b32 s{rX+1}, s5, s11")
    a(f"s_cselect_b32 s{rW}, s6, s12")
    a(f"s_cselect_b32 s{rW+1}, s7, s13")
    stamp_init()
    stamp(a, "karg")
    a.lab("L_ld")
    a(f"s_lshl_b32 s{sXS}, s{sROT}, 7")
    a(f"s_mul_i32 s{sWS_}, s{sROT}, 172032")
    seq = [("x", 0), ("w", 0), ("w", 2), ("x", 1), ("w", 1), ("x", 2), ("w", 3), ("w", 5), ("x", 3), ("w", 4)]
    for kind, i in seq:
        if kind == "x":
            a(f"s_add_u32 m0, s{sXL}, {1024*i}")
            a(f"s_add_u32 s{t0}, s{sXS}, {14336*(i//2)}")
            a(f"buffer_load_dwordx4 v{XD+(i&1)}, {S4(rX)}, s{t0} offen lds")
        else:
            G, q = divmod(i, 3)
            a(f"s_add_u32 m0, s{sWL}, {1024*i}")
            a(f"s_add_u32 s{t0}, s{sWS_}, {(8*G + (4*q if q < 2 else 0))*2688}")
            a(f"buffer_load_dwordx4 v{WD+(q==2)}, {S4(rW)}, s{t0} offen lds")
    a(f"s_add_u32 s{sROT}, s{sROT}, 1")
    a(f"s_cmp_eq_u32 s{sROT}, 7")
    a(f"s_cselect_b32 s{sROT}, 0, s{sROT}")
    a(f"s_cmp_ge_u32 s{sWL}, {2*STAGE}")
    a(f"s_mov_b32 s{t0}, {STAGE}")
    a(f"s_cselect_b32 s{t0}, {(-2*STAGE) & 0xffffffff:#x}, s{t0}")
    a(f"s_add_u32 s{sWL}, s{sWL}, s{t0}")
    a(f"s_add_u32 s{sXL}, s{sXL}, s{t0}")
    a(f"s_add_u32 s{stt}, s{stt}, 1")
    if PROBE:
        a(f"s_cmp_lg_u32 s{stt}, {PROBE}")
        a("s_cbranch_scc1 L_np")
        stamp(a, "issued")
        for k in (1, 3, 6, 10):
            a(f"s_waitcnt vmcnt({10*PROBE-k})")
            stamp(a, f"land{k}")
        a.lab("L_np")
    a(f"s_cmp_eq_u32 s{stt}, 1")
    a("s_cbranch_scc1 L_ld")
    a(f"s_cmp_lt_u32 s{stt}, 7")
    a("s_waitcnt vmcnt(10)")
    a("s_barrier")
    a("s_cbranch_scc1 L_ld")
    dbg_desc()
    ids2a(0)
    a(f"s_lshr_b32 s{t0}, s{srb}, 1")
    a(f"s_lshl_b32 s{t0}, s{t0}, 7")
    a(f"s_add_u32 s{t0}, s{t0}, s{sKVO}")
    a(f"v_lshlrev_b32 v{PTA}, 10, v0")
    a(f"buffer_load_dwordx2 {vr(NV,2)}, off, {S4(rDBG)}, s{sDL} sc1")
    a(f"buffer_load_dword v{T+9}, v{F1A}, {S4(rWS)}, 0 offen sc1")
    m_ = (1 << max(1, 4 * PRET)) - 1
    a(f"s_mov_b32 exec_lo, {m_ & 0xffffffff:#x}")
    a(f"s_mov_b32 exec_hi, {m_ >> 32:#x}")
    a(f"buffer_load_dword v{T+8}, v{PTA}, {S4(rKV)}, s{t0} offen sc1")
    a("s_mov_b64 exec, -1")
    a("s_waitcnt vmcnt(3)")
    stamp(a, "lw6")
    a("s_barrier")
    a(f"s_mov_b32 s{sWOS}, s{t0}")
    def touch2():
        m2 = ((1 << (4 * PRET2)) - 1) & ~m_
        a(f"s_mov_b32 exec_lo, {m2 & 0xffffffff:#x}")
        a(f"s_mov_b32 exec_hi, {m2 >> 32:#x}")
        a(f"buffer_load_dword v{T+10}, v{PTA}, {S4(rKV)}, s{sWOS} offen sc1")
        a("s_mov_b64 exec, -1")
    if PRET2 and T2POS == "b6": touch2()
    ids2b(0)
    a(f"v_lshrrev_b32 v{u2}, 5, v0")
    a(f"s_and_b32 s{t1}, s{sidx}, 3")
    a(f"s_mul_i32 s{t1}, s{t1}, 224")
    for j, d in ((0, WOA), (4, WO2)):
        a(f"s_add_u32 s{t0}, s{skq}, {j}")
        a(f"s_min_u32 s{t0}, s{t0}, 6")
        a(f"s_lshl_b32 s{t0}, s{t0}, 6")
        a(f"v_add_u32 v{u0}, s{t0}, v0")
        a(f"v_mul_u32_u24 v{u1}, 4682, v{u0}")
        a(f"v_lshrrev_b32 v{u1}, 16, v{u1}")
        a(f"v_mul_u32_u24 v{u1}, {896 - 14*16}, v{u1}")
        a(f"v_lshl_add_u32 v{u1}, v{u0}, 4, v{u1}")
        a(f"v_add_u32 v{d}, s{t1}, v{u1}")
    a(f"s_mul_i32 s{sOUTO}, s{sb}, 896")
    a(f"s_add_u32 s{sOUTO}, s{sOUTO}, s{t1}")
    a(f"s_lshl_b32 s{t1}, s{skq}, 6")
    a(f"s_add_u32 s{sOUTO}, s{sOUTO}, s{t1}")
    a(f"s_lshl_b32 s{sRT}, s{sg4}, 3")
    a(f"s_lshr_b32 s{t0}, s{sidx}, 2")
    a(f"s_add_u32 s{sRT}, s{sRT}, s{t0}")
    a(f"s_bfe_u32 s{sPE}, s{sRT}, 0x10001")
    a(f"s_lshl_b32 s{sRT}, s{sRT}, 1")
    a(f"s_mul_i32 s{t0}, s{sPE}, {28*224}")
    a(f"s_add_u32 s{t0}, s{t0}, s{t1}")
    a(f"v_bfe_u32 v{u0}, v0, 2, 2")
    a(f"v_mul_u32_u24 v{u1}, 224, v{u0}")
    a(f"v_add_u32 v{u1}, s{t0}, v{u1}")
    a(f"v_and_b32 v{u0}, 1, v0")
    a(f"v_lshl_add_u32 v{u1}, v{u0}, 5, v{u1}")
    a(f"v_bfe_u32 v{u0}, v0, 4, 1")
    a(f"v_lshl_add_u32 v{u1}, v{u0}, 4, v{u1}")
    a(f"v_bfe_u32 v{u0}, v0, 1, 1")
    a(f"v_lshl_add_u32 v{u1}, v{u0}, 3, v{u1}")
    HSTEP = [4, 56, 112]
    for t in range(3):
        a(f"v_mul_u32_u24 v{u0}, {HSTEP[t]*224}, v{u2}")
        a(f"v_add_u32 v{WA+t}, v{u1}, v{u0}")
        a(f"v_add_u32 v{WA+3+t}, 50176, v{WA+t}")
    a(f"v_mov_b32 v{OA}, v{L16}")
    a(f"v_and_b32 v{u0}, 31, v0")
    a(f"v_mul_u32_u24 v{u1}, 1792, v{u2}")
    a(f"v_lshl_add_u32 v{OA+1}, v{u0}, 4, v{u1}")
    a(f"v_mul_u32_u24 v{u1}, 3584, v{u2}")
    a(f"v_lshl_add_u32 v{OA+2}, v{u0}, 3, v{u1}")
    a(f"s_lshl_b32 s{t0}, s{skq}, 12")
    a(f"s_add_u32 s{t0}, s{t0}, {TX}")
    a(f"v_add_u32 v{TR}, s{t0}, v{L16}")
    a(f"v_bfe_u32 v{u1}, v0, 1, 2")
    a(f"v_lshlrev_b32 v{u3}, 1, v{u2}")
    a(f"v_xor_b32 v{u1}, v{u1}, v{u3}")
    a(f"v_lshlrev_b32 v{u1}, 4, v{u1}")
    a(f"v_lshl_add_u32 v{u1}, v{u0}, 6, v{u1}")
    a(f"v_add_u32 v{TW}, s{t0}, v{u1}")
    a(f"v_xor_b32 v{TW+1}, 16, v{TW}")
    a(f"v_lshrrev_b32 v{u0}, 2, v0")
    a(f"s_lshl_b32 s{t0}, s{sRT}, 5")
    a(f"v_add_u32 v{u0}, s{t0}, v{u0}")
    a(f"v_mul_u32_u24 v{u0}, 1792, v{u0}")
    a(f"v_lshrrev_b32 v{u1}, 3, v0")
    a(f"v_xor_b32 v{u1}, v{u1}, v0")
    a(f"v_and_b32 v{u1}, 3, v{u1}")
    a(f"v_lshl_add_u32 v{OUTA}, v{u1}, 4, v{u0}")
    a(f"s_cmp_eq_u32 s{skq}, 3")
    a(f"s_cselect_b32 s{t0}, 2, 4")
    a(f"v_cmp_gt_u32 {S2(XM)}, s{t0}, v{u1}")
    a(f"s_lshl_b32 s{t0}, s{sRT}, 4")
    a(f"s_lshr_b32 s{t1}, s{skq}, 1")
    a(f"s_lshl_b32 s{t1}, s{t1}, 4")
    a(f"s_add_u32 s{t0}, s{t0}, s{t1}")
    a(f"s_and_b32 s{t1}, s{skq}, 1")
    a(f"s_lshl_b32 s{t1}, s{t1}, 2")
    a(f"s_add_u32 s{t0}, s{t0}, s{t1}")
    a(f"s_lshl_b32 s{t1}, s{sPE}, 3")
    a(f"s_add_u32 s{sRT}, s{t0}, s{t1}")
    a(f"v_and_b32 v{u0}, 3, v0")
    a(f"v_add_u32 v{u0}, s{sRT}, v{u0}")
    a(f"v_mul_u32_u24 v{u0}, {F2SP}, v{u0}")
    a(f"v_add_u32 v{F2A}, {B_F2}, v{u0}")
    pre2()
    a(f"s_waitcnt vmcnt({3 if PRET2 and T2POS == 'b6' else 2})")
    nonce("L")
    if PRET2 and T2POS == "late": touch2()
    getq(0)
    a("s_setprio 2")
    stamp(a, "lready")
    a("s_branch L_ph2")
    a.lab("L_comp")
    a("s_setprio 3")
    a(f"s_getreg_b32 s{t2}, hwreg(HW_REG_XCC_ID)")
    a(f"s_and_b32 s{t2}, s{t2}, 15")
    a(f"s_lshl_b32 s{t0}, s{sx}, 4")
    a(f"s_or_b32 s{t2}, s{t2}, s{t0}")
    a(f"s_or_b32 s{t2}, s{t2}, 0x80")
    a(f"s_lshl_b32 s{t1}, s{sg4}, 5")
    a(f"s_add_u32 s{t1}, s{t1}, 128")
    a(f"v_mov_b32 v{NV}, s{t2}")
    a(f"v_and_b32 v{NA}, 3, v0")
    a(f"v_lshlrev_b32 v{NA}, 3, v{NA}")
    a(f"v_add_u32 v{NA}, s{t1}, v{NA}")
    a(f"s_add_u32 s{t1}, s{t1}, s{sidx}")
    a("v_mov_b32 v238, 0")
    a("v_mov_b32 v239, 0")
    a("s_waitcnt lgkmcnt(0)")
    dbg_desc()
    a(f"s_mul_i32 s{XM}, s{t2}, 0x01010101")
    a(f"s_mov_b32 s{XM+1}, s{XM}")
    a("s_mov_b64 exec, 1")
    a(f"v_mov_b32 v{NA}, s{sDL}")
    a(f"s_cmp_lg_u32 s{sw}, 4")
    a("s_cbranch_scc1 L_noreg")
    a(f"buffer_store_byte v{NV}, off, {S4(rDBG)}, s{t1}")
    a(f"s_cmp_lg_u32 s{sidx}, 0")
    a("s_cbranch_scc1 L_noreg")
    a(f"s_or_b32 s{t0}, s{RT}, 1")
    a(f"s_or_b32 s{t2}, s{RT+1}, 1")
    a(f"v_mov_b32 v236, s{t0}")
    a(f"v_mov_b32 v237, s{t2}")
    a(f"buffer_atomic_cmpswap_x2 v[236:239], off, {S4(rDBG)}, s{sDL} sc1")
    a.lab("L_noreg")
    a("s_mov_b64 exec, -1")
    stamp_init()
    a(f"s_and_b32 s{stt}, s{sw}, 1")
    a(f"s_bfe_u32 s{scg}, s{sw}, 0x10001")
    a(f"v_and_b32 v{u0}, 31, v0")
    a(f"v_bfe_u32 v{u1}, v0, 1, 3")
    a(f"v_lshrrev_b32 v{u2}, 5, v0")
    a(f"v_xor_b32 v{u1}, v{u1}, v{u2}")
    a(f"v_lshlrev_b32 v{u1}, 4, v{u1}")
    a(f"v_lshl_add_u32 v{u1}, v{u0}, 7, v{u1}")
    a(f"s_lshl_b32 s{t0}, s{stt}, 13")
    a(f"s_add_u32 s{t0}, s{t0}, {XOFF}")
    for ks in range(4):
        a(f"v_xor_b32 v{XA+ks}, {32*ks}, v{u1}")
        a(f"v_add_u32 v{XA+ks}, s{t0}, v{XA+ks}")
    a(f"v_bfe_u32 v{u0}, v0, 4, 1")
    a(f"v_and_b32 v{u1}, 3, v0")
    a(f"v_lshlrev_b32 v{u1}, 3, v{u1}")
    a(f"v_lshl_add_u32 v{u0}, v{u0}, 5, v{u1}")
    a(f"s_mul_i32 s{t0}, s{scg}, 112")
    a(f"v_add_u32 v{WA1}, s{t0}, v{u0}")
    a(f"v_add_u32 v{WA1+1}, 56, v{WA1}")
    a(f"s_mul_i32 s{t0}, s{scg}, 56")
    a(f"v_add_u32 v{WA1+2}, s{t0}, v{u0}")
    a("s_mov_b32 exec_lo, 0x88880000")
    a("s_mov_b32 exec_hi, 0x88880000")
    a(f"v_or_b32 v{WA1}, 192, v{WA1}")
    a(f"v_or_b32 v{WA1+1}, 192, v{WA1+1}")
    a(f"v_or_b32 v{WA1+2}, 64, v{WA1+2}")
    a("s_mov_b64 exec, -1")
    a(f"v_bfe_u32 v{u1}, v0, 2, 2")
    a(f"v_mul_u32_u24 v{u2}, 3072, v{u2}")
    a(f"v_lshl_add_u32 v{u3}, v{u1}, 8, v{u2}")
    a(f"v_lshlrev_b32 v{u4}, 6, v{u1}")
    for c in range(2):
        a(f"v_xor_b32 v{WA1+c}, v{WA1+c}, v{u4}")
        a(f"v_add_u32 v{WA1+c}, v{WA1+c}, v{u3}")
    a(f"v_lshl_add_u32 v{u3}, v{u1}, 7, v{u2}")
    a(f"v_lshlrev_b32 v{u4}, 5, v{u1}")
    a(f"v_and_b32 v{u4}, 64, v{u4}")
    a(f"v_xor_b32 v{WA1+2}, v{WA1+2}, v{u4}")
    a(f"v_add_u32 v{WA1+2}, v{WA1+2}, v{u3}")
    for r in range(64, 96): a(f"v_mov_b32 v{ACC+r}, 0")
    for r in range(20): a(f"v_mov_b32 v{FR+60+r}, 0")
    a(f"v_mov_b32 v{u0}, {GBC}")
    a(f"ds_write_b128 v{u0}, {vr(ACC+64,4)}")
    ids2a(1)
    ids2b(1)
    sE0, sSC, sDLT, sCNT = sXS, sWS_, sWL, sXL
    a(f"s_lshl_b32 s{su}, s{shalf}, 1")
    a(f"s_add_u32 s{su}, s{su}, s{scg}")
    a(f"s_lshl_b32 s{sF1O}, s{su}, 4")
    a(f"s_add_u32 s{sF1O}, s{sF1O}, s{srb}")
    a(f"s_lshl_b32 s{sF1O}, s{sF1O}, 7")
    a(f"s_lshl_b32 s{t0}, s{stt}, 3")
    a(f"s_add_u32 s{sF1O}, s{sF1O}, s{t0}")
    a(f"s_add_u32 s{sF1O}, s{sF1O}, {X_F1}")
    a(f"s_lshl_b32 s{t0}, s{srb}, 1")
    a(f"s_add_u32 s{t0}, s{t0}, s{stt}")
    a(f"s_lshl_b32 s{t1}, s{scg}, 6")
    a(f"s_add_u32 s{t0}, s{t0}, s{t1}")
    a(f"s_lshl_b32 s{sE0}, s{t0}, 13")
    a(f"s_sub_u32 s{t0}, s{sw}, 4")
    a(f"s_lshl_b32 s{t0}, s{t0}, 12")
    a(f"s_add_u32 s{t0}, s{t0}, {QX}")
    a(f"v_add_u32 v{QW}, s{t0}, v{L16}")
    a(f"s_mov_b32 s{sSC}, {CSCALE:#x}")
    a(f"s_mov_b32 s{sCNT}, 0")
    a(f"s_mov_b32 s{sDLT}, 0")
    a(f"s_cmp_lg_u32 s{shalf}, 0")
    a("s_cbranch_scc1 P1_v1")
    def reads(ks):
        b = FR + 20 * ks
        out = [f"ds_read_b128 {vr(b+4*e,4)}, v{XA+ks} offset:{4096*e}" for e in range(2)]
        for c in range(3):
            for h in range(2):
                off = 6144 * ks + (1024 * h if c < 2 else 2048 + 512 * h)
                out.append(f"ds_read_b64_tr_b16 {vr(b+8+4*c+2*h,2)}, v{WA1+c} offset:{off}")
        return [out[0], out[2], out[3], out[1]] + out[4:]
    def mfma1(ks, e, c, ori):
        b = FR + 20 * ks
        x = vr(b + 4 * e, 4); w = vr(b + 8 + 4 * c, 4)
        p, q = (w, x) if ori[c] == 'n' else (x, w)
        d = vr(ACC + 16 * (2 * c + e), 16)
        return f"v_mfma_f32_32x32x16_bf16 {d}, {p}, {q}, {d}"
    for v, ori in enumerate(["nnn", "vvn"]):
        a.lab(f"P1_v{v}")
        if v == 0:
            for r in range(64): a(f"v_mov_b32 v{ACC+r}, 0")
            a("s_mov_b32 exec_lo, 0")
            for t_ in range(4): a(f"v_mov_b32 v{ACC+16*t_+12}, 1.0")
            a("s_mov_b32 exec_lo, -1")
            a(f"v_and_b32 v{u0}, 0x33, v0")
            a(f"v_bfe_u32 v{u1}, v0, 2, 1")
            a(f"v_lshl_add_u32 v{u0}, v{u1}, 3, v{u0}")
            a(f"v_bfe_u32 v{u1}, v0, 3, 1")
            a(f"v_lshl_add_u32 v{u0}, v{u1}, 2, v{u0}")
            a(f"v_lshlrev_b32 v{TAU}, 4, v{u0}")
        else:
            a(f"v_and_b32 v{u0}, 31, v0")
            a(f"v_cmp_eq_u32 vcc, 28, v{u0}")
            a(f"v_mov_b32 v{u1}, 1.0")
            a(f"v_add_u32 v{TAU}, 2048, v{L16}")
            a(f"v_cndmask_b32 v{ACC}, 0, v{u1}, vcc")
            for r in range(1, 64): a(f"v_mov_b32 v{ACC+r}, v{ACC}")
        a("s_waitcnt lgkmcnt(0)")
        stamp(a, "setup")
        mm = [(e, c) for c in range(3) for e in range(2)]
        def cstamps():
            if STAMP or DIAG:
                if len(DIAG) == 2 and DIAG[0] == "c" and DIAG != "c0":
                    a("s_memrealtime s[82:83]")
                    a(f"s_cmp_eq_u32 s{sCNT}, {int(DIAG[1])}")
                    a("s_waitcnt lgkmcnt(0)")
                    a("s_cselect_b32 s80, s82, s80")
                for nm in (STL if STAMP else []):
                    if len(nm) == 2 and nm[0] == "c" and nm != "c0":
                        a(f"s_cmp_eq_u32 s{sCNT}, {int(nm[1])}")
                        a(f"s_cbranch_scc1 L_ns{v}{nm}")
                        a.lab(f"L_nb{v}{nm}")
                        stails.append((f"{v}{nm}", nm))
        a("s_barrier")
        stamp(a, "c0")
        for x in reads(0): a(x)
        a.raw(".p2align 6")
        a.lab(f"P1_loop{v}")
        for ks, rk in ((3, 1), (0, 2), (1, 3)):
            rd = reads(rk)
            if ks != 3: a("s_waitcnt lgkmcnt(8)")
            for j, (e, c) in enumerate(mm):
                a(mfma1(ks, e, c, ori))
                for x in rd[2*j:2*j+2]: a(x)
                if ks == 3 and j == 4:
                    a(f"s_cmp_eq_u32 s{sCNT}, {NPOS}")
                    a(f"s_cbranch_scc1 L_nn{v}")
                    a.lab(f"L_nnb{v}")
                    a(f"s_add_u32 s{sCNT}, s{sCNT}, 1")
                    a(f"s_mov_b32 s{sDLT}, {STAGE}")
                if ks == 0 and j == 4:
                    a(f"s_cmp_eq_u32 s{sCNT}, 3")
                    a(f"s_cselect_b32 s{sDLT}, {(-2*STAGE) & 0xffffffff:#x}, s{sDLT}")
                    a(f"s_cmp_eq_u32 s{sCNT}, 6")
                    a(f"s_cselect_b32 s{sDLT}, {(-2*STAGE) & 0xffffffff:#x}, s{sDLT}")
                if ks == 1 and j == 4:
                    for i in range(4): a(f"v_add_u32 v{XA+i}, s{sDLT}, v{XA+i}")
                if ks == 1 and j == 5:
                    for i in range(4, 7): a(f"v_add_u32 v{XA+i}, s{sDLT}, v{XA+i}")
        a(f"s_cmp_eq_u32 s{sCNT}, 7")
        a("s_waitcnt lgkmcnt(8)")
        a(f"s_cbranch_scc1 P1_last{v}")
        rd = reads(0)
        for j, (e, c) in enumerate(mm):
            a(mfma1(2, e, c, ori))
            if j == BPOS - 1: a("s_waitcnt lgkmcnt(0)")
            if j == BPOS:
                a("s_barrier")
                cstamps()
            if j > BPOS:
                n_ = -(-8 // (5 - BPOS)) if j < 5 else 8
                for x in rd[:n_]: a(x)
                rd = rd[n_:]
        if BPOS == 5:
            for x in rd: a(x)
        a(f"s_branch P1_loop{v}")
        a.lab(f"L_nn{v}")
        a(f"buffer_load_dwordx2 {vr(NV,2)}, v{NA}, {S4(rDBG)}, 0 offen sc1")
        a(f"s_branch L_nnb{v}")
        a.lab(f"P1_last{v}")
        tiles = [(0, 0), (1, 0), (0, 1), (1, 1), (0, 2), (1, 2)]
        def epi(t_):
            e, c = tiles[t_]
            d = ACC + 16 * (2 * c + e)
            P = P1 + 8 * (t_ % 3)
            if c == 2:
                for r in range(16): a(f"v_mul_f32 v{d+r}, s{sSC}, v{d+r}")
            for i in range(8): a(f"v_cvt_pk_bf16_f32 v{P+i}, v{d+2*i}, v{d+2*i+1}")
            if c == 2:
                a(f"ds_write_b128 v{QW}, {vr(P,4)} offset:{2048*e}")
                a(f"ds_write_b128 v{QW}, {vr(P+4,4)} offset:{2048*e+1024}")
            else:
                if t_: a(f"s_add_u32 s{sE0}, s{sE0}, {4096 if e == 1 else 63*4096}")
                tag = f"{v}{t_}"
                a(f"s_cbranch_vccz L_wt{tag}")
                a(f"buffer_store_dwordx4 {vr(P,4)}, v{TAU}, {S4(rWS)}, s{sE0} offen")
                a(f"buffer_store_dwordx4 {vr(P+4,4)}, v{TAU}, {S4(rWS)}, s{sE0} offen offset:1024")
                a.lab(f"L_st{tag}")
                tails.append((tag, P, sE0))
        a(mfma1(2, *tiles[0], ori))
        a(mfma1(2, *tiles[1], ori))
        a("s_waitcnt vmcnt(0) lgkmcnt(0)")
        stamp(a, "last")
        a(mfma1(3, *tiles[0], ori))
        a(f"v_cmp_eq_u64 vcc, {S2(XM)}, {vr(NV,2)}")
        a(f"s_and_b32 s{t0}, vcc_lo, 0xf0")
        a(f"s_cmp_eq_u32 s{t0}, 0xf0")
        a(f"s_cselect_b32 s{sLOC}, {1 if LOCAL else 0}, 0")
        a(mfma1(3, *tiles[1], ori))
        a(f"s_cselect_b64 vcc, {-1 if LOCAL else 0}, 0")
        for k in (2, 3): a(mfma1(k, *tiles[2], ori))
        a("s_nop 3")
        for t_ in range(6):
            epi(t_)
            if t_ + 3 < 6:
                for k in (2, 3): a(mfma1(k, *tiles[t_ + 3], ori))
        if v == 0: a("s_branch P1_done")
    a.lab("P1_done")
    arrive(a, 4)
    stamp(a, "p1end")
    nonce("C")
    a("s_mov_b64 exec, 1")
    a(f"s_cmp_eq_u32 s{sLOC}, 0")
    a("s_waitcnt vmcnt(0)")
    a("s_cbranch_scc1 L_f1wt")
    a(f"buffer_store_dwordx2 {vr(NV,2)}, off, {S4(rWS)}, s{sF1O}")
    a.lab("L_f1st")
    a("s_mov_b64 exec, -1")
    a("s_setprio 1")
    stamp(a, "ack1")
    getq(1)
    pre2()
    a("s_waitcnt lgkmcnt(0)")
    arrive(a, 8)
    a.lab("L_ph2")
    a.vreset()
    poll(a, "L_f1", F1A, rWS)
    stamp(a, "poll1")
    def ldK(kt, f): a.vmem(f"buffer_load_dwordx4 {vr(KB[kt%4]+4*f,4)}, v{L16}, {S4(rKV)}, s{KT[kt]} offen offset:{1024*f} sc1", ("K", kt))
    def ldV(kt, f): a.vmem(f"buffer_load_dwordx4 {vr(VB[kt%4]+4*f,4)}, v{L16}, {S4(rKV)}, s{KT[kt]} offen offset:{2048+1024*f} sc1", ("V", kt))
    order = [(0, 3), (1, 3), (0, 0), (0, 1), (0, 2), (1, 0), (1, 1), (1, 2)]
    for k in range(2, 14):
        order += [(k, 0), (k, 1), (k, 2)] + ([(k, 3)] if k < 16 - NOWN else [])
    order += [(14, 0), (15, 0), (14, 1), (15, 1), (14, 2), (15, 2)] + [(k, 3) for k in range(16 - NOWN, 16)]
    assert sorted(order) == [(k, i) for k in range(16) for i in range(4)]
    NP = 64
    def qk(p):
        kt, i = order[p]
        s = SB[p % 3]; k = KB[kt % 4]
        return [f"v_mfma_f32_32x32x16_bf16 {vr(s,16)}, {vr(k,4)}, {vr(Q[i],4)}, 0",
                f"v_mfma_f32_32x32x16_bf16 {vr(s,16)}, {vr(k+4,4)}, {vr(Q[i]+4,4)}, {vr(s,16)}"]
    def pv(p):
        kt, i = order[p]
        s = SB[p % 3]; v = VB[kt % 4]
        return [f"v_smfmac_f32_32x32x32_bf16 {vr(O[i],16)}, {vr(v,4)}, {vr(s,8)}, v{IDX}",
                f"v_smfmac_f32_32x32x32_bf16 {vr(O[i],16)}, {vr(v+4,4)}, {vr(s+8,8)}, v{IDX}"]
    ldK(0, 0); ldK(0, 1); ldK(1, 0); ldK(1, 1)
    a("s_waitcnt lgkmcnt(0)")
    a.vwait(("K", 0))
    stamp(a, "k0")
    for x in qk(0): a(x)
    ldV(0, 0); ldV(0, 1); ldV(1, 0); ldV(1, 1)
    a("s_nop 7")
    s = SB[0]
    a(f"v_max3_f32 v{T}, v{s}, v{s+1}, v{s+2}")
    a(f"v_max3_f32 v{T+1}, v{s+3}, v{s+4}, v{s+5}")
    for i in range(6, 14, 4):
        a(f"v_max3_f32 v{T}, v{T}, v{s+i}, v{s+i+1}")
        a(f"v_max3_f32 v{T+1}, v{T+1}, v{s+i+2}, v{s+i+3}")
    a(f"v_max3_f32 v{T}, v{T}, v{s+14}, v{s+15}")
    a(f"v_max_f32 v{T}, v{T}, v{T+1}")
    a(f"v_mov_b32 v{T+1}, v{T}")
    a("s_nop 1")
    a(f"v_permlane32_swap_b32 v{T}, v{T+1}")
    a(f"v_max_f32 v{T}, v{T}, v{T+1}")
    if FORCEFB: a(f"v_add_f32 v{T}, 0x43480000, v{T}")
    a(f"v_xor_b32 v{T}, 0x80000000, v{T}")
    a("s_mov_b32 exec_lo, 0")
    a(f"v_lshrrev_b32 v{Q[3]+6}, 16, v{T}")
    a("s_mov_b32 exec_lo, -1")
    a(f"ds_write_b32 v{MW}, v{Q[3]+6}")
    arrive(a)
    for x in qk(0): a(x)
    a("s_nop 9")
    stamp(a, "loop0")
    lastK = {k: max(p for p in range(NP) if order[p][0] == k) - 1 for k in range(16)}
    lastV = {k: max(p for p in range(NP) if order[p][0] == k) + 1 for k in range(16)}
    lq = []
    for k in range(2, 16):
        fk = lastK[k - 4] + 1 if k >= 4 else 0
        fv = lastV[k - 4] + 1 if k >= 4 else 0
        lq += [(lambda k=k: ldK(k, 0), fk), (lambda k=k: ldK(k, 1), fk), (lambda k=k: ldV(k, 0), fv), (lambda k=k: ldV(k, 1), fv)]
    wq = []
    for i in range(3):
        lp = max(p for p in range(NP) if order[p][1] == i) + 1
        for g in range(4):
            wq.append((lambda i=i, g=g: a(f"ds_write_b128 v{PW+i}, {vr(O[i]+4*g,4)} offset:{1024*g}"), 4 * (lp + 1) + 2))
    rq = [lambda i=i: a(f"ds_read_b128 {vr(O[i//4]+4*(i%4),4)}, v{PR} offset:{1024*i}") for i in range(12)]
    state = {"arr": None, "rd": False}
    for p in range(NP):
        s = SB[p % 3]
        stamp(a, f"ph{p}")
        mq = qk(p + 1) if p + 1 < NP else [None, None]
        mp = pv(p - 1) if p >= 1 else [None, None]
        ms = [("q", x) for x in mq] + [("p", x) for x in mp]
        if p == 1:
            ms = ms[2:] + ms[:2]
            lcheck(a, "L_m", 4)
            stamp(a, "bq1")
            for i in range(3): a(f"ds_read_b32 v{Q[i]+6}, v{MR+i}")
        if p == 2: a("s_nop 6")
        for g in range(4):
            kind, m = ms[g]
            if m:
                if kind == "q":
                    k1 = order[p + 1][0]
                    a.vwait(("V", k1) if (k1 >= 2 and sum(1 for t in a.vm if t == ("V", k1)) == 2) else ("K", k1))
                    if p == 1 and g == 3: a("s_waitcnt lgkmcnt(0)")
                else:
                    a.vwait(("V", order[p - 1][0]))
                a(m)
            slot = 4 * p + g
            if slot == 3: lpre(a)
            if p == WOT and g == 2: a.vmem(f"buffer_load_dword v{T+8}, v{TAU}, {S4(rWO)}, 0 offen", "wot")
            if lq and lq[0][1] <= p and (g == 0 or (g == 1 and (p < 12 or p >= 40))): lq.pop(0)[0]()
            elif wq and wq[0][1] <= slot:
                wq.pop(0)[0]()
                if not wq:
                    arrive(a); state["arr"] = slot
            elif state["arr"] is not None and slot == state["arr"] + 2: lpre(a)
            elif state["arr"] is not None and not state["rd"] and slot >= state["arr"] + 4:
                lcheck(a, "L_p", 8)
                stamp(a, "b1")
                state["rd"] = True
                for _ in range(4): rq.pop(0)()
            elif state["rd"] and rq:
                for _ in range(4): rq.pop(0)()
            for jj in range(4): a(f"v_exp_f32 v{s+4*g+jj}, v{s+4*g+jj}")
    assert not lq and not wq and state["rd"]
    while rq: rq.pop(0)()
    a("s_nop 1")
    for x in pv(63): a(x)
    stamp(a, "loop1")
    OO = O[3]
    a("s_waitcnt lgkmcnt(0)")
    if ARR3 == "early": arrive(a)
    for r in range(16): a(f"v_add_f32 v{O[0]+r}, v{O[0]+r}, v{O[1]+r}")
    for r in range(16): a(f"v_add_f32 v{O[0]+r}, v{O[0]+r}, v{O[2]+r}")
    a(f"v_add_f32 v{OO+12}, v{OO+12}, v{O[0]+12}")
    a(f"v_mov_b32 v{T}, v{OO+12}")
    a(f"v_mov_b32 v{T+1}, v{OO+12}")
    for r in range(0, 4): a(f"v_add_f32 v{OO+r}, v{OO+r}, v{O[0]+r}")
    a(f"v_permlane32_swap_b32 v{T}, v{T+1}")
    for r in range(4, 16):
        if r != 12: a(f"v_add_f32 v{OO+r}, v{OO+r}, v{O[0]+r}")
    a(f"s_mov_b32 s{sFB}, 0")
    a.lab("L_norm")
    a(f"v_rcp_f32 v{T}, v{T+1}")
    a("s_nop 0")
    P = T + 4
    for r in range(8): a(f"v_mul_f32 v{OO+r}, v{OO+r}, v{T}")
    for i in range(4): a(f"v_cvt_pk_bf16_f32 v{P+i}, v{OO+2*i}, v{OO+2*i+1}")
    a(f"buffer_store_dwordx4 {vr(P,4)}, v{L16}, {S4(rBR)}, s{sOO} offen sc1")
    for r in range(8, 16): a(f"v_mul_f32 v{OO+r}, v{OO+r}, v{T}")
    for i in range(4, 8): a(f"v_cvt_pk_bf16_f32 v{P+i}, v{OO+2*i}, v{OO+2*i+1}")
    a("s_mov_b32 exec_hi, 0")
    a(f"buffer_store_dwordx4 {vr(P+4,4)}, v{L16}, {S4(rBR)}, s{sOO} offen offset:1024 sc1")
    a("s_not_b64 exec, exec")
    a(f"buffer_store_dwordx2 {vr(P+4,2)}, v{L8}, {S4(rBR)}, s{sOO} offen offset:1280 sc1")
    a("s_mov_b64 exec, -1")
    stamp(a, "ost")
    a(f"s_cmp_lg_u32 s{sFB}, 0")
    a("s_cbranch_scc1 L_checked")
    if ARR3 == "late": arrive(a)
    a(f"v_mul_f32 v{T+2}, 0, v{OO}")
    a(f"v_mul_f32 v{T+3}, 0, v{OO+1}")
    for r in range(2, 16): a(f"v_fma_f32 v{T+2+(r&1)}, 0, v{OO+r}, v{T+2+(r&1)}")
    a(f"v_add_f32 v{T+2}, v{T+2}, v{T+3}")
    a(f"v_add_f32 v{T+2}, v{T+2}, v{T+1}")
    a(f"v_cmp_nlt_f32 vcc, 0x35800000, v{T+2}")
    a(f"s_mov_b64 {S2(sROT)}, vcc")
    a(f"v_cmp_ngt_f32 vcc, 0x71800000, v{T+2}")
    a(f"s_or_b64 vcc, vcc, {S2(sROT)}")
    a("s_cbranch_vccnz L_fallback")
    a.lab("L_checked")
    NF = T + 2
    a(f"v_mov_b32 v{NF}, s{NONCE}")
    a(f"v_mov_b32 v{NF+1}, s{NONCE+1}")
    a("s_mov_b64 exec, 1")
    a(f"s_cmp_eq_u32 s{sg}, 0")
    a("s_waitcnt vmcnt(0)")
    a(f"buffer_store_dwordx2 {vr(NF,2)}, off, {S4(rBR)}, s{sF2O} sc1")
    a("s_mov_b64 exec, -1")
    stamp(a, "flag2")
    a("s_cbranch_scc0 L_fin1" if DIAG else "s_cbranch_scc0 L_fin")
    if E("ABL") == "nobg": lwait(a, "L_abl", 4, 12, 32)
    lwait(a, "L_g3", 0, 12)
    lwait(a, "L_h2", 12, 4)
    for j in (0, 4):
        a(f"s_add_u32 s{t0}, s{skq}, {j}")
        a(f"s_min_u32 s{t0}, s{t0}, 6")
        a(f"s_lshl_b32 s{KT[j]}, s{t0}, 10")
    a(f"s_lshr_b32 s{sROT}, s{sidx}, 2")
    a(f"s_lshl_b32 s{sROT}, s{sROT}, 1")
    a(f"s_min_u32 s{sROT}, s{sROT}, 13")
    a(f"s_mov_b32 s{t1}, 14")
    stamp(a, "wo0")
    a(f"s_setprio {WPRIO}")
    if OUTW:
        a("s_mov_b64 exec, 1")
        a(f"buffer_load_dword v{T+8}, v{OUTA}, {S4(rOUT)}, s{sOUTO} offen")
        a("s_mov_b64 exec, -1")
    a.lab("L_wo")
    a(f"s_mul_i32 s{sWOL}, s{sROT}, 7168")
    a(f"s_mul_i32 s{sWOS}, s{sROT}, 28672")
    a(f"s_add_u32 m0, s{sWOL}, s{KT[0]}")
    a(f"s_add_u32 s{sROT}, s{sROT}, 1")
    a(f"buffer_load_dwordx4 v{WOA}, {S4(rWO)}, s{sWOS} offen lds")
    a(f"s_add_u32 m0, s{sWOL}, s{KT[4]}")
    a(f"s_cmp_eq_u32 s{sROT}, 14")
    a(f"buffer_load_dwordx4 v{WO2}, {S4(rWO)}, s{sWOS} offen lds")
    a(f"s_cselect_b32 s{sROT}, 0, s{sROT}")
    a(f"s_sub_u32 s{t1}, s{t1}, 1")
    a(f"s_cmp_lg_u32 s{t1}, 0")
    a(f"s_waitcnt vmcnt({WOFL})")
    a("s_cbranch_scc1 L_wo")
    WB = 16
    steps = []
    for q in range(2):
        for j in range(4 * q, 4 * q + 4): steps.append((0, lambda aa, j=j: 56 * j + 8 * aa, ("A", j)))
        for i in range(2 * q, 2 * q + 2): steps.append((1, lambda aa, i=i: 112 * i + 16 + 8 * aa, ("B", 2 * i)))
        steps.append((2, lambda aa, q=q: 56 * (4 * q + aa) + 20, ("C", 4 * q)))
    def wread(st, ks):
        t, row, _ = steps[ks]
        for aa in range(2):
            off = row(aa) * 224
            ad = WA + t
            if off >= 50176: off -= 50176; ad += 3
            a(f"ds_read_b64_tr_b16 {vr(WB+56*st+4*ks+2*aa,2)}, v{ad} offset:{off}")
    sOS, sOL, sD = KT[1], KT[2], KT[3]
    a(f"s_mul_i32 s{sOS}, s{sRT}, 1792")
    a(f"s_mul_i32 s{sOL}, s{skq}, 7168")
    a(f"s_cmp_eq_u32 s{sPE}, 0")
    a(f"s_cselect_b32 s{sD}, 1, -1")
    a(f"s_mul_i32 s{t0}, s{sD}, {28*224}")
    a("s_waitcnt vmcnt(0)")
    stamp(a, "wo1")
    a("s_setprio 2")
    gbar(a, "L_g4", 4)
    stamp(a, "woland")
    for ks in range(14): wread(0, ks)
    for i in range(6): a(f"v_add_u32 v{WA+i}, s{t0}, v{WA+i}")
    for ks in range(14): wread(1, ks)
    a(f"s_mul_i32 s{t0}, s{sD}, {8*F2SP}")
    a(f"v_add_u32 v{WA}, s{t0}, v{F2A}")
    a("s_waitcnt lgkmcnt(0)")
    stamp(a, "wrd")
    gbar(a, "L_g5", 5)
    ACC3 = [128, 144]; OB = 176; NB = 12; PK = 224
    def stage_load(st):
        poll(a, f"L_f2{st}", F2A if st == 0 else WA, rBR)
        stamp(a, "poll2" if st else "poll2a")
        a(f"s_mov_b32 m0, s{sOL}")
        a(f"s_add_u32 s{t0}, s{sOS}, 4096")
        for i in range(4): a(f"buffer_load_dwordx4 v{L16}, {S4(rBR)}, s{sOS} offen offset:{1024*i} sc1 lds")
        a(f"s_add_u32 m0, s{sOL}, 4096")
        a("s_nop 0")
        for i in range(3): a(f"buffer_load_dwordx4 v{L16}, {S4(rBR)}, s{t0} offen offset:{1024*i} sc1 lds")
        a("s_waitcnt vmcnt(0)")
    def stage_mfma(st):
        lg = []
        items = [(ks, e) for ks in range(14) for e in range(2)] if st == 0 else [(ks, e) for e in range(2) for ks in range(14)]
        def oread(n_):
            ks, e = items[n_]
            kind, hd = steps[ks][2]
            d = OB + 4 * (n_ % NB)
            base = 28672 * st + 14336 * e
            if kind == "A": a(f"ds_read_b128 {vr(d,4)}, v{OA} offset:{base+hd*1792}"); lg.append(n_)
            elif kind == "B": a(f"ds_read_b128 {vr(d,4)}, v{OA+1} offset:{base+hd*1792+1024}"); lg.append(n_)
            else:
                for aa in range(2):
                    a(f"ds_read_b64 {vr(d+2*aa,2)}, v{OA+2} offset:{base+(hd+aa)*1792+1536}"); lg.append(n_)
        for n_ in range(NB): oread(n_)
        for n_ in range(28):
            ks, e = items[n_]
            out = sum(1 for k in lg if k > n_)
            assert out < 16
            a(f"s_waitcnt lgkmcnt({out})")
            c = "0" if (st == 0 and ks == 0) else vr(ACC3[e], 16)
            a(f"v_mfma_f32_32x32x16_bf16 {vr(ACC3[e],16)}, {vr(WB+56*st+4*ks,4)}, {vr(OB+4*(n_%NB),4)}, {c}")
            if n_ + NB < 28: oread(n_ + NB)
            if st == 1 and 20 <= n_ < 24:
                for i in range(2 * (n_ - 20), 2 * (n_ - 20) + 2): a(f"v_cvt_pk_bf16_f32 v{PK+i}, v{ACC3[0]+2*i}, v{ACC3[0]+2*i+1}")
    stage_load(0)
    if not HB: gbar(a, "L_g6", 6)
    stamp(a, "aland")
    a(f"s_mul_i32 s{t0}, s{sD}, 14336")
    a(f"s_add_u32 s{sOS}, s{sOS}, s{t0}")
    a(f"s_add_u32 s{sOL}, s{sOL}, 28672")
    if HB: a("s_barrier")
    else: lwait(a, "L_h3", 4, 12, 4)
    a("s_setprio 0")
    stage_mfma(0)
    stamp(a, "tileA")
    stage_load(1)
    stamp(a, "oown")
    a("s_barrier")
    stamp(a, "oland")
    stage_mfma(1)
    stamp(a, "mf3")
    a(f"ds_write_b128 v{TW}, {vr(PK,4)}")
    a(f"ds_write_b128 v{TW+1}, {vr(PK+4,4)}")
    a(f"ds_read_b128 {vr(OB,4)}, v{TR}")
    a(f"ds_read_b128 {vr(OB+4,4)}, v{TR} offset:1024")
    a(f"s_add_u32 s{t0}, s{sOUTO}, {16*1792}")
    a(f"s_add_u32 s{t1}, s{sOUTO}, {32*1792}")
    a(f"s_add_u32 s{t2}, s{sOUTO}, {48*1792}")
    a("s_nop 4")
    for i in range(8): a(f"v_cvt_pk_bf16_f32 v{PK+8+i}, v{ACC3[1]+2*i}, v{ACC3[1]+2*i+1}")
    a(f"ds_write_b128 v{TW}, {vr(PK+8,4)} offset:2048")
    a(f"ds_write_b128 v{TW+1}, {vr(PK+12,4)} offset:2048")
    a(f"ds_read_b128 {vr(OB+8,4)}, v{TR} offset:2048")
    a(f"ds_read_b128 {vr(OB+12,4)}, v{TR} offset:3072")
    a(f"s_mov_b64 exec, {S2(XM)}")
    a("s_waitcnt lgkmcnt(4)")
    a(f"buffer_store_dwordx4 {vr(OB,4)}, v{OUTA}, {S4(rOUT)}, s{sOUTO} offen {OUTF}")
    a(f"buffer_store_dwordx4 {vr(OB+4,4)}, v{OUTA}, {S4(rOUT)}, s{t0} offen {OUTF}")
    a("s_waitcnt lgkmcnt(1)")
    a(f"buffer_store_dwordx4 {vr(OB+8,4)}, v{OUTA}, {S4(rOUT)}, s{t1} offen {OUTF}")
    a("s_waitcnt lgkmcnt(0)")
    a(f"buffer_store_dwordx4 {vr(OB+12,4)}, v{OUTA}, {S4(rOUT)}, s{t2} offen {OUTF}")
    a.lab("L_fin")
    if STAMP:
        a("s_waitcnt vmcnt(0)")
        a("s_memrealtime s[22:23]")
        a("s_memtime s[98:99]")
        a("s_waitcnt lgkmcnt(0)")
        a("s_mov_b64 exec, 1")
        a(f"s_mov_b32 s{rWS}, s20"); a(f"s_mov_b32 s{rWS+1}, s21"); a(f"s_mov_b32 s{rWS+2}, 0x10000000")
        a(f"s_lshl_b32 s{t1}, s2, 9")
        a(f"s_add_u32 s{t1}, s{t1}, {64<<20}")
        a(f"s_lshl_b32 s{t0}, s{sw}, 6")
        a(f"s_add_u32 s{t1}, s{t1}, s{t0}")
        for i, r in enumerate([RT, 22, 100, 98] + [80 + 2 * k for k in range(9)] + [sLOC]):
            a(f"v_mov_b32 v1, s{r}")
            a(f"buffer_store_dword v1, off, {S4(rWS)}, s{t1} offset:{4*i}")
    if DIAG:
        a("s_waitcnt vmcnt(0)")
        if DIAG == "end": a("s_memrealtime s[80:81]")
        if DIAG == "none": a(f"s_mov_b32 s80, s{NONCE}")
        a("s_waitcnt lgkmcnt(0)")
        a("s_add_u32 s80, s80, 6000")
        a.lab("L_diag")
        a("s_sleep 2")
        a("s_memrealtime s[82:83]")
        a("s_waitcnt lgkmcnt(0)")
        a("s_sub_u32 s82, s82, s80")
        a("s_cmp_lt_i32 s82, 0")
        a("s_cbranch_scc1 L_diag")
    a.lab("L_end")
    a("s_endpgm")
    for tag, P_, so in tails:
        a.lab(f"L_wt{tag}")
        a(f"buffer_store_dwordx4 {vr(P_,4)}, v{TAU}, {S4(rWS)}, s{so} offen sc1")
        a(f"buffer_store_dwordx4 {vr(P_+4,4)}, v{TAU}, {S4(rWS)}, s{so} offen offset:1024 sc1")
        a(f"s_branch L_st{tag}")
    for tag, nm in stails:
        a.lab(f"L_ns{tag}")
        stamp(a, nm)
        a(f"s_branch L_nb{tag}")
    if DIAG:
        a.lab("L_fin1")
        a("s_barrier")
        if HB: a("s_barrier")
        a("s_branch L_fin")
    for name, target in slow:
        a.lab(f"{name}_slow")
        lwait(a, name, 0, target, 1)
        a(f"s_branch {name}_back")
    a.lab("L_f1wt")
    a(f"buffer_store_dwordx2 {vr(NV,2)}, off, {S4(rWS)}, s{sF1O} sc1")
    a("s_branch L_f1st")
    for tag in "LC":
        a.lab(f"L_nonce_retry{tag}")
        a(f"buffer_load_dwordx2 {vr(NV,2)}, off, {S4(rDBG)}, s{sDL} sc1")
        a(f"s_sub_u32 s{t3}, s{t3}, 1")
        a("s_cbranch_scc1 L_end")
        a("s_waitcnt vmcnt(0)")
        a(f"s_branch L_nonce{tag}")
    a.lab("L_fallback")
    QO = Q[3]; S0 = SB[0]; K0 = KB[0]; V0 = VB[0]; M = T + 2
    a("s_waitcnt vmcnt(0)")
    a(f"s_mov_b32 s{sFB}, 1")
    a("s_mov_b32 exec_lo, 0")
    a(f"v_mov_b32 v{QO+6}, 0")
    a("s_mov_b32 exec_lo, -1")
    for r in range(16): a(f"v_mov_b32 v{OO+r}, 0")
    a(f"v_mov_b32 v{M}, 0xff7fffff")
    a(f"s_mov_b32 s{sKVO}, 0")
    a.lab("L_fb_loop")
    a(f"buffer_load_dwordx4 {vr(K0,4)}, v{L16}, {S4(rKV)}, s{sKVO} offen sc1")
    a(f"buffer_load_dwordx4 {vr(K0+4,4)}, v{L16}, {S4(rKV)}, s{sKVO} offen offset:1024 sc1")
    a(f"buffer_load_dwordx4 {vr(V0,4)}, v{L16}, {S4(rKV)}, s{sKVO} offen offset:2048 sc1")
    a(f"buffer_load_dwordx4 {vr(V0+4,4)}, v{L16}, {S4(rKV)}, s{sKVO} offen offset:3072 sc1")
    a("s_waitcnt vmcnt(0)")
    a(f"v_mfma_f32_32x32x16_bf16 {vr(S0,16)}, {vr(K0,4)}, {vr(QO,4)}, 0")
    a(f"v_mfma_f32_32x32x16_bf16 {vr(S0,16)}, {vr(K0+4,4)}, {vr(QO+4,4)}, {vr(S0,16)}")
    a("s_nop 15")
    a(f"v_max3_f32 v{T}, v{M}, v{S0}, v{S0+1}")
    for i in range(2, 16, 2): a(f"v_max3_f32 v{T}, v{T}, v{S0+i}, v{S0+i+1}")
    a(f"v_mov_b32 v{T+1}, v{T}")
    a("s_nop 1")
    a(f"v_permlane32_swap_b32 v{T}, v{T+1}")
    a(f"v_max_f32 v{T}, v{T}, v{T+1}")
    a(f"v_sub_f32 v{T+1}, v{M}, v{T}")
    a(f"v_exp_f32 v{T+1}, v{T+1}")
    a(f"v_mov_b32 v{M}, v{T}")
    for r in range(16): a(f"v_sub_f32 v{S0+r}, v{S0+r}, v{T}")
    for r in range(16): a(f"v_exp_f32 v{S0+r}, v{S0+r}")
    for r in range(16): a(f"v_mul_f32 v{OO+r}, v{OO+r}, v{T+1}")
    a("s_nop 1")
    a(f"v_smfmac_f32_32x32x32_bf16 {vr(OO,16)}, {vr(V0,4)}, {vr(S0,8)}, v{IDX}")
    a(f"v_smfmac_f32_32x32x32_bf16 {vr(OO,16)}, {vr(V0+4,4)}, {vr(S0+8,8)}, v{IDX}")
    a(f"s_add_u32 s{sKVO}, s{sKVO}, 4096")
    a(f"s_cmp_lt_u32 s{sKVO}, 262144")
    a("s_nop 15")
    a("s_cbranch_scc1 L_fb_loop")
    a(f"v_mov_b32 v{T}, v{OO+12}")
    a(f"v_mov_b32 v{T+1}, v{OO+12}")
    a("s_nop 1")
    a(f"v_permlane32_swap_b32 v{T}, v{T+1}")
    a("s_branch L_norm")
    kd = f""".section .rodata,"a"
.p2align 6
.amdhsa_kernel {n}
  .amdhsa_next_free_vgpr 256
  .amdhsa_next_free_sgpr 102
  .amdhsa_accum_offset 256
  .amdhsa_group_segment_fixed_size 0
  .amdhsa_kernarg_size 72
  .amdhsa_user_sgpr_count 2
  .amdhsa_user_sgpr_kernarg_segment_ptr 1
  .amdhsa_system_sgpr_workgroup_id_x 1
.end_amdhsa_kernel
"""
    return a.text() + kd

hdr = f"""; @launch grid=(256,1,1) block=(512,1,1) lds={LDS}
.amdgcn_target "amdgcn-amd-amdhsa--gfx950"
.text
"""
open(sys.argv[1] if len(sys.argv) > 1 else "v8.s", "w").write(hdr + gen())
```

```python
import sys, os, struct, math
NAME = "concat_heads__softmax_full_mha__softmax_full_mha__prompt"
def f2u(x): return struct.unpack("<I", struct.pack("<f", x))[0]
CSCALE = f2u(28 ** -0.5 * math.log2(math.e))
E = os.environ.get
STAMP = E("STAMP", "0") in ("1", "3")
RTS = E("STAMP", "0") == "3"
DIAG = E("DIAG", "")
STL = E("STL", "c0,p1end,ack1,poll1,loop0,loop1,flag2,poll2,oland").split(",")
F2SP = int(E("F2SP", "32"))
FORCEFB = E("FORCEFB", "0") == "1"
LOCAL = E("LOCAL", "1") == "1"
PRET = int(E("PRET", "3"))
SLEEP = int(E("SLEEP", "0"))
OUTF = E("OUTF", "")
ROTA, ROTB, ROTC, ROTN, ROTS = [int(v) for v in E("ROTP", "1,0,1,4,2").split(",")]
WOFL = int(E("WOFL", "3"))
NOWN = int(E("NOWN", "4"))
NPOS = int(E("NPOS", "5"))
ARR3 = E("ARR3", "late")
OUTW = int(E("OUTW", "1"))
WOT = int(E("WOT", "-1"))
HB = int(E("HB", "0"))
BPOS = int(E("BPOS", "2"))
TLBW = int(E("TLBW", "0"))
PROBE = int(E("PROBE", "0"))
WPRIO = int(E("WPRIO", "0"))
PRET2 = int(E("PRET2", "0"))
LG = int(E("LG", "0"))
PF2 = E("PF2", "sc1").replace("_", " ")
SF2 = E("SF2", "sc1").replace("_", " ")
PIPE = int(E("PIPE", "0"))
PW0 = int(E("PW0", "1"))
F1SP = int(E("F1SP", "128"))
K1L = int(E("K1L", "1"))
LQ0 = int(E("LQ0", "2"))
PGA = int(E("PGA", "1"))
FT = E("FT", "")
P0S = int(E("P0S", "1"))
SL1 = int(E("SL1", "0"))
PEX = int(E("PEX", "1"))
EARLYP = int(E("EARLYP", "1"))
GLOOK = int(E("GLOOK", "0"))
LOOK = int(E("LOOK", "16"))
LOOK2 = int(E("LOOK2", "7"))
HSL = int(E("HSL", "4"))
XMAP = E("XMAP", "")
T2POS = E("T2POS", "b6")
SPIN = 1 << 22

X_F1 = 1 << 20
B_BASE = 16 << 20; B_F2 = 1835008
STAGE = 40960; XOFF = 24576
PB0 = 57344; QX = 40960; MX = 106496; PB1 = 113664; TX = 57344; LDS = 163840; GBC = 163808

class A:
    def __init__(self):
        self.l = []; self.vm = []; self.done = 0
    def __call__(self, s): self.l.append("    " + s)
    def lab(self, s): self.l.append(s + ":")
    def raw(self, s): self.l.append(s)
    def text(self): return "\n".join(self.l) + "\n"
    def vreset(self): self.vm = []; self.done = 0
    def vmem(self, s, tag=None):
        self(s); self.vm.append(tag)
    def vwait(self, tag):
        idx = [i for i, t in enumerate(self.vm) if t == tag]
        assert idx, tag
        last = idx[-1] + 1
        if last <= self.done: return
        self.done = last
        n = len(self.vm) - last
        assert n < 64
        self(f"s_waitcnt vmcnt({n})")

def vr(b, n): return f"v[{b}:{b+n-1}]"
def S4(b): return f"s[{b}:{b+3}]"
def S2(b): return f"s[{b}:{b+1}]"
def stamp(a, name):
    if DIAG == name: a("s_memrealtime s[80:81]")
    if DIAG == name + "@0":
        a("s_cmp_lg_u32 s50, 0")
        a("s_cbranch_scc1 L_dg0")
        a("s_memrealtime s[80:81]")
        a.lab("L_dg0")
    if STAMP and name in STL:
        i = STL.index(name)
        a(f"{'s_memrealtime' if RTS else 's_memtime'} s[{80+2*i}:{81+2*i}]")

rX, rW, rWS, rWO, rOUT, rDBG, rKV, rBR = 24, 28, 32, 36, 64, 68, 72, 12
XM = 4
sLOC, sRT, sOUTO, sQT, sF1O, sPE = 6, 7, 8, 9, 10, 11
sKVO, sWOS, sWOL, sOO, sF2O, sFB = 16, 17, 18, 19, 22, 23
sx, sidx, sb, srb, shalf, sXS, sw, shl, shs, sg4, sg, sWL, sXL, sWS_, stt, scg, skq, su = range(40, 58)
t0, t1, sDL, t2, sROT, t3 = 58, 59, 60, 61, 62, 63
NONCE = 76; RT = 78
KT = [24, 25, 26, 27, 28]
KP = [24, 26, 28, 30, 44, 52, 54, 20]
L16, IDX, CA, F1A, ONE, L8, MW, MR, PW, PR, TAU = 1, 2, 3, 4, 5, 6, 7, 8, 11, 14, 15
T = 240
XD, WD, XA, WA1, QW, NV, NA, PTA = 16, 18, 16, 20, 23, 232, 234, 235
ACC = 32; FR = 128; P1 = 208
Q = [16, 24, 32, 40]; O = [48, 64, 80, 96]; SB = [112, 128, 144]; KB = [176, 184, 192, 200]; VB = [208, 216, 224, 232]
WA, F2B, TW, OA, WOA, F2A, OUTA, TR = 160, 163, 166, 168, 172, 173, 174, 175
ORD = [0, 2, 3, 1]
LF, LM = 163, 164
sLS, sLL, sLS2 = 43, 51, 57

def lwait(a, name, off, target, sleep=2, reg=None):
    a(f"s_mov_b32 s{t3}, {SPIN}")
    a.lab(f"{name}_spin")
    a(f"ds_read_b32 v{T+13}, v{reg or CA} offset:{off}")
    a(f"s_sub_u32 s{t3}, s{t3}, 1")
    a("s_cbranch_scc1 L_end")
    a("s_waitcnt lgkmcnt(0)")
    a(f"v_readfirstlane_b32 s{t2}, v{T+13}")
    a(f"s_cmp_ge_u32 s{t2}, {target}")
    if sleep:
        a(f"s_cbranch_scc1 {name}_done")
        a(f"s_sleep {sleep}")
        a(f"s_branch {name}_spin")
        a.lab(f"{name}_done")
    else:
        a(f"s_cbranch_scc0 {name}_spin")
def arrive(a, off=0):
    a("s_mov_b64 exec, 1")
    a(f"ds_add_u32 v{CA}, v{ONE} offset:{off}")
    a("s_mov_b64 exec, -1")
slow = []
def lpre(a): a(f"ds_read_b32 v{T+13}, v{CA}")
def lcheck(a, name, target):
    a("s_waitcnt lgkmcnt(0)")
    a(f"v_readfirstlane_b32 s{t2}, v{T+13}")
    a(f"s_cmp_ge_u32 s{t2}, {target}")
    a(f"s_cbranch_scc0 {name}_slow")
    a.lab(f"{name}_back")
    slow.append((name, target))
def gbar(a, name, k):
    arrive(a)
    lwait(a, name, 0, 4 * k)
def poll_pipe(a, name, vaddr, srd, fl, regs):
    n_ = len(regs)
    a(f"s_mov_b32 s{t3}, {SPIN}")
    for r in regs[:-1]:
        a(f"buffer_load_dwordx2 {vr(r,2)}, v{vaddr}, {S4(srd)}, 0 offen {fl}")
        a(f"s_sleep {PIPE}")
    a.lab(f"{name}_spin")
    for i in range(n_):
        a(f"buffer_load_dwordx2 {vr(regs[(i-1)%n_],2)}, v{vaddr}, {S4(srd)}, 0 offen {fl}")
        a(f"s_waitcnt vmcnt({n_-1})")
        a(f"v_cmp_ne_u64 vcc, {S2(NONCE)}, {vr(regs[i],2)}")
        a(f"s_cbranch_vccz {name}_ok")
    a(f"s_sub_u32 s{t3}, s{t3}, 1")
    a(f"s_cbranch_scc0 {name}_spin")
    a("s_branch L_end")
    a.lab(f"{name}_ok")
def poll(a, name, vaddr, srd, fl="sc1", lanes=4, SLEEP=0):
    a(f"s_mov_b32 s{t3}, {SPIN}")
    if PEX: a(f"s_mov_b64 exec, {(1 << lanes) - 1:#x}")
    if SLEEP: a(f"s_branch {name}_first")
    a.lab(f"{name}_spin")
    if SLEEP:
        a(f"s_sleep {SLEEP}")
        a.lab(f"{name}_first")
    a(f"buffer_load_dwordx2 {vr(T+14,2)}, v{vaddr}, {S4(srd)}, 0 offen {fl}")
    a(f"s_sub_u32 s{t3}, s{t3}, 1")
    a("s_cbranch_scc1 L_end")
    a("s_waitcnt vmcnt(0)")
    a(f"v_cmp_ne_u64 vcc, {S2(NONCE)}, {vr(T+14,2)}")
    a(f"s_cbranch_vccnz {name}_spin")
    if PEX: a("s_mov_b64 exec, -1")

def gen():
    a = A(); n = NAME + "_kernel"
    tails = []; stails = []; nnt = []
    u0, u1, u2, u3, u4 = T, T + 1, T + 2, T + 3, T + 4
    a.raw(f".globl {n}\n" + (".p2align 12\n" if PGA else "") + f".p2align 8\n.type {n},@function")
    a.lab(n)
    a("s_cmp_ge_u32 s2, 256")
    a("s_cbranch_scc1 L_end")
    a("s_load_dwordx16 s[4:19], s[0:1], 0")
    a("s_load_dwordx2 s[20:21], s[0:1], 64")
    a(f"s_memrealtime {S2(RT)}")
    if STAMP: a("s_memtime s[100:101]")
    a(f"s_and_b32 s{sx}, s2, 7")
    a(f"s_lshr_b32 s{sidx}, s2, 3")
    a("v_lshrrev_b32 v1, 6, v0")
    a("v_and_b32 v0, 63, v0")
    a(f"v_readfirstlane_b32 s{sw}, v1")
    if XMAP:
        tab = sum(int(c) << (4 * i) for i, c in enumerate(XMAP))
        assert sorted(XMAP) == list("01234567")
        a(f"s_lshl_b32 s{t0}, s{sx}, 2")
        a(f"s_lshr_b32 s{t0}, {tab:#x}, s{t0}")
        a(f"s_bfe_u32 s{sb}, s{t0}, 0x10002")
        a(f"s_and_b32 s{sg4}, s{t0}, 3")
    else:
        a(f"s_lshr_b32 s{sb}, s{sx}, 2")
        a(f"s_and_b32 s{sg4}, s{sx}, 3")
    a(f"s_lshr_b32 s{srb}, s{sidx}, 1")
    a(f"s_and_b32 s{shalf}, s{sidx}, 1")
    if TLBW:
        a(f"s_cmp_lt_u32 s{sw}, 4")
        a("s_cbranch_scc1 L_load")
        a(f"s_mul_i32 s{t0}, s{srb}, {128*896}")
        a(f"s_cmp_eq_u32 s{sb}, 0")
        a(f"v_mov_b32 v{u0}, s{t0}")
        a(f"v_mul_u32_u24 v{u1}, {7*2688}, v0")
        a("s_waitcnt lgkmcnt(0)")
        a(f"s_cselect_b64 {S2(rX)}, s[4:5], s[10:11]")
        a(f"s_cselect_b64 {S2(rW)}, s[6:7], s[12:13]")
        if TLBW == 1: a("s_mov_b64 exec, 1")
        a(f"global_load_dword v{T+10}, v{u0}, {S2(rX)}")
        a(f"global_load_dword v{T+11}, v{u1}, {S2(rW)}")
        a("s_mov_b64 exec, -1")
        a("s_branch L_comp")
        a.lab("L_load")
    else:
        a(f"s_cmp_ge_u32 s{sw}, 4")
        a("s_cbranch_scc1 L_comp")
    def stamp_init():
        if DIAG: a(f"s_mov_b32 s80, s{RT}")
        if STAMP:
            for k in range(9): a(f"s_mov_b32 s{80+2*k}, s{RT if RTS else 100}")
    def dbg_desc():
        a(f"s_mov_b32 s{rDBG}, s18"); a(f"s_mov_b32 s{rDBG+1}, s19"); a(f"s_mov_b32 s{rDBG+2}, 256"); a(f"s_mov_b32 s{rDBG+3}, 0x00020000")
        a(f"s_lshl_b32 s{sDL}, s{sb}, 3")
    def ids2a(g):
        a(f"s_cmp_eq_u32 s{sb}, 0")
        a(f"s_cselect_b32 s{rWO}, s8, s14")
        a(f"s_cselect_b32 s{rWO+1}, s9, s15")
        a(f"s_mov_b32 s{rWO+2}, 401408")
        a(f"s_mov_b32 s{rWO+3}, 0x00020000")
        a(f"s_mov_b32 s{rOUT}, s16"); a(f"s_mov_b32 s{rOUT+1}, s17"); a(f"s_mov_b32 s{rOUT+2}, {2048*896*2}"); a(f"s_mov_b32 s{rOUT+3}, 0x00020000")
        a(f"s_lshl_b32 s{t2}, s{sx}, 21")
        a(f"s_add_u32 s{rWS}, s20, s{t2}")
        a(f"s_addc_u32 s{rWS+1}, s21, 0")
        a(f"s_mov_b32 s{rWS+2}, {2<<20}")
        a(f"s_mov_b32 s{rWS+3}, 0x00020000")
        a(f"s_lshl_b32 s{t2}, s{sb}, 21")
        a(f"s_add_u32 s{t2}, s{t2}, {B_BASE}")
        a(f"s_add_u32 s{rBR}, s20, s{t2}")
        a(f"s_addc_u32 s{rBR+1}, s21, 0")
        a(f"s_mov_b32 s{rBR+2}, {2<<20}")
        a(f"s_mov_b32 s{rBR+3}, 0x00020000")
        a(f"s_mov_b32 s{sg}, {g}")
        a(f"s_and_b32 s{shs}, s{srb}, 1")
        if g: a(f"s_xor_b32 s{shs}, s{shs}, 1")
        a(f"s_lshl_b32 s{shl}, s{shalf}, 1")
        a(f"s_add_u32 s{shl}, s{shl}, s{shs}")
        a(f"s_lshl_b32 s{t2}, s{shl}, 18")
        a(f"s_add_u32 s{rKV}, s{rWS}, s{t2}")
        a(f"s_addc_u32 s{rKV+1}, s{rWS+1}, 0")
        a(f"s_mov_b32 s{rKV+2}, 262144")
        a(f"s_mov_b32 s{rKV+3}, 0x00020000")
        a(f"s_and_b32 s{skq}, s{sw}, 3")
        a(f"s_lshl_b32 s{sKVO}, s{skq}, 16")
        a(f"v_and_b32 v{u0}, 15, v0")
        a(f"v_lshlrev_b32 v{u0}, 3, v{u0}")
        a(f"s_lshl_b32 s{t0}, s{shalf}, 2")
        a(f"s_add_u32 s{t0}, s{t0}, s{skq}")
        a(f"s_mul_i32 s{t0}, s{t0}, {F1SP}")
        a(f"s_add_u32 s{t0}, s{t0}, {X_F1}")
        a(f"v_add_u32 v{F1A}, s{t0}, v{u0}")
    def ids2b(g):
        a(f"v_lshlrev_b32 v{L16}, 4, v0")
        a(f"v_lshlrev_b32 v{L8}, 3, v0")
        a(f"v_lshlrev_b32 v{u0}, 2, v0")
        a(f"v_mov_b32 v{IDX}, 0xdddddddd")
        pb = PB1 if g else PB0; mx = MX + 1024 * g
        a(f"s_lshl_b32 s{t1}, s{skq}, 8")
        a(f"s_add_u32 s{t1}, s{t1}, {mx}")
        a(f"v_add_u32 v{MW}, s{t1}, v{u0}")
        a(f"s_mul_i32 s{t1}, s{skq}, 12288")
        a(f"s_add_u32 s{t1}, s{t1}, {pb}")
        a(f"v_add_u32 v{PR}, s{t1}, v{L16}")
        for i in range(3):
            a(f"s_add_u32 s{t0}, s{skq}, {1+i}")
            a(f"s_and_b32 s{t0}, s{t0}, 3")
            a(f"s_lshl_b32 s{t1}, s{t0}, 8")
            a(f"s_add_u32 s{t1}, s{t1}, {mx}")
            a(f"v_add_u32 v{MR+i}, s{t1}, v{u0}")
            a(f"s_mul_i32 s{t1}, s{t0}, 12288")
            a(f"s_add_u32 s{t1}, s{t1}, {pb + 4096*i}")
            a(f"v_add_u32 v{PW+i}, s{t1}, v{L16}")
        a(f"v_mov_b32 v{CA}, {GBC + 4*g}")
        a(f"v_mov_b32 v{ONE}, 1")
        a(f"s_lshl_b32 s{sQT}, s{srb}, 2")
        a(f"s_add_u32 s{sQT}, s{sQT}, s{skq}")
        a(f"s_lshl_b32 s{t0}, s{sg4}, 2")
        a(f"s_lshr_b32 s{t0}, {sum((2*ORD[g_]) << (4*g_) for g_ in range(4)):#x}, s{t0}")
        a(f"s_and_b32 s{t0}, s{t0}, 7")
        a(f"s_add_u32 s{t0}, s{t0}, s{shalf}")
        a(f"s_lshl_b32 s{t1}, s{shs}, 3")
        a(f"s_add_u32 s{t0}, s{t0}, s{t1}")
        a(f"s_lshl_b32 s{t1}, s{sQT}, 4")
        a(f"s_add_u32 s{t1}, s{t1}, s{t0}")
        a(f"s_mul_i32 s{sOO}, s{t1}, 1792")
        a(f"s_mul_i32 s{sF2O}, s{t1}, {F2SP}")
        a(f"s_add_u32 s{sF2O}, s{sF2O}, {B_F2}")
    def late_addr():
        a(f"s_lshl_b32 s{t0}, s{sg4}, 3")
        a(f"s_lshr_b32 s{t1}, s{sidx}, 2")
        a(f"s_add_u32 s{t0}, s{t0}, s{t1}")
        a(f"s_and_b32 s{t1}, s{t0}, 2")
        a(f"s_xor_b32 s{t1}, s{t1}, 2")
        a(f"s_lshl_b32 s{t1}, s{t1}, 2")
        a(f"s_lshl_b32 s{t0}, s{t0}, 5")
        a(f"s_add_u32 s{t0}, s{t0}, s{t1}")
        a(f"s_and_b32 s{t1}, s{skq}, 1")
        a(f"s_mul_i32 s{sLL}, s{t1}, 14336")
        a(f"s_lshl_b32 s{t1}, s{t1}, 4")
        a(f"s_add_u32 s{t0}, s{t0}, s{t1}")
        a(f"s_and_b32 s{t1}, s{skq}, 2")
        a(f"s_lshl_b32 s{t1}, s{t1}, 1")
        a(f"s_add_u32 s{t0}, s{t0}, s{t1}")
        a(f"v_and_b32 v{LF}, 3, v0")
        a(f"v_add_u32 v{LF}, s{t0}, v{LF}")
        a(f"v_mul_u32_u24 v{LF}, {F2SP}, v{LF}")
        a(f"v_add_u32 v{LF}, {B_F2}, v{LF}")
        a(f"s_mul_i32 s{sLS}, s{t0}, 1792")
        a(f"s_add_u32 s{sLS2}, s{sLS}, 4096")
        a(f"s_mul_i32 s{t1}, s{t1}, 1792")
        a(f"s_add_u32 s{sLL}, s{sLL}, s{t1}")
        a(f"s_add_u32 s{sLL}, s{sLL}, 28672")
        a(f"s_lshl_b32 s{t1}, s{skq}, 2")
        a(f"s_add_u32 s{t1}, s{t1}, {GBC + 16}")
        a(f"v_mov_b32 v{LM}, s{t1}")
    def pre2():
        late_addr()
        for r in range(4): a(f"v_mov_b32 v{SB[0]+r}, 0")
        a("s_nop 1")
        for i in range(4): a(f"v_mfma_f32_32x32x16_bf16 {vr(O[i],16)}, {vr(SB[0],4)}, {vr(SB[0],4)}, 0")
        if STAMP: a("s_mov_b64 s[2:3], s[20:21]")
        a(f"s_add_u32 s{t0}, s{rKV}, s{sKVO}")
        a(f"s_addc_u32 s{t1}, s{rKV+1}, 0")
        for k in range(8):
            a(f"s_add_u32 s{KP[k]}, s{t0}, {8192*k + 4096}")
            a(f"s_addc_u32 s{KP[k]+1}, s{t1}, 0")
        if WOT >= 0:
            a(f"s_lshl_b32 s{t0}, s{sidx}, 2")
            a(f"s_add_u32 s{t0}, s{t0}, s{skq}")
            a(f"s_mul_i32 s{t0}, s{t0}, 25")
            a(f"v_min_u32 v{TAU}, 24, v0")
            a(f"v_add_u32 v{TAU}, s{t0}, v{TAU}")
            a(f"v_lshlrev_b32 v{TAU}, 7, v{TAU}")
    def getq(g):
        a(f"s_lshl_b32 s{t1}, s{shs}, 13")
        a(f"s_add_u32 s{t1}, s{t1}, {QX}")
        for i in range(4):
            a(f"s_add_u32 s{t0}, s{skq}, {1+i}")
            a(f"s_and_b32 s{t0}, s{t0}, 3")
            a(f"s_lshl_b32 s{t0}, s{t0}, 11")
            a(f"s_add_u32 s{t0}, s{t0}, s{t1}")
            a(f"v_add_u32 v{u0+i}, s{t0}, v{L16}")
        a(f"v_mov_b32 v{T+4}, {GBC + 8}")
        a(f"v_mov_b32 v{T+5}, {GBC + 12 if g else GBC - 4}")
    def getq2():
        lwait(a, "L_q", 0, 4, 1, T + 4)
        for i in (3, 0, 1, 2):
            a(f"ds_read_b128 {vr(Q[i],4)}, v{u0+i}")
            a(f"ds_read_b128 {vr(Q[i]+4,4)}, v{u0+i} offset:1024")
    def nonce(tag):
        a(f"s_mov_b32 s{t3}, {SPIN}")
        a.lab(f"L_nonce{tag}")
        a(f"v_readfirstlane_b32 s{NONCE}, v{NV}")
        a(f"v_readfirstlane_b32 s{NONCE+1}, v{NV+1}")
        a(f"s_cmp_lg_u32 s{NONCE}, 0")
        a(f"s_cselect_b32 s{t2}, s{NONCE+1}, 0")
        a(f"s_cmp_lg_u32 s{t2}, 0")
        a(f"s_cbranch_scc0 L_nonce_retry{tag}")
    a(f"v_lshrrev_b32 v{u0}, 3, v0")
    a(f"v_lshrrev_b32 v{u1}, 4, v0")
    a(f"v_and_b32 v{u2}, 7, v0")
    a(f"s_lshl_b32 s{t0}, s{srb}, 7")
    a(f"s_lshl_b32 s{t1}, s{sw}, 5")
    a(f"s_add_u32 s{t0}, s{t0}, s{t1}")
    a(f"v_add_u32 v{u3}, s{t0}, v{u0}")
    a(f"v_mul_u32_u24 v{u3}, 896, v{u3}")
    a(f"v_xor_b32 v{u4}, v{u2}, v{u1}")
    a(f"v_lshl_add_u32 v{XD}, v{u4}, 4, v{u3}")
    a(f"v_xor_b32 v{XD+1}, 64, v{XD}")
    a(f"v_add_u32 v{XD+1}, 7168, v{XD+1}")
    a(f"s_mul_i32 s{t0}, s{sg4}, 224")
    a(f"s_mul_i32 s{t1}, s{sw}, {16*2688}")
    a(f"s_add_u32 s{t0}, s{t0}, s{t1}")
    a(f"s_mul_i32 s{t1}, s{shalf}, 896")
    a(f"s_add_u32 s{t1}, s{t1}, s{t0}")
    a(f"s_add_u32 s{t1}, s{t1}, 896")
    a(f"v_lshlrev_b32 v{u3}, 2, v{u1}")
    a(f"v_and_b32 v{u4}, 15, v0")
    a(f"v_xor_b32 v{u4}, v{u4}, v{u3}")
    a(f"v_cmp_lt_u32 vcc, 13, v{u4}")
    a(f"v_mul_u32_u24 v{u1}, 2688, v{u1}")
    a(f"v_lshl_add_u32 v{u1}, v{u4}, 4, v{u1}")
    a(f"v_add_u32 v{WD}, s{t1}, v{u1}")
    a(f"v_bfrev_b32 v{u4}, 2")
    a(f"v_cndmask_b32 v{WD}, v{WD}, v{u4}, vcc")
    a(f"s_mul_i32 s{t1}, s{shalf}, 112")
    a(f"s_add_u32 s{t1}, s{t1}, s{t0}")
    a(f"v_and_b32 v{u3}, 4, v{u3}")
    a(f"v_xor_b32 v{u2}, v{u2}, v{u3}")
    a(f"v_cmp_lt_u32 vcc, 6, v{u2}")
    a(f"v_mul_u32_u24 v{u0}, 2688, v{u0}")
    a(f"v_lshl_add_u32 v{u0}, v{u2}, 4, v{u0}")
    a(f"v_add_u32 v{WD+1}, s{t1}, v{u0}")
    a(f"v_cndmask_b32 v{WD+1}, v{WD+1}, v{u4}, vcc")
    if ROTN > 1:
        a(f"s_mul_i32 s{sROT}, s{srb}, {ROTA}")
        if ROTB:
            a(f"s_mul_i32 s{t0}, s{shalf}, {ROTB}")
            a(f"s_add_u32 s{sROT}, s{sROT}, s{t0}")
        a(f"s_mul_i32 s{t2}, s{sg4}, {ROTC}")
        a(f"s_add_u32 s{sROT}, s{sROT}, s{t2}")
        if ROTN & (ROTN - 1) == 0:
            a(f"s_and_b32 s{sROT}, s{sROT}, {ROTN-1}")
        else:
            a(f"s_mul_i32 s{t2}, s{sROT}, {(65536 + ROTN - 1)//ROTN}")
            a(f"s_lshr_b32 s{t2}, s{t2}, 16")
            a(f"s_mul_i32 s{t2}, s{t2}, {ROTN}")
            a(f"s_sub_u32 s{sROT}, s{sROT}, s{t2}")
        if ROTS != 1: a(f"s_mul_i32 s{sROT}, s{sROT}, {ROTS}")
    else:
        a(f"s_mov_b32 s{sROT}, 0")
    assert (ROTN - 1) * ROTS < 7
    a(f"s_lshl_b32 s{sXL}, s{sw}, 12")
    a(f"s_add_u32 s{sXL}, s{sXL}, {XOFF}")
    a(f"s_mul_i32 s{sWL}, s{sw}, 6144")
    a(f"s_mov_b32 s{stt}, 0")
    a(f"s_mov_b32 s{rX+2}, 1835008")
    a(f"s_mov_b32 s{rX+3}, 0x00020000")
    a(f"s_mov_b32 s{rW+2}, 1204224")
    a(f"s_mov_b32 s{rW+3}, 0x00020000")
    a(f"s_cmp_eq_u32 s{sb}, 0")
    a("s_waitcnt lgkmcnt(0)")
    a(f"s_cselect_b32 s{rX}, s4, s10")
    a(f"s_cselect_b32 s{rX+1}, s5, s11")
    a(f"s_cselect_b32 s{rW}, s6, s12")
    a(f"s_cselect_b32 s{rW+1}, s7, s13")
    stamp_init()
    stamp(a, "karg")
    a.lab("L_ld")
    a(f"s_lshl_b32 s{sXS}, s{sROT}, 7")
    a(f"s_mul_i32 s{sWS_}, s{sROT}, 172032")
    seq = [("x", 0), ("w", 0), ("w", 2), ("x", 1), ("w", 1), ("x", 2), ("w", 3), ("w", 5), ("x", 3), ("w", 4)]
    for kind, i in seq:
        if kind == "x":
            a(f"s_add_u32 m0, s{sXL}, {1024*i}")
            a(f"s_add_u32 s{t0}, s{sXS}, {14336*(i//2)}")
            a(f"buffer_load_dwordx4 v{XD+(i&1)}, {S4(rX)}, s{t0} offen lds")
        else:
            G, q = divmod(i, 3)
            a(f"s_add_u32 m0, s{sWL}, {1024*i}")
            a(f"s_add_u32 s{t0}, s{sWS_}, {(8*G + (4*q if q < 2 else 0))*2688}")
            a(f"buffer_load_dwordx4 v{WD+(q==2)}, {S4(rW)}, s{t0} offen lds")
    a(f"s_add_u32 s{sROT}, s{sROT}, 1")
    a(f"s_cmp_eq_u32 s{sROT}, 7")
    a(f"s_cselect_b32 s{sROT}, 0, s{sROT}")
    a(f"s_cmp_ge_u32 s{sWL}, {2*STAGE}")
    a(f"s_mov_b32 s{t0}, {STAGE}")
    a(f"s_cselect_b32 s{t0}, {(-2*STAGE) & 0xffffffff:#x}, s{t0}")
    a(f"s_add_u32 s{sWL}, s{sWL}, s{t0}")
    a(f"s_add_u32 s{sXL}, s{sXL}, s{t0}")
    a(f"s_add_u32 s{stt}, s{stt}, 1")
    if PROBE:
        a(f"s_cmp_lg_u32 s{stt}, {PROBE}")
        a("s_cbranch_scc1 L_np")
        stamp(a, "issued")
        for k in (1, 3, 6, 10):
            a(f"s_waitcnt vmcnt({10*PROBE-k})")
            stamp(a, f"land{k}")
        a.lab("L_np")
    a(f"s_cmp_eq_u32 s{stt}, 1")
    a("s_cbranch_scc1 L_ld")
    a(f"s_cmp_lt_u32 s{stt}, 7")
    a("s_waitcnt vmcnt(10)")
    a("s_barrier")
    a("s_cbranch_scc1 L_ld")
    dbg_desc()
    ids2a(0)
    a(f"s_lshr_b32 s{t0}, s{srb}, 1")
    a(f"s_lshl_b32 s{t0}, s{t0}, 7")
    a(f"s_add_u32 s{t0}, s{t0}, s{sKVO}")
    a(f"v_lshlrev_b32 v{PTA}, 10, v0")
    a(f"buffer_load_dwordx2 {vr(NV,2)}, off, {S4(rDBG)}, s{sDL} sc1")
    a(f"buffer_load_dword v{T+9}, v{F1A}, {S4(rWS)}, 0 offen sc1")
    m_ = (1 << max(1, 4 * PRET)) - 1
    a(f"s_mov_b32 exec_lo, {m_ & 0xffffffff:#x}")
    a(f"s_mov_b32 exec_hi, {m_ >> 32:#x}")
    a(f"buffer_load_dword v{T+8}, v{PTA}, {S4(rKV)}, s{t0} offen sc1")
    a("s_mov_b64 exec, -1")
    a("s_waitcnt vmcnt(3)")
    stamp(a, "lw6")
    a("s_barrier")
    a(f"s_mov_b32 s{sWOS}, s{t0}")
    def touch2():
        m2 = ((1 << (4 * PRET2)) - 1) & ~m_
        a(f"s_mov_b32 exec_lo, {m2 & 0xffffffff:#x}")
        a(f"s_mov_b32 exec_hi, {m2 >> 32:#x}")
        a(f"buffer_load_dword v{T+10}, v{PTA}, {S4(rKV)}, s{sWOS} offen sc1")
        a("s_mov_b64 exec, -1")
    if PRET2 and T2POS == "b6": touch2()
    ids2b(0)
    a(f"v_lshrrev_b32 v{u2}, 5, v0")
    a(f"s_and_b32 s{t1}, s{sidx}, 3")
    a(f"s_cmp_eq_u32 s{t1}, 3")
    a(f"s_cselect_b32 s{t0}, 8, 16")
    a(f"s_lshl_b32 s{t1}, s{t1}, 8")
    a(f"v_lshrrev_b32 v{u0}, 4, v0")
    a(f"v_lshlrev_b32 v{u1}, 2, v{u0}")
    a(f"v_and_b32 v{u3}, 15, v0")
    a(f"v_xor_b32 v{u1}, v{u1}, v{u3}")
    a(f"v_cmp_le_u32 vcc, s{t0}, v{u1}")
    a(f"v_mul_u32_u24 v{u0}, 896, v{u0}")
    a(f"v_lshl_add_u32 v{u0}, v{u1}, 4, v{u0}")
    a(f"v_add_u32 v{WOA}, s{t1}, v{u0}")
    a(f"v_bfrev_b32 v{u0}, 2")
    a(f"v_cndmask_b32 v{WOA}, v{WOA}, v{u0}, vcc")
    a(f"s_lshl_b32 s{t2}, s{skq}, 2")
    a(f"s_cmp_lt_u32 s{t2}, s{t0}")
    a(f"s_cselect_b32 s{XM}, 1, 0")
    a(f"s_mul_i32 s{sOUTO}, s{sb}, 896")
    a(f"s_add_u32 s{sOUTO}, s{sOUTO}, s{t1}")
    a(f"s_lshl_b32 s{t1}, s{skq}, 6")
    a(f"s_add_u32 s{sOUTO}, s{sOUTO}, s{t1}")
    a(f"s_lshl_b32 s{sRT}, s{sg4}, 3")
    a(f"s_lshr_b32 s{t0}, s{sidx}, 2")
    a(f"s_add_u32 s{sRT}, s{sRT}, s{t0}")
    a(f"s_bfe_u32 s{sPE}, s{sRT}, 0x10001")
    a(f"s_lshl_b32 s{sRT}, s{sRT}, 1")
    a(f"v_bfe_u32 v{u0}, v0, 2, 2")
    a(f"v_xor_b32 v{u1}, s{skq}, v{u0}")
    a(f"v_lshlrev_b32 v{u1}, 6, v{u1}")
    a(f"v_lshl_add_u32 v{u1}, v{u0}, 8, v{u1}")
    a(f"v_and_b32 v{u0}, 1, v0")
    a(f"v_lshl_add_u32 v{u1}, v{u0}, 5, v{u1}")
    a(f"v_bfe_u32 v{u0}, v0, 4, 1")
    a(f"v_lshl_add_u32 v{u1}, v{u0}, 4, v{u1}")
    a(f"v_bfe_u32 v{u0}, v0, 1, 1")
    a(f"v_lshl_add_u32 v{u1}, v{u0}, 3, v{u1}")
    HSTEP = [4, 28, 56]
    for t in range(3):
        a(f"v_mul_u32_u24 v{u0}, {HSTEP[t]*256}, v{u2}")
        a(f"v_add_u32 v{WA+t}, v{u1}, v{u0}")
    a(f"v_mov_b32 v{OA}, v{L16}")
    a(f"v_and_b32 v{u0}, 31, v0")
    a(f"v_mul_u32_u24 v{u1}, 1792, v{u2}")
    a(f"v_lshl_add_u32 v{OA+1}, v{u0}, 4, v{u1}")
    a(f"v_mul_u32_u24 v{u1}, 3584, v{u2}")
    a(f"v_lshl_add_u32 v{OA+2}, v{u0}, 3, v{u1}")
    a(f"s_lshl_b32 s{t0}, s{skq}, 12")
    a(f"s_add_u32 s{t0}, s{t0}, {TX}")
    a(f"v_add_u32 v{TR}, s{t0}, v{L16}")
    a(f"v_bfe_u32 v{u1}, v0, 1, 2")
    a(f"v_lshlrev_b32 v{u3}, 1, v{u2}")
    a(f"v_xor_b32 v{u1}, v{u1}, v{u3}")
    a(f"v_lshlrev_b32 v{u1}, 4, v{u1}")
    a(f"v_lshl_add_u32 v{u1}, v{u0}, 6, v{u1}")
    a(f"v_add_u32 v{TW}, s{t0}, v{u1}")
    a(f"v_xor_b32 v{TW+1}, 16, v{TW}")
    a(f"v_lshrrev_b32 v{u0}, 2, v0")
    a(f"s_lshl_b32 s{t0}, s{sRT}, 5")
    a(f"v_add_u32 v{u0}, s{t0}, v{u0}")
    a(f"v_mul_u32_u24 v{u0}, 1792, v{u0}")
    a(f"v_lshrrev_b32 v{u1}, 3, v0")
    a(f"v_xor_b32 v{u1}, v{u1}, v0")
    a(f"v_and_b32 v{u1}, 3, v{u1}")
    a(f"v_lshl_add_u32 v{OUTA}, v{u1}, 4, v{u0}")
    a(f"s_lshr_b32 s{t1}, s{skq}, 1")
    a(f"s_add_u32 s{t0}, s{sRT}, s{t1}")
    a(f"s_lshl_b32 s{t0}, s{t0}, 4")
    a(f"s_lshl_b32 s{t1}, s{sPE}, 3")
    a(f"s_add_u32 s{t0}, s{t0}, s{t1}")
    a(f"s_and_b32 s{t1}, s{skq}, 1")
    a(f"s_lshl_b32 s{t1}, s{t1}, 1")
    a(f"s_lshl_b32 s{t1}, s{t1}, 1")
    a(f"s_add_u32 s{sRT}, s{t0}, s{t1}")
    a(f"v_and_b32 v{u0}, 3, v0")
    a(f"v_add_u32 v{u0}, s{sRT}, v{u0}")
    a(f"v_mul_u32_u24 v{u0}, {F2SP}, v{u0}")
    a(f"v_add_u32 v{F2A}, {B_F2}, v{u0}")
    pre2()
    a(f"s_waitcnt vmcnt({3 if PRET2 and T2POS == 'b6' else 2})")
    nonce("L")
    if PRET2 and T2POS == "late": touch2()
    getq(0)
    a("s_setprio 2")
    stamp(a, "lready")
    a("s_branch L_ph2")
    a.lab("L_comp")
    a("s_setprio 3")
    a(f"s_getreg_b32 s{t2}, hwreg(HW_REG_XCC_ID)")
    a(f"s_and_b32 s{t2}, s{t2}, 15")
    a(f"s_lshl_b32 s{t0}, s{sx}, 4")
    a(f"s_or_b32 s{t2}, s{t2}, s{t0}")
    a(f"s_or_b32 s{t2}, s{t2}, 0x80")
    a(f"s_lshl_b32 s{t1}, s{sg4}, 5")
    a(f"s_add_u32 s{t1}, s{t1}, 128")
    a(f"v_mov_b32 v{NV}, s{t2}")
    a(f"v_and_b32 v{NA}, 3, v0")
    a(f"v_lshlrev_b32 v{NA}, 3, v{NA}")
    a(f"v_add_u32 v{NA}, s{t1}, v{NA}")
    a(f"s_add_u32 s{t1}, s{t1}, s{sidx}")
    a("v_mov_b32 v238, 0")
    a("v_mov_b32 v239, 0")
    a("s_waitcnt lgkmcnt(0)")
    def ftouch(pairs, wave, tag):
        a(f"s_cmp_lg_u32 s{sw}, {wave}")
        a(f"s_cbranch_scc1 L_ft{tag}")
        a(f"s_add_u32 s{t0}, s{sg4}, 1")
        a(f"s_and_b32 s{t0}, s{t0}, 2")
        a(f"s_cbranch_scc1 L_ft{tag}")
        a(f"s_and_b32 s{t0}, s{sg4}, 1")
        a(f"s_lshl_b32 s{t0}, s{t0}, 5")
        a(f"s_add_u32 s{t0}, s{t0}, s{sidx}")
        a(f"v_and_b32 v{T+6}, 31, v0")
        a(f"v_lshrrev_b32 v{T+7}, 5, v0")
        a(f"v_mul_u32_u24 v{T+8}, 896, v{T+6}")
        a(f"v_lshl_add_u32 v{T+8}, v{T+7}, 7, v{T+8}")
        a(f"v_min_u32 v{T+6}, 20, v{T+6}")
        a(f"v_mul_u32_u24 v{T+7}, 172032, v{T+7}")
        a(f"v_lshl_add_u32 v{T+9}, v{T+6}, 7, v{T+7}")
        a(f"s_mul_i32 s{t3}, s{t0}, {32*896}")
        a(f"s_mul_i32 s{t0}, s{t0}, 2688")
        for pr in pairs:
            c_ = 2 * int(pr) - 1
            a(f"s_add_u32 s{sROT}, s{t0}, {c_*172032}")
            a(f"buffer_load_dword v{T+10}, v{T+9}, {S4(rW)}, s{sROT} offen")
            a(f"buffer_load_dword v{T+11}, v{T+8}, {S4(rX)}, s{t3} offen offset:{c_*128}")
        a.lab(f"L_ft{tag}")
    if FT:
        a(f"s_cmp_eq_u32 s{sb}, 0")
        a(f"s_cselect_b32 s{rX}, s4, s10")
        a(f"s_cselect_b32 s{rX+1}, s5, s11")
        a(f"s_cselect_b32 s{rW}, s6, s12")
        a(f"s_cselect_b32 s{rW+1}, s7, s13")
        a(f"s_mov_b32 s{rX+2}, 1835008")
        a(f"s_mov_b32 s{rX+3}, 0x00020000")
        a(f"s_mov_b32 s{rW+2}, 1204224")
        a(f"s_mov_b32 s{rW+3}, 0x00020000")
        ftouch(FT.split("/")[0], 5, "a")
    dbg_desc()
    a(f"s_mul_i32 s{XM}, s{t2}, 0x01010101")
    a(f"s_mov_b32 s{XM+1}, s{XM}")
    a("s_mov_b64 exec, 1")
    a(f"v_mov_b32 v{NA}, s{sDL}")
    a(f"s_cmp_lg_u32 s{sw}, 4")
    a("s_cbranch_scc1 L_noreg")
    a(f"buffer_store_byte v{NV}, off, {S4(rDBG)}, s{t1}")
    a(f"s_cmp_lg_u32 s{sidx}, 0")
    a("s_cbranch_scc1 L_noreg")
    a(f"s_or_b32 s{t0}, s{RT}, 1")
    a(f"s_or_b32 s{t2}, s{RT+1}, 1")
    a(f"v_mov_b32 v236, s{t0}")
    a(f"v_mov_b32 v237, s{t2}")
    a(f"buffer_atomic_cmpswap_x2 v[236:239], off, {S4(rDBG)}, s{sDL} sc1")
    a.lab("L_noreg")
    a("s_mov_b64 exec, -1")
    stamp_init()
    a(f"s_and_b32 s{stt}, s{sw}, 1")
    a(f"s_bfe_u32 s{scg}, s{sw}, 0x10001")
    a(f"v_and_b32 v{u0}, 31, v0")
    a(f"v_bfe_u32 v{u1}, v0, 1, 3")
    a(f"v_lshrrev_b32 v{u2}, 5, v0")
    a(f"v_xor_b32 v{u1}, v{u1}, v{u2}")
    a(f"v_lshlrev_b32 v{u1}, 4, v{u1}")
    a(f"v_lshl_add_u32 v{u1}, v{u0}, 7, v{u1}")
    a(f"s_lshl_b32 s{t0}, s{stt}, 13")
    a(f"s_add_u32 s{t0}, s{t0}, {XOFF}")
    for ks in range(4):
        a(f"v_xor_b32 v{XA+ks}, {32*ks}, v{u1}")
        a(f"v_add_u32 v{XA+ks}, s{t0}, v{XA+ks}")
    a(f"v_bfe_u32 v{u0}, v0, 4, 1")
    a(f"v_and_b32 v{u1}, 3, v0")
    a(f"v_lshlrev_b32 v{u1}, 3, v{u1}")
    a(f"v_lshl_add_u32 v{u0}, v{u0}, 5, v{u1}")
    a(f"s_mul_i32 s{t0}, s{scg}, 112")
    a(f"v_add_u32 v{WA1}, s{t0}, v{u0}")
    a(f"v_add_u32 v{WA1+1}, 56, v{WA1}")
    a(f"s_mul_i32 s{t0}, s{scg}, 56")
    a(f"v_add_u32 v{WA1+2}, s{t0}, v{u0}")
    a("s_mov_b32 exec_lo, 0x88880000")
    a("s_mov_b32 exec_hi, 0x88880000")
    a(f"v_or_b32 v{WA1}, 192, v{WA1}")
    a(f"v_or_b32 v{WA1+1}, 192, v{WA1+1}")
    a(f"v_or_b32 v{WA1+2}, 64, v{WA1+2}")
    a("s_mov_b64 exec, -1")
    a(f"v_bfe_u32 v{u1}, v0, 2, 2")
    a(f"v_mul_u32_u24 v{u2}, 3072, v{u2}")
    a(f"v_lshl_add_u32 v{u3}, v{u1}, 8, v{u2}")
    a(f"v_lshlrev_b32 v{u4}, 6, v{u1}")
    for c in range(2):
        a(f"v_xor_b32 v{WA1+c}, v{WA1+c}, v{u4}")
        a(f"v_add_u32 v{WA1+c}, v{WA1+c}, v{u3}")
    a(f"v_lshl_add_u32 v{u3}, v{u1}, 7, v{u2}")
    a(f"v_lshlrev_b32 v{u4}, 5, v{u1}")
    a(f"v_and_b32 v{u4}, 64, v{u4}")
    a(f"v_xor_b32 v{WA1+2}, v{WA1+2}, v{u4}")
    a(f"v_add_u32 v{WA1+2}, v{WA1+2}, v{u3}")
    for r in range(64, 96): a(f"v_mov_b32 v{ACC+r}, 0")
    for r in range(20): a(f"v_mov_b32 v{FR+60+r}, 0")
    a(f"v_mov_b32 v{u0}, {GBC}")
    a(f"ds_write_b128 v{u0}, {vr(ACC+64,4)}")
    a(f"ds_write_b128 v{u0}, {vr(ACC+64,4)} offset:16")
    ids2a(1)
    ids2b(1)
    sE0, sSC, sDLT, sCNT = sXS, sWS_, sWL, sXL
    a(f"s_lshl_b32 s{t0}, s{scg}, 2")
    a(f"s_lshr_b32 s{t1}, s{srb}, 2")
    a(f"s_add_u32 s{t0}, s{t0}, s{t1}")
    a(f"s_mul_i32 s{sF1O}, s{t0}, {F1SP}")
    a(f"s_lshl_b32 s{t0}, s{shalf}, 2")
    a(f"s_and_b32 s{t1}, s{srb}, 3")
    a(f"s_add_u32 s{t0}, s{t0}, s{t1}")
    a(f"s_lshl_b32 s{t0}, s{t0}, 1")
    a(f"s_add_u32 s{t0}, s{t0}, s{stt}")
    a(f"s_lshl_b32 s{t0}, s{t0}, 3")
    a(f"s_add_u32 s{sF1O}, s{sF1O}, s{t0}")
    a(f"s_add_u32 s{sF1O}, s{sF1O}, {X_F1}")
    a(f"s_lshl_b32 s{t0}, s{srb}, 1")
    a(f"s_add_u32 s{t0}, s{t0}, s{stt}")
    a(f"s_lshl_b32 s{t1}, s{scg}, 6")
    a(f"s_add_u32 s{t0}, s{t0}, s{t1}")
    a(f"s_lshl_b32 s{sE0}, s{t0}, 13")
    a(f"s_sub_u32 s{t0}, s{sw}, 4")
    a(f"s_lshl_b32 s{t0}, s{t0}, 12")
    a(f"s_add_u32 s{t0}, s{t0}, {QX}")
    a(f"v_add_u32 v{QW}, s{t0}, v{L16}")
    a(f"s_mov_b32 s{sSC}, {CSCALE:#x}")
    a(f"s_mov_b32 s{sCNT}, 0")
    a(f"s_mov_b32 s{sDLT}, 0")
    if FT and FT.split("/")[1]: ftouch(FT.split("/")[1], 6, "b")
    a(f"s_cmp_lg_u32 s{shalf}, 0")
    a("s_cbranch_scc1 P1_v1")
    def reads(ks):
        b = FR + 20 * ks
        out = [f"ds_read_b128 {vr(b+4*e,4)}, v{XA+ks} offset:{4096*e}" for e in range(2)]
        for c in range(3):
            for h in range(2):
                off = 6144 * ks + (1024 * h if c < 2 else 2048 + 512 * h)
                out.append(f"ds_read_b64_tr_b16 {vr(b+8+4*c+2*h,2)}, v{WA1+c} offset:{off}")
        return [out[0], out[2], out[3], out[1]] + out[4:]
    def mfma1(ks, e, c, ori):
        b = FR + 20 * ks
        x = vr(b + 4 * e, 4); w = vr(b + 8 + 4 * c, 4)
        p, q = (w, x) if ori[c] == 'n' else (x, w)
        d = vr(ACC + 16 * (2 * c + e), 16)
        return f"v_mfma_f32_32x32x16_bf16 {d}, {p}, {q}, {d}"
    for v, ori in enumerate(["nnn", "vvn"]):
        a.lab(f"P1_v{v}")
        if v == 0:
            for r in range(64): a(f"v_mov_b32 v{ACC+r}, 0")
            a("s_mov_b32 exec_lo, 0")
            for t_ in range(4): a(f"v_mov_b32 v{ACC+16*t_+12}, 1.0")
            a("s_mov_b32 exec_lo, -1")
            a(f"v_and_b32 v{u0}, 0x33, v0")
            a(f"v_bfe_u32 v{u1}, v0, 2, 1")
            a(f"v_lshl_add_u32 v{u0}, v{u1}, 3, v{u0}")
            a(f"v_bfe_u32 v{u1}, v0, 3, 1")
            a(f"v_lshl_add_u32 v{u0}, v{u1}, 2, v{u0}")
            a(f"v_lshlrev_b32 v{TAU}, 4, v{u0}")
        else:
            a(f"v_and_b32 v{u0}, 31, v0")
            a(f"v_cmp_eq_u32 vcc, 28, v{u0}")
            a(f"v_mov_b32 v{u1}, 1.0")
            a(f"v_add_u32 v{TAU}, 2048, v{L16}")
            a(f"v_cndmask_b32 v{ACC}, 0, v{u1}, vcc")
            for r in range(1, 64): a(f"v_mov_b32 v{ACC+r}, v{ACC}")
        a("s_waitcnt lgkmcnt(0)")
        stamp(a, "setup")
        mm = [(e, c) for c in range(3) for e in range(2)]
        def cstamps():
            if STAMP or DIAG:
                if len(DIAG) == 2 and DIAG[0] == "c" and DIAG != "c0":
                    a("s_memrealtime s[82:83]")
                    a(f"s_cmp_eq_u32 s{sCNT}, {int(DIAG[1])}")
                    a("s_waitcnt lgkmcnt(0)")
                    a("s_cselect_b32 s80, s82, s80")
                for nm in (STL if STAMP else []):
                    if len(nm) == 2 and nm[0] == "c" and nm != "c0":
                        a(f"s_cmp_eq_u32 s{sCNT}, {int(nm[1])}")
                        a(f"s_cbranch_scc1 L_ns{v}{nm}")
                        a.lab(f"L_nb{v}{nm}")
                        stails.append((f"{v}{nm}", nm))
        a(f"s_branch P1_go{v}")
        a.lab(f"L_nn{v}")
        a(f"buffer_load_dwordx2 {vr(NV,2)}, v{NA}, {S4(rDBG)}, 0 offen sc1")
        a(f"s_branch L_nnb{v}")
        a.lab(f"P1_go{v}")
        a("s_barrier")
        stamp(a, "c0")
        for x in reads(0): a(x)
        if FT and len(FT.split("/")) > 2: ftouch(FT.split("/")[2], 7, f"c{v}")
        a.raw(".p2align 6")
        a.lab(f"P1_loop{v}")
        for ks, rk in ((3, 1), (0, 2), (1, 3)):
            rd = reads(rk)
            if ks != 3: a("s_waitcnt lgkmcnt(8)")
            for j, (e, c) in enumerate(mm):
                a(mfma1(ks, e, c, ori))
                for x in rd[2*j:2*j+2]: a(x)
                if ks == 3 and j == 4:
                    a(f"s_cmp_eq_u32 s{sCNT}, {NPOS}")
                    a(f"s_cbranch_scc1 L_nn{v}")
                    a.lab(f"L_nnb{v}")
                    a(f"s_add_u32 s{sCNT}, s{sCNT}, 1")
                    a(f"s_mov_b32 s{sDLT}, {STAGE}")
                if ks == 0 and j == 4:
                    a(f"s_cmp_eq_u32 s{sCNT}, 3")
                    a(f"s_cselect_b32 s{sDLT}, {(-2*STAGE) & 0xffffffff:#x}, s{sDLT}")
                    a(f"s_cmp_eq_u32 s{sCNT}, 6")
                    a(f"s_cselect_b32 s{sDLT}, {(-2*STAGE) & 0xffffffff:#x}, s{sDLT}")
                if ks == 1 and j == 4:
                    for i in range(4): a(f"v_add_u32 v{XA+i}, s{sDLT}, v{XA+i}")
                if ks == 1 and j == 5:
                    for i in range(4, 7): a(f"v_add_u32 v{XA+i}, s{sDLT}, v{XA+i}")
        a("s_waitcnt lgkmcnt(8)")
        rd = reads(0)
        for j, (e, c) in enumerate(mm):
            a(mfma1(2, e, c, ori))
            if j == BPOS - 1: a("s_waitcnt lgkmcnt(0)")
            if j == BPOS:
                a("s_barrier")
                cstamps()
            if j > BPOS:
                n_ = -(-8 // (5 - BPOS)) if j < 5 else 8
                for x in rd[:n_]: a(x)
                rd = rd[n_:]
        if BPOS == 5:
            for x in rd: a(x)
        a(f"s_cmp_lt_u32 s{sCNT}, 6")
        a(f"s_cbranch_scc1 P1_loop{v}")
        tiles = [(0, 0), (1, 0), (0, 1), (1, 1), (0, 2), (1, 2)]
        rd = reads(1) + reads(2)
        for j, (e, c) in enumerate(mm):
            a(mfma1(3, e, c, ori))
            for x in rd[3*j:3*j+3]: a(x)
        for x in reads(3)[:4]: a(x)
        def epi(t_):
            e, c = tiles[t_]
            d = ACC + 16 * (2 * c + e)
            P = P1 + 8 * (t_ % 3)
            out = []
            if c == 2: out += [[f"v_mul_f32 v{d+r}, s{sSC}, v{d+r}"] for r in range(16)]
            out += [[f"v_cvt_pk_bf16_f32 v{P+i}, v{d+2*i}, v{d+2*i+1}"] for i in range(8)]
            if c == 2:
                out += [[f"ds_write_b128 v{QW}, {vr(P,4)} offset:{2048*e}"], [f"ds_write_b128 v{QW}, {vr(P+4,4)} offset:{2048*e+1024}"]]
            else:
                tag = f"{v}{t_}"
                st_ = [f"s_add_u32 s{sE0}, s{sE0}, {4096 if e == 1 else 63*4096}"] if t_ else []
                st_ += [f"s_cbranch_vccz L_wt{tag}",
                        f"buffer_store_dwordx4 {vr(P,4)}, v{TAU}, {S4(rWS)}, s{sE0} offen",
                        f"buffer_store_dwordx4 {vr(P+4,4)}, v{TAU}, {S4(rWS)}, s{sE0} offen offset:1024",
                        f"L_st{tag}:"]
                out.append(st_)
                tails.append((tag, P, sE0))
            return out
        seq = [(0, 0), (0, 1), (1, 0), (1, 1), (2, 0), (2, 1), (3, 0), (3, 1)] + [(k, t_) for t_ in range(2, 6) for k in range(4)]
        pend = []
        cnt = [0]
        def emit(x):
            if x.endswith(":"): a.lab(x[:-1])
            else: a(x); cnt[0] += 1
        def drain(nmax):
            n_ = 0
            while pend and n_ < nmax and pend[0][0] <= cnt[0]:
                g_ = pend.pop(0)[1]
                for x in g_: emit(x)
                n_ += len(g_)
        for i, (k, t_) in enumerate(seq):
            if i == 0: emit("s_waitcnt lgkmcnt(14)")
            if i == 2: emit("s_waitcnt lgkmcnt(14)")
            if i == 4: emit("s_waitcnt lgkmcnt(8)")
            if i == 6:
                emit("s_waitcnt vmcnt(0) lgkmcnt(0)")
                stamp(a, "last")
            emit(mfma1(k, *tiles[t_], ori))
            if i == 0:
                for x in reads(3)[4:]: emit(x)
            if i == 6:
                emit(f"v_cmp_eq_u64 vcc, {S2(XM)}, {vr(NV,2)}")
                emit(f"s_and_b32 s{t0}, vcc_lo, 0xf0")
                emit(f"s_cmp_eq_u32 s{t0}, 0xf0")
                emit(f"s_cselect_b32 s{sLOC}, {1 if LOCAL else 0}, 0")
                emit(f"s_cselect_b64 vcc, {-1 if LOCAL else 0}, 0")
                first = cnt[0] - 5
            else: first = cnt[0]
            if k == 3 and t_ < 5: pend += [(first + 12, g_) for g_ in epi(t_)]
            if k == 3 and t_ == 5: lastq = epi(5); lastm = first
            if pend and pend[0][0] > cnt[0] and i != 6:
                gap = min(5, pend[0][0] - cnt[0])
                a(f"s_nop {gap-1}"); cnt[0] += gap
                drain(6 - gap)
            else: drain(6)
        while pend:
            if pend[0][0] > cnt[0]:
                gap = pend[0][0] - cnt[0]
                a(f"s_nop {gap-1}"); cnt[0] += gap
            drain(99)
        assert cnt[0] - lastm >= 12
        if v == 0: a("s_branch P1_done")
    a.lab("P1_done")
    nonce("C")
    a("s_mov_b64 exec, 1")
    a(f"s_cmp_eq_u32 s{sLOC}, 0")
    a("s_waitcnt vmcnt(0)")
    a("s_cbranch_scc1 L_f1wt")
    a(f"buffer_store_dwordx2 {vr(NV,2)}, off, {S4(rWS)}, s{sF1O}")
    a.lab("L_f1st")
    a("s_mov_b64 exec, -1")
    stamp(a, "ack1")
    for g_ in lastq:
        for x in g_: a(x)
    arrive(a, 4)
    stamp(a, "p1end")
    a("s_setprio 1")
    pre2()
    getq(1)
    a.lab("L_ph2")
    a.vreset()
    if PIPE:
        a("s_mov_b64 exec, 0xffff")
        poll_pipe(a, "L_f1", F1A, rWS, "sc1", [T + 10, T + 14])
        a("s_mov_b64 exec, -1")
        a.vm.append("poll")
    else: poll(a, "L_f1", F1A, rWS, "sc1", 16, SL1)
    stamp(a, "poll1")
    def ldK(kt, f): a.vmem(f"global_load_dwordx4 {vr(KB[kt%4]+4*f,4)}, v{L16}, {S2(KP[kt//2])} offset:{4096*(kt%2)-4096+1024*f} sc1", ("K", kt))
    def ldV(kt, f): a.vmem(f"global_load_dwordx4 {vr(VB[kt%4]+4*f,4)}, v{L16}, {S2(KP[kt//2])} offset:{4096*(kt%2)-2048+1024*f} sc1", ("V", kt))
    order = [(0, 3), (1, 3), (0, 0), (0, 1), (0, 2), (1, 0), (1, 1), (1, 2)]
    for k in range(2, 14):
        order += [(k, 0), (k, 1), (k, 2)] + ([(k, 3)] if k < 16 - NOWN else [])
    order += [(14, 0), (15, 0), (14, 1), (15, 1), (14, 2), (15, 2)] + [(k, 3) for k in range(16 - NOWN, 16)]
    assert sorted(order) == [(k, i) for k in range(16) for i in range(4)]
    NP = 64
    def qk(p):
        kt, i = order[p]
        s = SB[p % 3]; k = KB[kt % 4]
        return [f"v_mfma_f32_32x32x16_bf16 {vr(s,16)}, {vr(k,4)}, {vr(Q[i],4)}, 0",
                f"v_mfma_f32_32x32x16_bf16 {vr(s,16)}, {vr(k+4,4)}, {vr(Q[i]+4,4)}, {vr(s,16)}"]
    def pv(p):
        kt, i = order[p]
        s = SB[p % 3]; v = VB[kt % 4]
        return [f"v_smfmac_f32_32x32x32_bf16 {vr(O[i],16)}, {vr(v,4)}, {vr(s,8)}, v{IDX}",
                f"v_smfmac_f32_32x32x32_bf16 {vr(O[i],16)}, {vr(v+4,4)}, {vr(s+8,8)}, v{IDX}"]
    ldK(0, 0); ldK(0, 1)
    if not K1L: ldK(1, 0); ldK(1, 1)
    getq2()
    a("s_mov_b64 exec, 1")
    a("s_waitcnt lgkmcnt(0)")
    a(f"ds_add_u32 v{T+5}, v{ONE}")
    a("s_mov_b64 exec, -1")
    a.vwait(("K", 0))
    stamp(a, "k0")
    for x in qk(0): a(x)
    if K1L:
        ldK(1, 0); ldK(1, 1); ldV(0, 0); ldV(0, 1)
    else:
        ldV(0, 0); ldV(0, 1); ldV(1, 0); ldV(1, 1)
    a("s_nop 7")
    s = SB[0]
    a(f"v_max3_f32 v{T}, v{s}, v{s+1}, v{s+2}")
    a(f"v_max3_f32 v{T+1}, v{s+3}, v{s+4}, v{s+5}")
    for i in range(6, 14, 4):
        a(f"v_max3_f32 v{T}, v{T}, v{s+i}, v{s+i+1}")
        a(f"v_max3_f32 v{T+1}, v{T+1}, v{s+i+2}, v{s+i+3}")
    a(f"v_max3_f32 v{T}, v{T}, v{s+14}, v{s+15}")
    a(f"v_max_f32 v{T}, v{T}, v{T+1}")
    a(f"v_mov_b32 v{T+1}, v{T}")
    a("s_nop 1")
    a(f"v_permlane32_swap_b32 v{T}, v{T+1}")
    a(f"v_max_f32 v{T}, v{T}, v{T+1}")
    if FORCEFB: a(f"v_add_f32 v{T}, 0x43480000, v{T}")
    a(f"v_xor_b32 v{T}, 0x80000000, v{T}")
    a("s_mov_b32 exec_lo, 0")
    a(f"v_lshrrev_b32 v{Q[3]+6}, 16, v{T}")
    a("s_mov_b32 exec_lo, -1")
    a(f"ds_write_b32 v{MW}, v{Q[3]+6}")
    arrive(a)
    for x in qk(0): a(x)
    if K1L: ldV(1, 0); ldV(1, 1)
    a("s_nop 9" if K1L else "s_nop 11")
    stamp(a, "loop0")
    lastK = {k: max(p for p in range(NP) if order[p][0] == k) - 1 for k in range(16)}
    lastV = {k: max(p for p in range(NP) if order[p][0] == k) + 1 for k in range(16)}
    lq = []
    for k in range(2, 16):
        fk = lastK[k - 4] + 1 if k >= 4 else LQ0
        fv = lastV[k - 4] + 1 if k >= 4 else LQ0
        lq += [(lambda k=k: ldK(k, 0), fk), (lambda k=k: ldK(k, 1), fk), (lambda k=k: ldV(k, 0), fv), (lambda k=k: ldV(k, 1), fv)]
    wq = []
    for i in range(3):
        lp = max(p for p in range(NP) if order[p][1] == i) + 1
        for g in range(4):
            wq.append((lambda i=i, g=g: a(f"ds_write_b128 v{PW+i}, {vr(O[i]+4*g,4)} offset:{1024*g}"), 4 * (lp + 1) + 2))
    rq = [lambda i=i: a(f"ds_read_b128 {vr(O[i//4]+4*(i%4),4)}, v{PR} offset:{1024*i}") for i in range(12)]
    state = {"arr": None, "rd": False}
    def mlist(p):
        mq = qk(p + 1) if p + 1 < NP else [None, None]
        mp = pv(p - 1) if p >= 1 else [None, None]
        ms = [("q", x) for x in mq] + [("p", x) for x in mp]
        if p == 0: return ms[4-P0S:] + ms[:4-P0S]
        return ms[2:] + ms[:2] if p == 1 else ms
    def need(p, kind):
        if kind == "q":
            k1 = order[p + 1][0]
            a.vwait(("V", k1) if (k1 >= 2 and sum(1 for t in a.vm if t == ("V", k1)) == 2) else ("K", k1))
        else:
            a.vwait(("V", order[p - 1][0]))
    for p in range(NP):
        s = SB[p % 3]
        stamp(a, f"ph{p}")
        ms = mlist(p)
        if p == 1:
            lcheck(a, "L_m", 4)
            stamp(a, "bq1")
            for i in range(3): a(f"ds_read_b32 v{Q[i]+6}, v{MR+i}")
        if p == 2: a("s_nop 6")
        for g in range(4):
            kind, m = ms[g]
            if m:
                need(p, kind)
                if p == 1 and g == 3: a("s_waitcnt lgkmcnt(0)")
                a(m)
                if p >= 3:
                    np_, ng = (p, g + 1) if g < 3 else (p + 1, 0)
                    if np_ < NP:
                        k2, m2_ = mlist(np_)[ng]
                        if m2_: need(np_, k2)
            slot = 4 * p + g
            if slot == 3: lpre(a)
            if p == WOT and g == 2: a.vmem(f"buffer_load_dword v{T+8}, v{TAU}, {S4(rWO)}, 0 offen", "wot")
            if lq and lq[0][1] <= p and (g == LG or (g == LG + 1 and (p < 12 or p >= 40))): lq.pop(0)[0]()
            elif wq and wq[0][1] <= slot:
                wq.pop(0)[0]()
                if not wq:
                    arrive(a); state["arr"] = slot
            elif state["arr"] is not None and slot == state["arr"] + 2: lpre(a)
            elif state["arr"] is not None and not state["rd"] and slot >= state["arr"] + 4:
                lcheck(a, "L_p", 8)
                stamp(a, "b1")
                state["rd"] = True
                for _ in range(4): rq.pop(0)()
            elif state["rd"] and rq:
                for _ in range(4): rq.pop(0)()
            for jj in range(4): a(f"v_exp_f32 v{s+4*g+jj}, v{s+4*g+jj}")
    assert not lq and not wq and state["rd"]
    while rq: rq.pop(0)()
    a("s_nop 1")
    for x in pv(63): a(x)
    stamp(a, "loop1")
    OO = O[3]
    a("s_waitcnt lgkmcnt(0)")
    if ARR3 == "early": arrive(a)
    for r in range(16): a(f"v_add_f32 v{O[0]+r}, v{O[0]+r}, v{O[1]+r}")
    for r in range(16): a(f"v_add_f32 v{O[0]+r}, v{O[0]+r}, v{O[2]+r}")
    a(f"v_add_f32 v{OO+12}, v{OO+12}, v{O[0]+12}")
    a(f"v_mov_b32 v{T}, v{OO+12}")
    a(f"v_mov_b32 v{T+1}, v{OO+12}")
    for r in range(0, 4): a(f"v_add_f32 v{OO+r}, v{OO+r}, v{O[0]+r}")
    a(f"v_permlane32_swap_b32 v{T}, v{T+1}")
    for r in range(4, 16):
        if r != 12: a(f"v_add_f32 v{OO+r}, v{OO+r}, v{O[0]+r}")
    a(f"s_mov_b32 s{sFB}, 0")
    a.lab("L_norm")
    a(f"v_rcp_f32 v{T}, v{T+1}")
    if EARLYP == 1: a(f"buffer_load_dwordx2 {vr(T+14,2)}, v{LF}, {S4(rBR)}, 0 offen {PF2}")
    else: a("s_nop 0")
    P = T + 4
    for r in range(8): a(f"v_mul_f32 v{OO+r}, v{OO+r}, v{T}")
    for i in range(4): a(f"v_cvt_pk_bf16_f32 v{P+i}, v{OO+2*i}, v{OO+2*i+1}")
    a(f"buffer_store_dwordx4 {vr(P,4)}, v{L16}, {S4(rBR)}, s{sOO} offen sc1")
    for r in range(8, 16): a(f"v_mul_f32 v{OO+r}, v{OO+r}, v{T}")
    for i in range(4, 8): a(f"v_cvt_pk_bf16_f32 v{P+i}, v{OO+2*i}, v{OO+2*i+1}")
    a("s_mov_b32 exec_hi, 0")
    a(f"buffer_store_dwordx4 {vr(P+4,4)}, v{L16}, {S4(rBR)}, s{sOO} offen offset:1024 sc1")
    a("s_not_b64 exec, exec")
    a(f"buffer_store_dwordx2 {vr(P+4,2)}, v{L8}, {S4(rBR)}, s{sOO} offen offset:1280 sc1")
    a("s_mov_b64 exec, -1")
    if EARLYP == 2: a(f"buffer_load_dwordx2 {vr(T+14,2)}, v{LF}, {S4(rBR)}, 0 offen {PF2}")
    stamp(a, "ost")
    a(f"s_cmp_lg_u32 s{sFB}, 0")
    a("s_cbranch_scc1 L_checked")
    if ARR3 == "late": arrive(a)
    a(f"v_mul_f32 v{T+2}, 0, v{OO}")
    a(f"v_mul_f32 v{T+3}, 0, v{OO+1}")
    for r in range(2, 16): a(f"v_fma_f32 v{T+2+(r&1)}, 0, v{OO+r}, v{T+2+(r&1)}")
    a(f"v_add_f32 v{T+2}, v{T+2}, v{T+3}")
    a(f"v_add_f32 v{T+2}, v{T+2}, v{T+1}")
    a(f"v_cmp_nlt_f32 vcc, 0x35800000, v{T+2}")
    a(f"s_mov_b64 {S2(sROT)}, vcc")
    a(f"v_cmp_ngt_f32 vcc, 0x71800000, v{T+2}")
    a(f"s_or_b64 vcc, vcc, {S2(sROT)}")
    a("s_cbranch_vccnz L_fallback")
    a.lab("L_checked")
    sOS, sOL, sW0 = KT[1], KT[2], KT[3]
    INV = [ORD.index(r_) for r_ in range(4)]
    def wo_round(st):
        a(f"s_xor_b32 s{t0}, s{sPE}, {st}")
        a(f"s_add_u32 s{t0}, s{t0}, s{sW0}")
        a(f"s_mul_i32 s{sWOS}, s{t0}, {28*896}")
        a(f"s_mul_i32 s{sWOL}, s{skq}, {56*256}")
        a(f"s_mov_b32 s{t1}, 0")
        a(f"s_setprio {WPRIO}")
        a.lab(f"L_wo{st}")
        a(f"s_mov_b32 m0, s{sWOL}")
        a(f"s_add_u32 s{t1}, s{t1}, 1")
        a(f"buffer_load_dwordx4 v{WOA}, {S4(rWO)}, s{sWOS} offen lds")
        a(f"s_add_u32 s{sWOL}, s{sWOL}, 1024")
        a(f"s_cmp_eq_u32 s{t1}, 7")
        a(f"s_mov_b32 s{t0}, {4*896}")
        a(f"s_cselect_b32 s{t0}, {32*896}, s{t0}")
        a(f"s_add_u32 s{sWOS}, s{sWOS}, s{t0}")
        a(f"s_cmp_lg_u32 s{t1}, 14")
        a(f"s_waitcnt vmcnt({WOFL})")
        a(f"s_cbranch_scc1 L_wo{st}")
        a("s_waitcnt vmcnt(0)")
        a("s_setprio 2")
    a(f"s_cmp_eq_u32 s{sg}, 0")
    a("s_cbranch_scc1 L_wfirst")
    a.lab("L_pub")
    NF = T + 2
    a(f"v_mov_b32 v{NF}, s{NONCE}")
    a(f"v_mov_b32 v{NF+1}, s{NONCE+1}")
    a("s_mov_b64 exec, 1")
    a(f"s_cmp_eq_u32 s{sg}, 0")
    a("s_waitcnt vmcnt(0)")
    a(f"buffer_store_dwordx2 {vr(NF,2)}, off, {S4(rBR)}, s{sF2O} {SF2}")
    a("s_mov_b64 exec, -1")
    stamp(a, "flag2")
    a("s_cbranch_scc1 L_ph3")
    def late_fetch():
        a(f"s_mov_b32 m0, s{sLL}")
        a("s_nop 0")
        for i in range(4): a(f"buffer_load_dwordx4 v{L16}, {S4(rBR)}, s{sLS} offen offset:{1024*i} sc1 lds")
        a(f"s_add_u32 m0, s{sLL}, 4096")
        a("s_nop 0")
        for i in range(3): a(f"buffer_load_dwordx4 v{L16}, {S4(rBR)}, s{sLS2} offen offset:{1024*i} sc1 lds")
        a("s_mov_b64 exec, 1")
        a("s_waitcnt vmcnt(0)")
        a(f"ds_write_b32 v{LM}, v{ONE}")
        a("s_mov_b64 exec, -1")
    a(f"ds_read_b32 v{T+12}, v{LM}")
    a(f"v_add_u32 v{T+4}, -4, v{CA}")
    lwait(a, "L_wfree", 0, 28, 1, T + 4)
    a(f"v_readfirstlane_b32 s{t0}, v{T+12}")
    a(f"s_cmp_lg_u32 s{t0}, 0")
    a("s_cbranch_scc1 L_fin")
    if EARLYP:
        a(f"v_cmp_ne_u64 vcc, {S2(NONCE)}, {vr(T+14,2)}")
        a("s_cbranch_vccz L_lready")
    if PW0: a("s_waitcnt vmcnt(0)")
    poll(a, "L_f21", LF, rBR, PF2)
    a.lab("L_lready")
    stamp(a, "poll2")
    late_fetch()
    stamp(a, "oown")
    a("s_waitcnt lgkmcnt(0)")
    a("s_branch L_fin")
    a.lab("L_ph3")
    if OUTW:
        a("s_mov_b64 exec, 1")
        a(f"buffer_load_dword v{T+8}, v{OUTA}, {S4(rOUT)}, 0 offen")
        a("s_mov_b64 exec, -1")
    WB = 16
    steps = []
    for q in range(2):
        for j in range(4 * q, 4 * q + 4): steps.append((0, lambda aa, j=j: 28 * j + 8 * aa, ("A", j)))
        for i in range(2 * q, 2 * q + 2): steps.append((1, lambda aa, i=i: 56 * i + 16 + 8 * aa, ("B", 2 * i)))
        steps.append((2, lambda aa, q=q: 28 * (4 * q + aa) + 20, ("C", 4 * q)))
    def wread(st, ks):
        t, row, _ = steps[ks]
        for aa in range(2):
            a(f"ds_read_b64_tr_b16 {vr(WB+56*st+4*ks+2*aa,2)}, v{WA+t} offset:{row(aa)*256}")
    for st in range(2):
        if st: wo_round(1)
        gbar(a, f"L_g4{st}", 4 + 2 * st)
        for ks in range(14): wread(st, ks)
        a("s_waitcnt lgkmcnt(0)")
        gbar(a, f"L_g5{st}", 5 + 2 * st)
        stamp(a, f"wrd{st}")
    ACC3 = [128, 144]; ACCB = [16, 32]; OB = 176; NB = 12; PK = 224
    def mfma_block(st, items, hooks):
        lg = []
        def oread(n_):
            ks, e = items[n_]
            kind, hd = steps[ks][2]
            d = OB + 4 * (n_ % NB)
            base = 28672 * st + 14336 * e
            if kind == "A": a(f"ds_read_b128 {vr(d,4)}, v{OA} offset:{base+hd*1792}"); lg.append(n_)
            elif kind == "B": a(f"ds_read_b128 {vr(d,4)}, v{OA+1} offset:{base+hd*1792+1024}"); lg.append(n_)
            else:
                for aa in range(2):
                    a(f"ds_read_b64 {vr(d+2*aa,2)}, v{OA+2} offset:{base+(hd+aa)*1792+1536}"); lg.append(n_)
        N_ = len(items)
        for n_ in range(min(NB, N_)): oread(n_)
        for n_ in range(N_):
            ks, e = items[n_]
            out = sum(1 for k in lg if k > n_)
            assert out < 16
            a(f"s_waitcnt lgkmcnt({out})")
            d_ = ACCB[e] if (st == 1 and ks >= 7) else ACC3[e]
            c = "0" if (st, ks) in ((0, 0), (1, 7)) else vr(d_, 16)
            a(f"v_mfma_f32_32x32x16_bf16 {vr(d_,16)}, {vr(WB+56*st+4*ks,4)}, {vr(OB+4*(n_%NB),4)}, {c}")
            if n_ + NB < N_: oread(n_ + NB)
            if n_ in hooks: hooks[n_]()
    a(f"s_mul_i32 s{sOS}, s{sRT}, 1792")
    a(f"s_mul_i32 s{sOL}, s{skq}, 7168")
    poll(a, "L_f20", F2A, rBR, PF2)
    a(f"s_mov_b32 m0, s{sOL}")
    a(f"s_add_u32 s{t0}, s{sOS}, 4096")
    for i in range(4): a(f"buffer_load_dwordx4 v{L16}, {S4(rBR)}, s{sOS} offen offset:{1024*i} sc1 lds")
    a(f"s_add_u32 m0, s{sOL}, 4096")
    a("s_nop 0")
    for i in range(3): a(f"buffer_load_dwordx4 v{L16}, {S4(rBR)}, s{t0} offen offset:{1024*i} sc1 lds")
    a("s_waitcnt vmcnt(0)")
    gbar(a, "L_g8", 8)
    stamp(a, "aland")
    if GLOOK:
        a(f"s_mov_b32 s{t3}, {SPIN}")
        a.lab("L_h3a")
        a(f"buffer_load_dwordx2 {vr(T+14,2)}, v{LF}, {S4(rBR)}, 0 offen {PF2}")
        a(f"s_sleep {HSL}")
        a(f"ds_read_b32 v{T+13}, v{CA} offset:4")
        a(f"s_sub_u32 s{t3}, s{t3}, 1")
        a("s_cbranch_scc1 L_end")
        a("s_waitcnt lgkmcnt(0)")
        a(f"v_readfirstlane_b32 s{t2}, v{T+13}")
        a(f"s_cmp_ge_u32 s{t2}, 12")
        a("s_cbranch_scc1 L_h3_done")
        a("s_waitcnt vmcnt(0)")
        a(f"v_cmp_ne_u64 vcc, {S2(NONCE)}, {vr(T+14,2)}")
        a("s_cbranch_vccnz L_h3a")
        late_fetch()
    lwait(a, "L_h3", 4, 12, HSL)
    a("s_setprio 0")
    a(f"s_cmp_eq_u32 s{XM}, 0")
    a("s_cbranch_scc1 L_fin")
    mfma_block(0, [(ks, e) for ks in range(14) for e in range(2)], {})
    stamp(a, "tileA")
    a(f"s_add_u32 s{t0}, s{sOUTO}, {16*1792}")
    a(f"s_add_u32 s{t1}, s{sOUTO}, {32*1792}")
    a(f"s_add_u32 s{sOS}, s{sOUTO}, {48*1792}")
    def pack0(i0):
        def f():
            for r in range(2 * i0, 2 * i0 + 8): a(f"v_add_f32 v{ACC3[0]+r}, v{ACC3[0]+r}, v{ACCB[0]+r}")
            for i in range(i0, i0 + 4): a(f"v_cvt_pk_bf16_f32 v{PK+i}, v{ACC3[0]+2*i}, v{ACC3[0]+2*i+1}")
        return f
    a(f"s_mov_b32 s{t3}, {SPIN}")
    a.lab("L_any")
    a(f"ds_read_b128 {vr(T+8,4)}, v{CA} offset:16")
    a(f"s_sub_u32 s{t3}, s{t3}, 1")
    a("s_cbranch_scc1 L_end")
    a("s_waitcnt lgkmcnt(0)")
    a(f"v_and_b32 v{T+8}, v{T+8}, v{T+9}")
    a(f"v_and_b32 v{T+10}, v{T+10}, v{T+11}")
    a(f"v_cmp_ne_u32 vcc, 0, v{T+10}")
    a("s_cbranch_vccnz L_ba")
    a(f"v_cmp_ne_u32 vcc, 0, v{T+8}")
    a("s_cbranch_vccz L_any")
    for first in (0, 1):
        if first: a.lab("L_ba")
        stamp(a, "bland")
        mfma_block(1, [(ks, e) for ks in range(7 * first, 7 * first + 7) for e in range(2)], {})
        a(f"s_mov_b32 s{t3}, {SPIN}")
        a.lab(f"L_u{first}")
        a(f"ds_read_b64 {vr(T+8,2)}, v{CA} offset:{24 - 8*first}")
        a(f"s_sub_u32 s{t3}, s{t3}, 1")
        a("s_cbranch_scc1 L_end")
        a("s_waitcnt lgkmcnt(0)")
        a(f"v_and_b32 v{T+8}, v{T+8}, v{T+9}")
        a(f"v_cmp_ne_u32 vcc, 0, v{T+8}")
        a(f"s_cbranch_vccz L_u{first}")
        stamp(a, "oland")
        mfma_block(1, [(ks, e) for e in range(2) for ks in range(7 - 7 * first, 14 - 7 * first)], {12: pack0(0), 13: pack0(4)})
        if not first: a("s_branch L_out")
    a.lab("L_out")
    stamp(a, "mf3")
    a(f"ds_write_b128 v{TW}, {vr(PK,4)}")
    a(f"ds_write_b128 v{TW+1}, {vr(PK+4,4)}")
    a(f"ds_read_b128 {vr(OB+16,4)}, v{TR}")
    a(f"ds_read_b128 {vr(OB+20,4)}, v{TR} offset:1024")
    for r in range(8): a(f"v_add_f32 v{ACC3[1]+r}, v{ACC3[1]+r}, v{ACCB[1]+r}")
    for i in range(4): a(f"v_cvt_pk_bf16_f32 v{PK+8+i}, v{ACC3[1]+2*i}, v{ACC3[1]+2*i+1}")
    a(f"ds_write_b128 v{TW}, {vr(PK+8,4)} offset:2048")
    a("s_waitcnt lgkmcnt(1)")
    a(f"buffer_store_dwordx4 {vr(OB+16,4)}, v{OUTA}, {S4(rOUT)}, s{sOUTO} offen {OUTF}")
    a(f"buffer_store_dwordx4 {vr(OB+20,4)}, v{OUTA}, {S4(rOUT)}, s{t0} offen {OUTF}")
    for r in range(8, 16): a(f"v_add_f32 v{ACC3[1]+r}, v{ACC3[1]+r}, v{ACCB[1]+r}")
    for i in range(4, 8): a(f"v_cvt_pk_bf16_f32 v{PK+8+i}, v{ACC3[1]+2*i}, v{ACC3[1]+2*i+1}")
    a(f"ds_write_b128 v{TW+1}, {vr(PK+12,4)} offset:2048")
    a(f"ds_read_b128 {vr(OB+24,4)}, v{TR} offset:2048")
    a(f"ds_read_b128 {vr(OB+28,4)}, v{TR} offset:3072")
    a("s_waitcnt lgkmcnt(1)")
    a(f"buffer_store_dwordx4 {vr(OB+24,4)}, v{OUTA}, {S4(rOUT)}, s{t1} offen {OUTF}")
    a("s_waitcnt lgkmcnt(0)")
    a(f"buffer_store_dwordx4 {vr(OB+28,4)}, v{OUTA}, {S4(rOUT)}, s{sOS} offen {OUTF}")
    a.lab("L_fin")
    if STAMP:
        a("s_waitcnt vmcnt(0)")
        a("s_memrealtime s[22:23]")
        a("s_memtime s[98:99]")
        a("s_waitcnt lgkmcnt(0)")
        a("s_mov_b64 exec, 1")
        a(f"s_mov_b32 s{rWS}, s2"); a(f"s_mov_b32 s{rWS+1}, s3"); a(f"s_mov_b32 s{rWS+2}, 0x10000000")
        a(f"s_lshl_b32 s{t1}, s{sidx}, 3")
        a(f"s_add_u32 s{t1}, s{t1}, s{sx}")
        a(f"s_lshl_b32 s{t1}, s{t1}, 9")
        a(f"s_add_u32 s{t1}, s{t1}, {64<<20}")
        a(f"s_lshl_b32 s{t0}, s{sw}, 6")
        a(f"s_add_u32 s{t1}, s{t1}, s{t0}")
        for i, r in enumerate([RT, 22, 100, 98] + [80 + 2 * k for k in range(9)] + [sLOC]):
            a(f"v_mov_b32 v1, s{r}")
            a(f"buffer_store_dword v1, off, {S4(rWS)}, s{t1} offset:{4*i}")
    if DIAG:
        a("s_waitcnt vmcnt(0)")
        if DIAG == "end": a("s_memrealtime s[80:81]")
        if DIAG == "none": a(f"s_mov_b32 s80, s{NONCE}")
        a("s_waitcnt lgkmcnt(0)")
        a("s_add_u32 s80, s80, 6000")
        a.lab("L_diag")
        a("s_sleep 2")
        a("s_memrealtime s[82:83]")
        a("s_waitcnt lgkmcnt(0)")
        a("s_sub_u32 s82, s82, s80")
        a("s_cmp_lt_i32 s82, 0")
        a("s_cbranch_scc1 L_diag")
    a.lab("L_end")
    a("s_endpgm")
    a.lab("L_wfirst")
    lwait(a, "L_h2", 12, 4)
    stamp(a, "wo0")
    a(f"s_lshl_b32 s{t0}, s{skq}, 2")
    a(f"s_lshr_b32 s{t0}, {sum((4*INV[r_]) << (4*r_) for r_ in range(4)):#x}, s{t0}")
    a(f"s_and_b32 s{sW0}, s{t0}, 15")
    wo_round(0)
    a("s_branch L_pub")
    for tag, P_, so in tails:
        a.lab(f"L_wt{tag}")
        a(f"buffer_store_dwordx4 {vr(P_,4)}, v{TAU}, {S4(rWS)}, s{so} offen sc1")
        a(f"buffer_store_dwordx4 {vr(P_+4,4)}, v{TAU}, {S4(rWS)}, s{so} offen offset:1024 sc1")
        a(f"s_branch L_st{tag}")
    for v in nnt:
        a.lab(f"L_nn{v}")
        a(f"buffer_load_dwordx2 {vr(NV,2)}, v{NA}, {S4(rDBG)}, 0 offen sc1")
        a(f"s_branch L_nnb{v}")
    for tag, nm in stails:
        a.lab(f"L_ns{tag}")
        stamp(a, nm)
        a(f"s_branch L_nb{tag}")
    for name, target in slow:
        a.lab(f"{name}_slow")
        lwait(a, name, 0, target, 1)
        a(f"s_branch {name}_back")
    a.lab("L_f1wt")
    a(f"buffer_store_dwordx2 {vr(NV,2)}, off, {S4(rWS)}, s{sF1O} sc1")
    a("s_branch L_f1st")
    for tag in "LC":
        a.lab(f"L_nonce_retry{tag}")
        a(f"buffer_load_dwordx2 {vr(NV,2)}, off, {S4(rDBG)}, s{sDL} sc1")
        a(f"s_sub_u32 s{t3}, s{t3}, 1")
        a("s_cbranch_scc1 L_end")
        a("s_waitcnt vmcnt(0)")
        a(f"s_branch L_nonce{tag}")
    a.lab("L_fallback")
    QO = Q[3]; S0 = SB[0]; K0 = KB[0]; V0 = VB[0]; M = T + 2
    a("s_waitcnt vmcnt(0)")
    a(f"s_mov_b32 s{sFB}, 1")
    a("s_mov_b32 exec_lo, 0")
    a(f"v_mov_b32 v{QO+6}, 0")
    a("s_mov_b32 exec_lo, -1")
    for r in range(16): a(f"v_mov_b32 v{OO+r}, 0")
    a(f"v_mov_b32 v{M}, 0xff7fffff")
    a(f"s_mov_b32 s{sKVO}, 0")
    a.lab("L_fb_loop")
    a(f"buffer_load_dwordx4 {vr(K0,4)}, v{L16}, {S4(rKV)}, s{sKVO} offen sc1")
    a(f"buffer_load_dwordx4 {vr(K0+4,4)}, v{L16}, {S4(rKV)}, s{sKVO} offen offset:1024 sc1")
    a(f"buffer_load_dwordx4 {vr(V0,4)}, v{L16}, {S4(rKV)}, s{sKVO} offen offset:2048 sc1")
    a(f"buffer_load_dwordx4 {vr(V0+4,4)}, v{L16}, {S4(rKV)}, s{sKVO} offen offset:3072 sc1")
    a("s_waitcnt vmcnt(0)")
    a(f"v_mfma_f32_32x32x16_bf16 {vr(S0,16)}, {vr(K0,4)}, {vr(QO,4)}, 0")
    a(f"v_mfma_f32_32x32x16_bf16 {vr(S0,16)}, {vr(K0+4,4)}, {vr(QO+4,4)}, {vr(S0,16)}")
    a("s_nop 15")
    a(f"v_max3_f32 v{T}, v{M}, v{S0}, v{S0+1}")
    for i in range(2, 16, 2): a(f"v_max3_f32 v{T}, v{T}, v{S0+i}, v{S0+i+1}")
    a(f"v_mov_b32 v{T+1}, v{T}")
    a("s_nop 1")
    a(f"v_permlane32_swap_b32 v{T}, v{T+1}")
    a(f"v_max_f32 v{T}, v{T}, v{T+1}")
    a(f"v_sub_f32 v{T+1}, v{M}, v{T}")
    a(f"v_exp_f32 v{T+1}, v{T+1}")
    a(f"v_mov_b32 v{M}, v{T}")
    for r in range(16): a(f"v_sub_f32 v{S0+r}, v{S0+r}, v{T}")
    for r in range(16): a(f"v_exp_f32 v{S0+r}, v{S0+r}")
    for r in range(16): a(f"v_mul_f32 v{OO+r}, v{OO+r}, v{T+1}")
    a("s_nop 1")
    a(f"v_smfmac_f32_32x32x32_bf16 {vr(OO,16)}, {vr(V0,4)}, {vr(S0,8)}, v{IDX}")
    a(f"v_smfmac_f32_32x32x32_bf16 {vr(OO,16)}, {vr(V0+4,4)}, {vr(S0+8,8)}, v{IDX}")
    a(f"s_add_u32 s{sKVO}, s{sKVO}, 4096")
    a(f"s_cmp_lt_u32 s{sKVO}, 262144")
    a("s_nop 15")
    a("s_cbranch_scc1 L_fb_loop")
    a(f"v_mov_b32 v{T}, v{OO+12}")
    a(f"v_mov_b32 v{T+1}, v{OO+12}")
    a("s_nop 1")
    a(f"v_permlane32_swap_b32 v{T}, v{T+1}")
    a("s_branch L_norm")
    kd = f""".section .rodata,"a"
.p2align 6
.amdhsa_kernel {n}
  .amdhsa_next_free_vgpr 256
  .amdhsa_next_free_sgpr 102
  .amdhsa_accum_offset 256
  .amdhsa_group_segment_fixed_size 0
  .amdhsa_kernarg_size 72
  .amdhsa_user_sgpr_count 2
  .amdhsa_user_sgpr_kernarg_segment_ptr 1
  .amdhsa_system_sgpr_workgroup_id_x 1
.end_amdhsa_kernel
"""
    return a.text() + kd

hdr = f"""; @launch grid=(256,1,1) block=(512,1,1) lds={LDS}
.amdgcn_target "amdgcn-amd-amdhsa--gfx950"
.text
"""
open(sys.argv[1] if len(sys.argv) > 1 else "v11.s", "w").write(hdr + gen())
```

```python
import sys, os, struct, math
NAME = "concat_heads__softmax_full_mha__softmax_full_mha__prompt"
def f2u(x): return struct.unpack("<I", struct.pack("<f", x))[0]
CSCALE = f2u(28 ** -0.5 * math.log2(math.e))
E = os.environ.get
STAMP = E("STAMP", "0") in ("1", "3")
RTS = E("STAMP", "0") == "3"
DIAG = E("DIAG", "")
STL = E("STL", "c0,p1end,ack1,poll1,loop0,loop1,flag2,poll2,oland").split(",")
F2SP = int(E("F2SP", "32"))
FORCEFB = E("FORCEFB", "0") == "1"
LOCAL = E("LOCAL", "1") == "1"
PRET = int(E("PRET", "3"))
SLEEP = int(E("SLEEP", "0"))
OUTF = E("OUTF", "")
ROTA, ROTB, ROTC, ROTN, ROTS = [int(v) for v in E("ROTP", "1,0,2,7,1").split(",")]
WOFL = int(E("WOFL", "3"))
NOWN = int(E("NOWN", "4"))
NPOS = int(E("NPOS", "5"))
ARR3 = E("ARR3", "late")
OUTW = int(E("OUTW", "1"))
WOT = int(E("WOT", "-1"))
HB = int(E("HB", "0"))
BPOS = int(E("BPOS", "2"))
TLBW = int(E("TLBW", "0"))
PROBE = int(E("PROBE", "0"))
WPRIO = int(E("WPRIO", "0"))
PRET2 = int(E("PRET2", "0"))
LG = int(E("LG", "2"))
PF2 = E("PF2", "sc1").replace("_", " ")
SF2 = E("SF2", "sc1").replace("_", " ")
PIPE = int(E("PIPE", "0"))
PW0 = int(E("PW0", "1"))
F1SP = int(E("F1SP", "128"))
K1L = int(E("K1L", "1"))
LQ0 = int(E("LQ0", "2"))
PGA = int(E("PGA", "1"))
FPOS = int(E("FPOS", "22"))
QB = int(E("QB", "14"))
TEAR = int(E("TEAR", "0"))
B2 = int(E("B2", "0"))
LPR = int(E("LPR", "0"))
CPF = int(E("CPF", "1"))
SP = int(E("SP", "2"))
WF0 = E("WF0", ""); WF = E("WF", ""); XF0 = E("XF0", ""); XF = E("XF", ""); KVS = E("KVS", ""); WOF = E("WOF", ""); TF = E("TF", "sc1").replace("_", " "); KVL = E("KVL", "sc1").replace("_", " ")
LOW = [int(x) for x in E("LOW", "-1,-1").split(",")]
QFAST = int(E("QFAST", "1"))
FT = E("FT", "")
P0S = int(E("P0S", "1"))
SL1 = int(E("SL1", "0"))
PEX = int(E("PEX", "1"))
EARLYP = int(E("EARLYP", "1"))
GLOOK = int(E("GLOOK", "0"))
LOOK = int(E("LOOK", "16"))
LOOK2 = int(E("LOOK2", "7"))
HSL = int(E("HSL", "4"))
XMAP = E("XMAP", "")
T2POS = E("T2POS", "b6")
SPIN = 1 << 22

X_F1 = 1 << 20
B_BASE = 16 << 20; B_F2 = 1835008
STAGE = 40960; XOFF = 24576
PB0 = 57344; QX = 122880; MX = 106496; PB1 = 113664; TX = 57344; LDS = 163840; GBC = 163808

class A:
    def __init__(self):
        self.l = []; self.vm = []; self.done = 0
    def __call__(self, s): self.l.append("    " + s)
    def lab(self, s): self.l.append(s + ":")
    def raw(self, s): self.l.append(s)
    def text(self): return "\n".join(self.l) + "\n"
    def vreset(self): self.vm = []; self.done = 0
    def vmem(self, s, tag=None):
        self(s); self.vm.append(tag)
    def vwait(self, tag):
        idx = [i for i, t in enumerate(self.vm) if t == tag]
        assert idx, tag
        last = idx[-1] + 1
        if last <= self.done: return
        self.done = last
        n = len(self.vm) - last
        assert n < 64
        self(f"s_waitcnt vmcnt({n})")

def vr(b, n): return f"v[{b}:{b+n-1}]"
def S4(b): return f"s[{b}:{b+3}]"
def S2(b): return f"s[{b}:{b+1}]"
def stamp(a, name):
    if DIAG == name: a("s_memrealtime s[80:81]")
    if DIAG == name + "@0":
        a("s_cmp_lg_u32 s50, 0")
        a("s_cbranch_scc1 L_dg0")
        a("s_memrealtime s[80:81]")
        a.lab("L_dg0")
    if STAMP and name in STL:
        i = STL.index(name)
        a(f"{'s_memrealtime' if RTS else 's_memtime'} s[{80+2*i}:{81+2*i}]")

rX, rW, rWS, rWO, rOUT, rDBG, rKV, rBR = 24, 28, 32, 36, 64, 68, 72, 12
XM = 4
sLOC, sRT, sOUTO, sQT, sF1O, sPE = 6, 7, 8, 9, 10, 11
sKVO, sWOS, sWOL, sOO, sF2O, sFB = 16, 17, 18, 19, 22, 23
sx, sidx, sb, srb, shalf, sXS, sw, shl, shs, sg4, sg, sWL, sXL, sWS_, stt, scg, skq, su = range(40, 58)
t0, t1, sDL, t2, sROT, t3 = 58, 59, 60, 61, 62, 63
NONCE = 76; RT = 78
KT = [24, 25, 26, 27, 28]
KP = [24, 26, 28, 30, 44, 52, 54, 20]
L16, IDX, CA, F1A, ONE, L8, MW, MR, PW, PR, TAU = 1, 2, 3, 4, 5, 6, 7, 8, 11, 14, 15
T = 240
XD, WD, XA, WA1, QW, NV, NA, PTA = 16, 18, 16, 20, 23, 232, 234, 235
ACC = 32; FR = 128; P1 = 208
Q = [16, 24, 32, 40]; O = [48, 64, 80, 96]; SB = [112, 128, 144]; KB = [176, 184, 192, 200]; VB = [208, 216, 224, 232]
WA, F2B, TW, OA, WOA, F2A, OUTA, TR = 160, 163, 166, 168, 172, 173, 174, 175
ORD = [0, 2, 3, 1]
LF, LM, C0A = 163, 164, 165
sLS, sLL, sLS2 = 43, 51, 57

def lwait(a, name, off, target, sleep=2, reg=None):
    a(f"s_mov_b32 s{t3}, {SPIN}")
    a.lab(f"{name}_spin")
    a(f"ds_read_b32 v{T+13}, v{reg or CA} offset:{off}")
    a(f"s_sub_u32 s{t3}, s{t3}, 1")
    a("s_cbranch_scc1 L_end")
    a("s_waitcnt lgkmcnt(0)")
    a(f"v_readfirstlane_b32 s{t2}, v{T+13}")
    a(f"s_cmp_ge_u32 s{t2}, {target}")
    if sleep:
        a(f"s_cbranch_scc1 {name}_done")
        a(f"s_sleep {sleep}")
        a(f"s_branch {name}_spin")
        a.lab(f"{name}_done")
    else:
        a(f"s_cbranch_scc0 {name}_spin")
def arrive(a, off=0):
    a("s_mov_b64 exec, 1")
    a(f"ds_add_u32 v{CA}, v{ONE} offset:{off}")
    a("s_mov_b64 exec, -1")
slow = []
def lpre(a, reg=None): a(f"ds_read_b32 v{T+13}, v{reg or CA}")
def lcheck(a, name, target, reg=None):
    a("s_waitcnt lgkmcnt(0)")
    a(f"v_readfirstlane_b32 s{t2}, v{T+13}")
    a(f"s_cmp_ge_u32 s{t2}, {target}")
    a(f"s_cbranch_scc0 {name}_slow")
    a.lab(f"{name}_back")
    slow.append((name, target, reg))
def gbar(a, name, k):
    arrive(a)
    lwait(a, name, 0, 4 * k)
def poll_pipe(a, name, vaddr, srd, fl, regs):
    n_ = len(regs)
    a(f"s_mov_b32 s{t3}, {SPIN}")
    for r in regs[:-1]:
        a(f"buffer_load_dwordx2 {vr(r,2)}, v{vaddr}, {S4(srd)}, 0 offen {fl}")
        a(f"s_sleep {PIPE}")
    a.lab(f"{name}_spin")
    for i in range(n_):
        a(f"buffer_load_dwordx2 {vr(regs[(i-1)%n_],2)}, v{vaddr}, {S4(srd)}, 0 offen {fl}")
        a(f"s_waitcnt vmcnt({n_-1})")
        a(f"v_cmp_ne_u64 vcc, {S2(NONCE)}, {vr(regs[i],2)}")
        a(f"s_cbranch_vccz {name}_ok")
    a(f"s_sub_u32 s{t3}, s{t3}, 1")
    a(f"s_cbranch_scc0 {name}_spin")
    a("s_branch L_end")
    a.lab(f"{name}_ok")
def poll(a, name, vaddr, srd, fl="sc1", lanes=4, SLEEP=0):
    a(f"s_mov_b32 s{t3}, {SPIN}")
    if PEX: a(f"s_mov_b64 exec, {(1 << lanes) - 1:#x}")
    if SLEEP: a(f"s_branch {name}_first")
    a.lab(f"{name}_spin")
    if SLEEP:
        a(f"s_sleep {SLEEP}")
        a.lab(f"{name}_first")
    a(f"buffer_load_dwordx2 {vr(T+14,2)}, v{vaddr}, {S4(srd)}, 0 offen {fl}")
    a(f"s_sub_u32 s{t3}, s{t3}, 1")
    a("s_cbranch_scc1 L_end")
    a("s_waitcnt vmcnt(0)")
    a(f"v_cmp_ne_u64 vcc, {S2(NONCE)}, {vr(T+14,2)}")
    a(f"s_cbranch_vccnz {name}_spin")
    if PEX: a("s_mov_b64 exec, -1")

def gen():
    a = A(); n = NAME + "_kernel"
    tails = []; stails = []; nnt = []
    u0, u1, u2, u3, u4 = T, T + 1, T + 2, T + 3, T + 4
    a.raw(f".globl {n}\n" + (".p2align 12\n" if PGA else "") + f".p2align 8\n.type {n},@function")
    a.lab(n)
    a("s_cmp_ge_u32 s2, 256")
    a("s_cbranch_scc1 L_end")
    a("s_load_dwordx16 s[4:19], s[0:1], 0")
    a("s_load_dwordx2 s[20:21], s[0:1], 64")
    a(f"s_memrealtime {S2(RT)}")
    if STAMP: a("s_memtime s[100:101]")
    a(f"s_and_b32 s{sx}, s2, 7")
    a(f"s_lshr_b32 s{sidx}, s2, 3")
    a("v_lshrrev_b32 v1, 6, v0")
    a("v_and_b32 v0, 63, v0")
    a(f"v_readfirstlane_b32 s{sw}, v1")
    if XMAP:
        tab = sum(int(c) << (4 * i) for i, c in enumerate(XMAP))
        assert sorted(XMAP) == list("01234567")
        a(f"s_lshl_b32 s{t0}, s{sx}, 2")
        a(f"s_lshr_b32 s{t0}, {tab:#x}, s{t0}")
        a(f"s_bfe_u32 s{sb}, s{t0}, 0x10002")
        a(f"s_and_b32 s{sg4}, s{t0}, 3")
    else:
        a(f"s_lshr_b32 s{sb}, s{sx}, 2")
        a(f"s_and_b32 s{sg4}, s{sx}, 3")
    a(f"s_lshr_b32 s{srb}, s{sidx}, 1")
    a(f"s_and_b32 s{shalf}, s{sidx}, 1")
    if TLBW:
        a(f"s_cmp_lt_u32 s{sw}, 4")
        a("s_cbranch_scc1 L_load")
        a(f"s_mul_i32 s{t0}, s{srb}, {128*896}")
        a(f"s_cmp_eq_u32 s{sb}, 0")
        a(f"v_mov_b32 v{u0}, s{t0}")
        a(f"v_mul_u32_u24 v{u1}, {7*2688}, v0")
        a("s_waitcnt lgkmcnt(0)")
        a(f"s_cselect_b64 {S2(rX)}, s[4:5], s[10:11]")
        a(f"s_cselect_b64 {S2(rW)}, s[6:7], s[12:13]")
        if TLBW == 1: a("s_mov_b64 exec, 1")
        a(f"global_load_dword v{T+10}, v{u0}, {S2(rX)}")
        a(f"global_load_dword v{T+11}, v{u1}, {S2(rW)}")
        a("s_mov_b64 exec, -1")
        a("s_branch L_comp")
        a.lab("L_load")
    else:
        a(f"s_cmp_ge_u32 s{sw}, 4")
        a("s_cbranch_scc1 L_comp")
    def stamp_init():
        if DIAG: a(f"s_mov_b32 s80, s{RT}")
        if STAMP:
            for k in range(9): a(f"s_mov_b32 s{80+2*k}, s{RT if RTS else 100}")
    def dbg_desc():
        a(f"s_mov_b32 s{rDBG}, s18"); a(f"s_mov_b32 s{rDBG+1}, s19"); a(f"s_mov_b32 s{rDBG+2}, 256"); a(f"s_mov_b32 s{rDBG+3}, 0x00020000")
        a(f"s_lshl_b32 s{sDL}, s{sb}, 3")
    def ws_desc():
        a(f"s_lshl_b32 s{t2}, s{sx}, 21")
        a(f"s_add_u32 s{rWS}, s20, s{t2}")
        a(f"s_addc_u32 s{rWS+1}, s21, 0")
        a(f"s_mov_b32 s{rWS+2}, {2<<20}")
        a(f"s_mov_b32 s{rWS+3}, 0x00020000")
    def ids2a(g, ws=True):
        a(f"s_cmp_eq_u32 s{sb}, 0")
        a(f"s_cselect_b32 s{rWO}, s8, s14")
        a(f"s_cselect_b32 s{rWO+1}, s9, s15")
        a(f"s_mov_b32 s{rWO+2}, 401408")
        a(f"s_mov_b32 s{rWO+3}, 0x00020000")
        a(f"s_mov_b32 s{rOUT}, s16"); a(f"s_mov_b32 s{rOUT+1}, s17"); a(f"s_mov_b32 s{rOUT+2}, {2048*896*2}"); a(f"s_mov_b32 s{rOUT+3}, 0x00020000")
        if ws: ws_desc()
        a(f"s_lshl_b32 s{t2}, s{sb}, 21")
        a(f"s_add_u32 s{t2}, s{t2}, {B_BASE}")
        a(f"s_add_u32 s{rBR}, s20, s{t2}")
        a(f"s_addc_u32 s{rBR+1}, s21, 0")
        a(f"s_mov_b32 s{rBR+2}, {2<<20}")
        a(f"s_mov_b32 s{rBR+3}, 0x00020000")
        a(f"s_mov_b32 s{sg}, {g}")
        a(f"s_and_b32 s{shs}, s{srb}, 1")
        if g: a(f"s_xor_b32 s{shs}, s{shs}, 1")
        a(f"s_lshl_b32 s{shl}, s{shalf}, 1")
        a(f"s_add_u32 s{shl}, s{shl}, s{shs}")
        a(f"s_lshl_b32 s{t2}, s{shl}, 18")
        a(f"s_add_u32 s{rKV}, s{rWS}, s{t2}")
        a(f"s_addc_u32 s{rKV+1}, s{rWS+1}, 0")
        a(f"s_mov_b32 s{rKV+2}, 262144")
        a(f"s_mov_b32 s{rKV+3}, 0x00020000")
        a(f"s_and_b32 s{skq}, s{sw}, 3")
        a(f"s_lshl_b32 s{sKVO}, s{skq}, 16")
        a(f"v_and_b32 v{u0}, 15, v0")
        a(f"v_lshlrev_b32 v{u0}, 3, v{u0}")
        a(f"s_lshl_b32 s{t0}, s{shalf}, 2")
        a(f"s_add_u32 s{t0}, s{t0}, s{skq}")
        a(f"s_mul_i32 s{t0}, s{t0}, {F1SP}")
        a(f"s_add_u32 s{t0}, s{t0}, {X_F1}")
        a(f"v_add_u32 v{F1A}, s{t0}, v{u0}")
    def ids2b(g):
        a(f"v_lshlrev_b32 v{L16}, 4, v0")
        a(f"v_lshlrev_b32 v{L8}, 3, v0")
        a(f"v_lshlrev_b32 v{u0}, 2, v0")
        a(f"v_mov_b32 v{IDX}, 0xdddddddd")
        pb = PB1 if g else PB0; mx = MX + 1024 * g
        a(f"s_lshl_b32 s{t1}, s{skq}, 8")
        a(f"s_add_u32 s{t1}, s{t1}, {mx}")
        a(f"v_add_u32 v{MW}, s{t1}, v{u0}")
        a(f"s_mul_i32 s{t1}, s{skq}, 12288")
        a(f"s_add_u32 s{t1}, s{t1}, {pb}")
        a(f"v_add_u32 v{PR}, s{t1}, v{L16}")
        for i in range(3):
            a(f"s_add_u32 s{t0}, s{skq}, {1+i}")
            a(f"s_and_b32 s{t0}, s{t0}, 3")
            a(f"s_lshl_b32 s{t1}, s{t0}, 8")
            a(f"s_add_u32 s{t1}, s{t1}, {mx}")
            a(f"v_add_u32 v{MR+i}, s{t1}, v{u0}")
            a(f"s_mul_i32 s{t1}, s{t0}, 12288")
            a(f"s_add_u32 s{t1}, s{t1}, {pb + 4096*i}")
            a(f"v_add_u32 v{PW+i}, s{t1}, v{L16}")
        a(f"v_mov_b32 v{CA}, {GBC + 4*g}")
        a(f"v_mov_b32 v{ONE}, 1")
        a(f"s_lshl_b32 s{sQT}, s{srb}, 2")
        a(f"s_add_u32 s{sQT}, s{sQT}, s{skq}")
        a(f"s_lshl_b32 s{t0}, s{sg4}, 2")
        a(f"s_lshr_b32 s{t0}, {sum((2*ORD[g_]) << (4*g_) for g_ in range(4)):#x}, s{t0}")
        a(f"s_and_b32 s{t0}, s{t0}, 7")
        a(f"s_add_u32 s{t0}, s{t0}, s{shalf}")
        a(f"s_lshl_b32 s{t1}, s{shs}, 3")
        a(f"s_add_u32 s{t0}, s{t0}, s{t1}")
        a(f"s_lshl_b32 s{t1}, s{sQT}, 4")
        a(f"s_add_u32 s{t1}, s{t1}, s{t0}")
        a(f"s_mul_i32 s{sOO}, s{t1}, 1792")
        a(f"s_mul_i32 s{sF2O}, s{t1}, {F2SP}")
        a(f"s_add_u32 s{sF2O}, s{sF2O}, {B_F2}")
    def late_addr():
        a(f"s_lshl_b32 s{t0}, s{sg4}, 3")
        a(f"s_lshr_b32 s{t1}, s{sidx}, 2")
        a(f"s_add_u32 s{t0}, s{t0}, s{t1}")
        a(f"s_and_b32 s{t1}, s{t0}, 2")
        a(f"s_xor_b32 s{t1}, s{t1}, 2")
        a(f"s_lshl_b32 s{t1}, s{t1}, 2")
        a(f"s_lshl_b32 s{t0}, s{t0}, 5")
        a(f"s_add_u32 s{t0}, s{t0}, s{t1}")
        a(f"s_and_b32 s{t1}, s{skq}, 1")
        a(f"s_mul_i32 s{sLL}, s{t1}, 14336")
        a(f"s_lshl_b32 s{t1}, s{t1}, 4")
        a(f"s_add_u32 s{t0}, s{t0}, s{t1}")
        a(f"s_and_b32 s{t1}, s{skq}, 2")
        a(f"s_lshl_b32 s{t1}, s{t1}, 1")
        a(f"s_add_u32 s{t0}, s{t0}, s{t1}")
        a(f"v_and_b32 v{LF}, 3, v0")
        a(f"v_add_u32 v{LF}, s{t0}, v{LF}")
        a(f"v_mul_u32_u24 v{LF}, {F2SP}, v{LF}")
        a(f"v_add_u32 v{LF}, {B_F2}, v{LF}")
        a(f"s_mul_i32 s{sLS}, s{t0}, 1792")
        a(f"s_add_u32 s{sLS2}, s{sLS}, 4096")
        a(f"s_mul_i32 s{t1}, s{t1}, 1792")
        a(f"s_add_u32 s{sLL}, s{sLL}, s{t1}")
        a(f"s_add_u32 s{sLL}, s{sLL}, 28672")
        a(f"s_lshl_b32 s{t1}, s{skq}, 2")
        a(f"s_add_u32 s{t1}, s{t1}, {GBC + 16}")
        a(f"v_mov_b32 v{LM}, s{t1}")
        a(f"v_mov_b32 v{C0A}, {GBC}")
    def pre2():
        late_addr()
        for r in range(4): a(f"v_mov_b32 v{SB[0]+r}, 0")
        a("s_nop 1")
        for i in range(4): a(f"v_mfma_f32_32x32x16_bf16 {vr(O[i],16)}, {vr(SB[0],4)}, {vr(SB[0],4)}, 0")
        if STAMP: a("s_mov_b64 s[2:3], s[20:21]")
        a(f"s_add_u32 s{t0}, s{rKV}, s{sKVO}")
        a(f"s_addc_u32 s{t1}, s{rKV+1}, 0")
        for k in range(8):
            a(f"s_add_u32 s{KP[k]}, s{t0}, {8192*k + 4096}")
            a(f"s_addc_u32 s{KP[k]+1}, s{t1}, 0")
        if WOT >= 0:
            a(f"s_lshl_b32 s{t0}, s{sidx}, 2")
            a(f"s_add_u32 s{t0}, s{t0}, s{skq}")
            a(f"s_mul_i32 s{t0}, s{t0}, 25")
            a(f"v_min_u32 v{TAU}, 24, v0")
            a(f"v_add_u32 v{TAU}, s{t0}, v{TAU}")
            a(f"v_lshlrev_b32 v{TAU}, 7, v{TAU}")
    def getq(g):
        a(f"s_lshl_b32 s{t1}, s{shs}, 13")
        a(f"s_add_u32 s{t1}, s{t1}, {QX}")
        for i in range(4):
            a(f"s_add_u32 s{t0}, s{skq}, {1+i}")
            a(f"s_and_b32 s{t0}, s{t0}, 3")
            a(f"s_lshl_b32 s{t0}, s{t0}, 11")
            a(f"s_add_u32 s{t0}, s{t0}, s{t1}")
            a(f"v_add_u32 v{u0+i}, s{t0}, v{L16}")
        a(f"v_mov_b32 v{T+4}, {GBC + 8}")
        a(f"v_mov_b32 v{T+5}, {GBC + 12 if g else GBC - 4}")
    def getq2():
        lwait(a, "L_q", 0, 4, 0 if QFAST else 1, T + 4)
        for i in (3, 0, 1, 2):
            a(f"ds_read_b128 {vr(Q[i],4)}, v{u0+i}")
            a(f"ds_read_b128 {vr(Q[i]+4,4)}, v{u0+i} offset:1024")
    def nonce(tag):
        a(f"s_mov_b32 s{t3}, {SPIN}")
        a.lab(f"L_nonce{tag}")
        a(f"v_readfirstlane_b32 s{NONCE}, v{NV}")
        a(f"v_readfirstlane_b32 s{NONCE+1}, v{NV+1}")
        a(f"s_cmp_lg_u32 s{NONCE}, 0")
        a(f"s_cselect_b32 s{t2}, s{NONCE+1}, 0")
        a(f"s_cmp_lg_u32 s{t2}, 0")
        a(f"s_cbranch_scc0 L_nonce_retry{tag}")
    a(f"v_lshrrev_b32 v{u0}, 3, v0")
    a(f"v_lshrrev_b32 v{u1}, 4, v0")
    a(f"v_and_b32 v{u2}, 7, v0")
    a(f"s_lshl_b32 s{t0}, s{srb}, 7")
    a(f"s_lshl_b32 s{t1}, s{sw}, 5")
    a(f"s_add_u32 s{t0}, s{t0}, s{t1}")
    a(f"v_add_u32 v{u3}, s{t0}, v{u0}")
    a(f"v_mul_u32_u24 v{u3}, 896, v{u3}")
    a(f"v_xor_b32 v{u4}, v{u2}, v{u1}")
    a(f"v_lshl_add_u32 v{XD}, v{u4}, 4, v{u3}")
    a(f"v_xor_b32 v{XD+1}, 64, v{XD}")
    a(f"v_add_u32 v{XD+1}, 7168, v{XD+1}")
    a(f"s_mul_i32 s{t0}, s{sg4}, 224")
    a(f"s_mul_i32 s{t1}, s{sw}, {16*2688}")
    a(f"s_add_u32 s{t0}, s{t0}, s{t1}")
    a(f"s_mul_i32 s{t1}, s{shalf}, 896")
    a(f"s_add_u32 s{t1}, s{t1}, s{t0}")
    a(f"s_add_u32 s{t1}, s{t1}, 896")
    a(f"v_lshlrev_b32 v{u3}, 2, v{u1}")
    a(f"v_and_b32 v{u4}, 15, v0")
    a(f"v_xor_b32 v{u4}, v{u4}, v{u3}")
    a(f"v_cmp_lt_u32 vcc, 13, v{u4}")
    a(f"v_mul_u32_u24 v{u1}, 2688, v{u1}")
    a(f"v_lshl_add_u32 v{u1}, v{u4}, 4, v{u1}")
    a(f"v_add_u32 v{WD}, s{t1}, v{u1}")
    a(f"v_bfrev_b32 v{u4}, 2")
    a(f"v_cndmask_b32 v{WD}, v{WD}, v{u4}, vcc")
    a(f"s_mul_i32 s{t1}, s{shalf}, 112")
    a(f"s_add_u32 s{t1}, s{t1}, s{t0}")
    a(f"v_and_b32 v{u3}, 4, v{u3}")
    a(f"v_xor_b32 v{u2}, v{u2}, v{u3}")
    a(f"v_cmp_lt_u32 vcc, 6, v{u2}")
    a(f"v_mul_u32_u24 v{u0}, 2688, v{u0}")
    a(f"v_lshl_add_u32 v{u0}, v{u2}, 4, v{u0}")
    a(f"v_add_u32 v{WD+1}, s{t1}, v{u0}")
    a(f"v_cndmask_b32 v{WD+1}, v{WD+1}, v{u4}, vcc")
    if ROTN > 1:
        a(f"s_mul_i32 s{sROT}, s{srb}, {ROTA}")
        if ROTB:
            a(f"s_mul_i32 s{t0}, s{shalf}, {ROTB}")
            a(f"s_add_u32 s{sROT}, s{sROT}, s{t0}")
        a(f"s_mul_i32 s{t2}, s{sg4}, {ROTC}")
        a(f"s_add_u32 s{sROT}, s{sROT}, s{t2}")
        if ROTN & (ROTN - 1) == 0:
            a(f"s_and_b32 s{sROT}, s{sROT}, {ROTN-1}")
        else:
            a(f"s_mul_i32 s{t2}, s{sROT}, {(65536 + ROTN - 1)//ROTN}")
            a(f"s_lshr_b32 s{t2}, s{t2}, 16")
            a(f"s_mul_i32 s{t2}, s{t2}, {ROTN}")
            a(f"s_sub_u32 s{sROT}, s{sROT}, s{t2}")
        if ROTS != 1: a(f"s_mul_i32 s{sROT}, s{sROT}, {ROTS}")
    else:
        a(f"s_mov_b32 s{sROT}, 0")
    assert (ROTN - 1) * ROTS < 7
    a(f"s_lshl_b32 s{sXL}, s{sw}, 12")
    a(f"s_add_u32 s{sXL}, s{sXL}, {XOFF}")
    a(f"s_mul_i32 s{sWL}, s{sw}, 6144")
    a(f"s_mov_b32 s{rX+2}, 1835008")
    a(f"s_mov_b32 s{rX+3}, 0x00020000")
    a(f"s_mov_b32 s{rW+2}, 1204224")
    a(f"s_mov_b32 s{rW+3}, 0x00020000")
    a(f"s_cmp_eq_u32 s{sb}, 0")
    a("s_waitcnt lgkmcnt(0)")
    a(f"s_cselect_b32 s{rX}, s4, s10")
    a(f"s_cselect_b32 s{rX+1}, s5, s11")
    a(f"s_cselect_b32 s{rW}, s6, s12")
    a(f"s_cselect_b32 s{rW+1}, s7, s13")
    stamp_init()
    stamp(a, "karg")
    def one(kind, i, wl=sWL, ws=sWS_, add=0, first=False):
        xf, wf = (XF0, WF0) if first else (XF, WF)
        if kind == "x":
            a(f"s_add_u32 m0, s{sXL}, {1024*i}")
            a(f"s_add_u32 s{t0}, s{sXS}, {14336*(i//2)}")
            a(f"buffer_load_dwordx4 v{XD+(i&1)}, {S4(rX)}, s{t0} offen {xf} lds")
        else:
            G, q = divmod(i, 3)
            a(f"s_add_u32 m0, s{wl}, {1024*i + add}")
            a(f"s_add_u32 s{t0}, s{ws}, {(8*G + (4*q if q < 2 else 0))*2688}")
            a(f"buffer_load_dwordx4 v{WD+(q==2)}, {S4(rW)}, s{t0} offen {wf} lds")
    sB4, sB5, sB6 = scg, su, sFB
    def issue(first):
        a(f"s_lshl_b32 s{sXS}, s{sROT}, 7")
        a(f"s_mul_i32 s{sWS_}, s{sROT}, 172032")
        for kind, i in [("x", 0), ("w", 0), ("x", 1), ("w", 1), ("x", 2), ("w", 3), ("x", 3), ("w", 4)]: one(kind, i, first=first)
        if not first:
            a(f"s_mov_b32 s{sB4}, s{sB5}")
            a(f"s_mov_b32 s{sB5}, s{sB6}")
            a(f"s_mov_b32 s{sB6}, s{sWS_}")
            a(f"s_cmp_ge_u32 s{stt}, 4")
            a("s_cbranch_scc1 L_nob")
        one("w", 2, first=first); one("w", 5, first=first)
        if not first:
            a("s_branch L_nobr")
            a.lab("L_nob")
            a("s_waitcnt vmcnt(8)")
            a.lab("L_nobr")
        a(f"s_add_u32 s{sROT}, s{sROT}, 1")
        a(f"s_cmp_eq_u32 s{sROT}, 7")
        a(f"s_cselect_b32 s{sROT}, 0, s{sROT}")
        if first:
            a(f"s_add_u32 s{sWL}, s{sWL}, {STAGE}")
            a(f"s_add_u32 s{sXL}, s{sXL}, {STAGE}")
        else:
            a(f"s_cmp_ge_u32 s{sWL}, {2*STAGE}")
            a(f"s_mov_b32 s{t0}, {STAGE}")
            a(f"s_cselect_b32 s{t0}, {(-2*STAGE) & 0xffffffff:#x}, s{t0}")
            a(f"s_add_u32 s{sWL}, s{sWL}, s{t0}")
            a(f"s_add_u32 s{sXL}, s{sXL}, s{t0}")
    if LPR: a(f"s_setprio {LPR}")
    issue(True)
    stamp(a, "iss0")
    a(f"s_mov_b32 s{stt}, 1")
    a(f"s_mov_b32 s{su}, 0")
    a(f"s_mov_b32 s{sFB}, 0")
    dbg_desc()
    ids2a(0)
    a(f"s_lshr_b32 s{t0}, s{srb}, 1")
    a(f"s_lshl_b32 s{t0}, s{t0}, 7")
    a(f"s_add_u32 s{sWOS}, s{t0}, s{sKVO}")
    a(f"v_lshlrev_b32 v{PTA}, 10, v0")
    ids2b(0)
    a(f"v_lshrrev_b32 v{u2}, 5, v0")
    a(f"s_and_b32 s{t1}, s{sidx}, 3")
    a(f"s_cmp_eq_u32 s{t1}, 3")
    a(f"s_cselect_b32 s{t0}, 8, 16")
    a(f"s_lshl_b32 s{t1}, s{t1}, 8")
    a(f"v_lshrrev_b32 v{u0}, 4, v0")
    a(f"v_lshlrev_b32 v{u1}, 2, v{u0}")
    a(f"v_and_b32 v{u3}, 15, v0")
    a(f"v_xor_b32 v{u1}, v{u1}, v{u3}")
    a(f"v_cmp_le_u32 vcc, s{t0}, v{u1}")
    a(f"v_mul_u32_u24 v{u0}, 896, v{u0}")
    a(f"v_lshl_add_u32 v{u0}, v{u1}, 4, v{u0}")
    a(f"v_add_u32 v{WOA}, s{t1}, v{u0}")
    a(f"v_bfrev_b32 v{u0}, 2")
    a(f"v_cndmask_b32 v{WOA}, v{WOA}, v{u0}, vcc")
    a(f"s_lshl_b32 s{t2}, s{skq}, 2")
    a(f"s_cmp_lt_u32 s{t2}, s{t0}")
    a(f"s_cselect_b32 s{XM}, 1, 0")
    a(f"s_mul_i32 s{sOUTO}, s{sb}, 896")
    a(f"s_add_u32 s{sOUTO}, s{sOUTO}, s{t1}")
    a(f"s_lshl_b32 s{t1}, s{skq}, 6")
    a(f"s_add_u32 s{sOUTO}, s{sOUTO}, s{t1}")
    a(f"s_lshl_b32 s{sRT}, s{sg4}, 3")
    a(f"s_lshr_b32 s{t0}, s{sidx}, 2")
    a(f"s_add_u32 s{sRT}, s{sRT}, s{t0}")
    a(f"s_bfe_u32 s{sPE}, s{sRT}, 0x10001")
    a(f"s_lshl_b32 s{sRT}, s{sRT}, 1")
    a(f"v_bfe_u32 v{u0}, v0, 2, 2")
    a(f"v_xor_b32 v{u1}, s{skq}, v{u0}")
    a(f"v_lshlrev_b32 v{u1}, 6, v{u1}")
    a(f"v_lshl_add_u32 v{u1}, v{u0}, 8, v{u1}")
    a(f"v_and_b32 v{u0}, 1, v0")
    a(f"v_lshl_add_u32 v{u1}, v{u0}, 5, v{u1}")
    a(f"v_bfe_u32 v{u0}, v0, 4, 1")
    a(f"v_lshl_add_u32 v{u1}, v{u0}, 4, v{u1}")
    a(f"v_bfe_u32 v{u0}, v0, 1, 1")
    a(f"v_lshl_add_u32 v{u1}, v{u0}, 3, v{u1}")
    HSTEP = [4, 28, 56]
    for t in range(3):
        a(f"v_mul_u32_u24 v{u0}, {HSTEP[t]*256}, v{u2}")
        a(f"v_add_u32 v{WA+t}, v{u1}, v{u0}")
    a(f"v_mov_b32 v{OA}, v{L16}")
    a(f"v_and_b32 v{u0}, 31, v0")
    a(f"v_mul_u32_u24 v{u1}, 1792, v{u2}")
    a(f"v_lshl_add_u32 v{OA+1}, v{u0}, 4, v{u1}")
    a(f"v_mul_u32_u24 v{u1}, 3584, v{u2}")
    a(f"v_lshl_add_u32 v{OA+2}, v{u0}, 3, v{u1}")
    a(f"s_lshl_b32 s{t0}, s{skq}, 12")
    a(f"s_add_u32 s{t0}, s{t0}, {TX}")
    a(f"v_add_u32 v{TR}, s{t0}, v{L16}")
    a(f"v_bfe_u32 v{u1}, v0, 1, 2")
    a(f"v_lshlrev_b32 v{u3}, 1, v{u2}")
    a(f"v_xor_b32 v{u1}, v{u1}, v{u3}")
    a(f"v_lshlrev_b32 v{u1}, 4, v{u1}")
    a(f"v_lshl_add_u32 v{u1}, v{u0}, 6, v{u1}")
    a(f"v_add_u32 v{TW}, s{t0}, v{u1}")
    a(f"v_xor_b32 v{TW+1}, 16, v{TW}")
    a(f"v_lshrrev_b32 v{u0}, 2, v0")
    a(f"s_lshl_b32 s{t0}, s{sRT}, 5")
    a(f"v_add_u32 v{u0}, s{t0}, v{u0}")
    a(f"v_mul_u32_u24 v{u0}, 1792, v{u0}")
    a(f"v_lshrrev_b32 v{u1}, 3, v0")
    a(f"v_xor_b32 v{u1}, v{u1}, v0")
    a(f"v_and_b32 v{u1}, 3, v{u1}")
    a(f"v_lshl_add_u32 v{OUTA}, v{u1}, 4, v{u0}")
    a(f"s_lshr_b32 s{t1}, s{skq}, 1")
    a(f"s_add_u32 s{t0}, s{sRT}, s{t1}")
    a(f"s_lshl_b32 s{t0}, s{t0}, 4")
    a(f"s_lshl_b32 s{t1}, s{sPE}, 3")
    a(f"s_add_u32 s{t0}, s{t0}, s{t1}")
    a(f"s_and_b32 s{t1}, s{skq}, 1")
    a(f"s_lshl_b32 s{t1}, s{t1}, 1")
    a(f"s_lshl_b32 s{t1}, s{t1}, 1")
    a(f"s_add_u32 s{sRT}, s{t0}, s{t1}")
    a(f"v_and_b32 v{u0}, 3, v0")
    a(f"v_add_u32 v{u0}, s{sRT}, v{u0}")
    a(f"v_mul_u32_u24 v{u0}, {F2SP}, v{u0}")
    a(f"v_add_u32 v{F2A}, {B_F2}, v{u0}")
    getq(0)
    a.lab("L_ld")
    issue(False)
    a(f"s_add_u32 s{stt}, s{stt}, 1")
    a(f"s_cmp_lt_u32 s{stt}, 7")
    a("s_waitcnt vmcnt(10)")
    a("s_barrier")
    a("s_cbranch_scc1 L_ld")
    a(f"s_mul_i32 s{sWL}, s{sw}, 6144")
    for ws, st_ in ((sB6, 0), (sB4, 1), (sB5, 2)):
        one("w", 2, sWL, ws, st_ * STAGE); one("w", 5, sWL, ws, st_ * STAGE)
    a(f"buffer_load_dwordx2 {vr(NV,2)}, off, {S4(rDBG)}, s{sDL} sc1")
    m_ = (1 << max(1, 4 * PRET)) - 1
    def touch():
        a(f"buffer_load_dword v{T+9}, v{F1A}, {S4(rWS)}, 0 offen sc1")
        a(f"s_mov_b32 exec_lo, {m_ & 0xffffffff:#x}")
        a(f"s_mov_b32 exec_hi, {m_ >> 32:#x}")
        a(f"buffer_load_dword v{T+8}, v{PTA}, {S4(rKV)}, s{sWOS} offen {TF}")
        a("s_mov_b64 exec, -1")
    if TEAR != 1: touch()
    NX = 1 if TEAR == 1 else 3
    a(f"s_waitcnt vmcnt({6 + NX})")
    stamp(a, "lw6")
    a("s_barrier")
    if LPR: a("s_setprio 0")
    pre2()
    if B2:
        a(f"s_waitcnt vmcnt({NX + 2})")
        a("s_barrier")
    a(f"s_waitcnt vmcnt({NX})")
    a("s_barrier")
    def touch2():
        m2 = ((1 << (4 * PRET2)) - 1) & ~m_
        a(f"s_mov_b32 exec_lo, {m2 & 0xffffffff:#x}")
        a(f"s_mov_b32 exec_hi, {m2 >> 32:#x}")
        a(f"buffer_load_dword v{T+10}, v{PTA}, {S4(rKV)}, s{sWOS} offen sc1")
        a("s_mov_b64 exec, -1")
    if PRET2 and T2POS == "b6": touch2()
    a(f"s_waitcnt vmcnt({NX - 1})")
    nonce("L")
    if PRET2 and T2POS == "late": touch2()
    a("s_setprio 2")
    stamp(a, "lready")
    a("s_branch L_ph2")

    a.lab("L_comp")
    a("s_setprio 3")
    a(f"s_getreg_b32 s{t2}, hwreg(HW_REG_XCC_ID)")
    a(f"s_and_b32 s{t2}, s{t2}, 15")
    a(f"s_lshl_b32 s{t0}, s{sx}, 4")
    a(f"s_or_b32 s{t2}, s{t2}, s{t0}")
    a(f"s_or_b32 s{t2}, s{t2}, 0x80")
    a(f"s_lshl_b32 s{t1}, s{sg4}, 5")
    a(f"s_add_u32 s{t1}, s{t1}, 128")
    a(f"v_mov_b32 v{NV}, s{t2}")
    a(f"v_and_b32 v{NA}, 3, v0")
    a(f"v_lshlrev_b32 v{NA}, 3, v{NA}")
    a(f"v_add_u32 v{NA}, s{t1}, v{NA}")
    a(f"s_add_u32 s{t1}, s{t1}, s{sidx}")
    a("v_mov_b32 v238, 0")
    a("v_mov_b32 v239, 0")
    a("s_waitcnt lgkmcnt(0)")
    def ftouch(pairs, wave, tag):
        a(f"s_cmp_lg_u32 s{sw}, {wave}")
        a(f"s_cbranch_scc1 L_ft{tag}")
        a(f"s_add_u32 s{t0}, s{sg4}, 1")
        a(f"s_and_b32 s{t0}, s{t0}, 2")
        a(f"s_cbranch_scc1 L_ft{tag}")
        a(f"s_and_b32 s{t0}, s{sg4}, 1")
        a(f"s_lshl_b32 s{t0}, s{t0}, 5")
        a(f"s_add_u32 s{t0}, s{t0}, s{sidx}")
        a(f"v_and_b32 v{T+6}, 31, v0")
        a(f"v_lshrrev_b32 v{T+7}, 5, v0")
        a(f"v_mul_u32_u24 v{T+8}, 896, v{T+6}")
        a(f"v_lshl_add_u32 v{T+8}, v{T+7}, 7, v{T+8}")
        a(f"v_min_u32 v{T+6}, 20, v{T+6}")
        a(f"v_mul_u32_u24 v{T+7}, 172032, v{T+7}")
        a(f"v_lshl_add_u32 v{T+9}, v{T+6}, 7, v{T+7}")
        a(f"s_mul_i32 s{t3}, s{t0}, {32*896}")
        a(f"s_mul_i32 s{t0}, s{t0}, 2688")
        for pr in pairs:
            c_ = 2 * int(pr) - 1
            a(f"s_add_u32 s{sROT}, s{t0}, {c_*172032}")
            a(f"buffer_load_dword v{T+10}, v{T+9}, {S4(rW)}, s{sROT} offen")
            a(f"buffer_load_dword v{T+11}, v{T+8}, {S4(rX)}, s{t3} offen offset:{c_*128}")
        a.lab(f"L_ft{tag}")
    if FT:
        a(f"s_cmp_eq_u32 s{sb}, 0")
        a(f"s_cselect_b32 s{rX}, s4, s10")
        a(f"s_cselect_b32 s{rX+1}, s5, s11")
        a(f"s_cselect_b32 s{rW}, s6, s12")
        a(f"s_cselect_b32 s{rW+1}, s7, s13")
        a(f"s_mov_b32 s{rX+2}, 1835008")
        a(f"s_mov_b32 s{rX+3}, 0x00020000")
        a(f"s_mov_b32 s{rW+2}, 1204224")
        a(f"s_mov_b32 s{rW+3}, 0x00020000")
        ftouch(FT.split("/")[0], 5, "a")
    dbg_desc()
    a(f"s_mul_i32 s{XM}, s{t2}, 0x01010101")
    a(f"s_mov_b32 s{XM+1}, s{XM}")
    a("s_mov_b64 exec, 1")
    a(f"v_mov_b32 v{NA}, s{sDL}")
    a(f"s_cmp_lg_u32 s{sw}, 4")
    a("s_cbranch_scc1 L_noreg")
    a(f"buffer_store_byte v{NV}, off, {S4(rDBG)}, s{t1}")
    a(f"buffer_load_ubyte v{T+12}, off, {S4(rDBG)}, s{t1} sc1")
    a(f"s_cmp_lg_u32 s{sidx}, 0")
    a("s_cbranch_scc1 L_noreg")
    a(f"s_or_b32 s{t0}, s{RT}, 1")
    a(f"s_or_b32 s{t2}, s{RT+1}, 1")
    a(f"v_mov_b32 v236, s{t0}")
    a(f"v_mov_b32 v237, s{t2}")
    a(f"buffer_atomic_cmpswap_x2 v[236:239], off, {S4(rDBG)}, s{sDL} sc1")
    a.lab("L_noreg")
    a("s_mov_b64 exec, -1")
    stamp_init()
    a(f"s_and_b32 s{stt}, s{sw}, 1")
    a(f"s_bfe_u32 s{scg}, s{sw}, 0x10001")
    a(f"v_and_b32 v{u0}, 31, v0")
    a(f"v_bfe_u32 v{u1}, v0, 1, 3")
    a(f"v_lshrrev_b32 v{u2}, 5, v0")
    a(f"v_xor_b32 v{u1}, v{u1}, v{u2}")
    a(f"v_lshlrev_b32 v{u1}, 4, v{u1}")
    a(f"v_lshl_add_u32 v{u1}, v{u0}, 7, v{u1}")
    a(f"s_lshl_b32 s{t0}, s{stt}, 13")
    a(f"s_add_u32 s{t0}, s{t0}, {XOFF}")
    for ks in range(4):
        a(f"v_xor_b32 v{XA+ks}, {32*ks}, v{u1}")
        a(f"v_add_u32 v{XA+ks}, s{t0}, v{XA+ks}")
    a(f"v_bfe_u32 v{u0}, v0, 4, 1")
    a(f"v_and_b32 v{u1}, 3, v0")
    a(f"v_lshlrev_b32 v{u1}, 3, v{u1}")
    a(f"v_lshl_add_u32 v{u0}, v{u0}, 5, v{u1}")
    a(f"s_mul_i32 s{t0}, s{scg}, 112")
    a(f"v_add_u32 v{WA1}, s{t0}, v{u0}")
    a(f"v_add_u32 v{WA1+1}, 56, v{WA1}")
    a(f"s_mul_i32 s{t0}, s{scg}, 56")
    a(f"v_add_u32 v{WA1+2}, s{t0}, v{u0}")
    a("s_mov_b32 exec_lo, 0x88880000")
    a("s_mov_b32 exec_hi, 0x88880000")
    a(f"v_or_b32 v{WA1}, 192, v{WA1}")
    a(f"v_or_b32 v{WA1+1}, 192, v{WA1+1}")
    a(f"v_or_b32 v{WA1+2}, 64, v{WA1+2}")
    a("s_mov_b64 exec, -1")
    a(f"v_bfe_u32 v{u1}, v0, 2, 2")
    a(f"v_mul_u32_u24 v{u2}, 3072, v{u2}")
    a(f"v_lshl_add_u32 v{u3}, v{u1}, 8, v{u2}")
    a(f"v_lshlrev_b32 v{u4}, 6, v{u1}")
    for c in range(2):
        a(f"v_xor_b32 v{WA1+c}, v{WA1+c}, v{u4}")
        a(f"v_add_u32 v{WA1+c}, v{WA1+c}, v{u3}")
    a(f"v_lshl_add_u32 v{u3}, v{u1}, 7, v{u2}")
    a(f"v_lshlrev_b32 v{u4}, 5, v{u1}")
    a(f"v_and_b32 v{u4}, 64, v{u4}")
    a(f"v_xor_b32 v{WA1+2}, v{WA1+2}, v{u4}")
    a(f"v_add_u32 v{WA1+2}, v{WA1+2}, v{u3}")
    Z = FR + 60
    for r in range(20): a(f"v_mov_b32 v{Z+r}, 0")
    a(f"v_mov_b32 v{u0}, {GBC}")
    a(f"ds_write_b128 v{u0}, {vr(Z+16,4)}")
    a(f"ds_write_b128 v{u0}, {vr(Z+16,4)} offset:16")
    for t_ in range(6): a(f"v_mfma_f32_32x32x16_bf16 {vr(ACC+16*t_,16)}, {vr(Z+16,4)}, {vr(Z+16,4)}, 0")
    a("s_mov_b32 exec_hi, 0")
    a(f"v_mov_b32 v{Z}, 0x3f80")
    a(f"v_mov_b32 v{Z+4}, 0x3f80")
    a("s_mov_b32 exec_lo, 0x10000000")
    a(f"v_mov_b32 v{Z+8}, 0x3f80")
    a(f"v_mov_b32 v{Z+12}, 0x3f80")
    a("s_mov_b64 exec, -1")
    def capture(f):
        keep = a.l; a.l = []
        f()
        got = [x.strip() for x in a.l]; a.l = keep
        return got
    lateA = capture(lambda: ids2a(1, False)); lateB = capture(lambda: ids2b(1))
    ws_desc()
    a(f"v_lshlrev_b32 v{L16}, 4, v0")
    a(f"v_and_b32 v{u0}, 0x33, v0")
    a(f"v_bfe_u32 v{u1}, v0, 2, 1")
    a(f"v_lshl_add_u32 v{u0}, v{u1}, 3, v{u0}")
    a(f"v_bfe_u32 v{u1}, v0, 3, 1")
    a(f"v_lshl_add_u32 v{u0}, v{u1}, 2, v{u0}")
    a(f"v_lshlrev_b32 v{TAU}, 4, v{u0}")
    sE0, sSC, sDLT, sCNT = sXS, sWS_, sWL, sXL
    a(f"s_lshl_b32 s{t0}, s{scg}, 2")
    a(f"s_lshr_b32 s{t1}, s{srb}, 2")
    a(f"s_add_u32 s{t0}, s{t0}, s{t1}")
    a(f"s_mul_i32 s{sF1O}, s{t0}, {F1SP}")
    a(f"s_lshl_b32 s{t0}, s{shalf}, 2")
    a(f"s_and_b32 s{t1}, s{srb}, 3")
    a(f"s_add_u32 s{t0}, s{t0}, s{t1}")
    a(f"s_lshl_b32 s{t0}, s{t0}, 1")
    a(f"s_add_u32 s{t0}, s{t0}, s{stt}")
    a(f"s_lshl_b32 s{t0}, s{t0}, 3")
    a(f"s_add_u32 s{sF1O}, s{sF1O}, s{t0}")
    a(f"s_add_u32 s{sF1O}, s{sF1O}, {X_F1}")
    a(f"s_lshl_b32 s{t0}, s{srb}, 1")
    a(f"s_add_u32 s{t0}, s{t0}, s{stt}")
    a(f"s_lshl_b32 s{t1}, s{scg}, 6")
    a(f"s_add_u32 s{t0}, s{t0}, s{t1}")
    a(f"s_lshl_b32 s{sE0}, s{t0}, 13")
    SE = [sE0, rX, rX + 1, rX + 2]
    for t_, d_ in ((1, 4096), (2, 64 * 4096), (3, 65 * 4096)): a(f"s_add_u32 s{SE[t_]}, s{sE0}, {d_}")
    a(f"s_sub_u32 s{t0}, s{sw}, 4")
    a(f"s_lshl_b32 s{t0}, s{t0}, 12")
    a(f"s_add_u32 s{t0}, s{t0}, {QX}")
    a(f"v_add_u32 v{QW}, s{t0}, v{L16}")
    a(f"s_mov_b32 s{sSC}, {CSCALE:#x}")
    a(f"s_mov_b32 s{sCNT}, 0")
    a(f"s_mov_b32 s{sDLT}, 0")
    if FT and FT.split("/")[1]: ftouch(FT.split("/")[1], 6, "b")
    if CPF:
        a(f"s_cmp_lg_u32 s{sw}, 5")
        a("s_cbranch_scc1 L_nocpf")
        a(f"s_sub_u32 s{t0}, s{sidx}, 1")
        a(f"s_cmp_ge_u32 s{t0}, 3")
        a("s_cbranch_scc1 L_nocpf")
        a(f"s_getpc_b64 {S2(NONCE)}")
        a.lab("L_pc")
        a(f"s_lshl_b32 s{t0}, s{t0}, 13")
        a(f"v_lshlrev_b32 v{u0}, 7, v0")
        a(f"v_add_u32 v{u0}, s{t0}, v{u0}")
        a(f"v_min_u32 v{u0}, L_fallback-L_pc, v{u0}")
        a(f"global_load_dword v{T+10}, v{u0}, {S2(NONCE)}")
        a.lab("L_nocpf")
    a(f"s_cmp_lg_u32 s{shalf}, 0")
    a("s_cbranch_scc1 P1_v1")
    def reads(ks):
        b = FR + 20 * ks
        out = [f"ds_read_b128 {vr(b+4*e,4)}, v{XA+ks} offset:{4096*e}" for e in range(2)]
        for c in range(3):
            for h in range(2):
                off = 6144 * ks + (1024 * h if c < 2 else 2048 + 512 * h)
                out.append(f"ds_read_b64_tr_b16 {vr(b+8+4*c+2*h,2)}, v{WA1+c} offset:{off}")
        return [out[0], out[2], out[3], out[1]] + out[4:]
    def mfma1(ks, e, c, ori):
        b = FR + 20 * ks
        x = vr(b + 4 * e, 4); w = vr(b + 8 + 4 * c, 4)
        p, q = (w, x) if ori[c] == 'n' else (x, w)
        d = vr(ACC + 16 * (2 * c + e), 16)
        return f"v_mfma_f32_32x32x16_bf16 {d}, {p}, {q}, {d}"
    tiles = [(0, 0), (1, 0), (0, 1), (1, 1), (0, 2), (1, 2)]
    pend = []; cnt = [0]; ctx = [""]
    def epi(t_):
        e, c = tiles[t_]
        d = ACC + 16 * (2 * c + e)
        P = d
        out = []
        if c == 2: out += [[f"v_mul_f32 v{d+r}, s{sSC}, v{d+r}"] for r in range(16)]
        out += [[f"v_cvt_pk_bf16_f32 v{P+i}, v{d+2*i}, v{d+2*i+1}"] for i in range(8)]
        if c == 2:
            out += [[f"ds_write_b128 v{QW}, {vr(P,4)} offset:{2048*e}"], [f"ds_write_b128 v{QW}, {vr(P+4,4)} offset:{2048*e+1024}"]]
        else:
            out.insert(4, ("st", t_, 0, P)); out.append(("st", t_, 1, P + 4))
        return out
    def emit(x):
        a(x); cnt[0] += 1
    def drain(nmax):
        n_ = 0
        while pend and n_ < nmax and pend[0][0] <= cnt[0]:
            g_ = pend.pop(0)[1]
            if g_[0] == "st": stq.append(g_)
            else:
                for x in g_: emit(x)
                n_ += len(g_)
    stq = []; nm = [0, -99]
    def store():
        if not stq or nm[0] - nm[1] < SP: return 0
        _, t_, f, P = stq.pop(0)
        tag = f"{ctx[0]}{t_}{f}"
        emit(f"s_cbranch_vccz L_wt{tag}")
        emit(f"buffer_store_dwordx4 {vr(P,4)}, v{TAU}, {S4(rWS)}, s{SE[t_]} offen offset:{1024*f} {KVS}")
        a.lab(f"L_st{tag}")
        if f: stamp(a, f"st{t_}")
        tails.append((tag, P, SE[t_], 1024 * f)); nm[1] = nm[0]
        return 2
    def fill(nmax):
        if pend and pend[0][0] > cnt[0]:
            gap = min(nmax - 1, pend[0][0] - cnt[0])
            a(f"s_nop {gap-1}"); cnt[0] += gap
            nmax -= gap
        drain(nmax)
    for v, ori in enumerate(["nnn", "vvn"]):
        a.lab(f"P1_v{v}")
        if v == 1: a(f"v_add_u32 v{TAU}, 2048, v{L16}")
        a("s_waitcnt lgkmcnt(0)")
        stamp(a, "setup")
        mm = [(e, c) for c in range(3) for e in range(2)]
        def cstamps():
            if STAMP or DIAG:
                if len(DIAG) == 2 and DIAG[0] == "c" and DIAG != "c0":
                    a("s_memrealtime s[82:83]")
                    a(f"s_cmp_eq_u32 s{sCNT}, {int(DIAG[1])}")
                    a("s_waitcnt lgkmcnt(0)")
                    a("s_cselect_b32 s80, s82, s80")
                for nm in (STL if STAMP else []):
                    if len(nm) == 2 and nm[0] == "c" and nm != "c0":
                        a(f"s_cmp_eq_u32 s{sCNT}, {int(nm[1])}")
                        a(f"s_cbranch_scc1 L_ns{v}{nm}")
                        a.lab(f"L_nb{v}{nm}")
                        stails.append((f"{v}{nm}", nm))
        a("s_barrier")
        stamp(a, "c0")
        for x in reads(0): a(x)
        if FT and len(FT.split("/")) > 2: ftouch(FT.split("/")[2], 7, f"c{v}")
        a.raw(".p2align 6")
        a.lab(f"P1_loop{v}")
        for ks, rk in ((3, 1), (0, 2), (1, 3)):
            rd = reads(rk)
            if ks != 3: a("s_waitcnt lgkmcnt(8)")
            for j, (e, c) in enumerate(mm):
                a(mfma1(ks, e, c, ori))
                for x in rd[2*j:2*j+2]: a(x)
                if ks == 3 and j == 4:
                    a(f"s_add_u32 s{sCNT}, s{sCNT}, 1")
                    a(f"s_mov_b32 s{sDLT}, {STAGE}")
                if ks == 0 and j == 4:
                    a(f"s_cmp_eq_u32 s{sCNT}, 3")
                    a(f"s_cselect_b32 s{sDLT}, {(-2*STAGE) & 0xffffffff:#x}, s{sDLT}")
                if ks == 1 and j == 4:
                    for i in range(4): a(f"v_add_u32 v{XA+i}, s{sDLT}, v{XA+i}")
                if ks == 1 and j == 5:
                    for i in range(4, 7): a(f"v_add_u32 v{XA+i}, s{sDLT}, v{XA+i}")
        a("s_waitcnt lgkmcnt(8)")
        rd = reads(0)
        for j, (e, c) in enumerate(mm):
            a(mfma1(2, e, c, ori))
            if j == BPOS - 1: a("s_waitcnt lgkmcnt(0)")
            if j == BPOS:
                a("s_barrier")
                cstamps()
            if j > BPOS:
                n_ = -(-8 // (5 - BPOS)) if j < 5 else 8
                for x in rd[:n_]: a(x)
                rd = rd[n_:]
        if BPOS == 5:
            for x in rd: a(x)
        a(f"s_cmp_lt_u32 s{sCNT}, 4")
        a(f"s_cbranch_scc1 P1_loop{v}")
        m4 = mm[:4]
        for ch in (4, 5):
            dl = STAGE if ch == 4 else (-2 * STAGE) & 0xffffffff
            for ks, rk in ((3, 1), (0, 2), (1, 3)):
                rd = reads(rk)[:6]
                if ks != 3: a("s_waitcnt lgkmcnt(6)")
                for j, (e, c) in enumerate(mm if (ch == 4 and ks == 3) else m4):
                    a(mfma1(ks, e, c, ori))
                    for x in rd[2*j:2*j+2]: a(x)
                    if ch == 5 and ks == 3 and j == 0:
                        a(f"buffer_load_dwordx2 {vr(NV,2)}, v{NA}, {S4(rDBG)}, 0 offen sc1")
                    if ks == 0 and j == 3: a(f"s_mov_b32 s{sDLT}, {dl:#x}")
                    if ks == 1 and j == 3:
                        for i in range(4): a(f"v_add_u32 v{XA+i}, s{sDLT}, v{XA+i}")
            a("s_waitcnt lgkmcnt(6)")
            rd = reads(0)[:6]
            a(mfma1(2, *m4[0], ori))
            for i in range(4, 7): a(f"v_add_u32 v{XA+i}, s{sDLT}, v{XA+i}")
            a("s_waitcnt lgkmcnt(0)")
            a(mfma1(2, *m4[1], ori))
            a("s_barrier")
            stamp(a, f"d{ch+1}")
            a(mfma1(2, *m4[2], ori))
            for x in rd[:3]: a(x)
            a(mfma1(2, *m4[3], ori))
            for x in rd[3:]: a(x)
        rd = reads(1)[:6] + reads(2)[:6]
        for j, (e, c) in enumerate(m4):
            a(mfma1(3, e, c, ori))
            for x in rd[3*j:3*j+3]: a(x)
        for x in reads(3)[:4]: a(x)
        ctx[0] = str(v); pend.clear(); cnt[0] = 0; stq.clear(); nm[:] = [0, -99]
        seq = [(0, 0), (0, 1), (1, 0), (1, 1), (2, 0), (2, 1), (3, 0), (3, 1)] + [(k, t_) for t_ in range(2, 4) for k in range(4)]
        for i, (k, t_) in enumerate(seq):
            if i == 0: emit("s_waitcnt lgkmcnt(14)")
            if i == 2: emit("s_waitcnt lgkmcnt(12)")
            if i == 4: emit("s_waitcnt lgkmcnt(6)")
            if i == 6:
                emit("s_waitcnt vmcnt(0) lgkmcnt(0)")
                stamp(a, "last")
            emit(mfma1(k, *tiles[t_], ori))
            first = cnt[0]; nm[0] += 1
            store()
            if i == 0:
                for x in reads(3)[4:6]: emit(x)
            if i == 6:
                emit(f"v_cmp_eq_u64 vcc, {S2(XM)}, {vr(NV,2)}")
                emit(f"s_and_b32 s{t0}, vcc_lo, 0xf0")
                emit(f"s_cmp_eq_u32 s{t0}, 0xf0")
                emit(f"s_cselect_b32 s{sLOC}, {1 if LOCAL else 0}, 0")
                emit(f"s_cselect_b64 vcc, {-1 if LOCAL else 0}, 0")
            if k == 3: pend.extend((first + 12, g_) for g_ in epi(t_))
            if i == QB:
                emit("s_barrier")
                stamp(a, "bar7")
                for ks in range(2):
                    for x in reads(ks)[6:]: emit(x)
            elif i == QB + 1:
                for ks in range(2, 4):
                    for x in reads(ks)[6:]: emit(x)
            elif i != 6 and i != 15: fill(6)
        snap = (list(pend), cnt[0], list(stq), list(nm))
        if v == 0: a("s_branch P1_done")
    a.lab("P1_done")
    ctx[0] = "c"; pend[:] = snap[0]; cnt[0] = snap[1]; stq[:] = snap[2]; nm[:] = snap[3]
    if QB > 15:
        while pend: fill(99 if pend[0][0] <= cnt[0] else 13)
        emit("s_barrier")
        for ks in range(4):
            for x in reads(ks)[6:]: emit(x)
    def qreads(ks, base):
        b = FR + 20 * ks
        return [f"ds_read_b128 {vr(b,4)}, v{XA+ks} offset:{base}",
                f"ds_read_b64_tr_b16 {vr(b+16,2)}, v{WA1+2} offset:{base + 6144*ks + 2048}",
                f"ds_read_b64_tr_b16 {vr(b+18,2)}, v{WA1+2} offset:{base + 6144*ks + 2560}",
                f"ds_read_b128 {vr(b+4,4)}, v{XA+ks} offset:{base + 4096}"]
    def flag1():
        assert not any(g_[1][0] == "st" for g_ in pend) and not stq
        stamp(a, "prefl")
        nonce("C")
        a("s_mov_b64 exec, 1")
        a(f"s_cmp_eq_u32 s{sLOC}, 0")
        a("s_waitcnt vmcnt(0)")
        a("s_cbranch_scc1 L_f1wt")
        a(f"buffer_store_dwordx2 {vr(NV,2)}, off, {S4(rWS)}, s{sF1O}")
        a.lab("L_f1st")
        a("s_mov_b64 exec, -1")
        stamp(a, "ack1")
        cnt[0] += 10
    def late(nmax):
        q_ = lateB if (not lateA or (nq <= FPOS < 12)) and False else (lateA if lateA else lateB)
        if lateA and len(lateA) == nA and nq <= FPOS < 12: return
        for _ in range(min(nmax, len(q_))): emit(q_.pop(0))
    nA = len(lateA)
    nq = 0
    for rnd in range(3):
        order_ = [(ks, e) for ks in range(4) for e in range(2)] if rnd < 2 else [(0, 0), (0, 1), (1, 0), (2, 0), (3, 0), (1, 1), (2, 1), (3, 1)]
        for j, (ks, e) in enumerate(order_):
            if rnd == 0 and e == 0: emit(f"s_waitcnt lgkmcnt({6 + 2*ks})")
            if rnd == 1 and e == 0: emit("s_waitcnt lgkmcnt(12)")
            if rnd == 2 and e == 0: emit(f"s_waitcnt lgkmcnt({12 - 4*ks})")
            emit(mfma1(ks, e, 2, "nnn"))
            first = cnt[0]; nm[0] += 1
            store()
            nq += 1
            if B2 and rnd == 1 and j == 0: emit("s_barrier")
            if rnd < 2 and e == 1:
                if rnd == 1:
                    emit(f"v_add_u32 v{XA+ks}, {STAGE}, v{XA+ks}")
                    if ks == 0: emit(f"v_add_u32 v{WA1+2}, {STAGE}, v{WA1+2}")
                for x in qreads(ks, STAGE): emit(x)
                drain(2)
                late(2)
            elif nq != FPOS:
                if pend: fill(6)
                else: late(6)
            if rnd == 2 and ks == 3: pend.extend((first + 12, g_) for g_ in epi(4 + e))
            if nq == FPOS:
                if len(lateA) != nA:
                    while lateA: emit(lateA.pop(0))
                flag1()
    a(f"v_mov_b32 v{CA}, {GBC + 4}")
    a(f"v_mov_b32 v{ONE}, 1")
    cnt[0] += 2
    nm[0] += 99; store(); assert not stq
    if FPOS > 24:
        nq0 = len(pend) - 26 if FPOS == 25 else len(pend)
        while len(pend) > (26 if FPOS == 25 else 0): fill(1 if pend[0][0] <= cnt[0] else 13)
        if FPOS == 25:
            while lateA: emit(lateA.pop(0))
            flag1()
    while pend: fill(99 if pend[0][0] <= cnt[0] else 13)
    arrive(a, 4)
    stamp(a, "p1end")
    if FPOS == 26:
        while lateA: emit(lateA.pop(0))
        flag1()
    a("s_setprio 1")
    while lateA: a(lateA.pop(0))
    while lateB: a(lateB.pop(0))
    pre2()
    getq(1)
    a.lab("L_ph2")
    a.vreset()
    if PIPE:
        a("s_mov_b64 exec, 0xffff")
        poll_pipe(a, "L_f1", F1A, rWS, "sc1", [T + 10, T + 14])
        a("s_mov_b64 exec, -1")
        a.vm.append("poll")
    else: poll(a, "L_f1", F1A, rWS, "sc1", 16, SL1)
    stamp(a, "poll1")
    def ldK(kt, f): a.vmem(f"global_load_dwordx4 {vr(KB[kt%4]+4*f,4)}, v{L16}, {S2(KP[kt//2])} offset:{4096*(kt%2)-4096+1024*f} {KVL}", ("K", kt))
    def ldV(kt, f): a.vmem(f"global_load_dwordx4 {vr(VB[kt%4]+4*f,4)}, v{L16}, {S2(KP[kt//2])} offset:{4096*(kt%2)-2048+1024*f} {KVL}", ("V", kt))
    order = [(0, 3), (1, 3), (0, 0), (0, 1), (0, 2), (1, 0), (1, 1), (1, 2)]
    for k in range(2, 14):
        order += [(k, 0), (k, 1), (k, 2)] + ([(k, 3)] if k < 16 - NOWN else [])
    order += [(14, 0), (15, 0), (14, 1), (15, 1), (14, 2), (15, 2)] + [(k, 3) for k in range(16 - NOWN, 16)]
    assert sorted(order) == [(k, i) for k in range(16) for i in range(4)]
    NP = 64
    def qk(p):
        kt, i = order[p]
        s = SB[p % 3]; k = KB[kt % 4]
        return [f"v_mfma_f32_32x32x16_bf16 {vr(s,16)}, {vr(k,4)}, {vr(Q[i],4)}, 0",
                f"v_mfma_f32_32x32x16_bf16 {vr(s,16)}, {vr(k+4,4)}, {vr(Q[i]+4,4)}, {vr(s,16)}"]
    def pv(p):
        kt, i = order[p]
        s = SB[p % 3]; v = VB[kt % 4]
        return [f"v_smfmac_f32_32x32x32_bf16 {vr(O[i],16)}, {vr(v,4)}, {vr(s,8)}, v{IDX}",
                f"v_smfmac_f32_32x32x32_bf16 {vr(O[i],16)}, {vr(v+4,4)}, {vr(s+8,8)}, v{IDX}"]
    ldK(0, 0); ldK(0, 1)
    if not K1L: ldK(1, 0); ldK(1, 1)
    getq2()
    a.vwait(("K", 0))
    a("s_waitcnt lgkmcnt(6)")
    stamp(a, "k0")
    for x in qk(0): a(x)
    if K1L:
        ldK(1, 0); ldK(1, 1); ldV(0, 0); ldV(0, 1)
    else:
        ldV(0, 0); ldV(0, 1); ldV(1, 0); ldV(1, 1)
    a("s_mov_b64 exec, 1")
    a("s_waitcnt lgkmcnt(0)")
    a(f"ds_add_u32 v{T+5}, v{ONE}")
    a("s_mov_b64 exec, -1")
    a("s_nop 3")
    s = SB[0]
    a(f"v_max3_f32 v{T}, v{s}, v{s+1}, v{s+2}")
    a(f"v_max3_f32 v{T+1}, v{s+3}, v{s+4}, v{s+5}")
    for i in range(6, 14, 4):
        a(f"v_max3_f32 v{T}, v{T}, v{s+i}, v{s+i+1}")
        a(f"v_max3_f32 v{T+1}, v{T+1}, v{s+i+2}, v{s+i+3}")
    a(f"v_max3_f32 v{T}, v{T}, v{s+14}, v{s+15}")
    a(f"v_max_f32 v{T}, v{T}, v{T+1}")
    a(f"v_mov_b32 v{T+1}, v{T}")
    a("s_nop 1")
    a(f"v_permlane32_swap_b32 v{T}, v{T+1}")
    a(f"v_max_f32 v{T}, v{T}, v{T+1}")
    if FORCEFB: a(f"v_add_f32 v{T}, 0x43480000, v{T}")
    a(f"v_xor_b32 v{T}, 0x80000000, v{T}")
    a("s_mov_b32 exec_lo, 0")
    a(f"v_lshrrev_b32 v{Q[3]+6}, 16, v{T}")
    a("s_mov_b32 exec_lo, -1")
    a(f"ds_write_b32 v{MW}, v{Q[3]+6}")
    arrive(a)
    for x in qk(0): a(x)
    if K1L: ldV(1, 0); ldV(1, 1)
    a("s_nop 9" if K1L else "s_nop 11")
    stamp(a, "loop0")
    lastK = {k: max(p for p in range(NP) if order[p][0] == k) - 1 for k in range(16)}
    lastV = {k: max(p for p in range(NP) if order[p][0] == k) + 1 for k in range(16)}
    lq = []
    for k in range(2, 16):
        fk = lastK[k - 4] + 1 if k >= 4 else LQ0
        fv = lastV[k - 4] + 1 if k >= 4 else LQ0
        lq += [(lambda k=k: ldK(k, 0), fk), (lambda k=k: ldK(k, 1), fk), (lambda k=k: ldV(k, 0), fv), (lambda k=k: ldV(k, 1), fv)]
    wq = []
    for i in range(3):
        lp = max(p for p in range(NP) if order[p][1] == i) + 1
        for g in range(4):
            wq.append((lambda i=i, g=g: a(f"ds_write_b128 v{PW+i}, {vr(O[i]+4*g,4)} offset:{1024*g}"), 4 * (lp + 1) + 2))
    rq = [lambda i=i: a(f"ds_read_b128 {vr(O[i//4]+4*(i%4),4)}, v{PR} offset:{1024*i}") for i in range(12)]
    state = {"arr": None, "rd": False}
    def mlist(p):
        mq = qk(p + 1) if p + 1 < NP else [None, None]
        mp = pv(p - 1) if p >= 1 else [None, None]
        ms = [("q", x) for x in mq] + [("p", x) for x in mp]
        if p == 0: return ms[4-P0S:] + ms[:4-P0S]
        return ms[2:] + ms[:2] if p == 1 else ms
    def need(p, kind):
        if kind == "q":
            k1 = order[p + 1][0]
            a.vwait(("V", k1) if (k1 >= 2 and sum(1 for t in a.vm if t == ("V", k1)) == 2) else ("K", k1))
        else:
            a.vwait(("V", order[p - 1][0]))
    for p in range(NP):
        s = SB[p % 3]
        stamp(a, f"ph{p}")
        ms = mlist(p)
        if p == 1:
            lcheck(a, "L_m", 4)
            stamp(a, "bq1")
            for i in range(3): a(f"ds_read_b32 v{Q[i]+6}, v{MR+i}")
        if p == 2: a("s_nop 6")
        for g in range(4):
            kind, m = ms[g]
            if m:
                need(p, kind)
                if p == 1 and g == 3: a("s_waitcnt lgkmcnt(0)")
                a(m)
                if p >= 3:
                    np_, ng = (p, g + 1) if g < 3 else (p + 1, 0)
                    if np_ < NP:
                        k2, m2_ = mlist(np_)[ng]
                        if m2_: need(np_, k2)
            slot = 4 * p + g
            if slot == 3: lpre(a)
            if g == 2 and p in LOW:
                a(f"s_cmp_eq_u32 s{sg}, 0")
                a(f"s_cbranch_scc1 L_low{p}")
                a.lab(f"L_lowb{p}")
            if slot == 26: lpre(a, C0A)
            if slot == 30: lcheck(a, "L_c0", 4, C0A)
            if p == WOT and g == 2: a.vmem(f"buffer_load_dword v{T+8}, v{TAU}, {S4(rWO)}, 0 offen", "wot")
            if lq and lq[0][1] <= p and (g == LG or (g == LG + 1 and (p < 12 or p >= 40))): lq.pop(0)[0]()
            elif wq and wq[0][1] <= slot:
                wq.pop(0)[0]()
                if not wq:
                    arrive(a); state["arr"] = slot
            elif state["arr"] is not None and slot == state["arr"] + 2: lpre(a)
            elif state["arr"] is not None and not state["rd"] and slot >= state["arr"] + 4:
                lcheck(a, "L_p", 8)
                stamp(a, "b1")
                state["rd"] = True
                for _ in range(4): rq.pop(0)()
            elif state["rd"] and rq:
                for _ in range(4): rq.pop(0)()
            for jj in range(4): a(f"v_exp_f32 v{s+4*g+jj}, v{s+4*g+jj}")
    assert not lq and not wq and state["rd"]
    while rq: rq.pop(0)()
    a("s_nop 1")
    for x in pv(63): a(x)
    stamp(a, "loop1")
    OO = O[3]
    a("s_waitcnt lgkmcnt(0)")
    if ARR3 == "early": arrive(a)
    for r in range(16): a(f"v_add_f32 v{O[0]+r}, v{O[0]+r}, v{O[1]+r}")
    for r in range(16): a(f"v_add_f32 v{O[0]+r}, v{O[0]+r}, v{O[2]+r}")
    a(f"v_add_f32 v{OO+12}, v{OO+12}, v{O[0]+12}")
    a(f"v_mov_b32 v{T}, v{OO+12}")
    a(f"v_mov_b32 v{T+1}, v{OO+12}")
    for r in range(0, 4): a(f"v_add_f32 v{OO+r}, v{OO+r}, v{O[0]+r}")
    a(f"v_permlane32_swap_b32 v{T}, v{T+1}")
    for r in range(4, 16):
        if r != 12: a(f"v_add_f32 v{OO+r}, v{OO+r}, v{O[0]+r}")
    a(f"s_mov_b32 s{sFB}, 0")
    a.lab("L_norm")
    a(f"v_rcp_f32 v{T}, v{T+1}")
    if EARLYP == 1: a(f"buffer_load_dwordx2 {vr(T+14,2)}, v{LF}, {S4(rBR)}, 0 offen {PF2}")
    else: a("s_nop 0")
    P = T + 4
    for r in range(8): a(f"v_mul_f32 v{OO+r}, v{OO+r}, v{T}")
    for i in range(4): a(f"v_cvt_pk_bf16_f32 v{P+i}, v{OO+2*i}, v{OO+2*i+1}")
    a(f"buffer_store_dwordx4 {vr(P,4)}, v{L16}, {S4(rBR)}, s{sOO} offen sc1")
    for r in range(8, 16): a(f"v_mul_f32 v{OO+r}, v{OO+r}, v{T}")
    for i in range(4, 8): a(f"v_cvt_pk_bf16_f32 v{P+i}, v{OO+2*i}, v{OO+2*i+1}")
    a("s_mov_b32 exec_hi, 0")
    a(f"buffer_store_dwordx4 {vr(P+4,4)}, v{L16}, {S4(rBR)}, s{sOO} offen offset:1024 sc1")
    a("s_not_b64 exec, exec")
    a(f"buffer_store_dwordx2 {vr(P+4,2)}, v{L8}, {S4(rBR)}, s{sOO} offen offset:1280 sc1")
    a("s_mov_b64 exec, -1")
    if EARLYP == 2: a(f"buffer_load_dwordx2 {vr(T+14,2)}, v{LF}, {S4(rBR)}, 0 offen {PF2}")
    stamp(a, "ost")
    a(f"s_cmp_lg_u32 s{sFB}, 0")
    a("s_cbranch_scc1 L_checked")
    if ARR3 == "late": arrive(a)
    a(f"v_mul_f32 v{T+2}, 0, v{OO}")
    a(f"v_mul_f32 v{T+3}, 0, v{OO+1}")
    for r in range(2, 16): a(f"v_fma_f32 v{T+2+(r&1)}, 0, v{OO+r}, v{T+2+(r&1)}")
    a(f"v_add_f32 v{T+2}, v{T+2}, v{T+3}")
    a(f"v_add_f32 v{T+2}, v{T+2}, v{T+1}")
    a(f"v_cmp_nlt_f32 vcc, 0x35800000, v{T+2}")
    a(f"s_mov_b64 {S2(sROT)}, vcc")
    a(f"v_cmp_ngt_f32 vcc, 0x71800000, v{T+2}")
    a(f"s_or_b64 vcc, vcc, {S2(sROT)}")
    a("s_cbranch_vccnz L_fallback")
    a.lab("L_checked")
    sOS, sOL, sW0 = KT[1], KT[2], KT[3]
    INV = [ORD.index(r_) for r_ in range(4)]
    def wo_round(st):
        a(f"s_xor_b32 s{t0}, s{sPE}, {st}")
        a(f"s_add_u32 s{t0}, s{t0}, s{sW0}")
        a(f"s_mul_i32 s{sWOS}, s{t0}, {28*896}")
        a(f"s_mul_i32 s{sWOL}, s{skq}, {56*256}")
        a(f"s_mov_b32 s{t1}, 0")
        a(f"s_setprio {WPRIO}")
        a.lab(f"L_wo{st}")
        a(f"s_mov_b32 m0, s{sWOL}")
        a(f"s_add_u32 s{t1}, s{t1}, 1")
        a(f"buffer_load_dwordx4 v{WOA}, {S4(rWO)}, s{sWOS} offen {WOF} lds")
        a(f"s_add_u32 s{sWOL}, s{sWOL}, 1024")
        a(f"s_cmp_eq_u32 s{t1}, 7")
        a(f"s_mov_b32 s{t0}, {4*896}")
        a(f"s_cselect_b32 s{t0}, {32*896}, s{t0}")
        a(f"s_add_u32 s{sWOS}, s{sWOS}, s{t0}")
        a(f"s_cmp_lg_u32 s{t1}, 14")
        a(f"s_waitcnt vmcnt({WOFL})")
        a(f"s_cbranch_scc1 L_wo{st}")
        a("s_waitcnt vmcnt(0)")
        a("s_setprio 2")
    a(f"s_cmp_eq_u32 s{sg}, 0")
    a("s_cbranch_scc1 L_wfirst")
    a.lab("L_pub")
    NF = T + 2
    a(f"v_mov_b32 v{NF}, s{NONCE}")
    a(f"v_mov_b32 v{NF+1}, s{NONCE+1}")
    a("s_mov_b64 exec, 1")
    a(f"s_cmp_eq_u32 s{sg}, 0")
    a("s_waitcnt vmcnt(0)")
    a(f"buffer_store_dwordx2 {vr(NF,2)}, off, {S4(rBR)}, s{sF2O} {SF2}")
    a("s_mov_b64 exec, -1")
    stamp(a, "flag2")
    a("s_cbranch_scc1 L_ph3")
    def late_fetch():
        a(f"s_mov_b32 m0, s{sLL}")
        a("s_nop 0")
        for i in range(4): a(f"buffer_load_dwordx4 v{L16}, {S4(rBR)}, s{sLS} offen offset:{1024*i} sc1 lds")
        a(f"s_add_u32 m0, s{sLL}, 4096")
        a("s_nop 0")
        for i in range(3): a(f"buffer_load_dwordx4 v{L16}, {S4(rBR)}, s{sLS2} offen offset:{1024*i} sc1 lds")
        a("s_mov_b64 exec, 1")
        a("s_waitcnt vmcnt(0)")
        a(f"ds_write_b32 v{LM}, v{ONE}")
        a("s_mov_b64 exec, -1")
    a(f"ds_read_b32 v{T+12}, v{LM}")
    a(f"v_add_u32 v{T+4}, -4, v{CA}")
    lwait(a, "L_wfree", 0, 28, 1, T + 4)
    a(f"v_readfirstlane_b32 s{t0}, v{T+12}")
    a(f"s_cmp_lg_u32 s{t0}, 0")
    a("s_cbranch_scc1 L_fin")
    if EARLYP:
        a(f"v_cmp_ne_u64 vcc, {S2(NONCE)}, {vr(T+14,2)}")
        a("s_cbranch_vccz L_lready")
    if PW0: a("s_waitcnt vmcnt(0)")
    poll(a, "L_f21", LF, rBR, PF2)
    a.lab("L_lready")
    stamp(a, "poll2")
    late_fetch()
    stamp(a, "oown")
    a("s_waitcnt lgkmcnt(0)")
    a("s_branch L_fin")
    a.lab("L_ph3")
    if OUTW:
        a("s_mov_b64 exec, 1")
        a(f"buffer_load_dword v{T+8}, v{OUTA}, {S4(rOUT)}, 0 offen")
        a("s_mov_b64 exec, -1")
    WB = 16
    steps = []
    for q in range(2):
        for j in range(4 * q, 4 * q + 4): steps.append((0, lambda aa, j=j: 28 * j + 8 * aa, ("A", j)))
        for i in range(2 * q, 2 * q + 2): steps.append((1, lambda aa, i=i: 56 * i + 16 + 8 * aa, ("B", 2 * i)))
        steps.append((2, lambda aa, q=q: 28 * (4 * q + aa) + 20, ("C", 4 * q)))
    def wread(st, ks):
        t, row, _ = steps[ks]
        for aa in range(2):
            a(f"ds_read_b64_tr_b16 {vr(WB+56*st+4*ks+2*aa,2)}, v{WA+t} offset:{row(aa)*256}")
    for st in range(2):
        if st: wo_round(1)
        gbar(a, f"L_g4{st}", 4 + 2 * st)
        for ks in range(14): wread(st, ks)
        a("s_waitcnt lgkmcnt(0)")
        gbar(a, f"L_g5{st}", 5 + 2 * st)
        stamp(a, f"wrd{st}")
    ACC3 = [128, 144]; ACCB = [16, 32]; OB = 176; NB = 12; PK = 224
    def mfma_block(st, items, hooks):
        lg = []
        def oread(n_):
            ks, e = items[n_]
            kind, hd = steps[ks][2]
            d = OB + 4 * (n_ % NB)
            base = 28672 * st + 14336 * e
            if kind == "A": a(f"ds_read_b128 {vr(d,4)}, v{OA} offset:{base+hd*1792}"); lg.append(n_)
            elif kind == "B": a(f"ds_read_b128 {vr(d,4)}, v{OA+1} offset:{base+hd*1792+1024}"); lg.append(n_)
            else:
                for aa in range(2):
                    a(f"ds_read_b64 {vr(d+2*aa,2)}, v{OA+2} offset:{base+(hd+aa)*1792+1536}"); lg.append(n_)
        N_ = len(items)
        for n_ in range(min(NB, N_)): oread(n_)
        for n_ in range(N_):
            ks, e = items[n_]
            out = sum(1 for k in lg if k > n_)
            assert out < 16
            a(f"s_waitcnt lgkmcnt({out})")
            d_ = ACCB[e] if (st == 1 and ks >= 7) else ACC3[e]
            c = "0" if (st, ks) in ((0, 0), (1, 7)) else vr(d_, 16)
            a(f"v_mfma_f32_32x32x16_bf16 {vr(d_,16)}, {vr(WB+56*st+4*ks,4)}, {vr(OB+4*(n_%NB),4)}, {c}")
            if n_ + NB < N_: oread(n_ + NB)
            if n_ in hooks: hooks[n_]()
    a(f"s_mul_i32 s{sOS}, s{sRT}, 1792")
    a(f"s_mul_i32 s{sOL}, s{skq}, 7168")
    poll(a, "L_f20", F2A, rBR, PF2)
    a(f"s_mov_b32 m0, s{sOL}")
    a(f"s_add_u32 s{t0}, s{sOS}, 4096")
    for i in range(4): a(f"buffer_load_dwordx4 v{L16}, {S4(rBR)}, s{sOS} offen offset:{1024*i} sc1 lds")
    a(f"s_add_u32 m0, s{sOL}, 4096")
    a("s_nop 0")
    for i in range(3): a(f"buffer_load_dwordx4 v{L16}, {S4(rBR)}, s{t0} offen offset:{1024*i} sc1 lds")
    a("s_waitcnt vmcnt(0)")
    gbar(a, "L_g8", 8)
    stamp(a, "aland")
    if GLOOK:
        a(f"s_mov_b32 s{t3}, {SPIN}")
        a.lab("L_h3a")
        a(f"buffer_load_dwordx2 {vr(T+14,2)}, v{LF}, {S4(rBR)}, 0 offen {PF2}")
        a(f"s_sleep {HSL}")
        a(f"ds_read_b32 v{T+13}, v{CA} offset:4")
        a(f"s_sub_u32 s{t3}, s{t3}, 1")
        a("s_cbranch_scc1 L_end")
        a("s_waitcnt lgkmcnt(0)")
        a(f"v_readfirstlane_b32 s{t2}, v{T+13}")
        a(f"s_cmp_ge_u32 s{t2}, 12")
        a("s_cbranch_scc1 L_h3_done")
        a("s_waitcnt vmcnt(0)")
        a(f"v_cmp_ne_u64 vcc, {S2(NONCE)}, {vr(T+14,2)}")
        a("s_cbranch_vccnz L_h3a")
        late_fetch()
    lwait(a, "L_h3", 4, 12, HSL)
    a("s_setprio 0")
    a(f"s_cmp_eq_u32 s{XM}, 0")
    a("s_cbranch_scc1 L_fin")
    mfma_block(0, [(ks, e) for ks in range(14) for e in range(2)], {})
    stamp(a, "tileA")
    a(f"s_add_u32 s{t0}, s{sOUTO}, {16*1792}")
    a(f"s_add_u32 s{t1}, s{sOUTO}, {32*1792}")
    a(f"s_add_u32 s{sOS}, s{sOUTO}, {48*1792}")
    def pack0(i0):
        def f():
            for r in range(2 * i0, 2 * i0 + 8): a(f"v_add_f32 v{ACC3[0]+r}, v{ACC3[0]+r}, v{ACCB[0]+r}")
            for i in range(i0, i0 + 4): a(f"v_cvt_pk_bf16_f32 v{PK+i}, v{ACC3[0]+2*i}, v{ACC3[0]+2*i+1}")
        return f
    a(f"s_mov_b32 s{t3}, {SPIN}")
    a.lab("L_any")
    a(f"ds_read_b128 {vr(T+8,4)}, v{CA} offset:16")
    a(f"s_sub_u32 s{t3}, s{t3}, 1")
    a("s_cbranch_scc1 L_end")
    a("s_waitcnt lgkmcnt(0)")
    a(f"v_and_b32 v{T+8}, v{T+8}, v{T+9}")
    a(f"v_and_b32 v{T+10}, v{T+10}, v{T+11}")
    a(f"v_cmp_ne_u32 vcc, 0, v{T+10}")
    a("s_cbranch_vccnz L_ba")
    a(f"v_cmp_ne_u32 vcc, 0, v{T+8}")
    a("s_cbranch_vccz L_any")
    for first in (0, 1):
        if first: a.lab("L_ba")
        stamp(a, "bland")
        mfma_block(1, [(ks, e) for ks in range(7 * first, 7 * first + 7) for e in range(2)], {})
        a(f"s_mov_b32 s{t3}, {SPIN}")
        a.lab(f"L_u{first}")
        a(f"ds_read_b64 {vr(T+8,2)}, v{CA} offset:{24 - 8*first}")
        a(f"s_sub_u32 s{t3}, s{t3}, 1")
        a("s_cbranch_scc1 L_end")
        a("s_waitcnt lgkmcnt(0)")
        a(f"v_and_b32 v{T+8}, v{T+8}, v{T+9}")
        a(f"v_cmp_ne_u32 vcc, 0, v{T+8}")
        a(f"s_cbranch_vccz L_u{first}")
        stamp(a, "oland")
        mfma_block(1, [(ks, e) for e in range(2) for ks in range(7 - 7 * first, 14 - 7 * first)], {12: pack0(0), 13: pack0(4)})
        if not first: a("s_branch L_out")
    a.lab("L_out")
    stamp(a, "mf3")
    a(f"ds_write_b128 v{TW}, {vr(PK,4)}")
    a(f"ds_write_b128 v{TW+1}, {vr(PK+4,4)}")
    a(f"ds_read_b128 {vr(OB+16,4)}, v{TR}")
    a(f"ds_read_b128 {vr(OB+20,4)}, v{TR} offset:1024")
    for r in range(8): a(f"v_add_f32 v{ACC3[1]+r}, v{ACC3[1]+r}, v{ACCB[1]+r}")
    for i in range(4): a(f"v_cvt_pk_bf16_f32 v{PK+8+i}, v{ACC3[1]+2*i}, v{ACC3[1]+2*i+1}")
    a(f"ds_write_b128 v{TW}, {vr(PK+8,4)} offset:2048")
    a("s_waitcnt lgkmcnt(1)")
    a(f"buffer_store_dwordx4 {vr(OB+16,4)}, v{OUTA}, {S4(rOUT)}, s{sOUTO} offen {OUTF}")
    a(f"buffer_store_dwordx4 {vr(OB+20,4)}, v{OUTA}, {S4(rOUT)}, s{t0} offen {OUTF}")
    for r in range(8, 16): a(f"v_add_f32 v{ACC3[1]+r}, v{ACC3[1]+r}, v{ACCB[1]+r}")
    for i in range(4, 8): a(f"v_cvt_pk_bf16_f32 v{PK+8+i}, v{ACC3[1]+2*i}, v{ACC3[1]+2*i+1}")
    a(f"ds_write_b128 v{TW+1}, {vr(PK+12,4)} offset:2048")
    a(f"ds_read_b128 {vr(OB+24,4)}, v{TR} offset:2048")
    a(f"ds_read_b128 {vr(OB+28,4)}, v{TR} offset:3072")
    a("s_waitcnt lgkmcnt(1)")
    a(f"buffer_store_dwordx4 {vr(OB+24,4)}, v{OUTA}, {S4(rOUT)}, s{t1} offen {OUTF}")
    a("s_waitcnt lgkmcnt(0)")
    a(f"buffer_store_dwordx4 {vr(OB+28,4)}, v{OUTA}, {S4(rOUT)}, s{sOS} offen {OUTF}")
    a.lab("L_fin")
    if STAMP:
        a("s_waitcnt vmcnt(0)")
        a("s_memrealtime s[22:23]")
        a("s_memtime s[98:99]")
        a("s_waitcnt lgkmcnt(0)")
        a("s_mov_b64 exec, 1")
        a(f"s_mov_b32 s{rWS}, s2"); a(f"s_mov_b32 s{rWS+1}, s3"); a(f"s_mov_b32 s{rWS+2}, 0x10000000")
        a(f"s_lshl_b32 s{t1}, s{sidx}, 3")
        a(f"s_add_u32 s{t1}, s{t1}, s{sx}")
        a(f"s_lshl_b32 s{t1}, s{t1}, 9")
        a(f"s_add_u32 s{t1}, s{t1}, {64<<20}")
        a(f"s_lshl_b32 s{t0}, s{sw}, 6")
        a(f"s_add_u32 s{t1}, s{t1}, s{t0}")
        for i, r in enumerate([RT, 22, 100, 98] + [80 + 2 * k for k in range(9)] + [sLOC]):
            a(f"v_mov_b32 v1, s{r}")
            a(f"buffer_store_dword v1, off, {S4(rWS)}, s{t1} offset:{4*i}")
    if DIAG:
        a("s_waitcnt vmcnt(0)")
        if DIAG == "end": a("s_memrealtime s[80:81]")
        if DIAG == "none": a(f"s_mov_b32 s80, s{NONCE}")
        a("s_waitcnt lgkmcnt(0)")
        a("s_add_u32 s80, s80, 6000")
        a.lab("L_diag")
        a("s_sleep 2")
        a("s_memrealtime s[82:83]")
        a("s_waitcnt lgkmcnt(0)")
        a("s_sub_u32 s82, s82, s80")
        a("s_cmp_lt_i32 s82, 0")
        a("s_cbranch_scc1 L_diag")
    a.lab("L_end")
    a("s_endpgm")
    a.lab("L_wfirst")
    lwait(a, "L_h2", 12, 4)
    stamp(a, "wo0")
    a(f"s_lshl_b32 s{t0}, s{skq}, 2")
    a(f"s_lshr_b32 s{t0}, {sum((4*INV[r_]) << (4*r_) for r_ in range(4)):#x}, s{t0}")
    a(f"s_and_b32 s{sW0}, s{t0}, 15")
    wo_round(0)
    a("s_branch L_pub")
    for tag, P_, so, off in tails:
        a.lab(f"L_wt{tag}")
        a(f"buffer_store_dwordx4 {vr(P_,4)}, v{TAU}, {S4(rWS)}, s{so} offen offset:{off} sc1")
        a(f"s_branch L_st{tag}")
    for v in nnt:
        a.lab(f"L_nn{v}")
        a(f"buffer_load_dwordx2 {vr(NV,2)}, v{NA}, {S4(rDBG)}, 0 offen sc1")
        a(f"s_branch L_nnb{v}")
    for tag, nm in stails:
        a.lab(f"L_ns{tag}")
        stamp(a, nm)
        a(f"s_branch L_nb{tag}")
    for name, target, reg in slow:
        a.lab(f"{name}_slow")
        lwait(a, name, 0, target, 1, reg)
        a(f"s_branch {name}_back")
    if LOW[0] >= 0:
        for p, pr in zip(LOW, (0, 2)):
            a.lab(f"L_low{p}")
            a(f"s_setprio {pr}")
            a(f"s_branch L_lowb{p}")
    a.lab("L_f1wt")
    a(f"buffer_store_dwordx2 {vr(NV,2)}, off, {S4(rWS)}, s{sF1O} sc1")
    a("s_branch L_f1st")
    for tag in "LC":
        a.lab(f"L_nonce_retry{tag}")
        a(f"buffer_load_dwordx2 {vr(NV,2)}, off, {S4(rDBG)}, s{sDL} sc1")
        a(f"s_sub_u32 s{t3}, s{t3}, 1")
        a("s_cbranch_scc1 L_end")
        a("s_waitcnt vmcnt(0)")
        a(f"s_branch L_nonce{tag}")
    a.lab("L_fallback")
    QO = Q[3]; S0 = SB[0]; K0 = KB[0]; V0 = VB[0]; M = T + 2
    a("s_waitcnt vmcnt(0)")
    a(f"s_mov_b32 s{sFB}, 1")
    a("s_mov_b32 exec_lo, 0")
    a(f"v_mov_b32 v{QO+6}, 0")
    a("s_mov_b32 exec_lo, -1")
    for r in range(16): a(f"v_mov_b32 v{OO+r}, 0")
    a(f"v_mov_b32 v{M}, 0xff7fffff")
    a(f"s_mov_b32 s{sKVO}, 0")
    a.lab("L_fb_loop")
    a(f"buffer_load_dwordx4 {vr(K0,4)}, v{L16}, {S4(rKV)}, s{sKVO} offen sc1")
    a(f"buffer_load_dwordx4 {vr(K0+4,4)}, v{L16}, {S4(rKV)}, s{sKVO} offen offset:1024 sc1")
    a(f"buffer_load_dwordx4 {vr(V0,4)}, v{L16}, {S4(rKV)}, s{sKVO} offen offset:2048 sc1")
    a(f"buffer_load_dwordx4 {vr(V0+4,4)}, v{L16}, {S4(rKV)}, s{sKVO} offen offset:3072 sc1")
    a("s_waitcnt vmcnt(0)")
    a(f"v_mfma_f32_32x32x16_bf16 {vr(S0,16)}, {vr(K0,4)}, {vr(QO,4)}, 0")
    a(f"v_mfma_f32_32x32x16_bf16 {vr(S0,16)}, {vr(K0+4,4)}, {vr(QO+4,4)}, {vr(S0,16)}")
    a("s_nop 15")
    a(f"v_max3_f32 v{T}, v{M}, v{S0}, v{S0+1}")
    for i in range(2, 16, 2): a(f"v_max3_f32 v{T}, v{T}, v{S0+i}, v{S0+i+1}")
    a(f"v_mov_b32 v{T+1}, v{T}")
    a("s_nop 1")
    a(f"v_permlane32_swap_b32 v{T}, v{T+1}")
    a(f"v_max_f32 v{T}, v{T}, v{T+1}")
    a(f"v_sub_f32 v{T+1}, v{M}, v{T}")
    a(f"v_exp_f32 v{T+1}, v{T+1}")
    a(f"v_mov_b32 v{M}, v{T}")
    for r in range(16): a(f"v_sub_f32 v{S0+r}, v{S0+r}, v{T}")
    for r in range(16): a(f"v_exp_f32 v{S0+r}, v{S0+r}")
    for r in range(16): a(f"v_mul_f32 v{OO+r}, v{OO+r}, v{T+1}")
    a("s_nop 1")
    a(f"v_smfmac_f32_32x32x32_bf16 {vr(OO,16)}, {vr(V0,4)}, {vr(S0,8)}, v{IDX}")
    a(f"v_smfmac_f32_32x32x32_bf16 {vr(OO,16)}, {vr(V0+4,4)}, {vr(S0+8,8)}, v{IDX}")
    a(f"s_add_u32 s{sKVO}, s{sKVO}, 4096")
    a(f"s_cmp_lt_u32 s{sKVO}, 262144")
    a("s_nop 15")
    a("s_cbranch_scc1 L_fb_loop")
    a(f"v_mov_b32 v{T}, v{OO+12}")
    a(f"v_mov_b32 v{T+1}, v{OO+12}")
    a("s_nop 1")
    a(f"v_permlane32_swap_b32 v{T}, v{T+1}")
    a("s_branch L_norm")
    kd = f""".section .rodata,"a"
.p2align 6
.amdhsa_kernel {n}
  .amdhsa_next_free_vgpr 256
  .amdhsa_next_free_sgpr 102
  .amdhsa_accum_offset 256
  .amdhsa_group_segment_fixed_size 0
  .amdhsa_kernarg_size 72
  .amdhsa_user_sgpr_count 2
  .amdhsa_user_sgpr_kernarg_segment_ptr 1
  .amdhsa_system_sgpr_workgroup_id_x 1
.end_amdhsa_kernel
"""
    return a.text() + kd

hdr = f"""; @launch grid=(256,1,1) block=(512,1,1) lds={LDS}
.amdgcn_target "amdgcn-amd-amdhsa--gfx950"
.text
"""
open(sys.argv[1] if len(sys.argv) > 1 else "v13.s", "w").write(hdr + gen())
```

```python
import sys, os, struct, math
NAME = "concat_heads__softmax_full_mha__softmax_full_mha__prompt"
def f2u(x): return struct.unpack("<I", struct.pack("<f", x))[0]
CSCALE = f2u(28 ** -0.5 * math.log2(math.e))
E = os.environ.get
STAMP = E("STAMP", "0") in ("1", "3")
RTS = E("STAMP", "0") == "3"
DIAG = E("DIAG", "")
STL = E("STL", "c0,p1end,ack1,poll1,loop0,loop1,flag2,poll2,oland").split(",")
F2SP = int(E("F2SP", "32"))
FORCEFB = E("FORCEFB", "0") == "1"
LOCAL = E("LOCAL", "1") == "1"
PRET = int(E("PRET", "3"))
SLEEP = int(E("SLEEP", "0"))
OUTF = E("OUTF", "")
ROTA, ROTB, ROTC, ROTN, ROTS = [int(v) for v in E("ROTP", "1,0,2,7,1").split(",")]
WOFL = int(E("WOFL", "3"))
NOWN = int(E("NOWN", "4"))
NPOS = int(E("NPOS", "5"))
ARR3 = E("ARR3", "late")
OUTW = int(E("OUTW", "1"))
WOT = int(E("WOT", "-1"))
HB = int(E("HB", "0"))
BPOS = int(E("BPOS", "2"))
TLBW = int(E("TLBW", "0"))
PROBE = int(E("PROBE", "0"))
WPRIO = int(E("WPRIO", "0"))
PRET2 = int(E("PRET2", "0"))
LG = int(E("LG", "2"))
PF2 = E("PF2", "sc1").replace("_", " ")
SF2 = E("SF2", "sc1").replace("_", " ")
PIPE = int(E("PIPE", "0"))
PW0 = int(E("PW0", "1"))
F1SP = int(E("F1SP", "128"))
K1L = int(E("K1L", "1"))
LQ0 = int(E("LQ0", "2"))
PGA = int(E("PGA", "1"))
FPOS = int(E("FPOS", "22"))
QB = int(E("QB", "14"))
TEAR = int(E("TEAR", "0"))
B2 = int(E("B2", "0"))
LPR = int(E("LPR", "0"))
CPF = int(E("CPF", "0"))
UBY = int(E("UBY", "1"))
PGT = int(E("PGT", "-1"))
SP = int(E("SP", "2"))
WF0 = E("WF0", ""); WF = E("WF", ""); XF0 = E("XF0", ""); XF = E("XF", ""); KVS = E("KVS", ""); WOF = E("WOF", ""); TF = E("TF", "sc1").replace("_", " "); KVL = E("KVL", "sc1").replace("_", " ")
LOW = [int(x) for x in E("LOW", "-1,-1").split(",")]
QFAST = int(E("QFAST", "1"))
FT = E("FT", "")
P0S = int(E("P0S", "1"))
SL1 = int(E("SL1", "0"))
PEX = int(E("PEX", "1"))
EARLYP = int(E("EARLYP", "1"))
GLOOK = int(E("GLOOK", "0"))
LOOK = int(E("LOOK", "16"))
LOOK2 = int(E("LOOK2", "7"))
HSL = int(E("HSL", "4"))
XMAP = E("XMAP", "")
T2POS = E("T2POS", "b6")
SPIN = 1 << 22

X_F1 = 1 << 20
B_BASE = 16 << 20; B_F2 = 1835008
STAGE = 40960; XOFF = 24576
PB0 = 57344; QX = 122880; MX = 106496; PB1 = 113664; TX = 57344; LDS = 163840; GBC = 163808

class A:
    def __init__(self):
        self.l = []; self.vm = []; self.done = 0
    def __call__(self, s): self.l.append("    " + s)
    def lab(self, s): self.l.append(s + ":")
    def raw(self, s): self.l.append(s)
    def text(self): return "\n".join(self.l) + "\n"
    def vreset(self): self.vm = []; self.done = 0
    def vmem(self, s, tag=None):
        self(s); self.vm.append(tag)
    def vwait(self, tag):
        idx = [i for i, t in enumerate(self.vm) if t == tag]
        assert idx, tag
        last = idx[-1] + 1
        if last <= self.done: return
        self.done = last
        n = len(self.vm) - last
        assert n < 64
        self(f"s_waitcnt vmcnt({n})")

def vr(b, n): return f"v[{b}:{b+n-1}]"
def S4(b): return f"s[{b}:{b+3}]"
def S2(b): return f"s[{b}:{b+1}]"
def stamp(a, name):
    if DIAG == name: a("s_memrealtime s[80:81]")
    if DIAG == name + "@0":
        a("s_cmp_lg_u32 s50, 0")
        a("s_cbranch_scc1 L_dg0")
        a("s_memrealtime s[80:81]")
        a.lab("L_dg0")
    if STAMP and name in STL:
        i = STL.index(name)
        a(f"{'s_memrealtime' if RTS else 's_memtime'} s[{80+2*i}:{81+2*i}]")

rX, rW, rWS, rWO, rOUT, rDBG, rKV, rBR = 24, 28, 32, 36, 64, 68, 72, 12
XM = 4
sLOC, sRT, sOUTO, sQT, sF1O, sPE = 6, 7, 8, 9, 10, 11
sKVO, sWOS, sWOL, sOO, sF2O, sFB = 16, 17, 18, 19, 22, 23
sx, sidx, sb, srb, shalf, sXS, sw, shl, shs, sg4, sg, sWL, sXL, sWS_, stt, scg, skq, su = range(40, 58)
t0, t1, sDL, t2, sROT, t3 = 58, 59, 60, 61, 62, 63
NONCE = 76; RT = 78
KT = [24, 25, 26, 27, 28]
KP = [24, 26, 28, 30, 44, 52, 54, 20]
L16, IDX, CA, F1A, ONE, L8, MW, MR, PW, PR, TAU = 1, 2, 3, 4, 5, 6, 7, 8, 11, 14, 15
T = 240
XD, WD, XA, WA1, QW, NV, NA, PTA = 16, 18, 16, 20, 23, 232, 234, 235
ACC = 32; FR = 128; P1 = 208
Q = [16, 24, 32, 40]; O = [48, 64, 80, 96]; SB = [112, 128, 144]; KB = [176, 184, 192, 200]; VB = [208, 216, 224, 232]
WA, F2B, TW, OA, WOA, F2A, OUTA, TR = 160, 163, 166, 168, 172, 173, 174, 175
ORD = [0, 2, 3, 1]
LF, LM, C0A = 163, 164, 165
sLS, sLL, sLS2 = 43, 51, 57

def lwait(a, name, off, target, sleep=2, reg=None):
    a(f"s_mov_b32 s{t3}, {SPIN}")
    a.lab(f"{name}_spin")
    a(f"ds_read_b32 v{T+13}, v{reg or CA} offset:{off}")
    a(f"s_sub_u32 s{t3}, s{t3}, 1")
    a("s_cbranch_scc1 L_end")
    a("s_waitcnt lgkmcnt(0)")
    a(f"v_readfirstlane_b32 s{t2}, v{T+13}")
    a(f"s_cmp_ge_u32 s{t2}, {target}")
    if sleep:
        a(f"s_cbranch_scc1 {name}_done")
        a(f"s_sleep {sleep}")
        a(f"s_branch {name}_spin")
        a.lab(f"{name}_done")
    else:
        a(f"s_cbranch_scc0 {name}_spin")
def arrive(a, off=0):
    a("s_mov_b64 exec, 1")
    a(f"ds_add_u32 v{CA}, v{ONE} offset:{off}")
    a("s_mov_b64 exec, -1")
slow = []
def lpre(a, reg=None): a(f"ds_read_b32 v{T+13}, v{reg or CA}")
def lcheck(a, name, target, reg=None):
    a("s_waitcnt lgkmcnt(0)")
    a(f"v_readfirstlane_b32 s{t2}, v{T+13}")
    a(f"s_cmp_ge_u32 s{t2}, {target}")
    a(f"s_cbranch_scc0 {name}_slow")
    a.lab(f"{name}_back")
    slow.append((name, target, reg))
def gbar(a, name, k):
    arrive(a)
    lwait(a, name, 0, 4 * k)
def poll_pipe(a, name, vaddr, srd, fl, regs):
    n_ = len(regs)
    a(f"s_mov_b32 s{t3}, {SPIN}")
    for r in regs[:-1]:
        a(f"buffer_load_dwordx2 {vr(r,2)}, v{vaddr}, {S4(srd)}, 0 offen {fl}")
        a(f"s_sleep {PIPE}")
    a.lab(f"{name}_spin")
    for i in range(n_):
        a(f"buffer_load_dwordx2 {vr(regs[(i-1)%n_],2)}, v{vaddr}, {S4(srd)}, 0 offen {fl}")
        a(f"s_waitcnt vmcnt({n_-1})")
        a(f"v_cmp_ne_u64 vcc, {S2(NONCE)}, {vr(regs[i],2)}")
        a(f"s_cbranch_vccz {name}_ok")
    a(f"s_sub_u32 s{t3}, s{t3}, 1")
    a(f"s_cbranch_scc0 {name}_spin")
    a("s_branch L_end")
    a.lab(f"{name}_ok")
def poll(a, name, vaddr, srd, fl="sc1", lanes=4, SLEEP=0):
    a(f"s_mov_b32 s{t3}, {SPIN}")
    if PEX: a(f"s_mov_b64 exec, {(1 << lanes) - 1:#x}")
    if SLEEP: a(f"s_branch {name}_first")
    a.lab(f"{name}_spin")
    if SLEEP:
        a(f"s_sleep {SLEEP}")
        a.lab(f"{name}_first")
    a(f"buffer_load_dwordx2 {vr(T+14,2)}, v{vaddr}, {S4(srd)}, 0 offen {fl}")
    a(f"s_sub_u32 s{t3}, s{t3}, 1")
    a("s_cbranch_scc1 L_end")
    a("s_waitcnt vmcnt(0)")
    a(f"v_cmp_ne_u64 vcc, {S2(NONCE)}, {vr(T+14,2)}")
    a(f"s_cbranch_vccnz {name}_spin")
    if PEX: a("s_mov_b64 exec, -1")

def gen():
    a = A(); n = NAME + "_kernel"
    tails = []; stails = []; nnt = []
    u0, u1, u2, u3, u4 = T, T + 1, T + 2, T + 3, T + 4
    a.raw(f".globl {n}\n" + (".p2align 12\n" if PGA else "") + f".p2align 8\n.type {n},@function")
    a.lab(n)
    a("s_cmp_ge_u32 s2, 256")
    a("s_cbranch_scc1 L_end")
    a("s_load_dwordx16 s[4:19], s[0:1], 0")
    a("s_load_dwordx2 s[20:21], s[0:1], 64")
    a(f"s_memrealtime {S2(RT)}")
    if STAMP: a("s_memtime s[100:101]")
    a(f"s_and_b32 s{sx}, s2, 7")
    a(f"s_lshr_b32 s{sidx}, s2, 3")
    a("v_lshrrev_b32 v1, 6, v0")
    a("v_and_b32 v0, 63, v0")
    a(f"v_readfirstlane_b32 s{sw}, v1")
    if XMAP:
        tab = sum(int(c) << (4 * i) for i, c in enumerate(XMAP))
        assert sorted(XMAP) == list("01234567")
        a(f"s_lshl_b32 s{t0}, s{sx}, 2")
        a(f"s_lshr_b32 s{t0}, {tab:#x}, s{t0}")
        a(f"s_bfe_u32 s{sb}, s{t0}, 0x10002")
        a(f"s_and_b32 s{sg4}, s{t0}, 3")
    else:
        a(f"s_lshr_b32 s{sb}, s{sx}, 2")
        a(f"s_and_b32 s{sg4}, s{sx}, 3")
    a(f"s_lshr_b32 s{srb}, s{sidx}, 1")
    a(f"s_and_b32 s{shalf}, s{sidx}, 1")
    if TLBW:
        a(f"s_cmp_lt_u32 s{sw}, 4")
        a("s_cbranch_scc1 L_load")
        a(f"s_mul_i32 s{t0}, s{srb}, {128*896}")
        a(f"s_cmp_eq_u32 s{sb}, 0")
        a(f"v_mov_b32 v{u0}, s{t0}")
        a(f"v_mul_u32_u24 v{u1}, {7*2688}, v0")
        a("s_waitcnt lgkmcnt(0)")
        a(f"s_cselect_b64 {S2(rX)}, s[4:5], s[10:11]")
        a(f"s_cselect_b64 {S2(rW)}, s[6:7], s[12:13]")
        if TLBW == 1: a("s_mov_b64 exec, 1")
        a(f"global_load_dword v{T+10}, v{u0}, {S2(rX)}")
        a(f"global_load_dword v{T+11}, v{u1}, {S2(rW)}")
        a("s_mov_b64 exec, -1")
        a("s_branch L_comp")
        a.lab("L_load")
    else:
        a(f"s_cmp_ge_u32 s{sw}, 4")
        a("s_cbranch_scc1 L_comp")
    def stamp_init():
        if DIAG: a(f"s_mov_b32 s80, s{RT}")
        if STAMP:
            for k in range(9): a(f"s_mov_b32 s{80+2*k}, s{RT if RTS else 100}")
    def dbg_desc():
        a(f"s_mov_b32 s{rDBG}, s18"); a(f"s_mov_b32 s{rDBG+1}, s19"); a(f"s_mov_b32 s{rDBG+2}, 256"); a(f"s_mov_b32 s{rDBG+3}, 0x00020000")
        a(f"s_lshl_b32 s{sDL}, s{sb}, 3")
    def ws_desc():
        a(f"s_lshl_b32 s{t2}, s{sx}, 21")
        a(f"s_add_u32 s{rWS}, s20, s{t2}")
        a(f"s_addc_u32 s{rWS+1}, s21, 0")
        a(f"s_mov_b32 s{rWS+2}, {2<<20}")
        a(f"s_mov_b32 s{rWS+3}, 0x00020000")
    def ids2a(g, ws=True):
        a(f"s_cmp_eq_u32 s{sb}, 0")
        a(f"s_cselect_b32 s{rWO}, s8, s14")
        a(f"s_cselect_b32 s{rWO+1}, s9, s15")
        a(f"s_mov_b32 s{rWO+2}, 401408")
        a(f"s_mov_b32 s{rWO+3}, 0x00020000")
        a(f"s_mov_b32 s{rOUT}, s16"); a(f"s_mov_b32 s{rOUT+1}, s17"); a(f"s_mov_b32 s{rOUT+2}, {2048*896*2}"); a(f"s_mov_b32 s{rOUT+3}, 0x00020000")
        if ws: ws_desc()
        a(f"s_lshl_b32 s{t2}, s{sb}, 21")
        a(f"s_add_u32 s{t2}, s{t2}, {B_BASE}")
        a(f"s_add_u32 s{rBR}, s20, s{t2}")
        a(f"s_addc_u32 s{rBR+1}, s21, 0")
        a(f"s_mov_b32 s{rBR+2}, {2<<20}")
        a(f"s_mov_b32 s{rBR+3}, 0x00020000")
        a(f"s_mov_b32 s{sg}, {g}")
        a(f"s_and_b32 s{shs}, s{srb}, 1")
        if g: a(f"s_xor_b32 s{shs}, s{shs}, 1")
        a(f"s_lshl_b32 s{shl}, s{shalf}, 1")
        a(f"s_add_u32 s{shl}, s{shl}, s{shs}")
        a(f"s_lshl_b32 s{t2}, s{shl}, 18")
        a(f"s_add_u32 s{rKV}, s{rWS}, s{t2}")
        a(f"s_addc_u32 s{rKV+1}, s{rWS+1}, 0")
        a(f"s_mov_b32 s{rKV+2}, 262144")
        a(f"s_mov_b32 s{rKV+3}, 0x00020000")
        a(f"s_and_b32 s{skq}, s{sw}, 3")
        a(f"s_lshl_b32 s{sKVO}, s{skq}, 16")
        a(f"v_and_b32 v{u0}, 15, v0")
        a(f"v_lshlrev_b32 v{u0}, 3, v{u0}")
        a(f"s_lshl_b32 s{t0}, s{shalf}, 2")
        a(f"s_add_u32 s{t0}, s{t0}, s{skq}")
        a(f"s_mul_i32 s{t0}, s{t0}, {F1SP}")
        a(f"s_add_u32 s{t0}, s{t0}, {X_F1}")
        a(f"v_add_u32 v{F1A}, s{t0}, v{u0}")
    def ids2b(g):
        a(f"v_lshlrev_b32 v{L16}, 4, v0")
        a(f"v_lshlrev_b32 v{L8}, 3, v0")
        a(f"v_lshlrev_b32 v{u0}, 2, v0")
        a(f"v_mov_b32 v{IDX}, 0xdddddddd")
        pb = PB1 if g else PB0; mx = MX + 1024 * g
        a(f"s_lshl_b32 s{t1}, s{skq}, 8")
        a(f"s_add_u32 s{t1}, s{t1}, {mx}")
        a(f"v_add_u32 v{MW}, s{t1}, v{u0}")
        a(f"s_mul_i32 s{t1}, s{skq}, 12288")
        a(f"s_add_u32 s{t1}, s{t1}, {pb}")
        a(f"v_add_u32 v{PR}, s{t1}, v{L16}")
        for i in range(3):
            a(f"s_add_u32 s{t0}, s{skq}, {1+i}")
            a(f"s_and_b32 s{t0}, s{t0}, 3")
            a(f"s_lshl_b32 s{t1}, s{t0}, 8")
            a(f"s_add_u32 s{t1}, s{t1}, {mx}")
            a(f"v_add_u32 v{MR+i}, s{t1}, v{u0}")
            a(f"s_mul_i32 s{t1}, s{t0}, 12288")
            a(f"s_add_u32 s{t1}, s{t1}, {pb + 4096*i}")
            a(f"v_add_u32 v{PW+i}, s{t1}, v{L16}")
        a(f"v_mov_b32 v{CA}, {GBC + 4*g}")
        a(f"v_mov_b32 v{ONE}, 1")
        a(f"s_lshl_b32 s{sQT}, s{srb}, 2")
        a(f"s_add_u32 s{sQT}, s{sQT}, s{skq}")
        a(f"s_lshl_b32 s{t0}, s{sg4}, 2")
        a(f"s_lshr_b32 s{t0}, {sum((2*ORD[g_]) << (4*g_) for g_ in range(4)):#x}, s{t0}")
        a(f"s_and_b32 s{t0}, s{t0}, 7")
        a(f"s_add_u32 s{t0}, s{t0}, s{shalf}")
        a(f"s_lshl_b32 s{t1}, s{shs}, 3")
        a(f"s_add_u32 s{t0}, s{t0}, s{t1}")
        a(f"s_lshl_b32 s{t1}, s{sQT}, 4")
        a(f"s_add_u32 s{t1}, s{t1}, s{t0}")
        a(f"s_mul_i32 s{sOO}, s{t1}, 1792")
        a(f"s_mul_i32 s{sF2O}, s{t1}, {F2SP}")
        a(f"s_add_u32 s{sF2O}, s{sF2O}, {B_F2}")
    def late_addr():
        a(f"s_lshl_b32 s{t0}, s{sg4}, 3")
        a(f"s_lshr_b32 s{t1}, s{sidx}, 2")
        a(f"s_add_u32 s{t0}, s{t0}, s{t1}")
        a(f"s_and_b32 s{t1}, s{t0}, 2")
        a(f"s_xor_b32 s{t1}, s{t1}, 2")
        a(f"s_lshl_b32 s{t1}, s{t1}, 2")
        a(f"s_lshl_b32 s{t0}, s{t0}, 5")
        a(f"s_add_u32 s{t0}, s{t0}, s{t1}")
        a(f"s_and_b32 s{t1}, s{skq}, 1")
        a(f"s_mul_i32 s{sLL}, s{t1}, 14336")
        a(f"s_lshl_b32 s{t1}, s{t1}, 4")
        a(f"s_add_u32 s{t0}, s{t0}, s{t1}")
        a(f"s_and_b32 s{t1}, s{skq}, 2")
        a(f"s_lshl_b32 s{t1}, s{t1}, 1")
        a(f"s_add_u32 s{t0}, s{t0}, s{t1}")
        a(f"v_and_b32 v{LF}, 3, v0")
        a(f"v_add_u32 v{LF}, s{t0}, v{LF}")
        a(f"v_mul_u32_u24 v{LF}, {F2SP}, v{LF}")
        a(f"v_add_u32 v{LF}, {B_F2}, v{LF}")
        a(f"s_mul_i32 s{sLS}, s{t0}, 1792")
        a(f"s_add_u32 s{sLS2}, s{sLS}, 4096")
        a(f"s_mul_i32 s{t1}, s{t1}, 1792")
        a(f"s_add_u32 s{sLL}, s{sLL}, s{t1}")
        a(f"s_add_u32 s{sLL}, s{sLL}, 28672")
        a(f"s_lshl_b32 s{t1}, s{skq}, 2")
        a(f"s_add_u32 s{t1}, s{t1}, {GBC + 16}")
        a(f"v_mov_b32 v{LM}, s{t1}")
        a(f"v_mov_b32 v{C0A}, {GBC}")
    def pre2():
        late_addr()
        for r in range(4): a(f"v_mov_b32 v{SB[0]+r}, 0")
        a("s_nop 1")
        for i in range(4): a(f"v_mfma_f32_32x32x16_bf16 {vr(O[i],16)}, {vr(SB[0],4)}, {vr(SB[0],4)}, 0")
        if STAMP: a("s_mov_b64 s[2:3], s[20:21]")
        a(f"s_add_u32 s{t0}, s{rKV}, s{sKVO}")
        a(f"s_addc_u32 s{t1}, s{rKV+1}, 0")
        for k in range(8):
            a(f"s_add_u32 s{KP[k]}, s{t0}, {8192*k + 4096}")
            a(f"s_addc_u32 s{KP[k]+1}, s{t1}, 0")
        if WOT >= 0:
            a(f"s_lshl_b32 s{t0}, s{sidx}, 2")
            a(f"s_add_u32 s{t0}, s{t0}, s{skq}")
            a(f"s_mul_i32 s{t0}, s{t0}, 25")
            a(f"v_min_u32 v{TAU}, 24, v0")
            a(f"v_add_u32 v{TAU}, s{t0}, v{TAU}")
            a(f"v_lshlrev_b32 v{TAU}, 7, v{TAU}")
    def getq(g):
        a(f"s_lshl_b32 s{t1}, s{shs}, 13")
        a(f"s_add_u32 s{t1}, s{t1}, {QX}")
        for i in range(4):
            a(f"s_add_u32 s{t0}, s{skq}, {1+i}")
            a(f"s_and_b32 s{t0}, s{t0}, 3")
            a(f"s_lshl_b32 s{t0}, s{t0}, 11")
            a(f"s_add_u32 s{t0}, s{t0}, s{t1}")
            a(f"v_add_u32 v{u0+i}, s{t0}, v{L16}")
        a(f"v_mov_b32 v{T+4}, {GBC + 8}")
        a(f"v_mov_b32 v{T+5}, {GBC + 12 if g else GBC - 4}")
    def getq2():
        lwait(a, "L_q", 0, 4, 0 if QFAST else 1, T + 4)
        for i in (3, 0, 1, 2):
            a(f"ds_read_b128 {vr(Q[i],4)}, v{u0+i}")
            a(f"ds_read_b128 {vr(Q[i]+4,4)}, v{u0+i} offset:1024")
    def nonce(tag):
        a(f"s_mov_b32 s{t3}, {SPIN}")
        a.lab(f"L_nonce{tag}")
        a(f"v_readfirstlane_b32 s{NONCE}, v{NV}")
        a(f"v_readfirstlane_b32 s{NONCE+1}, v{NV+1}")
        a(f"s_cmp_lg_u32 s{NONCE}, 0")
        a(f"s_cselect_b32 s{t2}, s{NONCE+1}, 0")
        a(f"s_cmp_lg_u32 s{t2}, 0")
        a(f"s_cbranch_scc0 L_nonce_retry{tag}")
    a(f"v_lshrrev_b32 v{u0}, 3, v0")
    a(f"v_lshrrev_b32 v{u1}, 4, v0")
    a(f"v_and_b32 v{u2}, 7, v0")
    a(f"s_lshl_b32 s{t0}, s{srb}, 7")
    a(f"s_lshl_b32 s{t1}, s{sw}, 5")
    a(f"s_add_u32 s{t0}, s{t0}, s{t1}")
    a(f"v_add_u32 v{u3}, s{t0}, v{u0}")
    a(f"v_mul_u32_u24 v{u3}, 896, v{u3}")
    a(f"v_xor_b32 v{u4}, v{u2}, v{u1}")
    a(f"v_lshl_add_u32 v{XD}, v{u4}, 4, v{u3}")
    a(f"v_xor_b32 v{XD+1}, 64, v{XD}")
    a(f"v_add_u32 v{XD+1}, 7168, v{XD+1}")
    a(f"s_mul_i32 s{t0}, s{sg4}, 224")
    a(f"s_mul_i32 s{t1}, s{sw}, {16*2688}")
    a(f"s_add_u32 s{t0}, s{t0}, s{t1}")
    a(f"s_mul_i32 s{t1}, s{shalf}, 896")
    a(f"s_add_u32 s{t1}, s{t1}, s{t0}")
    a(f"s_add_u32 s{t1}, s{t1}, 896")
    a(f"v_lshlrev_b32 v{u3}, 2, v{u1}")
    a(f"v_and_b32 v{u4}, 15, v0")
    a(f"v_xor_b32 v{u4}, v{u4}, v{u3}")
    a(f"v_cmp_lt_u32 vcc, 13, v{u4}")
    a(f"v_mul_u32_u24 v{u1}, 2688, v{u1}")
    a(f"v_lshl_add_u32 v{u1}, v{u4}, 4, v{u1}")
    a(f"v_add_u32 v{WD}, s{t1}, v{u1}")
    a(f"v_bfrev_b32 v{u4}, 2")
    a(f"v_cndmask_b32 v{WD}, v{WD}, v{u4}, vcc")
    a(f"s_mul_i32 s{t1}, s{shalf}, 112")
    a(f"s_add_u32 s{t1}, s{t1}, s{t0}")
    a(f"v_and_b32 v{u3}, 4, v{u3}")
    a(f"v_xor_b32 v{u2}, v{u2}, v{u3}")
    a(f"v_cmp_lt_u32 vcc, 6, v{u2}")
    a(f"v_mul_u32_u24 v{u0}, 2688, v{u0}")
    a(f"v_lshl_add_u32 v{u0}, v{u2}, 4, v{u0}")
    a(f"v_add_u32 v{WD+1}, s{t1}, v{u0}")
    a(f"v_cndmask_b32 v{WD+1}, v{WD+1}, v{u4}, vcc")
    if ROTN > 1:
        a(f"s_mul_i32 s{sROT}, s{srb}, {ROTA}")
        if ROTB:
            a(f"s_mul_i32 s{t0}, s{shalf}, {ROTB}")
            a(f"s_add_u32 s{sROT}, s{sROT}, s{t0}")
        a(f"s_mul_i32 s{t2}, s{sg4}, {ROTC}")
        a(f"s_add_u32 s{sROT}, s{sROT}, s{t2}")
        if ROTN & (ROTN - 1) == 0:
            a(f"s_and_b32 s{sROT}, s{sROT}, {ROTN-1}")
        else:
            a(f"s_mul_i32 s{t2}, s{sROT}, {(65536 + ROTN - 1)//ROTN}")
            a(f"s_lshr_b32 s{t2}, s{t2}, 16")
            a(f"s_mul_i32 s{t2}, s{t2}, {ROTN}")
            a(f"s_sub_u32 s{sROT}, s{sROT}, s{t2}")
        if ROTS != 1: a(f"s_mul_i32 s{sROT}, s{sROT}, {ROTS}")
    else:
        a(f"s_mov_b32 s{sROT}, 0")
    assert (ROTN - 1) * ROTS < 7
    a(f"s_lshl_b32 s{sXL}, s{sw}, 12")
    a(f"s_add_u32 s{sXL}, s{sXL}, {XOFF}")
    a(f"s_mul_i32 s{sWL}, s{sw}, 6144")
    a(f"s_mov_b32 s{rX+2}, 1835008")
    a(f"s_mov_b32 s{rX+3}, 0x00020000")
    a(f"s_mov_b32 s{rW+2}, 1204224")
    a(f"s_mov_b32 s{rW+3}, 0x00020000")
    a(f"s_cmp_eq_u32 s{sb}, 0")
    a("s_waitcnt lgkmcnt(0)")
    a(f"s_cselect_b32 s{rX}, s4, s10")
    a(f"s_cselect_b32 s{rX+1}, s5, s11")
    a(f"s_cselect_b32 s{rW}, s6, s12")
    a(f"s_cselect_b32 s{rW+1}, s7, s13")
    stamp_init()
    stamp(a, "karg")
    def one(kind, i, wl=sWL, ws=sWS_, add=0, first=False):
        xf, wf = (XF0, WF0) if first else (XF, WF)
        if kind == "x":
            a(f"s_add_u32 m0, s{sXL}, {1024*i}")
            a(f"s_add_u32 s{t0}, s{sXS}, {14336*(i//2)}")
            a(f"buffer_load_dwordx4 v{XD+(i&1)}, {S4(rX)}, s{t0} offen {xf} lds")
        else:
            G, q = divmod(i, 3)
            a(f"s_add_u32 m0, s{wl}, {1024*i + add}")
            a(f"s_add_u32 s{t0}, s{ws}, {(8*G + (4*q if q < 2 else 0))*2688}")
            a(f"buffer_load_dwordx4 v{WD+(q==2)}, {S4(rW)}, s{t0} offen {wf} lds")
    sB4, sB5, sB6 = scg, su, sFB
    def issue(first):
        a(f"s_lshl_b32 s{sXS}, s{sROT}, 7")
        a(f"s_mul_i32 s{sWS_}, s{sROT}, 172032")
        for kind, i in [("x", 0), ("w", 0), ("x", 1), ("w", 1), ("x", 2), ("w", 3), ("x", 3), ("w", 4)]: one(kind, i, first=first)
        if not first:
            a(f"s_mov_b32 s{sB4}, s{sB5}")
            a(f"s_mov_b32 s{sB5}, s{sB6}")
            a(f"s_mov_b32 s{sB6}, s{sWS_}")
            a(f"s_cmp_ge_u32 s{stt}, 4")
            a("s_cbranch_scc1 L_nob")
        one("w", 2, first=first); one("w", 5, first=first)
        if not first:
            a("s_branch L_nobr")
            a.lab("L_nob")
            a("s_waitcnt vmcnt(8)")
            a.lab("L_nobr")
        a(f"s_add_u32 s{sROT}, s{sROT}, 1")
        a(f"s_cmp_eq_u32 s{sROT}, 7")
        a(f"s_cselect_b32 s{sROT}, 0, s{sROT}")
        if first:
            a(f"s_add_u32 s{sWL}, s{sWL}, {STAGE}")
            a(f"s_add_u32 s{sXL}, s{sXL}, {STAGE}")
        else:
            a(f"s_cmp_ge_u32 s{sWL}, {2*STAGE}")
            a(f"s_mov_b32 s{t0}, {STAGE}")
            a(f"s_cselect_b32 s{t0}, {(-2*STAGE) & 0xffffffff:#x}, s{t0}")
            a(f"s_add_u32 s{sWL}, s{sWL}, s{t0}")
            a(f"s_add_u32 s{sXL}, s{sXL}, s{t0}")
    if LPR: a(f"s_setprio {LPR}")
    issue(True)
    stamp(a, "iss0")
    a(f"s_mov_b32 s{stt}, 1")
    a(f"s_mov_b32 s{su}, 0")
    a(f"s_mov_b32 s{sFB}, 0")
    dbg_desc()
    ids2a(0)
    a(f"s_lshr_b32 s{t0}, s{srb}, 1")
    a(f"s_lshl_b32 s{t0}, s{t0}, 7")
    a(f"s_add_u32 s{sWOS}, s{t0}, s{sKVO}")
    a(f"v_lshlrev_b32 v{PTA}, 10, v0")
    ids2b(0)
    a(f"v_lshrrev_b32 v{u2}, 5, v0")
    a(f"s_and_b32 s{t1}, s{sidx}, 3")
    a(f"s_cmp_eq_u32 s{t1}, 3")
    a(f"s_cselect_b32 s{t0}, 8, 16")
    a(f"s_lshl_b32 s{t1}, s{t1}, 8")
    a(f"v_lshrrev_b32 v{u0}, 4, v0")
    a(f"v_lshlrev_b32 v{u1}, 2, v{u0}")
    a(f"v_and_b32 v{u3}, 15, v0")
    a(f"v_xor_b32 v{u1}, v{u1}, v{u3}")
    a(f"v_cmp_le_u32 vcc, s{t0}, v{u1}")
    a(f"v_mul_u32_u24 v{u0}, 896, v{u0}")
    a(f"v_lshl_add_u32 v{u0}, v{u1}, 4, v{u0}")
    a(f"v_add_u32 v{WOA}, s{t1}, v{u0}")
    a(f"v_bfrev_b32 v{u0}, 2")
    a(f"v_cndmask_b32 v{WOA}, v{WOA}, v{u0}, vcc")
    a(f"s_lshl_b32 s{t2}, s{skq}, 2")
    a(f"s_cmp_lt_u32 s{t2}, s{t0}")
    a(f"s_cselect_b32 s{XM}, 1, 0")
    a(f"s_mul_i32 s{sOUTO}, s{sb}, 896")
    a(f"s_add_u32 s{sOUTO}, s{sOUTO}, s{t1}")
    a(f"s_lshl_b32 s{t1}, s{skq}, 6")
    a(f"s_add_u32 s{sOUTO}, s{sOUTO}, s{t1}")
    a(f"s_lshl_b32 s{sRT}, s{sg4}, 3")
    a(f"s_lshr_b32 s{t0}, s{sidx}, 2")
    a(f"s_add_u32 s{sRT}, s{sRT}, s{t0}")
    a(f"s_bfe_u32 s{sPE}, s{sRT}, 0x10001")
    a(f"s_lshl_b32 s{sRT}, s{sRT}, 1")
    a(f"v_bfe_u32 v{u0}, v0, 2, 2")
    a(f"v_xor_b32 v{u1}, s{skq}, v{u0}")
    a(f"v_lshlrev_b32 v{u1}, 6, v{u1}")
    a(f"v_lshl_add_u32 v{u1}, v{u0}, 8, v{u1}")
    a(f"v_and_b32 v{u0}, 1, v0")
    a(f"v_lshl_add_u32 v{u1}, v{u0}, 5, v{u1}")
    a(f"v_bfe_u32 v{u0}, v0, 4, 1")
    a(f"v_lshl_add_u32 v{u1}, v{u0}, 4, v{u1}")
    a(f"v_bfe_u32 v{u0}, v0, 1, 1")
    a(f"v_lshl_add_u32 v{u1}, v{u0}, 3, v{u1}")
    HSTEP = [4, 28, 56]
    for t in range(3):
        a(f"v_mul_u32_u24 v{u0}, {HSTEP[t]*256}, v{u2}")
        a(f"v_add_u32 v{WA+t}, v{u1}, v{u0}")
    a(f"v_mov_b32 v{OA}, v{L16}")
    a(f"v_and_b32 v{u0}, 31, v0")
    a(f"v_mul_u32_u24 v{u1}, 1792, v{u2}")
    a(f"v_lshl_add_u32 v{OA+1}, v{u0}, 4, v{u1}")
    a(f"v_mul_u32_u24 v{u1}, 3584, v{u2}")
    a(f"v_lshl_add_u32 v{OA+2}, v{u0}, 3, v{u1}")
    a(f"s_lshl_b32 s{t0}, s{skq}, 12")
    a(f"s_add_u32 s{t0}, s{t0}, {TX}")
    a(f"v_add_u32 v{TR}, s{t0}, v{L16}")
    a(f"v_bfe_u32 v{u1}, v0, 1, 2")
    a(f"v_lshlrev_b32 v{u3}, 1, v{u2}")
    a(f"v_xor_b32 v{u1}, v{u1}, v{u3}")
    a(f"v_lshlrev_b32 v{u1}, 4, v{u1}")
    a(f"v_lshl_add_u32 v{u1}, v{u0}, 6, v{u1}")
    a(f"v_add_u32 v{TW}, s{t0}, v{u1}")
    a(f"v_xor_b32 v{TW+1}, 16, v{TW}")
    a(f"v_lshrrev_b32 v{u0}, 2, v0")
    a(f"s_lshl_b32 s{t0}, s{sRT}, 5")
    a(f"v_add_u32 v{u0}, s{t0}, v{u0}")
    a(f"v_mul_u32_u24 v{u0}, 1792, v{u0}")
    a(f"v_lshrrev_b32 v{u1}, 3, v0")
    a(f"v_xor_b32 v{u1}, v{u1}, v0")
    a(f"v_and_b32 v{u1}, 3, v{u1}")
    a(f"v_lshl_add_u32 v{OUTA}, v{u1}, 4, v{u0}")
    a(f"s_lshr_b32 s{t1}, s{skq}, 1")
    a(f"s_add_u32 s{t0}, s{sRT}, s{t1}")
    a(f"s_lshl_b32 s{t0}, s{t0}, 4")
    a(f"s_lshl_b32 s{t1}, s{sPE}, 3")
    a(f"s_add_u32 s{t0}, s{t0}, s{t1}")
    a(f"s_and_b32 s{t1}, s{skq}, 1")
    a(f"s_lshl_b32 s{t1}, s{t1}, 1")
    a(f"s_lshl_b32 s{t1}, s{t1}, 1")
    a(f"s_add_u32 s{sRT}, s{t0}, s{t1}")
    a(f"v_and_b32 v{u0}, 3, v0")
    a(f"v_add_u32 v{u0}, s{sRT}, v{u0}")
    a(f"v_mul_u32_u24 v{u0}, {F2SP}, v{u0}")
    a(f"v_add_u32 v{F2A}, {B_F2}, v{u0}")
    getq(0)
    a.lab("L_ld")
    issue(False)
    a(f"s_add_u32 s{stt}, s{stt}, 1")
    a(f"s_cmp_lt_u32 s{stt}, 7")
    a("s_waitcnt vmcnt(10)")
    a("s_barrier")
    a("s_cbranch_scc1 L_ld")
    a(f"s_mul_i32 s{sWL}, s{sw}, 6144")
    for ws, st_ in ((sB6, 0), (sB4, 1), (sB5, 2)):
        one("w", 2, sWL, ws, st_ * STAGE); one("w", 5, sWL, ws, st_ * STAGE)
    a(f"buffer_load_dwordx2 {vr(NV,2)}, off, {S4(rDBG)}, s{sDL} sc1")
    m_ = (1 << max(1, 4 * PRET)) - 1
    def touch():
        a(f"buffer_load_dword v{T+9}, v{F1A}, {S4(rWS)}, 0 offen sc1")
        a(f"s_mov_b32 exec_lo, {m_ & 0xffffffff:#x}")
        a(f"s_mov_b32 exec_hi, {m_ >> 32:#x}")
        a(f"buffer_load_dword v{T+8}, v{PTA}, {S4(rKV)}, s{sWOS} offen {TF}")
        a("s_mov_b64 exec, -1")
    if TEAR != 1: touch()
    NX = 1 if TEAR == 1 else 3
    a(f"s_waitcnt vmcnt({6 + NX})")
    stamp(a, "lw6")
    a("s_barrier")
    if LPR: a("s_setprio 0")
    pre2()
    if B2:
        a(f"s_waitcnt vmcnt({NX + 2})")
        a("s_barrier")
    a(f"s_waitcnt vmcnt({NX})")
    a("s_barrier")
    def touch2():
        m2 = ((1 << (4 * PRET2)) - 1) & ~m_
        a(f"s_mov_b32 exec_lo, {m2 & 0xffffffff:#x}")
        a(f"s_mov_b32 exec_hi, {m2 >> 32:#x}")
        a(f"buffer_load_dword v{T+10}, v{PTA}, {S4(rKV)}, s{sWOS} offen sc1")
        a("s_mov_b64 exec, -1")
    if PRET2 and T2POS == "b6": touch2()
    a(f"s_waitcnt vmcnt({NX - 1})")
    nonce("L")
    if PRET2 and T2POS == "late": touch2()
    a("s_setprio 2")
    stamp(a, "lready")
    a("s_branch L_ph2")

    a.lab("L_comp")
    a("s_setprio 3")
    a(f"s_getreg_b32 s{t2}, hwreg(HW_REG_XCC_ID)")
    a(f"s_and_b32 s{t2}, s{t2}, 15")
    a(f"s_lshl_b32 s{t0}, s{sx}, 4")
    a(f"s_or_b32 s{t2}, s{t2}, s{t0}")
    a(f"s_or_b32 s{t2}, s{t2}, 0x80")
    a(f"s_lshl_b32 s{t1}, s{sg4}, 5")
    a(f"s_add_u32 s{t1}, s{t1}, 128")
    a(f"v_mov_b32 v{NV}, s{t2}")
    a(f"v_and_b32 v{NA}, 3, v0")
    a(f"v_lshlrev_b32 v{NA}, 3, v{NA}")
    a(f"v_add_u32 v{NA}, s{t1}, v{NA}")
    a(f"s_add_u32 s{t1}, s{t1}, s{sidx}")
    a("v_mov_b32 v238, 0")
    a("v_mov_b32 v239, 0")
    a("s_waitcnt lgkmcnt(0)")
    def ftouch(pairs, wave, tag):
        a(f"s_cmp_lg_u32 s{sw}, {wave}")
        a(f"s_cbranch_scc1 L_ft{tag}")
        a(f"s_add_u32 s{t0}, s{sg4}, 1")
        a(f"s_and_b32 s{t0}, s{t0}, 2")
        a(f"s_cbranch_scc1 L_ft{tag}")
        a(f"s_and_b32 s{t0}, s{sg4}, 1")
        a(f"s_lshl_b32 s{t0}, s{t0}, 5")
        a(f"s_add_u32 s{t0}, s{t0}, s{sidx}")
        a(f"v_and_b32 v{T+6}, 31, v0")
        a(f"v_lshrrev_b32 v{T+7}, 5, v0")
        a(f"v_mul_u32_u24 v{T+8}, 896, v{T+6}")
        a(f"v_lshl_add_u32 v{T+8}, v{T+7}, 7, v{T+8}")
        a(f"v_min_u32 v{T+6}, 20, v{T+6}")
        a(f"v_mul_u32_u24 v{T+7}, 172032, v{T+7}")
        a(f"v_lshl_add_u32 v{T+9}, v{T+6}, 7, v{T+7}")
        a(f"s_mul_i32 s{t3}, s{t0}, {32*896}")
        a(f"s_mul_i32 s{t0}, s{t0}, 2688")
        for pr in pairs:
            c_ = 2 * int(pr) - 1
            a(f"s_add_u32 s{sROT}, s{t0}, {c_*172032}")
            a(f"buffer_load_dword v{T+10}, v{T+9}, {S4(rW)}, s{sROT} offen")
            a(f"buffer_load_dword v{T+11}, v{T+8}, {S4(rX)}, s{t3} offen offset:{c_*128}")
        a.lab(f"L_ft{tag}")
    if FT:
        a(f"s_cmp_eq_u32 s{sb}, 0")
        a(f"s_cselect_b32 s{rX}, s4, s10")
        a(f"s_cselect_b32 s{rX+1}, s5, s11")
        a(f"s_cselect_b32 s{rW}, s6, s12")
        a(f"s_cselect_b32 s{rW+1}, s7, s13")
        a(f"s_mov_b32 s{rX+2}, 1835008")
        a(f"s_mov_b32 s{rX+3}, 0x00020000")
        a(f"s_mov_b32 s{rW+2}, 1204224")
        a(f"s_mov_b32 s{rW+3}, 0x00020000")
        ftouch(FT.split("/")[0], 5, "a")
    dbg_desc()
    a(f"s_mul_i32 s{XM}, s{t2}, 0x01010101")
    a(f"s_mov_b32 s{XM+1}, s{XM}")
    a("s_mov_b64 exec, 1")
    a(f"v_mov_b32 v{NA}, s{sDL}")
    a(f"s_cmp_lg_u32 s{sw}, 4")
    a("s_cbranch_scc1 L_noreg")
    a(f"buffer_store_byte v{NV}, off, {S4(rDBG)}, s{t1}")
    if UBY: a(f"buffer_load_ubyte v{T+12}, off, {S4(rDBG)}, s{t1} sc1")
    a(f"s_cmp_lg_u32 s{sidx}, 0")
    a("s_cbranch_scc1 L_noreg")
    a(f"s_or_b32 s{t0}, s{RT}, 1")
    a(f"s_or_b32 s{t2}, s{RT+1}, 1")
    a(f"v_mov_b32 v236, s{t0}")
    a(f"v_mov_b32 v237, s{t2}")
    a(f"buffer_atomic_cmpswap_x2 v[236:239], off, {S4(rDBG)}, s{sDL} sc1")
    a.lab("L_noreg")
    a("s_mov_b64 exec, -1")
    stamp_init()
    a(f"s_and_b32 s{stt}, s{sw}, 1")
    a(f"s_bfe_u32 s{scg}, s{sw}, 0x10001")
    a(f"v_and_b32 v{u0}, 31, v0")
    a(f"v_bfe_u32 v{u1}, v0, 1, 3")
    a(f"v_lshrrev_b32 v{u2}, 5, v0")
    a(f"v_xor_b32 v{u1}, v{u1}, v{u2}")
    a(f"v_lshlrev_b32 v{u1}, 4, v{u1}")
    a(f"v_lshl_add_u32 v{u1}, v{u0}, 7, v{u1}")
    a(f"s_lshl_b32 s{t0}, s{stt}, 13")
    a(f"s_add_u32 s{t0}, s{t0}, {XOFF}")
    for ks in range(4):
        a(f"v_xor_b32 v{XA+ks}, {32*ks}, v{u1}")
        a(f"v_add_u32 v{XA+ks}, s{t0}, v{XA+ks}")
    a(f"v_bfe_u32 v{u0}, v0, 4, 1")
    a(f"v_and_b32 v{u1}, 3, v0")
    a(f"v_lshlrev_b32 v{u1}, 3, v{u1}")
    a(f"v_lshl_add_u32 v{u0}, v{u0}, 5, v{u1}")
    a(f"s_mul_i32 s{t0}, s{scg}, 112")
    a(f"v_add_u32 v{WA1}, s{t0}, v{u0}")
    a(f"v_add_u32 v{WA1+1}, 56, v{WA1}")
    a(f"s_mul_i32 s{t0}, s{scg}, 56")
    a(f"v_add_u32 v{WA1+2}, s{t0}, v{u0}")
    a("s_mov_b32 exec_lo, 0x88880000")
    a("s_mov_b32 exec_hi, 0x88880000")
    a(f"v_or_b32 v{WA1}, 192, v{WA1}")
    a(f"v_or_b32 v{WA1+1}, 192, v{WA1+1}")
    a(f"v_or_b32 v{WA1+2}, 64, v{WA1+2}")
    a("s_mov_b64 exec, -1")
    a(f"v_bfe_u32 v{u1}, v0, 2, 2")
    a(f"v_mul_u32_u24 v{u2}, 3072, v{u2}")
    a(f"v_lshl_add_u32 v{u3}, v{u1}, 8, v{u2}")
    a(f"v_lshlrev_b32 v{u4}, 6, v{u1}")
    for c in range(2):
        a(f"v_xor_b32 v{WA1+c}, v{WA1+c}, v{u4}")
        a(f"v_add_u32 v{WA1+c}, v{WA1+c}, v{u3}")
    a(f"v_lshl_add_u32 v{u3}, v{u1}, 7, v{u2}")
    a(f"v_lshlrev_b32 v{u4}, 5, v{u1}")
    a(f"v_and_b32 v{u4}, 64, v{u4}")
    a(f"v_xor_b32 v{WA1+2}, v{WA1+2}, v{u4}")
    a(f"v_add_u32 v{WA1+2}, v{WA1+2}, v{u3}")
    Z = FR + 60
    for r in range(20): a(f"v_mov_b32 v{Z+r}, 0")
    a(f"v_mov_b32 v{u0}, {GBC}")
    a(f"ds_write_b128 v{u0}, {vr(Z+16,4)}")
    a(f"ds_write_b128 v{u0}, {vr(Z+16,4)} offset:16")
    for t_ in range(6): a(f"v_mfma_f32_32x32x16_bf16 {vr(ACC+16*t_,16)}, {vr(Z+16,4)}, {vr(Z+16,4)}, 0")
    a("s_mov_b32 exec_hi, 0")
    a(f"v_mov_b32 v{Z}, 0x3f80")
    a(f"v_mov_b32 v{Z+4}, 0x3f80")
    a("s_mov_b32 exec_lo, 0x10000000")
    a(f"v_mov_b32 v{Z+8}, 0x3f80")
    a(f"v_mov_b32 v{Z+12}, 0x3f80")
    a("s_mov_b64 exec, -1")
    def capture(f):
        keep = a.l; a.l = []
        f()
        got = [x.strip() for x in a.l]; a.l = keep
        return got
    lateA = capture(lambda: ids2a(1, False)); lateB = capture(lambda: ids2b(1))
    ws_desc()
    a(f"v_lshlrev_b32 v{L16}, 4, v0")
    a(f"v_and_b32 v{u0}, 0x33, v0")
    a(f"v_bfe_u32 v{u1}, v0, 2, 1")
    a(f"v_lshl_add_u32 v{u0}, v{u1}, 3, v{u0}")
    a(f"v_bfe_u32 v{u1}, v0, 3, 1")
    a(f"v_lshl_add_u32 v{u0}, v{u1}, 2, v{u0}")
    a(f"v_lshlrev_b32 v{TAU}, 4, v{u0}")
    sE0, sSC, sDLT, sCNT = sXS, sWS_, sWL, sXL
    a(f"s_lshl_b32 s{t0}, s{scg}, 2")
    a(f"s_lshr_b32 s{t1}, s{srb}, 2")
    a(f"s_add_u32 s{t0}, s{t0}, s{t1}")
    a(f"s_mul_i32 s{sF1O}, s{t0}, {F1SP}")
    a(f"s_lshl_b32 s{t0}, s{shalf}, 2")
    a(f"s_and_b32 s{t1}, s{srb}, 3")
    a(f"s_add_u32 s{t0}, s{t0}, s{t1}")
    a(f"s_lshl_b32 s{t0}, s{t0}, 1")
    a(f"s_add_u32 s{t0}, s{t0}, s{stt}")
    a(f"s_lshl_b32 s{t0}, s{t0}, 3")
    a(f"s_add_u32 s{sF1O}, s{sF1O}, s{t0}")
    a(f"s_add_u32 s{sF1O}, s{sF1O}, {X_F1}")
    a(f"s_lshl_b32 s{t0}, s{srb}, 1")
    a(f"s_add_u32 s{t0}, s{t0}, s{stt}")
    a(f"s_lshl_b32 s{t1}, s{scg}, 6")
    a(f"s_add_u32 s{t0}, s{t0}, s{t1}")
    a(f"s_lshl_b32 s{sE0}, s{t0}, 13")
    SE = [sE0, rX, rX + 1, rX + 2]
    for t_, d_ in ((1, 4096), (2, 64 * 4096), (3, 65 * 4096)): a(f"s_add_u32 s{SE[t_]}, s{sE0}, {d_}")
    a(f"s_sub_u32 s{t0}, s{sw}, 4")
    a(f"s_lshl_b32 s{t0}, s{t0}, 12")
    a(f"s_add_u32 s{t0}, s{t0}, {QX}")
    a(f"v_add_u32 v{QW}, s{t0}, v{L16}")
    a(f"s_mov_b32 s{sSC}, {CSCALE:#x}")
    a(f"s_mov_b32 s{sCNT}, 0")
    a(f"s_mov_b32 s{sDLT}, 0")
    if FT and FT.split("/")[1]: ftouch(FT.split("/")[1], 6, "b")
    if CPF:
        a(f"s_cmp_lg_u32 s{sw}, 5")
        a("s_cbranch_scc1 L_nocpf")
        a(f"s_sub_u32 s{t0}, s{sidx}, 1")
        a(f"s_cmp_ge_u32 s{t0}, 3")
        a("s_cbranch_scc1 L_nocpf")
        a(f"s_getpc_b64 {S2(NONCE)}")
        a.lab("L_pc")
        a(f"s_lshl_b32 s{t0}, s{t0}, 13")
        a(f"v_lshlrev_b32 v{u0}, 7, v0")
        a(f"v_add_u32 v{u0}, s{t0}, v{u0}")
        a(f"v_min_u32 v{u0}, L_fallback-L_pc, v{u0}")
        a(f"global_load_dword v{T+10}, v{u0}, {S2(NONCE)}")
        a.lab("L_nocpf")
    a(f"s_cmp_lg_u32 s{shalf}, 0")
    a("s_cbranch_scc1 P1_v1")
    def reads(ks):
        b = FR + 20 * ks
        out = [f"ds_read_b128 {vr(b+4*e,4)}, v{XA+ks} offset:{4096*e}" for e in range(2)]
        for c in range(3):
            for h in range(2):
                off = 6144 * ks + (1024 * h if c < 2 else 2048 + 512 * h)
                out.append(f"ds_read_b64_tr_b16 {vr(b+8+4*c+2*h,2)}, v{WA1+c} offset:{off}")
        return [out[0], out[2], out[3], out[1]] + out[4:]
    def mfma1(ks, e, c, ori):
        b = FR + 20 * ks
        x = vr(b + 4 * e, 4); w = vr(b + 8 + 4 * c, 4)
        p, q = (w, x) if ori[c] == 'n' else (x, w)
        d = vr(ACC + 16 * (2 * c + e), 16)
        return f"v_mfma_f32_32x32x16_bf16 {d}, {p}, {q}, {d}"
    tiles = [(0, 0), (1, 0), (0, 1), (1, 1), (0, 2), (1, 2)]
    pend = []; cnt = [0]; ctx = [""]
    def epi(t_):
        e, c = tiles[t_]
        d = ACC + 16 * (2 * c + e)
        P = d
        out = []
        if c == 2: out += [[f"v_mul_f32 v{d+r}, s{sSC}, v{d+r}"] for r in range(16)]
        out += [[f"v_cvt_pk_bf16_f32 v{P+i}, v{d+2*i}, v{d+2*i+1}"] for i in range(8)]
        if c == 2:
            out += [[f"ds_write_b128 v{QW}, {vr(P,4)} offset:{2048*e}"], [f"ds_write_b128 v{QW}, {vr(P+4,4)} offset:{2048*e+1024}"]]
        else:
            out.insert(4, ("st", t_, 0, P)); out.append(("st", t_, 1, P + 4))
        return out
    def emit(x):
        a(x); cnt[0] += 1
    def drain(nmax):
        n_ = 0
        while pend and n_ < nmax and pend[0][0] <= cnt[0]:
            g_ = pend.pop(0)[1]
            if g_[0] == "st": stq.append(g_)
            else:
                for x in g_: emit(x)
                n_ += len(g_)
    stq = []; nm = [0, -99]
    def store():
        if not stq or nm[0] - nm[1] < SP: return 0
        _, t_, f, P = stq.pop(0)
        tag = f"{ctx[0]}{t_}{f}"
        emit(f"s_cbranch_vccz L_wt{tag}")
        emit(f"buffer_store_dwordx4 {vr(P,4)}, v{TAU}, {S4(rWS)}, s{SE[t_]} offen offset:{1024*f} {KVS}")
        a.lab(f"L_st{tag}")
        if f: stamp(a, f"st{t_}")
        tails.append((tag, P, SE[t_], 1024 * f)); nm[1] = nm[0]
        return 2
    def fill(nmax):
        if pend and pend[0][0] > cnt[0]:
            gap = min(nmax - 1, pend[0][0] - cnt[0])
            a(f"s_nop {gap-1}"); cnt[0] += gap
            nmax -= gap
        drain(nmax)
    for v, ori in enumerate(["nnn", "vvn"]):
        a.lab(f"P1_v{v}")
        if v == 1: a(f"v_add_u32 v{TAU}, 2048, v{L16}")
        a("s_waitcnt lgkmcnt(0)")
        stamp(a, "setup")
        mm = [(e, c) for c in range(3) for e in range(2)]
        def cstamps():
            if STAMP or DIAG:
                if len(DIAG) == 2 and DIAG[0] == "c" and DIAG != "c0":
                    a("s_memrealtime s[82:83]")
                    a(f"s_cmp_eq_u32 s{sCNT}, {int(DIAG[1])}")
                    a("s_waitcnt lgkmcnt(0)")
                    a("s_cselect_b32 s80, s82, s80")
                for nm in (STL if STAMP else []):
                    if len(nm) == 2 and nm[0] == "c" and nm != "c0":
                        a(f"s_cmp_eq_u32 s{sCNT}, {int(nm[1])}")
                        a(f"s_cbranch_scc1 L_ns{v}{nm}")
                        a.lab(f"L_nb{v}{nm}")
                        stails.append((f"{v}{nm}", nm))
        a("s_barrier")
        stamp(a, "c0")
        for x in reads(0): a(x)
        if FT and len(FT.split("/")) > 2: ftouch(FT.split("/")[2], 7, f"c{v}")
        a.raw(".p2align 6")
        a.lab(f"P1_loop{v}")
        for ks, rk in ((3, 1), (0, 2), (1, 3)):
            rd = reads(rk)
            if ks != 3: a("s_waitcnt lgkmcnt(8)")
            for j, (e, c) in enumerate(mm):
                a(mfma1(ks, e, c, ori))
                for x in rd[2*j:2*j+2]: a(x)
                if ks == 3 and j == 4:
                    a(f"s_add_u32 s{sCNT}, s{sCNT}, 1")
                    a(f"s_mov_b32 s{sDLT}, {STAGE}")
                if ks == 0 and j == 4:
                    a(f"s_cmp_eq_u32 s{sCNT}, 3")
                    a(f"s_cselect_b32 s{sDLT}, {(-2*STAGE) & 0xffffffff:#x}, s{sDLT}")
                if ks == 1 and j == 4:
                    for i in range(4): a(f"v_add_u32 v{XA+i}, s{sDLT}, v{XA+i}")
                if ks == 1 and j == 5:
                    for i in range(4, 7): a(f"v_add_u32 v{XA+i}, s{sDLT}, v{XA+i}")
        a("s_waitcnt lgkmcnt(8)")
        rd = reads(0)
        for j, (e, c) in enumerate(mm):
            a(mfma1(2, e, c, ori))
            if j == BPOS - 1: a("s_waitcnt lgkmcnt(0)")
            if j == BPOS:
                a("s_barrier")
                cstamps()
            if j > BPOS:
                n_ = -(-8 // (5 - BPOS)) if j < 5 else 8
                for x in rd[:n_]: a(x)
                rd = rd[n_:]
        if BPOS == 5:
            for x in rd: a(x)
        a(f"s_cmp_lt_u32 s{sCNT}, 4")
        a(f"s_cbranch_scc1 P1_loop{v}")
        m4 = mm[:4]
        for ch in (4, 5):
            dl = STAGE if ch == 4 else (-2 * STAGE) & 0xffffffff
            for ks, rk in ((3, 1), (0, 2), (1, 3)):
                rd = reads(rk)[:6]
                if ks != 3: a("s_waitcnt lgkmcnt(6)")
                for j, (e, c) in enumerate(mm if (ch == 4 and ks == 3) else m4):
                    a(mfma1(ks, e, c, ori))
                    for x in rd[2*j:2*j+2]: a(x)
                    if ch == 5 and ks == 3 and j == 0:
                        a(f"buffer_load_dwordx2 {vr(NV,2)}, v{NA}, {S4(rDBG)}, 0 offen sc1")
                    if ks == 0 and j == 3: a(f"s_mov_b32 s{sDLT}, {dl:#x}")
                    if ks == 1 and j == 3:
                        for i in range(4): a(f"v_add_u32 v{XA+i}, s{sDLT}, v{XA+i}")
            a("s_waitcnt lgkmcnt(6)")
            rd = reads(0)[:6]
            a(mfma1(2, *m4[0], ori))
            for i in range(4, 7): a(f"v_add_u32 v{XA+i}, s{sDLT}, v{XA+i}")
            a("s_waitcnt lgkmcnt(0)")
            a(mfma1(2, *m4[1], ori))
            a("s_barrier")
            stamp(a, f"d{ch+1}")
            a(mfma1(2, *m4[2], ori))
            for x in rd[:3]: a(x)
            a(mfma1(2, *m4[3], ori))
            for x in rd[3:]: a(x)
        rd = reads(1)[:6] + reads(2)[:6]
        for j, (e, c) in enumerate(m4):
            a(mfma1(3, e, c, ori))
            for x in rd[3*j:3*j+3]: a(x)
        for x in reads(3)[:4]: a(x)
        ctx[0] = str(v); pend.clear(); cnt[0] = 0; stq.clear(); nm[:] = [0, -99]
        seq = [(0, 0), (0, 1), (1, 0), (1, 1), (2, 0), (2, 1), (3, 0), (3, 1)] + [(k, t_) for t_ in range(2, 4) for k in range(4)]
        for i, (k, t_) in enumerate(seq):
            if i == 0: emit("s_waitcnt lgkmcnt(14)")
            if i == 2: emit("s_waitcnt lgkmcnt(12)")
            if i == 4: emit("s_waitcnt lgkmcnt(6)")
            if i == 6:
                emit("s_waitcnt vmcnt(0) lgkmcnt(0)")
                stamp(a, "last")
            emit(mfma1(k, *tiles[t_], ori))
            first = cnt[0]; nm[0] += 1
            store()
            if i == 0:
                for x in reads(3)[4:6]: emit(x)
            if i == 6:
                emit(f"v_cmp_eq_u64 vcc, {S2(XM)}, {vr(NV,2)}")
                emit(f"s_and_b32 s{t0}, vcc_lo, 0xf0")
                emit(f"s_cmp_eq_u32 s{t0}, 0xf0")
                emit(f"s_cselect_b32 s{sLOC}, {1 if LOCAL else 0}, 0")
                emit(f"s_cselect_b64 vcc, {-1 if LOCAL else 0}, 0")
            if k == 3: pend.extend((first + 12, g_) for g_ in epi(t_))
            if i == QB:
                emit("s_barrier")
                stamp(a, "bar7")
                for ks in range(2):
                    for x in reads(ks)[6:]: emit(x)
            elif i == QB + 1:
                for ks in range(2, 4):
                    for x in reads(ks)[6:]: emit(x)
            elif i != 6 and i != 15: fill(6)
        snap = (list(pend), cnt[0], list(stq), list(nm))
        if v == 0: a("s_branch P1_done")
    a.lab("P1_done")
    ctx[0] = "c"; pend[:] = snap[0]; cnt[0] = snap[1]; stq[:] = snap[2]; nm[:] = snap[3]
    if QB > 15:
        while pend: fill(99 if pend[0][0] <= cnt[0] else 13)
        emit("s_barrier")
        for ks in range(4):
            for x in reads(ks)[6:]: emit(x)
    def qreads(ks, base):
        b = FR + 20 * ks
        return [f"ds_read_b128 {vr(b,4)}, v{XA+ks} offset:{base}",
                f"ds_read_b64_tr_b16 {vr(b+16,2)}, v{WA1+2} offset:{base + 6144*ks + 2048}",
                f"ds_read_b64_tr_b16 {vr(b+18,2)}, v{WA1+2} offset:{base + 6144*ks + 2560}",
                f"ds_read_b128 {vr(b+4,4)}, v{XA+ks} offset:{base + 4096}"]
    def flag1():
        assert not any(g_[1][0] == "st" for g_ in pend) and not stq
        stamp(a, "prefl")
        nonce("C")
        a("s_mov_b64 exec, 1")
        a(f"s_cmp_eq_u32 s{sLOC}, 0")
        a("s_waitcnt vmcnt(0)")
        a("s_cbranch_scc1 L_f1wt")
        a(f"buffer_store_dwordx2 {vr(NV,2)}, off, {S4(rWS)}, s{sF1O}")
        a.lab("L_f1st")
        a("s_mov_b64 exec, -1")
        stamp(a, "ack1")
        cnt[0] += 10
    def late(nmax):
        q_ = lateB if (not lateA or (nq <= FPOS < 12)) and False else (lateA if lateA else lateB)
        if lateA and len(lateA) == nA and nq <= FPOS < 12: return
        for _ in range(min(nmax, len(q_))): emit(q_.pop(0))
    nA = len(lateA)
    nq = 0
    for rnd in range(3):
        order_ = [(ks, e) for ks in range(4) for e in range(2)] if rnd < 2 else [(0, 0), (0, 1), (1, 0), (2, 0), (3, 0), (1, 1), (2, 1), (3, 1)]
        for j, (ks, e) in enumerate(order_):
            if rnd == 0 and e == 0: emit(f"s_waitcnt lgkmcnt({6 + 2*ks})")
            if rnd == 1 and e == 0: emit("s_waitcnt lgkmcnt(12)")
            if rnd == 2 and e == 0: emit(f"s_waitcnt lgkmcnt({12 - 4*ks})")
            emit(mfma1(ks, e, 2, "nnn"))
            first = cnt[0]; nm[0] += 1
            store()
            nq += 1
            if B2 and rnd == 1 and j == 0: emit("s_barrier")
            if rnd < 2 and e == 1:
                if rnd == 1:
                    emit(f"v_add_u32 v{XA+ks}, {STAGE}, v{XA+ks}")
                    if ks == 0: emit(f"v_add_u32 v{WA1+2}, {STAGE}, v{WA1+2}")
                for x in qreads(ks, STAGE): emit(x)
                drain(2)
                late(2)
            elif nq != FPOS:
                if pend: fill(6)
                else: late(6)
            if rnd == 2 and ks == 3: pend.extend((first + 12, g_) for g_ in epi(4 + e))
            if nq == FPOS:
                if len(lateA) != nA:
                    while lateA: emit(lateA.pop(0))
                flag1()
    a(f"v_mov_b32 v{CA}, {GBC + 4}")
    a(f"v_mov_b32 v{ONE}, 1")
    cnt[0] += 2
    nm[0] += 99; store(); assert not stq
    if FPOS > 24:
        nq0 = len(pend) - 26 if FPOS == 25 else len(pend)
        while len(pend) > (26 if FPOS == 25 else 0): fill(1 if pend[0][0] <= cnt[0] else 13)
        if FPOS == 25:
            while lateA: emit(lateA.pop(0))
            flag1()
    while pend: fill(99 if pend[0][0] <= cnt[0] else 13)
    arrive(a, 4)
    stamp(a, "p1end")
    if FPOS == 26:
        while lateA: emit(lateA.pop(0))
        flag1()
    a("s_setprio 1")
    while lateA: a(lateA.pop(0))
    while lateB: a(lateB.pop(0))
    pre2()
    getq(1)
    a.lab("L_ph2")
    a.vreset()
    if PIPE:
        a("s_mov_b64 exec, 0xffff")
        poll_pipe(a, "L_f1", F1A, rWS, "sc1", [T + 10, T + 14])
        a("s_mov_b64 exec, -1")
        a.vm.append("poll")
    else: poll(a, "L_f1", F1A, rWS, "sc1", 16, SL1)
    stamp(a, "poll1")
    def ldK(kt, f): a.vmem(f"global_load_dwordx4 {vr(KB[kt%4]+4*f,4)}, v{L16}, {S2(KP[kt//2])} offset:{4096*(kt%2)-4096+1024*f} {KVL}", ("K", kt))
    def ldV(kt, f): a.vmem(f"global_load_dwordx4 {vr(VB[kt%4]+4*f,4)}, v{L16}, {S2(KP[kt//2])} offset:{4096*(kt%2)-2048+1024*f} {KVL}", ("V", kt))
    order = [(0, 3), (1, 3), (0, 0), (0, 1), (0, 2), (1, 0), (1, 1), (1, 2)]
    for k in range(2, 14):
        order += [(k, 0), (k, 1), (k, 2)] + ([(k, 3)] if k < 16 - NOWN else [])
    order += [(14, 0), (15, 0), (14, 1), (15, 1), (14, 2), (15, 2)] + [(k, 3) for k in range(16 - NOWN, 16)]
    assert sorted(order) == [(k, i) for k in range(16) for i in range(4)]
    NP = 64
    def qk(p):
        kt, i = order[p]
        s = SB[p % 3]; k = KB[kt % 4]
        return [f"v_mfma_f32_32x32x16_bf16 {vr(s,16)}, {vr(k,4)}, {vr(Q[i],4)}, 0",
                f"v_mfma_f32_32x32x16_bf16 {vr(s,16)}, {vr(k+4,4)}, {vr(Q[i]+4,4)}, {vr(s,16)}"]
    def pv(p):
        kt, i = order[p]
        s = SB[p % 3]; v = VB[kt % 4]
        return [f"v_smfmac_f32_32x32x32_bf16 {vr(O[i],16)}, {vr(v,4)}, {vr(s,8)}, v{IDX}",
                f"v_smfmac_f32_32x32x32_bf16 {vr(O[i],16)}, {vr(v+4,4)}, {vr(s+8,8)}, v{IDX}"]
    ldK(0, 0); ldK(0, 1)
    if not K1L: ldK(1, 0); ldK(1, 1)
    getq2()
    a.vwait(("K", 0))
    a("s_waitcnt lgkmcnt(6)")
    stamp(a, "k0")
    for x in qk(0): a(x)
    if K1L:
        ldK(1, 0); ldK(1, 1); ldV(0, 0); ldV(0, 1)
    else:
        ldV(0, 0); ldV(0, 1); ldV(1, 0); ldV(1, 1)
    a("s_mov_b64 exec, 1")
    a("s_waitcnt lgkmcnt(0)")
    a(f"ds_add_u32 v{T+5}, v{ONE}")
    a("s_mov_b64 exec, -1")
    a("s_nop 3")
    s = SB[0]
    a(f"v_max3_f32 v{T}, v{s}, v{s+1}, v{s+2}")
    a(f"v_max3_f32 v{T+1}, v{s+3}, v{s+4}, v{s+5}")
    for i in range(6, 14, 4):
        a(f"v_max3_f32 v{T}, v{T}, v{s+i}, v{s+i+1}")
        a(f"v_max3_f32 v{T+1}, v{T+1}, v{s+i+2}, v{s+i+3}")
    a(f"v_max3_f32 v{T}, v{T}, v{s+14}, v{s+15}")
    a(f"v_max_f32 v{T}, v{T}, v{T+1}")
    a(f"v_mov_b32 v{T+1}, v{T}")
    a("s_nop 1")
    a(f"v_permlane32_swap_b32 v{T}, v{T+1}")
    a(f"v_max_f32 v{T}, v{T}, v{T+1}")
    if FORCEFB: a(f"v_add_f32 v{T}, 0x43480000, v{T}")
    a(f"v_xor_b32 v{T}, 0x80000000, v{T}")
    a("s_mov_b32 exec_lo, 0")
    a(f"v_lshrrev_b32 v{Q[3]+6}, 16, v{T}")
    a("s_mov_b32 exec_lo, -1")
    a(f"ds_write_b32 v{MW}, v{Q[3]+6}")
    arrive(a)
    for x in qk(0): a(x)
    if K1L: ldV(1, 0); ldV(1, 1)
    a("s_nop 9" if K1L else "s_nop 11")
    stamp(a, "loop0")
    lastK = {k: max(p for p in range(NP) if order[p][0] == k) - 1 for k in range(16)}
    lastV = {k: max(p for p in range(NP) if order[p][0] == k) + 1 for k in range(16)}
    lq = []
    for k in range(2, 16):
        fk = lastK[k - 4] + 1 if k >= 4 else LQ0
        fv = lastV[k - 4] + 1 if k >= 4 else LQ0
        lq += [(lambda k=k: ldK(k, 0), fk), (lambda k=k: ldK(k, 1), fk), (lambda k=k: ldV(k, 0), fv), (lambda k=k: ldV(k, 1), fv)]
    wq = []
    for i in range(3):
        lp = max(p for p in range(NP) if order[p][1] == i) + 1
        for g in range(4):
            wq.append((lambda i=i, g=g: a(f"ds_write_b128 v{PW+i}, {vr(O[i]+4*g,4)} offset:{1024*g}"), 4 * (lp + 1) + 2))
    rq = [lambda i=i: a(f"ds_read_b128 {vr(O[i//4]+4*(i%4),4)}, v{PR} offset:{1024*i}") for i in range(12)]
    state = {"arr": None, "rd": False}
    def mlist(p):
        mq = qk(p + 1) if p + 1 < NP else [None, None]
        mp = pv(p - 1) if p >= 1 else [None, None]
        ms = [("q", x) for x in mq] + [("p", x) for x in mp]
        if p == 0: return ms[4-P0S:] + ms[:4-P0S]
        return ms[2:] + ms[:2] if p == 1 else ms
    def need(p, kind):
        if kind == "q":
            k1 = order[p + 1][0]
            a.vwait(("V", k1) if (k1 >= 2 and sum(1 for t in a.vm if t == ("V", k1)) == 2) else ("K", k1))
        else:
            a.vwait(("V", order[p - 1][0]))
    for p in range(NP):
        s = SB[p % 3]
        stamp(a, f"ph{p}")
        ms = mlist(p)
        if p == 1:
            lcheck(a, "L_m", 4)
            stamp(a, "bq1")
            for i in range(3): a(f"ds_read_b32 v{Q[i]+6}, v{MR+i}")
        if p == 2: a("s_nop 6")
        for g in range(4):
            kind, m = ms[g]
            if m:
                need(p, kind)
                if p == 1 and g == 3: a("s_waitcnt lgkmcnt(0)")
                a(m)
                if p >= 3:
                    np_, ng = (p, g + 1) if g < 3 else (p + 1, 0)
                    if np_ < NP:
                        k2, m2_ = mlist(np_)[ng]
                        if m2_: need(np_, k2)
            slot = 4 * p + g
            if slot == 3: lpre(a)
            if g == 2 and p in LOW:
                a(f"s_cmp_eq_u32 s{sg}, 0")
                a(f"s_cbranch_scc1 L_low{p}")
                a.lab(f"L_lowb{p}")
            if p == PGT and g == 0:
                a.vmem(f"buffer_load_dword v{T+8}, off, {S4(rWO)}, 0", "pg")
                a.vmem(f"buffer_load_dword v{T+9}, off, {S4(rBR)}, s{sF2O} sc1", "pg")
            if p == PGT and g == 1:
                a.vmem(f"buffer_load_dword v{T+10}, off, {S4(rOUT)}, s{sLS}", "pg")
                a(f"s_lshl_b32 s{t0}, s{sLS}, 1")
                a.vmem(f"buffer_load_dword v{T+11}, off, {S4(rOUT)}, s{t0}", "pg")
            if slot == 26: lpre(a, C0A)
            if slot == 30: lcheck(a, "L_c0", 4, C0A)
            if p == WOT and g == 2: a.vmem(f"buffer_load_dword v{T+8}, v{TAU}, {S4(rWO)}, 0 offen", "wot")
            if lq and lq[0][1] <= p and (g == LG or (g == LG + 1 and (p < 12 or p >= 40))): lq.pop(0)[0]()
            elif wq and wq[0][1] <= slot:
                wq.pop(0)[0]()
                if not wq:
                    arrive(a); state["arr"] = slot
            elif state["arr"] is not None and slot == state["arr"] + 2: lpre(a)
            elif state["arr"] is not None and not state["rd"] and slot >= state["arr"] + 4:
                lcheck(a, "L_p", 8)
                stamp(a, "b1")
                state["rd"] = True
                for _ in range(4): rq.pop(0)()
            elif state["rd"] and rq:
                for _ in range(4): rq.pop(0)()
            for jj in range(4): a(f"v_exp_f32 v{s+4*g+jj}, v{s+4*g+jj}")
    assert not lq and not wq and state["rd"]
    while rq: rq.pop(0)()
    a("s_nop 1")
    for x in pv(63): a(x)
    stamp(a, "loop1")
    OO = O[3]
    a("s_waitcnt lgkmcnt(0)")
    if ARR3 == "early": arrive(a)
    for r in range(16): a(f"v_add_f32 v{O[0]+r}, v{O[0]+r}, v{O[1]+r}")
    for r in range(16): a(f"v_add_f32 v{O[0]+r}, v{O[0]+r}, v{O[2]+r}")
    a(f"v_add_f32 v{OO+12}, v{OO+12}, v{O[0]+12}")
    a(f"v_mov_b32 v{T}, v{OO+12}")
    a(f"v_mov_b32 v{T+1}, v{OO+12}")
    for r in range(0, 4): a(f"v_add_f32 v{OO+r}, v{OO+r}, v{O[0]+r}")
    a(f"v_permlane32_swap_b32 v{T}, v{T+1}")
    for r in range(4, 16):
        if r != 12: a(f"v_add_f32 v{OO+r}, v{OO+r}, v{O[0]+r}")
    a(f"s_mov_b32 s{sFB}, 0")
    a.lab("L_norm")
    a(f"v_rcp_f32 v{T}, v{T+1}")
    if EARLYP == 1: a(f"buffer_load_dwordx2 {vr(T+14,2)}, v{LF}, {S4(rBR)}, 0 offen {PF2}")
    else: a("s_nop 0")
    P = T + 4
    for r in range(8): a(f"v_mul_f32 v{OO+r}, v{OO+r}, v{T}")
    for i in range(4): a(f"v_cvt_pk_bf16_f32 v{P+i}, v{OO+2*i}, v{OO+2*i+1}")
    a(f"buffer_store_dwordx4 {vr(P,4)}, v{L16}, {S4(rBR)}, s{sOO} offen sc1")
    for r in range(8, 16): a(f"v_mul_f32 v{OO+r}, v{OO+r}, v{T}")
    for i in range(4, 8): a(f"v_cvt_pk_bf16_f32 v{P+i}, v{OO+2*i}, v{OO+2*i+1}")
    a("s_mov_b32 exec_hi, 0")
    a(f"buffer_store_dwordx4 {vr(P+4,4)}, v{L16}, {S4(rBR)}, s{sOO} offen offset:1024 sc1")
    a("s_not_b64 exec, exec")
    a(f"buffer_store_dwordx2 {vr(P+4,2)}, v{L8}, {S4(rBR)}, s{sOO} offen offset:1280 sc1")
    a("s_mov_b64 exec, -1")
    if EARLYP == 2: a(f"buffer_load_dwordx2 {vr(T+14,2)}, v{LF}, {S4(rBR)}, 0 offen {PF2}")
    stamp(a, "ost")
    a(f"s_cmp_lg_u32 s{sFB}, 0")
    a("s_cbranch_scc1 L_checked")
    if ARR3 == "late": arrive(a)
    a(f"v_mul_f32 v{T+2}, 0, v{OO}")
    a(f"v_mul_f32 v{T+3}, 0, v{OO+1}")
    for r in range(2, 16): a(f"v_fma_f32 v{T+2+(r&1)}, 0, v{OO+r}, v{T+2+(r&1)}")
    a(f"v_add_f32 v{T+2}, v{T+2}, v{T+3}")
    a(f"v_add_f32 v{T+2}, v{T+2}, v{T+1}")
    a(f"v_cmp_nlt_f32 vcc, 0x35800000, v{T+2}")
    a(f"s_mov_b64 {S2(sROT)}, vcc")
    a(f"v_cmp_ngt_f32 vcc, 0x71800000, v{T+2}")
    a(f"s_or_b64 vcc, vcc, {S2(sROT)}")
    a("s_cbranch_vccnz L_fallback")
    a.lab("L_checked")
    sOS, sOL, sW0 = KT[1], KT[2], KT[3]
    INV = [ORD.index(r_) for r_ in range(4)]
    def wo_round(st):
        a(f"s_xor_b32 s{t0}, s{sPE}, {st}")
        a(f"s_add_u32 s{t0}, s{t0}, s{sW0}")
        a(f"s_mul_i32 s{sWOS}, s{t0}, {28*896}")
        a(f"s_mul_i32 s{sWOL}, s{skq}, {56*256}")
        a(f"s_mov_b32 s{t1}, 0")
        a(f"s_setprio {WPRIO}")
        a.lab(f"L_wo{st}")
        a(f"s_mov_b32 m0, s{sWOL}")
        a(f"s_add_u32 s{t1}, s{t1}, 1")
        a(f"buffer_load_dwordx4 v{WOA}, {S4(rWO)}, s{sWOS} offen {WOF} lds")
        a(f"s_add_u32 s{sWOL}, s{sWOL}, 1024")
        a(f"s_cmp_eq_u32 s{t1}, 7")
        a(f"s_mov_b32 s{t0}, {4*896}")
        a(f"s_cselect_b32 s{t0}, {32*896}, s{t0}")
        a(f"s_add_u32 s{sWOS}, s{sWOS}, s{t0}")
        a(f"s_cmp_lg_u32 s{t1}, 14")
        a(f"s_waitcnt vmcnt({WOFL})")
        a(f"s_cbranch_scc1 L_wo{st}")
        a("s_waitcnt vmcnt(0)")
        a("s_setprio 2")
    a(f"s_cmp_eq_u32 s{sg}, 0")
    a("s_cbranch_scc1 L_wfirst")
    a.lab("L_pub")
    NF = T + 2
    a(f"v_mov_b32 v{NF}, s{NONCE}")
    a(f"v_mov_b32 v{NF+1}, s{NONCE+1}")
    a("s_mov_b64 exec, 1")
    a(f"s_cmp_eq_u32 s{sg}, 0")
    a("s_waitcnt vmcnt(0)")
    a(f"buffer_store_dwordx2 {vr(NF,2)}, off, {S4(rBR)}, s{sF2O} {SF2}")
    a("s_mov_b64 exec, -1")
    stamp(a, "flag2")
    a("s_cbranch_scc1 L_ph3")
    def late_fetch():
        a(f"s_mov_b32 m0, s{sLL}")
        a("s_nop 0")
        for i in range(4): a(f"buffer_load_dwordx4 v{L16}, {S4(rBR)}, s{sLS} offen offset:{1024*i} sc1 lds")
        a(f"s_add_u32 m0, s{sLL}, 4096")
        a("s_nop 0")
        for i in range(3): a(f"buffer_load_dwordx4 v{L16}, {S4(rBR)}, s{sLS2} offen offset:{1024*i} sc1 lds")
        a("s_mov_b64 exec, 1")
        a("s_waitcnt vmcnt(0)")
        a(f"ds_write_b32 v{LM}, v{ONE}")
        a("s_mov_b64 exec, -1")
    a(f"ds_read_b32 v{T+12}, v{LM}")
    a(f"v_add_u32 v{T+4}, -4, v{CA}")
    lwait(a, "L_wfree", 0, 28, 1, T + 4)
    a(f"v_readfirstlane_b32 s{t0}, v{T+12}")
    a(f"s_cmp_lg_u32 s{t0}, 0")
    a("s_cbranch_scc1 L_fin")
    if EARLYP:
        a(f"v_cmp_ne_u64 vcc, {S2(NONCE)}, {vr(T+14,2)}")
        a("s_cbranch_vccz L_lready")
    if PW0: a("s_waitcnt vmcnt(0)")
    poll(a, "L_f21", LF, rBR, PF2)
    a.lab("L_lready")
    stamp(a, "poll2")
    late_fetch()
    stamp(a, "oown")
    a("s_waitcnt lgkmcnt(0)")
    a("s_branch L_fin")
    a.lab("L_ph3")
    if OUTW:
        a("s_mov_b64 exec, 1")
        a(f"buffer_load_dword v{T+8}, v{OUTA}, {S4(rOUT)}, 0 offen")
        a("s_mov_b64 exec, -1")
    WB = 16
    steps = []
    for q in range(2):
        for j in range(4 * q, 4 * q + 4): steps.append((0, lambda aa, j=j: 28 * j + 8 * aa, ("A", j)))
        for i in range(2 * q, 2 * q + 2): steps.append((1, lambda aa, i=i: 56 * i + 16 + 8 * aa, ("B", 2 * i)))
        steps.append((2, lambda aa, q=q: 28 * (4 * q + aa) + 20, ("C", 4 * q)))
    def wread(st, ks):
        t, row, _ = steps[ks]
        for aa in range(2):
            a(f"ds_read_b64_tr_b16 {vr(WB+56*st+4*ks+2*aa,2)}, v{WA+t} offset:{row(aa)*256}")
    for st in range(2):
        if st: wo_round(1)
        gbar(a, f"L_g4{st}", 4 + 2 * st)
        for ks in range(14): wread(st, ks)
        a("s_waitcnt lgkmcnt(0)")
        gbar(a, f"L_g5{st}", 5 + 2 * st)
        stamp(a, f"wrd{st}")
    ACC3 = [128, 144]; ACCB = [16, 32]; OB = 176; NB = 12; PK = 224
    def mfma_block(st, items, hooks):
        lg = []
        def oread(n_):
            ks, e = items[n_]
            kind, hd = steps[ks][2]
            d = OB + 4 * (n_ % NB)
            base = 28672 * st + 14336 * e
            if kind == "A": a(f"ds_read_b128 {vr(d,4)}, v{OA} offset:{base+hd*1792}"); lg.append(n_)
            elif kind == "B": a(f"ds_read_b128 {vr(d,4)}, v{OA+1} offset:{base+hd*1792+1024}"); lg.append(n_)
            else:
                for aa in range(2):
                    a(f"ds_read_b64 {vr(d+2*aa,2)}, v{OA+2} offset:{base+(hd+aa)*1792+1536}"); lg.append(n_)
        N_ = len(items)
        for n_ in range(min(NB, N_)): oread(n_)
        for n_ in range(N_):
            ks, e = items[n_]
            out = sum(1 for k in lg if k > n_)
            assert out < 16
            a(f"s_waitcnt lgkmcnt({out})")
            d_ = ACCB[e] if (st == 1 and ks >= 7) else ACC3[e]
            c = "0" if (st, ks) in ((0, 0), (1, 7)) else vr(d_, 16)
            a(f"v_mfma_f32_32x32x16_bf16 {vr(d_,16)}, {vr(WB+56*st+4*ks,4)}, {vr(OB+4*(n_%NB),4)}, {c}")
            if n_ + NB < N_: oread(n_ + NB)
            if n_ in hooks: hooks[n_]()
    a(f"s_mul_i32 s{sOS}, s{sRT}, 1792")
    a(f"s_mul_i32 s{sOL}, s{skq}, 7168")
    poll(a, "L_f20", F2A, rBR, PF2)
    a(f"s_mov_b32 m0, s{sOL}")
    a(f"s_add_u32 s{t0}, s{sOS}, 4096")
    for i in range(4): a(f"buffer_load_dwordx4 v{L16}, {S4(rBR)}, s{sOS} offen offset:{1024*i} sc1 lds")
    a(f"s_add_u32 m0, s{sOL}, 4096")
    a("s_nop 0")
    for i in range(3): a(f"buffer_load_dwordx4 v{L16}, {S4(rBR)}, s{t0} offen offset:{1024*i} sc1 lds")
    a("s_waitcnt vmcnt(0)")
    gbar(a, "L_g8", 8)
    stamp(a, "aland")
    if GLOOK:
        a(f"s_mov_b32 s{t3}, {SPIN}")
        a.lab("L_h3a")
        a(f"buffer_load_dwordx2 {vr(T+14,2)}, v{LF}, {S4(rBR)}, 0 offen {PF2}")
        a(f"s_sleep {HSL}")
        a(f"ds_read_b32 v{T+13}, v{CA} offset:4")
        a(f"s_sub_u32 s{t3}, s{t3}, 1")
        a("s_cbranch_scc1 L_end")
        a("s_waitcnt lgkmcnt(0)")
        a(f"v_readfirstlane_b32 s{t2}, v{T+13}")
        a(f"s_cmp_ge_u32 s{t2}, 12")
        a("s_cbranch_scc1 L_h3_done")
        a("s_waitcnt vmcnt(0)")
        a(f"v_cmp_ne_u64 vcc, {S2(NONCE)}, {vr(T+14,2)}")
        a("s_cbranch_vccnz L_h3a")
        late_fetch()
    lwait(a, "L_h3", 4, 12, HSL)
    a("s_setprio 0")
    a(f"s_cmp_eq_u32 s{XM}, 0")
    a("s_cbranch_scc1 L_fin")
    mfma_block(0, [(ks, e) for ks in range(14) for e in range(2)], {})
    stamp(a, "tileA")
    a(f"s_add_u32 s{t0}, s{sOUTO}, {16*1792}")
    a(f"s_add_u32 s{t1}, s{sOUTO}, {32*1792}")
    a(f"s_add_u32 s{sOS}, s{sOUTO}, {48*1792}")
    def pack0(i0):
        def f():
            for r in range(2 * i0, 2 * i0 + 8): a(f"v_add_f32 v{ACC3[0]+r}, v{ACC3[0]+r}, v{ACCB[0]+r}")
            for i in range(i0, i0 + 4): a(f"v_cvt_pk_bf16_f32 v{PK+i}, v{ACC3[0]+2*i}, v{ACC3[0]+2*i+1}")
        return f
    a(f"s_mov_b32 s{t3}, {SPIN}")
    a.lab("L_any")
    a(f"ds_read_b128 {vr(T+8,4)}, v{CA} offset:16")
    a(f"s_sub_u32 s{t3}, s{t3}, 1")
    a("s_cbranch_scc1 L_end")
    a("s_waitcnt lgkmcnt(0)")
    a(f"v_and_b32 v{T+8}, v{T+8}, v{T+9}")
    a(f"v_and_b32 v{T+10}, v{T+10}, v{T+11}")
    a(f"v_cmp_ne_u32 vcc, 0, v{T+10}")
    a("s_cbranch_vccnz L_ba")
    a(f"v_cmp_ne_u32 vcc, 0, v{T+8}")
    a("s_cbranch_vccz L_any")
    for first in (0, 1):
        if first: a.lab("L_ba")
        stamp(a, "bland")
        mfma_block(1, [(ks, e) for ks in range(7 * first, 7 * first + 7) for e in range(2)], {})
        a(f"s_mov_b32 s{t3}, {SPIN}")
        a.lab(f"L_u{first}")
        a(f"ds_read_b64 {vr(T+8,2)}, v{CA} offset:{24 - 8*first}")
        a(f"s_sub_u32 s{t3}, s{t3}, 1")
        a("s_cbranch_scc1 L_end")
        a("s_waitcnt lgkmcnt(0)")
        a(f"v_and_b32 v{T+8}, v{T+8}, v{T+9}")
        a(f"v_cmp_ne_u32 vcc, 0, v{T+8}")
        a(f"s_cbranch_vccz L_u{first}")
        stamp(a, "oland")
        mfma_block(1, [(ks, e) for e in range(2) for ks in range(7 - 7 * first, 14 - 7 * first)], {12: pack0(0), 13: pack0(4)})
        if not first: a("s_branch L_out")
    a.lab("L_out")
    stamp(a, "mf3")
    a(f"ds_write_b128 v{TW}, {vr(PK,4)}")
    a(f"ds_write_b128 v{TW+1}, {vr(PK+4,4)}")
    a(f"ds_read_b128 {vr(OB+16,4)}, v{TR}")
    a(f"ds_read_b128 {vr(OB+20,4)}, v{TR} offset:1024")
    for r in range(8): a(f"v_add_f32 v{ACC3[1]+r}, v{ACC3[1]+r}, v{ACCB[1]+r}")
    for i in range(4): a(f"v_cvt_pk_bf16_f32 v{PK+8+i}, v{ACC3[1]+2*i}, v{ACC3[1]+2*i+1}")
    a(f"ds_write_b128 v{TW}, {vr(PK+8,4)} offset:2048")
    a("s_waitcnt lgkmcnt(1)")
    a(f"buffer_store_dwordx4 {vr(OB+16,4)}, v{OUTA}, {S4(rOUT)}, s{sOUTO} offen {OUTF}")
    a(f"buffer_store_dwordx4 {vr(OB+20,4)}, v{OUTA}, {S4(rOUT)}, s{t0} offen {OUTF}")
    for r in range(8, 16): a(f"v_add_f32 v{ACC3[1]+r}, v{ACC3[1]+r}, v{ACCB[1]+r}")
    for i in range(4, 8): a(f"v_cvt_pk_bf16_f32 v{PK+8+i}, v{ACC3[1]+2*i}, v{ACC3[1]+2*i+1}")
    a(f"ds_write_b128 v{TW+1}, {vr(PK+12,4)} offset:2048")
    a(f"ds_read_b128 {vr(OB+24,4)}, v{TR} offset:2048")
    a(f"ds_read_b128 {vr(OB+28,4)}, v{TR} offset:3072")
    a("s_waitcnt lgkmcnt(1)")
    a(f"buffer_store_dwordx4 {vr(OB+24,4)}, v{OUTA}, {S4(rOUT)}, s{t1} offen {OUTF}")
    a("s_waitcnt lgkmcnt(0)")
    a(f"buffer_store_dwordx4 {vr(OB+28,4)}, v{OUTA}, {S4(rOUT)}, s{sOS} offen {OUTF}")
    a.lab("L_fin")
    if STAMP:
        a("s_waitcnt vmcnt(0)")
        a("s_memrealtime s[22:23]")
        a("s_memtime s[98:99]")
        a("s_waitcnt lgkmcnt(0)")
        a("s_mov_b64 exec, 1")
        a(f"s_mov_b32 s{rWS}, s2"); a(f"s_mov_b32 s{rWS+1}, s3"); a(f"s_mov_b32 s{rWS+2}, 0x10000000")
        a(f"s_lshl_b32 s{t1}, s{sidx}, 3")
        a(f"s_add_u32 s{t1}, s{t1}, s{sx}")
        a(f"s_lshl_b32 s{t1}, s{t1}, 9")
        a(f"s_add_u32 s{t1}, s{t1}, {64<<20}")
        a(f"s_lshl_b32 s{t0}, s{sw}, 6")
        a(f"s_add_u32 s{t1}, s{t1}, s{t0}")
        for i, r in enumerate([RT, 22, 100, 98] + [80 + 2 * k for k in range(9)] + [sLOC]):
            a(f"v_mov_b32 v1, s{r}")
            a(f"buffer_store_dword v1, off, {S4(rWS)}, s{t1} offset:{4*i}")
    if DIAG:
        a("s_waitcnt vmcnt(0)")
        if DIAG == "end": a("s_memrealtime s[80:81]")
        if DIAG == "none": a(f"s_mov_b32 s80, s{NONCE}")
        a("s_waitcnt lgkmcnt(0)")
        a("s_add_u32 s80, s80, 6000")
        a.lab("L_diag")
        a("s_sleep 2")
        a("s_memrealtime s[82:83]")
        a("s_waitcnt lgkmcnt(0)")
        a("s_sub_u32 s82, s82, s80")
        a("s_cmp_lt_i32 s82, 0")
        a("s_cbranch_scc1 L_diag")
    a.lab("L_end")
    a("s_endpgm")
    a.lab("L_wfirst")
    lwait(a, "L_h2", 12, 4)
    stamp(a, "wo0")
    a(f"s_lshl_b32 s{t0}, s{skq}, 2")
    a(f"s_lshr_b32 s{t0}, {sum((4*INV[r_]) << (4*r_) for r_ in range(4)):#x}, s{t0}")
    a(f"s_and_b32 s{sW0}, s{t0}, 15")
    wo_round(0)
    a("s_branch L_pub")
    for tag, P_, so, off in tails:
        a.lab(f"L_wt{tag}")
        a(f"buffer_store_dwordx4 {vr(P_,4)}, v{TAU}, {S4(rWS)}, s{so} offen offset:{off} sc1")
        a(f"s_branch L_st{tag}")
    for v in nnt:
        a.lab(f"L_nn{v}")
        a(f"buffer_load_dwordx2 {vr(NV,2)}, v{NA}, {S4(rDBG)}, 0 offen sc1")
        a(f"s_branch L_nnb{v}")
    for tag, nm in stails:
        a.lab(f"L_ns{tag}")
        stamp(a, nm)
        a(f"s_branch L_nb{tag}")
    for name, target, reg in slow:
        a.lab(f"{name}_slow")
        lwait(a, name, 0, target, 1, reg)
        a(f"s_branch {name}_back")
    if LOW[0] >= 0:
        for p, pr in zip(LOW, (0, 2)):
            a.lab(f"L_low{p}")
            a(f"s_setprio {pr}")
            a(f"s_branch L_lowb{p}")
    a.lab("L_f1wt")
    a(f"buffer_store_dwordx2 {vr(NV,2)}, off, {S4(rWS)}, s{sF1O} sc1")
    a("s_branch L_f1st")
    for tag in "LC":
        a.lab(f"L_nonce_retry{tag}")
        a(f"buffer_load_dwordx2 {vr(NV,2)}, off, {S4(rDBG)}, s{sDL} sc1")
        a(f"s_sub_u32 s{t3}, s{t3}, 1")
        a("s_cbranch_scc1 L_end")
        a("s_waitcnt vmcnt(0)")
        a(f"s_branch L_nonce{tag}")
    a.lab("L_fallback")
    QO = Q[3]; S0 = SB[0]; K0 = KB[0]; V0 = VB[0]; M = T + 2
    a("s_waitcnt vmcnt(0)")
    a(f"s_mov_b32 s{sFB}, 1")
    a("s_mov_b32 exec_lo, 0")
    a(f"v_mov_b32 v{QO+6}, 0")
    a("s_mov_b32 exec_lo, -1")
    for r in range(16): a(f"v_mov_b32 v{OO+r}, 0")
    a(f"v_mov_b32 v{M}, 0xff7fffff")
    a(f"s_mov_b32 s{sKVO}, 0")
    a.lab("L_fb_loop")
    a(f"buffer_load_dwordx4 {vr(K0,4)}, v{L16}, {S4(rKV)}, s{sKVO} offen sc1")
    a(f"buffer_load_dwordx4 {vr(K0+4,4)}, v{L16}, {S4(rKV)}, s{sKVO} offen offset:1024 sc1")
    a(f"buffer_load_dwordx4 {vr(V0,4)}, v{L16}, {S4(rKV)}, s{sKVO} offen offset:2048 sc1")
    a(f"buffer_load_dwordx4 {vr(V0+4,4)}, v{L16}, {S4(rKV)}, s{sKVO} offen offset:3072 sc1")
    a("s_waitcnt vmcnt(0)")
    a(f"v_mfma_f32_32x32x16_bf16 {vr(S0,16)}, {vr(K0,4)}, {vr(QO,4)}, 0")
    a(f"v_mfma_f32_32x32x16_bf16 {vr(S0,16)}, {vr(K0+4,4)}, {vr(QO+4,4)}, {vr(S0,16)}")
    a("s_nop 15")
    a(f"v_max3_f32 v{T}, v{M}, v{S0}, v{S0+1}")
    for i in range(2, 16, 2): a(f"v_max3_f32 v{T}, v{T}, v{S0+i}, v{S0+i+1}")
    a(f"v_mov_b32 v{T+1}, v{T}")
    a("s_nop 1")
    a(f"v_permlane32_swap_b32 v{T}, v{T+1}")
    a(f"v_max_f32 v{T}, v{T}, v{T+1}")
    a(f"v_sub_f32 v{T+1}, v{M}, v{T}")
    a(f"v_exp_f32 v{T+1}, v{T+1}")
    a(f"v_mov_b32 v{M}, v{T}")
    for r in range(16): a(f"v_sub_f32 v{S0+r}, v{S0+r}, v{T}")
    for r in range(16): a(f"v_exp_f32 v{S0+r}, v{S0+r}")
    for r in range(16): a(f"v_mul_f32 v{OO+r}, v{OO+r}, v{T+1}")
    a("s_nop 1")
    a(f"v_smfmac_f32_32x32x32_bf16 {vr(OO,16)}, {vr(V0,4)}, {vr(S0,8)}, v{IDX}")
    a(f"v_smfmac_f32_32x32x32_bf16 {vr(OO,16)}, {vr(V0+4,4)}, {vr(S0+8,8)}, v{IDX}")
    a(f"s_add_u32 s{sKVO}, s{sKVO}, 4096")
    a(f"s_cmp_lt_u32 s{sKVO}, 262144")
    a("s_nop 15")
    a("s_cbranch_scc1 L_fb_loop")
    a(f"v_mov_b32 v{T}, v{OO+12}")
    a(f"v_mov_b32 v{T+1}, v{OO+12}")
    a("s_nop 1")
    a(f"v_permlane32_swap_b32 v{T}, v{T+1}")
    a("s_branch L_norm")
    kd = f""".section .rodata,"a"
.p2align 6
.amdhsa_kernel {n}
  .amdhsa_next_free_vgpr 256
  .amdhsa_next_free_sgpr 102
  .amdhsa_accum_offset 256
  .amdhsa_group_segment_fixed_size 0
  .amdhsa_kernarg_size 72
  .amdhsa_user_sgpr_count 2
  .amdhsa_user_sgpr_kernarg_segment_ptr 1
  .amdhsa_system_sgpr_workgroup_id_x 1
.end_amdhsa_kernel
"""
    return a.text() + kd

hdr = f"""; @launch grid=(256,1,1) block=(512,1,1) lds={LDS}
.amdgcn_target "amdgcn-amd-amdhsa--gfx950"
.text
"""
open(sys.argv[1] if len(sys.argv) > 1 else "v13.s", "w").write(hdr + gen())
```

```python
import sys, os, struct, math
NAME = "concat_heads__softmax_full_mha__softmax_full_mha__prompt"
def f2u(x): return struct.unpack("<I", struct.pack("<f", x))[0]
CSCALE = f2u(28 ** -0.5 * math.log2(math.e))
E = os.environ.get
STAMP = E("STAMP", "0") in ("1", "3")
RTS = E("STAMP", "0") == "3"
DIAG = E("DIAG", "")
STL = E("STL", "c0,p1end,ack1,poll1,loop0,loop1,flag2,poll2,oland").split(",")
F2SP = int(E("F2SP", "32"))
FORCEFB = E("FORCEFB", "0") == "1"
LOCAL = E("LOCAL", "1") == "1"
PRET = int(E("PRET", "3"))
SLEEP = int(E("SLEEP", "0"))
OUTF = E("OUTF", "")
ROTA, ROTB, ROTC, ROTN, ROTS = [int(v) for v in E("ROTP", "1,0,2,7,1").split(",")]
WOFL = int(E("WOFL", "3"))
NOWN = int(E("NOWN", "4"))
NPOS = int(E("NPOS", "5"))
ARR3 = E("ARR3", "late")
OUTW = int(E("OUTW", "0"))
WOT = int(E("WOT", "-1"))
HB = int(E("HB", "0"))
BPOS = int(E("BPOS", "2"))
TLBW = int(E("TLBW", "0"))
PROBE = int(E("PROBE", "0"))
WPRIO = int(E("WPRIO", "0"))
PRET2 = int(E("PRET2", "0"))
LG = int(E("LG", "2"))
PF2 = E("PF2", "sc1").replace("_", " ")
SF2 = E("SF2", "sc1").replace("_", " ")
PIPE = int(E("PIPE", "0"))
PW0 = int(E("PW0", "1"))
F1SP = int(E("F1SP", "128"))
K1L = int(E("K1L", "1"))
LQ0 = int(E("LQ0", "2"))
PGA = int(E("PGA", "1"))
FPOS = int(E("FPOS", "22"))
QB = int(E("QB", "14"))
TEAR = int(E("TEAR", "0"))
B2 = int(E("B2", "0"))
LPR = int(E("LPR", "0"))
CPF = int(E("CPF", "0"))
UBY = int(E("UBY", "0"))
SLD = int(E("SLD", "0"))
NRC = 139264
SGL = E("SGL", "")
PGT = int(E("PGT", "-1"))
SP = int(E("SP", "2"))
WF0 = E("WF0", ""); WF = E("WF", ""); XF0 = E("XF0", ""); XF = E("XF", ""); KVS = E("KVS", ""); WOF = E("WOF", ""); TF = E("TF", "sc1").replace("_", " "); KVL = E("KVL", "sc1").replace("_", " ")
LOW = [int(x) for x in E("LOW", "-1,-1").split(",")]
QFAST = int(E("QFAST", "1"))
FT = E("FT", "")
P0S = int(E("P0S", "1"))
SL1 = int(E("SL1", "0"))
PEX = int(E("PEX", "1"))
EARLYP = int(E("EARLYP", "1"))
GLOOK = int(E("GLOOK", "0"))
LOOK = int(E("LOOK", "16"))
LOOK2 = int(E("LOOK2", "7"))
HSL = int(E("HSL", "4"))
XMAP = E("XMAP", "")
T2POS = E("T2POS", "b6")
SPIN = 1 << 22

X_F1 = 1 << 20
B_BASE = 16 << 20; B_F2 = 1835008
STAGE = 40960; XOFF = 24576
PB0 = 57344; QX = 122880; MX = 106496; PB1 = 113664; TX = 57344; LDS = 163840; GBC = 163808

class A:
    def __init__(self):
        self.l = []; self.vm = []; self.done = 0
    def __call__(self, s): self.l.append("    " + s)
    def lab(self, s): self.l.append(s + ":")
    def raw(self, s): self.l.append(s)
    def text(self): return "\n".join(self.l) + "\n"
    def vreset(self): self.vm = []; self.done = 0
    def vmem(self, s, tag=None):
        self(s); self.vm.append(tag)
    def vwait(self, tag):
        idx = [i for i, t in enumerate(self.vm) if t == tag]
        assert idx, tag
        last = idx[-1] + 1
        if last <= self.done: return
        self.done = last
        n = len(self.vm) - last
        assert n < 64
        self(f"s_waitcnt vmcnt({n})")

def vr(b, n): return f"v[{b}:{b+n-1}]"
def S4(b): return f"s[{b}:{b+3}]"
def S2(b): return f"s[{b}:{b+1}]"
def stamp(a, name):
    if DIAG == name: a("s_memrealtime s[80:81]")
    if DIAG == name + "@0":
        a("s_cmp_lg_u32 s50, 0")
        a("s_cbranch_scc1 L_dg0")
        a("s_memrealtime s[80:81]")
        a.lab("L_dg0")
    if STAMP and name in STL:
        i = STL.index(name)
        a(f"{'s_memrealtime' if RTS else 's_memtime'} s[{80+2*i}:{81+2*i}]")

rX, rW, rWS, rWO, rOUT, rDBG, rKV, rBR = 24, 28, 32, 36, 64, 68, 72, 12
XM = 4
sLOC, sRT, sOUTO, sQT, sF1O, sPE = 6, 7, 8, 9, 10, 11
sKVO, sWOS, sWOL, sOO, sF2O, sFB = 16, 17, 18, 19, 22, 23
sx, sidx, sb, srb, shalf, sXS, sw, shl, shs, sg4, sg, sWL, sXL, sWS_, stt, scg, skq, su = range(40, 58)
t0, t1, sDL, t2, sROT, t3 = 58, 59, 60, 61, 62, 63
NONCE = 76; RT = 78
KT = [24, 25, 26, 27, 28]
KP = [24, 26, 28, 30, 44, 52, 54, 20]
L16, IDX, CA, F1A, ONE, L8, MW, MR, PW, PR, TAU = 1, 2, 3, 4, 5, 6, 7, 8, 11, 14, 15
T = 240
XD, WD, XA, WA1, QW, NV, NA, PTA = 16, 18, 16, 20, 23, 232, 234, 235
ACC = 32; FR = 128; P1 = 208
Q = [16, 24, 32, 40]; O = [48, 64, 80, 96]; SB = [112, 128, 144]; KB = [176, 184, 192, 200]; VB = [208, 216, 224, 232]
WA, F2B, TW, OA, WOA, F2A, OUTA, TR = 160, 163, 166, 168, 172, 173, 174, 175
ORD = [0, 2, 3, 1]
LF, LM, C0A = 163, 164, 165
sLS, sLL, sLS2 = 43, 51, 57

def lwait(a, name, off, target, sleep=2, reg=None):
    a(f"s_mov_b32 s{t3}, {SPIN}")
    a.lab(f"{name}_spin")
    a(f"ds_read_b32 v{T+13}, v{reg or CA} offset:{off}")
    a(f"s_sub_u32 s{t3}, s{t3}, 1")
    a("s_cbranch_scc1 L_end")
    a("s_waitcnt lgkmcnt(0)")
    a(f"v_readfirstlane_b32 s{t2}, v{T+13}")
    a(f"s_cmp_ge_u32 s{t2}, {target}")
    if sleep:
        a(f"s_cbranch_scc1 {name}_done")
        a(f"s_sleep {sleep}")
        a(f"s_branch {name}_spin")
        a.lab(f"{name}_done")
    else:
        a(f"s_cbranch_scc0 {name}_spin")
def arrive(a, off=0):
    a("s_mov_b64 exec, 1")
    a(f"ds_add_u32 v{CA}, v{ONE} offset:{off}")
    a("s_mov_b64 exec, -1")
slow = []
def lpre(a, reg=None): a(f"ds_read_b32 v{T+13}, v{reg or CA}")
def lcheck(a, name, target, reg=None):
    a("s_waitcnt lgkmcnt(0)")
    a(f"v_readfirstlane_b32 s{t2}, v{T+13}")
    a(f"s_cmp_ge_u32 s{t2}, {target}")
    a(f"s_cbranch_scc0 {name}_slow")
    a.lab(f"{name}_back")
    slow.append((name, target, reg))
def gbar(a, name, k):
    arrive(a)
    lwait(a, name, 0, 4 * k)
def poll_pipe(a, name, vaddr, srd, fl, regs):
    n_ = len(regs)
    a(f"s_mov_b32 s{t3}, {SPIN}")
    for r in regs[:-1]:
        a(f"buffer_load_dwordx2 {vr(r,2)}, v{vaddr}, {S4(srd)}, 0 offen {fl}")
        a(f"s_sleep {PIPE}")
    a.lab(f"{name}_spin")
    for i in range(n_):
        a(f"buffer_load_dwordx2 {vr(regs[(i-1)%n_],2)}, v{vaddr}, {S4(srd)}, 0 offen {fl}")
        a(f"s_waitcnt vmcnt({n_-1})")
        a(f"v_cmp_ne_u64 vcc, {S2(NONCE)}, {vr(regs[i],2)}")
        a(f"s_cbranch_vccz {name}_ok")
    a(f"s_sub_u32 s{t3}, s{t3}, 1")
    a(f"s_cbranch_scc0 {name}_spin")
    a("s_branch L_end")
    a.lab(f"{name}_ok")
def poll(a, name, vaddr, srd, fl="sc1", lanes=4, SLEEP=0):
    a(f"s_mov_b32 s{t3}, {SPIN}")
    if PEX: a(f"s_mov_b64 exec, {(1 << lanes) - 1:#x}")
    if SLEEP: a(f"s_branch {name}_first")
    a.lab(f"{name}_spin")
    if SLEEP:
        a(f"s_sleep {SLEEP}")
        a.lab(f"{name}_first")
    a(f"buffer_load_dwordx2 {vr(T+14,2)}, v{vaddr}, {S4(srd)}, 0 offen {fl}")
    a(f"s_sub_u32 s{t3}, s{t3}, 1")
    a("s_cbranch_scc1 L_end")
    a("s_waitcnt vmcnt(0)")
    a(f"v_cmp_ne_u64 vcc, {S2(NONCE)}, {vr(T+14,2)}")
    a(f"s_cbranch_vccnz {name}_spin")
    if PEX: a("s_mov_b64 exec, -1")

def gen():
    a = A(); n = NAME + "_kernel"
    tails = []; stails = []; nnt = []
    u0, u1, u2, u3, u4 = T, T + 1, T + 2, T + 3, T + 4
    a.raw(f".globl {n}\n" + (".p2align 12\n" if PGA else "") + f".p2align 8\n.type {n},@function")
    a.lab(n)
    a("s_cmp_ge_u32 s2, 256")
    a("s_cbranch_scc1 L_end")
    a("s_load_dwordx16 s[4:19], s[0:1], 0")
    a("s_load_dwordx2 s[20:21], s[0:1], 64")
    a(f"s_memrealtime {S2(RT)}")
    if STAMP: a("s_memtime s[100:101]")
    a(f"s_and_b32 s{sx}, s2, 7")
    a(f"s_lshr_b32 s{sidx}, s2, 3")
    a("v_lshrrev_b32 v1, 6, v0")
    a("v_and_b32 v0, 63, v0")
    a(f"v_readfirstlane_b32 s{sw}, v1")
    if XMAP:
        tab = sum(int(c) << (4 * i) for i, c in enumerate(XMAP))
        assert sorted(XMAP) == list("01234567")
        a(f"s_lshl_b32 s{t0}, s{sx}, 2")
        a(f"s_lshr_b32 s{t0}, {tab:#x}, s{t0}")
        a(f"s_bfe_u32 s{sb}, s{t0}, 0x10002")
        a(f"s_and_b32 s{sg4}, s{t0}, 3")
    else:
        a(f"s_lshr_b32 s{sb}, s{sx}, 2")
        a(f"s_and_b32 s{sg4}, s{sx}, 3")
    a(f"s_lshr_b32 s{srb}, s{sidx}, 1")
    a(f"s_and_b32 s{shalf}, s{sidx}, 1")
    if TLBW:
        a(f"s_cmp_lt_u32 s{sw}, 4")
        a("s_cbranch_scc1 L_load")
        a(f"s_mul_i32 s{t0}, s{srb}, {128*896}")
        a(f"s_cmp_eq_u32 s{sb}, 0")
        a(f"v_mov_b32 v{u0}, s{t0}")
        a(f"v_mul_u32_u24 v{u1}, {7*2688}, v0")
        a("s_waitcnt lgkmcnt(0)")
        a(f"s_cselect_b64 {S2(rX)}, s[4:5], s[10:11]")
        a(f"s_cselect_b64 {S2(rW)}, s[6:7], s[12:13]")
        if TLBW == 1: a("s_mov_b64 exec, 1")
        a(f"global_load_dword v{T+10}, v{u0}, {S2(rX)}")
        a(f"global_load_dword v{T+11}, v{u1}, {S2(rW)}")
        a("s_mov_b64 exec, -1")
        a("s_branch L_comp")
        a.lab("L_load")
    else:
        a(f"s_cmp_ge_u32 s{sw}, 4")
        a("s_cbranch_scc1 L_comp")
    def stamp_init():
        if DIAG: a(f"s_mov_b32 s80, s{RT}")
        if STAMP:
            for k in range(9): a(f"s_mov_b32 s{80+2*k}, s{RT if RTS else 100}")
    def dbg_desc():
        a(f"s_mov_b32 s{rDBG}, s18"); a(f"s_mov_b32 s{rDBG+1}, s19"); a(f"s_mov_b32 s{rDBG+2}, 256"); a(f"s_mov_b32 s{rDBG+3}, 0x00020000")
        a(f"s_lshl_b32 s{sDL}, s{sb}, 3")
    def ws_desc():
        a(f"s_lshl_b32 s{t2}, s{sx}, 21")
        a(f"s_add_u32 s{rWS}, s20, s{t2}")
        a(f"s_addc_u32 s{rWS+1}, s21, 0")
        a(f"s_mov_b32 s{rWS+2}, {2<<20}")
        a(f"s_mov_b32 s{rWS+3}, 0x00020000")
    def ids2a(g, ws=True):
        a(f"s_cmp_eq_u32 s{sb}, 0")
        a(f"s_cselect_b32 s{rWO}, s8, s14")
        a(f"s_cselect_b32 s{rWO+1}, s9, s15")
        a(f"s_mov_b32 s{rWO+2}, 401408")
        a(f"s_mov_b32 s{rWO+3}, 0x00020000")
        a(f"s_mov_b32 s{rOUT}, s16"); a(f"s_mov_b32 s{rOUT+1}, s17"); a(f"s_mov_b32 s{rOUT+2}, {2048*896*2}"); a(f"s_mov_b32 s{rOUT+3}, 0x00020000")
        if ws: ws_desc()
        a(f"s_lshl_b32 s{t2}, s{sb}, 21")
        a(f"s_add_u32 s{t2}, s{t2}, {B_BASE}")
        a(f"s_add_u32 s{rBR}, s20, s{t2}")
        a(f"s_addc_u32 s{rBR+1}, s21, 0")
        a(f"s_mov_b32 s{rBR+2}, {2<<20}")
        a(f"s_mov_b32 s{rBR+3}, 0x00020000")
        a(f"s_mov_b32 s{sg}, {g}")
        a(f"s_and_b32 s{shs}, s{srb}, 1")
        if g: a(f"s_xor_b32 s{shs}, s{shs}, 1")
        a(f"s_lshl_b32 s{shl}, s{shalf}, 1")
        a(f"s_add_u32 s{shl}, s{shl}, s{shs}")
        a(f"s_lshl_b32 s{t2}, s{shl}, 18")
        a(f"s_add_u32 s{rKV}, s{rWS}, s{t2}")
        a(f"s_addc_u32 s{rKV+1}, s{rWS+1}, 0")
        a(f"s_mov_b32 s{rKV+2}, 262144")
        a(f"s_mov_b32 s{rKV+3}, 0x00020000")
        a(f"s_and_b32 s{skq}, s{sw}, 3")
        a(f"s_lshl_b32 s{sKVO}, s{skq}, 16")
        a(f"v_and_b32 v{u0}, 15, v0")
        a(f"v_lshlrev_b32 v{u0}, 3, v{u0}")
        a(f"s_lshl_b32 s{t0}, s{shalf}, 2")
        a(f"s_add_u32 s{t0}, s{t0}, s{skq}")
        a(f"s_mul_i32 s{t0}, s{t0}, {F1SP}")
        a(f"s_add_u32 s{t0}, s{t0}, {X_F1}")
        a(f"v_add_u32 v{F1A}, s{t0}, v{u0}")
    def ids2b(g):
        a(f"v_lshlrev_b32 v{L16}, 4, v0")
        a(f"v_lshlrev_b32 v{L8}, 3, v0")
        a(f"v_lshlrev_b32 v{u0}, 2, v0")
        a(f"v_mov_b32 v{IDX}, 0xdddddddd")
        pb = PB1 if g else PB0; mx = MX + 1024 * g
        a(f"s_lshl_b32 s{t1}, s{skq}, 8")
        a(f"s_add_u32 s{t1}, s{t1}, {mx}")
        a(f"v_add_u32 v{MW}, s{t1}, v{u0}")
        a(f"s_mul_i32 s{t1}, s{skq}, 12288")
        a(f"s_add_u32 s{t1}, s{t1}, {pb}")
        a(f"v_add_u32 v{PR}, s{t1}, v{L16}")
        for i in range(3):
            a(f"s_add_u32 s{t0}, s{skq}, {1+i}")
            a(f"s_and_b32 s{t0}, s{t0}, 3")
            a(f"s_lshl_b32 s{t1}, s{t0}, 8")
            a(f"s_add_u32 s{t1}, s{t1}, {mx}")
            a(f"v_add_u32 v{MR+i}, s{t1}, v{u0}")
            a(f"s_mul_i32 s{t1}, s{t0}, 12288")
            a(f"s_add_u32 s{t1}, s{t1}, {pb + 4096*i}")
            a(f"v_add_u32 v{PW+i}, s{t1}, v{L16}")
        a(f"v_mov_b32 v{CA}, {GBC + 4*g}")
        a(f"v_mov_b32 v{ONE}, 1")
        a(f"s_lshl_b32 s{sQT}, s{srb}, 2")
        a(f"s_add_u32 s{sQT}, s{sQT}, s{skq}")
        a(f"s_lshl_b32 s{t0}, s{sg4}, 2")
        a(f"s_lshr_b32 s{t0}, {sum((2*ORD[g_]) << (4*g_) for g_ in range(4)):#x}, s{t0}")
        a(f"s_and_b32 s{t0}, s{t0}, 7")
        a(f"s_add_u32 s{t0}, s{t0}, s{shalf}")
        a(f"s_lshl_b32 s{t1}, s{shs}, 3")
        a(f"s_add_u32 s{t0}, s{t0}, s{t1}")
        a(f"s_lshl_b32 s{t1}, s{sQT}, 4")
        a(f"s_add_u32 s{t1}, s{t1}, s{t0}")
        a(f"s_mul_i32 s{sOO}, s{t1}, 1792")
        a(f"s_mul_i32 s{sF2O}, s{t1}, {F2SP}")
        a(f"s_add_u32 s{sF2O}, s{sF2O}, {B_F2}")
    def late_addr():
        a(f"s_lshl_b32 s{t0}, s{sg4}, 3")
        a(f"s_lshr_b32 s{t1}, s{sidx}, 2")
        a(f"s_add_u32 s{t0}, s{t0}, s{t1}")
        a(f"s_and_b32 s{t1}, s{t0}, 2")
        a(f"s_xor_b32 s{t1}, s{t1}, 2")
        a(f"s_lshl_b32 s{t1}, s{t1}, 2")
        a(f"s_lshl_b32 s{t0}, s{t0}, 5")
        a(f"s_add_u32 s{t0}, s{t0}, s{t1}")
        a(f"s_and_b32 s{t1}, s{skq}, 1")
        a(f"s_mul_i32 s{sLL}, s{t1}, 14336")
        a(f"s_lshl_b32 s{t1}, s{t1}, 4")
        a(f"s_add_u32 s{t0}, s{t0}, s{t1}")
        a(f"s_and_b32 s{t1}, s{skq}, 2")
        a(f"s_lshl_b32 s{t1}, s{t1}, 1")
        a(f"s_add_u32 s{t0}, s{t0}, s{t1}")
        a(f"v_and_b32 v{LF}, 3, v0")
        a(f"v_add_u32 v{LF}, s{t0}, v{LF}")
        a(f"v_mul_u32_u24 v{LF}, {F2SP}, v{LF}")
        a(f"v_add_u32 v{LF}, {B_F2}, v{LF}")
        a(f"s_mul_i32 s{sLS}, s{t0}, 1792")
        a(f"s_add_u32 s{sLS2}, s{sLS}, 4096")
        a(f"s_mul_i32 s{t1}, s{t1}, 1792")
        a(f"s_add_u32 s{sLL}, s{sLL}, s{t1}")
        a(f"s_add_u32 s{sLL}, s{sLL}, 28672")
        a(f"s_lshl_b32 s{t1}, s{skq}, 2")
        a(f"s_add_u32 s{t1}, s{t1}, {GBC + 16}")
        a(f"v_mov_b32 v{LM}, s{t1}")
        a(f"v_mov_b32 v{C0A}, {GBC}")
    def pre2():
        late_addr()
        for r in range(4): a(f"v_mov_b32 v{SB[0]+r}, 0")
        a("s_nop 1")
        for i in range(4): a(f"v_mfma_f32_32x32x16_bf16 {vr(O[i],16)}, {vr(SB[0],4)}, {vr(SB[0],4)}, 0")
        if STAMP: a("s_mov_b64 s[2:3], s[20:21]")
        a(f"s_add_u32 s{t0}, s{rKV}, s{sKVO}")
        a(f"s_addc_u32 s{t1}, s{rKV+1}, 0")
        for k in range(8):
            a(f"s_add_u32 s{KP[k]}, s{t0}, {8192*k + 4096}")
            a(f"s_addc_u32 s{KP[k]+1}, s{t1}, 0")
        if WOT >= 0:
            a(f"s_lshl_b32 s{t0}, s{sidx}, 2")
            a(f"s_add_u32 s{t0}, s{t0}, s{skq}")
            a(f"s_mul_i32 s{t0}, s{t0}, 25")
            a(f"v_min_u32 v{TAU}, 24, v0")
            a(f"v_add_u32 v{TAU}, s{t0}, v{TAU}")
            a(f"v_lshlrev_b32 v{TAU}, 7, v{TAU}")
    def getq(g):
        a(f"s_lshl_b32 s{t1}, s{shs}, 13")
        a(f"s_add_u32 s{t1}, s{t1}, {QX}")
        for i in range(4):
            a(f"s_add_u32 s{t0}, s{skq}, {1+i}")
            a(f"s_and_b32 s{t0}, s{t0}, 3")
            a(f"s_lshl_b32 s{t0}, s{t0}, 11")
            a(f"s_add_u32 s{t0}, s{t0}, s{t1}")
            a(f"v_add_u32 v{u0+i}, s{t0}, v{L16}")
        a(f"v_mov_b32 v{T+4}, {GBC + 8}")
        a(f"v_mov_b32 v{T+5}, {GBC + 12 if g else GBC - 4}")
    def getq2():
        lwait(a, "L_q", 0, 4, 0 if QFAST else 1, T + 4)
        for i in (3, 0, 1, 2):
            a(f"ds_read_b128 {vr(Q[i],4)}, v{u0+i}")
            a(f"ds_read_b128 {vr(Q[i]+4,4)}, v{u0+i} offset:1024")
    def nonce(tag):
        a(f"s_mov_b32 s{t3}, {SPIN}")
        a.lab(f"L_nonce{tag}")
        a(f"v_readfirstlane_b32 s{NONCE}, v{NV}")
        a(f"v_readfirstlane_b32 s{NONCE+1}, v{NV+1}")
        a(f"s_cmp_lg_u32 s{NONCE}, 0")
        a(f"s_cselect_b32 s{t2}, s{NONCE+1}, 0")
        a(f"s_cmp_lg_u32 s{t2}, 0")
        a(f"s_cbranch_scc0 L_nonce_retry{tag}")
    a(f"v_lshrrev_b32 v{u0}, 3, v0")
    a(f"v_lshrrev_b32 v{u1}, 4, v0")
    a(f"v_and_b32 v{u2}, 7, v0")
    a(f"s_lshl_b32 s{t0}, s{srb}, 7")
    a(f"s_lshl_b32 s{t1}, s{sw}, 5")
    a(f"s_add_u32 s{t0}, s{t0}, s{t1}")
    a(f"v_add_u32 v{u3}, s{t0}, v{u0}")
    a(f"v_mul_u32_u24 v{u3}, 896, v{u3}")
    a(f"v_xor_b32 v{u4}, v{u2}, v{u1}")
    a(f"v_lshl_add_u32 v{XD}, v{u4}, 4, v{u3}")
    a(f"v_xor_b32 v{XD+1}, 64, v{XD}")
    a(f"v_add_u32 v{XD+1}, 7168, v{XD+1}")
    a(f"s_mul_i32 s{t0}, s{sg4}, 224")
    a(f"s_mul_i32 s{t1}, s{sw}, {16*2688}")
    a(f"s_add_u32 s{t0}, s{t0}, s{t1}")
    a(f"s_mul_i32 s{t1}, s{shalf}, 896")
    a(f"s_add_u32 s{t1}, s{t1}, s{t0}")
    a(f"s_add_u32 s{t1}, s{t1}, 896")
    a(f"v_lshlrev_b32 v{u3}, 2, v{u1}")
    a(f"v_and_b32 v{u4}, 15, v0")
    a(f"v_xor_b32 v{u4}, v{u4}, v{u3}")
    a(f"v_cmp_lt_u32 vcc, 13, v{u4}")
    a(f"v_mul_u32_u24 v{u1}, 2688, v{u1}")
    a(f"v_lshl_add_u32 v{u1}, v{u4}, 4, v{u1}")
    a(f"v_add_u32 v{WD}, s{t1}, v{u1}")
    a(f"v_bfrev_b32 v{u4}, 2")
    a(f"v_cndmask_b32 v{WD}, v{WD}, v{u4}, vcc")
    a(f"s_mul_i32 s{t1}, s{shalf}, 112")
    a(f"s_add_u32 s{t1}, s{t1}, s{t0}")
    a(f"v_and_b32 v{u3}, 4, v{u3}")
    a(f"v_xor_b32 v{u2}, v{u2}, v{u3}")
    a(f"v_cmp_lt_u32 vcc, 6, v{u2}")
    a(f"v_mul_u32_u24 v{u0}, 2688, v{u0}")
    a(f"v_lshl_add_u32 v{u0}, v{u2}, 4, v{u0}")
    a(f"v_add_u32 v{WD+1}, s{t1}, v{u0}")
    a(f"v_cndmask_b32 v{WD+1}, v{WD+1}, v{u4}, vcc")
    if ROTN > 1:
        a(f"s_mul_i32 s{sROT}, s{srb}, {ROTA}")
        if ROTB:
            a(f"s_mul_i32 s{t0}, s{shalf}, {ROTB}")
            a(f"s_add_u32 s{sROT}, s{sROT}, s{t0}")
        a(f"s_mul_i32 s{t2}, s{sg4}, {ROTC}")
        a(f"s_add_u32 s{sROT}, s{sROT}, s{t2}")
        if ROTN & (ROTN - 1) == 0:
            a(f"s_and_b32 s{sROT}, s{sROT}, {ROTN-1}")
        else:
            a(f"s_mul_i32 s{t2}, s{sROT}, {(65536 + ROTN - 1)//ROTN}")
            a(f"s_lshr_b32 s{t2}, s{t2}, 16")
            a(f"s_mul_i32 s{t2}, s{t2}, {ROTN}")
            a(f"s_sub_u32 s{sROT}, s{sROT}, s{t2}")
        if ROTS != 1: a(f"s_mul_i32 s{sROT}, s{sROT}, {ROTS}")
    else:
        a(f"s_mov_b32 s{sROT}, 0")
    assert (ROTN - 1) * ROTS < 7
    a(f"s_lshl_b32 s{sXL}, s{sw}, 12")
    a(f"s_add_u32 s{sXL}, s{sXL}, {XOFF}")
    a(f"s_mul_i32 s{sWL}, s{sw}, 6144")
    a(f"s_mov_b32 s{rX+2}, 1835008")
    a(f"s_mov_b32 s{rX+3}, 0x00020000")
    a(f"s_mov_b32 s{rW+2}, 1204224")
    a(f"s_mov_b32 s{rW+3}, 0x00020000")
    a(f"s_cmp_eq_u32 s{sb}, 0")
    a("s_waitcnt lgkmcnt(0)")
    a(f"s_cselect_b32 s{rX}, s4, s10")
    a(f"s_cselect_b32 s{rX+1}, s5, s11")
    a(f"s_cselect_b32 s{rW}, s6, s12")
    a(f"s_cselect_b32 s{rW+1}, s7, s13")
    stamp_init()
    stamp(a, "karg")
    def one(kind, i, wl=sWL, ws=sWS_, add=0, first=False):
        xf, wf = (XF0, WF0) if first else (XF, WF)
        if kind == "x":
            a(f"s_add_u32 m0, s{sXL}, {1024*i}")
            a(f"s_add_u32 s{t0}, s{sXS}, {14336*(i//2)}")
            a(f"buffer_load_dwordx4 v{XD+(i&1)}, {S4(rX)}, s{t0} offen {xf} lds")
        else:
            G, q = divmod(i, 3)
            a(f"s_add_u32 m0, s{wl}, {1024*i + add}")
            a(f"s_add_u32 s{t0}, s{ws}, {(8*G + (4*q if q < 2 else 0))*2688}")
            a(f"buffer_load_dwordx4 v{WD+(q==2)}, {S4(rW)}, s{t0} offen {wf} lds")
    sB4, sB5, sB6 = scg, su, sFB
    def issue(first):
        a(f"s_lshl_b32 s{sXS}, s{sROT}, 7")
        a(f"s_mul_i32 s{sWS_}, s{sROT}, 172032")
        for kind, i in [("x", 0), ("w", 0), ("x", 1), ("w", 1), ("x", 2), ("w", 3), ("x", 3), ("w", 4)]: one(kind, i, first=first)
        if not first:
            a(f"s_mov_b32 s{sB4}, s{sB5}")
            a(f"s_mov_b32 s{sB5}, s{sB6}")
            a(f"s_mov_b32 s{sB6}, s{sWS_}")
            a(f"s_cmp_ge_u32 s{stt}, 4")
            a("s_cbranch_scc1 L_nob")
        one("w", 2, first=first); one("w", 5, first=first)
        if not first:
            a("s_branch L_nobr")
            a.lab("L_nob")
            a("s_waitcnt vmcnt(8)")
            a.lab("L_nobr")
        a(f"s_add_u32 s{sROT}, s{sROT}, 1")
        a(f"s_cmp_eq_u32 s{sROT}, 7")
        a(f"s_cselect_b32 s{sROT}, 0, s{sROT}")
        if first:
            a(f"s_add_u32 s{sWL}, s{sWL}, {STAGE}")
            a(f"s_add_u32 s{sXL}, s{sXL}, {STAGE}")
        else:
            a(f"s_cmp_ge_u32 s{sWL}, {2*STAGE}")
            a(f"s_mov_b32 s{t0}, {STAGE}")
            a(f"s_cselect_b32 s{t0}, {(-2*STAGE) & 0xffffffff:#x}, s{t0}")
            a(f"s_add_u32 s{sWL}, s{sWL}, s{t0}")
            a(f"s_add_u32 s{sXL}, s{sXL}, s{t0}")
    if LPR: a(f"s_setprio {LPR}")
    issue(True)
    stamp(a, "iss0")
    a(f"s_mov_b32 s{stt}, 1")
    a(f"s_mov_b32 s{su}, 0")
    a(f"s_mov_b32 s{sFB}, 0")
    dbg_desc()
    ids2a(0)
    a(f"s_lshr_b32 s{t0}, s{srb}, 1")
    a(f"s_lshl_b32 s{t0}, s{t0}, 7")
    a(f"s_add_u32 s{sWOS}, s{t0}, s{sKVO}")
    a(f"v_lshlrev_b32 v{PTA}, 10, v0")
    ids2b(0)
    a(f"v_lshrrev_b32 v{u2}, 5, v0")
    a(f"s_and_b32 s{t1}, s{sidx}, 3")
    a(f"s_cmp_eq_u32 s{t1}, 3")
    a(f"s_cselect_b32 s{t0}, 8, 16")
    a(f"s_lshl_b32 s{t1}, s{t1}, 8")
    a(f"v_lshrrev_b32 v{u0}, 4, v0")
    a(f"v_lshlrev_b32 v{u1}, 2, v{u0}")
    a(f"v_and_b32 v{u3}, 15, v0")
    a(f"v_xor_b32 v{u1}, v{u1}, v{u3}")
    a(f"v_cmp_le_u32 vcc, s{t0}, v{u1}")
    a(f"v_mul_u32_u24 v{u0}, 896, v{u0}")
    a(f"v_lshl_add_u32 v{u0}, v{u1}, 4, v{u0}")
    a(f"v_add_u32 v{WOA}, s{t1}, v{u0}")
    a(f"v_bfrev_b32 v{u0}, 2")
    a(f"v_cndmask_b32 v{WOA}, v{WOA}, v{u0}, vcc")
    a(f"s_lshl_b32 s{t2}, s{skq}, 2")
    a(f"s_cmp_lt_u32 s{t2}, s{t0}")
    a(f"s_cselect_b32 s{XM}, 1, 0")
    a(f"s_mul_i32 s{sOUTO}, s{sb}, 896")
    a(f"s_add_u32 s{sOUTO}, s{sOUTO}, s{t1}")
    a(f"s_lshl_b32 s{t1}, s{skq}, 6")
    a(f"s_add_u32 s{sOUTO}, s{sOUTO}, s{t1}")
    a(f"s_lshl_b32 s{sRT}, s{sg4}, 3")
    a(f"s_lshr_b32 s{t0}, s{sidx}, 2")
    a(f"s_add_u32 s{sRT}, s{sRT}, s{t0}")
    a(f"s_bfe_u32 s{sPE}, s{sRT}, 0x10001")
    a(f"s_lshl_b32 s{sRT}, s{sRT}, 1")
    a(f"v_bfe_u32 v{u0}, v0, 2, 2")
    a(f"v_xor_b32 v{u1}, s{skq}, v{u0}")
    a(f"v_lshlrev_b32 v{u1}, 6, v{u1}")
    a(f"v_lshl_add_u32 v{u1}, v{u0}, 8, v{u1}")
    a(f"v_and_b32 v{u0}, 1, v0")
    a(f"v_lshl_add_u32 v{u1}, v{u0}, 5, v{u1}")
    a(f"v_bfe_u32 v{u0}, v0, 4, 1")
    a(f"v_lshl_add_u32 v{u1}, v{u0}, 4, v{u1}")
    a(f"v_bfe_u32 v{u0}, v0, 1, 1")
    a(f"v_lshl_add_u32 v{u1}, v{u0}, 3, v{u1}")
    HSTEP = [4, 28, 56]
    for t in range(3):
        a(f"v_mul_u32_u24 v{u0}, {HSTEP[t]*256}, v{u2}")
        a(f"v_add_u32 v{WA+t}, v{u1}, v{u0}")
    a(f"v_mov_b32 v{OA}, v{L16}")
    a(f"v_and_b32 v{u0}, 31, v0")
    a(f"v_mul_u32_u24 v{u1}, 1792, v{u2}")
    a(f"v_lshl_add_u32 v{OA+1}, v{u0}, 4, v{u1}")
    a(f"v_mul_u32_u24 v{u1}, 3584, v{u2}")
    a(f"v_lshl_add_u32 v{OA+2}, v{u0}, 3, v{u1}")
    a(f"s_lshl_b32 s{t0}, s{skq}, 12")
    a(f"s_add_u32 s{t0}, s{t0}, {TX}")
    a(f"v_add_u32 v{TR}, s{t0}, v{L16}")
    a(f"v_bfe_u32 v{u1}, v0, 1, 2")
    a(f"v_lshlrev_b32 v{u3}, 1, v{u2}")
    a(f"v_xor_b32 v{u1}, v{u1}, v{u3}")
    a(f"v_lshlrev_b32 v{u1}, 4, v{u1}")
    a(f"v_lshl_add_u32 v{u1}, v{u0}, 6, v{u1}")
    a(f"v_add_u32 v{TW}, s{t0}, v{u1}")
    a(f"v_xor_b32 v{TW+1}, 16, v{TW}")
    a(f"v_lshrrev_b32 v{u0}, 2, v0")
    a(f"s_lshl_b32 s{t0}, s{sRT}, 5")
    a(f"v_add_u32 v{u0}, s{t0}, v{u0}")
    a(f"v_mul_u32_u24 v{u0}, 1792, v{u0}")
    a(f"v_lshrrev_b32 v{u1}, 3, v0")
    a(f"v_xor_b32 v{u1}, v{u1}, v0")
    a(f"v_and_b32 v{u1}, 3, v{u1}")
    a(f"v_lshl_add_u32 v{OUTA}, v{u1}, 4, v{u0}")
    a(f"s_lshr_b32 s{t1}, s{skq}, 1")
    a(f"s_add_u32 s{t0}, s{sRT}, s{t1}")
    a(f"s_lshl_b32 s{t0}, s{t0}, 4")
    a(f"s_lshl_b32 s{t1}, s{sPE}, 3")
    a(f"s_add_u32 s{t0}, s{t0}, s{t1}")
    a(f"s_and_b32 s{t1}, s{skq}, 1")
    a(f"s_lshl_b32 s{t1}, s{t1}, 1")
    a(f"s_lshl_b32 s{t1}, s{t1}, 1")
    a(f"s_add_u32 s{sRT}, s{t0}, s{t1}")
    a(f"v_and_b32 v{u0}, 3, v0")
    a(f"v_add_u32 v{u0}, s{sRT}, v{u0}")
    a(f"v_mul_u32_u24 v{u0}, {F2SP}, v{u0}")
    a(f"v_add_u32 v{F2A}, {B_F2}, v{u0}")
    getq(0)
    a.lab("L_ld")
    issue(False)
    a(f"s_add_u32 s{stt}, s{stt}, 1")
    if SLD:
        a(f"s_cmp_lg_u32 s{stt}, {SLD}")
        a("s_cbranch_scc1 L_nosl")
        a(f"s_lshl_b32 s{t0}, s{sg4}, 5")
        a(f"s_add_u32 s{t0}, s{t0}, 128")
        a(f"s_load_dwordx2 {S2(NONCE)}, {S2(rDBG)}, s{sDL} {SGL}")
        a(f"s_load_dwordx8 s[88:95], {S2(rDBG)}, s{t0} {SGL}")
        a.lab("L_nosl")
    a(f"s_cmp_lt_u32 s{stt}, 7")
    a("s_waitcnt vmcnt(10)")
    a("s_barrier")
    a("s_cbranch_scc1 L_ld")
    a(f"s_mul_i32 s{sWL}, s{sw}, 6144")
    for ws, st_ in ((sB6, 0), (sB4, 1), (sB5, 2)):
        one("w", 2, sWL, ws, st_ * STAGE); one("w", 5, sWL, ws, st_ * STAGE)
    if not SLD: a(f"buffer_load_dwordx2 {vr(NV,2)}, off, {S4(rDBG)}, s{sDL} sc1")
    m_ = (1 << max(1, 4 * PRET)) - 1
    def touch():
        a(f"buffer_load_dword v{T+9}, v{F1A}, {S4(rWS)}, 0 offen sc1")
        a(f"s_mov_b32 exec_lo, {m_ & 0xffffffff:#x}")
        a(f"s_mov_b32 exec_hi, {m_ >> 32:#x}")
        a(f"buffer_load_dword v{T+8}, v{PTA}, {S4(rKV)}, s{sWOS} offen {TF}")
        a("s_mov_b64 exec, -1")
    if TEAR != 1: touch()
    NX = (1 if TEAR == 1 else 3) - (1 if SLD else 0)
    if SLD:
        a(f"s_getreg_b32 s{t2}, hwreg(HW_REG_XCC_ID)")
        a(f"s_and_b32 s{t2}, s{t2}, 15")
        a(f"s_lshl_b32 s{t0}, s{sx}, 4")
        a(f"s_or_b32 s{t2}, s{t2}, s{t0}")
        a(f"s_or_b32 s{t2}, s{t2}, 0x80")
        a(f"s_mul_i32 s{t2}, s{t2}, 0x01010101")
        a(f"s_lshl_b32 s{t0}, s{sw}, 4")
        a(f"s_add_u32 s{t0}, s{t0}, {NRC}")
        a(f"v_mov_b32 v{T+6}, s{t0}")
        a("s_waitcnt lgkmcnt(0)")
        a(f"s_xor_b32 s{t1}, s88, s{t2}")
        for k in range(89, 96):
            a(f"s_xor_b32 s{t0}, s{k}, s{t2}")
            a(f"s_or_b32 s{t1}, s{t1}, s{t0}")
        a(f"v_mov_b32 v{NV}, s{NONCE}")
        a(f"v_mov_b32 v{NV+1}, s{NONCE+1}")
        a(f"v_mov_b32 v{NV+2}, s{t1}")
        a(f"ds_write_b96 v{T+6}, {vr(NV,3)}")
        a("s_waitcnt lgkmcnt(0)")
    a(f"s_waitcnt vmcnt({6 + NX})")
    stamp(a, "lw6")
    a("s_barrier")
    if LPR: a("s_setprio 0")
    pre2()
    if B2:
        a(f"s_waitcnt vmcnt({NX + 2})")
        a("s_barrier")
    a(f"s_waitcnt vmcnt({NX})")
    a("s_barrier")
    def touch2():
        m2 = ((1 << (4 * PRET2)) - 1) & ~m_
        a(f"s_mov_b32 exec_lo, {m2 & 0xffffffff:#x}")
        a(f"s_mov_b32 exec_hi, {m2 >> 32:#x}")
        a(f"buffer_load_dword v{T+10}, v{PTA}, {S4(rKV)}, s{sWOS} offen sc1")
        a("s_mov_b64 exec, -1")
    if PRET2 and T2POS == "b6": touch2()
    if not SLD: a(f"s_waitcnt vmcnt({NX - 1})")
    nonce("L")
    if PRET2 and T2POS == "late": touch2()
    a("s_setprio 2")
    stamp(a, "lready")
    a("s_branch L_ph2")

    a.lab("L_comp")
    a("s_setprio 3")
    a(f"s_getreg_b32 s{t2}, hwreg(HW_REG_XCC_ID)")
    a(f"s_and_b32 s{t2}, s{t2}, 15")
    a(f"s_lshl_b32 s{t0}, s{sx}, 4")
    a(f"s_or_b32 s{t2}, s{t2}, s{t0}")
    a(f"s_or_b32 s{t2}, s{t2}, 0x80")
    a(f"s_lshl_b32 s{t1}, s{sg4}, 5")
    a(f"s_add_u32 s{t1}, s{t1}, 128")
    a(f"v_mov_b32 v{NV}, s{t2}")
    a(f"v_and_b32 v{NA}, 3, v0")
    a(f"v_lshlrev_b32 v{NA}, 3, v{NA}")
    a(f"v_add_u32 v{NA}, s{t1}, v{NA}")
    a(f"s_add_u32 s{t1}, s{t1}, s{sidx}")
    a("v_mov_b32 v238, 0")
    a("v_mov_b32 v239, 0")
    a("s_waitcnt lgkmcnt(0)")
    def ftouch(pairs, wave, tag):
        a(f"s_cmp_lg_u32 s{sw}, {wave}")
        a(f"s_cbranch_scc1 L_ft{tag}")
        a(f"s_add_u32 s{t0}, s{sg4}, 1")
        a(f"s_and_b32 s{t0}, s{t0}, 2")
        a(f"s_cbranch_scc1 L_ft{tag}")
        a(f"s_and_b32 s{t0}, s{sg4}, 1")
        a(f"s_lshl_b32 s{t0}, s{t0}, 5")
        a(f"s_add_u32 s{t0}, s{t0}, s{sidx}")
        a(f"v_and_b32 v{T+6}, 31, v0")
        a(f"v_lshrrev_b32 v{T+7}, 5, v0")
        a(f"v_mul_u32_u24 v{T+8}, 896, v{T+6}")
        a(f"v_lshl_add_u32 v{T+8}, v{T+7}, 7, v{T+8}")
        a(f"v_min_u32 v{T+6}, 20, v{T+6}")
        a(f"v_mul_u32_u24 v{T+7}, 172032, v{T+7}")
        a(f"v_lshl_add_u32 v{T+9}, v{T+6}, 7, v{T+7}")
        a(f"s_mul_i32 s{t3}, s{t0}, {32*896}")
        a(f"s_mul_i32 s{t0}, s{t0}, 2688")
        for pr in pairs:
            c_ = 2 * int(pr) - 1
            a(f"s_add_u32 s{sROT}, s{t0}, {c_*172032}")
            a(f"buffer_load_dword v{T+10}, v{T+9}, {S4(rW)}, s{sROT} offen")
            a(f"buffer_load_dword v{T+11}, v{T+8}, {S4(rX)}, s{t3} offen offset:{c_*128}")
        a.lab(f"L_ft{tag}")
    if FT:
        a(f"s_cmp_eq_u32 s{sb}, 0")
        a(f"s_cselect_b32 s{rX}, s4, s10")
        a(f"s_cselect_b32 s{rX+1}, s5, s11")
        a(f"s_cselect_b32 s{rW}, s6, s12")
        a(f"s_cselect_b32 s{rW+1}, s7, s13")
        a(f"s_mov_b32 s{rX+2}, 1835008")
        a(f"s_mov_b32 s{rX+3}, 0x00020000")
        a(f"s_mov_b32 s{rW+2}, 1204224")
        a(f"s_mov_b32 s{rW+3}, 0x00020000")
        ftouch(FT.split("/")[0], 5, "a")
    dbg_desc()
    a(f"s_mul_i32 s{XM}, s{t2}, 0x01010101")
    a(f"s_mov_b32 s{XM+1}, s{XM}")
    a("s_mov_b64 exec, 1")
    a(f"v_mov_b32 v{NA}, s{sDL}")
    a(f"s_cmp_lg_u32 s{sw}, 4")
    a("s_cbranch_scc1 L_noreg")
    a(f"buffer_store_byte v{NV}, off, {S4(rDBG)}, s{t1}")
    if UBY: a(f"buffer_load_ubyte v{T+12}, off, {S4(rDBG)}, s{t1} sc1")
    a(f"s_cmp_lg_u32 s{sidx}, 0")
    a("s_cbranch_scc1 L_noreg")
    a(f"s_or_b32 s{t0}, s{RT}, 1")
    a(f"s_or_b32 s{t2}, s{RT+1}, 1")
    a(f"v_mov_b32 v236, s{t0}")
    a(f"v_mov_b32 v237, s{t2}")
    a(f"buffer_atomic_cmpswap_x2 v[236:239], off, {S4(rDBG)}, s{sDL} sc1")
    a.lab("L_noreg")
    a("s_mov_b64 exec, -1")
    stamp_init()
    a(f"s_and_b32 s{stt}, s{sw}, 1")
    a(f"s_bfe_u32 s{scg}, s{sw}, 0x10001")
    a(f"v_and_b32 v{u0}, 31, v0")
    a(f"v_bfe_u32 v{u1}, v0, 1, 3")
    a(f"v_lshrrev_b32 v{u2}, 5, v0")
    a(f"v_xor_b32 v{u1}, v{u1}, v{u2}")
    a(f"v_lshlrev_b32 v{u1}, 4, v{u1}")
    a(f"v_lshl_add_u32 v{u1}, v{u0}, 7, v{u1}")
    a(f"s_lshl_b32 s{t0}, s{stt}, 13")
    a(f"s_add_u32 s{t0}, s{t0}, {XOFF}")
    for ks in range(4):
        a(f"v_xor_b32 v{XA+ks}, {32*ks}, v{u1}")
        a(f"v_add_u32 v{XA+ks}, s{t0}, v{XA+ks}")
    a(f"v_bfe_u32 v{u0}, v0, 4, 1")
    a(f"v_and_b32 v{u1}, 3, v0")
    a(f"v_lshlrev_b32 v{u1}, 3, v{u1}")
    a(f"v_lshl_add_u32 v{u0}, v{u0}, 5, v{u1}")
    a(f"s_mul_i32 s{t0}, s{scg}, 112")
    a(f"v_add_u32 v{WA1}, s{t0}, v{u0}")
    a(f"v_add_u32 v{WA1+1}, 56, v{WA1}")
    a(f"s_mul_i32 s{t0}, s{scg}, 56")
    a(f"v_add_u32 v{WA1+2}, s{t0}, v{u0}")
    a("s_mov_b32 exec_lo, 0x88880000")
    a("s_mov_b32 exec_hi, 0x88880000")
    a(f"v_or_b32 v{WA1}, 192, v{WA1}")
    a(f"v_or_b32 v{WA1+1}, 192, v{WA1+1}")
    a(f"v_or_b32 v{WA1+2}, 64, v{WA1+2}")
    a("s_mov_b64 exec, -1")
    a(f"v_bfe_u32 v{u1}, v0, 2, 2")
    a(f"v_mul_u32_u24 v{u2}, 3072, v{u2}")
    a(f"v_lshl_add_u32 v{u3}, v{u1}, 8, v{u2}")
    a(f"v_lshlrev_b32 v{u4}, 6, v{u1}")
    for c in range(2):
        a(f"v_xor_b32 v{WA1+c}, v{WA1+c}, v{u4}")
        a(f"v_add_u32 v{WA1+c}, v{WA1+c}, v{u3}")
    a(f"v_lshl_add_u32 v{u3}, v{u1}, 7, v{u2}")
    a(f"v_lshlrev_b32 v{u4}, 5, v{u1}")
    a(f"v_and_b32 v{u4}, 64, v{u4}")
    a(f"v_xor_b32 v{WA1+2}, v{WA1+2}, v{u4}")
    a(f"v_add_u32 v{WA1+2}, v{WA1+2}, v{u3}")
    Z = FR + 60
    for r in range(20): a(f"v_mov_b32 v{Z+r}, 0")
    a(f"v_mov_b32 v{u0}, {GBC}")
    a(f"ds_write_b128 v{u0}, {vr(Z+16,4)}")
    a(f"ds_write_b128 v{u0}, {vr(Z+16,4)} offset:16")
    for t_ in range(6): a(f"v_mfma_f32_32x32x16_bf16 {vr(ACC+16*t_,16)}, {vr(Z+16,4)}, {vr(Z+16,4)}, 0")
    a("s_mov_b32 exec_hi, 0")
    a(f"v_mov_b32 v{Z}, 0x3f80")
    a(f"v_mov_b32 v{Z+4}, 0x3f80")
    a("s_mov_b32 exec_lo, 0x10000000")
    a(f"v_mov_b32 v{Z+8}, 0x3f80")
    a(f"v_mov_b32 v{Z+12}, 0x3f80")
    a("s_mov_b64 exec, -1")
    def capture(f):
        keep = a.l; a.l = []
        f()
        got = [x.strip() for x in a.l]; a.l = keep
        return got
    lateA = capture(lambda: ids2a(1, False)); lateB = capture(lambda: ids2b(1))
    ws_desc()
    a(f"v_lshlrev_b32 v{L16}, 4, v0")
    a(f"v_and_b32 v{u0}, 0x33, v0")
    a(f"v_bfe_u32 v{u1}, v0, 2, 1")
    a(f"v_lshl_add_u32 v{u0}, v{u1}, 3, v{u0}")
    a(f"v_bfe_u32 v{u1}, v0, 3, 1")
    a(f"v_lshl_add_u32 v{u0}, v{u1}, 2, v{u0}")
    a(f"v_lshlrev_b32 v{TAU}, 4, v{u0}")
    sE0, sSC, sDLT, sCNT = sXS, sWS_, sWL, sXL
    a(f"s_lshl_b32 s{t0}, s{scg}, 2")
    a(f"s_lshr_b32 s{t1}, s{srb}, 2")
    a(f"s_add_u32 s{t0}, s{t0}, s{t1}")
    a(f"s_mul_i32 s{sF1O}, s{t0}, {F1SP}")
    a(f"s_lshl_b32 s{t0}, s{shalf}, 2")
    a(f"s_and_b32 s{t1}, s{srb}, 3")
    a(f"s_add_u32 s{t0}, s{t0}, s{t1}")
    a(f"s_lshl_b32 s{t0}, s{t0}, 1")
    a(f"s_add_u32 s{t0}, s{t0}, s{stt}")
    a(f"s_lshl_b32 s{t0}, s{t0}, 3")
    a(f"s_add_u32 s{sF1O}, s{sF1O}, s{t0}")
    a(f"s_add_u32 s{sF1O}, s{sF1O}, {X_F1}")
    if TEAR == 2: a(f"buffer_load_dword v{T+9}, off, {S4(rWS)}, s{sF1O} sc1")
    a(f"s_lshl_b32 s{t0}, s{srb}, 1")
    a(f"s_add_u32 s{t0}, s{t0}, s{stt}")
    a(f"s_lshl_b32 s{t1}, s{scg}, 6")
    a(f"s_add_u32 s{t0}, s{t0}, s{t1}")
    a(f"s_lshl_b32 s{sE0}, s{t0}, 13")
    SE = [sE0, rX, rX + 1, rX + 2]
    for t_, d_ in ((1, 4096), (2, 64 * 4096), (3, 65 * 4096)): a(f"s_add_u32 s{SE[t_]}, s{sE0}, {d_}")
    a(f"s_sub_u32 s{t0}, s{sw}, 4")
    a(f"s_lshl_b32 s{t0}, s{t0}, 12")
    a(f"s_add_u32 s{t0}, s{t0}, {QX}")
    a(f"v_add_u32 v{QW}, s{t0}, v{L16}")
    if SLD:
        a(f"s_lshl_b32 s{t0}, s{sw}, 4")
        a(f"s_add_u32 s{t0}, s{t0}, {NRC - 64}")
        a(f"v_mov_b32 v{PTA}, s{t0}")
    a(f"s_mov_b32 s{sSC}, {CSCALE:#x}")
    a(f"s_mov_b32 s{sCNT}, 0")
    a(f"s_mov_b32 s{sDLT}, 0")
    if FT and FT.split("/")[1]: ftouch(FT.split("/")[1], 6, "b")
    if CPF:
        a(f"s_cmp_lg_u32 s{sw}, 5")
        a("s_cbranch_scc1 L_nocpf")
        a(f"s_sub_u32 s{t0}, s{sidx}, 1")
        a(f"s_cmp_ge_u32 s{t0}, 3")
        a("s_cbranch_scc1 L_nocpf")
        a(f"s_getpc_b64 {S2(NONCE)}")
        a.lab("L_pc")
        a(f"s_lshl_b32 s{t0}, s{t0}, 13")
        a(f"v_lshlrev_b32 v{u0}, 7, v0")
        a(f"v_add_u32 v{u0}, s{t0}, v{u0}")
        a(f"v_min_u32 v{u0}, L_fallback-L_pc, v{u0}")
        a(f"global_load_dword v{T+10}, v{u0}, {S2(NONCE)}")
        a.lab("L_nocpf")
    a(f"s_cmp_lg_u32 s{shalf}, 0")
    a("s_cbranch_scc1 P1_v1")
    def reads(ks):
        b = FR + 20 * ks
        out = [f"ds_read_b128 {vr(b+4*e,4)}, v{XA+ks} offset:{4096*e}" for e in range(2)]
        for c in range(3):
            for h in range(2):
                off = 6144 * ks + (1024 * h if c < 2 else 2048 + 512 * h)
                out.append(f"ds_read_b64_tr_b16 {vr(b+8+4*c+2*h,2)}, v{WA1+c} offset:{off}")
        return [out[0], out[2], out[3], out[1]] + out[4:]
    def mfma1(ks, e, c, ori):
        b = FR + 20 * ks
        x = vr(b + 4 * e, 4); w = vr(b + 8 + 4 * c, 4)
        p, q = (w, x) if ori[c] == 'n' else (x, w)
        d = vr(ACC + 16 * (2 * c + e), 16)
        return f"v_mfma_f32_32x32x16_bf16 {d}, {p}, {q}, {d}"
    tiles = [(0, 0), (1, 0), (0, 1), (1, 1), (0, 2), (1, 2)]
    pend = []; cnt = [0]; ctx = [""]
    def epi(t_):
        e, c = tiles[t_]
        d = ACC + 16 * (2 * c + e)
        P = d
        out = []
        if c == 2: out += [[f"v_mul_f32 v{d+r}, s{sSC}, v{d+r}"] for r in range(16)]
        out += [[f"v_cvt_pk_bf16_f32 v{P+i}, v{d+2*i}, v{d+2*i+1}"] for i in range(8)]
        if c == 2:
            out += [[f"ds_write_b128 v{QW}, {vr(P,4)} offset:{2048*e}"], [f"ds_write_b128 v{QW}, {vr(P+4,4)} offset:{2048*e+1024}"]]
        else:
            out.insert(4, ("st", t_, 0, P)); out.append(("st", t_, 1, P + 4))
        return out
    def emit(x):
        a(x); cnt[0] += 1
    def drain(nmax):
        n_ = 0
        while pend and n_ < nmax and pend[0][0] <= cnt[0]:
            g_ = pend.pop(0)[1]
            if g_[0] == "st": stq.append(g_)
            else:
                for x in g_: emit(x)
                n_ += len(g_)
    stq = []; nm = [0, -99]
    def store():
        if not stq or nm[0] - nm[1] < SP: return 0
        _, t_, f, P = stq.pop(0)
        tag = f"{ctx[0]}{t_}{f}"
        emit(f"s_cbranch_vccz L_wt{tag}")
        emit(f"buffer_store_dwordx4 {vr(P,4)}, v{TAU}, {S4(rWS)}, s{SE[t_]} offen offset:{1024*f} {KVS}")
        a.lab(f"L_st{tag}")
        if f: stamp(a, f"st{t_}")
        tails.append((tag, P, SE[t_], 1024 * f)); nm[1] = nm[0]
        return 2
    def fill(nmax):
        if pend and pend[0][0] > cnt[0]:
            gap = min(nmax - 1, pend[0][0] - cnt[0])
            a(f"s_nop {gap-1}"); cnt[0] += gap
            nmax -= gap
        drain(nmax)
    for v, ori in enumerate(["nnn", "vvn"]):
        a.lab(f"P1_v{v}")
        if v == 1: a(f"v_add_u32 v{TAU}, 2048, v{L16}")
        a("s_waitcnt lgkmcnt(0)")
        stamp(a, "setup")
        mm = [(e, c) for c in range(3) for e in range(2)]
        def cstamps():
            if STAMP or DIAG:
                if len(DIAG) == 2 and DIAG[0] == "c" and DIAG != "c0":
                    a("s_memrealtime s[82:83]")
                    a(f"s_cmp_eq_u32 s{sCNT}, {int(DIAG[1])}")
                    a("s_waitcnt lgkmcnt(0)")
                    a("s_cselect_b32 s80, s82, s80")
                for nm in (STL if STAMP else []):
                    if len(nm) == 2 and nm[0] == "c" and nm != "c0":
                        a(f"s_cmp_eq_u32 s{sCNT}, {int(nm[1])}")
                        a(f"s_cbranch_scc1 L_ns{v}{nm}")
                        a.lab(f"L_nb{v}{nm}")
                        stails.append((f"{v}{nm}", nm))
        a("s_barrier")
        stamp(a, "c0")
        for x in reads(0): a(x)
        if FT and len(FT.split("/")) > 2: ftouch(FT.split("/")[2], 7, f"c{v}")
        a.raw(".p2align 6")
        a.lab(f"P1_loop{v}")
        for ks, rk in ((3, 1), (0, 2), (1, 3)):
            rd = reads(rk)
            if ks != 3: a("s_waitcnt lgkmcnt(8)")
            for j, (e, c) in enumerate(mm):
                a(mfma1(ks, e, c, ori))
                for x in rd[2*j:2*j+2]: a(x)
                if ks == 3 and j == 4:
                    a(f"s_add_u32 s{sCNT}, s{sCNT}, 1")
                    a(f"s_mov_b32 s{sDLT}, {STAGE}")
                if ks == 0 and j == 4:
                    a(f"s_cmp_eq_u32 s{sCNT}, 3")
                    a(f"s_cselect_b32 s{sDLT}, {(-2*STAGE) & 0xffffffff:#x}, s{sDLT}")
                if ks == 1 and j == 4:
                    for i in range(4): a(f"v_add_u32 v{XA+i}, s{sDLT}, v{XA+i}")
                if ks == 1 and j == 5:
                    for i in range(4, 7): a(f"v_add_u32 v{XA+i}, s{sDLT}, v{XA+i}")
        a("s_waitcnt lgkmcnt(8)")
        rd = reads(0)
        for j, (e, c) in enumerate(mm):
            a(mfma1(2, e, c, ori))
            if j == BPOS - 1: a("s_waitcnt lgkmcnt(0)")
            if j == BPOS:
                a("s_barrier")
                cstamps()
            if j > BPOS:
                n_ = -(-8 // (5 - BPOS)) if j < 5 else 8
                for x in rd[:n_]: a(x)
                rd = rd[n_:]
        if BPOS == 5:
            for x in rd: a(x)
        a(f"s_cmp_lt_u32 s{sCNT}, 4")
        a(f"s_cbranch_scc1 P1_loop{v}")
        m4 = mm[:4]
        for ch in (4, 5):
            dl = STAGE if ch == 4 else (-2 * STAGE) & 0xffffffff
            for ks, rk in ((3, 1), (0, 2), (1, 3)):
                rd = reads(rk)[:6]
                if ks != 3: a("s_waitcnt lgkmcnt(6)")
                for j, (e, c) in enumerate(mm if (ch == 4 and ks == 3) else m4):
                    a(mfma1(ks, e, c, ori))
                    for x in rd[2*j:2*j+2]: a(x)
                    if ch == 5 and ks == 3 and j == 0 and not SLD:
                        a(f"buffer_load_dwordx2 {vr(NV,2)}, v{NA}, {S4(rDBG)}, 0 offen sc1")
                    if ks == 0 and j == 3: a(f"s_mov_b32 s{sDLT}, {dl:#x}")
                    if ks == 1 and j == 3:
                        for i in range(4): a(f"v_add_u32 v{XA+i}, s{sDLT}, v{XA+i}")
            a("s_waitcnt lgkmcnt(6)")
            rd = reads(0)[:6]
            a(mfma1(2, *m4[0], ori))
            for i in range(4, 7): a(f"v_add_u32 v{XA+i}, s{sDLT}, v{XA+i}")
            a("s_waitcnt lgkmcnt(0)")
            a(mfma1(2, *m4[1], ori))
            a("s_barrier")
            stamp(a, f"d{ch+1}")
            a(mfma1(2, *m4[2], ori))
            for x in rd[:3]: a(x)
            a(mfma1(2, *m4[3], ori))
            for x in rd[3:]: a(x)
        rd = reads(1)[:6] + reads(2)[:6]
        for j, (e, c) in enumerate(m4):
            a(mfma1(3, e, c, ori))
            for x in rd[3*j:3*j+3]: a(x)
        for x in reads(3)[:4]: a(x)
        ctx[0] = str(v); pend.clear(); cnt[0] = 0; stq.clear(); nm[:] = [0, -99]
        seq = [(0, 0), (0, 1), (1, 0), (1, 1), (2, 0), (2, 1), (3, 0), (3, 1)] + [(k, t_) for t_ in range(2, 4) for k in range(4)]
        for i, (k, t_) in enumerate(seq):
            if i == 0: emit("s_waitcnt lgkmcnt(14)")
            if i == 2: emit("s_waitcnt lgkmcnt(12)")
            if i == 4: emit("s_waitcnt lgkmcnt(6)")
            if i == 6:
                emit("s_waitcnt lgkmcnt(0)" if SLD else "s_waitcnt vmcnt(0) lgkmcnt(0)")
                stamp(a, "last")
            emit(mfma1(k, *tiles[t_], ori))
            first = cnt[0]; nm[0] += 1
            store()
            if i == 0:
                for x in reads(3)[4:6]: emit(x)
            if i == 4 and SLD: emit(f"ds_read_b96 {vr(NV,3)}, v{PTA}")
            if i == 6:
                if SLD:
                    emit(f"v_readfirstlane_b32 s{t0}, v{NV+2}")
                    emit("s_nop 0")
                    emit(f"s_cmp_eq_u32 s{t0}, 0")
                else:
                    emit(f"v_cmp_eq_u64 vcc, {S2(XM)}, {vr(NV,2)}")
                    emit(f"s_and_b32 s{t0}, vcc_lo, 0xf0")
                    emit(f"s_cmp_eq_u32 s{t0}, 0xf0")
                emit(f"s_cselect_b32 s{sLOC}, {1 if LOCAL else 0}, 0")
                emit(f"s_cselect_b64 vcc, {-1 if LOCAL else 0}, 0")
            if k == 3: pend.extend((first + 12, g_) for g_ in epi(t_))
            if i == QB:
                emit("s_barrier")
                stamp(a, "bar7")
                for ks in range(2):
                    for x in reads(ks)[6:]: emit(x)
            elif i == QB + 1:
                for ks in range(2, 4):
                    for x in reads(ks)[6:]: emit(x)
            elif i != 6 and i != 15: fill(6)
        snap = (list(pend), cnt[0], list(stq), list(nm))
        if v == 0: a("s_branch P1_done")
    a.lab("P1_done")
    ctx[0] = "c"; pend[:] = snap[0]; cnt[0] = snap[1]; stq[:] = snap[2]; nm[:] = snap[3]
    if QB > 15:
        while pend: fill(99 if pend[0][0] <= cnt[0] else 13)
        emit("s_barrier")
        for ks in range(4):
            for x in reads(ks)[6:]: emit(x)
    def qreads(ks, base):
        b = FR + 20 * ks
        return [f"ds_read_b128 {vr(b,4)}, v{XA+ks} offset:{base}",
                f"ds_read_b64_tr_b16 {vr(b+16,2)}, v{WA1+2} offset:{base + 6144*ks + 2048}",
                f"ds_read_b64_tr_b16 {vr(b+18,2)}, v{WA1+2} offset:{base + 6144*ks + 2560}",
                f"ds_read_b128 {vr(b+4,4)}, v{XA+ks} offset:{base + 4096}"]
    def flag1():
        assert not any(g_[1][0] == "st" for g_ in pend) and not stq
        stamp(a, "prefl")
        nonce("C")
        a("s_mov_b64 exec, 1")
        a(f"s_cmp_eq_u32 s{sLOC}, 0")
        a("s_waitcnt vmcnt(0)")
        a("s_cbranch_scc1 L_f1wt")
        a(f"buffer_store_dwordx2 {vr(NV,2)}, off, {S4(rWS)}, s{sF1O}")
        a.lab("L_f1st")
        a("s_mov_b64 exec, -1")
        stamp(a, "ack1")
        cnt[0] += 10
    def late(nmax):
        q_ = lateB if (not lateA or (nq <= FPOS < 12)) and False else (lateA if lateA else lateB)
        if lateA and len(lateA) == nA and nq <= FPOS < 12: return
        for _ in range(min(nmax, len(q_))): emit(q_.pop(0))
    nA = len(lateA)
    nq = 0
    for rnd in range(3):
        order_ = [(ks, e) for ks in range(4) for e in range(2)] if rnd < 2 else [(0, 0), (0, 1), (1, 0), (2, 0), (3, 0), (1, 1), (2, 1), (3, 1)]
        for j, (ks, e) in enumerate(order_):
            if rnd == 0 and e == 0: emit(f"s_waitcnt lgkmcnt({6 + 2*ks})")
            if rnd == 1 and e == 0: emit("s_waitcnt lgkmcnt(12)")
            if rnd == 2 and e == 0: emit(f"s_waitcnt lgkmcnt({12 - 4*ks})")
            emit(mfma1(ks, e, 2, "nnn"))
            first = cnt[0]; nm[0] += 1
            store()
            nq += 1
            if B2 and rnd == 1 and j == 0: emit("s_barrier")
            if rnd < 2 and e == 1:
                if rnd == 1:
                    emit(f"v_add_u32 v{XA+ks}, {STAGE}, v{XA+ks}")
                    if ks == 0: emit(f"v_add_u32 v{WA1+2}, {STAGE}, v{WA1+2}")
                for x in qreads(ks, STAGE): emit(x)
                drain(2)
                late(2)
            elif nq != FPOS:
                if pend: fill(6)
                else: late(6)
            if rnd == 2 and ks == 3: pend.extend((first + 12, g_) for g_ in epi(4 + e))
            if nq == FPOS:
                if len(lateA) != nA:
                    while lateA: emit(lateA.pop(0))
                flag1()
    a(f"v_mov_b32 v{CA}, {GBC + 4}")
    a(f"v_mov_b32 v{ONE}, 1")
    cnt[0] += 2
    nm[0] += 99; store(); assert not stq
    if FPOS > 24:
        nq0 = len(pend) - 26 if FPOS == 25 else len(pend)
        while len(pend) > (26 if FPOS == 25 else 0): fill(1 if pend[0][0] <= cnt[0] else 13)
        if FPOS == 25:
            while lateA: emit(lateA.pop(0))
            flag1()
    while pend: fill(99 if pend[0][0] <= cnt[0] else 13)
    arrive(a, 4)
    stamp(a, "p1end")
    if FPOS == 26:
        while lateA: emit(lateA.pop(0))
        flag1()
    a("s_setprio 1")
    while lateA: a(lateA.pop(0))
    while lateB: a(lateB.pop(0))
    pre2()
    getq(1)
    a.lab("L_ph2")
    a.vreset()
    if PIPE:
        a("s_mov_b64 exec, 0xffff")
        poll_pipe(a, "L_f1", F1A, rWS, "sc1", [T + 10, T + 14])
        a("s_mov_b64 exec, -1")
        a.vm.append("poll")
    else: poll(a, "L_f1", F1A, rWS, "sc1", 16, SL1)
    stamp(a, "poll1")
    def ldK(kt, f): a.vmem(f"global_load_dwordx4 {vr(KB[kt%4]+4*f,4)}, v{L16}, {S2(KP[kt//2])} offset:{4096*(kt%2)-4096+1024*f} {KVL}", ("K", kt))
    def ldV(kt, f): a.vmem(f"global_load_dwordx4 {vr(VB[kt%4]+4*f,4)}, v{L16}, {S2(KP[kt//2])} offset:{4096*(kt%2)-2048+1024*f} {KVL}", ("V", kt))
    order = [(0, 3), (1, 3), (0, 0), (0, 1), (0, 2), (1, 0), (1, 1), (1, 2)]
    for k in range(2, 14):
        order += [(k, 0), (k, 1), (k, 2)] + ([(k, 3)] if k < 16 - NOWN else [])
    order += [(14, 0), (15, 0), (14, 1), (15, 1), (14, 2), (15, 2)] + [(k, 3) for k in range(16 - NOWN, 16)]
    assert sorted(order) == [(k, i) for k in range(16) for i in range(4)]
    NP = 64
    def qk(p):
        kt, i = order[p]
        s = SB[p % 3]; k = KB[kt % 4]
        return [f"v_mfma_f32_32x32x16_bf16 {vr(s,16)}, {vr(k,4)}, {vr(Q[i],4)}, 0",
                f"v_mfma_f32_32x32x16_bf16 {vr(s,16)}, {vr(k+4,4)}, {vr(Q[i]+4,4)}, {vr(s,16)}"]
    def pv(p):
        kt, i = order[p]
        s = SB[p % 3]; v = VB[kt % 4]
        return [f"v_smfmac_f32_32x32x32_bf16 {vr(O[i],16)}, {vr(v,4)}, {vr(s,8)}, v{IDX}",
                f"v_smfmac_f32_32x32x32_bf16 {vr(O[i],16)}, {vr(v+4,4)}, {vr(s+8,8)}, v{IDX}"]
    ldK(0, 0); ldK(0, 1)
    if not K1L: ldK(1, 0); ldK(1, 1)
    getq2()
    a.vwait(("K", 0))
    a("s_waitcnt lgkmcnt(6)")
    stamp(a, "k0")
    for x in qk(0): a(x)
    if K1L:
        ldK(1, 0); ldK(1, 1); ldV(0, 0); ldV(0, 1)
    else:
        ldV(0, 0); ldV(0, 1); ldV(1, 0); ldV(1, 1)
    a("s_mov_b64 exec, 1")
    a("s_waitcnt lgkmcnt(0)")
    a(f"ds_add_u32 v{T+5}, v{ONE}")
    a("s_mov_b64 exec, -1")
    a("s_nop 3")
    s = SB[0]
    a(f"v_max3_f32 v{T}, v{s}, v{s+1}, v{s+2}")
    a(f"v_max3_f32 v{T+1}, v{s+3}, v{s+4}, v{s+5}")
    for i in range(6, 14, 4):
        a(f"v_max3_f32 v{T}, v{T}, v{s+i}, v{s+i+1}")
        a(f"v_max3_f32 v{T+1}, v{T+1}, v{s+i+2}, v{s+i+3}")
    a(f"v_max3_f32 v{T}, v{T}, v{s+14}, v{s+15}")
    a(f"v_max_f32 v{T}, v{T}, v{T+1}")
    a(f"v_mov_b32 v{T+1}, v{T}")
    a("s_nop 1")
    a(f"v_permlane32_swap_b32 v{T}, v{T+1}")
    a(f"v_max_f32 v{T}, v{T}, v{T+1}")
    if FORCEFB: a(f"v_add_f32 v{T}, 0x43480000, v{T}")
    a(f"v_xor_b32 v{T}, 0x80000000, v{T}")
    a("s_mov_b32 exec_lo, 0")
    a(f"v_lshrrev_b32 v{Q[3]+6}, 16, v{T}")
    a("s_mov_b32 exec_lo, -1")
    a(f"ds_write_b32 v{MW}, v{Q[3]+6}")
    arrive(a)
    for x in qk(0): a(x)
    if K1L: ldV(1, 0); ldV(1, 1)
    a("s_nop 9" if K1L else "s_nop 11")
    stamp(a, "loop0")
    lastK = {k: max(p for p in range(NP) if order[p][0] == k) - 1 for k in range(16)}
    lastV = {k: max(p for p in range(NP) if order[p][0] == k) + 1 for k in range(16)}
    lq = []
    for k in range(2, 16):
        fk = lastK[k - 4] + 1 if k >= 4 else LQ0
        fv = lastV[k - 4] + 1 if k >= 4 else LQ0
        lq += [(lambda k=k: ldK(k, 0), fk), (lambda k=k: ldK(k, 1), fk), (lambda k=k: ldV(k, 0), fv), (lambda k=k: ldV(k, 1), fv)]
    wq = []
    for i in range(3):
        lp = max(p for p in range(NP) if order[p][1] == i) + 1
        for g in range(4):
            wq.append((lambda i=i, g=g: a(f"ds_write_b128 v{PW+i}, {vr(O[i]+4*g,4)} offset:{1024*g}"), 4 * (lp + 1) + 2))
    rq = [lambda i=i: a(f"ds_read_b128 {vr(O[i//4]+4*(i%4),4)}, v{PR} offset:{1024*i}") for i in range(12)]
    state = {"arr": None, "rd": False}
    def mlist(p):
        mq = qk(p + 1) if p + 1 < NP else [None, None]
        mp = pv(p - 1) if p >= 1 else [None, None]
        ms = [("q", x) for x in mq] + [("p", x) for x in mp]
        if p == 0: return ms[4-P0S:] + ms[:4-P0S]
        return ms[2:] + ms[:2] if p == 1 else ms
    def need(p, kind):
        if kind == "q":
            k1 = order[p + 1][0]
            a.vwait(("V", k1) if (k1 >= 2 and sum(1 for t in a.vm if t == ("V", k1)) == 2) else ("K", k1))
        else:
            a.vwait(("V", order[p - 1][0]))
    for p in range(NP):
        s = SB[p % 3]
        stamp(a, f"ph{p}")
        ms = mlist(p)
        if p == 1:
            lcheck(a, "L_m", 4)
            stamp(a, "bq1")
            for i in range(3): a(f"ds_read_b32 v{Q[i]+6}, v{MR+i}")
        if p == 2: a("s_nop 6")
        for g in range(4):
            kind, m = ms[g]
            if m:
                need(p, kind)
                if p == 1 and g == 3: a("s_waitcnt lgkmcnt(0)")
                a(m)
                if p >= 3:
                    np_, ng = (p, g + 1) if g < 3 else (p + 1, 0)
                    if np_ < NP:
                        k2, m2_ = mlist(np_)[ng]
                        if m2_: need(np_, k2)
            slot = 4 * p + g
            if slot == 3: lpre(a)
            if g == 2 and p in LOW:
                a(f"s_cmp_eq_u32 s{sg}, 0")
                a(f"s_cbranch_scc1 L_low{p}")
                a.lab(f"L_lowb{p}")
            if p == PGT and g == 0:
                a.vmem(f"buffer_load_dword v{T+8}, off, {S4(rWO)}, 0", "pg")
                a.vmem(f"buffer_load_dword v{T+9}, off, {S4(rBR)}, s{sF2O} sc1", "pg")
            if p == PGT and g == 1:
                a.vmem(f"buffer_load_dword v{T+10}, off, {S4(rOUT)}, s{sLS}", "pg")
                a(f"s_lshl_b32 s{t0}, s{sLS}, 1")
                a.vmem(f"buffer_load_dword v{T+11}, off, {S4(rOUT)}, s{t0}", "pg")
            if slot == 26: lpre(a, C0A)
            if slot == 30: lcheck(a, "L_c0", 4, C0A)
            if p == WOT and g == 2: a.vmem(f"buffer_load_dword v{T+8}, v{TAU}, {S4(rWO)}, 0 offen", "wot")
            if lq and lq[0][1] <= p and (g == LG or (g == LG + 1 and (p < 12 or p >= 40))): lq.pop(0)[0]()
            elif wq and wq[0][1] <= slot:
                wq.pop(0)[0]()
                if not wq:
                    arrive(a); state["arr"] = slot
            elif state["arr"] is not None and slot == state["arr"] + 2: lpre(a)
            elif state["arr"] is not None and not state["rd"] and slot >= state["arr"] + 4:
                lcheck(a, "L_p", 8)
                stamp(a, "b1")
                state["rd"] = True
                for _ in range(4): rq.pop(0)()
            elif state["rd"] and rq:
                for _ in range(4): rq.pop(0)()
            for jj in range(4): a(f"v_exp_f32 v{s+4*g+jj}, v{s+4*g+jj}")
    assert not lq and not wq and state["rd"]
    while rq: rq.pop(0)()
    a("s_nop 1")
    for x in pv(63): a(x)
    stamp(a, "loop1")
    OO = O[3]
    a("s_waitcnt lgkmcnt(0)")
    if ARR3 == "early": arrive(a)
    for r in range(16): a(f"v_add_f32 v{O[0]+r}, v{O[0]+r}, v{O[1]+r}")
    for r in range(16): a(f"v_add_f32 v{O[0]+r}, v{O[0]+r}, v{O[2]+r}")
    a(f"v_add_f32 v{OO+12}, v{OO+12}, v{O[0]+12}")
    a(f"v_mov_b32 v{T}, v{OO+12}")
    a(f"v_mov_b32 v{T+1}, v{OO+12}")
    for r in range(0, 4): a(f"v_add_f32 v{OO+r}, v{OO+r}, v{O[0]+r}")
    a(f"v_permlane32_swap_b32 v{T}, v{T+1}")
    for r in range(4, 16):
        if r != 12: a(f"v_add_f32 v{OO+r}, v{OO+r}, v{O[0]+r}")
    a(f"s_mov_b32 s{sFB}, 0")
    a.lab("L_norm")
    a(f"v_rcp_f32 v{T}, v{T+1}")
    if EARLYP == 1: a(f"buffer_load_dwordx2 {vr(T+14,2)}, v{LF}, {S4(rBR)}, 0 offen {PF2}")
    else: a("s_nop 0")
    P = T + 4
    for r in range(8): a(f"v_mul_f32 v{OO+r}, v{OO+r}, v{T}")
    for i in range(4): a(f"v_cvt_pk_bf16_f32 v{P+i}, v{OO+2*i}, v{OO+2*i+1}")
    a(f"buffer_store_dwordx4 {vr(P,4)}, v{L16}, {S4(rBR)}, s{sOO} offen sc1")
    for r in range(8, 16): a(f"v_mul_f32 v{OO+r}, v{OO+r}, v{T}")
    for i in range(4, 8): a(f"v_cvt_pk_bf16_f32 v{P+i}, v{OO+2*i}, v{OO+2*i+1}")
    a("s_mov_b32 exec_hi, 0")
    a(f"buffer_store_dwordx4 {vr(P+4,4)}, v{L16}, {S4(rBR)}, s{sOO} offen offset:1024 sc1")
    a("s_not_b64 exec, exec")
    a(f"buffer_store_dwordx2 {vr(P+4,2)}, v{L8}, {S4(rBR)}, s{sOO} offen offset:1280 sc1")
    a("s_mov_b64 exec, -1")
    if EARLYP == 2: a(f"buffer_load_dwordx2 {vr(T+14,2)}, v{LF}, {S4(rBR)}, 0 offen {PF2}")
    stamp(a, "ost")
    a(f"s_cmp_lg_u32 s{sFB}, 0")
    a("s_cbranch_scc1 L_checked")
    if ARR3 == "late": arrive(a)
    a(f"v_mul_f32 v{T+2}, 0, v{OO}")
    a(f"v_mul_f32 v{T+3}, 0, v{OO+1}")
    for r in range(2, 16): a(f"v_fma_f32 v{T+2+(r&1)}, 0, v{OO+r}, v{T+2+(r&1)}")
    a(f"v_add_f32 v{T+2}, v{T+2}, v{T+3}")
    a(f"v_add_f32 v{T+2}, v{T+2}, v{T+1}")
    a(f"v_cmp_nlt_f32 vcc, 0x35800000, v{T+2}")
    a(f"s_mov_b64 {S2(sROT)}, vcc")
    a(f"v_cmp_ngt_f32 vcc, 0x71800000, v{T+2}")
    a(f"s_or_b64 vcc, vcc, {S2(sROT)}")
    a("s_cbranch_vccnz L_fallback")
    a.lab("L_checked")
    sOS, sOL, sW0 = KT[1], KT[2], KT[3]
    INV = [ORD.index(r_) for r_ in range(4)]
    def wo_round(st):
        a(f"s_xor_b32 s{t0}, s{sPE}, {st}")
        a(f"s_add_u32 s{t0}, s{t0}, s{sW0}")
        a(f"s_mul_i32 s{sWOS}, s{t0}, {28*896}")
        a(f"s_mul_i32 s{sWOL}, s{skq}, {56*256}")
        a(f"s_mov_b32 s{t1}, 0")
        a(f"s_setprio {WPRIO}")
        a.lab(f"L_wo{st}")
        a(f"s_mov_b32 m0, s{sWOL}")
        a(f"s_add_u32 s{t1}, s{t1}, 1")
        a(f"buffer_load_dwordx4 v{WOA}, {S4(rWO)}, s{sWOS} offen {WOF} lds")
        a(f"s_add_u32 s{sWOL}, s{sWOL}, 1024")
        a(f"s_cmp_eq_u32 s{t1}, 7")
        a(f"s_mov_b32 s{t0}, {4*896}")
        a(f"s_cselect_b32 s{t0}, {32*896}, s{t0}")
        a(f"s_add_u32 s{sWOS}, s{sWOS}, s{t0}")
        a(f"s_cmp_lg_u32 s{t1}, 14")
        a(f"s_waitcnt vmcnt({WOFL})")
        a(f"s_cbranch_scc1 L_wo{st}")
        a("s_waitcnt vmcnt(0)")
        a("s_setprio 2")
    a(f"s_cmp_eq_u32 s{sg}, 0")
    a("s_cbranch_scc1 L_wfirst")
    a.lab("L_pub")
    NF = T + 2
    a(f"v_mov_b32 v{NF}, s{NONCE}")
    a(f"v_mov_b32 v{NF+1}, s{NONCE+1}")
    a("s_mov_b64 exec, 1")
    a(f"s_cmp_eq_u32 s{sg}, 0")
    a("s_waitcnt vmcnt(0)")
    a(f"buffer_store_dwordx2 {vr(NF,2)}, off, {S4(rBR)}, s{sF2O} {SF2}")
    a("s_mov_b64 exec, -1")
    stamp(a, "flag2")
    a("s_cbranch_scc1 L_ph3")
    def late_fetch():
        a(f"s_mov_b32 m0, s{sLL}")
        a("s_nop 0")
        for i in range(4): a(f"buffer_load_dwordx4 v{L16}, {S4(rBR)}, s{sLS} offen offset:{1024*i} sc1 lds")
        a(f"s_add_u32 m0, s{sLL}, 4096")
        a("s_nop 0")
        for i in range(3): a(f"buffer_load_dwordx4 v{L16}, {S4(rBR)}, s{sLS2} offen offset:{1024*i} sc1 lds")
        a("s_mov_b64 exec, 1")
        a("s_waitcnt vmcnt(0)")
        a(f"ds_write_b32 v{LM}, v{ONE}")
        a("s_mov_b64 exec, -1")
    a(f"ds_read_b32 v{T+12}, v{LM}")
    a(f"v_add_u32 v{T+4}, -4, v{CA}")
    lwait(a, "L_wfree", 0, 28, 1, T + 4)
    a(f"v_readfirstlane_b32 s{t0}, v{T+12}")
    a(f"s_cmp_lg_u32 s{t0}, 0")
    a("s_cbranch_scc1 L_fin")
    if EARLYP:
        a(f"v_cmp_ne_u64 vcc, {S2(NONCE)}, {vr(T+14,2)}")
        a("s_cbranch_vccz L_lready")
    if PW0: a("s_waitcnt vmcnt(0)")
    poll(a, "L_f21", LF, rBR, PF2)
    a.lab("L_lready")
    stamp(a, "poll2")
    late_fetch()
    stamp(a, "oown")
    a("s_waitcnt lgkmcnt(0)")
    a("s_branch L_fin")
    a.lab("L_ph3")
    if OUTW:
        a("s_mov_b64 exec, 1")
        a(f"buffer_load_dword v{T+8}, v{OUTA}, {S4(rOUT)}, 0 offen")
        a("s_mov_b64 exec, -1")
    WB = 16
    steps = []
    for q in range(2):
        for j in range(4 * q, 4 * q + 4): steps.append((0, lambda aa, j=j: 28 * j + 8 * aa, ("A", j)))
        for i in range(2 * q, 2 * q + 2): steps.append((1, lambda aa, i=i: 56 * i + 16 + 8 * aa, ("B", 2 * i)))
        steps.append((2, lambda aa, q=q: 28 * (4 * q + aa) + 20, ("C", 4 * q)))
    def wread(st, ks):
        t, row, _ = steps[ks]
        for aa in range(2):
            a(f"ds_read_b64_tr_b16 {vr(WB+56*st+4*ks+2*aa,2)}, v{WA+t} offset:{row(aa)*256}")
    for st in range(2):
        if st: wo_round(1)
        gbar(a, f"L_g4{st}", 4 + 2 * st)
        for ks in range(14): wread(st, ks)
        a("s_waitcnt lgkmcnt(0)")
        gbar(a, f"L_g5{st}", 5 + 2 * st)
        stamp(a, f"wrd{st}")
    ACC3 = [128, 144]; ACCB = [16, 32]; OB = 176; NB = 12; PK = 224
    def mfma_block(st, items, hooks):
        lg = []
        def oread(n_):
            ks, e = items[n_]
            kind, hd = steps[ks][2]
            d = OB + 4 * (n_ % NB)
            base = 28672 * st + 14336 * e
            if kind == "A": a(f"ds_read_b128 {vr(d,4)}, v{OA} offset:{base+hd*1792}"); lg.append(n_)
            elif kind == "B": a(f"ds_read_b128 {vr(d,4)}, v{OA+1} offset:{base+hd*1792+1024}"); lg.append(n_)
            else:
                for aa in range(2):
                    a(f"ds_read_b64 {vr(d+2*aa,2)}, v{OA+2} offset:{base+(hd+aa)*1792+1536}"); lg.append(n_)
        N_ = len(items)
        for n_ in range(min(NB, N_)): oread(n_)
        for n_ in range(N_):
            ks, e = items[n_]
            out = sum(1 for k in lg if k > n_)
            assert out < 16
            a(f"s_waitcnt lgkmcnt({out})")
            d_ = ACCB[e] if (st == 1 and ks >= 7) else ACC3[e]
            c = "0" if (st, ks) in ((0, 0), (1, 7)) else vr(d_, 16)
            a(f"v_mfma_f32_32x32x16_bf16 {vr(d_,16)}, {vr(WB+56*st+4*ks,4)}, {vr(OB+4*(n_%NB),4)}, {c}")
            if n_ + NB < N_: oread(n_ + NB)
            if n_ in hooks: hooks[n_]()
    a(f"s_mul_i32 s{sOS}, s{sRT}, 1792")
    a(f"s_mul_i32 s{sOL}, s{skq}, 7168")
    poll(a, "L_f20", F2A, rBR, PF2)
    a(f"s_mov_b32 m0, s{sOL}")
    a(f"s_add_u32 s{t0}, s{sOS}, 4096")
    for i in range(4): a(f"buffer_load_dwordx4 v{L16}, {S4(rBR)}, s{sOS} offen offset:{1024*i} sc1 lds")
    a(f"s_add_u32 m0, s{sOL}, 4096")
    a("s_nop 0")
    for i in range(3): a(f"buffer_load_dwordx4 v{L16}, {S4(rBR)}, s{t0} offen offset:{1024*i} sc1 lds")
    a("s_waitcnt vmcnt(0)")
    gbar(a, "L_g8", 8)
    stamp(a, "aland")
    if GLOOK:
        a(f"s_mov_b32 s{t3}, {SPIN}")
        a.lab("L_h3a")
        a(f"buffer_load_dwordx2 {vr(T+14,2)}, v{LF}, {S4(rBR)}, 0 offen {PF2}")
        a(f"s_sleep {HSL}")
        a(f"ds_read_b32 v{T+13}, v{CA} offset:4")
        a(f"s_sub_u32 s{t3}, s{t3}, 1")
        a("s_cbranch_scc1 L_end")
        a("s_waitcnt lgkmcnt(0)")
        a(f"v_readfirstlane_b32 s{t2}, v{T+13}")
        a(f"s_cmp_ge_u32 s{t2}, 12")
        a("s_cbranch_scc1 L_h3_done")
        a("s_waitcnt vmcnt(0)")
        a(f"v_cmp_ne_u64 vcc, {S2(NONCE)}, {vr(T+14,2)}")
        a("s_cbranch_vccnz L_h3a")
        late_fetch()
    lwait(a, "L_h3", 4, 12, HSL)
    a("s_setprio 0")
    a(f"s_cmp_eq_u32 s{XM}, 0")
    a("s_cbranch_scc1 L_fin")
    mfma_block(0, [(ks, e) for ks in range(14) for e in range(2)], {})
    stamp(a, "tileA")
    a(f"s_add_u32 s{t0}, s{sOUTO}, {16*1792}")
    a(f"s_add_u32 s{t1}, s{sOUTO}, {32*1792}")
    a(f"s_add_u32 s{sOS}, s{sOUTO}, {48*1792}")
    def pack0(i0):
        def f():
            for r in range(2 * i0, 2 * i0 + 8): a(f"v_add_f32 v{ACC3[0]+r}, v{ACC3[0]+r}, v{ACCB[0]+r}")
            for i in range(i0, i0 + 4): a(f"v_cvt_pk_bf16_f32 v{PK+i}, v{ACC3[0]+2*i}, v{ACC3[0]+2*i+1}")
        return f
    a(f"s_mov_b32 s{t3}, {SPIN}")
    a.lab("L_any")
    a(f"ds_read_b128 {vr(T+8,4)}, v{CA} offset:16")
    a(f"s_sub_u32 s{t3}, s{t3}, 1")
    a("s_cbranch_scc1 L_end")
    a("s_waitcnt lgkmcnt(0)")
    a(f"v_and_b32 v{T+8}, v{T+8}, v{T+9}")
    a(f"v_and_b32 v{T+10}, v{T+10}, v{T+11}")
    a(f"v_cmp_ne_u32 vcc, 0, v{T+10}")
    a("s_cbranch_vccnz L_ba")
    a(f"v_cmp_ne_u32 vcc, 0, v{T+8}")
    a("s_cbranch_vccz L_any")
    for first in (0, 1):
        if first: a.lab("L_ba")
        stamp(a, "bland")
        mfma_block(1, [(ks, e) for ks in range(7 * first, 7 * first + 7) for e in range(2)], {})
        a(f"s_mov_b32 s{t3}, {SPIN}")
        a.lab(f"L_u{first}")
        a(f"ds_read_b64 {vr(T+8,2)}, v{CA} offset:{24 - 8*first}")
        a(f"s_sub_u32 s{t3}, s{t3}, 1")
        a("s_cbranch_scc1 L_end")
        a("s_waitcnt lgkmcnt(0)")
        a(f"v_and_b32 v{T+8}, v{T+8}, v{T+9}")
        a(f"v_cmp_ne_u32 vcc, 0, v{T+8}")
        a(f"s_cbranch_vccz L_u{first}")
        stamp(a, "oland")
        mfma_block(1, [(ks, e) for e in range(2) for ks in range(7 - 7 * first, 14 - 7 * first)], {12: pack0(0), 13: pack0(4)})
        if not first: a("s_branch L_out")
    a.lab("L_out")
    stamp(a, "mf3")
    a(f"ds_write_b128 v{TW}, {vr(PK,4)}")
    a(f"ds_write_b128 v{TW+1}, {vr(PK+4,4)}")
    a(f"ds_read_b128 {vr(OB+16,4)}, v{TR}")
    a(f"ds_read_b128 {vr(OB+20,4)}, v{TR} offset:1024")
    for r in range(8): a(f"v_add_f32 v{ACC3[1]+r}, v{ACC3[1]+r}, v{ACCB[1]+r}")
    for i in range(4): a(f"v_cvt_pk_bf16_f32 v{PK+8+i}, v{ACC3[1]+2*i}, v{ACC3[1]+2*i+1}")
    a(f"ds_write_b128 v{TW}, {vr(PK+8,4)} offset:2048")
    a("s_waitcnt lgkmcnt(1)")
    a(f"buffer_store_dwordx4 {vr(OB+16,4)}, v{OUTA}, {S4(rOUT)}, s{sOUTO} offen {OUTF}")
    a(f"buffer_store_dwordx4 {vr(OB+20,4)}, v{OUTA}, {S4(rOUT)}, s{t0} offen {OUTF}")
    for r in range(8, 16): a(f"v_add_f32 v{ACC3[1]+r}, v{ACC3[1]+r}, v{ACCB[1]+r}")
    for i in range(4, 8): a(f"v_cvt_pk_bf16_f32 v{PK+8+i}, v{ACC3[1]+2*i}, v{ACC3[1]+2*i+1}")
    a(f"ds_write_b128 v{TW+1}, {vr(PK+12,4)} offset:2048")
    a(f"ds_read_b128 {vr(OB+24,4)}, v{TR} offset:2048")
    a(f"ds_read_b128 {vr(OB+28,4)}, v{TR} offset:3072")
    a("s_waitcnt lgkmcnt(1)")
    a(f"buffer_store_dwordx4 {vr(OB+24,4)}, v{OUTA}, {S4(rOUT)}, s{t1} offen {OUTF}")
    a("s_waitcnt lgkmcnt(0)")
    a(f"buffer_store_dwordx4 {vr(OB+28,4)}, v{OUTA}, {S4(rOUT)}, s{sOS} offen {OUTF}")
    a.lab("L_fin")
    if STAMP:
        a("s_waitcnt vmcnt(0)")
        a("s_memrealtime s[22:23]")
        a("s_memtime s[98:99]")
        a("s_waitcnt lgkmcnt(0)")
        a("s_mov_b64 exec, 1")
        a(f"s_mov_b32 s{rWS}, s2"); a(f"s_mov_b32 s{rWS+1}, s3"); a(f"s_mov_b32 s{rWS+2}, 0x10000000")
        a(f"s_lshl_b32 s{t1}, s{sidx}, 3")
        a(f"s_add_u32 s{t1}, s{t1}, s{sx}")
        a(f"s_lshl_b32 s{t1}, s{t1}, 9")
        a(f"s_add_u32 s{t1}, s{t1}, {64<<20}")
        a(f"s_lshl_b32 s{t0}, s{sw}, 6")
        a(f"s_add_u32 s{t1}, s{t1}, s{t0}")
        for i, r in enumerate([RT, 22, 100, 98] + [80 + 2 * k for k in range(9)] + [sLOC]):
            a(f"v_mov_b32 v1, s{r}")
            a(f"buffer_store_dword v1, off, {S4(rWS)}, s{t1} offset:{4*i}")
    if DIAG:
        a("s_waitcnt vmcnt(0)")
        if DIAG == "end": a("s_memrealtime s[80:81]")
        if DIAG == "none": a(f"s_mov_b32 s80, s{NONCE}")
        a("s_waitcnt lgkmcnt(0)")
        a("s_add_u32 s80, s80, 6000")
        a.lab("L_diag")
        a("s_sleep 2")
        a("s_memrealtime s[82:83]")
        a("s_waitcnt lgkmcnt(0)")
        a("s_sub_u32 s82, s82, s80")
        a("s_cmp_lt_i32 s82, 0")
        a("s_cbranch_scc1 L_diag")
    a.lab("L_end")
    a("s_endpgm")
    a.lab("L_wfirst")
    lwait(a, "L_h2", 12, 4)
    stamp(a, "wo0")
    a(f"s_lshl_b32 s{t0}, s{skq}, 2")
    a(f"s_lshr_b32 s{t0}, {sum((4*INV[r_]) << (4*r_) for r_ in range(4)):#x}, s{t0}")
    a(f"s_and_b32 s{sW0}, s{t0}, 15")
    wo_round(0)
    a("s_branch L_pub")
    for tag, P_, so, off in tails:
        a.lab(f"L_wt{tag}")
        a(f"buffer_store_dwordx4 {vr(P_,4)}, v{TAU}, {S4(rWS)}, s{so} offen offset:{off} sc1")
        a(f"s_branch L_st{tag}")
    for v in nnt:
        a.lab(f"L_nn{v}")
        a(f"buffer_load_dwordx2 {vr(NV,2)}, v{NA}, {S4(rDBG)}, 0 offen sc1")
        a(f"s_branch L_nnb{v}")
    for tag, nm in stails:
        a.lab(f"L_ns{tag}")
        stamp(a, nm)
        a(f"s_branch L_nb{tag}")
    for name, target, reg in slow:
        a.lab(f"{name}_slow")
        lwait(a, name, 0, target, 1, reg)
        a(f"s_branch {name}_back")
    if LOW[0] >= 0:
        for p, pr in zip(LOW, (0, 2)):
            a.lab(f"L_low{p}")
            a(f"s_setprio {pr}")
            a(f"s_branch L_lowb{p}")
    a.lab("L_f1wt")
    a(f"buffer_store_dwordx2 {vr(NV,2)}, off, {S4(rWS)}, s{sF1O} sc1")
    a("s_branch L_f1st")
    for tag in "LC":
        a.lab(f"L_nonce_retry{tag}")
        a(f"buffer_load_dwordx2 {vr(NV,2)}, off, {S4(rDBG)}, s{sDL} sc1")
        a(f"s_sub_u32 s{t3}, s{t3}, 1")
        a("s_cbranch_scc1 L_end")
        a("s_waitcnt vmcnt(0)")
        a(f"s_branch L_nonce{tag}")
    a.lab("L_fallback")
    QO = Q[3]; S0 = SB[0]; K0 = KB[0]; V0 = VB[0]; M = T + 2
    a("s_waitcnt vmcnt(0)")
    a(f"s_mov_b32 s{sFB}, 1")
    a("s_mov_b32 exec_lo, 0")
    a(f"v_mov_b32 v{QO+6}, 0")
    a("s_mov_b32 exec_lo, -1")
    for r in range(16): a(f"v_mov_b32 v{OO+r}, 0")
    a(f"v_mov_b32 v{M}, 0xff7fffff")
    a(f"s_mov_b32 s{sKVO}, 0")
    a.lab("L_fb_loop")
    a(f"buffer_load_dwordx4 {vr(K0,4)}, v{L16}, {S4(rKV)}, s{sKVO} offen sc1")
    a(f"buffer_load_dwordx4 {vr(K0+4,4)}, v{L16}, {S4(rKV)}, s{sKVO} offen offset:1024 sc1")
    a(f"buffer_load_dwordx4 {vr(V0,4)}, v{L16}, {S4(rKV)}, s{sKVO} offen offset:2048 sc1")
    a(f"buffer_load_dwordx4 {vr(V0+4,4)}, v{L16}, {S4(rKV)}, s{sKVO} offen offset:3072 sc1")
    a("s_waitcnt vmcnt(0)")
    a(f"v_mfma_f32_32x32x16_bf16 {vr(S0,16)}, {vr(K0,4)}, {vr(QO,4)}, 0")
    a(f"v_mfma_f32_32x32x16_bf16 {vr(S0,16)}, {vr(K0+4,4)}, {vr(QO+4,4)}, {vr(S0,16)}")
    a("s_nop 15")
    a(f"v_max3_f32 v{T}, v{M}, v{S0}, v{S0+1}")
    for i in range(2, 16, 2): a(f"v_max3_f32 v{T}, v{T}, v{S0+i}, v{S0+i+1}")
    a(f"v_mov_b32 v{T+1}, v{T}")
    a("s_nop 1")
    a(f"v_permlane32_swap_b32 v{T}, v{T+1}")
    a(f"v_max_f32 v{T}, v{T}, v{T+1}")
    a(f"v_sub_f32 v{T+1}, v{M}, v{T}")
    a(f"v_exp_f32 v{T+1}, v{T+1}")
    a(f"v_mov_b32 v{M}, v{T}")
    for r in range(16): a(f"v_sub_f32 v{S0+r}, v{S0+r}, v{T}")
    for r in range(16): a(f"v_exp_f32 v{S0+r}, v{S0+r}")
    for r in range(16): a(f"v_mul_f32 v{OO+r}, v{OO+r}, v{T+1}")
    a("s_nop 1")
    a(f"v_smfmac_f32_32x32x32_bf16 {vr(OO,16)}, {vr(V0,4)}, {vr(S0,8)}, v{IDX}")
    a(f"v_smfmac_f32_32x32x32_bf16 {vr(OO,16)}, {vr(V0+4,4)}, {vr(S0+8,8)}, v{IDX}")
    a(f"s_add_u32 s{sKVO}, s{sKVO}, 4096")
    a(f"s_cmp_lt_u32 s{sKVO}, 262144")
    a("s_nop 15")
    a("s_cbranch_scc1 L_fb_loop")
    a(f"v_mov_b32 v{T}, v{OO+12}")
    a(f"v_mov_b32 v{T+1}, v{OO+12}")
    a("s_nop 1")
    a(f"v_permlane32_swap_b32 v{T}, v{T+1}")
    a("s_branch L_norm")
    kd = f""".section .rodata,"a"
.p2align 6
.amdhsa_kernel {n}
  .amdhsa_next_free_vgpr 256
  .amdhsa_next_free_sgpr 102
  .amdhsa_accum_offset 256
  .amdhsa_group_segment_fixed_size 0
  .amdhsa_kernarg_size 72
  .amdhsa_user_sgpr_count 2
  .amdhsa_user_sgpr_kernarg_segment_ptr 1
  .amdhsa_system_sgpr_workgroup_id_x 1
.end_amdhsa_kernel
"""
    return a.text() + kd

hdr = f"""; @launch grid=(256,1,1) block=(512,1,1) lds={LDS}
.amdgcn_target "amdgcn-amd-amdhsa--gfx950"
.text
"""
open(sys.argv[1] if len(sys.argv) > 1 else "v13.s", "w").write(hdr + gen())
```

```python
import sys, os, struct, math
NAME = "concat_heads__softmax_full_mha__softmax_full_mha__prompt"
def f2u(x): return struct.unpack("<I", struct.pack("<f", x))[0]
CSCALE = f2u(28 ** -0.5 * math.log2(math.e))
E = os.environ.get
STAMP = E("STAMP", "0") in ("1", "3")
RTS = E("STAMP", "0") == "3"
DIAG = E("DIAG", "")
STL = E("STL", "c0,p1end,ack1,poll1,loop0,loop1,flag2,poll2,oland").split(",")
F2SP = int(E("F2SP", "32"))
FORCEFB = E("FORCEFB", "0") == "1"
LOCAL = E("LOCAL", "1") == "1"
PRET = int(E("PRET", "3"))
SLEEP = int(E("SLEEP", "0"))
OUTF = E("OUTF", "")
ROTA, ROTB, ROTC, ROTN, ROTS = [int(v) for v in E("ROTP", "1,0,2,7,1").split(",")]
WOFL = int(E("WOFL", "5"))
NOWN = int(E("NOWN", "4"))
NPOS = int(E("NPOS", "5"))
ARR3 = E("ARR3", "late")
OUTW = int(E("OUTW", "0"))
WOT = int(E("WOT", "-1"))
HB = int(E("HB", "0"))
BPOS = int(E("BPOS", "2"))
TLBW = int(E("TLBW", "0"))
PROBE = int(E("PROBE", "0"))
WPRIO = int(E("WPRIO", "0"))
PRET2 = int(E("PRET2", "0"))
LG = int(E("LG", "0"))
PF2 = E("PF2", "sc1").replace("_", " ")
SF2 = E("SF2", "sc1").replace("_", " ")
PIPE = int(E("PIPE", "0"))
PW0 = int(E("PW0", "1"))
F1SP = int(E("F1SP", "128"))
K1L = int(E("K1L", "1"))
LQ0 = int(E("LQ0", "0"))
PGA = int(E("PGA", "1"))
FPOS = int(E("FPOS", "22"))
QB = int(E("QB", "12"))
TEAR = int(E("TEAR", "0"))
B2 = int(E("B2", "0"))
LPR = int(E("LPR", "0"))
CPF = int(E("CPF", "0"))
UBY = int(E("UBY", "0"))
SLD = int(E("SLD", "6"))
NRC = 139264
SCP = int(E("SCP", "0"))
INL = int(E("INL", "1"))
PG3 = int(E("PG3", "1"))
TWO = int(E("TWO", "0"))
STL_ = int(E("STN", "0"))
ST0 = int(E("ST0", "3"))
SGL = E("SGL", "")
PGT = int(E("PGT", "-1"))
SP = int(E("SP", "2"))
WF0 = E("WF0", ""); WF = E("WF", ""); XF0 = E("XF0", ""); XF = E("XF", ""); KVS = E("KVS", ""); WOF = E("WOF", ""); TF = E("TF", "sc1").replace("_", " "); KVL = E("KVL", "sc1").replace("_", " ")
LOW = [int(x) for x in E("LOW", "-1,-1").split(",")]
QFAST = int(E("QFAST", "1"))
FT = E("FT", "")
P0S = int(E("P0S", "1"))
SL1 = int(E("SL1", "0"))
PEX = int(E("PEX", "1"))
EARLYP = int(E("EARLYP", "1"))
GLOOK = int(E("GLOOK", "0"))
LOOK = int(E("LOOK", "16"))
LOOK2 = int(E("LOOK2", "7"))
HSL = int(E("HSL", "4"))
XMAP = E("XMAP", "")
T2POS = E("T2POS", "b6")
SPIN = 1 << 22

X_F1 = 1 << 20
B_BASE = 16 << 20; B_F2 = 1835008
STAGE = 40960; XOFF = 24576
PB0 = 57344; QX = 122880; MX = 106496; PB1 = 113664; TX = 57344; LDS = 163840; GBC = 163808

class A:
    def __init__(self):
        self.l = []; self.vm = []; self.done = 0
    def __call__(self, s): self.l.append("    " + s)
    def lab(self, s): self.l.append(s + ":")
    def raw(self, s): self.l.append(s)
    def note(self, s):
        for x in s.strip().split("\n"): self.l.append("; " + x.strip())
    def text(self): return "\n".join(self.l) + "\n"
    def vreset(self): self.vm = []; self.done = 0
    def vmem(self, s, tag=None):
        self(s); self.vm.append(tag)
    def vwait(self, tag):
        idx = [i for i, t in enumerate(self.vm) if t == tag]
        assert idx, tag
        last = idx[-1] + 1
        if last <= self.done: return
        self.done = last
        n = len(self.vm) - last
        assert n < 64
        self(f"s_waitcnt vmcnt({n})")

def vr(b, n): return f"v[{b}:{b+n-1}]"
def S4(b): return f"s[{b}:{b+3}]"
def S2(b): return f"s[{b}:{b+1}]"
def stamp(a, name):
    if DIAG == name: a("s_memrealtime s[80:81]")
    if DIAG == name + "@0":
        a("s_cmp_lg_u32 s50, 0")
        a("s_cbranch_scc1 L_dg0")
        a("s_memrealtime s[80:81]")
        a.lab("L_dg0")
    if STAMP and name in STL:
        i = STL.index(name)
        a(f"{'s_memrealtime' if RTS else 's_memtime'} s[{80+2*i}:{81+2*i}]")

rX, rW, rWS, rWO, rOUT, rDBG, rKV, rBR = 24, 28, 32, 36, 64, 68, 72, 12
XM = 4
sLOC, sRT, sOUTO, sQT, sF1O, sPE = 6, 7, 8, 9, 10, 11
sKVO, sWOS, sWOL, sOO, sF2O, sFB = 16, 17, 18, 19, 22, 23
sx, sidx, sb, srb, shalf, sXS, sw, shl, shs, sg4, sg, sWL, sXL, sWS_, stt, scg, skq, su = range(40, 58)
t0, t1, sDL, t2, sROT, t3 = 58, 59, 60, 61, 62, 63
NONCE = 76; RT = 78
KT = [24, 25, 26, 27, 28]
KP = [24, 26, 28, 30, 44, 52, 54, 20]
L16, IDX, CA, F1A, ONE, L8, MW, MR, PW, PR, TAU = 1, 2, 3, 4, 5, 6, 7, 8, 11, 14, 15
T = 240
XD, WD, XA, WA1, QW, NV, NA, PTA = 16, 18, 16, 20, 23, 232, 234, 235
ACC = 32; FR = 128; P1 = 208
Q = [16, 24, 32, 40]; O = [48, 64, 80, 96]; SB = [112, 128, 144]; KB = [176, 184, 192, 200]; VB = [208, 216, 224, 232]
WA, F2B, TW, OA, WOA, F2A, OUTA, TR = 160, 163, 166, 168, 172, 173, 174, 175
ORD = [0, 2, 3, 1]
LF, LM, C0A = 163, 164, 165
sLS, sLL, sLS2 = 43, 51, 57

def lwait(a, name, off, target, sleep=2, reg=None):
    a(f"s_mov_b32 s{t3}, {SPIN}")
    a.lab(f"{name}_spin")
    a(f"ds_read_b32 v{T+13}, v{reg or CA} offset:{off}")
    a(f"s_sub_u32 s{t3}, s{t3}, 1")
    a("s_cbranch_scc1 L_end")
    a("s_waitcnt lgkmcnt(0)")
    a(f"v_readfirstlane_b32 s{t2}, v{T+13}")
    a(f"s_cmp_ge_u32 s{t2}, {target}")
    if sleep:
        a(f"s_cbranch_scc1 {name}_done")
        a(f"s_sleep {sleep}")
        a(f"s_branch {name}_spin")
        a.lab(f"{name}_done")
    else:
        a(f"s_cbranch_scc0 {name}_spin")
def arrive(a, off=0):
    a("s_mov_b64 exec, 1")
    a(f"ds_add_u32 v{CA}, v{ONE} offset:{off}")
    a("s_mov_b64 exec, -1")
slow = []
def lpre(a, reg=None):
    if INL: a(f"s_mov_b32 s{t3}, {SPIN}")
    a(f"ds_read_b32 v{T+13}, v{reg or CA}")
def lcheck(a, name, target, reg=None):
    if INL:
        a.lab(f"{name}_re")
        a("s_waitcnt lgkmcnt(0)")
        a(f"v_readfirstlane_b32 s{t2}, v{T+13}")
        a(f"s_sub_u32 s{t3}, s{t3}, 1")
        a(f"ds_read_b32 v{T+13}, v{reg or CA}")
        a("s_cbranch_scc1 L_end")
        a(f"s_cmp_ge_u32 s{t2}, {target}")
        a(f"s_cbranch_scc0 {name}_re")
        a.lab(f"{name}_back")
        return
    a("s_waitcnt lgkmcnt(0)")
    a(f"v_readfirstlane_b32 s{t2}, v{T+13}")
    a(f"s_cmp_ge_u32 s{t2}, {target}")
    a(f"s_cbranch_scc0 {name}_slow")
    a.lab(f"{name}_back")
    slow.append((name, target, reg))
def gbar(a, name, k):
    arrive(a)
    lwait(a, name, 0, 4 * k)
def poll_pipe(a, name, vaddr, srd, fl, regs):
    n_ = len(regs)
    a(f"s_mov_b32 s{t3}, {SPIN}")
    for r in regs[:-1]:
        a(f"buffer_load_dwordx2 {vr(r,2)}, v{vaddr}, {S4(srd)}, 0 offen {fl}")
        a(f"s_sleep {PIPE}")
    a.lab(f"{name}_spin")
    for i in range(n_):
        a(f"buffer_load_dwordx2 {vr(regs[(i-1)%n_],2)}, v{vaddr}, {S4(srd)}, 0 offen {fl}")
        a(f"s_waitcnt vmcnt({n_-1})")
        a(f"v_cmp_ne_u64 vcc, {S2(NONCE)}, {vr(regs[i],2)}")
        a(f"s_cbranch_vccz {name}_ok")
    a(f"s_sub_u32 s{t3}, s{t3}, 1")
    a(f"s_cbranch_scc0 {name}_spin")
    a("s_branch L_end")
    a.lab(f"{name}_ok")
def poll(a, name, vaddr, srd, fl="sc1", lanes=4, SLEEP=0):
    a(f"s_mov_b32 s{t3}, {SPIN}")
    if PEX: a(f"s_mov_b64 exec, {(1 << lanes) - 1:#x}")
    if SLEEP: a(f"s_branch {name}_first")
    a.lab(f"{name}_spin")
    if SLEEP:
        a(f"s_sleep {SLEEP}")
        a.lab(f"{name}_first")
    a(f"buffer_load_dwordx2 {vr(T+14,2)}, v{vaddr}, {S4(srd)}, 0 offen {fl}")
    a(f"s_sub_u32 s{t3}, s{t3}, 1")
    a("s_cbranch_scc1 L_end")
    a("s_waitcnt vmcnt(0)")
    a(f"v_cmp_ne_u64 vcc, {S2(NONCE)}, {vr(T+14,2)}")
    a(f"s_cbranch_vccnz {name}_spin")
    if PEX: a("s_mov_b64 exec, -1")

def gen():
    a = A(); n = NAME + "_kernel"
    tails = []; stails = []; nnt = []
    u0, u1, u2, u3, u4 = T, T + 1, T + 2, T + 3, T + 4
    a.raw(f".globl {n}\n" + (".p2align 12\n" if PGA else "") + f".p2align 8\n.type {n},@function")
    a.lab(n)
    a("s_cmp_ge_u32 s2, 256")
    a("s_cbranch_scc1 L_end")
    a("s_load_dwordx16 s[4:19], s[0:1], 0")
    a("s_load_dwordx2 s[20:21], s[0:1], 64")
    a(f"s_memrealtime {S2(RT)}")
    if STAMP: a("s_memtime s[100:101]")
    a(f"s_and_b32 s{sx}, s2, 7")
    a(f"s_lshr_b32 s{sidx}, s2, 3")
    a("v_lshrrev_b32 v1, 6, v0")
    a("v_and_b32 v0, 63, v0")
    a(f"v_readfirstlane_b32 s{sw}, v1")
    if XMAP:
        tab = sum(int(c) << (4 * i) for i, c in enumerate(XMAP))
        assert sorted(XMAP) == list("01234567")
        a(f"s_lshl_b32 s{t0}, s{sx}, 2")
        a(f"s_lshr_b32 s{t0}, {tab:#x}, s{t0}")
        a(f"s_bfe_u32 s{sb}, s{t0}, 0x10002")
        a(f"s_and_b32 s{sg4}, s{t0}, 3")
    else:
        a(f"s_lshr_b32 s{sb}, s{sx}, 2")
        a(f"s_and_b32 s{sg4}, s{sx}, 3")
    a(f"s_lshr_b32 s{srb}, s{sidx}, 1")
    a(f"s_and_b32 s{shalf}, s{sidx}, 1")
    if TLBW:
        a(f"s_cmp_lt_u32 s{sw}, 4")
        a("s_cbranch_scc1 L_load")
        a(f"s_mul_i32 s{t0}, s{srb}, {128*896}")
        a(f"s_cmp_eq_u32 s{sb}, 0")
        a(f"v_mov_b32 v{u0}, s{t0}")
        a(f"v_mul_u32_u24 v{u1}, {7*2688}, v0")
        a("s_waitcnt lgkmcnt(0)")
        a(f"s_cselect_b64 {S2(rX)}, s[4:5], s[10:11]")
        a(f"s_cselect_b64 {S2(rW)}, s[6:7], s[12:13]")
        if TLBW == 1: a("s_mov_b64 exec, 1")
        a(f"global_load_dword v{T+10}, v{u0}, {S2(rX)}")
        a(f"global_load_dword v{T+11}, v{u1}, {S2(rW)}")
        a("s_mov_b64 exec, -1")
        a("s_branch L_comp")
        a.lab("L_load")
    else:
        a(f"s_cmp_ge_u32 s{sw}, 4")
        a("s_cbranch_scc1 L_comp")
    def stamp_init():
        if DIAG: a(f"s_mov_b32 s80, s{RT}")
        if STAMP:
            for k in range(9): a(f"s_mov_b32 s{80+2*k}, s{RT if RTS else 100}")
    def dbg_desc():
        a(f"s_mov_b32 s{rDBG}, s18"); a(f"s_mov_b32 s{rDBG+1}, s19"); a(f"s_mov_b32 s{rDBG+2}, 256"); a(f"s_mov_b32 s{rDBG+3}, 0x00020000")
        a(f"s_lshl_b32 s{sDL}, s{sb}, 3")
    def ws_desc():
        a(f"s_lshl_b32 s{t2}, s{sx}, 21")
        a(f"s_add_u32 s{rWS}, s20, s{t2}")
        a(f"s_addc_u32 s{rWS+1}, s21, 0")
        a(f"s_mov_b32 s{rWS+2}, {2<<20}")
        a(f"s_mov_b32 s{rWS+3}, 0x00020000")
    def ids2a(g, ws=True):
        a(f"s_cmp_eq_u32 s{sb}, 0")
        a(f"s_cselect_b32 s{rWO}, s8, s14")
        a(f"s_cselect_b32 s{rWO+1}, s9, s15")
        a(f"s_mov_b32 s{rWO+2}, 401408")
        a(f"s_mov_b32 s{rWO+3}, 0x00020000")
        a(f"s_mov_b32 s{rOUT}, s16"); a(f"s_mov_b32 s{rOUT+1}, s17"); a(f"s_mov_b32 s{rOUT+2}, {2048*896*2}"); a(f"s_mov_b32 s{rOUT+3}, 0x00020000")
        if ws: ws_desc()
        a(f"s_lshl_b32 s{t2}, s{sb}, 21")
        a(f"s_add_u32 s{t2}, s{t2}, {B_BASE}")
        a(f"s_add_u32 s{rBR}, s20, s{t2}")
        a(f"s_addc_u32 s{rBR+1}, s21, 0")
        a(f"s_mov_b32 s{rBR+2}, {2<<20}")
        a(f"s_mov_b32 s{rBR+3}, 0x00020000")
        a(f"s_mov_b32 s{sg}, {g}")
        a(f"s_and_b32 s{shs}, s{srb}, 1")
        if g: a(f"s_xor_b32 s{shs}, s{shs}, 1")
        a(f"s_lshl_b32 s{shl}, s{shalf}, 1")
        a(f"s_add_u32 s{shl}, s{shl}, s{shs}")
        a(f"s_lshl_b32 s{t2}, s{shl}, 18")
        a(f"s_add_u32 s{rKV}, s{rWS}, s{t2}")
        a(f"s_addc_u32 s{rKV+1}, s{rWS+1}, 0")
        a(f"s_mov_b32 s{rKV+2}, 262144")
        a(f"s_mov_b32 s{rKV+3}, 0x00020000")
        a(f"s_and_b32 s{skq}, s{sw}, 3")
        a(f"s_lshl_b32 s{sKVO}, s{skq}, 16")
        a(f"v_and_b32 v{u0}, 15, v0")
        a(f"v_lshlrev_b32 v{u0}, 3, v{u0}")
        a(f"s_lshl_b32 s{t0}, s{shalf}, 2")
        a(f"s_add_u32 s{t0}, s{t0}, s{skq}")
        a(f"s_mul_i32 s{t0}, s{t0}, {F1SP}")
        a(f"s_add_u32 s{t0}, s{t0}, {X_F1}")
        a(f"v_add_u32 v{F1A}, s{t0}, v{u0}")
    def ids2b(g):
        a(f"v_lshlrev_b32 v{L16}, 4, v0")
        a(f"v_lshlrev_b32 v{L8}, 3, v0")
        a(f"v_lshlrev_b32 v{u0}, 2, v0")
        a(f"v_mov_b32 v{IDX}, 0xdddddddd")
        pb = PB1 if g else PB0; mx = MX + 1024 * g
        a(f"s_lshl_b32 s{t1}, s{skq}, 8")
        a(f"s_add_u32 s{t1}, s{t1}, {mx}")
        a(f"v_add_u32 v{MW}, s{t1}, v{u0}")
        a(f"s_mul_i32 s{t1}, s{skq}, 12288")
        a(f"s_add_u32 s{t1}, s{t1}, {pb}")
        a(f"v_add_u32 v{PR}, s{t1}, v{L16}")
        for i in range(3):
            a(f"s_add_u32 s{t0}, s{skq}, {1+i}")
            a(f"s_and_b32 s{t0}, s{t0}, 3")
            a(f"s_lshl_b32 s{t1}, s{t0}, 8")
            a(f"s_add_u32 s{t1}, s{t1}, {mx}")
            a(f"v_add_u32 v{MR+i}, s{t1}, v{u0}")
            a(f"s_mul_i32 s{t1}, s{t0}, 12288")
            a(f"s_add_u32 s{t1}, s{t1}, {pb + 4096*i}")
            a(f"v_add_u32 v{PW+i}, s{t1}, v{L16}")
        a(f"v_mov_b32 v{CA}, {GBC + 4*g}")
        a(f"v_mov_b32 v{ONE}, 1")
        a(f"s_lshl_b32 s{sQT}, s{srb}, 2")
        a(f"s_add_u32 s{sQT}, s{sQT}, s{skq}")
        a(f"s_lshl_b32 s{t0}, s{sg4}, 2")
        a(f"s_lshr_b32 s{t0}, {sum((2*ORD[g_]) << (4*g_) for g_ in range(4)):#x}, s{t0}")
        a(f"s_and_b32 s{t0}, s{t0}, 7")
        a(f"s_add_u32 s{t0}, s{t0}, s{shalf}")
        a(f"s_lshl_b32 s{t1}, s{shs}, 3")
        a(f"s_add_u32 s{t0}, s{t0}, s{t1}")
        a(f"s_lshl_b32 s{t1}, s{sQT}, 4")
        a(f"s_add_u32 s{t1}, s{t1}, s{t0}")
        a(f"s_mul_i32 s{sOO}, s{t1}, 1792")
        a(f"s_mul_i32 s{sF2O}, s{t1}, {F2SP}")
        a(f"s_add_u32 s{sF2O}, s{sF2O}, {B_F2}")
    def late_addr():
        a(f"s_lshl_b32 s{t0}, s{sg4}, 3")
        a(f"s_lshr_b32 s{t1}, s{sidx}, 2")
        a(f"s_add_u32 s{t0}, s{t0}, s{t1}")
        a(f"s_and_b32 s{t1}, s{t0}, 2")
        a(f"s_xor_b32 s{t1}, s{t1}, 2")
        a(f"s_lshl_b32 s{t1}, s{t1}, 2")
        a(f"s_lshl_b32 s{t0}, s{t0}, 5")
        a(f"s_add_u32 s{t0}, s{t0}, s{t1}")
        a(f"s_and_b32 s{t1}, s{skq}, 1")
        a(f"s_mul_i32 s{sLL}, s{t1}, 14336")
        a(f"s_lshl_b32 s{t1}, s{t1}, 4")
        a(f"s_add_u32 s{t0}, s{t0}, s{t1}")
        a(f"s_and_b32 s{t1}, s{skq}, 2")
        a(f"s_lshl_b32 s{t1}, s{t1}, 1")
        a(f"s_add_u32 s{t0}, s{t0}, s{t1}")
        a(f"v_and_b32 v{LF}, 3, v0")
        a(f"v_add_u32 v{LF}, s{t0}, v{LF}")
        a(f"v_mul_u32_u24 v{LF}, {F2SP}, v{LF}")
        a(f"v_add_u32 v{LF}, {B_F2}, v{LF}")
        a(f"s_mul_i32 s{sLS}, s{t0}, 1792")
        a(f"s_add_u32 s{sLS2}, s{sLS}, 4096")
        a(f"s_mul_i32 s{t1}, s{t1}, 1792")
        a(f"s_add_u32 s{sLL}, s{sLL}, s{t1}")
        a(f"s_add_u32 s{sLL}, s{sLL}, 28672")
        a(f"s_lshl_b32 s{t1}, s{skq}, 2")
        a(f"s_add_u32 s{t1}, s{t1}, {GBC + 16}")
        a(f"v_mov_b32 v{LM}, s{t1}")
        a(f"v_mov_b32 v{C0A}, {GBC}")
    def pre2():
        late_addr()
        for r in range(4): a(f"v_mov_b32 v{SB[0]+r}, 0")
        a("s_nop 1")
        for i in range(4): a(f"v_mfma_f32_32x32x16_bf16 {vr(O[i],16)}, {vr(SB[0],4)}, {vr(SB[0],4)}, 0")
        if STAMP: a("s_mov_b64 s[2:3], s[20:21]")
        a(f"s_add_u32 s{t0}, s{rKV}, s{sKVO}")
        a(f"s_addc_u32 s{t1}, s{rKV+1}, 0")
        for k in range(8):
            a(f"s_add_u32 s{KP[k]}, s{t0}, {8192*k + 4096}")
            a(f"s_addc_u32 s{KP[k]+1}, s{t1}, 0")
        if WOT >= 0:
            a(f"s_lshl_b32 s{t0}, s{sidx}, 2")
            a(f"s_add_u32 s{t0}, s{t0}, s{skq}")
            a(f"s_mul_i32 s{t0}, s{t0}, 25")
            a(f"v_min_u32 v{TAU}, 24, v0")
            a(f"v_add_u32 v{TAU}, s{t0}, v{TAU}")
            a(f"v_lshlrev_b32 v{TAU}, 7, v{TAU}")
    def getq(g):
        a(f"s_lshl_b32 s{t1}, s{shs}, 13")
        a(f"s_add_u32 s{t1}, s{t1}, {QX}")
        for i in range(4):
            a(f"s_add_u32 s{t0}, s{skq}, {1+i}")
            a(f"s_and_b32 s{t0}, s{t0}, 3")
            a(f"s_lshl_b32 s{t0}, s{t0}, 11")
            a(f"s_add_u32 s{t0}, s{t0}, s{t1}")
            a(f"v_add_u32 v{u0+i}, s{t0}, v{L16}")
        a(f"v_mov_b32 v{T+4}, {GBC + 8}")
        a(f"v_mov_b32 v{T+5}, {GBC + 12 if g else GBC - 4}")
    def getq2():
        lwait(a, "L_q", 0, 4, 0 if QFAST else 1, T + 4)
        for i in (3, 0, 1, 2):
            a(f"ds_read_b128 {vr(Q[i],4)}, v{u0+i}")
            a(f"ds_read_b128 {vr(Q[i]+4,4)}, v{u0+i} offset:1024")
    def nonce(tag):
        a(f"s_mov_b32 s{t3}, {SPIN}")
        a.lab(f"L_nonce{tag}")
        a(f"v_readfirstlane_b32 s{NONCE}, v{NV}")
        a(f"v_readfirstlane_b32 s{NONCE+1}, v{NV+1}")
        a(f"s_cmp_lg_u32 s{NONCE}, 0")
        a(f"s_cselect_b32 s{t2}, s{NONCE+1}, 0")
        a(f"s_cmp_lg_u32 s{t2}, 0")
        a(f"s_cbranch_scc0 L_nonce_retry{tag}")
    a(f"v_lshrrev_b32 v{u0}, 3, v0")
    a(f"v_lshrrev_b32 v{u1}, 4, v0")
    a(f"v_and_b32 v{u2}, 7, v0")
    a(f"s_lshl_b32 s{t0}, s{srb}, 7")
    a(f"s_lshl_b32 s{t1}, s{sw}, 5")
    a(f"s_add_u32 s{t0}, s{t0}, s{t1}")
    a(f"v_add_u32 v{u3}, s{t0}, v{u0}")
    a(f"v_mul_u32_u24 v{u3}, 896, v{u3}")
    a(f"v_xor_b32 v{u4}, v{u2}, v{u1}")
    a(f"v_lshl_add_u32 v{XD}, v{u4}, 4, v{u3}")
    a(f"v_xor_b32 v{XD+1}, 64, v{XD}")
    a(f"v_add_u32 v{XD+1}, 7168, v{XD+1}")
    a(f"s_mul_i32 s{t0}, s{sg4}, 224")
    a(f"s_mul_i32 s{t1}, s{sw}, {16*2688}")
    a(f"s_add_u32 s{t0}, s{t0}, s{t1}")
    a(f"s_mul_i32 s{t1}, s{shalf}, 896")
    a(f"s_add_u32 s{t1}, s{t1}, s{t0}")
    a(f"s_add_u32 s{t1}, s{t1}, 896")
    a(f"v_lshlrev_b32 v{u3}, 2, v{u1}")
    a(f"v_and_b32 v{u4}, 15, v0")
    a(f"v_xor_b32 v{u4}, v{u4}, v{u3}")
    a(f"v_cmp_lt_u32 vcc, 13, v{u4}")
    a(f"v_mul_u32_u24 v{u1}, 2688, v{u1}")
    a(f"v_lshl_add_u32 v{u1}, v{u4}, 4, v{u1}")
    a(f"v_add_u32 v{WD}, s{t1}, v{u1}")
    a(f"v_bfrev_b32 v{u4}, 2")
    a(f"v_cndmask_b32 v{WD}, v{WD}, v{u4}, vcc")
    a(f"s_mul_i32 s{t1}, s{shalf}, 112")
    a(f"s_add_u32 s{t1}, s{t1}, s{t0}")
    a(f"v_and_b32 v{u3}, 4, v{u3}")
    a(f"v_xor_b32 v{u2}, v{u2}, v{u3}")
    a(f"v_cmp_lt_u32 vcc, 6, v{u2}")
    a(f"v_mul_u32_u24 v{u0}, 2688, v{u0}")
    a(f"v_lshl_add_u32 v{u0}, v{u2}, 4, v{u0}")
    a(f"v_add_u32 v{WD+1}, s{t1}, v{u0}")
    a(f"v_cndmask_b32 v{WD+1}, v{WD+1}, v{u4}, vcc")
    if ROTN > 1:
        a(f"s_mul_i32 s{sROT}, s{srb}, {ROTA}")
        if ROTB:
            a(f"s_mul_i32 s{t0}, s{shalf}, {ROTB}")
            a(f"s_add_u32 s{sROT}, s{sROT}, s{t0}")
        a(f"s_mul_i32 s{t2}, s{sg4}, {ROTC}")
        a(f"s_add_u32 s{sROT}, s{sROT}, s{t2}")
        if ROTN & (ROTN - 1) == 0:
            a(f"s_and_b32 s{sROT}, s{sROT}, {ROTN-1}")
        else:
            a(f"s_mul_i32 s{t2}, s{sROT}, {(65536 + ROTN - 1)//ROTN}")
            a(f"s_lshr_b32 s{t2}, s{t2}, 16")
            a(f"s_mul_i32 s{t2}, s{t2}, {ROTN}")
            a(f"s_sub_u32 s{sROT}, s{sROT}, s{t2}")
        if ROTS != 1: a(f"s_mul_i32 s{sROT}, s{sROT}, {ROTS}")
    else:
        a(f"s_mov_b32 s{sROT}, 0")
    assert (ROTN - 1) * ROTS < 7
    a(f"s_lshl_b32 s{sXL}, s{sw}, 12")
    a(f"s_add_u32 s{sXL}, s{sXL}, {XOFF}")
    a(f"s_mul_i32 s{sWL}, s{sw}, 6144")
    a(f"s_mov_b32 s{rX+2}, 1835008")
    a(f"s_mov_b32 s{rX+3}, 0x00020000")
    a(f"s_mov_b32 s{rW+2}, 1204224")
    a(f"s_mov_b32 s{rW+3}, 0x00020000")
    a(f"s_cmp_eq_u32 s{sb}, 0")
    a("s_waitcnt lgkmcnt(0)")
    a(f"s_cselect_b32 s{rX}, s4, s10")
    a(f"s_cselect_b32 s{rX+1}, s5, s11")
    a(f"s_cselect_b32 s{rW}, s6, s12")
    a(f"s_cselect_b32 s{rW+1}, s7, s13")
    stamp_init()
    stamp(a, "karg")
    def one(kind, i, wl=sWL, ws=sWS_, add=0, first=False):
        xf, wf = (XF0, WF0) if first else (XF, WF)
        if kind == "x":
            a(f"s_add_u32 m0, s{sXL}, {1024*i}")
            a(f"s_add_u32 s{t0}, s{sXS}, {14336*(i//2)}")
            a(f"buffer_load_dwordx4 v{XD+(i&1)}, {S4(rX)}, s{t0} offen {xf} lds")
        else:
            G, q = divmod(i, 3)
            a(f"s_add_u32 m0, s{wl}, {1024*i + add}")
            a(f"s_add_u32 s{t0}, s{ws}, {(8*G + (4*q if q < 2 else 0))*2688}")
            a(f"buffer_load_dwordx4 v{WD+(q==2)}, {S4(rW)}, s{t0} offen {wf} lds")
    sB4, sB5, sB6 = scg, su, sFB
    def issue(first):
        a(f"s_lshl_b32 s{sXS}, s{sROT}, 7")
        a(f"s_mul_i32 s{sWS_}, s{sROT}, 172032")
        for kind, i in [("x", 0), ("w", 0), ("x", 1), ("w", 1), ("x", 2), ("w", 3), ("x", 3), ("w", 4)]: one(kind, i, first=first)
        if not first:
            a(f"s_mov_b32 s{sB4}, s{sB5}")
            a(f"s_mov_b32 s{sB5}, s{sB6}")
            a(f"s_mov_b32 s{sB6}, s{sWS_}")
            a(f"s_cmp_ge_u32 s{stt}, 4")
            a("s_cbranch_scc1 L_nob")
        one("w", 2, first=first); one("w", 5, first=first)
        if not first:
            a("s_branch L_nobr")
            a.lab("L_nob")
            a("s_waitcnt vmcnt(8)")
            a.lab("L_nobr")
        a(f"s_add_u32 s{sROT}, s{sROT}, 1")
        a(f"s_cmp_eq_u32 s{sROT}, 7")
        a(f"s_cselect_b32 s{sROT}, 0, s{sROT}")
        if first:
            a(f"s_add_u32 s{sWL}, s{sWL}, {STAGE}")
            a(f"s_add_u32 s{sXL}, s{sXL}, {STAGE}")
        else:
            a(f"s_cmp_ge_u32 s{sWL}, {2*STAGE}")
            a(f"s_mov_b32 s{t0}, {STAGE}")
            a(f"s_cselect_b32 s{t0}, {(-2*STAGE) & 0xffffffff:#x}, s{t0}")
            a(f"s_add_u32 s{sWL}, s{sWL}, s{t0}")
            a(f"s_add_u32 s{sXL}, s{sXL}, s{t0}")
    if LPR: a(f"s_setprio {LPR}")
    issue(True)
    stamp(a, "iss0")
    if SCP:
        a("s_getpc_b64 s[0:1]")
        a("s_and_b32 s0, s0, 0xfffff000")
        a(f"s_lshl_b32 s{t0}, s{sidx}, 1")
        a(f"s_and_b32 s{t1}, s{sw}, 1")
        a(f"s_add_u32 s{t0}, s{t0}, s{t1}")
        a(f"s_lshl_b32 s{t0}, s{t0}, 6")
        a(f"s_lshr_b32 s{t1}, s{sw}, 1")
        a(f"s_mul_i32 s{t1}, s{t1}, 12288")
        a(f"s_add_u32 s{t0}, s{t0}, s{t1}")
        a(f"s_add_u32 s0, s0, s{t0}")
        a("s_addc_u32 s1, s1, 0")
        for k in range(3): a(f"s_load_dword s3, s[0:1], {4096*k}")
    if TWO:
        issue(True)
        if TWO == 2:
            a("s_waitcnt vmcnt(10)")
            a("s_barrier")
    a(f"s_mov_b32 s{stt}, {2 if TWO else 1}")
    a(f"s_mov_b32 s{su}, 0")
    a(f"s_mov_b32 s{sFB}, 0")
    dbg_desc()
    ids2a(0)
    a(f"s_lshr_b32 s{t0}, s{srb}, 1")
    a(f"s_lshl_b32 s{t0}, s{t0}, 7")
    a(f"s_add_u32 s{sWOS}, s{t0}, s{sKVO}")
    a(f"v_lshlrev_b32 v{PTA}, 10, v0")
    ids2b(0)
    a(f"v_lshrrev_b32 v{u2}, 5, v0")
    a(f"s_and_b32 s{t1}, s{sidx}, 3")
    a(f"s_cmp_eq_u32 s{t1}, 3")
    a(f"s_cselect_b32 s{t0}, 8, 16")
    a(f"s_lshl_b32 s{t1}, s{t1}, 8")
    a(f"v_lshrrev_b32 v{u0}, 4, v0")
    a(f"v_lshlrev_b32 v{u1}, 2, v{u0}")
    a(f"v_and_b32 v{u3}, 15, v0")
    a(f"v_xor_b32 v{u1}, v{u1}, v{u3}")
    a(f"v_cmp_le_u32 vcc, s{t0}, v{u1}")
    a(f"v_mul_u32_u24 v{u0}, 896, v{u0}")
    a(f"v_lshl_add_u32 v{u0}, v{u1}, 4, v{u0}")
    a(f"v_add_u32 v{WOA}, s{t1}, v{u0}")
    a(f"v_bfrev_b32 v{u0}, 2")
    a(f"v_cndmask_b32 v{WOA}, v{WOA}, v{u0}, vcc")
    a(f"s_lshl_b32 s{t2}, s{skq}, 2")
    a(f"s_cmp_lt_u32 s{t2}, s{t0}")
    a(f"s_cselect_b32 s{XM}, 1, 0")
    a(f"s_mul_i32 s{sOUTO}, s{sb}, 896")
    a(f"s_add_u32 s{sOUTO}, s{sOUTO}, s{t1}")
    a(f"s_lshl_b32 s{t1}, s{skq}, 6")
    a(f"s_add_u32 s{sOUTO}, s{sOUTO}, s{t1}")
    a(f"s_lshl_b32 s{sRT}, s{sg4}, 3")
    a(f"s_lshr_b32 s{t0}, s{sidx}, 2")
    a(f"s_add_u32 s{sRT}, s{sRT}, s{t0}")
    a(f"s_bfe_u32 s{sPE}, s{sRT}, 0x10001")
    a(f"s_lshl_b32 s{sRT}, s{sRT}, 1")
    a(f"v_bfe_u32 v{u0}, v0, 2, 2")
    a(f"v_xor_b32 v{u1}, s{skq}, v{u0}")
    a(f"v_lshlrev_b32 v{u1}, 6, v{u1}")
    a(f"v_lshl_add_u32 v{u1}, v{u0}, 8, v{u1}")
    a(f"v_and_b32 v{u0}, 1, v0")
    a(f"v_lshl_add_u32 v{u1}, v{u0}, 5, v{u1}")
    a(f"v_bfe_u32 v{u0}, v0, 4, 1")
    a(f"v_lshl_add_u32 v{u1}, v{u0}, 4, v{u1}")
    a(f"v_bfe_u32 v{u0}, v0, 1, 1")
    a(f"v_lshl_add_u32 v{u1}, v{u0}, 3, v{u1}")
    HSTEP = [4, 28, 56]
    for t in range(3):
        a(f"v_mul_u32_u24 v{u0}, {HSTEP[t]*256}, v{u2}")
        a(f"v_add_u32 v{WA+t}, v{u1}, v{u0}")
    a(f"v_mov_b32 v{OA}, v{L16}")
    a(f"v_and_b32 v{u0}, 31, v0")
    a(f"v_mul_u32_u24 v{u1}, 1792, v{u2}")
    a(f"v_lshl_add_u32 v{OA+1}, v{u0}, 4, v{u1}")
    a(f"v_mul_u32_u24 v{u1}, 3584, v{u2}")
    a(f"v_lshl_add_u32 v{OA+2}, v{u0}, 3, v{u1}")
    a(f"s_lshl_b32 s{t0}, s{skq}, 12")
    a(f"s_add_u32 s{t0}, s{t0}, {TX}")
    a(f"v_add_u32 v{TR}, s{t0}, v{L16}")
    a(f"v_bfe_u32 v{u1}, v0, 1, 2")
    a(f"v_lshlrev_b32 v{u3}, 1, v{u2}")
    a(f"v_xor_b32 v{u1}, v{u1}, v{u3}")
    a(f"v_lshlrev_b32 v{u1}, 4, v{u1}")
    a(f"v_lshl_add_u32 v{u1}, v{u0}, 6, v{u1}")
    a(f"v_add_u32 v{TW}, s{t0}, v{u1}")
    a(f"v_xor_b32 v{TW+1}, 16, v{TW}")
    a(f"v_lshrrev_b32 v{u0}, 2, v0")
    a(f"s_lshl_b32 s{t0}, s{sRT}, 5")
    a(f"v_add_u32 v{u0}, s{t0}, v{u0}")
    a(f"v_mul_u32_u24 v{u0}, 1792, v{u0}")
    a(f"v_lshrrev_b32 v{u1}, 3, v0")
    a(f"v_xor_b32 v{u1}, v{u1}, v0")
    a(f"v_and_b32 v{u1}, 3, v{u1}")
    a(f"v_lshl_add_u32 v{OUTA}, v{u1}, 4, v{u0}")
    a(f"s_lshr_b32 s{t1}, s{skq}, 1")
    a(f"s_add_u32 s{t0}, s{sRT}, s{t1}")
    a(f"s_lshl_b32 s{t0}, s{t0}, 4")
    a(f"s_lshl_b32 s{t1}, s{sPE}, 3")
    a(f"s_add_u32 s{t0}, s{t0}, s{t1}")
    a(f"s_and_b32 s{t1}, s{skq}, 1")
    a(f"s_lshl_b32 s{t1}, s{t1}, 1")
    a(f"s_lshl_b32 s{t1}, s{t1}, 1")
    a(f"s_add_u32 s{sRT}, s{t0}, s{t1}")
    a(f"v_and_b32 v{u0}, 3, v0")
    a(f"v_add_u32 v{u0}, s{sRT}, v{u0}")
    a(f"v_mul_u32_u24 v{u0}, {F2SP}, v{u0}")
    a(f"v_add_u32 v{F2A}, {B_F2}, v{u0}")
    getq(0)
    if STL_:
        a(f"s_add_u32 s0, s{rKV}, s{sWOS}")
        a(f"s_addc_u32 s1, s{rKV+1}, 0")
    stamp(a, "lsetup")
    if TWO == 1:
        a("s_waitcnt vmcnt(10)")
        a("s_barrier")
    a.lab("L_ld")
    issue(False)
    a(f"s_add_u32 s{stt}, s{stt}, 1")
    if STL_:
        a(f"s_cmp_lt_u32 s{stt}, {ST0}")
        a("s_cbranch_scc1 L_nost")
        for e_ in range(STL_):
            a(f"s_load_dword s3, s[0:1], {1024*e_}")
            a(f"s_load_dword s3, s[0:1], {1024*e_ + 64}")
        a(f"s_add_u32 s0, s0, {1024*STL_}")
        a("s_addc_u32 s1, s1, 0")
        a.lab("L_nost")
    if SLD:
        a(f"s_cmp_lg_u32 s{stt}, {SLD}")
        a("s_cbranch_scc1 L_nosl")
        a(f"s_lshl_b32 s{t0}, s{sg4}, 5")
        a(f"s_add_u32 s{t0}, s{t0}, 128")
        a(f"s_load_dwordx2 {S2(NONCE)}, {S2(rDBG)}, s{sDL} {SGL}")
        a(f"s_load_dwordx8 s[88:95], {S2(rDBG)}, s{t0} {SGL}")
        a.lab("L_nosl")
    a(f"s_cmp_lt_u32 s{stt}, 7")
    a("s_waitcnt vmcnt(10)")
    a("s_barrier")
    a("s_cbranch_scc1 L_ld")
    a(f"s_mul_i32 s{sWL}, s{sw}, 6144")
    for ws, st_ in ((sB6, 0), (sB4, 1), (sB5, 2)):
        one("w", 2, sWL, ws, st_ * STAGE); one("w", 5, sWL, ws, st_ * STAGE)
    if not SLD: a(f"buffer_load_dwordx2 {vr(NV,2)}, off, {S4(rDBG)}, s{sDL} sc1")
    m_ = (1 << max(1, 4 * PRET)) - 1
    def touch():
        a(f"buffer_load_dword v{T+9}, v{F1A}, {S4(rWS)}, 0 offen sc1")
        a(f"s_mov_b32 exec_lo, {m_ & 0xffffffff:#x}")
        a(f"s_mov_b32 exec_hi, {m_ >> 32:#x}")
        a(f"buffer_load_dword v{T+8}, v{PTA}, {S4(rKV)}, s{sWOS} offen {TF}")
        a("s_mov_b64 exec, -1")
    if STL_: a(f"buffer_load_dword v{T+9}, v{F1A}, {S4(rWS)}, 0 offen sc1")
    elif TEAR != 1: touch()
    NX = (2 if STL_ else 1 if TEAR == 1 else 3) - (1 if SLD else 0)
    if SLD:
        a(f"s_getreg_b32 s{t2}, hwreg(HW_REG_XCC_ID)")
        a(f"s_and_b32 s{t2}, s{t2}, 15")
        a(f"s_lshl_b32 s{t0}, s{sx}, 4")
        a(f"s_or_b32 s{t2}, s{t2}, s{t0}")
        a(f"s_or_b32 s{t2}, s{t2}, 0x80")
        a(f"s_mul_i32 s{t2}, s{t2}, 0x01010101")
        a(f"s_lshl_b32 s{t0}, s{sw}, 4")
        a(f"s_add_u32 s{t0}, s{t0}, {NRC}")
        a(f"v_mov_b32 v{T+6}, s{t0}")
        a("s_waitcnt lgkmcnt(0)")
        a(f"s_xor_b32 s{t1}, s88, s{t2}")
        for k in range(89, 96):
            a(f"s_xor_b32 s{t0}, s{k}, s{t2}")
            a(f"s_or_b32 s{t1}, s{t1}, s{t0}")
        a(f"v_mov_b32 v{NV}, s{NONCE}")
        a(f"v_mov_b32 v{NV+1}, s{NONCE+1}")
        a(f"v_mov_b32 v{NV+2}, s{t1}")
        a(f"ds_write_b96 v{T+6}, {vr(NV,3)}")
        a("s_waitcnt lgkmcnt(0)")
    a(f"s_waitcnt vmcnt({6 + NX})")
    stamp(a, "lw6")
    a("s_barrier")
    if LPR: a("s_setprio 0")
    pre2()
    if B2:
        a(f"s_waitcnt vmcnt({NX + 2})")
        a("s_barrier")
    a(f"s_waitcnt vmcnt({NX})")
    a("s_barrier")
    def touch2():
        m2 = ((1 << (4 * PRET2)) - 1) & ~m_
        a(f"s_mov_b32 exec_lo, {m2 & 0xffffffff:#x}")
        a(f"s_mov_b32 exec_hi, {m2 >> 32:#x}")
        a(f"buffer_load_dword v{T+10}, v{PTA}, {S4(rKV)}, s{sWOS} offen sc1")
        a("s_mov_b64 exec, -1")
    if PRET2 and T2POS == "b6": touch2()
    if not SLD: a(f"s_waitcnt vmcnt({NX - 1})")
    nonce("L")
    if PRET2 and T2POS == "late": touch2()
    a("s_setprio 2")
    stamp(a, "lready")
    a("s_branch L_ph2")

    a.lab("L_comp")
    a("s_setprio 3")
    a(f"s_getreg_b32 s{t2}, hwreg(HW_REG_XCC_ID)")
    a(f"s_and_b32 s{t2}, s{t2}, 15")
    a(f"s_lshl_b32 s{t0}, s{sx}, 4")
    a(f"s_or_b32 s{t2}, s{t2}, s{t0}")
    a(f"s_or_b32 s{t2}, s{t2}, 0x80")
    a(f"s_lshl_b32 s{t1}, s{sg4}, 5")
    a(f"s_add_u32 s{t1}, s{t1}, 128")
    a(f"v_mov_b32 v{NV}, s{t2}")
    if not SLD:
        a(f"v_and_b32 v{NA}, 3, v0")
        a(f"v_lshlrev_b32 v{NA}, 3, v{NA}")
        a(f"v_add_u32 v{NA}, s{t1}, v{NA}")
    a(f"s_add_u32 s{t1}, s{t1}, s{sidx}")
    a("v_mov_b32 v238, 0")
    a("v_mov_b32 v239, 0")
    a("s_waitcnt lgkmcnt(0)")
    def ftouch(pairs, wave, tag):
        a(f"s_cmp_lg_u32 s{sw}, {wave}")
        a(f"s_cbranch_scc1 L_ft{tag}")
        a(f"s_add_u32 s{t0}, s{sg4}, 1")
        a(f"s_and_b32 s{t0}, s{t0}, 2")
        a(f"s_cbranch_scc1 L_ft{tag}")
        a(f"s_and_b32 s{t0}, s{sg4}, 1")
        a(f"s_lshl_b32 s{t0}, s{t0}, 5")
        a(f"s_add_u32 s{t0}, s{t0}, s{sidx}")
        a(f"v_and_b32 v{T+6}, 31, v0")
        a(f"v_lshrrev_b32 v{T+7}, 5, v0")
        a(f"v_mul_u32_u24 v{T+8}, 896, v{T+6}")
        a(f"v_lshl_add_u32 v{T+8}, v{T+7}, 7, v{T+8}")
        a(f"v_min_u32 v{T+6}, 20, v{T+6}")
        a(f"v_mul_u32_u24 v{T+7}, 172032, v{T+7}")
        a(f"v_lshl_add_u32 v{T+9}, v{T+6}, 7, v{T+7}")
        a(f"s_mul_i32 s{t3}, s{t0}, {32*896}")
        a(f"s_mul_i32 s{t0}, s{t0}, 2688")
        for pr in pairs:
            c_ = 2 * int(pr) - 1
            a(f"s_add_u32 s{sROT}, s{t0}, {c_*172032}")
            a(f"buffer_load_dword v{T+10}, v{T+9}, {S4(rW)}, s{sROT} offen")
            a(f"buffer_load_dword v{T+11}, v{T+8}, {S4(rX)}, s{t3} offen offset:{c_*128}")
        a.lab(f"L_ft{tag}")
    if FT:
        a(f"s_cmp_eq_u32 s{sb}, 0")
        a(f"s_cselect_b32 s{rX}, s4, s10")
        a(f"s_cselect_b32 s{rX+1}, s5, s11")
        a(f"s_cselect_b32 s{rW}, s6, s12")
        a(f"s_cselect_b32 s{rW+1}, s7, s13")
        a(f"s_mov_b32 s{rX+2}, 1835008")
        a(f"s_mov_b32 s{rX+3}, 0x00020000")
        a(f"s_mov_b32 s{rW+2}, 1204224")
        a(f"s_mov_b32 s{rW+3}, 0x00020000")
        ftouch(FT.split("/")[0], 5, "a")
    dbg_desc()
    if not SLD:
        a(f"s_mul_i32 s{XM}, s{t2}, 0x01010101")
        a(f"s_mov_b32 s{XM+1}, s{XM}")
    a("s_mov_b64 exec, 1")
    if not SLD: a(f"v_mov_b32 v{NA}, s{sDL}")
    a(f"s_cmp_lg_u32 s{sw}, 4")
    a("s_cbranch_scc1 L_noreg")
    a(f"buffer_store_byte v{NV}, off, {S4(rDBG)}, s{t1}")
    if UBY: a(f"buffer_load_ubyte v{T+12}, off, {S4(rDBG)}, s{t1} sc1")
    a(f"s_cmp_lg_u32 s{sidx}, 0")
    a("s_cbranch_scc1 L_noreg")
    a(f"s_or_b32 s{t0}, s{RT}, 1")
    a(f"s_or_b32 s{t2}, s{RT+1}, 1")
    a(f"v_mov_b32 v236, s{t0}")
    a(f"v_mov_b32 v237, s{t2}")
    a(f"buffer_atomic_cmpswap_x2 v[236:239], off, {S4(rDBG)}, s{sDL} sc1")
    a.lab("L_noreg")
    a("s_mov_b64 exec, -1")
    stamp_init()
    a(f"s_and_b32 s{stt}, s{sw}, 1")
    a(f"s_bfe_u32 s{scg}, s{sw}, 0x10001")
    a(f"v_and_b32 v{u0}, 31, v0")
    a(f"v_bfe_u32 v{u1}, v0, 1, 3")
    a(f"v_lshrrev_b32 v{u2}, 5, v0")
    a(f"v_xor_b32 v{u1}, v{u1}, v{u2}")
    a(f"v_lshlrev_b32 v{u1}, 4, v{u1}")
    a(f"v_lshl_add_u32 v{u1}, v{u0}, 7, v{u1}")
    a(f"s_lshl_b32 s{t0}, s{stt}, 13")
    a(f"s_add_u32 s{t0}, s{t0}, {XOFF}")
    for ks in range(4):
        a(f"v_xor_b32 v{XA+ks}, {32*ks}, v{u1}")
        a(f"v_add_u32 v{XA+ks}, s{t0}, v{XA+ks}")
    a(f"v_bfe_u32 v{u0}, v0, 4, 1")
    a(f"v_and_b32 v{u1}, 3, v0")
    a(f"v_lshlrev_b32 v{u1}, 3, v{u1}")
    a(f"v_lshl_add_u32 v{u0}, v{u0}, 5, v{u1}")
    a(f"s_mul_i32 s{t0}, s{scg}, 112")
    a(f"v_add_u32 v{WA1}, s{t0}, v{u0}")
    a(f"v_add_u32 v{WA1+1}, 56, v{WA1}")
    a(f"s_mul_i32 s{t0}, s{scg}, 56")
    a(f"v_add_u32 v{WA1+2}, s{t0}, v{u0}")
    a("s_mov_b32 exec_lo, 0x88880000")
    a("s_mov_b32 exec_hi, 0x88880000")
    a(f"v_or_b32 v{WA1}, 192, v{WA1}")
    a(f"v_or_b32 v{WA1+1}, 192, v{WA1+1}")
    a(f"v_or_b32 v{WA1+2}, 64, v{WA1+2}")
    a("s_mov_b64 exec, -1")
    a(f"v_bfe_u32 v{u1}, v0, 2, 2")
    a(f"v_mul_u32_u24 v{u2}, 3072, v{u2}")
    a(f"v_lshl_add_u32 v{u3}, v{u1}, 8, v{u2}")
    a(f"v_lshlrev_b32 v{u4}, 6, v{u1}")
    for c in range(2):
        a(f"v_xor_b32 v{WA1+c}, v{WA1+c}, v{u4}")
        a(f"v_add_u32 v{WA1+c}, v{WA1+c}, v{u3}")
    a(f"v_lshl_add_u32 v{u3}, v{u1}, 7, v{u2}")
    a(f"v_lshlrev_b32 v{u4}, 5, v{u1}")
    a(f"v_and_b32 v{u4}, 64, v{u4}")
    a(f"v_xor_b32 v{WA1+2}, v{WA1+2}, v{u4}")
    a(f"v_add_u32 v{WA1+2}, v{WA1+2}, v{u3}")
    Z = FR + 60
    for r in range(20): a(f"v_mov_b32 v{Z+r}, 0")
    a(f"v_mov_b32 v{u0}, {GBC}")
    a(f"ds_write_b128 v{u0}, {vr(Z+16,4)}")
    a(f"ds_write_b128 v{u0}, {vr(Z+16,4)} offset:16")
    for t_ in range(6): a(f"v_mfma_f32_32x32x16_bf16 {vr(ACC+16*t_,16)}, {vr(Z+16,4)}, {vr(Z+16,4)}, 0")
    a("s_mov_b32 exec_hi, 0")
    a(f"v_mov_b32 v{Z}, 0x3f80")
    a(f"v_mov_b32 v{Z+4}, 0x3f80")
    a("s_mov_b32 exec_lo, 0x10000000")
    a(f"v_mov_b32 v{Z+8}, 0x3f80")
    a(f"v_mov_b32 v{Z+12}, 0x3f80")
    a("s_mov_b64 exec, -1")
    def capture(f):
        keep = a.l; a.l = []
        f()
        got = [x.strip() for x in a.l]; a.l = keep
        return got
    lateA = capture(lambda: ids2a(1, False)); lateB = capture(lambda: ids2b(1))
    ws_desc()
    a(f"v_lshlrev_b32 v{L16}, 4, v0")
    a(f"v_and_b32 v{u0}, 0x33, v0")
    a(f"v_bfe_u32 v{u1}, v0, 2, 1")
    a(f"v_lshl_add_u32 v{u0}, v{u1}, 3, v{u0}")
    a(f"v_bfe_u32 v{u1}, v0, 3, 1")
    a(f"v_lshl_add_u32 v{u0}, v{u1}, 2, v{u0}")
    a(f"v_lshlrev_b32 v{TAU}, 4, v{u0}")
    sE0, sSC, sDLT, sCNT = sXS, sWS_, sWL, sXL
    a(f"s_lshl_b32 s{t0}, s{scg}, 2")
    a(f"s_lshr_b32 s{t1}, s{srb}, 2")
    a(f"s_add_u32 s{t0}, s{t0}, s{t1}")
    a(f"s_mul_i32 s{sF1O}, s{t0}, {F1SP}")
    a(f"s_lshl_b32 s{t0}, s{shalf}, 2")
    a(f"s_and_b32 s{t1}, s{srb}, 3")
    a(f"s_add_u32 s{t0}, s{t0}, s{t1}")
    a(f"s_lshl_b32 s{t0}, s{t0}, 1")
    a(f"s_add_u32 s{t0}, s{t0}, s{stt}")
    a(f"s_lshl_b32 s{t0}, s{t0}, 3")
    a(f"s_add_u32 s{sF1O}, s{sF1O}, s{t0}")
    a(f"s_add_u32 s{sF1O}, s{sF1O}, {X_F1}")
    if TEAR == 2: a(f"buffer_load_dword v{T+9}, off, {S4(rWS)}, s{sF1O} sc1")
    a(f"s_lshl_b32 s{t0}, s{srb}, 1")
    a(f"s_add_u32 s{t0}, s{t0}, s{stt}")
    a(f"s_lshl_b32 s{t1}, s{scg}, 6")
    a(f"s_add_u32 s{t0}, s{t0}, s{t1}")
    a(f"s_lshl_b32 s{sE0}, s{t0}, 13")
    SE = [sE0, rX, rX + 1, rX + 2]
    for t_, d_ in ((1, 4096), (2, 64 * 4096), (3, 65 * 4096)): a(f"s_add_u32 s{SE[t_]}, s{sE0}, {d_}")
    a(f"s_sub_u32 s{t0}, s{sw}, 4")
    a(f"s_lshl_b32 s{t0}, s{t0}, 12")
    a(f"s_add_u32 s{t0}, s{t0}, {QX}")
    a(f"v_add_u32 v{QW}, s{t0}, v{L16}")
    if SLD:
        a(f"s_lshl_b32 s{t0}, s{sw}, 4")
        a(f"s_add_u32 s{t0}, s{t0}, {NRC - 64}")
        a(f"v_mov_b32 v{PTA}, s{t0}")
    a(f"s_mov_b32 s{sSC}, {CSCALE:#x}")
    a(f"s_mov_b32 s{sCNT}, 0")
    a(f"s_mov_b32 s{sDLT}, 0")
    if FT and FT.split("/")[1]: ftouch(FT.split("/")[1], 6, "b")
    if CPF:
        a(f"s_cmp_lg_u32 s{sw}, 5")
        a("s_cbranch_scc1 L_nocpf")
        a(f"s_sub_u32 s{t0}, s{sidx}, 1")
        a(f"s_cmp_ge_u32 s{t0}, 3")
        a("s_cbranch_scc1 L_nocpf")
        a(f"s_getpc_b64 {S2(NONCE)}")
        a.lab("L_pc")
        a(f"s_lshl_b32 s{t0}, s{t0}, 13")
        a(f"v_lshlrev_b32 v{u0}, 7, v0")
        a(f"v_add_u32 v{u0}, s{t0}, v{u0}")
        a(f"v_min_u32 v{u0}, L_fallback-L_pc, v{u0}")
        a(f"global_load_dword v{T+10}, v{u0}, {S2(NONCE)}")
        a.lab("L_nocpf")
    a(f"s_cmp_lg_u32 s{shalf}, 0")
    a("s_cbranch_scc1 P1_v1")
    def reads(ks):
        b = FR + 20 * ks
        out = [f"ds_read_b128 {vr(b+4*e,4)}, v{XA+ks} offset:{4096*e}" for e in range(2)]
        for c in range(3):
            for h in range(2):
                off = 6144 * ks + (1024 * h if c < 2 else 2048 + 512 * h)
                out.append(f"ds_read_b64_tr_b16 {vr(b+8+4*c+2*h,2)}, v{WA1+c} offset:{off}")
        return [out[0], out[2], out[3], out[1]] + out[4:]
    def mfma1(ks, e, c, ori):
        b = FR + 20 * ks
        x = vr(b + 4 * e, 4); w = vr(b + 8 + 4 * c, 4)
        p, q = (w, x) if ori[c] == 'n' else (x, w)
        d = vr(ACC + 16 * (2 * c + e), 16)
        return f"v_mfma_f32_32x32x16_bf16 {d}, {p}, {q}, {d}"
    tiles = [(0, 0), (1, 0), (0, 1), (1, 1), (0, 2), (1, 2)]
    pend = []; cnt = [0]; ctx = [""]
    def epi(t_):
        e, c = tiles[t_]
        d = ACC + 16 * (2 * c + e)
        P = d
        out = []
        if c == 2: out += [[f"v_mul_f32 v{d+r}, s{sSC}, v{d+r}"] for r in range(16)]
        out += [[f"v_cvt_pk_bf16_f32 v{P+i}, v{d+2*i}, v{d+2*i+1}"] for i in range(8)]
        if c == 2:
            out += [[f"ds_write_b128 v{QW}, {vr(P,4)} offset:{2048*e}"], [f"ds_write_b128 v{QW}, {vr(P+4,4)} offset:{2048*e+1024}"]]
        else:
            out.insert(4, ("st", t_, 0, P)); out.append(("st", t_, 1, P + 4))
        return out
    def emit(x):
        a(x); cnt[0] += 1
    def drain(nmax):
        n_ = 0
        while pend and n_ < nmax and pend[0][0] <= cnt[0]:
            g_ = pend.pop(0)[1]
            if g_[0] == "st": stq.append(g_)
            else:
                for x in g_: emit(x)
                n_ += len(g_)
    stq = []; nm = [0, -99]
    def store():
        if not stq or nm[0] - nm[1] < SP: return 0
        _, t_, f, P = stq.pop(0)
        tag = f"{ctx[0]}{t_}{f}"
        emit(f"s_cbranch_vccz L_wt{tag}")
        emit(f"buffer_store_dwordx4 {vr(P,4)}, v{TAU}, {S4(rWS)}, s{SE[t_]} offen offset:{1024*f} {KVS}")
        a.lab(f"L_st{tag}")
        if f: stamp(a, f"st{t_}")
        tails.append((tag, P, SE[t_], 1024 * f)); nm[1] = nm[0]
        return 2
    def fill(nmax):
        if pend and pend[0][0] > cnt[0]:
            gap = min(nmax - 1, pend[0][0] - cnt[0])
            a(f"s_nop {gap-1}"); cnt[0] += gap
            nmax -= gap
        drain(nmax)
    for v, ori in enumerate(["nnn", "vvn"]):
        a.lab(f"P1_v{v}")
        if v == 1: a(f"v_add_u32 v{TAU}, 2048, v{L16}")
        a("s_waitcnt lgkmcnt(0)")
        stamp(a, "setup")
        mm = [(e, c) for c in range(3) for e in range(2)]
        def cstamps():
            if STAMP or DIAG:
                if len(DIAG) == 2 and DIAG[0] == "c" and DIAG != "c0":
                    a("s_memrealtime s[82:83]")
                    a(f"s_cmp_eq_u32 s{sCNT}, {int(DIAG[1])}")
                    a("s_waitcnt lgkmcnt(0)")
                    a("s_cselect_b32 s80, s82, s80")
                for nm in (STL if STAMP else []):
                    if len(nm) == 2 and nm[0] == "c" and nm != "c0":
                        a(f"s_cmp_eq_u32 s{sCNT}, {int(nm[1])}")
                        a(f"s_cbranch_scc1 L_ns{v}{nm}")
                        a.lab(f"L_nb{v}{nm}")
                        stails.append((f"{v}{nm}", nm))
        a("s_barrier")
        stamp(a, "c0")
        for x in reads(0): a(x)
        if FT and len(FT.split("/")) > 2: ftouch(FT.split("/")[2], 7, f"c{v}")
        a.raw(".p2align 6")
        a.lab(f"P1_loop{v}")
        for ks, rk in ((3, 1), (0, 2), (1, 3)):
            rd = reads(rk)
            if ks != 3: a("s_waitcnt lgkmcnt(8)")
            for j, (e, c) in enumerate(mm):
                a(mfma1(ks, e, c, ori))
                for x in rd[2*j:2*j+2]: a(x)
                if ks == 3 and j == 4:
                    a(f"s_add_u32 s{sCNT}, s{sCNT}, 1")
                    a(f"s_mov_b32 s{sDLT}, {STAGE}")
                if ks == 0 and j == 4:
                    a(f"s_cmp_eq_u32 s{sCNT}, 3")
                    a(f"s_cselect_b32 s{sDLT}, {(-2*STAGE) & 0xffffffff:#x}, s{sDLT}")
                if ks == 1 and j == 4:
                    for i in range(4): a(f"v_add_u32 v{XA+i}, s{sDLT}, v{XA+i}")
                if ks == 1 and j == 5:
                    for i in range(4, 7): a(f"v_add_u32 v{XA+i}, s{sDLT}, v{XA+i}")
        a("s_waitcnt lgkmcnt(8)")
        rd = reads(0)
        for j, (e, c) in enumerate(mm):
            a(mfma1(2, e, c, ori))
            if j == BPOS - 1: a("s_waitcnt lgkmcnt(0)")
            if j == BPOS:
                a("s_barrier")
                cstamps()
            if j > BPOS:
                n_ = -(-8 // (5 - BPOS)) if j < 5 else 8
                for x in rd[:n_]: a(x)
                rd = rd[n_:]
        if BPOS == 5:
            for x in rd: a(x)
        a(f"s_cmp_lt_u32 s{sCNT}, 4")
        a(f"s_cbranch_scc1 P1_loop{v}")
        m4 = mm[:4]
        for ch in (4, 5):
            dl = STAGE if ch == 4 else (-2 * STAGE) & 0xffffffff
            for ks, rk in ((3, 1), (0, 2), (1, 3)):
                rd = reads(rk)[:6]
                if ks != 3: a("s_waitcnt lgkmcnt(6)")
                for j, (e, c) in enumerate(mm if (ch == 4 and ks == 3) else m4):
                    a(mfma1(ks, e, c, ori))
                    for x in rd[2*j:2*j+2]: a(x)
                    if ch == 5 and ks == 3 and j == 0 and not SLD:
                        a(f"buffer_load_dwordx2 {vr(NV,2)}, v{NA}, {S4(rDBG)}, 0 offen sc1")
                    if ks == 0 and j == 3: a(f"s_mov_b32 s{sDLT}, {dl:#x}")
                    if ks == 1 and j == 3:
                        for i in range(4): a(f"v_add_u32 v{XA+i}, s{sDLT}, v{XA+i}")
            a("s_waitcnt lgkmcnt(6)")
            rd = reads(0)[:6]
            a(mfma1(2, *m4[0], ori))
            for i in range(4, 7): a(f"v_add_u32 v{XA+i}, s{sDLT}, v{XA+i}")
            a("s_waitcnt lgkmcnt(0)")
            a(mfma1(2, *m4[1], ori))
            a("s_barrier")
            stamp(a, f"d{ch+1}")
            a(mfma1(2, *m4[2], ori))
            for x in rd[:3]: a(x)
            a(mfma1(2, *m4[3], ori))
            for x in rd[3:]: a(x)
        rd = reads(1)[:6] + reads(2)[:6]
        for j, (e, c) in enumerate(m4):
            a(mfma1(3, e, c, ori))
            for x in rd[3*j:3*j+3]: a(x)
        for x in reads(3)[:4]: a(x)
        ctx[0] = str(v); pend.clear(); cnt[0] = 0; stq.clear(); nm[:] = [0, -99]
        seq = [(0, 0), (0, 1), (1, 0), (1, 1), (2, 0), (2, 1), (3, 0), (3, 1)] + [(k, t_) for t_ in range(2, 4) for k in range(4)]
        for i, (k, t_) in enumerate(seq):
            if i == 0: emit("s_waitcnt lgkmcnt(14)")
            if i == 2: emit("s_waitcnt lgkmcnt(12)")
            if i == 4: emit("s_waitcnt lgkmcnt(6)")
            if i == 6:
                emit("s_waitcnt lgkmcnt(0)" if SLD else "s_waitcnt vmcnt(0) lgkmcnt(0)")
                stamp(a, "last")
            emit(mfma1(k, *tiles[t_], ori))
            first = cnt[0]; nm[0] += 1
            store()
            if i == 0:
                for x in reads(3)[4:6]: emit(x)
            if i == 4 and SLD: emit(f"ds_read_b96 {vr(NV,3)}, v{PTA}")
            if i == 6:
                if SLD:
                    emit(f"v_readfirstlane_b32 s{t0}, v{NV+2}")
                    emit("s_nop 0")
                    emit(f"s_cmp_eq_u32 s{t0}, 0")
                else:
                    emit(f"v_cmp_eq_u64 vcc, {S2(XM)}, {vr(NV,2)}")
                    emit(f"s_and_b32 s{t0}, vcc_lo, 0xf0")
                    emit(f"s_cmp_eq_u32 s{t0}, 0xf0")
                emit(f"s_cselect_b32 s{sLOC}, {1 if LOCAL else 0}, 0")
                emit(f"s_cselect_b64 vcc, {-1 if LOCAL else 0}, 0")
            if k == 3: pend.extend((first + 12, g_) for g_ in epi(t_))
            if i == QB:
                emit("s_barrier")
                stamp(a, "bar7")
                for ks in range(2):
                    for x in reads(ks)[6:]: emit(x)
            elif i == QB + 1:
                for ks in range(2, 4):
                    for x in reads(ks)[6:]: emit(x)
            elif i != 6 and i != 15: fill(6)
        snap = (list(pend), cnt[0], list(stq), list(nm))
        if v == 0: a("s_branch P1_done")
    a.lab("P1_done")
    ctx[0] = "c"; pend[:] = snap[0]; cnt[0] = snap[1]; stq[:] = snap[2]; nm[:] = snap[3]
    if QB > 15:
        while pend: fill(99 if pend[0][0] <= cnt[0] else 13)
        emit("s_barrier")
        for ks in range(4):
            for x in reads(ks)[6:]: emit(x)
    def qreads(ks, base):
        b = FR + 20 * ks
        return [f"ds_read_b128 {vr(b,4)}, v{XA+ks} offset:{base}",
                f"ds_read_b64_tr_b16 {vr(b+16,2)}, v{WA1+2} offset:{base + 6144*ks + 2048}",
                f"ds_read_b64_tr_b16 {vr(b+18,2)}, v{WA1+2} offset:{base + 6144*ks + 2560}",
                f"ds_read_b128 {vr(b+4,4)}, v{XA+ks} offset:{base + 4096}"]
    def flag1():
        assert not any(g_[1][0] == "st" for g_ in pend) and not stq
        stamp(a, "prefl")
        nonce("C")
        a("s_mov_b64 exec, 1")
        a(f"s_cmp_eq_u32 s{sLOC}, 0")
        a("s_waitcnt vmcnt(0)")
        a("s_cbranch_scc1 L_f1wt")
        a(f"buffer_store_dwordx2 {vr(NV,2)}, off, {S4(rWS)}, s{sF1O}")
        a.lab("L_f1st")
        a("s_mov_b64 exec, -1")
        stamp(a, "ack1")
        cnt[0] += 10
    def late(nmax):
        q_ = lateB if (not lateA or (nq <= FPOS < 12)) and False else (lateA if lateA else lateB)
        if lateA and len(lateA) == nA and nq <= FPOS < 12: return
        for _ in range(min(nmax, len(q_))): emit(q_.pop(0))
    nA = len(lateA)
    nq = 0
    for rnd in range(3):
        order_ = [(ks, e) for ks in range(4) for e in range(2)] if rnd < 2 else [(0, 0), (0, 1), (1, 0), (2, 0), (3, 0), (1, 1), (2, 1), (3, 1)]
        for j, (ks, e) in enumerate(order_):
            if rnd == 0 and e == 0: emit(f"s_waitcnt lgkmcnt({6 + 2*ks})")
            if rnd == 1 and e == 0: emit("s_waitcnt lgkmcnt(12)")
            if rnd == 2 and e == 0: emit(f"s_waitcnt lgkmcnt({12 - 4*ks})")
            emit(mfma1(ks, e, 2, "nnn"))
            first = cnt[0]; nm[0] += 1
            store()
            nq += 1
            if B2 and rnd == 1 and j == 0: emit("s_barrier")
            if rnd < 2 and e == 1:
                if rnd == 1:
                    emit(f"v_add_u32 v{XA+ks}, {STAGE}, v{XA+ks}")
                    if ks == 0: emit(f"v_add_u32 v{WA1+2}, {STAGE}, v{WA1+2}")
                for x in qreads(ks, STAGE): emit(x)
                drain(2)
                late(2)
            elif nq != FPOS:
                if pend: fill(6)
                else: late(6)
            if rnd == 2 and ks == 3: pend.extend((first + 12, g_) for g_ in epi(4 + e))
            if nq == FPOS:
                if len(lateA) != nA:
                    while lateA: emit(lateA.pop(0))
                flag1()
    a(f"v_mov_b32 v{CA}, {GBC + 4}")
    a(f"v_mov_b32 v{ONE}, 1")
    cnt[0] += 2
    nm[0] += 99; store(); assert not stq
    if FPOS > 24:
        nq0 = len(pend) - 26 if FPOS == 25 else len(pend)
        while len(pend) > (26 if FPOS == 25 else 0): fill(1 if pend[0][0] <= cnt[0] else 13)
        if FPOS == 25:
            while lateA: emit(lateA.pop(0))
            flag1()
    while pend: fill(99 if pend[0][0] <= cnt[0] else 13)
    arrive(a, 4)
    stamp(a, "p1end")
    if FPOS == 26:
        while lateA: emit(lateA.pop(0))
        flag1()
    a("s_setprio 1")
    while lateA: a(lateA.pop(0))
    while lateB: a(lateB.pop(0))
    pre2()
    getq(1)
    a.lab("L_ph2")
    a.vreset()
    if PIPE:
        a("s_mov_b64 exec, 0xffff")
        poll_pipe(a, "L_f1", F1A, rWS, "sc1", [T + 10, T + 14])
        a("s_mov_b64 exec, -1")
        a.vm.append("poll")
    else: poll(a, "L_f1", F1A, rWS, "sc1", 16, SL1)
    stamp(a, "poll1")
    def ldK(kt, f): a.vmem(f"global_load_dwordx4 {vr(KB[kt%4]+4*f,4)}, v{L16}, {S2(KP[kt//2])} offset:{4096*(kt%2)-4096+1024*f} {KVL}", ("K", kt))
    def ldV(kt, f): a.vmem(f"global_load_dwordx4 {vr(VB[kt%4]+4*f,4)}, v{L16}, {S2(KP[kt//2])} offset:{4096*(kt%2)-2048+1024*f} {KVL}", ("V", kt))
    order = [(0, 3), (1, 3), (0, 0), (0, 1), (0, 2), (1, 0), (1, 1), (1, 2)]
    for k in range(2, 14):
        order += [(k, 0), (k, 1), (k, 2)] + ([(k, 3)] if k < 16 - NOWN else [])
    order += [(14, 0), (15, 0), (14, 1), (15, 1), (14, 2), (15, 2)] + [(k, 3) for k in range(16 - NOWN, 16)]
    assert sorted(order) == [(k, i) for k in range(16) for i in range(4)]
    NP = 64
    def qk(p):
        kt, i = order[p]
        s = SB[p % 3]; k = KB[kt % 4]
        return [f"v_mfma_f32_32x32x16_bf16 {vr(s,16)}, {vr(k,4)}, {vr(Q[i],4)}, 0",
                f"v_mfma_f32_32x32x16_bf16 {vr(s,16)}, {vr(k+4,4)}, {vr(Q[i]+4,4)}, {vr(s,16)}"]
    def pv(p):
        kt, i = order[p]
        s = SB[p % 3]; v = VB[kt % 4]
        return [f"v_smfmac_f32_32x32x32_bf16 {vr(O[i],16)}, {vr(v,4)}, {vr(s,8)}, v{IDX}",
                f"v_smfmac_f32_32x32x32_bf16 {vr(O[i],16)}, {vr(v+4,4)}, {vr(s+8,8)}, v{IDX}"]
    ldK(0, 0); ldK(0, 1)
    if not K1L: ldK(1, 0); ldK(1, 1)
    getq2()
    a.vwait(("K", 0))
    a("s_waitcnt lgkmcnt(6)")
    stamp(a, "k0")
    for x in qk(0): a(x)
    if K1L:
        ldK(1, 0); ldK(1, 1); ldV(0, 0); ldV(0, 1)
    else:
        ldV(0, 0); ldV(0, 1); ldV(1, 0); ldV(1, 1)
    a("s_mov_b64 exec, 1")
    a("s_waitcnt lgkmcnt(0)")
    a(f"ds_add_u32 v{T+5}, v{ONE}")
    a("s_mov_b64 exec, -1")
    a("s_nop 3")
    s = SB[0]
    a(f"v_max3_f32 v{T}, v{s}, v{s+1}, v{s+2}")
    a(f"v_max3_f32 v{T+1}, v{s+3}, v{s+4}, v{s+5}")
    for i in range(6, 14, 4):
        a(f"v_max3_f32 v{T}, v{T}, v{s+i}, v{s+i+1}")
        a(f"v_max3_f32 v{T+1}, v{T+1}, v{s+i+2}, v{s+i+3}")
    a(f"v_max3_f32 v{T}, v{T}, v{s+14}, v{s+15}")
    a(f"v_max_f32 v{T}, v{T}, v{T+1}")
    a(f"v_mov_b32 v{T+1}, v{T}")
    a("s_nop 1")
    a(f"v_permlane32_swap_b32 v{T}, v{T+1}")
    a(f"v_max_f32 v{T}, v{T}, v{T+1}")
    if FORCEFB: a(f"v_add_f32 v{T}, 0x43480000, v{T}")
    a(f"v_xor_b32 v{T}, 0x80000000, v{T}")
    a("s_mov_b32 exec_lo, 0")
    a(f"v_lshrrev_b32 v{Q[3]+6}, 16, v{T}")
    a("s_mov_b32 exec_lo, -1")
    a(f"ds_write_b32 v{MW}, v{Q[3]+6}")
    arrive(a)
    for x in qk(0): a(x)
    if K1L: ldV(1, 0); ldV(1, 1)
    a("s_nop 9" if K1L else "s_nop 11")
    stamp(a, "loop0")
    lastK = {k: max(p for p in range(NP) if order[p][0] == k) - 1 for k in range(16)}
    lastV = {k: max(p for p in range(NP) if order[p][0] == k) + 1 for k in range(16)}
    lq = []
    for k in range(2, 16):
        fk = lastK[k - 4] + 1 if k >= 4 else LQ0
        fv = lastV[k - 4] + 1 if k >= 4 else LQ0
        lq += [(lambda k=k: ldK(k, 0), fk), (lambda k=k: ldK(k, 1), fk), (lambda k=k: ldV(k, 0), fv), (lambda k=k: ldV(k, 1), fv)]
    wq = []
    for i in range(3):
        lp = max(p for p in range(NP) if order[p][1] == i) + 1
        for g in range(4):
            wq.append((lambda i=i, g=g: a(f"ds_write_b128 v{PW+i}, {vr(O[i]+4*g,4)} offset:{1024*g}"), 4 * (lp + 1) + 2))
    rq = [lambda i=i: a(f"ds_read_b128 {vr(O[i//4]+4*(i%4),4)}, v{PR} offset:{1024*i}") for i in range(12)]
    state = {"arr": None, "rd": False}
    def mlist(p):
        mq = qk(p + 1) if p + 1 < NP else [None, None]
        mp = pv(p - 1) if p >= 1 else [None, None]
        ms = [("q", x) for x in mq] + [("p", x) for x in mp]
        if p == 0: return ms[4-P0S:] + ms[:4-P0S]
        return ms[2:] + ms[:2] if p == 1 else ms
    def need(p, kind):
        if kind == "q":
            k1 = order[p + 1][0]
            a.vwait(("V", k1) if (k1 >= 2 and sum(1 for t in a.vm if t == ("V", k1)) == 2) else ("K", k1))
        else:
            a.vwait(("V", order[p - 1][0]))
    for p in range(NP):
        s = SB[p % 3]
        stamp(a, f"ph{p}")
        ms = mlist(p)
        if p == 1:
            lcheck(a, "L_m", 4)
            stamp(a, "bq1")
            for i in range(3): a(f"ds_read_b32 v{Q[i]+6}, v{MR+i}")
        if p == 2: a("s_nop 6")
        for g in range(4):
            kind, m = ms[g]
            if m:
                need(p, kind)
                if p == 1 and g == 3: a("s_waitcnt lgkmcnt(0)")
                a(m)
                if p >= 3:
                    np_, ng = (p, g + 1) if g < 3 else (p + 1, 0)
                    if np_ < NP:
                        k2, m2_ = mlist(np_)[ng]
                        if m2_: need(np_, k2)
            slot = 4 * p + g
            if slot == 3: lpre(a)
            if g == 2 and p in LOW:
                a(f"s_cmp_eq_u32 s{sg}, 0")
                a(f"s_cbranch_scc1 L_low{p}")
                a.lab(f"L_lowb{p}")
            if p == PGT and g == 0:
                a.vmem(f"buffer_load_dword v{T+8}, off, {S4(rWO)}, 0", "pg")
                a.vmem(f"buffer_load_dword v{T+9}, off, {S4(rBR)}, s{sF2O} sc1", "pg")
            if p == PGT and g == 1:
                a.vmem(f"buffer_load_dword v{T+10}, off, {S4(rOUT)}, s{sLS}", "pg")
                a(f"s_lshl_b32 s{t0}, s{sLS}, 1")
                a.vmem(f"buffer_load_dword v{T+11}, off, {S4(rOUT)}, s{t0}", "pg")
            if slot == 26: lpre(a, C0A)
            if slot == 30: lcheck(a, "L_c0", 4, C0A)
            if p == WOT and g == 2: a.vmem(f"buffer_load_dword v{T+8}, v{TAU}, {S4(rWO)}, 0 offen", "wot")
            if lq and lq[0][1] <= p and (g == LG or (g == LG + 1 and (p < 12 or p >= 40))): lq.pop(0)[0]()
            elif wq and wq[0][1] <= slot:
                wq.pop(0)[0]()
                if not wq:
                    arrive(a); state["arr"] = slot
            elif state["arr"] is not None and slot == state["arr"] + 2: lpre(a)
            elif state["arr"] is not None and not state["rd"] and slot >= state["arr"] + 4:
                lcheck(a, "L_p", 8)
                stamp(a, "b1")
                state["rd"] = True
                for _ in range(4): rq.pop(0)()
            elif state["rd"] and rq:
                for _ in range(4): rq.pop(0)()
            for jj in range(4): a(f"v_exp_f32 v{s+4*g+jj}, v{s+4*g+jj}")
    assert not lq and not wq and state["rd"]
    while rq: rq.pop(0)()
    a("s_nop 1")
    for x in pv(63): a(x)
    stamp(a, "loop1")
    OO = O[3]
    a("s_waitcnt lgkmcnt(0)")
    if ARR3 == "early": arrive(a)
    for r in range(16): a(f"v_add_f32 v{O[0]+r}, v{O[0]+r}, v{O[1]+r}")
    for r in range(16): a(f"v_add_f32 v{O[0]+r}, v{O[0]+r}, v{O[2]+r}")
    a(f"v_add_f32 v{OO+12}, v{OO+12}, v{O[0]+12}")
    a(f"v_mov_b32 v{T}, v{OO+12}")
    a(f"v_mov_b32 v{T+1}, v{OO+12}")
    for r in range(0, 4): a(f"v_add_f32 v{OO+r}, v{OO+r}, v{O[0]+r}")
    a(f"v_permlane32_swap_b32 v{T}, v{T+1}")
    for r in range(4, 16):
        if r != 12: a(f"v_add_f32 v{OO+r}, v{OO+r}, v{O[0]+r}")
    a(f"s_mov_b32 s{sFB}, 0")
    a.lab("L_norm")
    a(f"v_rcp_f32 v{T}, v{T+1}")
    if EARLYP == 1: a(f"buffer_load_dwordx2 {vr(T+14,2)}, v{LF}, {S4(rBR)}, 0 offen {PF2}")
    else: a("s_nop 0")
    P = T + 4
    for r in range(8): a(f"v_mul_f32 v{OO+r}, v{OO+r}, v{T}")
    for i in range(4): a(f"v_cvt_pk_bf16_f32 v{P+i}, v{OO+2*i}, v{OO+2*i+1}")
    a(f"buffer_store_dwordx4 {vr(P,4)}, v{L16}, {S4(rBR)}, s{sOO} offen sc1")
    for r in range(8, 16): a(f"v_mul_f32 v{OO+r}, v{OO+r}, v{T}")
    for i in range(4, 8): a(f"v_cvt_pk_bf16_f32 v{P+i}, v{OO+2*i}, v{OO+2*i+1}")
    a("s_mov_b32 exec_hi, 0")
    a(f"buffer_store_dwordx4 {vr(P+4,4)}, v{L16}, {S4(rBR)}, s{sOO} offen offset:1024 sc1")
    a("s_not_b64 exec, exec")
    a(f"buffer_store_dwordx2 {vr(P+4,2)}, v{L8}, {S4(rBR)}, s{sOO} offen offset:1280 sc1")
    a("s_mov_b64 exec, -1")
    if EARLYP == 2: a(f"buffer_load_dwordx2 {vr(T+14,2)}, v{LF}, {S4(rBR)}, 0 offen {PF2}")
    stamp(a, "ost")
    a(f"s_cmp_lg_u32 s{sFB}, 0")
    a("s_cbranch_scc1 L_checked")
    if ARR3 == "late": arrive(a)
    a(f"v_mul_f32 v{T+2}, 0, v{OO}")
    a(f"v_mul_f32 v{T+3}, 0, v{OO+1}")
    for r in range(2, 16): a(f"v_fma_f32 v{T+2+(r&1)}, 0, v{OO+r}, v{T+2+(r&1)}")
    a(f"v_add_f32 v{T+2}, v{T+2}, v{T+3}")
    a(f"v_add_f32 v{T+2}, v{T+2}, v{T+1}")
    a(f"v_cmp_nlt_f32 vcc, 0x35800000, v{T+2}")
    a(f"s_mov_b64 {S2(sROT)}, vcc")
    a(f"v_cmp_ngt_f32 vcc, 0x71800000, v{T+2}")
    a(f"s_or_b64 vcc, vcc, {S2(sROT)}")
    a("s_cbranch_vccnz L_fallback")
    a.lab("L_checked")
    sOS, sOL, sW0 = KT[1], KT[2], KT[3]
    INV = [ORD.index(r_) for r_ in range(4)]
    def wo_round(st):
        a(f"s_xor_b32 s{t0}, s{sPE}, {st}")
        a(f"s_add_u32 s{t0}, s{t0}, s{sW0}")
        a(f"s_mul_i32 s{sWOS}, s{t0}, {28*896}")
        a(f"s_mul_i32 s{sWOL}, s{skq}, {56*256}")
        a(f"s_mov_b32 s{t1}, 0")
        a(f"s_setprio {WPRIO}")
        a.lab(f"L_wo{st}")
        a(f"s_mov_b32 m0, s{sWOL}")
        a(f"s_add_u32 s{t1}, s{t1}, 1")
        a(f"buffer_load_dwordx4 v{WOA}, {S4(rWO)}, s{sWOS} offen {WOF} lds")
        a(f"s_add_u32 s{sWOL}, s{sWOL}, 1024")
        a(f"s_cmp_eq_u32 s{t1}, 7")
        a(f"s_mov_b32 s{t0}, {4*896}")
        a(f"s_cselect_b32 s{t0}, {32*896}, s{t0}")
        a(f"s_add_u32 s{sWOS}, s{sWOS}, s{t0}")
        a(f"s_cmp_lg_u32 s{t1}, 14")
        a(f"s_waitcnt vmcnt({WOFL})")
        a(f"s_cbranch_scc1 L_wo{st}")
        a("s_waitcnt vmcnt(0)")
        a("s_setprio 2")
    a(f"s_cmp_eq_u32 s{sg}, 0")
    a("s_cbranch_scc1 L_wfirst")
    a.lab("L_pub")
    NF = T + 2
    a(f"v_mov_b32 v{NF}, s{NONCE}")
    a(f"v_mov_b32 v{NF+1}, s{NONCE+1}")
    a("s_mov_b64 exec, 1")
    a(f"s_cmp_eq_u32 s{sg}, 0")
    a("s_waitcnt vmcnt(0)")
    a(f"buffer_store_dwordx2 {vr(NF,2)}, off, {S4(rBR)}, s{sF2O} {SF2}")
    a("s_mov_b64 exec, -1")
    stamp(a, "flag2")
    a("s_cbranch_scc1 L_ph3")
    def late_fetch():
        a(f"s_mov_b32 m0, s{sLL}")
        a("s_nop 0")
        for i in range(4): a(f"buffer_load_dwordx4 v{L16}, {S4(rBR)}, s{sLS} offen offset:{1024*i} sc1 lds")
        a(f"s_add_u32 m0, s{sLL}, 4096")
        a("s_nop 0")
        for i in range(3): a(f"buffer_load_dwordx4 v{L16}, {S4(rBR)}, s{sLS2} offen offset:{1024*i} sc1 lds")
        a("s_mov_b64 exec, 1")
        a("s_waitcnt vmcnt(0)")
        a(f"ds_write_b32 v{LM}, v{ONE}")
        a("s_mov_b64 exec, -1")
    a(f"ds_read_b32 v{T+12}, v{LM}")
    a(f"v_add_u32 v{T+4}, -4, v{CA}")
    lwait(a, "L_wfree", 0, 28, 1, T + 4)
    a(f"v_readfirstlane_b32 s{t0}, v{T+12}")
    a(f"s_cmp_lg_u32 s{t0}, 0")
    a("s_cbranch_scc1 L_fin")
    if EARLYP:
        a(f"v_cmp_ne_u64 vcc, {S2(NONCE)}, {vr(T+14,2)}")
        a("s_cbranch_vccz L_lready")
    if PW0: a("s_waitcnt vmcnt(0)")
    poll(a, "L_f21", LF, rBR, PF2)
    a.lab("L_lready")
    stamp(a, "poll2")
    late_fetch()
    stamp(a, "oown")
    a("s_waitcnt lgkmcnt(0)")
    a("s_branch L_fin")
    a.lab("L_ph3")
    if OUTW:
        a("s_mov_b64 exec, 1")
        a(f"buffer_load_dword v{T+8}, v{OUTA}, {S4(rOUT)}, 0 offen")
        a("s_mov_b64 exec, -1")
    WB = 16
    steps = []
    for q in range(2):
        for j in range(4 * q, 4 * q + 4): steps.append((0, lambda aa, j=j: 28 * j + 8 * aa, ("A", j)))
        for i in range(2 * q, 2 * q + 2): steps.append((1, lambda aa, i=i: 56 * i + 16 + 8 * aa, ("B", 2 * i)))
        steps.append((2, lambda aa, q=q: 28 * (4 * q + aa) + 20, ("C", 4 * q)))
    def wread(st, ks):
        t, row, _ = steps[ks]
        for aa in range(2):
            a(f"ds_read_b64_tr_b16 {vr(WB+56*st+4*ks+2*aa,2)}, v{WA+t} offset:{row(aa)*256}")
    for st in range(2):
        if st: wo_round(1)
        gbar(a, f"L_g4{st}", 4 + 2 * st)
        for ks in range(14): wread(st, ks)
        a("s_waitcnt lgkmcnt(0)")
        gbar(a, f"L_g5{st}", 5 + 2 * st)
        stamp(a, f"wrd{st}")
    ACC3 = [128, 144]; ACCB = [16, 32]; OB = 176; NB = 12; PK = 224
    def mfma_block(st, items, hooks):
        lg = []
        def oread(n_):
            ks, e = items[n_]
            kind, hd = steps[ks][2]
            d = OB + 4 * (n_ % NB)
            base = 28672 * st + 14336 * e
            if kind == "A": a(f"ds_read_b128 {vr(d,4)}, v{OA} offset:{base+hd*1792}"); lg.append(n_)
            elif kind == "B": a(f"ds_read_b128 {vr(d,4)}, v{OA+1} offset:{base+hd*1792+1024}"); lg.append(n_)
            else:
                for aa in range(2):
                    a(f"ds_read_b64 {vr(d+2*aa,2)}, v{OA+2} offset:{base+(hd+aa)*1792+1536}"); lg.append(n_)
        N_ = len(items)
        for n_ in range(min(NB, N_)): oread(n_)
        for n_ in range(N_):
            ks, e = items[n_]
            out = sum(1 for k in lg if k > n_)
            assert out < 16
            a(f"s_waitcnt lgkmcnt({out})")
            d_ = ACCB[e] if (st == 1 and ks >= 7) else ACC3[e]
            c = "0" if (st, ks) in ((0, 0), (1, 7)) else vr(d_, 16)
            a(f"v_mfma_f32_32x32x16_bf16 {vr(d_,16)}, {vr(WB+56*st+4*ks,4)}, {vr(OB+4*(n_%NB),4)}, {c}")
            if n_ + NB < N_: oread(n_ + NB)
            if n_ in hooks: hooks[n_]()
    a(f"s_mul_i32 s{sOS}, s{sRT}, 1792")
    a(f"s_mul_i32 s{sOL}, s{skq}, 7168")
    poll(a, "L_f20", F2A, rBR, PF2)
    a(f"s_mov_b32 m0, s{sOL}")
    a(f"s_add_u32 s{t0}, s{sOS}, 4096")
    for i in range(4): a(f"buffer_load_dwordx4 v{L16}, {S4(rBR)}, s{sOS} offen offset:{1024*i} sc1 lds")
    a(f"s_add_u32 m0, s{sOL}, 4096")
    a("s_nop 0")
    for i in range(3): a(f"buffer_load_dwordx4 v{L16}, {S4(rBR)}, s{t0} offen offset:{1024*i} sc1 lds")
    a("s_waitcnt vmcnt(0)")
    gbar(a, "L_g8", 8)
    stamp(a, "aland")
    if GLOOK:
        a(f"s_mov_b32 s{t3}, {SPIN}")
        a.lab("L_h3a")
        a(f"buffer_load_dwordx2 {vr(T+14,2)}, v{LF}, {S4(rBR)}, 0 offen {PF2}")
        a(f"s_sleep {HSL}")
        a(f"ds_read_b32 v{T+13}, v{CA} offset:4")
        a(f"s_sub_u32 s{t3}, s{t3}, 1")
        a("s_cbranch_scc1 L_end")
        a("s_waitcnt lgkmcnt(0)")
        a(f"v_readfirstlane_b32 s{t2}, v{T+13}")
        a(f"s_cmp_ge_u32 s{t2}, 12")
        a("s_cbranch_scc1 L_h3_done")
        a("s_waitcnt vmcnt(0)")
        a(f"v_cmp_ne_u64 vcc, {S2(NONCE)}, {vr(T+14,2)}")
        a("s_cbranch_vccnz L_h3a")
        late_fetch()
    if PG3:
        a("s_branch L_warm")
        a.raw(".p2align 12")
        a.lab("L_warmed")
    lwait(a, "L_h3", 4, 12, HSL)
    a("s_setprio 0")
    a(f"s_cmp_eq_u32 s{XM}, 0")
    a("s_cbranch_scc1 L_fin")
    mfma_block(0, [(ks, e) for ks in range(14) for e in range(2)], {})
    stamp(a, "tileA")
    a(f"s_add_u32 s{t0}, s{sOUTO}, {16*1792}")
    a(f"s_add_u32 s{t1}, s{sOUTO}, {32*1792}")
    a(f"s_add_u32 s{sOS}, s{sOUTO}, {48*1792}")
    def pack0(i0):
        def f():
            for r in range(2 * i0, 2 * i0 + 8): a(f"v_add_f32 v{ACC3[0]+r}, v{ACC3[0]+r}, v{ACCB[0]+r}")
            for i in range(i0, i0 + 4): a(f"v_cvt_pk_bf16_f32 v{PK+i}, v{ACC3[0]+2*i}, v{ACC3[0]+2*i+1}")
        return f
    a(f"s_mov_b32 s{t3}, {SPIN}")
    a.lab("L_any")
    a(f"ds_read_b128 {vr(T+8,4)}, v{CA} offset:16")
    a(f"s_sub_u32 s{t3}, s{t3}, 1")
    a("s_cbranch_scc1 L_end")
    a("s_waitcnt lgkmcnt(0)")
    a(f"v_and_b32 v{T+8}, v{T+8}, v{T+9}")
    a(f"v_and_b32 v{T+10}, v{T+10}, v{T+11}")
    a(f"v_cmp_ne_u32 vcc, 0, v{T+10}")
    a("s_cbranch_vccnz L_ba")
    a(f"v_cmp_ne_u32 vcc, 0, v{T+8}")
    a("s_cbranch_vccz L_any")
    for first in (0, 1):
        if first:
            if PG3:
                a.raw(".p2align 6")
                a.lab("L_warm")
                a("s_branch L_warmed")
            a.lab("L_ba")
        stamp(a, "bland")
        mfma_block(1, [(ks, e) for ks in range(7 * first, 7 * first + 7) for e in range(2)], {})
        a(f"s_mov_b32 s{t3}, {SPIN}")
        a.lab(f"L_u{first}")
        a(f"ds_read_b64 {vr(T+8,2)}, v{CA} offset:{24 - 8*first}")
        a(f"s_sub_u32 s{t3}, s{t3}, 1")
        a("s_cbranch_scc1 L_end")
        a("s_waitcnt lgkmcnt(0)")
        a(f"v_and_b32 v{T+8}, v{T+8}, v{T+9}")
        a(f"v_cmp_ne_u32 vcc, 0, v{T+8}")
        a(f"s_cbranch_vccz L_u{first}")
        stamp(a, "oland")
        mfma_block(1, [(ks, e) for e in range(2) for ks in range(7 - 7 * first, 14 - 7 * first)], {12: pack0(0), 13: pack0(4)})
        if not first: a("s_branch L_out")
    a.lab("L_out")
    stamp(a, "mf3")
    a(f"ds_write_b128 v{TW}, {vr(PK,4)}")
    a(f"ds_write_b128 v{TW+1}, {vr(PK+4,4)}")
    a(f"ds_read_b128 {vr(OB+16,4)}, v{TR}")
    a(f"ds_read_b128 {vr(OB+20,4)}, v{TR} offset:1024")
    for r in range(8): a(f"v_add_f32 v{ACC3[1]+r}, v{ACC3[1]+r}, v{ACCB[1]+r}")
    for i in range(4): a(f"v_cvt_pk_bf16_f32 v{PK+8+i}, v{ACC3[1]+2*i}, v{ACC3[1]+2*i+1}")
    a(f"ds_write_b128 v{TW}, {vr(PK+8,4)} offset:2048")
    a("s_waitcnt lgkmcnt(1)")
    a(f"buffer_store_dwordx4 {vr(OB+16,4)}, v{OUTA}, {S4(rOUT)}, s{sOUTO} offen {OUTF}")
    a(f"buffer_store_dwordx4 {vr(OB+20,4)}, v{OUTA}, {S4(rOUT)}, s{t0} offen {OUTF}")
    for r in range(8, 16): a(f"v_add_f32 v{ACC3[1]+r}, v{ACC3[1]+r}, v{ACCB[1]+r}")
    for i in range(4, 8): a(f"v_cvt_pk_bf16_f32 v{PK+8+i}, v{ACC3[1]+2*i}, v{ACC3[1]+2*i+1}")
    a(f"ds_write_b128 v{TW+1}, {vr(PK+12,4)} offset:2048")
    a(f"ds_read_b128 {vr(OB+24,4)}, v{TR} offset:2048")
    a(f"ds_read_b128 {vr(OB+28,4)}, v{TR} offset:3072")
    a("s_waitcnt lgkmcnt(1)")
    a(f"buffer_store_dwordx4 {vr(OB+24,4)}, v{OUTA}, {S4(rOUT)}, s{t1} offen {OUTF}")
    a("s_waitcnt lgkmcnt(0)")
    a(f"buffer_store_dwordx4 {vr(OB+28,4)}, v{OUTA}, {S4(rOUT)}, s{sOS} offen {OUTF}")
    a.lab("L_fin")
    if STAMP:
        a("s_waitcnt vmcnt(0)")
        a("s_memrealtime s[22:23]")
        a("s_memtime s[98:99]")
        a("s_waitcnt lgkmcnt(0)")
        a("s_mov_b64 exec, 1")
        a(f"s_mov_b32 s{rWS}, s2"); a(f"s_mov_b32 s{rWS+1}, s3"); a(f"s_mov_b32 s{rWS+2}, 0x10000000")
        a(f"s_lshl_b32 s{t1}, s{sidx}, 3")
        a(f"s_add_u32 s{t1}, s{t1}, s{sx}")
        a(f"s_lshl_b32 s{t1}, s{t1}, 9")
        a(f"s_add_u32 s{t1}, s{t1}, {64<<20}")
        a(f"s_lshl_b32 s{t0}, s{sw}, 6")
        a(f"s_add_u32 s{t1}, s{t1}, s{t0}")
        for i, r in enumerate([RT, 22, 100, 98] + [80 + 2 * k for k in range(9)] + [sLOC]):
            a(f"v_mov_b32 v1, s{r}")
            a(f"buffer_store_dword v1, off, {S4(rWS)}, s{t1} offset:{4*i}")
    if DIAG:
        a("s_waitcnt vmcnt(0)")
        if DIAG == "end": a("s_memrealtime s[80:81]")
        if DIAG == "none": a(f"s_mov_b32 s80, s{NONCE}")
        a("s_waitcnt lgkmcnt(0)")
        a("s_add_u32 s80, s80, 6000")
        a.lab("L_diag")
        a("s_sleep 2")
        a("s_memrealtime s[82:83]")
        a("s_waitcnt lgkmcnt(0)")
        a("s_sub_u32 s82, s82, s80")
        a("s_cmp_lt_i32 s82, 0")
        a("s_cbranch_scc1 L_diag")
    a.lab("L_end")
    a("s_endpgm")
    a.lab("L_wfirst")
    lwait(a, "L_h2", 12, 4)
    stamp(a, "wo0")
    a(f"s_lshl_b32 s{t0}, s{skq}, 2")
    a(f"s_lshr_b32 s{t0}, {sum((4*INV[r_]) << (4*r_) for r_ in range(4)):#x}, s{t0}")
    a(f"s_and_b32 s{sW0}, s{t0}, 15")
    wo_round(0)
    a("s_branch L_pub")
    for tag, P_, so, off in tails:
        a.lab(f"L_wt{tag}")
        a(f"buffer_store_dwordx4 {vr(P_,4)}, v{TAU}, {S4(rWS)}, s{so} offen offset:{off} sc1")
        a(f"s_branch L_st{tag}")
    for v in nnt:
        a.lab(f"L_nn{v}")
        a(f"buffer_load_dwordx2 {vr(NV,2)}, v{NA}, {S4(rDBG)}, 0 offen sc1")
        a(f"s_branch L_nnb{v}")
    for tag, nm in stails:
        a.lab(f"L_ns{tag}")
        stamp(a, nm)
        a(f"s_branch L_nb{tag}")
    for name, target, reg in slow:
        a.lab(f"{name}_slow")
        lwait(a, name, 0, target, 1, reg)
        a(f"s_branch {name}_back")
    if LOW[0] >= 0:
        for p, pr in zip(LOW, (0, 2)):
            a.lab(f"L_low{p}")
            a(f"s_setprio {pr}")
            a(f"s_branch L_lowb{p}")
    a.lab("L_f1wt")
    a(f"buffer_store_dwordx2 {vr(NV,2)}, off, {S4(rWS)}, s{sF1O} sc1")
    a("s_branch L_f1st")
    for tag in "LC":
        a.lab(f"L_nonce_retry{tag}")
        a(f"buffer_load_dwordx2 {vr(NV,2)}, off, {S4(rDBG)}, s{sDL} sc1")
        a(f"s_sub_u32 s{t3}, s{t3}, 1")
        a("s_cbranch_scc1 L_end")
        a("s_waitcnt vmcnt(0)")
        a(f"s_branch L_nonce{tag}")
    a.lab("L_fallback")
    QO = Q[3]; S0 = SB[0]; K0 = KB[0]; V0 = VB[0]; M = T + 2
    a("s_waitcnt vmcnt(0)")
    a(f"s_mov_b32 s{sFB}, 1")
    a("s_mov_b32 exec_lo, 0")
    a(f"v_mov_b32 v{QO+6}, 0")
    a("s_mov_b32 exec_lo, -1")
    for r in range(16): a(f"v_mov_b32 v{OO+r}, 0")
    a(f"v_mov_b32 v{M}, 0xff7fffff")
    a(f"s_mov_b32 s{sKVO}, 0")
    a.lab("L_fb_loop")
    a(f"buffer_load_dwordx4 {vr(K0,4)}, v{L16}, {S4(rKV)}, s{sKVO} offen sc1")
    a(f"buffer_load_dwordx4 {vr(K0+4,4)}, v{L16}, {S4(rKV)}, s{sKVO} offen offset:1024 sc1")
    a(f"buffer_load_dwordx4 {vr(V0,4)}, v{L16}, {S4(rKV)}, s{sKVO} offen offset:2048 sc1")
    a(f"buffer_load_dwordx4 {vr(V0+4,4)}, v{L16}, {S4(rKV)}, s{sKVO} offen offset:3072 sc1")
    a("s_waitcnt vmcnt(0)")
    a(f"v_mfma_f32_32x32x16_bf16 {vr(S0,16)}, {vr(K0,4)}, {vr(QO,4)}, 0")
    a(f"v_mfma_f32_32x32x16_bf16 {vr(S0,16)}, {vr(K0+4,4)}, {vr(QO+4,4)}, {vr(S0,16)}")
    a("s_nop 15")
    a(f"v_max3_f32 v{T}, v{M}, v{S0}, v{S0+1}")
    for i in range(2, 16, 2): a(f"v_max3_f32 v{T}, v{T}, v{S0+i}, v{S0+i+1}")
    a(f"v_mov_b32 v{T+1}, v{T}")
    a("s_nop 1")
    a(f"v_permlane32_swap_b32 v{T}, v{T+1}")
    a(f"v_max_f32 v{T}, v{T}, v{T+1}")
    a(f"v_sub_f32 v{T+1}, v{M}, v{T}")
    a(f"v_exp_f32 v{T+1}, v{T+1}")
    a(f"v_mov_b32 v{M}, v{T}")
    for r in range(16): a(f"v_sub_f32 v{S0+r}, v{S0+r}, v{T}")
    for r in range(16): a(f"v_exp_f32 v{S0+r}, v{S0+r}")
    for r in range(16): a(f"v_mul_f32 v{OO+r}, v{OO+r}, v{T+1}")
    a("s_nop 1")
    a(f"v_smfmac_f32_32x32x32_bf16 {vr(OO,16)}, {vr(V0,4)}, {vr(S0,8)}, v{IDX}")
    a(f"v_smfmac_f32_32x32x32_bf16 {vr(OO,16)}, {vr(V0+4,4)}, {vr(S0+8,8)}, v{IDX}")
    a(f"s_add_u32 s{sKVO}, s{sKVO}, 4096")
    a(f"s_cmp_lt_u32 s{sKVO}, 262144")
    a("s_nop 15")
    a("s_cbranch_scc1 L_fb_loop")
    a(f"v_mov_b32 v{T}, v{OO+12}")
    a(f"v_mov_b32 v{T+1}, v{OO+12}")
    a("s_nop 1")
    a(f"v_permlane32_swap_b32 v{T}, v{T+1}")
    a("s_branch L_norm")
    if SCP:
        a.raw(".p2align 12")
        a("s_endpgm")
    kd = f""".section .rodata,"a"
.p2align 6
.amdhsa_kernel {n}
  .amdhsa_next_free_vgpr 256
  .amdhsa_next_free_sgpr 102
  .amdhsa_accum_offset 256
  .amdhsa_group_segment_fixed_size 0
  .amdhsa_kernarg_size 72
  .amdhsa_user_sgpr_count 2
  .amdhsa_user_sgpr_kernarg_segment_ptr 1
  .amdhsa_system_sgpr_workgroup_id_x 1
.end_amdhsa_kernel
"""
    return a.text() + kd

hdr = f"""; Two multi-head attention blocks (S=2048, D=448, H=16, Dh=28), one launch, 256 workgroups of 8 waves, one per CU.
;  1. projection: K and V^T fragments go to ws, Q stays in LDS.  Feature 28 of K is 1 and feature 28 of Q carries -m, so the
;  2. attention: m is the row maximum over the wave's first key tile; the row sum and the outputs are range checked and a
;     q tile that fails is recomputed with the running maximum.  P stays in f32 registers: the sparse MFMA picks the high halves.
; Hand-offs carry a per-launch tag agreed through d_debug.  K/V are stored plainly only when every workgroup of the class has
; registered on this die; otherwise they are written through, so any placement gives the same result.
; @launch grid=(256,1,1) block=(512,1,1) lds={LDS}
.amdgcn_target "amdgcn-amd-amdhsa--gfx950"
.text
"""
open(sys.argv[1] if len(sys.argv) > 1 else "v13.s", "w").write(hdr + gen())
```

```python
import sys, os, struct, math
NAME = "concat_heads__softmax_full_mha__softmax_full_mha__prompt"
def f2u(x): return struct.unpack("<I", struct.pack("<f", x))[0]
CSCALE = f2u(28 ** -0.5 * math.log2(math.e))
E = os.environ.get
STAMP = E("STAMP", "0") in ("1", "3")
RTS = E("STAMP", "0") == "3"
DIAG = E("DIAG", "")
STL = E("STL", "c0,p1end,ack1,poll1,loop0,loop1,flag2,poll2,oland").split(",")
F2SP = int(E("F2SP", "32"))
FORCEFB = E("FORCEFB", "0") == "1"
LOCAL = E("LOCAL", "1") == "1"
PRET = int(E("PRET", "3"))
SLEEP = int(E("SLEEP", "0"))
OUTF = E("OUTF", "")
ROTA, ROTB, ROTC, ROTN, ROTS = [int(v) for v in E("ROTP", "1,0,2,7,1").split(",")]
WOFL = int(E("WOFL", "5"))
NOWN = int(E("NOWN", "4"))
NPOS = int(E("NPOS", "5"))
ARR3 = E("ARR3", "late")
OUTW = int(E("OUTW", "0"))
WOT = int(E("WOT", "-1"))
HB = int(E("HB", "0"))
BPOS = int(E("BPOS", "2"))
TLBW = int(E("TLBW", "0"))
PROBE = int(E("PROBE", "0"))
WPRIO = int(E("WPRIO", "0"))
PRET2 = int(E("PRET2", "0"))
LG = int(E("LG", "0"))
PF2 = E("PF2", "sc1").replace("_", " ")
SF2 = E("SF2", "sc1").replace("_", " ")
PIPE = int(E("PIPE", "0"))
PW0 = int(E("PW0", "1"))
F1SP = int(E("F1SP", "128"))
K1L = int(E("K1L", "1"))
LQ0 = int(E("LQ0", "0"))
PGA = int(E("PGA", "1"))
FPOS = int(E("FPOS", "22"))
QB = int(E("QB", "12"))
TEAR = int(E("TEAR", "0"))
B2 = int(E("B2", "0"))
LPR = int(E("LPR", "0"))
CPF = int(E("CPF", "0"))
UBY = int(E("UBY", "0"))
SLD = int(E("SLD", "6"))
NRC = 139264
PAD = int(E("PAD", "0"), 0)
VIS = int(E("VIS", "0"))
SCP = int(E("SCP", "0"))
INL = int(E("INL", "1"))
PG3 = int(E("PG3", "0"))
TWO = int(E("TWO", "0"))
STL_ = int(E("STN", "0"))
ST0 = int(E("ST0", "3"))
SGL = E("SGL", "")
PGT = int(E("PGT", "-1"))
SP = int(E("SP", "2"))
WF0 = E("WF0", ""); WF = E("WF", ""); XF0 = E("XF0", ""); XF = E("XF", ""); KVS = E("KVS", ""); WOF = E("WOF", ""); TF = E("TF", "sc1").replace("_", " "); KVL = E("KVL", "sc1").replace("_", " ")
LOW = [int(x) for x in E("LOW", "-1,-1").split(",")]
QFAST = int(E("QFAST", "1"))
FT = E("FT", "")
P0S = int(E("P0S", "1"))
SL1 = int(E("SL1", "0"))
PEX = int(E("PEX", "1"))
EARLYP = int(E("EARLYP", "1"))
GLOOK = int(E("GLOOK", "0"))
LOOK = int(E("LOOK", "16"))
LOOK2 = int(E("LOOK2", "7"))
HSL = int(E("HSL", "4"))
XMAP = E("XMAP", "10542367")
T2POS = E("T2POS", "b6")
SPIN = 1 << 22

X_F1 = 1 << 20
B_BASE = 16 << 20; B_F2 = 1835008
STAGE = 40960; XOFF = 24576
PB0 = 57344; QX = 122880; MX = 106496; PB1 = 113664; TX = 57344; LDS = 163840; GBC = 163808

class A:
    def __init__(self):
        self.l = []; self.vm = []; self.done = 0
    def __call__(self, s): self.l.append("    " + s)
    def lab(self, s): self.l.append(s + ":")
    def raw(self, s): self.l.append(s)
    def note(self, s):
        for x in s.strip().split("\n"): self.l.append("; " + x.strip())
    def text(self): return "\n".join(self.l) + "\n"
    def vreset(self): self.vm = []; self.done = 0
    def vmem(self, s, tag=None):
        self(s); self.vm.append(tag)
    def vwait(self, tag):
        idx = [i for i, t in enumerate(self.vm) if t == tag]
        assert idx, tag
        last = idx[-1] + 1
        if last <= self.done: return
        self.done = last
        n = len(self.vm) - last
        assert n < 64
        self(f"s_waitcnt vmcnt({n})")

def vr(b, n): return f"v[{b}:{b+n-1}]"
def S4(b): return f"s[{b}:{b+3}]"
def S2(b): return f"s[{b}:{b+1}]"
JIT = int(E("JIT", "0")); njit = [0]
def stamp(a, name):
    if JIT and (not name.startswith("ph") or int(name[2:]) % 9 == 2):
        import zlib
        njit[0] += 1
        h = zlib.crc32(f"{name}{JIT}".encode())
        a("s_cselect_b32 s96, 1, 0")
        a(f"s_mul_i32 s97, s41, {1 + 2 * (h & 3)}")
        a("s_add_u32 s97, s97, s46")
        a("s_add_u32 s97, s97, s40")
        a(f"s_and_b32 s97, s97, {7 if h & 4 else 3}")
        a(f"s_cmp_lg_u32 s97, {(h >> 4) & 3}")
        a(f"s_cbranch_scc1 L_jit{njit[0]}")
        for _ in range(1 + ((h >> 8) & 3)): a("s_sleep 100")
        a.lab(f"L_jit{njit[0]}")
        a("s_cmp_lg_u32 s96, 0")
    if DIAG == name: a("s_memrealtime s[80:81]")
    if DIAG == name + "@0":
        a("s_cmp_lg_u32 s50, 0")
        a("s_cbranch_scc1 L_dg0")
        a("s_memrealtime s[80:81]")
        a.lab("L_dg0")
    if STAMP and name in STL:
        i = STL.index(name)
        a(f"{'s_memrealtime' if RTS else 's_memtime'} s[{80+2*i}:{81+2*i}]")

rX, rW, rWS, rWO, rOUT, rDBG, rKV, rBR = 24, 28, 32, 36, 64, 68, 72, 12
XM = 4
sLOC, sRT, sOUTO, sQT, sF1O, sPE = 6, 7, 8, 9, 10, 11
sKVO, sWOS, sWOL, sOO, sF2O, sFB = 16, 17, 18, 19, 22, 23
sx, sidx, sb, srb, shalf, sXS, sw, shl, shs, sg4, sg, sWL, sXL, sWS_, stt, scg, skq, su = range(40, 58)
t0, t1, sDL, t2, sROT, t3 = 58, 59, 60, 61, 62, 63
NONCE = 76; RT = 78
KT = [24, 25, 26, 27, 28]
KP = [24, 26, 28, 30, 44, 52, 54, 20]
L16, IDX, CA, F1A, ONE, L8, MW, MR, PW, PR, TAU = 1, 2, 3, 4, 5, 6, 7, 8, 11, 14, 15
T = 240
XD, WD, XA, WA1, QW, NV, NA, PTA = 16, 18, 16, 20, 23, 232, 234, 235
ACC = 32; FR = 128; P1 = 208
Q = [16, 24, 32, 40]; O = [48, 64, 80, 96]; SB = [112, 128, 144]; KB = [176, 184, 192, 200]; VB = [208, 216, 224, 232]
WA, F2B, TW, OA, WOA, F2A, OUTA, TR = 160, 163, 166, 168, 172, 173, 174, 175
ORD = [0, 2, 3, 1]
LF, LM, C0A = 163, 164, 165
sLS, sLL, sLS2 = 43, 51, 57

def lwait(a, name, off, target, sleep=2, reg=None):
    a(f"s_mov_b32 s{t3}, {SPIN}")
    a.lab(f"{name}_spin")
    a(f"ds_read_b32 v{T+13}, v{reg or CA} offset:{off}")
    a(f"s_sub_u32 s{t3}, s{t3}, 1")
    a("s_cbranch_scc1 L_end")
    a("s_waitcnt lgkmcnt(0)")
    a(f"v_readfirstlane_b32 s{t2}, v{T+13}")
    a(f"s_cmp_ge_u32 s{t2}, {target}")
    if sleep:
        a(f"s_cbranch_scc1 {name}_done")
        a(f"s_sleep {sleep}")
        a(f"s_branch {name}_spin")
        a.lab(f"{name}_done")
    else:
        a(f"s_cbranch_scc0 {name}_spin")
def arrive(a, off=0):
    a("s_mov_b64 exec, 1")
    a(f"ds_add_u32 v{CA}, v{ONE} offset:{off}")
    a("s_mov_b64 exec, -1")
slow = []
def lpre(a, reg=None):
    if INL: a(f"s_mov_b32 s{t3}, {SPIN}")
    a(f"ds_read_b32 v{T+13}, v{reg or CA}")
def lcheck(a, name, target, reg=None):
    if INL:
        a.lab(f"{name}_re")
        a("s_waitcnt lgkmcnt(0)")
        a(f"v_readfirstlane_b32 s{t2}, v{T+13}")
        a(f"s_sub_u32 s{t3}, s{t3}, 1")
        a(f"ds_read_b32 v{T+13}, v{reg or CA}")
        a("s_cbranch_scc1 L_end")
        a(f"s_cmp_ge_u32 s{t2}, {target}")
        a(f"s_cbranch_scc0 {name}_re")
        a.lab(f"{name}_back")
        return
    a("s_waitcnt lgkmcnt(0)")
    a(f"v_readfirstlane_b32 s{t2}, v{T+13}")
    a(f"s_cmp_ge_u32 s{t2}, {target}")
    a(f"s_cbranch_scc0 {name}_slow")
    a.lab(f"{name}_back")
    slow.append((name, target, reg))
def gbar(a, name, k):
    arrive(a)
    lwait(a, name, 0, 4 * k)
def poll_pipe(a, name, vaddr, srd, fl, regs):
    n_ = len(regs)
    a(f"s_mov_b32 s{t3}, {SPIN}")
    for r in regs[:-1]:
        a(f"buffer_load_dwordx2 {vr(r,2)}, v{vaddr}, {S4(srd)}, 0 offen {fl}")
        a(f"s_sleep {PIPE}")
    a.lab(f"{name}_spin")
    for i in range(n_):
        a(f"buffer_load_dwordx2 {vr(regs[(i-1)%n_],2)}, v{vaddr}, {S4(srd)}, 0 offen {fl}")
        a(f"s_waitcnt vmcnt({n_-1})")
        a(f"v_cmp_ne_u64 vcc, {S2(NONCE)}, {vr(regs[i],2)}")
        a(f"s_cbranch_vccz {name}_ok")
    a(f"s_sub_u32 s{t3}, s{t3}, 1")
    a(f"s_cbranch_scc0 {name}_spin")
    a("s_branch L_end")
    a.lab(f"{name}_ok")
def poll(a, name, vaddr, srd, fl="sc1", lanes=4, SLEEP=0):
    a(f"s_mov_b32 s{t3}, {SPIN}")
    if PEX: a(f"s_mov_b64 exec, {(1 << lanes) - 1:#x}")
    if SLEEP: a(f"s_branch {name}_first")
    a.lab(f"{name}_spin")
    if SLEEP:
        a(f"s_sleep {SLEEP}")
        a.lab(f"{name}_first")
    a(f"buffer_load_dwordx2 {vr(T+14,2)}, v{vaddr}, {S4(srd)}, 0 offen {fl}")
    a(f"s_sub_u32 s{t3}, s{t3}, 1")
    a("s_cbranch_scc1 L_end")
    a("s_waitcnt vmcnt(0)")
    a(f"v_cmp_ne_u64 vcc, {S2(NONCE)}, {vr(T+14,2)}")
    a(f"s_cbranch_vccnz {name}_spin")
    if PEX: a("s_mov_b64 exec, -1")

def gen():
    a = A(); n = NAME + "_kernel"
    tails = []; stails = []; nnt = []
    u0, u1, u2, u3, u4 = T, T + 1, T + 2, T + 3, T + 4
    a.raw(f".globl {n}\n" + (".p2align 12\n" if PGA else "") + (f".fill {PAD//4}, 4, 0xbf800000\n" if PAD else "") + f".p2align 8\n.type {n},@function")
    a.lab(n)
    a("s_cmp_ge_u32 s2, 256")
    a("s_cbranch_scc1 L_end")
    a("s_load_dwordx16 s[4:19], s[0:1], 0")
    a("s_load_dwordx2 s[20:21], s[0:1], 64")
    a(f"s_memrealtime {S2(RT)}")
    if STAMP and not RTS: a("s_memtime s[100:101]")
    a(f"s_and_b32 s{sx}, s2, 7")
    a(f"s_lshr_b32 s{sidx}, s2, 3")
    a("v_lshrrev_b32 v1, 6, v0")
    a("v_and_b32 v0, 63, v0")
    a(f"v_readfirstlane_b32 s{sw}, v1")
    if XMAP:
        tab = sum(int(c) << (4 * i) for i, c in enumerate(XMAP))
        assert sorted(XMAP) == list("01234567")
        a(f"s_lshl_b32 s{t0}, s{sx}, 2")
        a(f"s_lshr_b32 s{t0}, {tab:#x}, s{t0}")
        a(f"s_bfe_u32 s{sb}, s{t0}, 0x10002")
        a(f"s_and_b32 s{sg4}, s{t0}, 3")
    else:
        a(f"s_lshr_b32 s{sb}, s{sx}, 2")
        a(f"s_and_b32 s{sg4}, s{sx}, 3")
    a(f"s_lshr_b32 s{srb}, s{sidx}, 1")
    a(f"s_and_b32 s{shalf}, s{sidx}, 1")
    if TLBW:
        a(f"s_cmp_lt_u32 s{sw}, 4")
        a("s_cbranch_scc1 L_load")
        a(f"s_mul_i32 s{t0}, s{srb}, {128*896}")
        a(f"s_cmp_eq_u32 s{sb}, 0")
        a(f"v_mov_b32 v{u0}, s{t0}")
        a(f"v_mul_u32_u24 v{u1}, {7*2688}, v0")
        a("s_waitcnt lgkmcnt(0)")
        a(f"s_cselect_b64 {S2(rX)}, s[4:5], s[10:11]")
        a(f"s_cselect_b64 {S2(rW)}, s[6:7], s[12:13]")
        if TLBW == 1: a("s_mov_b64 exec, 1")
        a(f"global_load_dword v{T+10}, v{u0}, {S2(rX)}")
        a(f"global_load_dword v{T+11}, v{u1}, {S2(rW)}")
        a("s_mov_b64 exec, -1")
        a("s_branch L_comp")
        a.lab("L_load")
    else:
        a(f"s_cmp_ge_u32 s{sw}, 4")
        a("s_cbranch_scc1 L_comp")
    def stamp_init():
        if DIAG: a(f"s_mov_b32 s80, s{RT}")
        if STAMP and STL != ["none"]:
            for k in range(9): a(f"s_mov_b32 s{80+2*k}, s{RT if RTS else 100}")
    def dbg_desc():
        a(f"s_mov_b32 s{rDBG}, s18"); a(f"s_mov_b32 s{rDBG+1}, s19"); a(f"s_mov_b32 s{rDBG+2}, 256"); a(f"s_mov_b32 s{rDBG+3}, 0x00020000")
        a(f"s_lshl_b32 s{sDL}, s{sb}, 3")
    def ws_desc():
        a(f"s_lshl_b32 s{t2}, s{sx}, 21")
        a(f"s_add_u32 s{rWS}, s20, s{t2}")
        a(f"s_addc_u32 s{rWS+1}, s21, 0")
        a(f"s_mov_b32 s{rWS+2}, {2<<20}")
        a(f"s_mov_b32 s{rWS+3}, 0x00020000")
    def ids2a(g, ws=True):
        a(f"s_cmp_eq_u32 s{sb}, 0")
        a(f"s_cselect_b32 s{rWO}, s8, s14")
        a(f"s_cselect_b32 s{rWO+1}, s9, s15")
        a(f"s_mov_b32 s{rWO+2}, 401408")
        a(f"s_mov_b32 s{rWO+3}, 0x00020000")
        a(f"s_mov_b32 s{rOUT}, s16"); a(f"s_mov_b32 s{rOUT+1}, s17"); a(f"s_mov_b32 s{rOUT+2}, {2048*896*2}"); a(f"s_mov_b32 s{rOUT+3}, 0x00020000")
        if ws: ws_desc()
        a(f"s_lshl_b32 s{t2}, s{sb}, 21")
        a(f"s_add_u32 s{t2}, s{t2}, {B_BASE}")
        a(f"s_add_u32 s{rBR}, s20, s{t2}")
        a(f"s_addc_u32 s{rBR+1}, s21, 0")
        a(f"s_mov_b32 s{rBR+2}, {2<<20}")
        a(f"s_mov_b32 s{rBR+3}, 0x00020000")
        a(f"s_mov_b32 s{sg}, {g}")
        a(f"s_and_b32 s{shs}, s{srb}, 1")
        if g: a(f"s_xor_b32 s{shs}, s{shs}, 1")
        a(f"s_lshl_b32 s{shl}, s{shalf}, 1")
        a(f"s_add_u32 s{shl}, s{shl}, s{shs}")
        a(f"s_lshl_b32 s{t2}, s{shl}, 18")
        a(f"s_add_u32 s{rKV}, s{rWS}, s{t2}")
        a(f"s_addc_u32 s{rKV+1}, s{rWS+1}, 0")
        a(f"s_mov_b32 s{rKV+2}, 262144")
        a(f"s_mov_b32 s{rKV+3}, 0x00020000")
        a(f"s_and_b32 s{skq}, s{sw}, 3")
        a(f"s_lshl_b32 s{sKVO}, s{skq}, 16")
        a(f"v_and_b32 v{u0}, 15, v0")
        a(f"v_lshlrev_b32 v{u0}, 3, v{u0}")
        a(f"s_lshl_b32 s{t0}, s{shalf}, 2")
        a(f"s_add_u32 s{t0}, s{t0}, s{skq}")
        a(f"s_mul_i32 s{t0}, s{t0}, {F1SP}")
        a(f"s_add_u32 s{t0}, s{t0}, {X_F1}")
        a(f"v_add_u32 v{F1A}, s{t0}, v{u0}")
    def ids2b(g):
        a(f"v_lshlrev_b32 v{L16}, 4, v0")
        a(f"v_lshlrev_b32 v{L8}, 3, v0")
        a(f"v_lshlrev_b32 v{u0}, 2, v0")
        a(f"v_mov_b32 v{IDX}, 0xdddddddd")
        pb = PB1 if g else PB0; mx = MX + 1024 * g
        a(f"s_lshl_b32 s{t1}, s{skq}, 8")
        a(f"s_add_u32 s{t1}, s{t1}, {mx}")
        a(f"v_add_u32 v{MW}, s{t1}, v{u0}")
        a(f"s_mul_i32 s{t1}, s{skq}, 12288")
        a(f"s_add_u32 s{t1}, s{t1}, {pb}")
        a(f"v_add_u32 v{PR}, s{t1}, v{L16}")
        for i in range(3):
            a(f"s_add_u32 s{t0}, s{skq}, {1+i}")
            a(f"s_and_b32 s{t0}, s{t0}, 3")
            a(f"s_lshl_b32 s{t1}, s{t0}, 8")
            a(f"s_add_u32 s{t1}, s{t1}, {mx}")
            a(f"v_add_u32 v{MR+i}, s{t1}, v{u0}")
            a(f"s_mul_i32 s{t1}, s{t0}, 12288")
            a(f"s_add_u32 s{t1}, s{t1}, {pb + 4096*i}")
            a(f"v_add_u32 v{PW+i}, s{t1}, v{L16}")
        a(f"v_mov_b32 v{CA}, {GBC + 4*g}")
        a(f"v_mov_b32 v{ONE}, 1")
        a(f"s_lshl_b32 s{sQT}, s{srb}, 2")
        a(f"s_add_u32 s{sQT}, s{sQT}, s{skq}")
        a(f"s_lshl_b32 s{t0}, s{sg4}, 2")
        a(f"s_lshr_b32 s{t0}, {sum((2*ORD[g_]) << (4*g_) for g_ in range(4)):#x}, s{t0}")
        a(f"s_and_b32 s{t0}, s{t0}, 7")
        a(f"s_add_u32 s{t0}, s{t0}, s{shalf}")
        a(f"s_lshl_b32 s{t1}, s{shs}, 3")
        a(f"s_add_u32 s{t0}, s{t0}, s{t1}")
        a(f"s_lshl_b32 s{t1}, s{sQT}, 4")
        a(f"s_add_u32 s{t1}, s{t1}, s{t0}")
        a(f"s_mul_i32 s{sOO}, s{t1}, 1792")
        a(f"s_mul_i32 s{sF2O}, s{t1}, {F2SP}")
        a(f"s_add_u32 s{sF2O}, s{sF2O}, {B_F2}")
    def late_addr():
        a(f"s_lshl_b32 s{t0}, s{sg4}, 3")
        a(f"s_lshr_b32 s{t1}, s{sidx}, 2")
        a(f"s_add_u32 s{t0}, s{t0}, s{t1}")
        a(f"s_and_b32 s{t1}, s{t0}, 2")
        a(f"s_xor_b32 s{t1}, s{t1}, 2")
        a(f"s_lshl_b32 s{t1}, s{t1}, 2")
        a(f"s_lshl_b32 s{t0}, s{t0}, 5")
        a(f"s_add_u32 s{t0}, s{t0}, s{t1}")
        a(f"s_and_b32 s{t1}, s{skq}, 1")
        a(f"s_mul_i32 s{sLL}, s{t1}, 14336")
        a(f"s_lshl_b32 s{t1}, s{t1}, 4")
        a(f"s_add_u32 s{t0}, s{t0}, s{t1}")
        a(f"s_and_b32 s{t1}, s{skq}, 2")
        a(f"s_lshl_b32 s{t1}, s{t1}, 1")
        a(f"s_add_u32 s{t0}, s{t0}, s{t1}")
        a(f"v_and_b32 v{LF}, 3, v0")
        a(f"v_add_u32 v{LF}, s{t0}, v{LF}")
        a(f"v_mul_u32_u24 v{LF}, {F2SP}, v{LF}")
        a(f"v_add_u32 v{LF}, {B_F2}, v{LF}")
        a(f"s_mul_i32 s{sLS}, s{t0}, 1792")
        a(f"s_add_u32 s{sLS2}, s{sLS}, 4096")
        a(f"s_mul_i32 s{t1}, s{t1}, 1792")
        a(f"s_add_u32 s{sLL}, s{sLL}, s{t1}")
        a(f"s_add_u32 s{sLL}, s{sLL}, 28672")
        a(f"s_lshl_b32 s{t1}, s{skq}, 2")
        a(f"s_add_u32 s{t1}, s{t1}, {GBC + 16}")
        a(f"v_mov_b32 v{LM}, s{t1}")
        a(f"v_mov_b32 v{C0A}, {GBC}")
    def pre2():
        late_addr()
        for r in range(4): a(f"v_mov_b32 v{SB[0]+r}, 0")
        a("s_nop 1")
        for i in range(4): a(f"v_mfma_f32_32x32x16_bf16 {vr(O[i],16)}, {vr(SB[0],4)}, {vr(SB[0],4)}, 0")
        if STAMP: a("s_mov_b64 s[2:3], s[20:21]")
        a(f"s_add_u32 s{t0}, s{rKV}, s{sKVO}")
        a(f"s_addc_u32 s{t1}, s{rKV+1}, 0")
        for k in range(8):
            a(f"s_add_u32 s{KP[k]}, s{t0}, {8192*k + 4096}")
            a(f"s_addc_u32 s{KP[k]+1}, s{t1}, 0")
        if WOT >= 0:
            a(f"s_lshl_b32 s{t0}, s{sidx}, 2")
            a(f"s_add_u32 s{t0}, s{t0}, s{skq}")
            a(f"s_mul_i32 s{t0}, s{t0}, 25")
            a(f"v_min_u32 v{TAU}, 24, v0")
            a(f"v_add_u32 v{TAU}, s{t0}, v{TAU}")
            a(f"v_lshlrev_b32 v{TAU}, 7, v{TAU}")
    def getq(g):
        a(f"s_lshl_b32 s{t1}, s{shs}, 13")
        a(f"s_add_u32 s{t1}, s{t1}, {QX}")
        for i in range(4):
            a(f"s_add_u32 s{t0}, s{skq}, {1+i}")
            a(f"s_and_b32 s{t0}, s{t0}, 3")
            a(f"s_lshl_b32 s{t0}, s{t0}, 11")
            a(f"s_add_u32 s{t0}, s{t0}, s{t1}")
            a(f"v_add_u32 v{u0+i}, s{t0}, v{L16}")
        a(f"v_mov_b32 v{T+4}, {GBC + 8}")
        a(f"v_mov_b32 v{T+5}, {GBC + 12 if g else GBC - 4}")
    def getq2():
        lwait(a, "L_q", 0, 4, 0 if QFAST else 1, T + 4)
        for i in (3, 0, 1, 2):
            a(f"ds_read_b128 {vr(Q[i],4)}, v{u0+i}")
            a(f"ds_read_b128 {vr(Q[i]+4,4)}, v{u0+i} offset:1024")
    def nonce(tag):
        a(f"s_mov_b32 s{t3}, {SPIN}")
        a.lab(f"L_nonce{tag}")
        a(f"v_readfirstlane_b32 s{NONCE}, v{NV}")
        a(f"v_readfirstlane_b32 s{NONCE+1}, v{NV+1}")
        a(f"s_cmp_lg_u32 s{NONCE}, 0")
        a(f"s_cselect_b32 s{t2}, s{NONCE+1}, 0")
        a(f"s_cmp_lg_u32 s{t2}, 0")
        a(f"s_cbranch_scc0 L_nonce_retry{tag}")
    a(f"v_lshrrev_b32 v{u0}, 3, v0")
    a(f"v_lshrrev_b32 v{u1}, 4, v0")
    a(f"v_and_b32 v{u2}, 7, v0")
    a(f"s_lshl_b32 s{t0}, s{srb}, 7")
    a(f"s_lshl_b32 s{t1}, s{sw}, 5")
    a(f"s_add_u32 s{t0}, s{t0}, s{t1}")
    a(f"v_add_u32 v{u3}, s{t0}, v{u0}")
    a(f"v_mul_u32_u24 v{u3}, 896, v{u3}")
    a(f"v_xor_b32 v{u4}, v{u2}, v{u1}")
    a(f"v_lshl_add_u32 v{XD}, v{u4}, 4, v{u3}")
    a(f"v_xor_b32 v{XD+1}, 64, v{XD}")
    a(f"v_add_u32 v{XD+1}, 7168, v{XD+1}")
    a(f"s_mul_i32 s{t0}, s{sg4}, 224")
    a(f"s_mul_i32 s{t1}, s{sw}, {16*2688}")
    a(f"s_add_u32 s{t0}, s{t0}, s{t1}")
    a(f"s_mul_i32 s{t1}, s{shalf}, 896")
    a(f"s_add_u32 s{t1}, s{t1}, s{t0}")
    a(f"s_add_u32 s{t1}, s{t1}, 896")
    a(f"v_lshlrev_b32 v{u3}, 2, v{u1}")
    a(f"v_and_b32 v{u4}, 15, v0")
    a(f"v_xor_b32 v{u4}, v{u4}, v{u3}")
    a(f"v_cmp_lt_u32 vcc, 13, v{u4}")
    a(f"v_mul_u32_u24 v{u1}, 2688, v{u1}")
    a(f"v_lshl_add_u32 v{u1}, v{u4}, 4, v{u1}")
    a(f"v_add_u32 v{WD}, s{t1}, v{u1}")
    a(f"v_bfrev_b32 v{u4}, 2")
    a(f"v_cndmask_b32 v{WD}, v{WD}, v{u4}, vcc")
    a(f"s_mul_i32 s{t1}, s{shalf}, 112")
    a(f"s_add_u32 s{t1}, s{t1}, s{t0}")
    a(f"v_and_b32 v{u3}, 4, v{u3}")
    a(f"v_xor_b32 v{u2}, v{u2}, v{u3}")
    a(f"v_cmp_lt_u32 vcc, 6, v{u2}")
    a(f"v_mul_u32_u24 v{u0}, 2688, v{u0}")
    a(f"v_lshl_add_u32 v{u0}, v{u2}, 4, v{u0}")
    a(f"v_add_u32 v{WD+1}, s{t1}, v{u0}")
    a(f"v_cndmask_b32 v{WD+1}, v{WD+1}, v{u4}, vcc")
    if ROTN > 1:
        a(f"s_mul_i32 s{sROT}, s{srb}, {ROTA}")
        if ROTB:
            a(f"s_mul_i32 s{t0}, s{shalf}, {ROTB}")
            a(f"s_add_u32 s{sROT}, s{sROT}, s{t0}")
        a(f"s_mul_i32 s{t2}, s{sg4}, {ROTC}")
        a(f"s_add_u32 s{sROT}, s{sROT}, s{t2}")
        if ROTN & (ROTN - 1) == 0:
            a(f"s_and_b32 s{sROT}, s{sROT}, {ROTN-1}")
        else:
            a(f"s_mul_i32 s{t2}, s{sROT}, {(65536 + ROTN - 1)//ROTN}")
            a(f"s_lshr_b32 s{t2}, s{t2}, 16")
            a(f"s_mul_i32 s{t2}, s{t2}, {ROTN}")
            a(f"s_sub_u32 s{sROT}, s{sROT}, s{t2}")
        if ROTS != 1: a(f"s_mul_i32 s{sROT}, s{sROT}, {ROTS}")
    else:
        a(f"s_mov_b32 s{sROT}, 0")
    assert (ROTN - 1) * ROTS < 7
    a(f"s_lshl_b32 s{sXL}, s{sw}, 12")
    a(f"s_add_u32 s{sXL}, s{sXL}, {XOFF}")
    a(f"s_mul_i32 s{sWL}, s{sw}, 6144")
    a(f"s_mov_b32 s{rX+2}, 1835008")
    a(f"s_mov_b32 s{rX+3}, 0x00020000")
    a(f"s_mov_b32 s{rW+2}, 1204224")
    a(f"s_mov_b32 s{rW+3}, 0x00020000")
    a(f"s_cmp_eq_u32 s{sb}, 0")
    a("s_waitcnt lgkmcnt(0)")
    a(f"s_cselect_b32 s{rX}, s4, s10")
    a(f"s_cselect_b32 s{rX+1}, s5, s11")
    a(f"s_cselect_b32 s{rW}, s6, s12")
    a(f"s_cselect_b32 s{rW+1}, s7, s13")
    stamp_init()
    stamp(a, "karg")
    def one(kind, i, wl=sWL, ws=sWS_, add=0, first=False):
        xf, wf = (XF0, WF0) if first else (XF, WF)
        if kind == "x":
            a(f"s_add_u32 m0, s{sXL}, {1024*i}")
            a(f"s_add_u32 s{t0}, s{sXS}, {14336*(i//2)}")
            a(f"buffer_load_dwordx4 v{XD+(i&1)}, {S4(rX)}, s{t0} offen {xf} lds")
        else:
            G, q = divmod(i, 3)
            a(f"s_add_u32 m0, s{wl}, {1024*i + add}")
            a(f"s_add_u32 s{t0}, s{ws}, {(8*G + (4*q if q < 2 else 0))*2688}")
            a(f"buffer_load_dwordx4 v{WD+(q==2)}, {S4(rW)}, s{t0} offen {wf} lds")
    sB4, sB5, sB6 = scg, su, sFB
    def issue(first):
        a(f"s_lshl_b32 s{sXS}, s{sROT}, 7")
        a(f"s_mul_i32 s{sWS_}, s{sROT}, 172032")
        for kind, i in [("x", 0), ("w", 0), ("x", 1), ("w", 1), ("x", 2), ("w", 3), ("x", 3), ("w", 4)]: one(kind, i, first=first)
        if not first:
            a(f"s_mov_b32 s{sB4}, s{sB5}")
            a(f"s_mov_b32 s{sB5}, s{sB6}")
            a(f"s_mov_b32 s{sB6}, s{sWS_}")
            a(f"s_cmp_ge_u32 s{stt}, 4")
            a("s_cbranch_scc1 L_nob")
        one("w", 2, first=first); one("w", 5, first=first)
        if not first:
            a("s_branch L_nobr")
            a.lab("L_nob")
            a("s_waitcnt vmcnt(8)")
            a.lab("L_nobr")
        a(f"s_add_u32 s{sROT}, s{sROT}, 1")
        a(f"s_cmp_eq_u32 s{sROT}, 7")
        a(f"s_cselect_b32 s{sROT}, 0, s{sROT}")
        if first:
            a(f"s_add_u32 s{sWL}, s{sWL}, {STAGE}")
            a(f"s_add_u32 s{sXL}, s{sXL}, {STAGE}")
        else:
            a(f"s_cmp_ge_u32 s{sWL}, {2*STAGE}")
            a(f"s_mov_b32 s{t0}, {STAGE}")
            a(f"s_cselect_b32 s{t0}, {(-2*STAGE) & 0xffffffff:#x}, s{t0}")
            a(f"s_add_u32 s{sWL}, s{sWL}, s{t0}")
            a(f"s_add_u32 s{sXL}, s{sXL}, s{t0}")
    if LPR: a(f"s_setprio {LPR}")
    issue(True)
    stamp(a, "iss0")
    if SCP:
        a("s_getpc_b64 s[0:1]")
        a("s_and_b32 s0, s0, 0xfffff000")
        a(f"s_lshl_b32 s{t0}, s{sidx}, 1")
        a(f"s_and_b32 s{t1}, s{sw}, 1")
        a(f"s_add_u32 s{t0}, s{t0}, s{t1}")
        a(f"s_lshl_b32 s{t0}, s{t0}, 6")
        a(f"s_lshr_b32 s{t1}, s{sw}, 1")
        a(f"s_mul_i32 s{t1}, s{t1}, 12288")
        a(f"s_add_u32 s{t0}, s{t0}, s{t1}")
        a(f"s_add_u32 s0, s0, s{t0}")
        a("s_addc_u32 s1, s1, 0")
        for k in range(3): a(f"s_load_dword s3, s[0:1], {4096*k}")
    if TWO:
        issue(True)
        if TWO == 2:
            a("s_waitcnt vmcnt(10)")
            a("s_barrier")
    a(f"s_mov_b32 s{stt}, {2 if TWO else 1}")
    a(f"s_mov_b32 s{su}, 0")
    a(f"s_mov_b32 s{sFB}, 0")
    dbg_desc()
    ids2a(0)
    a(f"s_lshr_b32 s{t0}, s{srb}, 1")
    a(f"s_lshl_b32 s{t0}, s{t0}, 7")
    a(f"s_add_u32 s{sWOS}, s{t0}, s{sKVO}")
    a(f"v_lshlrev_b32 v{PTA}, 10, v0")
    ids2b(0)
    a(f"v_lshrrev_b32 v{u2}, 5, v0")
    a(f"s_and_b32 s{t1}, s{sidx}, 3")
    a(f"s_cmp_eq_u32 s{t1}, 3")
    a(f"s_cselect_b32 s{t0}, 8, 16")
    a(f"s_lshl_b32 s{t1}, s{t1}, 8")
    a(f"v_lshrrev_b32 v{u0}, 4, v0")
    a(f"v_lshlrev_b32 v{u1}, 2, v{u0}")
    a(f"v_and_b32 v{u3}, 15, v0")
    a(f"v_xor_b32 v{u1}, v{u1}, v{u3}")
    a(f"v_cmp_le_u32 vcc, s{t0}, v{u1}")
    a(f"v_mul_u32_u24 v{u0}, 896, v{u0}")
    a(f"v_lshl_add_u32 v{u0}, v{u1}, 4, v{u0}")
    a(f"v_add_u32 v{WOA}, s{t1}, v{u0}")
    a(f"v_bfrev_b32 v{u0}, 2")
    a(f"v_cndmask_b32 v{WOA}, v{WOA}, v{u0}, vcc")
    a(f"s_lshl_b32 s{t2}, s{skq}, 2")
    a(f"s_cmp_lt_u32 s{t2}, s{t0}")
    a(f"s_cselect_b32 s{XM}, 1, 0")
    a(f"s_mul_i32 s{sOUTO}, s{sb}, 896")
    a(f"s_add_u32 s{sOUTO}, s{sOUTO}, s{t1}")
    a(f"s_lshl_b32 s{t1}, s{skq}, 6")
    a(f"s_add_u32 s{sOUTO}, s{sOUTO}, s{t1}")
    a(f"s_lshl_b32 s{sRT}, s{sg4}, 3")
    a(f"s_lshr_b32 s{t0}, s{sidx}, 2")
    a(f"s_add_u32 s{sRT}, s{sRT}, s{t0}")
    a(f"s_bfe_u32 s{sPE}, s{sRT}, 0x10001")
    a(f"s_lshl_b32 s{sRT}, s{sRT}, 1")
    a(f"v_bfe_u32 v{u0}, v0, 2, 2")
    a(f"v_xor_b32 v{u1}, s{skq}, v{u0}")
    a(f"v_lshlrev_b32 v{u1}, 6, v{u1}")
    a(f"v_lshl_add_u32 v{u1}, v{u0}, 8, v{u1}")
    a(f"v_and_b32 v{u0}, 1, v0")
    a(f"v_lshl_add_u32 v{u1}, v{u0}, 5, v{u1}")
    a(f"v_bfe_u32 v{u0}, v0, 4, 1")
    a(f"v_lshl_add_u32 v{u1}, v{u0}, 4, v{u1}")
    a(f"v_bfe_u32 v{u0}, v0, 1, 1")
    a(f"v_lshl_add_u32 v{u1}, v{u0}, 3, v{u1}")
    HSTEP = [4, 28, 56]
    for t in range(3):
        a(f"v_mul_u32_u24 v{u0}, {HSTEP[t]*256}, v{u2}")
        a(f"v_add_u32 v{WA+t}, v{u1}, v{u0}")
    a(f"v_mov_b32 v{OA}, v{L16}")
    a(f"v_and_b32 v{u0}, 31, v0")
    a(f"v_mul_u32_u24 v{u1}, 1792, v{u2}")
    a(f"v_lshl_add_u32 v{OA+1}, v{u0}, 4, v{u1}")
    a(f"v_mul_u32_u24 v{u1}, 3584, v{u2}")
    a(f"v_lshl_add_u32 v{OA+2}, v{u0}, 3, v{u1}")
    a(f"s_lshl_b32 s{t0}, s{skq}, 12")
    a(f"s_add_u32 s{t0}, s{t0}, {TX}")
    a(f"v_add_u32 v{TR}, s{t0}, v{L16}")
    a(f"v_bfe_u32 v{u1}, v0, 1, 2")
    a(f"v_lshlrev_b32 v{u3}, 1, v{u2}")
    a(f"v_xor_b32 v{u1}, v{u1}, v{u3}")
    a(f"v_lshlrev_b32 v{u1}, 4, v{u1}")
    a(f"v_lshl_add_u32 v{u1}, v{u0}, 6, v{u1}")
    a(f"v_add_u32 v{TW}, s{t0}, v{u1}")
    a(f"v_xor_b32 v{TW+1}, 16, v{TW}")
    a(f"v_lshrrev_b32 v{u0}, 2, v0")
    a(f"s_lshl_b32 s{t0}, s{sRT}, 5")
    a(f"v_add_u32 v{u0}, s{t0}, v{u0}")
    a(f"v_mul_u32_u24 v{u0}, 1792, v{u0}")
    a(f"v_lshrrev_b32 v{u1}, 3, v0")
    a(f"v_xor_b32 v{u1}, v{u1}, v0")
    a(f"v_and_b32 v{u1}, 3, v{u1}")
    a(f"v_lshl_add_u32 v{OUTA}, v{u1}, 4, v{u0}")
    a(f"s_lshr_b32 s{t1}, s{skq}, 1")
    a(f"s_add_u32 s{t0}, s{sRT}, s{t1}")
    a(f"s_lshl_b32 s{t0}, s{t0}, 4")
    a(f"s_lshl_b32 s{t1}, s{sPE}, 3")
    a(f"s_add_u32 s{t0}, s{t0}, s{t1}")
    a(f"s_and_b32 s{t1}, s{skq}, 1")
    a(f"s_lshl_b32 s{t1}, s{t1}, 1")
    a(f"s_lshl_b32 s{t1}, s{t1}, 1")
    a(f"s_add_u32 s{sRT}, s{t0}, s{t1}")
    a(f"v_and_b32 v{u0}, 3, v0")
    a(f"v_add_u32 v{u0}, s{sRT}, v{u0}")
    a(f"v_mul_u32_u24 v{u0}, {F2SP}, v{u0}")
    a(f"v_add_u32 v{F2A}, {B_F2}, v{u0}")
    getq(0)
    if STL_:
        a(f"s_add_u32 s0, s{rKV}, s{sWOS}")
        a(f"s_addc_u32 s1, s{rKV+1}, 0")
    if VIS:
        a("s_branch L_vis")
        a.lab("L_visb")
    stamp(a, "lsetup")
    if TWO == 1:
        a("s_waitcnt vmcnt(10)")
        a("s_barrier")
    a.lab("L_ld")
    issue(False)
    a(f"s_add_u32 s{stt}, s{stt}, 1")
    if STL_:
        a(f"s_cmp_lt_u32 s{stt}, {ST0}")
        a("s_cbranch_scc1 L_nost")
        for e_ in range(STL_):
            a(f"s_load_dword s3, s[0:1], {1024*e_}")
            a(f"s_load_dword s3, s[0:1], {1024*e_ + 64}")
        a(f"s_add_u32 s0, s0, {1024*STL_}")
        a("s_addc_u32 s1, s1, 0")
        a.lab("L_nost")
    if SLD:
        a(f"s_cmp_lg_u32 s{stt}, {SLD}")
        a("s_cbranch_scc1 L_nosl")
        a(f"s_lshl_b32 s{t0}, s{sg4}, 5")
        a(f"s_add_u32 s{t0}, s{t0}, 128")
        a(f"s_load_dwordx2 {S2(NONCE)}, {S2(rDBG)}, s{sDL} {SGL}")
        a(f"s_load_dwordx8 s[88:95], {S2(rDBG)}, s{t0} {SGL}")
        a.lab("L_nosl")
    a(f"s_cmp_lt_u32 s{stt}, 7")
    a("s_waitcnt vmcnt(10)")
    a("s_barrier")
    a("s_cbranch_scc1 L_ld")
    a(f"s_mul_i32 s{sWL}, s{sw}, 6144")
    for ws, st_ in ((sB6, 0), (sB4, 1), (sB5, 2)):
        one("w", 2, sWL, ws, st_ * STAGE); one("w", 5, sWL, ws, st_ * STAGE)
    if not SLD: a(f"buffer_load_dwordx2 {vr(NV,2)}, off, {S4(rDBG)}, s{sDL} sc1")
    m_ = (1 << max(1, 4 * PRET)) - 1
    def touch():
        a(f"buffer_load_dword v{T+9}, v{F1A}, {S4(rWS)}, 0 offen sc1")
        a(f"s_mov_b32 exec_lo, {m_ & 0xffffffff:#x}")
        a(f"s_mov_b32 exec_hi, {m_ >> 32:#x}")
        a(f"buffer_load_dword v{T+8}, v{PTA}, {S4(rKV)}, s{sWOS} offen {TF}")
        a("s_mov_b64 exec, -1")
    if STL_: a(f"buffer_load_dword v{T+9}, v{F1A}, {S4(rWS)}, 0 offen sc1")
    elif TEAR != 1: touch()
    NX = (2 if STL_ else 1 if TEAR == 1 else 3) - (1 if SLD else 0)
    if SLD:
        a(f"s_getreg_b32 s{t2}, hwreg(HW_REG_XCC_ID)")
        a(f"s_and_b32 s{t2}, s{t2}, 15")
        a(f"s_lshl_b32 s{t0}, s{sx}, 4")
        a(f"s_or_b32 s{t2}, s{t2}, s{t0}")
        a(f"s_or_b32 s{t2}, s{t2}, 0x80")
        a(f"s_mul_i32 s{t2}, s{t2}, 0x01010101")
        a(f"s_lshl_b32 s{t0}, s{sw}, 4")
        a(f"s_add_u32 s{t0}, s{t0}, {NRC}")
        a(f"v_mov_b32 v{T+6}, s{t0}")
        a("s_waitcnt lgkmcnt(0)")
        a(f"s_xor_b32 s{t1}, s88, s{t2}")
        for k in range(89, 96):
            a(f"s_xor_b32 s{t0}, s{k}, s{t2}")
            a(f"s_or_b32 s{t1}, s{t1}, s{t0}")
        a(f"v_mov_b32 v{NV}, s{NONCE}")
        a(f"v_mov_b32 v{NV+1}, s{NONCE+1}")
        a(f"v_mov_b32 v{NV+2}, s{t1}")
        a(f"ds_write_b96 v{T+6}, {vr(NV,3)}")
        a("s_waitcnt lgkmcnt(0)")
    a(f"s_waitcnt vmcnt({6 + NX})")
    stamp(a, "lw6")
    a("s_barrier")
    if LPR: a("s_setprio 0")
    pre2()
    if B2:
        a(f"s_waitcnt vmcnt({NX + 2})")
        a("s_barrier")
    a(f"s_waitcnt vmcnt({NX})")
    a("s_barrier")
    def touch2():
        m2 = ((1 << (4 * PRET2)) - 1) & ~m_
        a(f"s_mov_b32 exec_lo, {m2 & 0xffffffff:#x}")
        a(f"s_mov_b32 exec_hi, {m2 >> 32:#x}")
        a(f"buffer_load_dword v{T+10}, v{PTA}, {S4(rKV)}, s{sWOS} offen sc1")
        a("s_mov_b64 exec, -1")
    if PRET2 and T2POS == "b6": touch2()
    if not SLD: a(f"s_waitcnt vmcnt({NX - 1})")
    nonce("L")
    if PRET2 and T2POS == "late": touch2()
    a("s_setprio 2")
    stamp(a, "lready")
    a("s_branch L_ph2")

    a.lab("L_comp")
    a("s_setprio 3")
    a(f"s_getreg_b32 s{t2}, hwreg(HW_REG_XCC_ID)")
    a(f"s_and_b32 s{t2}, s{t2}, 15")
    a(f"s_lshl_b32 s{t0}, s{sx}, 4")
    a(f"s_or_b32 s{t2}, s{t2}, s{t0}")
    a(f"s_or_b32 s{t2}, s{t2}, 0x80")
    a(f"s_lshl_b32 s{t1}, s{sg4}, 5")
    a(f"s_add_u32 s{t1}, s{t1}, 128")
    a(f"v_mov_b32 v{NV}, s{t2}")
    if not SLD:
        a(f"v_and_b32 v{NA}, 3, v0")
        a(f"v_lshlrev_b32 v{NA}, 3, v{NA}")
        a(f"v_add_u32 v{NA}, s{t1}, v{NA}")
    a(f"s_add_u32 s{t1}, s{t1}, s{sidx}")
    a("v_mov_b32 v238, 0")
    a("v_mov_b32 v239, 0")
    a("s_waitcnt lgkmcnt(0)")
    def ftouch(pairs, wave, tag):
        a(f"s_cmp_lg_u32 s{sw}, {wave}")
        a(f"s_cbranch_scc1 L_ft{tag}")
        a(f"s_add_u32 s{t0}, s{sg4}, 1")
        a(f"s_and_b32 s{t0}, s{t0}, 2")
        a(f"s_cbranch_scc1 L_ft{tag}")
        a(f"s_and_b32 s{t0}, s{sg4}, 1")
        a(f"s_lshl_b32 s{t0}, s{t0}, 5")
        a(f"s_add_u32 s{t0}, s{t0}, s{sidx}")
        a(f"v_and_b32 v{T+6}, 31, v0")
        a(f"v_lshrrev_b32 v{T+7}, 5, v0")
        a(f"v_mul_u32_u24 v{T+8}, 896, v{T+6}")
        a(f"v_lshl_add_u32 v{T+8}, v{T+7}, 7, v{T+8}")
        a(f"v_min_u32 v{T+6}, 20, v{T+6}")
        a(f"v_mul_u32_u24 v{T+7}, 172032, v{T+7}")
        a(f"v_lshl_add_u32 v{T+9}, v{T+6}, 7, v{T+7}")
        a(f"s_mul_i32 s{t3}, s{t0}, {32*896}")
        a(f"s_mul_i32 s{t0}, s{t0}, 2688")
        for pr in pairs:
            c_ = 2 * int(pr) - 1
            a(f"s_add_u32 s{sROT}, s{t0}, {c_*172032}")
            a(f"buffer_load_dword v{T+10}, v{T+9}, {S4(rW)}, s{sROT} offen")
            a(f"buffer_load_dword v{T+11}, v{T+8}, {S4(rX)}, s{t3} offen offset:{c_*128}")
        a.lab(f"L_ft{tag}")
    if FT:
        a(f"s_cmp_eq_u32 s{sb}, 0")
        a(f"s_cselect_b32 s{rX}, s4, s10")
        a(f"s_cselect_b32 s{rX+1}, s5, s11")
        a(f"s_cselect_b32 s{rW}, s6, s12")
        a(f"s_cselect_b32 s{rW+1}, s7, s13")
        a(f"s_mov_b32 s{rX+2}, 1835008")
        a(f"s_mov_b32 s{rX+3}, 0x00020000")
        a(f"s_mov_b32 s{rW+2}, 1204224")
        a(f"s_mov_b32 s{rW+3}, 0x00020000")
        ftouch(FT.split("/")[0], 5, "a")
    dbg_desc()
    if not SLD:
        a(f"s_mul_i32 s{XM}, s{t2}, 0x01010101")
        a(f"s_mov_b32 s{XM+1}, s{XM}")
    a("s_mov_b64 exec, 1")
    if not SLD: a(f"v_mov_b32 v{NA}, s{sDL}")
    a(f"s_cmp_lg_u32 s{sw}, 4")
    a("s_cbranch_scc1 L_noreg")
    a(f"buffer_store_byte v{NV}, off, {S4(rDBG)}, s{t1}")
    if UBY: a(f"buffer_load_ubyte v{T+12}, off, {S4(rDBG)}, s{t1} sc1")
    a(f"s_cmp_lg_u32 s{sidx}, 0")
    a("s_cbranch_scc1 L_noreg")
    a(f"s_or_b32 s{t0}, s{RT}, 1")
    a(f"s_or_b32 s{t2}, s{RT+1}, 1")
    a(f"v_mov_b32 v236, s{t0}")
    a(f"v_mov_b32 v237, s{t2}")
    a(f"buffer_atomic_cmpswap_x2 v[236:239], off, {S4(rDBG)}, s{sDL} sc1")
    a.lab("L_noreg")
    a("s_mov_b64 exec, -1")
    stamp_init()
    a(f"s_and_b32 s{stt}, s{sw}, 1")
    a(f"s_bfe_u32 s{scg}, s{sw}, 0x10001")
    a(f"v_and_b32 v{u0}, 31, v0")
    a(f"v_bfe_u32 v{u1}, v0, 1, 3")
    a(f"v_lshrrev_b32 v{u2}, 5, v0")
    a(f"v_xor_b32 v{u1}, v{u1}, v{u2}")
    a(f"v_lshlrev_b32 v{u1}, 4, v{u1}")
    a(f"v_lshl_add_u32 v{u1}, v{u0}, 7, v{u1}")
    a(f"s_lshl_b32 s{t0}, s{stt}, 13")
    a(f"s_add_u32 s{t0}, s{t0}, {XOFF}")
    for ks in range(4):
        a(f"v_xor_b32 v{XA+ks}, {32*ks}, v{u1}")
        a(f"v_add_u32 v{XA+ks}, s{t0}, v{XA+ks}")
    a(f"v_bfe_u32 v{u0}, v0, 4, 1")
    a(f"v_and_b32 v{u1}, 3, v0")
    a(f"v_lshlrev_b32 v{u1}, 3, v{u1}")
    a(f"v_lshl_add_u32 v{u0}, v{u0}, 5, v{u1}")
    a(f"s_mul_i32 s{t0}, s{scg}, 112")
    a(f"v_add_u32 v{WA1}, s{t0}, v{u0}")
    a(f"v_add_u32 v{WA1+1}, 56, v{WA1}")
    a(f"s_mul_i32 s{t0}, s{scg}, 56")
    a(f"v_add_u32 v{WA1+2}, s{t0}, v{u0}")
    a("s_mov_b32 exec_lo, 0x88880000")
    a("s_mov_b32 exec_hi, 0x88880000")
    a(f"v_or_b32 v{WA1}, 192, v{WA1}")
    a(f"v_or_b32 v{WA1+1}, 192, v{WA1+1}")
    a(f"v_or_b32 v{WA1+2}, 64, v{WA1+2}")
    a("s_mov_b64 exec, -1")
    a(f"v_bfe_u32 v{u1}, v0, 2, 2")
    a(f"v_mul_u32_u24 v{u2}, 3072, v{u2}")
    a(f"v_lshl_add_u32 v{u3}, v{u1}, 8, v{u2}")
    a(f"v_lshlrev_b32 v{u4}, 6, v{u1}")
    for c in range(2):
        a(f"v_xor_b32 v{WA1+c}, v{WA1+c}, v{u4}")
        a(f"v_add_u32 v{WA1+c}, v{WA1+c}, v{u3}")
    a(f"v_lshl_add_u32 v{u3}, v{u1}, 7, v{u2}")
    a(f"v_lshlrev_b32 v{u4}, 5, v{u1}")
    a(f"v_and_b32 v{u4}, 64, v{u4}")
    a(f"v_xor_b32 v{WA1+2}, v{WA1+2}, v{u4}")
    a(f"v_add_u32 v{WA1+2}, v{WA1+2}, v{u3}")
    Z = FR + 60
    for r in range(20): a(f"v_mov_b32 v{Z+r}, 0")
    a(f"v_mov_b32 v{u0}, {GBC}")
    a(f"ds_write_b128 v{u0}, {vr(Z+16,4)}")
    a(f"ds_write_b128 v{u0}, {vr(Z+16,4)} offset:16")
    for t_ in range(6): a(f"v_mfma_f32_32x32x16_bf16 {vr(ACC+16*t_,16)}, {vr(Z+16,4)}, {vr(Z+16,4)}, 0")
    a("s_mov_b32 exec_hi, 0")
    a(f"v_mov_b32 v{Z}, 0x3f80")
    a(f"v_mov_b32 v{Z+4}, 0x3f80")
    a("s_mov_b32 exec_lo, 0x10000000")
    a(f"v_mov_b32 v{Z+8}, 0x3f80")
    a(f"v_mov_b32 v{Z+12}, 0x3f80")
    a("s_mov_b64 exec, -1")
    def capture(f):
        keep = a.l; a.l = []
        f()
        got = [x.strip() for x in a.l]; a.l = keep
        return got
    lateA = capture(lambda: ids2a(1, False)); lateB = capture(lambda: ids2b(1))
    ws_desc()
    a(f"v_lshlrev_b32 v{L16}, 4, v0")
    a(f"v_and_b32 v{u0}, 0x33, v0")
    a(f"v_bfe_u32 v{u1}, v0, 2, 1")
    a(f"v_lshl_add_u32 v{u0}, v{u1}, 3, v{u0}")
    a(f"v_bfe_u32 v{u1}, v0, 3, 1")
    a(f"v_lshl_add_u32 v{u0}, v{u1}, 2, v{u0}")
    a(f"v_lshlrev_b32 v{TAU}, 4, v{u0}")
    sE0, sSC, sDLT, sCNT = sXS, sWS_, sWL, sXL
    a(f"s_lshl_b32 s{t0}, s{scg}, 2")
    a(f"s_lshr_b32 s{t1}, s{srb}, 2")
    a(f"s_add_u32 s{t0}, s{t0}, s{t1}")
    a(f"s_mul_i32 s{sF1O}, s{t0}, {F1SP}")
    a(f"s_lshl_b32 s{t0}, s{shalf}, 2")
    a(f"s_and_b32 s{t1}, s{srb}, 3")
    a(f"s_add_u32 s{t0}, s{t0}, s{t1}")
    a(f"s_lshl_b32 s{t0}, s{t0}, 1")
    a(f"s_add_u32 s{t0}, s{t0}, s{stt}")
    a(f"s_lshl_b32 s{t0}, s{t0}, 3")
    a(f"s_add_u32 s{sF1O}, s{sF1O}, s{t0}")
    a(f"s_add_u32 s{sF1O}, s{sF1O}, {X_F1}")
    if TEAR == 2: a(f"buffer_load_dword v{T+9}, off, {S4(rWS)}, s{sF1O} sc1")
    a(f"s_lshl_b32 s{t0}, s{srb}, 1")
    a(f"s_add_u32 s{t0}, s{t0}, s{stt}")
    a(f"s_lshl_b32 s{t1}, s{scg}, 6")
    a(f"s_add_u32 s{t0}, s{t0}, s{t1}")
    a(f"s_lshl_b32 s{sE0}, s{t0}, 13")
    SE = [sE0, rX, rX + 1, rX + 2]
    for t_, d_ in ((1, 4096), (2, 64 * 4096), (3, 65 * 4096)): a(f"s_add_u32 s{SE[t_]}, s{sE0}, {d_}")
    a(f"s_sub_u32 s{t0}, s{sw}, 4")
    a(f"s_lshl_b32 s{t0}, s{t0}, 12")
    a(f"s_add_u32 s{t0}, s{t0}, {QX}")
    a(f"v_add_u32 v{QW}, s{t0}, v{L16}")
    if SLD:
        a(f"s_lshl_b32 s{t0}, s{sw}, 4")
        a(f"s_add_u32 s{t0}, s{t0}, {NRC - 64}")
        a(f"v_mov_b32 v{PTA}, s{t0}")
    a(f"s_mov_b32 s{sSC}, {CSCALE:#x}")
    a(f"s_mov_b32 s{sCNT}, 0")
    a(f"s_mov_b32 s{sDLT}, 0")
    if FT and FT.split("/")[1]: ftouch(FT.split("/")[1], 6, "b")
    if CPF:
        a(f"s_cmp_lg_u32 s{sw}, 5")
        a("s_cbranch_scc1 L_nocpf")
        a(f"s_sub_u32 s{t0}, s{sidx}, 1")
        a(f"s_cmp_ge_u32 s{t0}, 3")
        a("s_cbranch_scc1 L_nocpf")
        a(f"s_getpc_b64 {S2(NONCE)}")
        a.lab("L_pc")
        a(f"s_lshl_b32 s{t0}, s{t0}, 13")
        a(f"v_lshlrev_b32 v{u0}, 7, v0")
        a(f"v_add_u32 v{u0}, s{t0}, v{u0}")
        a(f"v_min_u32 v{u0}, L_fallback-L_pc, v{u0}")
        a(f"global_load_dword v{T+10}, v{u0}, {S2(NONCE)}")
        a.lab("L_nocpf")
    a(f"s_cmp_lg_u32 s{shalf}, 0")
    a("s_cbranch_scc1 P1_v1")
    def reads(ks):
        b = FR + 20 * ks
        out = [f"ds_read_b128 {vr(b+4*e,4)}, v{XA+ks} offset:{4096*e}" for e in range(2)]
        for c in range(3):
            for h in range(2):
                off = 6144 * ks + (1024 * h if c < 2 else 2048 + 512 * h)
                out.append(f"ds_read_b64_tr_b16 {vr(b+8+4*c+2*h,2)}, v{WA1+c} offset:{off}")
        return [out[0], out[2], out[3], out[1]] + out[4:]
    def mfma1(ks, e, c, ori):
        b = FR + 20 * ks
        x = vr(b + 4 * e, 4); w = vr(b + 8 + 4 * c, 4)
        p, q = (w, x) if ori[c] == 'n' else (x, w)
        d = vr(ACC + 16 * (2 * c + e), 16)
        return f"v_mfma_f32_32x32x16_bf16 {d}, {p}, {q}, {d}"
    tiles = [(0, 0), (1, 0), (0, 1), (1, 1), (0, 2), (1, 2)]
    pend = []; cnt = [0]; ctx = [""]
    def epi(t_):
        e, c = tiles[t_]
        d = ACC + 16 * (2 * c + e)
        P = d
        out = []
        if c == 2: out += [[f"v_mul_f32 v{d+r}, s{sSC}, v{d+r}"] for r in range(16)]
        out += [[f"v_cvt_pk_bf16_f32 v{P+i}, v{d+2*i}, v{d+2*i+1}"] for i in range(8)]
        if c == 2:
            out += [[f"ds_write_b128 v{QW}, {vr(P,4)} offset:{2048*e}"], [f"ds_write_b128 v{QW}, {vr(P+4,4)} offset:{2048*e+1024}"]]
        else:
            out.insert(4, ("st", t_, 0, P)); out.append(("st", t_, 1, P + 4))
        return out
    def emit(x):
        a(x); cnt[0] += 1
    def drain(nmax):
        n_ = 0
        while pend and n_ < nmax and pend[0][0] <= cnt[0]:
            g_ = pend.pop(0)[1]
            if g_[0] == "st": stq.append(g_)
            else:
                for x in g_: emit(x)
                n_ += len(g_)
    stq = []; nm = [0, -99]
    def store():
        if not stq or nm[0] - nm[1] < SP: return 0
        _, t_, f, P = stq.pop(0)
        tag = f"{ctx[0]}{t_}{f}"
        emit(f"s_cbranch_vccz L_wt{tag}")
        emit(f"buffer_store_dwordx4 {vr(P,4)}, v{TAU}, {S4(rWS)}, s{SE[t_]} offen offset:{1024*f} {KVS}")
        a.lab(f"L_st{tag}")
        if f: stamp(a, f"st{t_}")
        tails.append((tag, P, SE[t_], 1024 * f)); nm[1] = nm[0]
        return 2
    def fill(nmax):
        if pend and pend[0][0] > cnt[0]:
            gap = min(nmax - 1, pend[0][0] - cnt[0])
            a(f"s_nop {gap-1}"); cnt[0] += gap
            nmax -= gap
        drain(nmax)
    for v, ori in enumerate(["nnn", "vvn"]):
        a.lab(f"P1_v{v}")
        if v == 1: a(f"v_add_u32 v{TAU}, 2048, v{L16}")
        a("s_waitcnt lgkmcnt(0)")
        stamp(a, "setup")
        mm = [(e, c) for c in range(3) for e in range(2)]
        def cstamps():
            if STAMP or DIAG:
                if len(DIAG) == 2 and DIAG[0] == "c" and DIAG != "c0":
                    a("s_memrealtime s[82:83]")
                    a(f"s_cmp_eq_u32 s{sCNT}, {int(DIAG[1])}")
                    a("s_waitcnt lgkmcnt(0)")
                    a("s_cselect_b32 s80, s82, s80")
                for nm in (STL if STAMP else []):
                    if len(nm) == 2 and nm[0] == "c" and nm != "c0":
                        a(f"s_cmp_eq_u32 s{sCNT}, {int(nm[1])}")
                        a(f"s_cbranch_scc1 L_ns{v}{nm}")
                        a.lab(f"L_nb{v}{nm}")
                        stails.append((f"{v}{nm}", nm))
        a("s_barrier")
        stamp(a, "c0")
        for x in reads(0): a(x)
        if FT and len(FT.split("/")) > 2: ftouch(FT.split("/")[2], 7, f"c{v}")
        a.raw(".p2align 6")
        a.lab(f"P1_loop{v}")
        for ks, rk in ((3, 1), (0, 2), (1, 3)):
            rd = reads(rk)
            if ks != 3: a("s_waitcnt lgkmcnt(8)")
            for j, (e, c) in enumerate(mm):
                a(mfma1(ks, e, c, ori))
                for x in rd[2*j:2*j+2]: a(x)
                if ks == 3 and j == 4:
                    a(f"s_add_u32 s{sCNT}, s{sCNT}, 1")
                    a(f"s_mov_b32 s{sDLT}, {STAGE}")
                if ks == 0 and j == 4:
                    a(f"s_cmp_eq_u32 s{sCNT}, 3")
                    a(f"s_cselect_b32 s{sDLT}, {(-2*STAGE) & 0xffffffff:#x}, s{sDLT}")
                if ks == 1 and j == 4:
                    for i in range(4): a(f"v_add_u32 v{XA+i}, s{sDLT}, v{XA+i}")
                if ks == 1 and j == 5:
                    for i in range(4, 7): a(f"v_add_u32 v{XA+i}, s{sDLT}, v{XA+i}")
        a("s_waitcnt lgkmcnt(8)")
        rd = reads(0)
        for j, (e, c) in enumerate(mm):
            a(mfma1(2, e, c, ori))
            if j == BPOS - 1: a("s_waitcnt lgkmcnt(0)")
            if j == BPOS:
                a("s_barrier")
                cstamps()
            if j > BPOS:
                n_ = -(-8 // (5 - BPOS)) if j < 5 else 8
                for x in rd[:n_]: a(x)
                rd = rd[n_:]
        if BPOS == 5:
            for x in rd: a(x)
        a(f"s_cmp_lt_u32 s{sCNT}, 4")
        a(f"s_cbranch_scc1 P1_loop{v}")
        m4 = mm[:4]
        for ch in (4, 5):
            dl = STAGE if ch == 4 else (-2 * STAGE) & 0xffffffff
            for ks, rk in ((3, 1), (0, 2), (1, 3)):
                rd = reads(rk)[:6]
                if ks != 3: a("s_waitcnt lgkmcnt(6)")
                for j, (e, c) in enumerate(mm if (ch == 4 and ks == 3) else m4):
                    a(mfma1(ks, e, c, ori))
                    for x in rd[2*j:2*j+2]: a(x)
                    if ch == 5 and ks == 3 and j == 0 and not SLD:
                        a(f"buffer_load_dwordx2 {vr(NV,2)}, v{NA}, {S4(rDBG)}, 0 offen sc1")
                    if ks == 0 and j == 3: a(f"s_mov_b32 s{sDLT}, {dl:#x}")
                    if ks == 1 and j == 3:
                        for i in range(4): a(f"v_add_u32 v{XA+i}, s{sDLT}, v{XA+i}")
            a("s_waitcnt lgkmcnt(6)")
            rd = reads(0)[:6]
            a(mfma1(2, *m4[0], ori))
            for i in range(4, 7): a(f"v_add_u32 v{XA+i}, s{sDLT}, v{XA+i}")
            a("s_waitcnt lgkmcnt(0)")
            a(mfma1(2, *m4[1], ori))
            a("s_barrier")
            stamp(a, f"d{ch+1}")
            a(mfma1(2, *m4[2], ori))
            for x in rd[:3]: a(x)
            a(mfma1(2, *m4[3], ori))
            for x in rd[3:]: a(x)
        rd = reads(1)[:6] + reads(2)[:6]
        for j, (e, c) in enumerate(m4):
            a(mfma1(3, e, c, ori))
            for x in rd[3*j:3*j+3]: a(x)
        for x in reads(3)[:4]: a(x)
        ctx[0] = str(v); pend.clear(); cnt[0] = 0; stq.clear(); nm[:] = [0, -99]
        seq = [(0, 0), (0, 1), (1, 0), (1, 1), (2, 0), (2, 1), (3, 0), (3, 1)] + [(k, t_) for t_ in range(2, 4) for k in range(4)]
        for i, (k, t_) in enumerate(seq):
            if i == 0: emit("s_waitcnt lgkmcnt(14)")
            if i == 2: emit("s_waitcnt lgkmcnt(12)")
            if i == 4: emit("s_waitcnt lgkmcnt(6)")
            if i == 6:
                emit("s_waitcnt lgkmcnt(0)" if SLD else "s_waitcnt vmcnt(0) lgkmcnt(0)")
                stamp(a, "last")
            emit(mfma1(k, *tiles[t_], ori))
            first = cnt[0]; nm[0] += 1
            store()
            if i == 0:
                for x in reads(3)[4:6]: emit(x)
            if i == 4 and SLD: emit(f"ds_read_b96 {vr(NV,3)}, v{PTA}")
            if i == 6:
                if SLD:
                    emit(f"v_readfirstlane_b32 s{t0}, v{NV+2}")
                    emit("s_nop 0")
                    emit(f"s_cmp_eq_u32 s{t0}, 0")
                else:
                    emit(f"v_cmp_eq_u64 vcc, {S2(XM)}, {vr(NV,2)}")
                    emit(f"s_and_b32 s{t0}, vcc_lo, 0xf0")
                    emit(f"s_cmp_eq_u32 s{t0}, 0xf0")
                emit(f"s_cselect_b32 s{sLOC}, {1 if LOCAL else 0}, 0")
                emit(f"s_cselect_b64 vcc, {-1 if LOCAL else 0}, 0")
            if k == 3: pend.extend((first + 12, g_) for g_ in epi(t_))
            if i == QB:
                emit("s_barrier")
                stamp(a, "bar7")
                for ks in range(2):
                    for x in reads(ks)[6:]: emit(x)
            elif i == QB + 1:
                for ks in range(2, 4):
                    for x in reads(ks)[6:]: emit(x)
            elif i != 6 and i != 15: fill(6)
        snap = (list(pend), cnt[0], list(stq), list(nm))
        if v == 0 or VIS: a("s_branch P1_done")
    if VIS:
        a.raw(".p2align 12" if VIS == 1 else ".p2align 6")
        a.lab("L_vis")
        a("s_branch L_visb")
    a.lab("P1_done")
    ctx[0] = "c"; pend[:] = snap[0]; cnt[0] = snap[1]; stq[:] = snap[2]; nm[:] = snap[3]
    if QB > 15:
        while pend: fill(99 if pend[0][0] <= cnt[0] else 13)
        emit("s_barrier")
        for ks in range(4):
            for x in reads(ks)[6:]: emit(x)
    def qreads(ks, base):
        b = FR + 20 * ks
        return [f"ds_read_b128 {vr(b,4)}, v{XA+ks} offset:{base}",
                f"ds_read_b64_tr_b16 {vr(b+16,2)}, v{WA1+2} offset:{base + 6144*ks + 2048}",
                f"ds_read_b64_tr_b16 {vr(b+18,2)}, v{WA1+2} offset:{base + 6144*ks + 2560}",
                f"ds_read_b128 {vr(b+4,4)}, v{XA+ks} offset:{base + 4096}"]
    def flag1():
        assert not any(g_[1][0] == "st" for g_ in pend) and not stq
        stamp(a, "prefl")
        nonce("C")
        a("s_mov_b64 exec, 1")
        a(f"s_cmp_eq_u32 s{sLOC}, 0")
        a("s_waitcnt vmcnt(0)")
        a("s_cbranch_scc1 L_f1wt")
        a(f"buffer_store_dwordx2 {vr(NV,2)}, off, {S4(rWS)}, s{sF1O}")
        a.lab("L_f1st")
        a("s_mov_b64 exec, -1")
        stamp(a, "ack1")
        cnt[0] += 10
    def late(nmax):
        q_ = lateB if (not lateA or (nq <= FPOS < 12)) and False else (lateA if lateA else lateB)
        if lateA and len(lateA) == nA and nq <= FPOS < 12: return
        for _ in range(min(nmax, len(q_))): emit(q_.pop(0))
    nA = len(lateA)
    nq = 0
    for rnd in range(3):
        order_ = [(ks, e) for ks in range(4) for e in range(2)] if rnd < 2 else [(0, 0), (0, 1), (1, 0), (2, 0), (3, 0), (1, 1), (2, 1), (3, 1)]
        for j, (ks, e) in enumerate(order_):
            if rnd == 0 and e == 0: emit(f"s_waitcnt lgkmcnt({6 + 2*ks})")
            if rnd == 1 and e == 0: emit("s_waitcnt lgkmcnt(12)")
            if rnd == 2 and e == 0: emit(f"s_waitcnt lgkmcnt({12 - 4*ks})")
            emit(mfma1(ks, e, 2, "nnn"))
            first = cnt[0]; nm[0] += 1
            store()
            nq += 1
            if B2 and rnd == 1 and j == 0: emit("s_barrier")
            if rnd < 2 and e == 1:
                if rnd == 1:
                    emit(f"v_add_u32 v{XA+ks}, {STAGE}, v{XA+ks}")
                    if ks == 0: emit(f"v_add_u32 v{WA1+2}, {STAGE}, v{WA1+2}")
                for x in qreads(ks, STAGE): emit(x)
                drain(2)
                late(2)
            elif nq != FPOS:
                if pend: fill(6)
                else: late(6)
            if rnd == 2 and ks == 3: pend.extend((first + 12, g_) for g_ in epi(4 + e))
            if nq == FPOS:
                if len(lateA) != nA:
                    while lateA: emit(lateA.pop(0))
                flag1()
    a(f"v_mov_b32 v{CA}, {GBC + 4}")
    a(f"v_mov_b32 v{ONE}, 1")
    cnt[0] += 2
    nm[0] += 99; store(); assert not stq
    if FPOS > 24:
        nq0 = len(pend) - 26 if FPOS == 25 else len(pend)
        while len(pend) > (26 if FPOS == 25 else 0): fill(1 if pend[0][0] <= cnt[0] else 13)
        if FPOS == 25:
            while lateA: emit(lateA.pop(0))
            flag1()
    while pend: fill(99 if pend[0][0] <= cnt[0] else 13)
    arrive(a, 4)
    stamp(a, "p1end")
    if FPOS == 26:
        while lateA: emit(lateA.pop(0))
        flag1()
    a("s_setprio 1")
    while lateA: a(lateA.pop(0))
    while lateB: a(lateB.pop(0))
    pre2()
    getq(1)
    a.lab("L_ph2")
    a.vreset()
    if PIPE:
        a("s_mov_b64 exec, 0xffff")
        poll_pipe(a, "L_f1", F1A, rWS, "sc1", [T + 10, T + 14])
        a("s_mov_b64 exec, -1")
        a.vm.append("poll")
    else: poll(a, "L_f1", F1A, rWS, "sc1", 16, SL1)
    stamp(a, "poll1")
    def ldK(kt, f): a.vmem(f"global_load_dwordx4 {vr(KB[kt%4]+4*f,4)}, v{L16}, {S2(KP[kt//2])} offset:{4096*(kt%2)-4096+1024*f} {KVL}", ("K", kt))
    def ldV(kt, f): a.vmem(f"global_load_dwordx4 {vr(VB[kt%4]+4*f,4)}, v{L16}, {S2(KP[kt//2])} offset:{4096*(kt%2)-2048+1024*f} {KVL}", ("V", kt))
    order = [(0, 3), (1, 3), (0, 0), (0, 1), (0, 2), (1, 0), (1, 1), (1, 2)]
    for k in range(2, 14):
        order += [(k, 0), (k, 1), (k, 2)] + ([(k, 3)] if k < 16 - NOWN else [])
    order += [(14, 0), (15, 0), (14, 1), (15, 1), (14, 2), (15, 2)] + [(k, 3) for k in range(16 - NOWN, 16)]
    assert sorted(order) == [(k, i) for k in range(16) for i in range(4)]
    NP = 64
    def qk(p):
        kt, i = order[p]
        s = SB[p % 3]; k = KB[kt % 4]
        return [f"v_mfma_f32_32x32x16_bf16 {vr(s,16)}, {vr(k,4)}, {vr(Q[i],4)}, 0",
                f"v_mfma_f32_32x32x16_bf16 {vr(s,16)}, {vr(k+4,4)}, {vr(Q[i]+4,4)}, {vr(s,16)}"]
    def pv(p):
        kt, i = order[p]
        s = SB[p % 3]; v = VB[kt % 4]
        return [f"v_smfmac_f32_32x32x32_bf16 {vr(O[i],16)}, {vr(v,4)}, {vr(s,8)}, v{IDX}",
                f"v_smfmac_f32_32x32x32_bf16 {vr(O[i],16)}, {vr(v+4,4)}, {vr(s+8,8)}, v{IDX}"]
    ldK(0, 0); ldK(0, 1)
    if not K1L: ldK(1, 0); ldK(1, 1)
    getq2()
    a.vwait(("K", 0))
    a("s_waitcnt lgkmcnt(6)")
    stamp(a, "k0")
    for x in qk(0): a(x)
    if K1L:
        ldK(1, 0); ldK(1, 1); ldV(0, 0); ldV(0, 1)
    else:
        ldV(0, 0); ldV(0, 1); ldV(1, 0); ldV(1, 1)
    a("s_mov_b64 exec, 1")
    a("s_waitcnt lgkmcnt(0)")
    a(f"ds_add_u32 v{T+5}, v{ONE}")
    a("s_mov_b64 exec, -1")
    a("s_nop 3")
    s = SB[0]
    a(f"v_max3_f32 v{T}, v{s}, v{s+1}, v{s+2}")
    a(f"v_max3_f32 v{T+1}, v{s+3}, v{s+4}, v{s+5}")
    for i in range(6, 14, 4):
        a(f"v_max3_f32 v{T}, v{T}, v{s+i}, v{s+i+1}")
        a(f"v_max3_f32 v{T+1}, v{T+1}, v{s+i+2}, v{s+i+3}")
    a(f"v_max3_f32 v{T}, v{T}, v{s+14}, v{s+15}")
    a(f"v_max_f32 v{T}, v{T}, v{T+1}")
    a(f"v_mov_b32 v{T+1}, v{T}")
    a("s_nop 1")
    a(f"v_permlane32_swap_b32 v{T}, v{T+1}")
    a(f"v_max_f32 v{T}, v{T}, v{T+1}")
    if FORCEFB: a(f"v_add_f32 v{T}, 0x43480000, v{T}")
    a(f"v_xor_b32 v{T}, 0x80000000, v{T}")
    a("s_mov_b32 exec_lo, 0")
    a(f"v_lshrrev_b32 v{Q[3]+6}, 16, v{T}")
    a("s_mov_b32 exec_lo, -1")
    a(f"ds_write_b32 v{MW}, v{Q[3]+6}")
    arrive(a)
    for x in qk(0): a(x)
    if K1L: ldV(1, 0); ldV(1, 1)
    a("s_nop 9" if K1L else "s_nop 11")
    stamp(a, "loop0")
    lastK = {k: max(p for p in range(NP) if order[p][0] == k) - 1 for k in range(16)}
    lastV = {k: max(p for p in range(NP) if order[p][0] == k) + 1 for k in range(16)}
    lq = []
    for k in range(2, 16):
        fk = lastK[k - 4] + 1 if k >= 4 else LQ0
        fv = lastV[k - 4] + 1 if k >= 4 else LQ0
        lq += [(lambda k=k: ldK(k, 0), fk), (lambda k=k: ldK(k, 1), fk), (lambda k=k: ldV(k, 0), fv), (lambda k=k: ldV(k, 1), fv)]
    wq = []
    for i in range(3):
        lp = max(p for p in range(NP) if order[p][1] == i) + 1
        for g in range(4):
            wq.append((lambda i=i, g=g: a(f"ds_write_b128 v{PW+i}, {vr(O[i]+4*g,4)} offset:{1024*g}"), 4 * (lp + 1) + 2))
    rq = [lambda i=i: a(f"ds_read_b128 {vr(O[i//4]+4*(i%4),4)}, v{PR} offset:{1024*i}") for i in range(12)]
    state = {"arr": None, "rd": False}
    def mlist(p):
        mq = qk(p + 1) if p + 1 < NP else [None, None]
        mp = pv(p - 1) if p >= 1 else [None, None]
        ms = [("q", x) for x in mq] + [("p", x) for x in mp]
        if p == 0: return ms[4-P0S:] + ms[:4-P0S]
        return ms[2:] + ms[:2] if p == 1 else ms
    def need(p, kind):
        if kind == "q":
            k1 = order[p + 1][0]
            a.vwait(("V", k1) if (k1 >= 2 and sum(1 for t in a.vm if t == ("V", k1)) == 2) else ("K", k1))
        else:
            a.vwait(("V", order[p - 1][0]))
    for p in range(NP):
        s = SB[p % 3]
        stamp(a, f"ph{p}")
        ms = mlist(p)
        if p == 1:
            lcheck(a, "L_m", 4)
            stamp(a, "bq1")
            for i in range(3): a(f"ds_read_b32 v{Q[i]+6}, v{MR+i}")
        if p == 2: a("s_nop 6")
        for g in range(4):
            kind, m = ms[g]
            if m:
                need(p, kind)
                if p == 1 and g == 3: a("s_waitcnt lgkmcnt(0)")
                a(m)
                if p >= 3:
                    np_, ng = (p, g + 1) if g < 3 else (p + 1, 0)
                    if np_ < NP:
                        k2, m2_ = mlist(np_)[ng]
                        if m2_: need(np_, k2)
            slot = 4 * p + g
            if slot == 3: lpre(a)
            if g == 2 and p in LOW:
                a(f"s_cmp_eq_u32 s{sg}, 0")
                a(f"s_cbranch_scc1 L_low{p}")
                a.lab(f"L_lowb{p}")
            if p == PGT and g == 0:
                a.vmem(f"buffer_load_dword v{T+8}, off, {S4(rWO)}, 0", "pg")
                a.vmem(f"buffer_load_dword v{T+9}, off, {S4(rBR)}, s{sF2O} sc1", "pg")
            if p == PGT and g == 1:
                a.vmem(f"buffer_load_dword v{T+10}, off, {S4(rOUT)}, s{sLS}", "pg")
                a(f"s_lshl_b32 s{t0}, s{sLS}, 1")
                a.vmem(f"buffer_load_dword v{T+11}, off, {S4(rOUT)}, s{t0}", "pg")
            if slot == 26: lpre(a, C0A)
            if slot == 30: lcheck(a, "L_c0", 4, C0A)
            if p == WOT and g == 2: a.vmem(f"buffer_load_dword v{T+8}, v{TAU}, {S4(rWO)}, 0 offen", "wot")
            if lq and lq[0][1] <= p and (g == LG or (g == LG + 1 and (p < 12 or p >= 40))): lq.pop(0)[0]()
            elif wq and wq[0][1] <= slot:
                wq.pop(0)[0]()
                if not wq:
                    arrive(a); state["arr"] = slot
            elif state["arr"] is not None and slot == state["arr"] + 2: lpre(a)
            elif state["arr"] is not None and not state["rd"] and slot >= state["arr"] + 4:
                lcheck(a, "L_p", 8)
                stamp(a, "b1")
                state["rd"] = True
                for _ in range(4): rq.pop(0)()
            elif state["rd"] and rq:
                for _ in range(4): rq.pop(0)()
            for jj in range(4): a(f"v_exp_f32 v{s+4*g+jj}, v{s+4*g+jj}")
    assert not lq and not wq and state["rd"]
    while rq: rq.pop(0)()
    a("s_nop 1")
    for x in pv(63): a(x)
    stamp(a, "loop1")
    OO = O[3]
    a("s_waitcnt lgkmcnt(0)")
    if ARR3 == "early": arrive(a)
    for r in range(16): a(f"v_add_f32 v{O[0]+r}, v{O[0]+r}, v{O[1]+r}")
    for r in range(16): a(f"v_add_f32 v{O[0]+r}, v{O[0]+r}, v{O[2]+r}")
    a(f"v_add_f32 v{OO+12}, v{OO+12}, v{O[0]+12}")
    a(f"v_mov_b32 v{T}, v{OO+12}")
    a(f"v_mov_b32 v{T+1}, v{OO+12}")
    for r in range(0, 4): a(f"v_add_f32 v{OO+r}, v{OO+r}, v{O[0]+r}")
    a(f"v_permlane32_swap_b32 v{T}, v{T+1}")
    for r in range(4, 16):
        if r != 12: a(f"v_add_f32 v{OO+r}, v{OO+r}, v{O[0]+r}")
    a(f"s_mov_b32 s{sFB}, 0")
    a.lab("L_norm")
    a(f"v_rcp_f32 v{T}, v{T+1}")
    if EARLYP == 1: a(f"buffer_load_dwordx2 {vr(T+14,2)}, v{LF}, {S4(rBR)}, 0 offen {PF2}")
    else: a("s_nop 0")
    P = T + 4
    for r in range(8): a(f"v_mul_f32 v{OO+r}, v{OO+r}, v{T}")
    for i in range(4): a(f"v_cvt_pk_bf16_f32 v{P+i}, v{OO+2*i}, v{OO+2*i+1}")
    a(f"buffer_store_dwordx4 {vr(P,4)}, v{L16}, {S4(rBR)}, s{sOO} offen sc1")
    for r in range(8, 16): a(f"v_mul_f32 v{OO+r}, v{OO+r}, v{T}")
    for i in range(4, 8): a(f"v_cvt_pk_bf16_f32 v{P+i}, v{OO+2*i}, v{OO+2*i+1}")
    a("s_mov_b32 exec_hi, 0")
    a(f"buffer_store_dwordx4 {vr(P+4,4)}, v{L16}, {S4(rBR)}, s{sOO} offen offset:1024 sc1")
    a("s_not_b64 exec, exec")
    a(f"buffer_store_dwordx2 {vr(P+4,2)}, v{L8}, {S4(rBR)}, s{sOO} offen offset:1280 sc1")
    a("s_mov_b64 exec, -1")
    if EARLYP == 2: a(f"buffer_load_dwordx2 {vr(T+14,2)}, v{LF}, {S4(rBR)}, 0 offen {PF2}")
    stamp(a, "ost")
    a(f"s_cmp_lg_u32 s{sFB}, 0")
    a("s_cbranch_scc1 L_checked")
    if ARR3 == "late": arrive(a)
    a(f"v_mul_f32 v{T+2}, 0, v{OO}")
    a(f"v_mul_f32 v{T+3}, 0, v{OO+1}")
    for r in range(2, 16): a(f"v_fma_f32 v{T+2+(r&1)}, 0, v{OO+r}, v{T+2+(r&1)}")
    a(f"v_add_f32 v{T+2}, v{T+2}, v{T+3}")
    a(f"v_add_f32 v{T+2}, v{T+2}, v{T+1}")
    a(f"v_cmp_nlt_f32 vcc, 0x35800000, v{T+2}")
    a(f"s_mov_b64 {S2(sROT)}, vcc")
    a(f"v_cmp_ngt_f32 vcc, 0x71800000, v{T+2}")
    a(f"s_or_b64 vcc, vcc, {S2(sROT)}")
    a("s_cbranch_vccnz L_fallback")
    a.lab("L_checked")
    sOS, sOL, sW0 = KT[1], KT[2], KT[3]
    INV = [ORD.index(r_) for r_ in range(4)]
    def wo_round(st):
        a(f"s_xor_b32 s{t0}, s{sPE}, {st}")
        a(f"s_add_u32 s{t0}, s{t0}, s{sW0}")
        a(f"s_mul_i32 s{sWOS}, s{t0}, {28*896}")
        a(f"s_mul_i32 s{sWOL}, s{skq}, {56*256}")
        a(f"s_mov_b32 s{t1}, 0")
        a(f"s_setprio {WPRIO}")
        a.lab(f"L_wo{st}")
        a(f"s_mov_b32 m0, s{sWOL}")
        a(f"s_add_u32 s{t1}, s{t1}, 1")
        a(f"buffer_load_dwordx4 v{WOA}, {S4(rWO)}, s{sWOS} offen {WOF} lds")
        a(f"s_add_u32 s{sWOL}, s{sWOL}, 1024")
        a(f"s_cmp_eq_u32 s{t1}, 7")
        a(f"s_mov_b32 s{t0}, {4*896}")
        a(f"s_cselect_b32 s{t0}, {32*896}, s{t0}")
        a(f"s_add_u32 s{sWOS}, s{sWOS}, s{t0}")
        a(f"s_cmp_lg_u32 s{t1}, 14")
        a(f"s_waitcnt vmcnt({WOFL})")
        a(f"s_cbranch_scc1 L_wo{st}")
        a("s_waitcnt vmcnt(0)")
        a("s_setprio 2")
    a(f"s_cmp_eq_u32 s{sg}, 0")
    a("s_cbranch_scc1 L_wfirst")
    a.lab("L_pub")
    NF = T + 2
    a(f"v_mov_b32 v{NF}, s{NONCE}")
    a(f"v_mov_b32 v{NF+1}, s{NONCE+1}")
    a("s_mov_b64 exec, 1")
    a(f"s_cmp_eq_u32 s{sg}, 0")
    a("s_waitcnt vmcnt(0)")
    a(f"buffer_store_dwordx2 {vr(NF,2)}, off, {S4(rBR)}, s{sF2O} {SF2}")
    a("s_mov_b64 exec, -1")
    stamp(a, "flag2")
    a("s_cbranch_scc1 L_ph3")
    def late_fetch():
        a(f"s_mov_b32 m0, s{sLL}")
        a("s_nop 0")
        for i in range(4): a(f"buffer_load_dwordx4 v{L16}, {S4(rBR)}, s{sLS} offen offset:{1024*i} sc1 lds")
        a(f"s_add_u32 m0, s{sLL}, 4096")
        a("s_nop 0")
        for i in range(3): a(f"buffer_load_dwordx4 v{L16}, {S4(rBR)}, s{sLS2} offen offset:{1024*i} sc1 lds")
        a("s_mov_b64 exec, 1")
        a("s_waitcnt vmcnt(0)")
        a(f"ds_write_b32 v{LM}, v{ONE}")
        a("s_mov_b64 exec, -1")
    a(f"ds_read_b32 v{T+12}, v{LM}")
    a(f"v_add_u32 v{T+4}, -4, v{CA}")
    lwait(a, "L_wfree", 0, 28, 1, T + 4)
    a(f"v_readfirstlane_b32 s{t0}, v{T+12}")
    a(f"s_cmp_lg_u32 s{t0}, 0")
    a("s_cbranch_scc1 L_fin")
    if EARLYP:
        a(f"v_cmp_ne_u64 vcc, {S2(NONCE)}, {vr(T+14,2)}")
        a("s_cbranch_vccz L_lready")
    if PW0: a("s_waitcnt vmcnt(0)")
    poll(a, "L_f21", LF, rBR, PF2)
    a.lab("L_lready")
    stamp(a, "poll2")
    late_fetch()
    stamp(a, "oown")
    a("s_waitcnt lgkmcnt(0)")
    a("s_branch L_fin")
    a.lab("L_ph3")
    if OUTW:
        a("s_mov_b64 exec, 1")
        a(f"buffer_load_dword v{T+8}, v{OUTA}, {S4(rOUT)}, 0 offen")
        a("s_mov_b64 exec, -1")
    WB = 16
    steps = []
    for q in range(2):
        for j in range(4 * q, 4 * q + 4): steps.append((0, lambda aa, j=j: 28 * j + 8 * aa, ("A", j)))
        for i in range(2 * q, 2 * q + 2): steps.append((1, lambda aa, i=i: 56 * i + 16 + 8 * aa, ("B", 2 * i)))
        steps.append((2, lambda aa, q=q: 28 * (4 * q + aa) + 20, ("C", 4 * q)))
    def wread(st, ks):
        t, row, _ = steps[ks]
        for aa in range(2):
            a(f"ds_read_b64_tr_b16 {vr(WB+56*st+4*ks+2*aa,2)}, v{WA+t} offset:{row(aa)*256}")
    for st in range(2):
        if st: wo_round(1)
        gbar(a, f"L_g4{st}", 4 + 2 * st)
        for ks in range(14): wread(st, ks)
        a("s_waitcnt lgkmcnt(0)")
        gbar(a, f"L_g5{st}", 5 + 2 * st)
        stamp(a, f"wrd{st}")
    ACC3 = [128, 144]; ACCB = [16, 32]; OB = 176; NB = 12; PK = 224
    def mfma_block(st, items, hooks):
        lg = []
        def oread(n_):
            ks, e = items[n_]
            kind, hd = steps[ks][2]
            d = OB + 4 * (n_ % NB)
            base = 28672 * st + 14336 * e
            if kind == "A": a(f"ds_read_b128 {vr(d,4)}, v{OA} offset:{base+hd*1792}"); lg.append(n_)
            elif kind == "B": a(f"ds_read_b128 {vr(d,4)}, v{OA+1} offset:{base+hd*1792+1024}"); lg.append(n_)
            else:
                for aa in range(2):
                    a(f"ds_read_b64 {vr(d+2*aa,2)}, v{OA+2} offset:{base+(hd+aa)*1792+1536}"); lg.append(n_)
        N_ = len(items)
        for n_ in range(min(NB, N_)): oread(n_)
        for n_ in range(N_):
            ks, e = items[n_]
            out = sum(1 for k in lg if k > n_)
            assert out < 16
            a(f"s_waitcnt lgkmcnt({out})")
            d_ = ACCB[e] if (st == 1 and ks >= 7) else ACC3[e]
            c = "0" if (st, ks) in ((0, 0), (1, 7)) else vr(d_, 16)
            a(f"v_mfma_f32_32x32x16_bf16 {vr(d_,16)}, {vr(WB+56*st+4*ks,4)}, {vr(OB+4*(n_%NB),4)}, {c}")
            if n_ + NB < N_: oread(n_ + NB)
            if n_ in hooks: hooks[n_]()
    a(f"s_mul_i32 s{sOS}, s{sRT}, 1792")
    a(f"s_mul_i32 s{sOL}, s{skq}, 7168")
    poll(a, "L_f20", F2A, rBR, PF2)
    a(f"s_mov_b32 m0, s{sOL}")
    a(f"s_add_u32 s{t0}, s{sOS}, 4096")
    for i in range(4): a(f"buffer_load_dwordx4 v{L16}, {S4(rBR)}, s{sOS} offen offset:{1024*i} sc1 lds")
    a(f"s_add_u32 m0, s{sOL}, 4096")
    a("s_nop 0")
    for i in range(3): a(f"buffer_load_dwordx4 v{L16}, {S4(rBR)}, s{t0} offen offset:{1024*i} sc1 lds")
    a("s_waitcnt vmcnt(0)")
    gbar(a, "L_g8", 8)
    stamp(a, "aland")
    if GLOOK:
        a(f"s_mov_b32 s{t3}, {SPIN}")
        a.lab("L_h3a")
        a(f"buffer_load_dwordx2 {vr(T+14,2)}, v{LF}, {S4(rBR)}, 0 offen {PF2}")
        a(f"s_sleep {HSL}")
        a(f"ds_read_b32 v{T+13}, v{CA} offset:4")
        a(f"s_sub_u32 s{t3}, s{t3}, 1")
        a("s_cbranch_scc1 L_end")
        a("s_waitcnt lgkmcnt(0)")
        a(f"v_readfirstlane_b32 s{t2}, v{T+13}")
        a(f"s_cmp_ge_u32 s{t2}, 12")
        a("s_cbranch_scc1 L_h3_done")
        a("s_waitcnt vmcnt(0)")
        a(f"v_cmp_ne_u64 vcc, {S2(NONCE)}, {vr(T+14,2)}")
        a("s_cbranch_vccnz L_h3a")
        late_fetch()
    if PG3:
        a("s_branch L_warm")
        a.raw(".p2align 12")
        a.lab("L_warmed")
    lwait(a, "L_h3", 4, 12, HSL)
    a("s_setprio 0")
    a(f"s_cmp_eq_u32 s{XM}, 0")
    a("s_cbranch_scc1 L_fin")
    mfma_block(0, [(ks, e) for ks in range(14) for e in range(2)], {})
    stamp(a, "tileA")
    a(f"s_add_u32 s{t0}, s{sOUTO}, {16*1792}")
    a(f"s_add_u32 s{t1}, s{sOUTO}, {32*1792}")
    a(f"s_add_u32 s{sOS}, s{sOUTO}, {48*1792}")
    def pack0(i0):
        def f():
            for r in range(2 * i0, 2 * i0 + 8): a(f"v_add_f32 v{ACC3[0]+r}, v{ACC3[0]+r}, v{ACCB[0]+r}")
            for i in range(i0, i0 + 4): a(f"v_cvt_pk_bf16_f32 v{PK+i}, v{ACC3[0]+2*i}, v{ACC3[0]+2*i+1}")
        return f
    a(f"s_mov_b32 s{t3}, {SPIN}")
    a.lab("L_any")
    a(f"ds_read_b128 {vr(T+8,4)}, v{CA} offset:16")
    a(f"s_sub_u32 s{t3}, s{t3}, 1")
    a("s_cbranch_scc1 L_end")
    a("s_waitcnt lgkmcnt(0)")
    a(f"v_and_b32 v{T+8}, v{T+8}, v{T+9}")
    a(f"v_and_b32 v{T+10}, v{T+10}, v{T+11}")
    a(f"v_cmp_ne_u32 vcc, 0, v{T+10}")
    a("s_cbranch_vccnz L_ba")
    a(f"v_cmp_ne_u32 vcc, 0, v{T+8}")
    a("s_cbranch_vccz L_any")
    for first in (0, 1):
        if first:
            if PG3:
                a.raw(".p2align 6")
                a.lab("L_warm")
                a("s_branch L_warmed")
            a.lab("L_ba")
        stamp(a, "bland")
        mfma_block(1, [(ks, e) for ks in range(7 * first, 7 * first + 7) for e in range(2)], {})
        a(f"s_mov_b32 s{t3}, {SPIN}")
        a.lab(f"L_u{first}")
        a(f"ds_read_b64 {vr(T+8,2)}, v{CA} offset:{24 - 8*first}")
        a(f"s_sub_u32 s{t3}, s{t3}, 1")
        a("s_cbranch_scc1 L_end")
        a("s_waitcnt lgkmcnt(0)")
        a(f"v_and_b32 v{T+8}, v{T+8}, v{T+9}")
        a(f"v_cmp_ne_u32 vcc, 0, v{T+8}")
        a(f"s_cbranch_vccz L_u{first}")
        stamp(a, "oland")
        mfma_block(1, [(ks, e) for e in range(2) for ks in range(7 - 7 * first, 14 - 7 * first)], {12: pack0(0), 13: pack0(4)})
        if not first: a("s_branch L_out")
    a.lab("L_out")
    stamp(a, "mf3")
    a(f"ds_write_b128 v{TW}, {vr(PK,4)}")
    a(f"ds_write_b128 v{TW+1}, {vr(PK+4,4)}")
    a(f"ds_read_b128 {vr(OB+16,4)}, v{TR}")
    a(f"ds_read_b128 {vr(OB+20,4)}, v{TR} offset:1024")
    for r in range(8): a(f"v_add_f32 v{ACC3[1]+r}, v{ACC3[1]+r}, v{ACCB[1]+r}")
    for i in range(4): a(f"v_cvt_pk_bf16_f32 v{PK+8+i}, v{ACC3[1]+2*i}, v{ACC3[1]+2*i+1}")
    a(f"ds_write_b128 v{TW}, {vr(PK+8,4)} offset:2048")
    a("s_waitcnt lgkmcnt(1)")
    a(f"buffer_store_dwordx4 {vr(OB+16,4)}, v{OUTA}, {S4(rOUT)}, s{sOUTO} offen {OUTF}")
    a(f"buffer_store_dwordx4 {vr(OB+20,4)}, v{OUTA}, {S4(rOUT)}, s{t0} offen {OUTF}")
    for r in range(8, 16): a(f"v_add_f32 v{ACC3[1]+r}, v{ACC3[1]+r}, v{ACCB[1]+r}")
    for i in range(4, 8): a(f"v_cvt_pk_bf16_f32 v{PK+8+i}, v{ACC3[1]+2*i}, v{ACC3[1]+2*i+1}")
    a(f"ds_write_b128 v{TW+1}, {vr(PK+12,4)} offset:2048")
    a(f"ds_read_b128 {vr(OB+24,4)}, v{TR} offset:2048")
    a(f"ds_read_b128 {vr(OB+28,4)}, v{TR} offset:3072")
    a("s_waitcnt lgkmcnt(1)")
    a(f"buffer_store_dwordx4 {vr(OB+24,4)}, v{OUTA}, {S4(rOUT)}, s{t1} offen {OUTF}")
    a("s_waitcnt lgkmcnt(0)")
    a(f"buffer_store_dwordx4 {vr(OB+28,4)}, v{OUTA}, {S4(rOUT)}, s{sOS} offen {OUTF}")
    a.lab("L_fin")
    if STAMP:
        a("s_waitcnt vmcnt(0)")
        a("s_memrealtime s[22:23]")
        a("s_memtime s[98:99]")
        a("s_waitcnt lgkmcnt(0)")
        a("s_mov_b64 exec, 1")
        a(f"s_mov_b32 s{rWS}, s2"); a(f"s_mov_b32 s{rWS+1}, s3"); a(f"s_mov_b32 s{rWS+2}, 0x10000000")
        a(f"s_lshl_b32 s{t1}, s{sidx}, 3")
        a(f"s_add_u32 s{t1}, s{t1}, s{sx}")
        a(f"s_lshl_b32 s{t1}, s{t1}, 9")
        a(f"s_add_u32 s{t1}, s{t1}, {64<<20}")
        a(f"s_lshl_b32 s{t0}, s{sw}, 6")
        a(f"s_add_u32 s{t1}, s{t1}, s{t0}")
        for i, r in enumerate([RT, 22, 100, 98] + [80 + 2 * k for k in range(9)] + [sLOC]):
            a(f"v_mov_b32 v1, s{r}")
            a(f"buffer_store_dword v1, off, {S4(rWS)}, s{t1} offset:{4*i}")
    if DIAG:
        a("s_waitcnt vmcnt(0)")
        if DIAG == "end": a("s_memrealtime s[80:81]")
        if DIAG == "none": a(f"s_mov_b32 s80, s{NONCE}")
        a("s_waitcnt lgkmcnt(0)")
        a("s_add_u32 s80, s80, 6000")
        a.lab("L_diag")
        a("s_sleep 2")
        a("s_memrealtime s[82:83]")
        a("s_waitcnt lgkmcnt(0)")
        a("s_sub_u32 s82, s82, s80")
        a("s_cmp_lt_i32 s82, 0")
        a("s_cbranch_scc1 L_diag")
    a.lab("L_end")
    a("s_endpgm")
    a.lab("L_wfirst")
    lwait(a, "L_h2", 12, 4)
    stamp(a, "wo0")
    a(f"s_lshl_b32 s{t0}, s{skq}, 2")
    a(f"s_lshr_b32 s{t0}, {sum((4*INV[r_]) << (4*r_) for r_ in range(4)):#x}, s{t0}")
    a(f"s_and_b32 s{sW0}, s{t0}, 15")
    wo_round(0)
    a("s_branch L_pub")
    for tag, P_, so, off in tails:
        a.lab(f"L_wt{tag}")
        a(f"buffer_store_dwordx4 {vr(P_,4)}, v{TAU}, {S4(rWS)}, s{so} offen offset:{off} sc1")
        a(f"s_branch L_st{tag}")
    for v in nnt:
        a.lab(f"L_nn{v}")
        a(f"buffer_load_dwordx2 {vr(NV,2)}, v{NA}, {S4(rDBG)}, 0 offen sc1")
        a(f"s_branch L_nnb{v}")
    for tag, nm in stails:
        a.lab(f"L_ns{tag}")
        stamp(a, nm)
        a(f"s_branch L_nb{tag}")
    for name, target, reg in slow:
        a.lab(f"{name}_slow")
        lwait(a, name, 0, target, 1, reg)
        a(f"s_branch {name}_back")
    if LOW[0] >= 0:
        for p, pr in zip(LOW, (0, 2)):
            a.lab(f"L_low{p}")
            a(f"s_setprio {pr}")
            a(f"s_branch L_lowb{p}")
    a.lab("L_f1wt")
    a(f"buffer_store_dwordx2 {vr(NV,2)}, off, {S4(rWS)}, s{sF1O} sc1")
    a("s_branch L_f1st")
    for tag in "LC":
        a.lab(f"L_nonce_retry{tag}")
        a(f"buffer_load_dwordx2 {vr(NV,2)}, off, {S4(rDBG)}, s{sDL} sc1")
        a(f"s_sub_u32 s{t3}, s{t3}, 1")
        a("s_cbranch_scc1 L_end")
        a("s_waitcnt vmcnt(0)")
        a(f"s_branch L_nonce{tag}")
    a.lab("L_fallback")
    QO = Q[3]; S0 = SB[0]; K0 = KB[0]; V0 = VB[0]; M = T + 2
    a("s_waitcnt vmcnt(0)")
    a(f"s_mov_b32 s{sFB}, 1")
    a("s_mov_b32 exec_lo, 0")
    a(f"v_mov_b32 v{QO+6}, 0")
    a("s_mov_b32 exec_lo, -1")
    for r in range(16): a(f"v_mov_b32 v{OO+r}, 0")
    a(f"v_mov_b32 v{M}, 0xff7fffff")
    a(f"s_mov_b32 s{sKVO}, 0")
    a.lab("L_fb_loop")
    a(f"buffer_load_dwordx4 {vr(K0,4)}, v{L16}, {S4(rKV)}, s{sKVO} offen sc1")
    a(f"buffer_load_dwordx4 {vr(K0+4,4)}, v{L16}, {S4(rKV)}, s{sKVO} offen offset:1024 sc1")
    a(f"buffer_load_dwordx4 {vr(V0,4)}, v{L16}, {S4(rKV)}, s{sKVO} offen offset:2048 sc1")
    a(f"buffer_load_dwordx4 {vr(V0+4,4)}, v{L16}, {S4(rKV)}, s{sKVO} offen offset:3072 sc1")
    a("s_waitcnt vmcnt(0)")
    a(f"v_mfma_f32_32x32x16_bf16 {vr(S0,16)}, {vr(K0,4)}, {vr(QO,4)}, 0")
    a(f"v_mfma_f32_32x32x16_bf16 {vr(S0,16)}, {vr(K0+4,4)}, {vr(QO+4,4)}, {vr(S0,16)}")
    a("s_nop 15")
    a(f"v_max3_f32 v{T}, v{M}, v{S0}, v{S0+1}")
    for i in range(2, 16, 2): a(f"v_max3_f32 v{T}, v{T}, v{S0+i}, v{S0+i+1}")
    a(f"v_mov_b32 v{T+1}, v{T}")
    a("s_nop 1")
    a(f"v_permlane32_swap_b32 v{T}, v{T+1}")
    a(f"v_max_f32 v{T}, v{T}, v{T+1}")
    a(f"v_sub_f32 v{T+1}, v{M}, v{T}")
    a(f"v_exp_f32 v{T+1}, v{T+1}")
    a(f"v_mov_b32 v{M}, v{T}")
    for r in range(16): a(f"v_sub_f32 v{S0+r}, v{S0+r}, v{T}")
    for r in range(16): a(f"v_exp_f32 v{S0+r}, v{S0+r}")
    for r in range(16): a(f"v_mul_f32 v{OO+r}, v{OO+r}, v{T+1}")
    a("s_nop 1")
    a(f"v_smfmac_f32_32x32x32_bf16 {vr(OO,16)}, {vr(V0,4)}, {vr(S0,8)}, v{IDX}")
    a(f"v_smfmac_f32_32x32x32_bf16 {vr(OO,16)}, {vr(V0+4,4)}, {vr(S0+8,8)}, v{IDX}")
    a(f"s_add_u32 s{sKVO}, s{sKVO}, 4096")
    a(f"s_cmp_lt_u32 s{sKVO}, 262144")
    a("s_nop 15")
    a("s_cbranch_scc1 L_fb_loop")
    a(f"v_mov_b32 v{T}, v{OO+12}")
    a(f"v_mov_b32 v{T+1}, v{OO+12}")
    a("s_nop 1")
    a(f"v_permlane32_swap_b32 v{T}, v{T+1}")
    a("s_branch L_norm")
    if SCP:
        a.raw(".p2align 12")
        a("s_endpgm")
    kd = f""".section .rodata,"a"
.p2align 6
.amdhsa_kernel {n}
  .amdhsa_next_free_vgpr 256
  .amdhsa_next_free_sgpr 102
  .amdhsa_accum_offset 256
  .amdhsa_group_segment_fixed_size 0
  .amdhsa_kernarg_size 72
  .amdhsa_user_sgpr_count 2
  .amdhsa_user_sgpr_kernarg_segment_ptr 1
  .amdhsa_system_sgpr_workgroup_id_x 1
.end_amdhsa_kernel
"""
    return a.text() + kd

hdr = f"""; Two multi-head attention blocks (S=2048, D=448, H=16, Dh=28), one launch, 256 workgroups of 8 waves, one per CU.
;  1. projection: K and V^T fragments go to ws, Q stays in LDS.  Feature 28 of K is 1 and feature 28 of Q carries -m, so the
;  2. attention: m is the row maximum over the wave's first key tile; the row sum and the outputs are range checked and a
;     q tile that fails is recomputed with the running maximum.  P stays in f32 registers: the sparse MFMA picks the high halves.
; Hand-offs carry a per-launch tag agreed through d_debug.  K/V are stored plainly only when every workgroup of the class has
; registered on this die; otherwise they are written through, so any placement gives the same result.
; @launch grid=(256,1,1) block=(512,1,1) lds={LDS}
.amdgcn_target "amdgcn-amd-amdhsa--gfx950"
.text
"""
open(sys.argv[1] if len(sys.argv) > 1 else "v13.s", "w").write(hdr + gen())
```

```python
import sys, os, struct, math
NAME = "concat_heads__softmax_full_mha__softmax_full_mha__prompt"
def f2u(x): return struct.unpack("<I", struct.pack("<f", x))[0]
CSCALE = f2u(28 ** -0.5 * math.log2(math.e))
E = os.environ.get
STAMP = E("STAMP", "0") in ("1", "3")
RTS = E("STAMP", "0") == "3"
DIAG = E("DIAG", "")
STL = E("STL", "c0,p1end,ack1,poll1,loop0,loop1,flag2,poll2,oland").split(",")
F2SP = int(E("F2SP", "32"))
FORCEFB = E("FORCEFB", "0") == "1"
LOCAL = E("LOCAL", "1") == "1"
PRET = int(E("PRET", "3"))
SLEEP = int(E("SLEEP", "0"))
OUTF = E("OUTF", "sc1").replace("_", " ")
ROTA, ROTB, ROTC, ROTN, ROTS = [int(v) for v in E("ROTP", "1,0,2,7,1").split(",")]
WOFL = int(E("WOFL", "5"))
NOWN = int(E("NOWN", "4"))
NPOS = int(E("NPOS", "5"))
ARR3 = E("ARR3", "late")
OUTW = int(E("OUTW", "0"))
WOT = int(E("WOT", "-1"))
HB = int(E("HB", "0"))
BPOS = int(E("BPOS", "2"))
TLBW = int(E("TLBW", "0"))
PROBE = int(E("PROBE", "0"))
WPRIO = int(E("WPRIO", "0"))
PRET2 = int(E("PRET2", "0"))
LG = int(E("LG", "0"))
PF2 = E("PF2", "sc1").replace("_", " ")
SF2 = E("SF2", "sc1").replace("_", " ")
PIPE = int(E("PIPE", "0"))
PW0 = int(E("PW0", "1"))
F1SP = int(E("F1SP", "128"))
K1L = int(E("K1L", "1"))
LQ0 = int(E("LQ0", "0"))
PGA = int(E("PGA", "1"))
FPOS = int(E("FPOS", "22"))
QB = int(E("QB", "12"))
TEAR = int(E("TEAR", "0"))
B2 = int(E("B2", "0"))
LPR = int(E("LPR", "0"))
CPF = int(E("CPF", "0"))
UBY = int(E("UBY", "0"))
SLD = int(E("SLD", "6"))
NRC = 139264
WB = E("WB", "")
PAD = int(E("PAD", "0"), 0)
VIS = int(E("VIS", "0"))
SCP = int(E("SCP", "0"))
INL = int(E("INL", "1"))
PG3 = int(E("PG3", "0"))
TWO = int(E("TWO", "0"))
STL_ = int(E("STN", "0"))
ST0 = int(E("ST0", "3"))
SGL = E("SGL", "")
PGT = int(E("PGT", "-1"))
SP = int(E("SP", "2"))
WF0 = E("WF0", ""); WF = E("WF", ""); XF0 = E("XF0", ""); XF = E("XF", ""); KVS = E("KVS", ""); WOF = E("WOF", ""); TF = E("TF", "sc1").replace("_", " "); KVL = E("KVL", "sc1").replace("_", " ")
LOW = [int(x) for x in E("LOW", "-1,-1").split(",")]
QFAST = int(E("QFAST", "1"))
FT = E("FT", "")
P0S = int(E("P0S", "1"))
SL1 = int(E("SL1", "0"))
PEX = int(E("PEX", "1"))
EARLYP = int(E("EARLYP", "1"))
GLOOK = int(E("GLOOK", "0"))
LOOK = int(E("LOOK", "16"))
LOOK2 = int(E("LOOK2", "7"))
HSL = int(E("HSL", "4"))
XMAP = E("XMAP", "10542367")
T2POS = E("T2POS", "b6")
SPIN = 1 << 22

X_F1 = 1 << 20
B_BASE = 16 << 20; B_F2 = 1835008
STAGE = 40960; XOFF = 24576
PB0 = 57344; QX = 122880; MX = 106496; PB1 = 113664; TX = 57344; LDS = 163840; GBC = 163808

class A:
    def __init__(self):
        self.l = []; self.vm = []; self.done = 0
    def __call__(self, s): self.l.append("    " + s)
    def lab(self, s): self.l.append(s + ":")
    def raw(self, s): self.l.append(s)
    def note(self, s):
        for x in s.strip().split("\n"): self.l.append("; " + x.strip())
    def text(self): return "\n".join(self.l) + "\n"
    def vreset(self): self.vm = []; self.done = 0
    def vmem(self, s, tag=None):
        self(s); self.vm.append(tag)
    def vwait(self, tag):
        idx = [i for i, t in enumerate(self.vm) if t == tag]
        assert idx, tag
        last = idx[-1] + 1
        if last <= self.done: return
        self.done = last
        n = len(self.vm) - last
        assert n < 64
        self(f"s_waitcnt vmcnt({n})")

def vr(b, n): return f"v[{b}:{b+n-1}]"
def S4(b): return f"s[{b}:{b+3}]"
def S2(b): return f"s[{b}:{b+1}]"
JIT = int(E("JIT", "0")); njit = [0]
def stamp(a, name):
    if JIT and (not name.startswith("ph") or int(name[2:]) % 9 == 2):
        import zlib
        njit[0] += 1
        h = zlib.crc32(f"{name}{JIT}".encode())
        a("s_cselect_b32 s96, 1, 0")
        a(f"s_mul_i32 s97, s41, {1 + 2 * (h & 3)}")
        a("s_add_u32 s97, s97, s46")
        a("s_add_u32 s97, s97, s40")
        a(f"s_and_b32 s97, s97, {7 if h & 4 else 3}")
        a(f"s_cmp_lg_u32 s97, {(h >> 4) & 3}")
        a(f"s_cbranch_scc1 L_jit{njit[0]}")
        for _ in range(1 + ((h >> 8) & 3)): a("s_sleep 100")
        a.lab(f"L_jit{njit[0]}")
        a("s_cmp_lg_u32 s96, 0")
    if DIAG == name: a("s_memrealtime s[80:81]")
    if DIAG == name + "@0":
        a("s_cmp_lg_u32 s50, 0")
        a("s_cbranch_scc1 L_dg0")
        a("s_memrealtime s[80:81]")
        a.lab("L_dg0")
    if STAMP and name in STL:
        i = STL.index(name)
        a(f"{'s_memrealtime' if RTS else 's_memtime'} s[{80+2*i}:{81+2*i}]")

rX, rW, rWS, rWO, rOUT, rDBG, rKV, rBR = 24, 28, 32, 36, 64, 68, 72, 12
XM = 4
sLOC, sRT, sOUTO, sQT, sF1O, sPE = 6, 7, 8, 9, 10, 11
sKVO, sWOS, sWOL, sOO, sF2O, sFB = 16, 17, 18, 19, 22, 23
sx, sidx, sb, srb, shalf, sXS, sw, shl, shs, sg4, sg, sWL, sXL, sWS_, stt, scg, skq, su = range(40, 58)
t0, t1, sDL, t2, sROT, t3 = 58, 59, 60, 61, 62, 63
NONCE = 76; RT = 78
KT = [24, 25, 26, 27, 28]
KP = [24, 26, 28, 30, 44, 52, 54, 20]
L16, IDX, CA, F1A, ONE, L8, MW, MR, PW, PR, TAU = 1, 2, 3, 4, 5, 6, 7, 8, 11, 14, 15
T = 240
XD, WD, XA, WA1, QW, NV, NA, PTA = 16, 18, 16, 20, 23, 232, 234, 235
ACC = 32; FR = 128; P1 = 208
Q = [16, 24, 32, 40]; O = [48, 64, 80, 96]; SB = [112, 128, 144]; KB = [176, 184, 192, 200]; VB = [208, 216, 224, 232]
WA, F2B, TW, OA, WOA, F2A, OUTA, TR = 160, 163, 166, 168, 172, 173, 174, 175
ORD = [0, 2, 3, 1]
LF, LM, C0A = 163, 164, 165
sLS, sLL, sLS2 = 43, 51, 57

def lwait(a, name, off, target, sleep=2, reg=None):
    a(f"s_mov_b32 s{t3}, {SPIN}")
    a.lab(f"{name}_spin")
    a(f"ds_read_b32 v{T+13}, v{reg or CA} offset:{off}")
    a(f"s_sub_u32 s{t3}, s{t3}, 1")
    a("s_cbranch_scc1 L_end")
    a("s_waitcnt lgkmcnt(0)")
    a(f"v_readfirstlane_b32 s{t2}, v{T+13}")
    a(f"s_cmp_ge_u32 s{t2}, {target}")
    if sleep:
        a(f"s_cbranch_scc1 {name}_done")
        a(f"s_sleep {sleep}")
        a(f"s_branch {name}_spin")
        a.lab(f"{name}_done")
    else:
        a(f"s_cbranch_scc0 {name}_spin")
def arrive(a, off=0):
    a("s_mov_b64 exec, 1")
    a(f"ds_add_u32 v{CA}, v{ONE} offset:{off}")
    a("s_mov_b64 exec, -1")
slow = []
def lpre(a, reg=None):
    if INL: a(f"s_mov_b32 s{t3}, {SPIN}")
    a(f"ds_read_b32 v{T+13}, v{reg or CA}")
def lcheck(a, name, target, reg=None):
    if INL:
        a.lab(f"{name}_re")
        a("s_waitcnt lgkmcnt(0)")
        a(f"v_readfirstlane_b32 s{t2}, v{T+13}")
        a(f"s_sub_u32 s{t3}, s{t3}, 1")
        a(f"ds_read_b32 v{T+13}, v{reg or CA}")
        a("s_cbranch_scc1 L_end")
        a(f"s_cmp_ge_u32 s{t2}, {target}")
        a(f"s_cbranch_scc0 {name}_re")
        a.lab(f"{name}_back")
        return
    a("s_waitcnt lgkmcnt(0)")
    a(f"v_readfirstlane_b32 s{t2}, v{T+13}")
    a(f"s_cmp_ge_u32 s{t2}, {target}")
    a(f"s_cbranch_scc0 {name}_slow")
    a.lab(f"{name}_back")
    slow.append((name, target, reg))
def gbar(a, name, k):
    arrive(a)
    lwait(a, name, 0, 4 * k)
def poll_pipe(a, name, vaddr, srd, fl, regs):
    n_ = len(regs)
    a(f"s_mov_b32 s{t3}, {SPIN}")
    for r in regs[:-1]:
        a(f"buffer_load_dwordx2 {vr(r,2)}, v{vaddr}, {S4(srd)}, 0 offen {fl}")
        a(f"s_sleep {PIPE}")
    a.lab(f"{name}_spin")
    for i in range(n_):
        a(f"buffer_load_dwordx2 {vr(regs[(i-1)%n_],2)}, v{vaddr}, {S4(srd)}, 0 offen {fl}")
        a(f"s_waitcnt vmcnt({n_-1})")
        a(f"v_cmp_ne_u64 vcc, {S2(NONCE)}, {vr(regs[i],2)}")
        a(f"s_cbranch_vccz {name}_ok")
    a(f"s_sub_u32 s{t3}, s{t3}, 1")
    a(f"s_cbranch_scc0 {name}_spin")
    a("s_branch L_end")
    a.lab(f"{name}_ok")
def poll(a, name, vaddr, srd, fl="sc1", lanes=4, SLEEP=0):
    a(f"s_mov_b32 s{t3}, {SPIN}")
    if PEX: a(f"s_mov_b64 exec, {(1 << lanes) - 1:#x}")
    if SLEEP: a(f"s_branch {name}_first")
    a.lab(f"{name}_spin")
    if SLEEP:
        a(f"s_sleep {SLEEP}")
        a.lab(f"{name}_first")
    a(f"buffer_load_dwordx2 {vr(T+14,2)}, v{vaddr}, {S4(srd)}, 0 offen {fl}")
    a(f"s_sub_u32 s{t3}, s{t3}, 1")
    a("s_cbranch_scc1 L_end")
    a("s_waitcnt vmcnt(0)")
    a(f"v_cmp_ne_u64 vcc, {S2(NONCE)}, {vr(T+14,2)}")
    a(f"s_cbranch_vccnz {name}_spin")
    if PEX: a("s_mov_b64 exec, -1")

def wbl2(a, tag, wave):
    a(f"s_cmp_lg_u32 s{sw}, {wave}")
    a(f"s_cbranch_scc1 L_wb{tag}")
    a(f"s_cmp_lg_u32 s{sidx}, 3")
    a(f"s_cbranch_scc1 L_wb{tag}")
    a("buffer_wbl2 sc1")
    a.lab(f"L_wb{tag}")

def gen():
    a = A(); n = NAME + "_kernel"
    tails = []; stails = []; nnt = []
    u0, u1, u2, u3, u4 = T, T + 1, T + 2, T + 3, T + 4
    a.raw(f".globl {n}\n" + (".p2align 12\n" if PGA else "") + (f".fill {PAD//4}, 4, 0xbf800000\n" if PAD else "") + f".p2align 8\n.type {n},@function")
    a.lab(n)
    a("s_cmp_ge_u32 s2, 256")
    a("s_cbranch_scc1 L_end")
    a("s_load_dwordx16 s[4:19], s[0:1], 0")
    a("s_load_dwordx2 s[20:21], s[0:1], 64")
    a(f"s_memrealtime {S2(RT)}")
    if STAMP and not RTS: a("s_memtime s[100:101]")
    a(f"s_and_b32 s{sx}, s2, 7")
    a(f"s_lshr_b32 s{sidx}, s2, 3")
    a("v_lshrrev_b32 v1, 6, v0")
    a("v_and_b32 v0, 63, v0")
    a(f"v_readfirstlane_b32 s{sw}, v1")
    if XMAP:
        tab = sum(int(c) << (4 * i) for i, c in enumerate(XMAP))
        assert sorted(XMAP) == list("01234567")
        a(f"s_lshl_b32 s{t0}, s{sx}, 2")
        a(f"s_lshr_b32 s{t0}, {tab:#x}, s{t0}")
        a(f"s_bfe_u32 s{sb}, s{t0}, 0x10002")
        a(f"s_and_b32 s{sg4}, s{t0}, 3")
    else:
        a(f"s_lshr_b32 s{sb}, s{sx}, 2")
        a(f"s_and_b32 s{sg4}, s{sx}, 3")
    a(f"s_lshr_b32 s{srb}, s{sidx}, 1")
    a(f"s_and_b32 s{shalf}, s{sidx}, 1")
    if TLBW:
        a(f"s_cmp_lt_u32 s{sw}, 4")
        a("s_cbranch_scc1 L_load")
        a(f"s_mul_i32 s{t0}, s{srb}, {128*896}")
        a(f"s_cmp_eq_u32 s{sb}, 0")
        a(f"v_mov_b32 v{u0}, s{t0}")
        a(f"v_mul_u32_u24 v{u1}, {7*2688}, v0")
        a("s_waitcnt lgkmcnt(0)")
        a(f"s_cselect_b64 {S2(rX)}, s[4:5], s[10:11]")
        a(f"s_cselect_b64 {S2(rW)}, s[6:7], s[12:13]")
        if TLBW == 1: a("s_mov_b64 exec, 1")
        a(f"global_load_dword v{T+10}, v{u0}, {S2(rX)}")
        a(f"global_load_dword v{T+11}, v{u1}, {S2(rW)}")
        a("s_mov_b64 exec, -1")
        a("s_branch L_comp")
        a.lab("L_load")
    else:
        a(f"s_cmp_ge_u32 s{sw}, 4")
        a("s_cbranch_scc1 L_comp")
    def stamp_init():
        if DIAG: a(f"s_mov_b32 s80, s{RT}")
        if STAMP and STL != ["none"]:
            for k in range(9): a(f"s_mov_b32 s{80+2*k}, s{RT if RTS else 100}")
    def dbg_desc():
        a(f"s_mov_b32 s{rDBG}, s18"); a(f"s_mov_b32 s{rDBG+1}, s19"); a(f"s_mov_b32 s{rDBG+2}, 256"); a(f"s_mov_b32 s{rDBG+3}, 0x00020000")
        a(f"s_lshl_b32 s{sDL}, s{sb}, 3")
    def ws_desc():
        a(f"s_lshl_b32 s{t2}, s{sx}, 21")
        a(f"s_add_u32 s{rWS}, s20, s{t2}")
        a(f"s_addc_u32 s{rWS+1}, s21, 0")
        a(f"s_mov_b32 s{rWS+2}, {2<<20}")
        a(f"s_mov_b32 s{rWS+3}, 0x00020000")
    def ids2a(g, ws=True):
        a(f"s_cmp_eq_u32 s{sb}, 0")
        a(f"s_cselect_b32 s{rWO}, s8, s14")
        a(f"s_cselect_b32 s{rWO+1}, s9, s15")
        a(f"s_mov_b32 s{rWO+2}, 401408")
        a(f"s_mov_b32 s{rWO+3}, 0x00020000")
        a(f"s_mov_b32 s{rOUT}, s16"); a(f"s_mov_b32 s{rOUT+1}, s17"); a(f"s_mov_b32 s{rOUT+2}, {2048*896*2}"); a(f"s_mov_b32 s{rOUT+3}, 0x00020000")
        if ws: ws_desc()
        a(f"s_lshl_b32 s{t2}, s{sb}, 21")
        a(f"s_add_u32 s{t2}, s{t2}, {B_BASE}")
        a(f"s_add_u32 s{rBR}, s20, s{t2}")
        a(f"s_addc_u32 s{rBR+1}, s21, 0")
        a(f"s_mov_b32 s{rBR+2}, {2<<20}")
        a(f"s_mov_b32 s{rBR+3}, 0x00020000")
        a(f"s_mov_b32 s{sg}, {g}")
        a(f"s_and_b32 s{shs}, s{srb}, 1")
        if g: a(f"s_xor_b32 s{shs}, s{shs}, 1")
        a(f"s_lshl_b32 s{shl}, s{shalf}, 1")
        a(f"s_add_u32 s{shl}, s{shl}, s{shs}")
        a(f"s_lshl_b32 s{t2}, s{shl}, 18")
        a(f"s_add_u32 s{rKV}, s{rWS}, s{t2}")
        a(f"s_addc_u32 s{rKV+1}, s{rWS+1}, 0")
        a(f"s_mov_b32 s{rKV+2}, 262144")
        a(f"s_mov_b32 s{rKV+3}, 0x00020000")
        a(f"s_and_b32 s{skq}, s{sw}, 3")
        a(f"s_lshl_b32 s{sKVO}, s{skq}, 16")
        a(f"v_and_b32 v{u0}, 15, v0")
        a(f"v_lshlrev_b32 v{u0}, 3, v{u0}")
        a(f"s_lshl_b32 s{t0}, s{shalf}, 2")
        a(f"s_add_u32 s{t0}, s{t0}, s{skq}")
        a(f"s_mul_i32 s{t0}, s{t0}, {F1SP}")
        a(f"s_add_u32 s{t0}, s{t0}, {X_F1}")
        a(f"v_add_u32 v{F1A}, s{t0}, v{u0}")
    def ids2b(g):
        a(f"v_lshlrev_b32 v{L16}, 4, v0")
        a(f"v_lshlrev_b32 v{L8}, 3, v0")
        a(f"v_lshlrev_b32 v{u0}, 2, v0")
        a(f"v_mov_b32 v{IDX}, 0xdddddddd")
        pb = PB1 if g else PB0; mx = MX + 1024 * g
        a(f"s_lshl_b32 s{t1}, s{skq}, 8")
        a(f"s_add_u32 s{t1}, s{t1}, {mx}")
        a(f"v_add_u32 v{MW}, s{t1}, v{u0}")
        a(f"s_mul_i32 s{t1}, s{skq}, 12288")
        a(f"s_add_u32 s{t1}, s{t1}, {pb}")
        a(f"v_add_u32 v{PR}, s{t1}, v{L16}")
        for i in range(3):
            a(f"s_add_u32 s{t0}, s{skq}, {1+i}")
            a(f"s_and_b32 s{t0}, s{t0}, 3")
            a(f"s_lshl_b32 s{t1}, s{t0}, 8")
            a(f"s_add_u32 s{t1}, s{t1}, {mx}")
            a(f"v_add_u32 v{MR+i}, s{t1}, v{u0}")
            a(f"s_mul_i32 s{t1}, s{t0}, 12288")
            a(f"s_add_u32 s{t1}, s{t1}, {pb + 4096*i}")
            a(f"v_add_u32 v{PW+i}, s{t1}, v{L16}")
        a(f"v_mov_b32 v{CA}, {GBC + 4*g}")
        a(f"v_mov_b32 v{ONE}, 1")
        a(f"s_lshl_b32 s{sQT}, s{srb}, 2")
        a(f"s_add_u32 s{sQT}, s{sQT}, s{skq}")
        a(f"s_lshl_b32 s{t0}, s{sg4}, 2")
        a(f"s_lshr_b32 s{t0}, {sum((2*ORD[g_]) << (4*g_) for g_ in range(4)):#x}, s{t0}")
        a(f"s_and_b32 s{t0}, s{t0}, 7")
        a(f"s_add_u32 s{t0}, s{t0}, s{shalf}")
        a(f"s_lshl_b32 s{t1}, s{shs}, 3")
        a(f"s_add_u32 s{t0}, s{t0}, s{t1}")
        a(f"s_lshl_b32 s{t1}, s{sQT}, 4")
        a(f"s_add_u32 s{t1}, s{t1}, s{t0}")
        a(f"s_mul_i32 s{sOO}, s{t1}, 1792")
        a(f"s_mul_i32 s{sF2O}, s{t1}, {F2SP}")
        a(f"s_add_u32 s{sF2O}, s{sF2O}, {B_F2}")
    def late_addr():
        a(f"s_lshl_b32 s{t0}, s{sg4}, 3")
        a(f"s_lshr_b32 s{t1}, s{sidx}, 2")
        a(f"s_add_u32 s{t0}, s{t0}, s{t1}")
        a(f"s_and_b32 s{t1}, s{t0}, 2")
        a(f"s_xor_b32 s{t1}, s{t1}, 2")
        a(f"s_lshl_b32 s{t1}, s{t1}, 2")
        a(f"s_lshl_b32 s{t0}, s{t0}, 5")
        a(f"s_add_u32 s{t0}, s{t0}, s{t1}")
        a(f"s_and_b32 s{t1}, s{skq}, 1")
        a(f"s_mul_i32 s{sLL}, s{t1}, 14336")
        a(f"s_lshl_b32 s{t1}, s{t1}, 4")
        a(f"s_add_u32 s{t0}, s{t0}, s{t1}")
        a(f"s_and_b32 s{t1}, s{skq}, 2")
        a(f"s_lshl_b32 s{t1}, s{t1}, 1")
        a(f"s_add_u32 s{t0}, s{t0}, s{t1}")
        a(f"v_and_b32 v{LF}, 3, v0")
        a(f"v_add_u32 v{LF}, s{t0}, v{LF}")
        a(f"v_mul_u32_u24 v{LF}, {F2SP}, v{LF}")
        a(f"v_add_u32 v{LF}, {B_F2}, v{LF}")
        a(f"s_mul_i32 s{sLS}, s{t0}, 1792")
        a(f"s_add_u32 s{sLS2}, s{sLS}, 4096")
        a(f"s_mul_i32 s{t1}, s{t1}, 1792")
        a(f"s_add_u32 s{sLL}, s{sLL}, s{t1}")
        a(f"s_add_u32 s{sLL}, s{sLL}, 28672")
        a(f"s_lshl_b32 s{t1}, s{skq}, 2")
        a(f"s_add_u32 s{t1}, s{t1}, {GBC + 16}")
        a(f"v_mov_b32 v{LM}, s{t1}")
        a(f"v_mov_b32 v{C0A}, {GBC}")
    def pre2():
        late_addr()
        for r in range(4): a(f"v_mov_b32 v{SB[0]+r}, 0")
        a("s_nop 1")
        for i in range(4): a(f"v_mfma_f32_32x32x16_bf16 {vr(O[i],16)}, {vr(SB[0],4)}, {vr(SB[0],4)}, 0")
        if STAMP: a("s_mov_b64 s[2:3], s[20:21]")
        a(f"s_add_u32 s{t0}, s{rKV}, s{sKVO}")
        a(f"s_addc_u32 s{t1}, s{rKV+1}, 0")
        for k in range(8):
            a(f"s_add_u32 s{KP[k]}, s{t0}, {8192*k + 4096}")
            a(f"s_addc_u32 s{KP[k]+1}, s{t1}, 0")
        if WOT >= 0:
            a(f"s_lshl_b32 s{t0}, s{sidx}, 2")
            a(f"s_add_u32 s{t0}, s{t0}, s{skq}")
            a(f"s_mul_i32 s{t0}, s{t0}, 25")
            a(f"v_min_u32 v{TAU}, 24, v0")
            a(f"v_add_u32 v{TAU}, s{t0}, v{TAU}")
            a(f"v_lshlrev_b32 v{TAU}, 7, v{TAU}")
    def getq(g):
        a(f"s_lshl_b32 s{t1}, s{shs}, 13")
        a(f"s_add_u32 s{t1}, s{t1}, {QX}")
        for i in range(4):
            a(f"s_add_u32 s{t0}, s{skq}, {1+i}")
            a(f"s_and_b32 s{t0}, s{t0}, 3")
            a(f"s_lshl_b32 s{t0}, s{t0}, 11")
            a(f"s_add_u32 s{t0}, s{t0}, s{t1}")
            a(f"v_add_u32 v{u0+i}, s{t0}, v{L16}")
        a(f"v_mov_b32 v{T+4}, {GBC + 8}")
        a(f"v_mov_b32 v{T+5}, {GBC + 12 if g else GBC - 4}")
    def getq2():
        lwait(a, "L_q", 0, 4, 0 if QFAST else 1, T + 4)
        for i in (3, 0, 1, 2):
            a(f"ds_read_b128 {vr(Q[i],4)}, v{u0+i}")
            a(f"ds_read_b128 {vr(Q[i]+4,4)}, v{u0+i} offset:1024")
    def nonce(tag):
        a(f"s_mov_b32 s{t3}, {SPIN}")
        a.lab(f"L_nonce{tag}")
        a(f"v_readfirstlane_b32 s{NONCE}, v{NV}")
        a(f"v_readfirstlane_b32 s{NONCE+1}, v{NV+1}")
        a(f"s_cmp_lg_u32 s{NONCE}, 0")
        a(f"s_cselect_b32 s{t2}, s{NONCE+1}, 0")
        a(f"s_cmp_lg_u32 s{t2}, 0")
        a(f"s_cbranch_scc0 L_nonce_retry{tag}")
    a(f"v_lshrrev_b32 v{u0}, 3, v0")
    a(f"v_lshrrev_b32 v{u1}, 4, v0")
    a(f"v_and_b32 v{u2}, 7, v0")
    a(f"s_lshl_b32 s{t0}, s{srb}, 7")
    a(f"s_lshl_b32 s{t1}, s{sw}, 5")
    a(f"s_add_u32 s{t0}, s{t0}, s{t1}")
    a(f"v_add_u32 v{u3}, s{t0}, v{u0}")
    a(f"v_mul_u32_u24 v{u3}, 896, v{u3}")
    a(f"v_xor_b32 v{u4}, v{u2}, v{u1}")
    a(f"v_lshl_add_u32 v{XD}, v{u4}, 4, v{u3}")
    a(f"v_xor_b32 v{XD+1}, 64, v{XD}")
    a(f"v_add_u32 v{XD+1}, 7168, v{XD+1}")
    a(f"s_mul_i32 s{t0}, s{sg4}, 224")
    a(f"s_mul_i32 s{t1}, s{sw}, {16*2688}")
    a(f"s_add_u32 s{t0}, s{t0}, s{t1}")
    a(f"s_mul_i32 s{t1}, s{shalf}, 896")
    a(f"s_add_u32 s{t1}, s{t1}, s{t0}")
    a(f"s_add_u32 s{t1}, s{t1}, 896")
    a(f"v_lshlrev_b32 v{u3}, 2, v{u1}")
    a(f"v_and_b32 v{u4}, 15, v0")
    a(f"v_xor_b32 v{u4}, v{u4}, v{u3}")
    a(f"v_cmp_lt_u32 vcc, 13, v{u4}")
    a(f"v_mul_u32_u24 v{u1}, 2688, v{u1}")
    a(f"v_lshl_add_u32 v{u1}, v{u4}, 4, v{u1}")
    a(f"v_add_u32 v{WD}, s{t1}, v{u1}")
    a(f"v_bfrev_b32 v{u4}, 2")
    a(f"v_cndmask_b32 v{WD}, v{WD}, v{u4}, vcc")
    a(f"s_mul_i32 s{t1}, s{shalf}, 112")
    a(f"s_add_u32 s{t1}, s{t1}, s{t0}")
    a(f"v_and_b32 v{u3}, 4, v{u3}")
    a(f"v_xor_b32 v{u2}, v{u2}, v{u3}")
    a(f"v_cmp_lt_u32 vcc, 6, v{u2}")
    a(f"v_mul_u32_u24 v{u0}, 2688, v{u0}")
    a(f"v_lshl_add_u32 v{u0}, v{u2}, 4, v{u0}")
    a(f"v_add_u32 v{WD+1}, s{t1}, v{u0}")
    a(f"v_cndmask_b32 v{WD+1}, v{WD+1}, v{u4}, vcc")
    if ROTN > 1:
        a(f"s_mul_i32 s{sROT}, s{srb}, {ROTA}")
        if ROTB:
            a(f"s_mul_i32 s{t0}, s{shalf}, {ROTB}")
            a(f"s_add_u32 s{sROT}, s{sROT}, s{t0}")
        a(f"s_mul_i32 s{t2}, s{sg4}, {ROTC}")
        a(f"s_add_u32 s{sROT}, s{sROT}, s{t2}")
        if ROTN & (ROTN - 1) == 0:
            a(f"s_and_b32 s{sROT}, s{sROT}, {ROTN-1}")
        else:
            a(f"s_mul_i32 s{t2}, s{sROT}, {(65536 + ROTN - 1)//ROTN}")
            a(f"s_lshr_b32 s{t2}, s{t2}, 16")
            a(f"s_mul_i32 s{t2}, s{t2}, {ROTN}")
            a(f"s_sub_u32 s{sROT}, s{sROT}, s{t2}")
        if ROTS != 1: a(f"s_mul_i32 s{sROT}, s{sROT}, {ROTS}")
    else:
        a(f"s_mov_b32 s{sROT}, 0")
    assert (ROTN - 1) * ROTS < 7
    a(f"s_lshl_b32 s{sXL}, s{sw}, 12")
    a(f"s_add_u32 s{sXL}, s{sXL}, {XOFF}")
    a(f"s_mul_i32 s{sWL}, s{sw}, 6144")
    a(f"s_mov_b32 s{rX+2}, 1835008")
    a(f"s_mov_b32 s{rX+3}, 0x00020000")
    a(f"s_mov_b32 s{rW+2}, 1204224")
    a(f"s_mov_b32 s{rW+3}, 0x00020000")
    a(f"s_cmp_eq_u32 s{sb}, 0")
    a("s_waitcnt lgkmcnt(0)")
    a(f"s_cselect_b32 s{rX}, s4, s10")
    a(f"s_cselect_b32 s{rX+1}, s5, s11")
    a(f"s_cselect_b32 s{rW}, s6, s12")
    a(f"s_cselect_b32 s{rW+1}, s7, s13")
    stamp_init()
    stamp(a, "karg")
    def one(kind, i, wl=sWL, ws=sWS_, add=0, first=False):
        xf, wf = (XF0, WF0) if first else (XF, WF)
        if kind == "x":
            a(f"s_add_u32 m0, s{sXL}, {1024*i}")
            a(f"s_add_u32 s{t0}, s{sXS}, {14336*(i//2)}")
            a(f"buffer_load_dwordx4 v{XD+(i&1)}, {S4(rX)}, s{t0} offen {xf} lds")
        else:
            G, q = divmod(i, 3)
            a(f"s_add_u32 m0, s{wl}, {1024*i + add}")
            a(f"s_add_u32 s{t0}, s{ws}, {(8*G + (4*q if q < 2 else 0))*2688}")
            a(f"buffer_load_dwordx4 v{WD+(q==2)}, {S4(rW)}, s{t0} offen {wf} lds")
    sB4, sB5, sB6 = scg, su, sFB
    def issue(first):
        a(f"s_lshl_b32 s{sXS}, s{sROT}, 7")
        a(f"s_mul_i32 s{sWS_}, s{sROT}, 172032")
        for kind, i in [("x", 0), ("w", 0), ("x", 1), ("w", 1), ("x", 2), ("w", 3), ("x", 3), ("w", 4)]: one(kind, i, first=first)
        if not first:
            a(f"s_mov_b32 s{sB4}, s{sB5}")
            a(f"s_mov_b32 s{sB5}, s{sB6}")
            a(f"s_mov_b32 s{sB6}, s{sWS_}")
            a(f"s_cmp_ge_u32 s{stt}, 4")
            a("s_cbranch_scc1 L_nob")
        one("w", 2, first=first); one("w", 5, first=first)
        if not first:
            a("s_branch L_nobr")
            a.lab("L_nob")
            a("s_waitcnt vmcnt(8)")
            a.lab("L_nobr")
        a(f"s_add_u32 s{sROT}, s{sROT}, 1")
        a(f"s_cmp_eq_u32 s{sROT}, 7")
        a(f"s_cselect_b32 s{sROT}, 0, s{sROT}")
        if first:
            a(f"s_add_u32 s{sWL}, s{sWL}, {STAGE}")
            a(f"s_add_u32 s{sXL}, s{sXL}, {STAGE}")
        else:
            a(f"s_cmp_ge_u32 s{sWL}, {2*STAGE}")
            a(f"s_mov_b32 s{t0}, {STAGE}")
            a(f"s_cselect_b32 s{t0}, {(-2*STAGE) & 0xffffffff:#x}, s{t0}")
            a(f"s_add_u32 s{sWL}, s{sWL}, s{t0}")
            a(f"s_add_u32 s{sXL}, s{sXL}, s{t0}")
    if LPR: a(f"s_setprio {LPR}")
    issue(True)
    stamp(a, "iss0")
    if SCP:
        a("s_getpc_b64 s[0:1]")
        a("s_and_b32 s0, s0, 0xfffff000")
        a(f"s_lshl_b32 s{t0}, s{sidx}, 1")
        a(f"s_and_b32 s{t1}, s{sw}, 1")
        a(f"s_add_u32 s{t0}, s{t0}, s{t1}")
        a(f"s_lshl_b32 s{t0}, s{t0}, 6")
        a(f"s_lshr_b32 s{t1}, s{sw}, 1")
        a(f"s_mul_i32 s{t1}, s{t1}, 12288")
        a(f"s_add_u32 s{t0}, s{t0}, s{t1}")
        a(f"s_add_u32 s0, s0, s{t0}")
        a("s_addc_u32 s1, s1, 0")
        for k in range(3): a(f"s_load_dword s3, s[0:1], {4096*k}")
    if TWO:
        issue(True)
        if TWO == 2:
            a("s_waitcnt vmcnt(10)")
            a("s_barrier")
    a(f"s_mov_b32 s{stt}, {2 if TWO else 1}")
    a(f"s_mov_b32 s{su}, 0")
    a(f"s_mov_b32 s{sFB}, 0")
    dbg_desc()
    ids2a(0)
    a(f"s_lshr_b32 s{t0}, s{srb}, 1")
    a(f"s_lshl_b32 s{t0}, s{t0}, 7")
    a(f"s_add_u32 s{sWOS}, s{t0}, s{sKVO}")
    a(f"v_lshlrev_b32 v{PTA}, 10, v0")
    ids2b(0)
    a(f"v_lshrrev_b32 v{u2}, 5, v0")
    a(f"s_and_b32 s{t1}, s{sidx}, 3")
    a(f"s_cmp_eq_u32 s{t1}, 3")
    a(f"s_cselect_b32 s{t0}, 8, 16")
    a(f"s_lshl_b32 s{t1}, s{t1}, 8")
    a(f"v_lshrrev_b32 v{u0}, 4, v0")
    a(f"v_lshlrev_b32 v{u1}, 2, v{u0}")
    a(f"v_and_b32 v{u3}, 15, v0")
    a(f"v_xor_b32 v{u1}, v{u1}, v{u3}")
    a(f"v_cmp_le_u32 vcc, s{t0}, v{u1}")
    a(f"v_mul_u32_u24 v{u0}, 896, v{u0}")
    a(f"v_lshl_add_u32 v{u0}, v{u1}, 4, v{u0}")
    a(f"v_add_u32 v{WOA}, s{t1}, v{u0}")
    a(f"v_bfrev_b32 v{u0}, 2")
    a(f"v_cndmask_b32 v{WOA}, v{WOA}, v{u0}, vcc")
    a(f"s_lshl_b32 s{t2}, s{skq}, 2")
    a(f"s_cmp_lt_u32 s{t2}, s{t0}")
    a(f"s_cselect_b32 s{XM}, 1, 0")
    a(f"s_mul_i32 s{sOUTO}, s{sb}, 896")
    a(f"s_add_u32 s{sOUTO}, s{sOUTO}, s{t1}")
    a(f"s_lshl_b32 s{t1}, s{skq}, 6")
    a(f"s_add_u32 s{sOUTO}, s{sOUTO}, s{t1}")
    a(f"s_lshl_b32 s{sRT}, s{sg4}, 3")
    a(f"s_lshr_b32 s{t0}, s{sidx}, 2")
    a(f"s_add_u32 s{sRT}, s{sRT}, s{t0}")
    a(f"s_bfe_u32 s{sPE}, s{sRT}, 0x10001")
    a(f"s_lshl_b32 s{sRT}, s{sRT}, 1")
    a(f"v_bfe_u32 v{u0}, v0, 2, 2")
    a(f"v_xor_b32 v{u1}, s{skq}, v{u0}")
    a(f"v_lshlrev_b32 v{u1}, 6, v{u1}")
    a(f"v_lshl_add_u32 v{u1}, v{u0}, 8, v{u1}")
    a(f"v_and_b32 v{u0}, 1, v0")
    a(f"v_lshl_add_u32 v{u1}, v{u0}, 5, v{u1}")
    a(f"v_bfe_u32 v{u0}, v0, 4, 1")
    a(f"v_lshl_add_u32 v{u1}, v{u0}, 4, v{u1}")
    a(f"v_bfe_u32 v{u0}, v0, 1, 1")
    a(f"v_lshl_add_u32 v{u1}, v{u0}, 3, v{u1}")
    HSTEP = [4, 28, 56]
    for t in range(3):
        a(f"v_mul_u32_u24 v{u0}, {HSTEP[t]*256}, v{u2}")
        a(f"v_add_u32 v{WA+t}, v{u1}, v{u0}")
    a(f"v_mov_b32 v{OA}, v{L16}")
    a(f"v_and_b32 v{u0}, 31, v0")
    a(f"v_mul_u32_u24 v{u1}, 1792, v{u2}")
    a(f"v_lshl_add_u32 v{OA+1}, v{u0}, 4, v{u1}")
    a(f"v_mul_u32_u24 v{u1}, 3584, v{u2}")
    a(f"v_lshl_add_u32 v{OA+2}, v{u0}, 3, v{u1}")
    a(f"s_lshl_b32 s{t0}, s{skq}, 12")
    a(f"s_add_u32 s{t0}, s{t0}, {TX}")
    a(f"v_add_u32 v{TR}, s{t0}, v{L16}")
    a(f"v_bfe_u32 v{u1}, v0, 1, 2")
    a(f"v_lshlrev_b32 v{u3}, 1, v{u2}")
    a(f"v_xor_b32 v{u1}, v{u1}, v{u3}")
    a(f"v_lshlrev_b32 v{u1}, 4, v{u1}")
    a(f"v_lshl_add_u32 v{u1}, v{u0}, 6, v{u1}")
    a(f"v_add_u32 v{TW}, s{t0}, v{u1}")
    a(f"v_xor_b32 v{TW+1}, 16, v{TW}")
    a(f"v_lshrrev_b32 v{u0}, 2, v0")
    a(f"s_lshl_b32 s{t0}, s{sRT}, 5")
    a(f"v_add_u32 v{u0}, s{t0}, v{u0}")
    a(f"v_mul_u32_u24 v{u0}, 1792, v{u0}")
    a(f"v_lshrrev_b32 v{u1}, 3, v0")
    a(f"v_xor_b32 v{u1}, v{u1}, v0")
    a(f"v_and_b32 v{u1}, 3, v{u1}")
    a(f"v_lshl_add_u32 v{OUTA}, v{u1}, 4, v{u0}")
    a(f"s_lshr_b32 s{t1}, s{skq}, 1")
    a(f"s_add_u32 s{t0}, s{sRT}, s{t1}")
    a(f"s_lshl_b32 s{t0}, s{t0}, 4")
    a(f"s_lshl_b32 s{t1}, s{sPE}, 3")
    a(f"s_add_u32 s{t0}, s{t0}, s{t1}")
    a(f"s_and_b32 s{t1}, s{skq}, 1")
    a(f"s_lshl_b32 s{t1}, s{t1}, 1")
    a(f"s_lshl_b32 s{t1}, s{t1}, 1")
    a(f"s_add_u32 s{sRT}, s{t0}, s{t1}")
    a(f"v_and_b32 v{u0}, 3, v0")
    a(f"v_add_u32 v{u0}, s{sRT}, v{u0}")
    a(f"v_mul_u32_u24 v{u0}, {F2SP}, v{u0}")
    a(f"v_add_u32 v{F2A}, {B_F2}, v{u0}")
    getq(0)
    if STL_:
        a(f"s_add_u32 s0, s{rKV}, s{sWOS}")
        a(f"s_addc_u32 s1, s{rKV+1}, 0")
    if VIS:
        a("s_branch L_vis")
        a.lab("L_visb")
    stamp(a, "lsetup")
    if TWO == 1:
        a("s_waitcnt vmcnt(10)")
        a("s_barrier")
    a.lab("L_ld")
    issue(False)
    a(f"s_add_u32 s{stt}, s{stt}, 1")
    if STL_:
        a(f"s_cmp_lt_u32 s{stt}, {ST0}")
        a("s_cbranch_scc1 L_nost")
        for e_ in range(STL_):
            a(f"s_load_dword s3, s[0:1], {1024*e_}")
            a(f"s_load_dword s3, s[0:1], {1024*e_ + 64}")
        a(f"s_add_u32 s0, s0, {1024*STL_}")
        a("s_addc_u32 s1, s1, 0")
        a.lab("L_nost")
    if SLD:
        a(f"s_cmp_lg_u32 s{stt}, {SLD}")
        a("s_cbranch_scc1 L_nosl")
        a(f"s_lshl_b32 s{t0}, s{sg4}, 5")
        a(f"s_add_u32 s{t0}, s{t0}, 128")
        a(f"s_load_dwordx2 {S2(NONCE)}, {S2(rDBG)}, s{sDL} {SGL}")
        a(f"s_load_dwordx8 s[88:95], {S2(rDBG)}, s{t0} {SGL}")
        a.lab("L_nosl")
    a(f"s_cmp_lt_u32 s{stt}, 7")
    a("s_waitcnt vmcnt(10)")
    a("s_barrier")
    a("s_cbranch_scc1 L_ld")
    a(f"s_mul_i32 s{sWL}, s{sw}, 6144")
    for ws, st_ in ((sB6, 0), (sB4, 1), (sB5, 2)):
        one("w", 2, sWL, ws, st_ * STAGE); one("w", 5, sWL, ws, st_ * STAGE)
    if not SLD: a(f"buffer_load_dwordx2 {vr(NV,2)}, off, {S4(rDBG)}, s{sDL} sc1")
    m_ = (1 << max(1, 4 * PRET)) - 1
    def touch():
        a(f"buffer_load_dword v{T+9}, v{F1A}, {S4(rWS)}, 0 offen sc1")
        a(f"s_mov_b32 exec_lo, {m_ & 0xffffffff:#x}")
        a(f"s_mov_b32 exec_hi, {m_ >> 32:#x}")
        a(f"buffer_load_dword v{T+8}, v{PTA}, {S4(rKV)}, s{sWOS} offen {TF}")
        a("s_mov_b64 exec, -1")
    if STL_: a(f"buffer_load_dword v{T+9}, v{F1A}, {S4(rWS)}, 0 offen sc1")
    elif TEAR != 1: touch()
    NX = (2 if STL_ else 1 if TEAR == 1 else 3) - (1 if SLD else 0)
    if SLD:
        a(f"s_getreg_b32 s{t2}, hwreg(HW_REG_XCC_ID)")
        a(f"s_and_b32 s{t2}, s{t2}, 15")
        a(f"s_lshl_b32 s{t0}, s{sx}, 4")
        a(f"s_or_b32 s{t2}, s{t2}, s{t0}")
        a(f"s_or_b32 s{t2}, s{t2}, 0x80")
        a(f"s_mul_i32 s{t2}, s{t2}, 0x01010101")
        a(f"s_lshl_b32 s{t0}, s{sw}, 4")
        a(f"s_add_u32 s{t0}, s{t0}, {NRC}")
        a(f"v_mov_b32 v{T+6}, s{t0}")
        a("s_waitcnt lgkmcnt(0)")
        a(f"s_xor_b32 s{t1}, s88, s{t2}")
        for k in range(89, 96):
            a(f"s_xor_b32 s{t0}, s{k}, s{t2}")
            a(f"s_or_b32 s{t1}, s{t1}, s{t0}")
        a(f"v_mov_b32 v{NV}, s{NONCE}")
        a(f"v_mov_b32 v{NV+1}, s{NONCE+1}")
        a(f"v_mov_b32 v{NV+2}, s{t1}")
        a(f"ds_write_b96 v{T+6}, {vr(NV,3)}")
        a("s_waitcnt lgkmcnt(0)")
    a(f"s_waitcnt vmcnt({6 + NX})")
    stamp(a, "lw6")
    a("s_barrier")
    if LPR: a("s_setprio 0")
    pre2()
    if B2:
        a(f"s_waitcnt vmcnt({NX + 2})")
        a("s_barrier")
    a(f"s_waitcnt vmcnt({NX})")
    a("s_barrier")
    def touch2():
        m2 = ((1 << (4 * PRET2)) - 1) & ~m_
        a(f"s_mov_b32 exec_lo, {m2 & 0xffffffff:#x}")
        a(f"s_mov_b32 exec_hi, {m2 >> 32:#x}")
        a(f"buffer_load_dword v{T+10}, v{PTA}, {S4(rKV)}, s{sWOS} offen sc1")
        a("s_mov_b64 exec, -1")
    if PRET2 and T2POS == "b6": touch2()
    if not SLD: a(f"s_waitcnt vmcnt({NX - 1})")
    nonce("L")
    if PRET2 and T2POS == "late": touch2()
    a("s_setprio 2")
    stamp(a, "lready")
    a("s_branch L_ph2")

    a.lab("L_comp")
    a("s_setprio 3")
    a(f"s_getreg_b32 s{t2}, hwreg(HW_REG_XCC_ID)")
    a(f"s_and_b32 s{t2}, s{t2}, 15")
    a(f"s_lshl_b32 s{t0}, s{sx}, 4")
    a(f"s_or_b32 s{t2}, s{t2}, s{t0}")
    a(f"s_or_b32 s{t2}, s{t2}, 0x80")
    a(f"s_lshl_b32 s{t1}, s{sg4}, 5")
    a(f"s_add_u32 s{t1}, s{t1}, 128")
    a(f"v_mov_b32 v{NV}, s{t2}")
    if not SLD:
        a(f"v_and_b32 v{NA}, 3, v0")
        a(f"v_lshlrev_b32 v{NA}, 3, v{NA}")
        a(f"v_add_u32 v{NA}, s{t1}, v{NA}")
    a(f"s_add_u32 s{t1}, s{t1}, s{sidx}")
    a("v_mov_b32 v238, 0")
    a("v_mov_b32 v239, 0")
    a("s_waitcnt lgkmcnt(0)")
    def ftouch(pairs, wave, tag):
        a(f"s_cmp_lg_u32 s{sw}, {wave}")
        a(f"s_cbranch_scc1 L_ft{tag}")
        a(f"s_add_u32 s{t0}, s{sg4}, 1")
        a(f"s_and_b32 s{t0}, s{t0}, 2")
        a(f"s_cbranch_scc1 L_ft{tag}")
        a(f"s_and_b32 s{t0}, s{sg4}, 1")
        a(f"s_lshl_b32 s{t0}, s{t0}, 5")
        a(f"s_add_u32 s{t0}, s{t0}, s{sidx}")
        a(f"v_and_b32 v{T+6}, 31, v0")
        a(f"v_lshrrev_b32 v{T+7}, 5, v0")
        a(f"v_mul_u32_u24 v{T+8}, 896, v{T+6}")
        a(f"v_lshl_add_u32 v{T+8}, v{T+7}, 7, v{T+8}")
        a(f"v_min_u32 v{T+6}, 20, v{T+6}")
        a(f"v_mul_u32_u24 v{T+7}, 172032, v{T+7}")
        a(f"v_lshl_add_u32 v{T+9}, v{T+6}, 7, v{T+7}")
        a(f"s_mul_i32 s{t3}, s{t0}, {32*896}")
        a(f"s_mul_i32 s{t0}, s{t0}, 2688")
        for pr in pairs:
            c_ = 2 * int(pr) - 1
            a(f"s_add_u32 s{sROT}, s{t0}, {c_*172032}")
            a(f"buffer_load_dword v{T+10}, v{T+9}, {S4(rW)}, s{sROT} offen")
            a(f"buffer_load_dword v{T+11}, v{T+8}, {S4(rX)}, s{t3} offen offset:{c_*128}")
        a.lab(f"L_ft{tag}")
    if FT:
        a(f"s_cmp_eq_u32 s{sb}, 0")
        a(f"s_cselect_b32 s{rX}, s4, s10")
        a(f"s_cselect_b32 s{rX+1}, s5, s11")
        a(f"s_cselect_b32 s{rW}, s6, s12")
        a(f"s_cselect_b32 s{rW+1}, s7, s13")
        a(f"s_mov_b32 s{rX+2}, 1835008")
        a(f"s_mov_b32 s{rX+3}, 0x00020000")
        a(f"s_mov_b32 s{rW+2}, 1204224")
        a(f"s_mov_b32 s{rW+3}, 0x00020000")
        ftouch(FT.split("/")[0], 5, "a")
    dbg_desc()
    if not SLD:
        a(f"s_mul_i32 s{XM}, s{t2}, 0x01010101")
        a(f"s_mov_b32 s{XM+1}, s{XM}")
    a("s_mov_b64 exec, 1")
    if not SLD: a(f"v_mov_b32 v{NA}, s{sDL}")
    a(f"s_cmp_lg_u32 s{sw}, 4")
    a("s_cbranch_scc1 L_noreg")
    a(f"buffer_store_byte v{NV}, off, {S4(rDBG)}, s{t1}")
    if UBY: a(f"buffer_load_ubyte v{T+12}, off, {S4(rDBG)}, s{t1} sc1")
    a(f"s_cmp_lg_u32 s{sidx}, 0")
    a("s_cbranch_scc1 L_noreg")
    a(f"s_or_b32 s{t0}, s{RT}, 1")
    a(f"s_or_b32 s{t2}, s{RT+1}, 1")
    a(f"v_mov_b32 v236, s{t0}")
    a(f"v_mov_b32 v237, s{t2}")
    a(f"buffer_atomic_cmpswap_x2 v[236:239], off, {S4(rDBG)}, s{sDL} sc1")
    a.lab("L_noreg")
    a("s_mov_b64 exec, -1")
    stamp_init()
    a(f"s_and_b32 s{stt}, s{sw}, 1")
    a(f"s_bfe_u32 s{scg}, s{sw}, 0x10001")
    a(f"v_and_b32 v{u0}, 31, v0")
    a(f"v_bfe_u32 v{u1}, v0, 1, 3")
    a(f"v_lshrrev_b32 v{u2}, 5, v0")
    a(f"v_xor_b32 v{u1}, v{u1}, v{u2}")
    a(f"v_lshlrev_b32 v{u1}, 4, v{u1}")
    a(f"v_lshl_add_u32 v{u1}, v{u0}, 7, v{u1}")
    a(f"s_lshl_b32 s{t0}, s{stt}, 13")
    a(f"s_add_u32 s{t0}, s{t0}, {XOFF}")
    for ks in range(4):
        a(f"v_xor_b32 v{XA+ks}, {32*ks}, v{u1}")
        a(f"v_add_u32 v{XA+ks}, s{t0}, v{XA+ks}")
    a(f"v_bfe_u32 v{u0}, v0, 4, 1")
    a(f"v_and_b32 v{u1}, 3, v0")
    a(f"v_lshlrev_b32 v{u1}, 3, v{u1}")
    a(f"v_lshl_add_u32 v{u0}, v{u0}, 5, v{u1}")
    a(f"s_mul_i32 s{t0}, s{scg}, 112")
    a(f"v_add_u32 v{WA1}, s{t0}, v{u0}")
    a(f"v_add_u32 v{WA1+1}, 56, v{WA1}")
    a(f"s_mul_i32 s{t0}, s{scg}, 56")
    a(f"v_add_u32 v{WA1+2}, s{t0}, v{u0}")
    a("s_mov_b32 exec_lo, 0x88880000")
    a("s_mov_b32 exec_hi, 0x88880000")
    a(f"v_or_b32 v{WA1}, 192, v{WA1}")
    a(f"v_or_b32 v{WA1+1}, 192, v{WA1+1}")
    a(f"v_or_b32 v{WA1+2}, 64, v{WA1+2}")
    a("s_mov_b64 exec, -1")
    a(f"v_bfe_u32 v{u1}, v0, 2, 2")
    a(f"v_mul_u32_u24 v{u2}, 3072, v{u2}")
    a(f"v_lshl_add_u32 v{u3}, v{u1}, 8, v{u2}")
    a(f"v_lshlrev_b32 v{u4}, 6, v{u1}")
    for c in range(2):
        a(f"v_xor_b32 v{WA1+c}, v{WA1+c}, v{u4}")
        a(f"v_add_u32 v{WA1+c}, v{WA1+c}, v{u3}")
    a(f"v_lshl_add_u32 v{u3}, v{u1}, 7, v{u2}")
    a(f"v_lshlrev_b32 v{u4}, 5, v{u1}")
    a(f"v_and_b32 v{u4}, 64, v{u4}")
    a(f"v_xor_b32 v{WA1+2}, v{WA1+2}, v{u4}")
    a(f"v_add_u32 v{WA1+2}, v{WA1+2}, v{u3}")
    Z = FR + 60
    for r in range(20): a(f"v_mov_b32 v{Z+r}, 0")
    a(f"v_mov_b32 v{u0}, {GBC}")
    a(f"ds_write_b128 v{u0}, {vr(Z+16,4)}")
    a(f"ds_write_b128 v{u0}, {vr(Z+16,4)} offset:16")
    for t_ in range(6): a(f"v_mfma_f32_32x32x16_bf16 {vr(ACC+16*t_,16)}, {vr(Z+16,4)}, {vr(Z+16,4)}, 0")
    a("s_mov_b32 exec_hi, 0")
    a(f"v_mov_b32 v{Z}, 0x3f80")
    a(f"v_mov_b32 v{Z+4}, 0x3f80")
    a("s_mov_b32 exec_lo, 0x10000000")
    a(f"v_mov_b32 v{Z+8}, 0x3f80")
    a(f"v_mov_b32 v{Z+12}, 0x3f80")
    a("s_mov_b64 exec, -1")
    def capture(f):
        keep = a.l; a.l = []
        f()
        got = [x.strip() for x in a.l]; a.l = keep
        return got
    lateA = capture(lambda: ids2a(1, False)); lateB = capture(lambda: ids2b(1))
    ws_desc()
    a(f"v_lshlrev_b32 v{L16}, 4, v0")
    a(f"v_and_b32 v{u0}, 0x33, v0")
    a(f"v_bfe_u32 v{u1}, v0, 2, 1")
    a(f"v_lshl_add_u32 v{u0}, v{u1}, 3, v{u0}")
    a(f"v_bfe_u32 v{u1}, v0, 3, 1")
    a(f"v_lshl_add_u32 v{u0}, v{u1}, 2, v{u0}")
    a(f"v_lshlrev_b32 v{TAU}, 4, v{u0}")
    sE0, sSC, sDLT, sCNT = sXS, sWS_, sWL, sXL
    a(f"s_lshl_b32 s{t0}, s{scg}, 2")
    a(f"s_lshr_b32 s{t1}, s{srb}, 2")
    a(f"s_add_u32 s{t0}, s{t0}, s{t1}")
    a(f"s_mul_i32 s{sF1O}, s{t0}, {F1SP}")
    a(f"s_lshl_b32 s{t0}, s{shalf}, 2")
    a(f"s_and_b32 s{t1}, s{srb}, 3")
    a(f"s_add_u32 s{t0}, s{t0}, s{t1}")
    a(f"s_lshl_b32 s{t0}, s{t0}, 1")
    a(f"s_add_u32 s{t0}, s{t0}, s{stt}")
    a(f"s_lshl_b32 s{t0}, s{t0}, 3")
    a(f"s_add_u32 s{sF1O}, s{sF1O}, s{t0}")
    a(f"s_add_u32 s{sF1O}, s{sF1O}, {X_F1}")
    if TEAR == 2: a(f"buffer_load_dword v{T+9}, off, {S4(rWS)}, s{sF1O} sc1")
    a(f"s_lshl_b32 s{t0}, s{srb}, 1")
    a(f"s_add_u32 s{t0}, s{t0}, s{stt}")
    a(f"s_lshl_b32 s{t1}, s{scg}, 6")
    a(f"s_add_u32 s{t0}, s{t0}, s{t1}")
    a(f"s_lshl_b32 s{sE0}, s{t0}, 13")
    SE = [sE0, rX, rX + 1, rX + 2]
    for t_, d_ in ((1, 4096), (2, 64 * 4096), (3, 65 * 4096)): a(f"s_add_u32 s{SE[t_]}, s{sE0}, {d_}")
    a(f"s_sub_u32 s{t0}, s{sw}, 4")
    a(f"s_lshl_b32 s{t0}, s{t0}, 12")
    a(f"s_add_u32 s{t0}, s{t0}, {QX}")
    a(f"v_add_u32 v{QW}, s{t0}, v{L16}")
    if SLD:
        a(f"s_lshl_b32 s{t0}, s{sw}, 4")
        a(f"s_add_u32 s{t0}, s{t0}, {NRC - 64}")
        a(f"v_mov_b32 v{PTA}, s{t0}")
    a(f"s_mov_b32 s{sSC}, {CSCALE:#x}")
    a(f"s_mov_b32 s{sCNT}, 0")
    a(f"s_mov_b32 s{sDLT}, 0")
    if FT and FT.split("/")[1]: ftouch(FT.split("/")[1], 6, "b")
    if CPF:
        a(f"s_cmp_lg_u32 s{sw}, 5")
        a("s_cbranch_scc1 L_nocpf")
        a(f"s_sub_u32 s{t0}, s{sidx}, 1")
        a(f"s_cmp_ge_u32 s{t0}, 3")
        a("s_cbranch_scc1 L_nocpf")
        a(f"s_getpc_b64 {S2(NONCE)}")
        a.lab("L_pc")
        a(f"s_lshl_b32 s{t0}, s{t0}, 13")
        a(f"v_lshlrev_b32 v{u0}, 7, v0")
        a(f"v_add_u32 v{u0}, s{t0}, v{u0}")
        a(f"v_min_u32 v{u0}, L_fallback-L_pc, v{u0}")
        a(f"global_load_dword v{T+10}, v{u0}, {S2(NONCE)}")
        a.lab("L_nocpf")
    a(f"s_cmp_lg_u32 s{shalf}, 0")
    a("s_cbranch_scc1 P1_v1")
    def reads(ks):
        b = FR + 20 * ks
        out = [f"ds_read_b128 {vr(b+4*e,4)}, v{XA+ks} offset:{4096*e}" for e in range(2)]
        for c in range(3):
            for h in range(2):
                off = 6144 * ks + (1024 * h if c < 2 else 2048 + 512 * h)
                out.append(f"ds_read_b64_tr_b16 {vr(b+8+4*c+2*h,2)}, v{WA1+c} offset:{off}")
        return [out[0], out[2], out[3], out[1]] + out[4:]
    def mfma1(ks, e, c, ori):
        b = FR + 20 * ks
        x = vr(b + 4 * e, 4); w = vr(b + 8 + 4 * c, 4)
        p, q = (w, x) if ori[c] == 'n' else (x, w)
        d = vr(ACC + 16 * (2 * c + e), 16)
        return f"v_mfma_f32_32x32x16_bf16 {d}, {p}, {q}, {d}"
    tiles = [(0, 0), (1, 0), (0, 1), (1, 1), (0, 2), (1, 2)]
    pend = []; cnt = [0]; ctx = [""]
    def epi(t_):
        e, c = tiles[t_]
        d = ACC + 16 * (2 * c + e)
        P = d
        out = []
        if c == 2: out += [[f"v_mul_f32 v{d+r}, s{sSC}, v{d+r}"] for r in range(16)]
        out += [[f"v_cvt_pk_bf16_f32 v{P+i}, v{d+2*i}, v{d+2*i+1}"] for i in range(8)]
        if c == 2:
            out += [[f"ds_write_b128 v{QW}, {vr(P,4)} offset:{2048*e}"], [f"ds_write_b128 v{QW}, {vr(P+4,4)} offset:{2048*e+1024}"]]
        else:
            out.insert(4, ("st", t_, 0, P)); out.append(("st", t_, 1, P + 4))
        return out
    def emit(x):
        a(x); cnt[0] += 1
    def drain(nmax):
        n_ = 0
        while pend and n_ < nmax and pend[0][0] <= cnt[0]:
            g_ = pend.pop(0)[1]
            if g_[0] == "st": stq.append(g_)
            else:
                for x in g_: emit(x)
                n_ += len(g_)
    stq = []; nm = [0, -99]
    def store():
        if not stq or nm[0] - nm[1] < SP: return 0
        _, t_, f, P = stq.pop(0)
        tag = f"{ctx[0]}{t_}{f}"
        emit(f"s_cbranch_vccz L_wt{tag}")
        emit(f"buffer_store_dwordx4 {vr(P,4)}, v{TAU}, {S4(rWS)}, s{SE[t_]} offen offset:{1024*f} {KVS}")
        a.lab(f"L_st{tag}")
        if f: stamp(a, f"st{t_}")
        tails.append((tag, P, SE[t_], 1024 * f)); nm[1] = nm[0]
        return 2
    def fill(nmax):
        if pend and pend[0][0] > cnt[0]:
            gap = min(nmax - 1, pend[0][0] - cnt[0])
            a(f"s_nop {gap-1}"); cnt[0] += gap
            nmax -= gap
        drain(nmax)
    for v, ori in enumerate(["nnn", "vvn"]):
        a.lab(f"P1_v{v}")
        if v == 1: a(f"v_add_u32 v{TAU}, 2048, v{L16}")
        a("s_waitcnt lgkmcnt(0)")
        stamp(a, "setup")
        mm = [(e, c) for c in range(3) for e in range(2)]
        def cstamps():
            if STAMP or DIAG:
                if len(DIAG) == 2 and DIAG[0] == "c" and DIAG != "c0":
                    a("s_memrealtime s[82:83]")
                    a(f"s_cmp_eq_u32 s{sCNT}, {int(DIAG[1])}")
                    a("s_waitcnt lgkmcnt(0)")
                    a("s_cselect_b32 s80, s82, s80")
                for nm in (STL if STAMP else []):
                    if len(nm) == 2 and nm[0] == "c" and nm != "c0":
                        a(f"s_cmp_eq_u32 s{sCNT}, {int(nm[1])}")
                        a(f"s_cbranch_scc1 L_ns{v}{nm}")
                        a.lab(f"L_nb{v}{nm}")
                        stails.append((f"{v}{nm}", nm))
        a("s_barrier")
        stamp(a, "c0")
        for x in reads(0): a(x)
        if FT and len(FT.split("/")) > 2: ftouch(FT.split("/")[2], 7, f"c{v}")
        a.raw(".p2align 6")
        a.lab(f"P1_loop{v}")
        for ks, rk in ((3, 1), (0, 2), (1, 3)):
            rd = reads(rk)
            if ks != 3: a("s_waitcnt lgkmcnt(8)")
            for j, (e, c) in enumerate(mm):
                a(mfma1(ks, e, c, ori))
                for x in rd[2*j:2*j+2]: a(x)
                if ks == 3 and j == 4:
                    a(f"s_add_u32 s{sCNT}, s{sCNT}, 1")
                    a(f"s_mov_b32 s{sDLT}, {STAGE}")
                if ks == 0 and j == 4:
                    a(f"s_cmp_eq_u32 s{sCNT}, 3")
                    a(f"s_cselect_b32 s{sDLT}, {(-2*STAGE) & 0xffffffff:#x}, s{sDLT}")
                if ks == 1 and j == 4:
                    for i in range(4): a(f"v_add_u32 v{XA+i}, s{sDLT}, v{XA+i}")
                if ks == 1 and j == 5:
                    for i in range(4, 7): a(f"v_add_u32 v{XA+i}, s{sDLT}, v{XA+i}")
        a("s_waitcnt lgkmcnt(8)")
        rd = reads(0)
        for j, (e, c) in enumerate(mm):
            a(mfma1(2, e, c, ori))
            if j == BPOS - 1: a("s_waitcnt lgkmcnt(0)")
            if j == BPOS:
                a("s_barrier")
                cstamps()
            if j > BPOS:
                n_ = -(-8 // (5 - BPOS)) if j < 5 else 8
                for x in rd[:n_]: a(x)
                rd = rd[n_:]
        if BPOS == 5:
            for x in rd: a(x)
        a(f"s_cmp_lt_u32 s{sCNT}, 4")
        a(f"s_cbranch_scc1 P1_loop{v}")
        m4 = mm[:4]
        for ch in (4, 5):
            dl = STAGE if ch == 4 else (-2 * STAGE) & 0xffffffff
            for ks, rk in ((3, 1), (0, 2), (1, 3)):
                rd = reads(rk)[:6]
                if ks != 3: a("s_waitcnt lgkmcnt(6)")
                for j, (e, c) in enumerate(mm if (ch == 4 and ks == 3) else m4):
                    a(mfma1(ks, e, c, ori))
                    for x in rd[2*j:2*j+2]: a(x)
                    if ch == 5 and ks == 3 and j == 0 and not SLD:
                        a(f"buffer_load_dwordx2 {vr(NV,2)}, v{NA}, {S4(rDBG)}, 0 offen sc1")
                    if ks == 0 and j == 3: a(f"s_mov_b32 s{sDLT}, {dl:#x}")
                    if ks == 1 and j == 3:
                        for i in range(4): a(f"v_add_u32 v{XA+i}, s{sDLT}, v{XA+i}")
            a("s_waitcnt lgkmcnt(6)")
            rd = reads(0)[:6]
            a(mfma1(2, *m4[0], ori))
            for i in range(4, 7): a(f"v_add_u32 v{XA+i}, s{sDLT}, v{XA+i}")
            a("s_waitcnt lgkmcnt(0)")
            a(mfma1(2, *m4[1], ori))
            a("s_barrier")
            stamp(a, f"d{ch+1}")
            a(mfma1(2, *m4[2], ori))
            for x in rd[:3]: a(x)
            a(mfma1(2, *m4[3], ori))
            for x in rd[3:]: a(x)
        rd = reads(1)[:6] + reads(2)[:6]
        for j, (e, c) in enumerate(m4):
            a(mfma1(3, e, c, ori))
            for x in rd[3*j:3*j+3]: a(x)
        for x in reads(3)[:4]: a(x)
        ctx[0] = str(v); pend.clear(); cnt[0] = 0; stq.clear(); nm[:] = [0, -99]
        seq = [(0, 0), (0, 1), (1, 0), (1, 1), (2, 0), (2, 1), (3, 0), (3, 1)] + [(k, t_) for t_ in range(2, 4) for k in range(4)]
        for i, (k, t_) in enumerate(seq):
            if i == 0: emit("s_waitcnt lgkmcnt(14)")
            if i == 2: emit("s_waitcnt lgkmcnt(12)")
            if i == 4: emit("s_waitcnt lgkmcnt(6)")
            if i == 6:
                emit("s_waitcnt lgkmcnt(0)" if SLD else "s_waitcnt vmcnt(0) lgkmcnt(0)")
                stamp(a, "last")
            emit(mfma1(k, *tiles[t_], ori))
            first = cnt[0]; nm[0] += 1
            store()
            if i == 0:
                for x in reads(3)[4:6]: emit(x)
            if i == 4 and SLD: emit(f"ds_read_b96 {vr(NV,3)}, v{PTA}")
            if i == 6:
                if SLD:
                    emit(f"v_readfirstlane_b32 s{t0}, v{NV+2}")
                    emit("s_nop 0")
                    emit(f"s_cmp_eq_u32 s{t0}, 0")
                else:
                    emit(f"v_cmp_eq_u64 vcc, {S2(XM)}, {vr(NV,2)}")
                    emit(f"s_and_b32 s{t0}, vcc_lo, 0xf0")
                    emit(f"s_cmp_eq_u32 s{t0}, 0xf0")
                emit(f"s_cselect_b32 s{sLOC}, {1 if LOCAL else 0}, 0")
                emit(f"s_cselect_b64 vcc, {-1 if LOCAL else 0}, 0")
            if k == 3: pend.extend((first + 12, g_) for g_ in epi(t_))
            if i == QB:
                emit("s_barrier")
                stamp(a, "bar7")
                for ks in range(2):
                    for x in reads(ks)[6:]: emit(x)
            elif i == QB + 1:
                for ks in range(2, 4):
                    for x in reads(ks)[6:]: emit(x)
            elif i != 6 and i != 15: fill(6)
        snap = (list(pend), cnt[0], list(stq), list(nm))
        if v == 0 or VIS: a("s_branch P1_done")
    if VIS:
        a.raw(".p2align 12" if VIS == 1 else ".p2align 6")
        a.lab("L_vis")
        a("s_branch L_visb")
    a.lab("P1_done")
    ctx[0] = "c"; pend[:] = snap[0]; cnt[0] = snap[1]; stq[:] = snap[2]; nm[:] = snap[3]
    if QB > 15:
        while pend: fill(99 if pend[0][0] <= cnt[0] else 13)
        emit("s_barrier")
        for ks in range(4):
            for x in reads(ks)[6:]: emit(x)
    def qreads(ks, base):
        b = FR + 20 * ks
        return [f"ds_read_b128 {vr(b,4)}, v{XA+ks} offset:{base}",
                f"ds_read_b64_tr_b16 {vr(b+16,2)}, v{WA1+2} offset:{base + 6144*ks + 2048}",
                f"ds_read_b64_tr_b16 {vr(b+18,2)}, v{WA1+2} offset:{base + 6144*ks + 2560}",
                f"ds_read_b128 {vr(b+4,4)}, v{XA+ks} offset:{base + 4096}"]
    def flag1():
        assert not any(g_[1][0] == "st" for g_ in pend) and not stq
        stamp(a, "prefl")
        nonce("C")
        a("s_mov_b64 exec, 1")
        a(f"s_cmp_eq_u32 s{sLOC}, 0")
        a("s_waitcnt vmcnt(0)")
        a("s_cbranch_scc1 L_f1wt")
        a(f"buffer_store_dwordx2 {vr(NV,2)}, off, {S4(rWS)}, s{sF1O}")
        a.lab("L_f1st")
        a("s_mov_b64 exec, -1")
        stamp(a, "ack1")
        cnt[0] += 10
    def late(nmax):
        q_ = lateB if (not lateA or (nq <= FPOS < 12)) and False else (lateA if lateA else lateB)
        if lateA and len(lateA) == nA and nq <= FPOS < 12: return
        for _ in range(min(nmax, len(q_))): emit(q_.pop(0))
    nA = len(lateA)
    nq = 0
    for rnd in range(3):
        order_ = [(ks, e) for ks in range(4) for e in range(2)] if rnd < 2 else [(0, 0), (0, 1), (1, 0), (2, 0), (3, 0), (1, 1), (2, 1), (3, 1)]
        for j, (ks, e) in enumerate(order_):
            if rnd == 0 and e == 0: emit(f"s_waitcnt lgkmcnt({6 + 2*ks})")
            if rnd == 1 and e == 0: emit("s_waitcnt lgkmcnt(12)")
            if rnd == 2 and e == 0: emit(f"s_waitcnt lgkmcnt({12 - 4*ks})")
            emit(mfma1(ks, e, 2, "nnn"))
            first = cnt[0]; nm[0] += 1
            store()
            nq += 1
            if B2 and rnd == 1 and j == 0: emit("s_barrier")
            if rnd < 2 and e == 1:
                if rnd == 1:
                    emit(f"v_add_u32 v{XA+ks}, {STAGE}, v{XA+ks}")
                    if ks == 0: emit(f"v_add_u32 v{WA1+2}, {STAGE}, v{WA1+2}")
                for x in qreads(ks, STAGE): emit(x)
                drain(2)
                late(2)
            elif nq != FPOS:
                if pend: fill(6)
                else: late(6)
            if rnd == 2 and ks == 3: pend.extend((first + 12, g_) for g_ in epi(4 + e))
            if nq == FPOS:
                if len(lateA) != nA:
                    while lateA: emit(lateA.pop(0))
                flag1()
    a(f"v_mov_b32 v{CA}, {GBC + 4}")
    a(f"v_mov_b32 v{ONE}, 1")
    cnt[0] += 2
    nm[0] += 99; store(); assert not stq
    if FPOS > 24:
        nq0 = len(pend) - 26 if FPOS == 25 else len(pend)
        while len(pend) > (26 if FPOS == 25 else 0): fill(1 if pend[0][0] <= cnt[0] else 13)
        if FPOS == 25:
            while lateA: emit(lateA.pop(0))
            flag1()
    while pend: fill(99 if pend[0][0] <= cnt[0] else 13)
    arrive(a, 4)
    stamp(a, "p1end")
    if FPOS == 26:
        while lateA: emit(lateA.pop(0))
        flag1()
    a("s_setprio 1")
    while lateA: a(lateA.pop(0))
    while lateB: a(lateB.pop(0))
    pre2()
    getq(1)
    a.lab("L_ph2")
    a.vreset()
    if PIPE:
        a("s_mov_b64 exec, 0xffff")
        poll_pipe(a, "L_f1", F1A, rWS, "sc1", [T + 10, T + 14])
        a("s_mov_b64 exec, -1")
        a.vm.append("poll")
    else: poll(a, "L_f1", F1A, rWS, "sc1", 16, SL1)
    stamp(a, "poll1")
    def ldK(kt, f): a.vmem(f"global_load_dwordx4 {vr(KB[kt%4]+4*f,4)}, v{L16}, {S2(KP[kt//2])} offset:{4096*(kt%2)-4096+1024*f} {KVL}", ("K", kt))
    def ldV(kt, f): a.vmem(f"global_load_dwordx4 {vr(VB[kt%4]+4*f,4)}, v{L16}, {S2(KP[kt//2])} offset:{4096*(kt%2)-2048+1024*f} {KVL}", ("V", kt))
    order = [(0, 3), (1, 3), (0, 0), (0, 1), (0, 2), (1, 0), (1, 1), (1, 2)]
    for k in range(2, 14):
        order += [(k, 0), (k, 1), (k, 2)] + ([(k, 3)] if k < 16 - NOWN else [])
    order += [(14, 0), (15, 0), (14, 1), (15, 1), (14, 2), (15, 2)] + [(k, 3) for k in range(16 - NOWN, 16)]
    assert sorted(order) == [(k, i) for k in range(16) for i in range(4)]
    NP = 64
    def qk(p):
        kt, i = order[p]
        s = SB[p % 3]; k = KB[kt % 4]
        return [f"v_mfma_f32_32x32x16_bf16 {vr(s,16)}, {vr(k,4)}, {vr(Q[i],4)}, 0",
                f"v_mfma_f32_32x32x16_bf16 {vr(s,16)}, {vr(k+4,4)}, {vr(Q[i]+4,4)}, {vr(s,16)}"]
    def pv(p):
        kt, i = order[p]
        s = SB[p % 3]; v = VB[kt % 4]
        return [f"v_smfmac_f32_32x32x32_bf16 {vr(O[i],16)}, {vr(v,4)}, {vr(s,8)}, v{IDX}",
                f"v_smfmac_f32_32x32x32_bf16 {vr(O[i],16)}, {vr(v+4,4)}, {vr(s+8,8)}, v{IDX}"]
    ldK(0, 0); ldK(0, 1)
    if not K1L: ldK(1, 0); ldK(1, 1)
    getq2()
    a.vwait(("K", 0))
    a("s_waitcnt lgkmcnt(6)")
    stamp(a, "k0")
    for x in qk(0): a(x)
    if K1L:
        ldK(1, 0); ldK(1, 1); ldV(0, 0); ldV(0, 1)
    else:
        ldV(0, 0); ldV(0, 1); ldV(1, 0); ldV(1, 1)
    a("s_mov_b64 exec, 1")
    a("s_waitcnt lgkmcnt(0)")
    a(f"ds_add_u32 v{T+5}, v{ONE}")
    a("s_mov_b64 exec, -1")
    a("s_nop 3")
    s = SB[0]
    a(f"v_max3_f32 v{T}, v{s}, v{s+1}, v{s+2}")
    a(f"v_max3_f32 v{T+1}, v{s+3}, v{s+4}, v{s+5}")
    for i in range(6, 14, 4):
        a(f"v_max3_f32 v{T}, v{T}, v{s+i}, v{s+i+1}")
        a(f"v_max3_f32 v{T+1}, v{T+1}, v{s+i+2}, v{s+i+3}")
    a(f"v_max3_f32 v{T}, v{T}, v{s+14}, v{s+15}")
    a(f"v_max_f32 v{T}, v{T}, v{T+1}")
    a(f"v_mov_b32 v{T+1}, v{T}")
    a("s_nop 1")
    a(f"v_permlane32_swap_b32 v{T}, v{T+1}")
    a(f"v_max_f32 v{T}, v{T}, v{T+1}")
    if FORCEFB: a(f"v_add_f32 v{T}, 0x43480000, v{T}")
    a(f"v_xor_b32 v{T}, 0x80000000, v{T}")
    a("s_mov_b32 exec_lo, 0")
    a(f"v_lshrrev_b32 v{Q[3]+6}, 16, v{T}")
    a("s_mov_b32 exec_lo, -1")
    a(f"ds_write_b32 v{MW}, v{Q[3]+6}")
    arrive(a)
    for x in qk(0): a(x)
    if K1L: ldV(1, 0); ldV(1, 1)
    a("s_nop 9" if K1L else "s_nop 11")
    stamp(a, "loop0")
    lastK = {k: max(p for p in range(NP) if order[p][0] == k) - 1 for k in range(16)}
    lastV = {k: max(p for p in range(NP) if order[p][0] == k) + 1 for k in range(16)}
    lq = []
    for k in range(2, 16):
        fk = lastK[k - 4] + 1 if k >= 4 else LQ0
        fv = lastV[k - 4] + 1 if k >= 4 else LQ0
        lq += [(lambda k=k: ldK(k, 0), fk), (lambda k=k: ldK(k, 1), fk), (lambda k=k: ldV(k, 0), fv), (lambda k=k: ldV(k, 1), fv)]
    wq = []
    for i in range(3):
        lp = max(p for p in range(NP) if order[p][1] == i) + 1
        for g in range(4):
            wq.append((lambda i=i, g=g: a(f"ds_write_b128 v{PW+i}, {vr(O[i]+4*g,4)} offset:{1024*g}"), 4 * (lp + 1) + 2))
    rq = [lambda i=i: a(f"ds_read_b128 {vr(O[i//4]+4*(i%4),4)}, v{PR} offset:{1024*i}") for i in range(12)]
    state = {"arr": None, "rd": False}
    def mlist(p):
        mq = qk(p + 1) if p + 1 < NP else [None, None]
        mp = pv(p - 1) if p >= 1 else [None, None]
        ms = [("q", x) for x in mq] + [("p", x) for x in mp]
        if p == 0: return ms[4-P0S:] + ms[:4-P0S]
        return ms[2:] + ms[:2] if p == 1 else ms
    def need(p, kind):
        if kind == "q":
            k1 = order[p + 1][0]
            a.vwait(("V", k1) if (k1 >= 2 and sum(1 for t in a.vm if t == ("V", k1)) == 2) else ("K", k1))
        else:
            a.vwait(("V", order[p - 1][0]))
    for p in range(NP):
        s = SB[p % 3]
        stamp(a, f"ph{p}")
        ms = mlist(p)
        if p == 1:
            lcheck(a, "L_m", 4)
            stamp(a, "bq1")
            for i in range(3): a(f"ds_read_b32 v{Q[i]+6}, v{MR+i}")
        if p == 2: a("s_nop 6")
        for g in range(4):
            kind, m = ms[g]
            if m:
                need(p, kind)
                if p == 1 and g == 3: a("s_waitcnt lgkmcnt(0)")
                a(m)
                if p >= 3:
                    np_, ng = (p, g + 1) if g < 3 else (p + 1, 0)
                    if np_ < NP:
                        k2, m2_ = mlist(np_)[ng]
                        if m2_: need(np_, k2)
            slot = 4 * p + g
            if slot == 3: lpre(a)
            if g == 2 and p in LOW:
                a(f"s_cmp_eq_u32 s{sg}, 0")
                a(f"s_cbranch_scc1 L_low{p}")
                a.lab(f"L_lowb{p}")
            if p == PGT and g == 0:
                a.vmem(f"buffer_load_dword v{T+8}, off, {S4(rWO)}, 0", "pg")
                a.vmem(f"buffer_load_dword v{T+9}, off, {S4(rBR)}, s{sF2O} sc1", "pg")
            if p == PGT and g == 1:
                a.vmem(f"buffer_load_dword v{T+10}, off, {S4(rOUT)}, s{sLS}", "pg")
                a(f"s_lshl_b32 s{t0}, s{sLS}, 1")
                a.vmem(f"buffer_load_dword v{T+11}, off, {S4(rOUT)}, s{t0}", "pg")
            if WB[:1] == "p" and p == int(WB[1:]) and g == 3: wbl2(a, "p", 7)
            if WB[:1] == "q" and p == int(WB[1:]) and g == 3: wbl2(a, "p", 3)
            if slot == 26: lpre(a, C0A)
            if slot == 30: lcheck(a, "L_c0", 4, C0A)
            if p == WOT and g == 2: a.vmem(f"buffer_load_dword v{T+8}, v{TAU}, {S4(rWO)}, 0 offen", "wot")
            if lq and lq[0][1] <= p and (g == LG or (g == LG + 1 and (p < 12 or p >= 40))): lq.pop(0)[0]()
            elif wq and wq[0][1] <= slot:
                wq.pop(0)[0]()
                if not wq:
                    arrive(a); state["arr"] = slot
            elif state["arr"] is not None and slot == state["arr"] + 2: lpre(a)
            elif state["arr"] is not None and not state["rd"] and slot >= state["arr"] + 4:
                lcheck(a, "L_p", 8)
                stamp(a, "b1")
                state["rd"] = True
                for _ in range(4): rq.pop(0)()
            elif state["rd"] and rq:
                for _ in range(4): rq.pop(0)()
            for jj in range(4): a(f"v_exp_f32 v{s+4*g+jj}, v{s+4*g+jj}")
    assert not lq and not wq and state["rd"]
    while rq: rq.pop(0)()
    a("s_nop 1")
    for x in pv(63): a(x)
    stamp(a, "loop1")
    OO = O[3]
    a("s_waitcnt lgkmcnt(0)")
    if ARR3 == "early": arrive(a)
    for r in range(16): a(f"v_add_f32 v{O[0]+r}, v{O[0]+r}, v{O[1]+r}")
    for r in range(16): a(f"v_add_f32 v{O[0]+r}, v{O[0]+r}, v{O[2]+r}")
    a(f"v_add_f32 v{OO+12}, v{OO+12}, v{O[0]+12}")
    a(f"v_mov_b32 v{T}, v{OO+12}")
    a(f"v_mov_b32 v{T+1}, v{OO+12}")
    for r in range(0, 4): a(f"v_add_f32 v{OO+r}, v{OO+r}, v{O[0]+r}")
    a(f"v_permlane32_swap_b32 v{T}, v{T+1}")
    for r in range(4, 16):
        if r != 12: a(f"v_add_f32 v{OO+r}, v{OO+r}, v{O[0]+r}")
    a(f"s_mov_b32 s{sFB}, 0")
    a.lab("L_norm")
    a(f"v_rcp_f32 v{T}, v{T+1}")
    if EARLYP == 1: a(f"buffer_load_dwordx2 {vr(T+14,2)}, v{LF}, {S4(rBR)}, 0 offen {PF2}")
    else: a("s_nop 0")
    P = T + 4
    for r in range(8): a(f"v_mul_f32 v{OO+r}, v{OO+r}, v{T}")
    for i in range(4): a(f"v_cvt_pk_bf16_f32 v{P+i}, v{OO+2*i}, v{OO+2*i+1}")
    a(f"buffer_store_dwordx4 {vr(P,4)}, v{L16}, {S4(rBR)}, s{sOO} offen sc1")
    for r in range(8, 16): a(f"v_mul_f32 v{OO+r}, v{OO+r}, v{T}")
    for i in range(4, 8): a(f"v_cvt_pk_bf16_f32 v{P+i}, v{OO+2*i}, v{OO+2*i+1}")
    a("s_mov_b32 exec_hi, 0")
    a(f"buffer_store_dwordx4 {vr(P+4,4)}, v{L16}, {S4(rBR)}, s{sOO} offen offset:1024 sc1")
    a("s_not_b64 exec, exec")
    a(f"buffer_store_dwordx2 {vr(P+4,2)}, v{L8}, {S4(rBR)}, s{sOO} offen offset:1280 sc1")
    a("s_mov_b64 exec, -1")
    if EARLYP == 2: a(f"buffer_load_dwordx2 {vr(T+14,2)}, v{LF}, {S4(rBR)}, 0 offen {PF2}")
    stamp(a, "ost")
    a(f"s_cmp_lg_u32 s{sFB}, 0")
    a("s_cbranch_scc1 L_checked")
    if ARR3 == "late": arrive(a)
    a(f"v_mul_f32 v{T+2}, 0, v{OO}")
    a(f"v_mul_f32 v{T+3}, 0, v{OO+1}")
    for r in range(2, 16): a(f"v_fma_f32 v{T+2+(r&1)}, 0, v{OO+r}, v{T+2+(r&1)}")
    a(f"v_add_f32 v{T+2}, v{T+2}, v{T+3}")
    a(f"v_add_f32 v{T+2}, v{T+2}, v{T+1}")
    a(f"v_cmp_nlt_f32 vcc, 0x35800000, v{T+2}")
    a(f"s_mov_b64 {S2(sROT)}, vcc")
    a(f"v_cmp_ngt_f32 vcc, 0x71800000, v{T+2}")
    a(f"s_or_b64 vcc, vcc, {S2(sROT)}")
    a("s_cbranch_vccnz L_fallback")
    a.lab("L_checked")
    sOS, sOL, sW0 = KT[1], KT[2], KT[3]
    INV = [ORD.index(r_) for r_ in range(4)]
    def wo_round(st):
        a(f"s_xor_b32 s{t0}, s{sPE}, {st}")
        a(f"s_add_u32 s{t0}, s{t0}, s{sW0}")
        a(f"s_mul_i32 s{sWOS}, s{t0}, {28*896}")
        a(f"s_mul_i32 s{sWOL}, s{skq}, {56*256}")
        a(f"s_mov_b32 s{t1}, 0")
        a(f"s_setprio {WPRIO}")
        a.lab(f"L_wo{st}")
        a(f"s_mov_b32 m0, s{sWOL}")
        a(f"s_add_u32 s{t1}, s{t1}, 1")
        a(f"buffer_load_dwordx4 v{WOA}, {S4(rWO)}, s{sWOS} offen {WOF} lds")
        a(f"s_add_u32 s{sWOL}, s{sWOL}, 1024")
        a(f"s_cmp_eq_u32 s{t1}, 7")
        a(f"s_mov_b32 s{t0}, {4*896}")
        a(f"s_cselect_b32 s{t0}, {32*896}, s{t0}")
        a(f"s_add_u32 s{sWOS}, s{sWOS}, s{t0}")
        a(f"s_cmp_lg_u32 s{t1}, 14")
        a(f"s_waitcnt vmcnt({WOFL})")
        a(f"s_cbranch_scc1 L_wo{st}")
        a("s_waitcnt vmcnt(0)")
        a("s_setprio 2")
    a(f"s_cmp_eq_u32 s{sg}, 0")
    a("s_cbranch_scc1 L_wfirst")
    a.lab("L_pub")
    NF = T + 2
    a(f"v_mov_b32 v{NF}, s{NONCE}")
    a(f"v_mov_b32 v{NF+1}, s{NONCE+1}")
    a("s_mov_b64 exec, 1")
    a(f"s_cmp_eq_u32 s{sg}, 0")
    a("s_waitcnt vmcnt(0)")
    a(f"buffer_store_dwordx2 {vr(NF,2)}, off, {S4(rBR)}, s{sF2O} {SF2}")
    a("s_mov_b64 exec, -1")
    stamp(a, "flag2")
    a("s_cbranch_scc1 L_ph3")
    def late_fetch():
        a(f"s_mov_b32 m0, s{sLL}")
        a("s_nop 0")
        for i in range(4): a(f"buffer_load_dwordx4 v{L16}, {S4(rBR)}, s{sLS} offen offset:{1024*i} sc1 lds")
        a(f"s_add_u32 m0, s{sLL}, 4096")
        a("s_nop 0")
        for i in range(3): a(f"buffer_load_dwordx4 v{L16}, {S4(rBR)}, s{sLS2} offen offset:{1024*i} sc1 lds")
        a("s_mov_b64 exec, 1")
        a("s_waitcnt vmcnt(0)")
        a(f"ds_write_b32 v{LM}, v{ONE}")
        a("s_mov_b64 exec, -1")
    a(f"ds_read_b32 v{T+12}, v{LM}")
    a(f"v_add_u32 v{T+4}, -4, v{CA}")
    lwait(a, "L_wfree", 0, 28, 1, T + 4)
    a(f"v_readfirstlane_b32 s{t0}, v{T+12}")
    a(f"s_cmp_lg_u32 s{t0}, 0")
    a("s_cbranch_scc1 L_fin")
    if EARLYP:
        a(f"v_cmp_ne_u64 vcc, {S2(NONCE)}, {vr(T+14,2)}")
        a("s_cbranch_vccz L_lready")
    if PW0: a("s_waitcnt vmcnt(0)")
    poll(a, "L_f21", LF, rBR, PF2)
    a.lab("L_lready")
    stamp(a, "poll2")
    late_fetch()
    stamp(a, "oown")
    if WB == "e": wbl2(a, "e", 7)
    a("s_waitcnt lgkmcnt(0)")
    a("s_branch L_fin")
    a.lab("L_ph3")
    if OUTW:
        a("s_mov_b64 exec, 1")
        a(f"buffer_load_dword v{T+8}, v{OUTA}, {S4(rOUT)}, 0 offen")
        a("s_mov_b64 exec, -1")
    WBR = 16
    steps = []
    for q in range(2):
        for j in range(4 * q, 4 * q + 4): steps.append((0, lambda aa, j=j: 28 * j + 8 * aa, ("A", j)))
        for i in range(2 * q, 2 * q + 2): steps.append((1, lambda aa, i=i: 56 * i + 16 + 8 * aa, ("B", 2 * i)))
        steps.append((2, lambda aa, q=q: 28 * (4 * q + aa) + 20, ("C", 4 * q)))
    def wread(st, ks):
        t, row, _ = steps[ks]
        for aa in range(2):
            a(f"ds_read_b64_tr_b16 {vr(WBR+56*st+4*ks+2*aa,2)}, v{WA+t} offset:{row(aa)*256}")
    for st in range(2):
        if st: wo_round(1)
        gbar(a, f"L_g4{st}", 4 + 2 * st)
        for ks in range(14): wread(st, ks)
        a("s_waitcnt lgkmcnt(0)")
        gbar(a, f"L_g5{st}", 5 + 2 * st)
        stamp(a, f"wrd{st}")
    ACC3 = [128, 144]; ACCB = [16, 32]; OB = 176; NB = 12; PK = 224
    def mfma_block(st, items, hooks):
        lg = []
        def oread(n_):
            ks, e = items[n_]
            kind, hd = steps[ks][2]
            d = OB + 4 * (n_ % NB)
            base = 28672 * st + 14336 * e
            if kind == "A": a(f"ds_read_b128 {vr(d,4)}, v{OA} offset:{base+hd*1792}"); lg.append(n_)
            elif kind == "B": a(f"ds_read_b128 {vr(d,4)}, v{OA+1} offset:{base+hd*1792+1024}"); lg.append(n_)
            else:
                for aa in range(2):
                    a(f"ds_read_b64 {vr(d+2*aa,2)}, v{OA+2} offset:{base+(hd+aa)*1792+1536}"); lg.append(n_)
        N_ = len(items)
        for n_ in range(min(NB, N_)): oread(n_)
        for n_ in range(N_):
            ks, e = items[n_]
            out = sum(1 for k in lg if k > n_)
            assert out < 16
            a(f"s_waitcnt lgkmcnt({out})")
            d_ = ACCB[e] if (st == 1 and ks >= 7) else ACC3[e]
            c = "0" if (st, ks) in ((0, 0), (1, 7)) else vr(d_, 16)
            a(f"v_mfma_f32_32x32x16_bf16 {vr(d_,16)}, {vr(WBR+56*st+4*ks,4)}, {vr(OB+4*(n_%NB),4)}, {c}")
            if n_ + NB < N_: oread(n_ + NB)
            if n_ in hooks: hooks[n_]()
    a(f"s_mul_i32 s{sOS}, s{sRT}, 1792")
    a(f"s_mul_i32 s{sOL}, s{skq}, 7168")
    poll(a, "L_f20", F2A, rBR, PF2)
    a(f"s_mov_b32 m0, s{sOL}")
    a(f"s_add_u32 s{t0}, s{sOS}, 4096")
    for i in range(4): a(f"buffer_load_dwordx4 v{L16}, {S4(rBR)}, s{sOS} offen offset:{1024*i} sc1 lds")
    a(f"s_add_u32 m0, s{sOL}, 4096")
    a("s_nop 0")
    for i in range(3): a(f"buffer_load_dwordx4 v{L16}, {S4(rBR)}, s{t0} offen offset:{1024*i} sc1 lds")
    a("s_waitcnt vmcnt(0)")
    gbar(a, "L_g8", 8)
    stamp(a, "aland")
    if WB == "a": wbl2(a, "a", 3)
    if GLOOK:
        a(f"s_mov_b32 s{t3}, {SPIN}")
        a.lab("L_h3a")
        a(f"buffer_load_dwordx2 {vr(T+14,2)}, v{LF}, {S4(rBR)}, 0 offen {PF2}")
        a(f"s_sleep {HSL}")
        a(f"ds_read_b32 v{T+13}, v{CA} offset:4")
        a(f"s_sub_u32 s{t3}, s{t3}, 1")
        a("s_cbranch_scc1 L_end")
        a("s_waitcnt lgkmcnt(0)")
        a(f"v_readfirstlane_b32 s{t2}, v{T+13}")
        a(f"s_cmp_ge_u32 s{t2}, 12")
        a("s_cbranch_scc1 L_h3_done")
        a("s_waitcnt vmcnt(0)")
        a(f"v_cmp_ne_u64 vcc, {S2(NONCE)}, {vr(T+14,2)}")
        a("s_cbranch_vccnz L_h3a")
        late_fetch()
    if PG3:
        a("s_branch L_warm")
        a.raw(".p2align 12")
        a.lab("L_warmed")
    lwait(a, "L_h3", 4, 12, HSL)
    a("s_setprio 0")
    a(f"s_cmp_eq_u32 s{XM}, 0")
    a("s_cbranch_scc1 L_fin")
    mfma_block(0, [(ks, e) for ks in range(14) for e in range(2)], {})
    stamp(a, "tileA")
    a(f"s_add_u32 s{t0}, s{sOUTO}, {16*1792}")
    a(f"s_add_u32 s{t1}, s{sOUTO}, {32*1792}")
    a(f"s_add_u32 s{sOS}, s{sOUTO}, {48*1792}")
    def pack0(i0):
        def f():
            for r in range(2 * i0, 2 * i0 + 8): a(f"v_add_f32 v{ACC3[0]+r}, v{ACC3[0]+r}, v{ACCB[0]+r}")
            for i in range(i0, i0 + 4): a(f"v_cvt_pk_bf16_f32 v{PK+i}, v{ACC3[0]+2*i}, v{ACC3[0]+2*i+1}")
        return f
    a(f"s_mov_b32 s{t3}, {SPIN}")
    a.lab("L_any")
    a(f"ds_read_b128 {vr(T+8,4)}, v{CA} offset:16")
    a(f"s_sub_u32 s{t3}, s{t3}, 1")
    a("s_cbranch_scc1 L_end")
    a("s_waitcnt lgkmcnt(0)")
    a(f"v_and_b32 v{T+8}, v{T+8}, v{T+9}")
    a(f"v_and_b32 v{T+10}, v{T+10}, v{T+11}")
    a(f"v_cmp_ne_u32 vcc, 0, v{T+10}")
    a("s_cbranch_vccnz L_ba")
    a(f"v_cmp_ne_u32 vcc, 0, v{T+8}")
    a("s_cbranch_vccz L_any")
    for first in (0, 1):
        if first:
            if PG3:
                a.raw(".p2align 6")
                a.lab("L_warm")
                a("s_branch L_warmed")
            a.lab("L_ba")
        stamp(a, "bland")
        mfma_block(1, [(ks, e) for ks in range(7 * first, 7 * first + 7) for e in range(2)], {})
        a(f"s_mov_b32 s{t3}, {SPIN}")
        a.lab(f"L_u{first}")
        a(f"ds_read_b64 {vr(T+8,2)}, v{CA} offset:{24 - 8*first}")
        a(f"s_sub_u32 s{t3}, s{t3}, 1")
        a("s_cbranch_scc1 L_end")
        a("s_waitcnt lgkmcnt(0)")
        a(f"v_and_b32 v{T+8}, v{T+8}, v{T+9}")
        a(f"v_cmp_ne_u32 vcc, 0, v{T+8}")
        a(f"s_cbranch_vccz L_u{first}")
        stamp(a, "oland")
        mfma_block(1, [(ks, e) for e in range(2) for ks in range(7 - 7 * first, 14 - 7 * first)], {12: pack0(0), 13: pack0(4)})
        if not first: a("s_branch L_out")
    a.lab("L_out")
    stamp(a, "mf3")
    a(f"ds_write_b128 v{TW}, {vr(PK,4)}")
    a(f"ds_write_b128 v{TW+1}, {vr(PK+4,4)}")
    a(f"ds_read_b128 {vr(OB+16,4)}, v{TR}")
    a(f"ds_read_b128 {vr(OB+20,4)}, v{TR} offset:1024")
    for r in range(8): a(f"v_add_f32 v{ACC3[1]+r}, v{ACC3[1]+r}, v{ACCB[1]+r}")
    for i in range(4): a(f"v_cvt_pk_bf16_f32 v{PK+8+i}, v{ACC3[1]+2*i}, v{ACC3[1]+2*i+1}")
    a(f"ds_write_b128 v{TW}, {vr(PK+8,4)} offset:2048")
    a("s_waitcnt lgkmcnt(1)")
    a(f"buffer_store_dwordx4 {vr(OB+16,4)}, v{OUTA}, {S4(rOUT)}, s{sOUTO} offen {OUTF}")
    a(f"buffer_store_dwordx4 {vr(OB+20,4)}, v{OUTA}, {S4(rOUT)}, s{t0} offen {OUTF}")
    for r in range(8, 16): a(f"v_add_f32 v{ACC3[1]+r}, v{ACC3[1]+r}, v{ACCB[1]+r}")
    for i in range(4, 8): a(f"v_cvt_pk_bf16_f32 v{PK+8+i}, v{ACC3[1]+2*i}, v{ACC3[1]+2*i+1}")
    a(f"ds_write_b128 v{TW+1}, {vr(PK+12,4)} offset:2048")
    a(f"ds_read_b128 {vr(OB+24,4)}, v{TR} offset:2048")
    a(f"ds_read_b128 {vr(OB+28,4)}, v{TR} offset:3072")
    a("s_waitcnt lgkmcnt(1)")
    a(f"buffer_store_dwordx4 {vr(OB+24,4)}, v{OUTA}, {S4(rOUT)}, s{t1} offen {OUTF}")
    a("s_waitcnt lgkmcnt(0)")
    a(f"buffer_store_dwordx4 {vr(OB+28,4)}, v{OUTA}, {S4(rOUT)}, s{sOS} offen {OUTF}")
    a.lab("L_fin")
    if STAMP:
        a("s_waitcnt vmcnt(0)")
        a("s_memrealtime s[22:23]")
        a("s_memtime s[98:99]")
        a("s_waitcnt lgkmcnt(0)")
        a("s_mov_b64 exec, 1")
        a(f"s_mov_b32 s{rWS}, s2"); a(f"s_mov_b32 s{rWS+1}, s3"); a(f"s_mov_b32 s{rWS+2}, 0x10000000")
        a(f"s_lshl_b32 s{t1}, s{sidx}, 3")
        a(f"s_add_u32 s{t1}, s{t1}, s{sx}")
        a(f"s_lshl_b32 s{t1}, s{t1}, 9")
        a(f"s_add_u32 s{t1}, s{t1}, {64<<20}")
        a(f"s_lshl_b32 s{t0}, s{sw}, 6")
        a(f"s_add_u32 s{t1}, s{t1}, s{t0}")
        for i, r in enumerate([RT, 22, 100, 98] + [80 + 2 * k for k in range(9)] + [sLOC]):
            a(f"v_mov_b32 v1, s{r}")
            a(f"buffer_store_dword v1, off, {S4(rWS)}, s{t1} offset:{4*i}")
    if DIAG:
        a("s_waitcnt vmcnt(0)")
        if DIAG == "end": a("s_memrealtime s[80:81]")
        if DIAG == "none": a(f"s_mov_b32 s80, s{NONCE}")
        a("s_waitcnt lgkmcnt(0)")
        a("s_add_u32 s80, s80, 6000")
        a.lab("L_diag")
        a("s_sleep 2")
        a("s_memrealtime s[82:83]")
        a("s_waitcnt lgkmcnt(0)")
        a("s_sub_u32 s82, s82, s80")
        a("s_cmp_lt_i32 s82, 0")
        a("s_cbranch_scc1 L_diag")
    a.lab("L_end")
    a("s_endpgm")
    a.lab("L_wfirst")
    lwait(a, "L_h2", 12, 4)
    stamp(a, "wo0")
    if WB == "w": wbl2(a, "w", 3)
    a(f"s_lshl_b32 s{t0}, s{skq}, 2")
    a(f"s_lshr_b32 s{t0}, {sum((4*INV[r_]) << (4*r_) for r_ in range(4)):#x}, s{t0}")
    a(f"s_and_b32 s{sW0}, s{t0}, 15")
    wo_round(0)
    a("s_branch L_pub")
    for tag, P_, so, off in tails:
        a.lab(f"L_wt{tag}")
        a(f"buffer_store_dwordx4 {vr(P_,4)}, v{TAU}, {S4(rWS)}, s{so} offen offset:{off} sc1")
        a(f"s_branch L_st{tag}")
    for v in nnt:
        a.lab(f"L_nn{v}")
        a(f"buffer_load_dwordx2 {vr(NV,2)}, v{NA}, {S4(rDBG)}, 0 offen sc1")
        a(f"s_branch L_nnb{v}")
    for tag, nm in stails:
        a.lab(f"L_ns{tag}")
        stamp(a, nm)
        a(f"s_branch L_nb{tag}")
    for name, target, reg in slow:
        a.lab(f"{name}_slow")
        lwait(a, name, 0, target, 1, reg)
        a(f"s_branch {name}_back")
    if LOW[0] >= 0:
        for p, pr in zip(LOW, (0, 2)):
            a.lab(f"L_low{p}")
            a(f"s_setprio {pr}")
            a(f"s_branch L_lowb{p}")
    a.lab("L_f1wt")
    a(f"buffer_store_dwordx2 {vr(NV,2)}, off, {S4(rWS)}, s{sF1O} sc1")
    a("s_branch L_f1st")
    for tag in "LC":
        a.lab(f"L_nonce_retry{tag}")
        a(f"buffer_load_dwordx2 {vr(NV,2)}, off, {S4(rDBG)}, s{sDL} sc1")
        a(f"s_sub_u32 s{t3}, s{t3}, 1")
        a("s_cbranch_scc1 L_end")
        a("s_waitcnt vmcnt(0)")
        a(f"s_branch L_nonce{tag}")
    a.lab("L_fallback")
    QO = Q[3]; S0 = SB[0]; K0 = KB[0]; V0 = VB[0]; M = T + 2
    a("s_waitcnt vmcnt(0)")
    a(f"s_mov_b32 s{sFB}, 1")
    a("s_mov_b32 exec_lo, 0")
    a(f"v_mov_b32 v{QO+6}, 0")
    a("s_mov_b32 exec_lo, -1")
    for r in range(16): a(f"v_mov_b32 v{OO+r}, 0")
    a(f"v_mov_b32 v{M}, 0xff7fffff")
    a(f"s_mov_b32 s{sKVO}, 0")
    a.lab("L_fb_loop")
    a(f"buffer_load_dwordx4 {vr(K0,4)}, v{L16}, {S4(rKV)}, s{sKVO} offen sc1")
    a(f"buffer_load_dwordx4 {vr(K0+4,4)}, v{L16}, {S4(rKV)}, s{sKVO} offen offset:1024 sc1")
    a(f"buffer_load_dwordx4 {vr(V0,4)}, v{L16}, {S4(rKV)}, s{sKVO} offen offset:2048 sc1")
    a(f"buffer_load_dwordx4 {vr(V0+4,4)}, v{L16}, {S4(rKV)}, s{sKVO} offen offset:3072 sc1")
    a("s_waitcnt vmcnt(0)")
    a(f"v_mfma_f32_32x32x16_bf16 {vr(S0,16)}, {vr(K0,4)}, {vr(QO,4)}, 0")
    a(f"v_mfma_f32_32x32x16_bf16 {vr(S0,16)}, {vr(K0+4,4)}, {vr(QO+4,4)}, {vr(S0,16)}")
    a("s_nop 15")
    a(f"v_max3_f32 v{T}, v{M}, v{S0}, v{S0+1}")
    for i in range(2, 16, 2): a(f"v_max3_f32 v{T}, v{T}, v{S0+i}, v{S0+i+1}")
    a(f"v_mov_b32 v{T+1}, v{T}")
    a("s_nop 1")
    a(f"v_permlane32_swap_b32 v{T}, v{T+1}")
    a(f"v_max_f32 v{T}, v{T}, v{T+1}")
    a(f"v_sub_f32 v{T+1}, v{M}, v{T}")
    a(f"v_exp_f32 v{T+1}, v{T+1}")
    a(f"v_mov_b32 v{M}, v{T}")
    for r in range(16): a(f"v_sub_f32 v{S0+r}, v{S0+r}, v{T}")
    for r in range(16): a(f"v_exp_f32 v{S0+r}, v{S0+r}")
    for r in range(16): a(f"v_mul_f32 v{OO+r}, v{OO+r}, v{T+1}")
    a("s_nop 1")
    a(f"v_smfmac_f32_32x32x32_bf16 {vr(OO,16)}, {vr(V0,4)}, {vr(S0,8)}, v{IDX}")
    a(f"v_smfmac_f32_32x32x32_bf16 {vr(OO,16)}, {vr(V0+4,4)}, {vr(S0+8,8)}, v{IDX}")
    a(f"s_add_u32 s{sKVO}, s{sKVO}, 4096")
    a(f"s_cmp_lt_u32 s{sKVO}, 262144")
    a("s_nop 15")
    a("s_cbranch_scc1 L_fb_loop")
    a(f"v_mov_b32 v{T}, v{OO+12}")
    a(f"v_mov_b32 v{T+1}, v{OO+12}")
    a("s_nop 1")
    a(f"v_permlane32_swap_b32 v{T}, v{T+1}")
    a("s_branch L_norm")
    if SCP:
        a.raw(".p2align 12")
        a("s_endpgm")
    kd = f""".section .rodata,"a"
.p2align 6
.amdhsa_kernel {n}
  .amdhsa_next_free_vgpr 256
  .amdhsa_next_free_sgpr 102
  .amdhsa_accum_offset 256
  .amdhsa_group_segment_fixed_size 0
  .amdhsa_kernarg_size 72
  .amdhsa_user_sgpr_count 2
  .amdhsa_user_sgpr_kernarg_segment_ptr 1
  .amdhsa_system_sgpr_workgroup_id_x 1
.end_amdhsa_kernel
"""
    return a.text() + kd

hdr = f"""; Two multi-head attention blocks (S=2048, D=448, H=16, Dh=28), one launch, 256 workgroups of 8 waves, one per CU.
;  1. projection: K and V^T fragments go to ws, Q stays in LDS.  Feature 28 of K is 1 and feature 28 of Q carries -m, so the
;  2. attention: m is the row maximum over the wave's first key tile; the row sum and the outputs are range checked and a
;     q tile that fails is recomputed with the running maximum.  P stays in f32 registers: the sparse MFMA picks the high halves.
; Hand-offs carry a per-launch tag agreed through d_debug.  K/V are stored plainly only when every workgroup of the class has
; registered on this die; otherwise they are written through, so any placement gives the same result.
; @launch grid=(256,1,1) block=(512,1,1) lds={LDS}
.amdgcn_target "amdgcn-amd-amdhsa--gfx950"
.text
"""
open(sys.argv[1] if len(sys.argv) > 1 else "v13.s", "w").write(hdr + gen())
```

```python
import sys, os, struct, math
NAME = "concat_heads__softmax_full_mha__softmax_full_mha__prompt"
def f2u(x): return struct.unpack("<I", struct.pack("<f", x))[0]
CSCALE = f2u(28 ** -0.5 * math.log2(math.e))
E = os.environ.get
STAMP = E("STAMP", "0") in ("1", "3")
RTS = E("STAMP", "0") == "3"
DIAG = E("DIAG", "")
STL = E("STL", "c0,p1end,ack1,poll1,loop0,loop1,flag2,poll2,oland").split(",")
F2SP = int(E("F2SP", "32"))
FORCEFB = E("FORCEFB", "0") == "1"
LOCAL = E("LOCAL", "1") == "1"
PRET = int(E("PRET", "3"))
SLEEP = int(E("SLEEP", "0"))
OUTF = E("OUTF", "sc1").replace("_", " ")
ROTA, ROTB, ROTC, ROTN, ROTS = [int(v) for v in E("ROTP", "1,0,2,7,1").split(",")]
WOFL = int(E("WOFL", "5"))
NOWN = int(E("NOWN", "4"))
NPOS = int(E("NPOS", "5"))
ARR3 = E("ARR3", "late")
OUTW = int(E("OUTW", "0"))
WOT = int(E("WOT", "30"))
HB = int(E("HB", "0"))
BPOS = int(E("BPOS", "2"))
TLBW = int(E("TLBW", "0"))
PROBE = int(E("PROBE", "0"))
WPRIO = int(E("WPRIO", "0"))
PRET2 = int(E("PRET2", "0"))
LG = int(E("LG", "0"))
PF2 = E("PF2", "sc1").replace("_", " ")
SF2 = E("SF2", "sc1").replace("_", " ")
PIPE = int(E("PIPE", "0"))
PW0 = int(E("PW0", "1"))
F1SP = int(E("F1SP", "128"))
K1L = int(E("K1L", "1"))
LQ0 = int(E("LQ0", "0"))
PGA = int(E("PGA", "1"))
FPOS = int(E("FPOS", "22"))
QB = int(E("QB", "12"))
TEAR = int(E("TEAR", "0"))
B2 = int(E("B2", "0"))
LPR = int(E("LPR", "0"))
CPF = int(E("CPF", "0"))
UBY = int(E("UBY", "0"))
SLD = int(E("SLD", "6"))
NRC = 139264
MIX = int(E("MIX", "0"))
WB = E("WB", "q54")
PAD = int(E("PAD", "0"), 0)
VIS = int(E("VIS", "0"))
SCP = int(E("SCP", "0"))
INL = int(E("INL", "1"))
PG3 = int(E("PG3", "0"))
TWO = int(E("TWO", "0"))
STL_ = int(E("STN", "0"))
ST0 = int(E("ST0", "3"))
SGL = E("SGL", "")
PGT = int(E("PGT", "-1"))
SP = int(E("SP", "2"))
WF0 = E("WF0", ""); WF = E("WF", ""); XF0 = E("XF0", ""); XF = E("XF", ""); KVS = E("KVS", ""); WOF = E("WOF", ""); TF = E("TF", "sc1").replace("_", " "); KVL = E("KVL", "sc1").replace("_", " ")
LOW = [int(x) for x in E("LOW", "-1,-1").split(",")]
QFAST = int(E("QFAST", "1"))
FT = E("FT", "")
P0S = int(E("P0S", "1"))
SL1 = int(E("SL1", "0"))
PEX = int(E("PEX", "1"))
EARLYP = int(E("EARLYP", "1"))
GLOOK = int(E("GLOOK", "0"))
LOOK = int(E("LOOK", "16"))
LOOK2 = int(E("LOOK2", "7"))
HSL = int(E("HSL", "4"))
XMAP = E("XMAP", "10542367")
T2POS = E("T2POS", "b6")
SPIN = 1 << 22

X_F1 = 1 << 20
B_BASE = 16 << 20; B_F2 = 1835008
STAGE = 40960; XOFF = 24576
PB0 = 57344; QX = 122880; MX = 106496; PB1 = 113664; TX = 122880; ES = 57344; LS = 86016; LDS = 163840; GBC = 163808

class A:
    def __init__(self):
        self.l = []; self.vm = []; self.done = 0
    def __call__(self, s): self.l.append("    " + s)
    def lab(self, s): self.l.append(s + ":")
    def raw(self, s): self.l.append(s)
    def note(self, s):
        for x in s.strip().split("\n"): self.l.append("; " + x.strip())
    def text(self): return "\n".join(self.l) + "\n"
    def vreset(self): self.vm = []; self.done = 0
    def vmem(self, s, tag=None):
        self(s); self.vm.append(tag)
    def vwait(self, tag):
        idx = [i for i, t in enumerate(self.vm) if t == tag]
        assert idx, tag
        last = idx[-1] + 1
        if last <= self.done: return
        self.done = last
        n = len(self.vm) - last
        assert n < 64
        self(f"s_waitcnt vmcnt({n})")

def vr(b, n): return f"v[{b}:{b+n-1}]"
def S4(b): return f"s[{b}:{b+3}]"
def S2(b): return f"s[{b}:{b+1}]"
JIT = int(E("JIT", "0")); njit = [0]
def stamp(a, name):
    if JIT and (not name.startswith("ph") or int(name[2:]) % 9 == 2):
        import zlib
        njit[0] += 1
        h = zlib.crc32(f"{name}{JIT}".encode())
        a("s_cselect_b32 s96, 1, 0")
        a(f"s_mul_i32 s97, s41, {1 + 2 * (h & 3)}")
        a("s_add_u32 s97, s97, s46")
        a("s_add_u32 s97, s97, s40")
        a(f"s_and_b32 s97, s97, {7 if h & 4 else 3}")
        a(f"s_cmp_lg_u32 s97, {(h >> 4) & 3}")
        a(f"s_cbranch_scc1 L_jit{njit[0]}")
        for _ in range(1 + ((h >> 8) & 3)): a("s_sleep 100")
        a.lab(f"L_jit{njit[0]}")
        a("s_cmp_lg_u32 s96, 0")
    if DIAG == name: a("s_memrealtime s[80:81]")
    if DIAG == name + "@0":
        a("s_cmp_lg_u32 s50, 0")
        a("s_cbranch_scc1 L_dg0")
        a("s_memrealtime s[80:81]")
        a.lab("L_dg0")
    if STAMP and name in STL:
        i = STL.index(name)
        a(f"{'s_memrealtime' if RTS else 's_memtime'} s[{80+2*i}:{81+2*i}]")

rX, rW, rWS, rWO, rOUT, rDBG, rKV, rBR = 24, 28, 32, 36, 64, 68, 72, 12
XM = 4
sLOC, sRT, sOUTO, sQT, sF1O, sPE = 6, 7, 8, 9, 10, 11
sKVO, sWOS, sWOL, sOO, sF2O, sFB = 16, 17, 18, 19, 22, 23
sx, sidx, sb, srb, shalf, sXS, sw, shl, shs, sg4, sg, sWL, sXL, sWS_, stt, scg, skq, su = range(40, 58)
t0, t1, sDL, t2, sROT, t3 = 58, 59, 60, 61, 62, 63
NONCE = 76; RT = 78
KT = [24, 25, 26, 27, 28]
KP = [24, 26, 28, 30, 44, 52, 54, 20]
L16, IDX, CA, F1A, ONE, L8, MW, MR, PW, PR, TAU = 1, 2, 3, 4, 5, 6, 7, 8, 11, 14, 15
T = 240
XD, WD, XA, WA1, QW, NV, NA, PTA = 16, 18, 16, 20, 23, 232, 234, 235
ACC = 32; FR = 128; P1 = 208
Q = [16, 24, 32, 40]; O = [48, 64, 80, 96]; SB = [112, 128, 144]; KB = [176, 184, 192, 200]; VB = [208, 216, 224, 232]
WA, F2B, TW, OA, WOA, F2A, OUTA, TR = 160, 163, 166, 168, 172, 173, 174, 175
ORD = [0, 2, 3, 1]
LF, LM, C0A = 163, 164, 165
sLS, sLL, sLS2 = 43, 51, 57

def lwait(a, name, off, target, sleep=2, reg=None):
    a(f"s_mov_b32 s{t3}, {SPIN}")
    a.lab(f"{name}_spin")
    a(f"ds_read_b32 v{T+13}, v{reg or CA} offset:{off}")
    a(f"s_sub_u32 s{t3}, s{t3}, 1")
    a("s_cbranch_scc1 L_end")
    a("s_waitcnt lgkmcnt(0)")
    a(f"v_readfirstlane_b32 s{t2}, v{T+13}")
    a(f"s_cmp_ge_u32 s{t2}, {target}")
    if sleep:
        a(f"s_cbranch_scc1 {name}_done")
        a(f"s_sleep {sleep}")
        a(f"s_branch {name}_spin")
        a.lab(f"{name}_done")
    else:
        a(f"s_cbranch_scc0 {name}_spin")
def arrive(a, off=0):
    a("s_mov_b64 exec, 1")
    a(f"ds_add_u32 v{CA}, v{ONE} offset:{off}")
    a("s_mov_b64 exec, -1")
slow = []
def lpre(a, reg=None):
    if INL: a(f"s_mov_b32 s{t3}, {SPIN}")
    a(f"ds_read_b32 v{T+13}, v{reg or CA}")
def lcheck(a, name, target, reg=None):
    if INL:
        a.lab(f"{name}_re")
        a("s_waitcnt lgkmcnt(0)")
        a(f"v_readfirstlane_b32 s{t2}, v{T+13}")
        a(f"s_sub_u32 s{t3}, s{t3}, 1")
        a(f"ds_read_b32 v{T+13}, v{reg or CA}")
        a("s_cbranch_scc1 L_end")
        a(f"s_cmp_ge_u32 s{t2}, {target}")
        a(f"s_cbranch_scc0 {name}_re")
        a.lab(f"{name}_back")
        return
    a("s_waitcnt lgkmcnt(0)")
    a(f"v_readfirstlane_b32 s{t2}, v{T+13}")
    a(f"s_cmp_ge_u32 s{t2}, {target}")
    a(f"s_cbranch_scc0 {name}_slow")
    a.lab(f"{name}_back")
    slow.append((name, target, reg))
def gbar(a, name, k):
    arrive(a)
    lwait(a, name, 0, 4 * k)
def poll_pipe(a, name, vaddr, srd, fl, regs):
    n_ = len(regs)
    a(f"s_mov_b32 s{t3}, {SPIN}")
    for r in regs[:-1]:
        a(f"buffer_load_dwordx2 {vr(r,2)}, v{vaddr}, {S4(srd)}, 0 offen {fl}")
        a(f"s_sleep {PIPE}")
    a.lab(f"{name}_spin")
    for i in range(n_):
        a(f"buffer_load_dwordx2 {vr(regs[(i-1)%n_],2)}, v{vaddr}, {S4(srd)}, 0 offen {fl}")
        a(f"s_waitcnt vmcnt({n_-1})")
        a(f"v_cmp_ne_u64 vcc, {S2(NONCE)}, {vr(regs[i],2)}")
        a(f"s_cbranch_vccz {name}_ok")
    a(f"s_sub_u32 s{t3}, s{t3}, 1")
    a(f"s_cbranch_scc0 {name}_spin")
    a("s_branch L_end")
    a.lab(f"{name}_ok")
def poll(a, name, vaddr, srd, fl="sc1", lanes=4, SLEEP=0):
    a(f"s_mov_b32 s{t3}, {SPIN}")
    if PEX: a(f"s_mov_b64 exec, {(1 << lanes) - 1:#x}")
    if SLEEP: a(f"s_branch {name}_first")
    a.lab(f"{name}_spin")
    if SLEEP:
        a(f"s_sleep {SLEEP}")
        a.lab(f"{name}_first")
    a(f"buffer_load_dwordx2 {vr(T+14,2)}, v{vaddr}, {S4(srd)}, 0 offen {fl}")
    a(f"s_sub_u32 s{t3}, s{t3}, 1")
    a("s_cbranch_scc1 L_end")
    a("s_waitcnt vmcnt(0)")
    a(f"v_cmp_ne_u64 vcc, {S2(NONCE)}, {vr(T+14,2)}")
    a(f"s_cbranch_vccnz {name}_spin")
    if PEX: a("s_mov_b64 exec, -1")

def wbl2(a, tag, wave):
    a(f"s_cmp_lg_u32 s{sw}, {wave}")
    a(f"s_cbranch_scc1 L_wb{tag}")
    a(f"s_cmp_lg_u32 s{sidx}, 3")
    a(f"s_cbranch_scc1 L_wb{tag}")
    a("buffer_wbl2 sc1")
    a.lab(f"L_wb{tag}")

def gen():
    a = A(); n = NAME + "_kernel"
    tails = []; stails = []; nnt = []
    u0, u1, u2, u3, u4 = T, T + 1, T + 2, T + 3, T + 4
    a.raw(f".globl {n}\n" + (".p2align 12\n" if PGA else "") + (f".fill {PAD//4}, 4, 0xbf800000\n" if PAD else "") + f".p2align 8\n.type {n},@function")
    a.lab(n)
    a("s_cmp_ge_u32 s2, 256")
    a("s_cbranch_scc1 L_end")
    a("s_load_dwordx16 s[4:19], s[0:1], 0")
    a("s_load_dwordx2 s[20:21], s[0:1], 64")
    a(f"s_memrealtime {S2(RT)}")
    if STAMP and not RTS: a("s_memtime s[100:101]")
    a(f"s_and_b32 s{sx}, s2, 7")
    a(f"s_lshr_b32 s{sidx}, s2, 3")
    a("v_lshrrev_b32 v1, 6, v0")
    a("v_and_b32 v0, 63, v0")
    a(f"v_readfirstlane_b32 s{sw}, v1")
    if XMAP:
        tab = sum(int(c) << (4 * i) for i, c in enumerate(XMAP))
        assert sorted(XMAP) == list("01234567")
        a(f"s_lshl_b32 s{t0}, s{sx}, 2")
        a(f"s_lshr_b32 s{t0}, {tab:#x}, s{t0}")
        a(f"s_bfe_u32 s{sb}, s{t0}, 0x10002")
        a(f"s_and_b32 s{sg4}, s{t0}, 3")
    else:
        a(f"s_lshr_b32 s{sb}, s{sx}, 2")
        a(f"s_and_b32 s{sg4}, s{sx}, 3")
    a(f"s_lshr_b32 s{srb}, s{sidx}, 1")
    a(f"s_and_b32 s{shalf}, s{sidx}, 1")
    if TLBW:
        a(f"s_cmp_lt_u32 s{sw}, 4")
        a("s_cbranch_scc1 L_load")
        a(f"s_mul_i32 s{t0}, s{srb}, {128*896}")
        a(f"s_cmp_eq_u32 s{sb}, 0")
        a(f"v_mov_b32 v{u0}, s{t0}")
        a(f"v_mul_u32_u24 v{u1}, {7*2688}, v0")
        a("s_waitcnt lgkmcnt(0)")
        a(f"s_cselect_b64 {S2(rX)}, s[4:5], s[10:11]")
        a(f"s_cselect_b64 {S2(rW)}, s[6:7], s[12:13]")
        if TLBW == 1: a("s_mov_b64 exec, 1")
        a(f"global_load_dword v{T+10}, v{u0}, {S2(rX)}")
        a(f"global_load_dword v{T+11}, v{u1}, {S2(rW)}")
        a("s_mov_b64 exec, -1")
        a("s_branch L_comp")
        a.lab("L_load")
    else:
        a(f"s_cmp_ge_u32 s{sw}, 4")
        a("s_cbranch_scc1 L_comp")
    def stamp_init():
        if DIAG: a(f"s_mov_b32 s80, s{RT}")
        if STAMP and STL != ["none"]:
            for k in range(9): a(f"s_mov_b32 s{80+2*k}, s{RT if RTS else 100}")
    def dbg_desc():
        a(f"s_mov_b32 s{rDBG}, s18"); a(f"s_mov_b32 s{rDBG+1}, s19"); a(f"s_mov_b32 s{rDBG+2}, 256"); a(f"s_mov_b32 s{rDBG+3}, 0x00020000")
        a(f"s_lshl_b32 s{sDL}, s{sb}, 3")
    def ws_desc():
        a(f"s_lshl_b32 s{t2}, s{sx}, 21")
        a(f"s_add_u32 s{rWS}, s20, s{t2}")
        a(f"s_addc_u32 s{rWS+1}, s21, 0")
        a(f"s_mov_b32 s{rWS+2}, {2<<20}")
        a(f"s_mov_b32 s{rWS+3}, 0x00020000")
    def ids2a(g, ws=True):
        a(f"s_cmp_eq_u32 s{sb}, 0")
        a(f"s_cselect_b32 s{rWO}, s8, s14")
        a(f"s_cselect_b32 s{rWO+1}, s9, s15")
        a(f"s_mov_b32 s{rWO+2}, 401408")
        a(f"s_mov_b32 s{rWO+3}, 0x00020000")
        a(f"s_mov_b32 s{rOUT}, s16"); a(f"s_mov_b32 s{rOUT+1}, s17"); a(f"s_mov_b32 s{rOUT+2}, {2048*896*2}"); a(f"s_mov_b32 s{rOUT+3}, 0x00020000")
        if ws: ws_desc()
        a(f"s_lshl_b32 s{t2}, s{sb}, 21")
        a(f"s_add_u32 s{t2}, s{t2}, {B_BASE}")
        a(f"s_add_u32 s{rBR}, s20, s{t2}")
        a(f"s_addc_u32 s{rBR+1}, s21, 0")
        a(f"s_mov_b32 s{rBR+2}, {2<<20}")
        a(f"s_mov_b32 s{rBR+3}, 0x00020000")
        a(f"s_mov_b32 s{sg}, {g}")
        a(f"s_and_b32 s{shs}, s{srb}, 1")
        if g: a(f"s_xor_b32 s{shs}, s{shs}, 1")
        a(f"s_lshl_b32 s{shl}, s{shalf}, 1")
        a(f"s_add_u32 s{shl}, s{shl}, s{shs}")
        a(f"s_lshl_b32 s{t2}, s{shl}, 18")
        a(f"s_add_u32 s{rKV}, s{rWS}, s{t2}")
        a(f"s_addc_u32 s{rKV+1}, s{rWS+1}, 0")
        a(f"s_mov_b32 s{rKV+2}, 262144")
        a(f"s_mov_b32 s{rKV+3}, 0x00020000")
        a(f"s_and_b32 s{skq}, s{sw}, 3")
        a(f"s_lshl_b32 s{sKVO}, s{skq}, 16")
        a(f"v_and_b32 v{u0}, 15, v0")
        a(f"v_lshlrev_b32 v{u0}, 3, v{u0}")
        a(f"s_lshl_b32 s{t0}, s{shalf}, 2")
        a(f"s_add_u32 s{t0}, s{t0}, s{skq}")
        a(f"s_mul_i32 s{t0}, s{t0}, {F1SP}")
        a(f"s_add_u32 s{t0}, s{t0}, {X_F1}")
        a(f"v_add_u32 v{F1A}, s{t0}, v{u0}")
    def ids2b(g):
        a(f"v_lshlrev_b32 v{L16}, 4, v0")
        a(f"v_lshlrev_b32 v{L8}, 3, v0")
        a(f"v_lshlrev_b32 v{u0}, 2, v0")
        a(f"v_mov_b32 v{IDX}, 0xdddddddd")
        pb = PB1 if g else PB0; mx = MX + 1024 * g
        a(f"s_lshl_b32 s{t1}, s{skq}, 8")
        a(f"s_add_u32 s{t1}, s{t1}, {mx}")
        a(f"v_add_u32 v{MW}, s{t1}, v{u0}")
        a(f"s_mul_i32 s{t1}, s{skq}, 12288")
        a(f"s_add_u32 s{t1}, s{t1}, {pb}")
        a(f"v_add_u32 v{PR}, s{t1}, v{L16}")
        for i in range(3):
            a(f"s_add_u32 s{t0}, s{skq}, {1+i}")
            a(f"s_and_b32 s{t0}, s{t0}, 3")
            a(f"s_lshl_b32 s{t1}, s{t0}, 8")
            a(f"s_add_u32 s{t1}, s{t1}, {mx}")
            a(f"v_add_u32 v{MR+i}, s{t1}, v{u0}")
            a(f"s_mul_i32 s{t1}, s{t0}, 12288")
            a(f"s_add_u32 s{t1}, s{t1}, {pb + 4096*i}")
            a(f"v_add_u32 v{PW+i}, s{t1}, v{L16}")
        a(f"v_mov_b32 v{CA}, {GBC + 4*g}")
        a(f"v_mov_b32 v{ONE}, 1")
        a(f"s_lshl_b32 s{sQT}, s{srb}, 2")
        a(f"s_add_u32 s{sQT}, s{sQT}, s{skq}")
        a(f"s_lshl_b32 s{t0}, s{sg4}, 2")
        a(f"s_lshr_b32 s{t0}, {sum((2*ORD[g_]) << (4*g_) for g_ in range(4)):#x}, s{t0}")
        a(f"s_and_b32 s{t0}, s{t0}, 7")
        a(f"s_add_u32 s{t0}, s{t0}, s{shalf}")
        a(f"s_lshl_b32 s{t1}, s{shs}, 3")
        a(f"s_add_u32 s{t0}, s{t0}, s{t1}")
        a(f"s_lshl_b32 s{t1}, s{sQT}, 4")
        a(f"s_add_u32 s{t1}, s{t1}, s{t0}")
        a(f"s_mul_i32 s{sOO}, s{t1}, 1792")
        a(f"s_mul_i32 s{sF2O}, s{t1}, {F2SP}")
        a(f"s_add_u32 s{sF2O}, s{sF2O}, {B_F2}")
    def late_addr():
        a(f"s_lshl_b32 s{t0}, s{sg4}, 3")
        a(f"s_lshr_b32 s{t1}, s{sidx}, 2")
        a(f"s_add_u32 s{t0}, s{t0}, s{t1}")
        a(f"s_and_b32 s{t1}, s{t0}, 2")
        a(f"s_xor_b32 s{t1}, s{t1}, 2")
        a(f"s_lshl_b32 s{t1}, s{t1}, 2")
        a(f"s_lshl_b32 s{t0}, s{t0}, 5")
        a(f"s_add_u32 s{t0}, s{t0}, s{t1}")
        a(f"s_and_b32 s{t1}, s{skq}, 1")
        a(f"s_mul_i32 s{sLL}, s{t1}, 14336")
        a(f"s_lshl_b32 s{t1}, s{t1}, 4")
        a(f"s_add_u32 s{t0}, s{t0}, s{t1}")
        a(f"s_and_b32 s{t1}, s{skq}, 2")
        a(f"s_lshl_b32 s{t1}, s{t1}, 1")
        a(f"s_add_u32 s{t0}, s{t0}, s{t1}")
        a(f"v_and_b32 v{LF}, 3, v0")
        a(f"v_add_u32 v{LF}, s{t0}, v{LF}")
        a(f"v_mul_u32_u24 v{LF}, {F2SP}, v{LF}")
        a(f"v_add_u32 v{LF}, {B_F2}, v{LF}")
        a(f"s_mul_i32 s{sLS}, s{t0}, 1792")
        a(f"s_add_u32 s{sLS2}, s{sLS}, 4096")
        a(f"s_mul_i32 s{t1}, s{t1}, 1792")
        a(f"s_add_u32 s{sLL}, s{sLL}, s{t1}")
        a(f"s_add_u32 s{sLL}, s{sLL}, {LS}")
        a(f"s_lshl_b32 s{t1}, s{skq}, 2")
        a(f"s_add_u32 s{t1}, s{t1}, {GBC + 16}")
        a(f"v_mov_b32 v{LM}, s{t1}")
        a(f"v_mov_b32 v{C0A}, {GBC}")
    def pre2():
        late_addr()
        for r in range(4): a(f"v_mov_b32 v{SB[0]+r}, 0")
        a("s_nop 1")
        for i in range(4): a(f"v_mfma_f32_32x32x16_bf16 {vr(O[i],16)}, {vr(SB[0],4)}, {vr(SB[0],4)}, 0")
        if STAMP: a("s_mov_b64 s[2:3], s[20:21]")
        a(f"s_add_u32 s{t0}, s{rKV}, s{sKVO}")
        a(f"s_addc_u32 s{t1}, s{rKV+1}, 0")
        for k in range(8):
            a(f"s_add_u32 s{KP[k]}, s{t0}, {8192*k + 4096}")
            a(f"s_addc_u32 s{KP[k]+1}, s{t1}, 0")
        if WOT >= 0:
            a(f"s_lshl_b32 s{t0}, s{sidx}, 2")
            a(f"s_add_u32 s{t0}, s{t0}, s{skq}")
            a(f"s_mul_i32 s{t0}, s{t0}, 25")
            a(f"v_min_u32 v{TAU}, 24, v0")
            a(f"v_add_u32 v{TAU}, s{t0}, v{TAU}")
            a(f"v_lshlrev_b32 v{TAU}, 7, v{TAU}")
    def getq(g):
        a(f"s_lshl_b32 s{t1}, s{shs}, 13")
        a(f"s_add_u32 s{t1}, s{t1}, {QX}")
        for i in range(4):
            a(f"s_add_u32 s{t0}, s{skq}, {1+i}")
            a(f"s_and_b32 s{t0}, s{t0}, 3")
            a(f"s_lshl_b32 s{t0}, s{t0}, 11")
            a(f"s_add_u32 s{t0}, s{t0}, s{t1}")
            a(f"v_add_u32 v{u0+i}, s{t0}, v{L16}")
        a(f"v_mov_b32 v{T+4}, {GBC + 8}")
        a(f"v_mov_b32 v{T+5}, {GBC + 12 if g else GBC - 4}")
    def getq2():
        lwait(a, "L_q", 0, 4, 0 if QFAST else 1, T + 4)
        for i in (3, 0, 1, 2):
            a(f"ds_read_b128 {vr(Q[i],4)}, v{u0+i}")
            a(f"ds_read_b128 {vr(Q[i]+4,4)}, v{u0+i} offset:1024")
    def nonce(tag):
        a(f"s_mov_b32 s{t3}, {SPIN}")
        a.lab(f"L_nonce{tag}")
        a(f"v_readfirstlane_b32 s{NONCE}, v{NV}")
        a(f"v_readfirstlane_b32 s{NONCE+1}, v{NV+1}")
        a(f"s_cmp_lg_u32 s{NONCE}, 0")
        a(f"s_cselect_b32 s{t2}, s{NONCE+1}, 0")
        a(f"s_cmp_lg_u32 s{t2}, 0")
        a(f"s_cbranch_scc0 L_nonce_retry{tag}")
    a(f"v_lshrrev_b32 v{u0}, 3, v0")
    a(f"v_lshrrev_b32 v{u1}, 4, v0")
    a(f"v_and_b32 v{u2}, 7, v0")
    a(f"s_lshl_b32 s{t0}, s{srb}, 7")
    a(f"s_lshl_b32 s{t1}, s{sw}, 5")
    a(f"s_add_u32 s{t0}, s{t0}, s{t1}")
    a(f"v_add_u32 v{u3}, s{t0}, v{u0}")
    a(f"v_mul_u32_u24 v{u3}, 896, v{u3}")
    a(f"v_xor_b32 v{u4}, v{u2}, v{u1}")
    a(f"v_lshl_add_u32 v{XD}, v{u4}, 4, v{u3}")
    a(f"v_xor_b32 v{XD+1}, 64, v{XD}")
    a(f"v_add_u32 v{XD+1}, 7168, v{XD+1}")
    a(f"s_mul_i32 s{t0}, s{sg4}, 224")
    a(f"s_mul_i32 s{t1}, s{sw}, {16*2688}")
    a(f"s_add_u32 s{t0}, s{t0}, s{t1}")
    a(f"s_mul_i32 s{t1}, s{shalf}, 896")
    a(f"s_add_u32 s{t1}, s{t1}, s{t0}")
    a(f"s_add_u32 s{t1}, s{t1}, 896")
    a(f"v_lshlrev_b32 v{u3}, 2, v{u1}")
    a(f"v_and_b32 v{u4}, 15, v0")
    a(f"v_xor_b32 v{u4}, v{u4}, v{u3}")
    a(f"v_cmp_lt_u32 vcc, 13, v{u4}")
    a(f"v_mul_u32_u24 v{u1}, 2688, v{u1}")
    a(f"v_lshl_add_u32 v{u1}, v{u4}, 4, v{u1}")
    a(f"v_add_u32 v{WD}, s{t1}, v{u1}")
    a(f"v_bfrev_b32 v{u4}, 2")
    a(f"v_cndmask_b32 v{WD}, v{WD}, v{u4}, vcc")
    a(f"s_mul_i32 s{t1}, s{shalf}, 112")
    a(f"s_add_u32 s{t1}, s{t1}, s{t0}")
    a(f"v_and_b32 v{u3}, 4, v{u3}")
    a(f"v_xor_b32 v{u2}, v{u2}, v{u3}")
    a(f"v_cmp_lt_u32 vcc, 6, v{u2}")
    a(f"v_mul_u32_u24 v{u0}, 2688, v{u0}")
    a(f"v_lshl_add_u32 v{u0}, v{u2}, 4, v{u0}")
    a(f"v_add_u32 v{WD+1}, s{t1}, v{u0}")
    a(f"v_cndmask_b32 v{WD+1}, v{WD+1}, v{u4}, vcc")
    if ROTN > 1:
        a(f"s_mul_i32 s{sROT}, s{srb}, {ROTA}")
        if ROTB:
            a(f"s_mul_i32 s{t0}, s{shalf}, {ROTB}")
            a(f"s_add_u32 s{sROT}, s{sROT}, s{t0}")
        a(f"s_mul_i32 s{t2}, s{sg4}, {ROTC}")
        a(f"s_add_u32 s{sROT}, s{sROT}, s{t2}")
        if ROTN & (ROTN - 1) == 0:
            a(f"s_and_b32 s{sROT}, s{sROT}, {ROTN-1}")
        else:
            a(f"s_mul_i32 s{t2}, s{sROT}, {(65536 + ROTN - 1)//ROTN}")
            a(f"s_lshr_b32 s{t2}, s{t2}, 16")
            a(f"s_mul_i32 s{t2}, s{t2}, {ROTN}")
            a(f"s_sub_u32 s{sROT}, s{sROT}, s{t2}")
        if ROTS != 1: a(f"s_mul_i32 s{sROT}, s{sROT}, {ROTS}")
    else:
        a(f"s_mov_b32 s{sROT}, 0")
    assert (ROTN - 1) * ROTS < 7
    a(f"s_lshl_b32 s{sXL}, s{sw}, 12")
    a(f"s_add_u32 s{sXL}, s{sXL}, {XOFF}")
    a(f"s_mul_i32 s{sWL}, s{sw}, 6144")
    a(f"s_mov_b32 s{rX+2}, 1835008")
    a(f"s_mov_b32 s{rX+3}, 0x00020000")
    a(f"s_mov_b32 s{rW+2}, 1204224")
    a(f"s_mov_b32 s{rW+3}, 0x00020000")
    a(f"s_cmp_eq_u32 s{sb}, 0")
    a("s_waitcnt lgkmcnt(0)")
    a(f"s_cselect_b32 s{rX}, s4, s10")
    a(f"s_cselect_b32 s{rX+1}, s5, s11")
    a(f"s_cselect_b32 s{rW}, s6, s12")
    a(f"s_cselect_b32 s{rW+1}, s7, s13")
    stamp_init()
    stamp(a, "karg")
    def one(kind, i, wl=sWL, ws=sWS_, add=0, first=False):
        xf, wf = (XF0, WF0) if first else (XF, WF)
        if kind == "x":
            a(f"s_add_u32 m0, s{sXL}, {1024*i}")
            a(f"s_add_u32 s{t0}, s{sXS}, {14336*(i//2)}")
            a(f"buffer_load_dwordx4 v{XD+(i&1)}, {S4(rX)}, s{t0} offen {xf} lds")
        else:
            G, q = divmod(i, 3)
            a(f"s_add_u32 m0, s{wl}, {1024*i + add}")
            a(f"s_add_u32 s{t0}, s{ws}, {(8*G + (4*q if q < 2 else 0))*2688}")
            a(f"buffer_load_dwordx4 v{WD+(q==2)}, {S4(rW)}, s{t0} offen {wf} lds")
    sB4, sB5, sB6 = scg, su, sFB
    def issue(first):
        a(f"s_lshl_b32 s{sXS}, s{sROT}, 7")
        a(f"s_mul_i32 s{sWS_}, s{sROT}, 172032")
        for kind, i in [("x", 0), ("w", 0), ("x", 1), ("w", 1), ("x", 2), ("w", 3), ("x", 3), ("w", 4)]: one(kind, i, first=first)
        if not first:
            a(f"s_mov_b32 s{sB4}, s{sB5}")
            a(f"s_mov_b32 s{sB5}, s{sB6}")
            a(f"s_mov_b32 s{sB6}, s{sWS_}")
            a(f"s_cmp_ge_u32 s{stt}, 4")
            a("s_cbranch_scc1 L_nob")
        one("w", 2, first=first); one("w", 5, first=first)
        if not first:
            a("s_branch L_nobr")
            a.lab("L_nob")
            a("s_waitcnt vmcnt(8)")
            a.lab("L_nobr")
        a(f"s_add_u32 s{sROT}, s{sROT}, 1")
        a(f"s_cmp_eq_u32 s{sROT}, 7")
        a(f"s_cselect_b32 s{sROT}, 0, s{sROT}")
        if first:
            a(f"s_add_u32 s{sWL}, s{sWL}, {STAGE}")
            a(f"s_add_u32 s{sXL}, s{sXL}, {STAGE}")
        else:
            a(f"s_cmp_ge_u32 s{sWL}, {2*STAGE}")
            a(f"s_mov_b32 s{t0}, {STAGE}")
            a(f"s_cselect_b32 s{t0}, {(-2*STAGE) & 0xffffffff:#x}, s{t0}")
            a(f"s_add_u32 s{sWL}, s{sWL}, s{t0}")
            a(f"s_add_u32 s{sXL}, s{sXL}, s{t0}")
    if LPR: a(f"s_setprio {LPR}")
    issue(True)
    stamp(a, "iss0")
    if SCP:
        a("s_getpc_b64 s[0:1]")
        a("s_and_b32 s0, s0, 0xfffff000")
        a(f"s_lshl_b32 s{t0}, s{sidx}, 1")
        a(f"s_and_b32 s{t1}, s{sw}, 1")
        a(f"s_add_u32 s{t0}, s{t0}, s{t1}")
        a(f"s_lshl_b32 s{t0}, s{t0}, 6")
        a(f"s_lshr_b32 s{t1}, s{sw}, 1")
        a(f"s_mul_i32 s{t1}, s{t1}, 12288")
        a(f"s_add_u32 s{t0}, s{t0}, s{t1}")
        a(f"s_add_u32 s0, s0, s{t0}")
        a("s_addc_u32 s1, s1, 0")
        for k in range(3): a(f"s_load_dword s3, s[0:1], {4096*k}")
    if TWO:
        issue(True)
        if TWO == 2:
            a("s_waitcnt vmcnt(10)")
            a("s_barrier")
    a(f"s_mov_b32 s{stt}, {2 if TWO else 1}")
    a(f"s_mov_b32 s{su}, 0")
    a(f"s_mov_b32 s{sFB}, 0")
    dbg_desc()
    ids2a(0)
    a(f"s_lshr_b32 s{t0}, s{srb}, 1")
    a(f"s_lshl_b32 s{t0}, s{t0}, 7")
    a(f"s_add_u32 s{sWOS}, s{t0}, s{sKVO}")
    a(f"v_lshlrev_b32 v{PTA}, 10, v0")
    ids2b(0)
    a(f"v_lshrrev_b32 v{u2}, 5, v0")
    a(f"s_and_b32 s{t1}, s{sidx}, 3")
    a(f"s_cmp_eq_u32 s{t1}, 3")
    a(f"s_cselect_b32 s{t0}, 8, 16")
    a(f"s_lshl_b32 s{t1}, s{t1}, 8")
    a(f"v_lshrrev_b32 v{u0}, 4, v0")
    a(f"v_lshlrev_b32 v{u1}, 2, v{u0}")
    a(f"v_and_b32 v{u3}, 15, v0")
    a(f"v_xor_b32 v{u1}, v{u1}, v{u3}")
    a(f"v_cmp_le_u32 vcc, s{t0}, v{u1}")
    a(f"v_mul_u32_u24 v{u0}, 896, v{u0}")
    a(f"v_lshl_add_u32 v{u0}, v{u1}, 4, v{u0}")
    a(f"v_add_u32 v{WOA}, s{t1}, v{u0}")
    a(f"v_bfrev_b32 v{u0}, 2")
    a(f"v_cndmask_b32 v{WOA}, v{WOA}, v{u0}, vcc")
    a(f"s_lshl_b32 s{t2}, s{skq}, 2")
    a(f"s_cmp_lt_u32 s{t2}, s{t0}")
    a(f"s_cselect_b32 s{XM}, 1, 0")
    a(f"s_mul_i32 s{sOUTO}, s{sb}, 896")
    a(f"s_add_u32 s{sOUTO}, s{sOUTO}, s{t1}")
    a(f"s_and_b32 s{t2}, s{skq}, 2")
    a(f"s_lshl_b32 s{t1}, s{t2}, 6")
    a(f"s_add_u32 s{sOUTO}, s{sOUTO}, s{t1}")
    a(f"s_lshl_b32 s{sRT}, s{sg4}, 3")
    a(f"s_lshr_b32 s{t0}, s{sidx}, 2")
    a(f"s_add_u32 s{sRT}, s{sRT}, s{t0}")
    a(f"s_bfe_u32 s{sPE}, s{sRT}, 0x10001")
    a(f"s_lshl_b32 s{sRT}, s{sRT}, 1")
    a(f"v_bfe_u32 v{u0}, v0, 2, 2")
    a(f"v_xor_b32 v{u1}, s{t2}, v{u0}")
    a(f"v_lshlrev_b32 v{u1}, 6, v{u1}")
    a(f"v_lshl_add_u32 v{u1}, v{u0}, 8, v{u1}")
    a(f"v_and_b32 v{u0}, 1, v0")
    a(f"v_lshl_add_u32 v{u1}, v{u0}, 5, v{u1}")
    a(f"v_bfe_u32 v{u0}, v0, 4, 1")
    a(f"v_lshl_add_u32 v{u1}, v{u0}, 4, v{u1}")
    a(f"v_bfe_u32 v{u0}, v0, 1, 1")
    a(f"v_lshl_add_u32 v{u1}, v{u0}, 3, v{u1}")
    HSTEP = [4, 28, 56]
    for t in range(3):
        a(f"v_mul_u32_u24 v{u0}, {HSTEP[t]*256}, v{u2}")
        a(f"v_add_u32 v{WA+t}, v{u1}, v{u0}")
    a(f"s_and_b32 s{t2}, s{skq}, 1")
    a(f"s_mul_i32 s{t1}, s{t2}, 14336")
    a(f"s_add_u32 s{t1}, s{t1}, {ES}")
    a(f"v_add_u32 v{OA}, s{t1}, v{L16}")
    a(f"v_and_b32 v{u0}, 31, v0")
    a(f"v_mul_u32_u24 v{u1}, 1792, v{u2}")
    a(f"v_lshl_add_u32 v{u1}, v{u0}, 4, v{u1}")
    a(f"v_add_u32 v{OA+1}, s{t1}, v{u1}")
    a(f"v_mul_u32_u24 v{u1}, 3584, v{u2}")
    a(f"v_lshl_add_u32 v{u1}, v{u0}, 3, v{u1}")
    a(f"v_add_u32 v{OA+2}, s{t1}, v{u1}")
    a(f"s_lshl_b32 s{t0}, s{skq}, 12")
    a(f"s_add_u32 s{t0}, s{t0}, {TX}")
    a(f"v_add_u32 v{TR}, s{t0}, v{L16}")
    a(f"v_and_b32 v{u1}, 7, v0")
    a(f"v_lshlrev_b32 v{u3}, 1, v{u2}")
    a(f"v_xor_b32 v{u1}, v{u1}, v{u3}")
    a(f"v_lshlrev_b32 v{u1}, 4, v{u1}")
    a(f"v_lshl_add_u32 v{u1}, v{u0}, 7, v{u1}")
    a(f"v_add_u32 v{TW}, s{t0}, v{u1}")
    a(f"v_lshrrev_b32 v{u0}, 3, v0")
    a(f"v_xor_b32 v{u1}, v{u0}, v0")
    a(f"v_and_b32 v{u1}, 7, v{u1}")
    a(f"s_add_u32 s{t0}, s{sRT}, s{t2}")
    a(f"s_lshl_b32 s{t0}, s{t0}, 5")
    a(f"v_add_u32 v{u0}, s{t0}, v{u0}")
    a(f"v_mul_u32_u24 v{u0}, 1792, v{u0}")
    a(f"v_lshl_add_u32 v{OUTA}, v{u1}, 4, v{u0}")
    a(f"s_lshl_b32 s{t0}, s{t2}, 2")
    a(f"s_add_u32 s{t0}, s{t0}, {GBC + 16}")
    a(f"v_mov_b32 v{TW+1}, s{t0}")
    a(f"s_lshr_b32 s{t1}, s{skq}, 1")
    a(f"s_add_u32 s{t0}, s{sRT}, s{t1}")
    a(f"s_lshl_b32 s{t0}, s{t0}, 4")
    a(f"s_lshl_b32 s{t1}, s{sPE}, 3")
    a(f"s_add_u32 s{t0}, s{t0}, s{t1}")
    a(f"s_and_b32 s{t1}, s{skq}, 1")
    a(f"s_lshl_b32 s{t1}, s{t1}, 1")
    a(f"s_lshl_b32 s{t1}, s{t1}, 1")
    a(f"s_add_u32 s{sRT}, s{t0}, s{t1}")
    a(f"v_and_b32 v{u0}, 3, v0")
    a(f"v_add_u32 v{u0}, s{sRT}, v{u0}")
    a(f"v_mul_u32_u24 v{u0}, {F2SP}, v{u0}")
    a(f"v_add_u32 v{F2A}, {B_F2}, v{u0}")
    getq(0)
    if STL_:
        a(f"s_add_u32 s0, s{rKV}, s{sWOS}")
        a(f"s_addc_u32 s1, s{rKV+1}, 0")
    if VIS:
        a("s_branch L_vis")
        a.lab("L_visb")
    stamp(a, "lsetup")
    if TWO == 1:
        a("s_waitcnt vmcnt(10)")
        a("s_barrier")
    a.lab("L_ld")
    issue(False)
    a(f"s_add_u32 s{stt}, s{stt}, 1")
    if STL_:
        a(f"s_cmp_lt_u32 s{stt}, {ST0}")
        a("s_cbranch_scc1 L_nost")
        for e_ in range(STL_):
            a(f"s_load_dword s3, s[0:1], {1024*e_}")
            a(f"s_load_dword s3, s[0:1], {1024*e_ + 64}")
        a(f"s_add_u32 s0, s0, {1024*STL_}")
        a("s_addc_u32 s1, s1, 0")
        a.lab("L_nost")
    if SLD:
        a(f"s_cmp_lg_u32 s{stt}, {SLD}")
        a("s_cbranch_scc1 L_nosl")
        a(f"s_lshl_b32 s{t0}, s{sg4}, 5")
        a(f"s_add_u32 s{t0}, s{t0}, 128")
        a(f"s_load_dwordx2 {S2(NONCE)}, {S2(rDBG)}, s{sDL} {SGL}")
        a(f"s_load_dwordx8 s[88:95], {S2(rDBG)}, s{t0} {SGL}")
        a.lab("L_nosl")
    a(f"s_cmp_lt_u32 s{stt}, 7")
    a("s_waitcnt vmcnt(10)")
    a("s_barrier")
    a("s_cbranch_scc1 L_ld")
    a(f"s_mul_i32 s{sWL}, s{sw}, 6144")
    for ws, st_ in ((sB6, 0), (sB4, 1), (sB5, 2)):
        one("w", 2, sWL, ws, st_ * STAGE); one("w", 5, sWL, ws, st_ * STAGE)
    if not SLD: a(f"buffer_load_dwordx2 {vr(NV,2)}, off, {S4(rDBG)}, s{sDL} sc1")
    m_ = (1 << max(1, 4 * PRET)) - 1
    def touch():
        a(f"buffer_load_dword v{T+9}, v{F1A}, {S4(rWS)}, 0 offen sc1")
        a(f"s_mov_b32 exec_lo, {m_ & 0xffffffff:#x}")
        a(f"s_mov_b32 exec_hi, {m_ >> 32:#x}")
        a(f"buffer_load_dword v{T+8}, v{PTA}, {S4(rKV)}, s{sWOS} offen {TF}")
        a("s_mov_b64 exec, -1")
    if STL_: a(f"buffer_load_dword v{T+9}, v{F1A}, {S4(rWS)}, 0 offen sc1")
    elif TEAR != 1: touch()
    NX = (2 if STL_ else 1 if TEAR == 1 else 3) - (1 if SLD else 0)
    if SLD:
        a(f"s_getreg_b32 s{t2}, hwreg(HW_REG_XCC_ID)")
        a(f"s_and_b32 s{t2}, s{t2}, 15")
        a(f"s_lshl_b32 s{t0}, s{sx}, 4")
        a(f"s_or_b32 s{t2}, s{t2}, s{t0}")
        a(f"s_or_b32 s{t2}, s{t2}, 0x80")
        a(f"s_mul_i32 s{t2}, s{t2}, 0x01010101")
        a(f"s_lshl_b32 s{t0}, s{sw}, 4")
        a(f"s_add_u32 s{t0}, s{t0}, {NRC}")
        a(f"v_mov_b32 v{T+6}, s{t0}")
        a("s_waitcnt lgkmcnt(0)")
        a(f"s_xor_b32 s{t1}, s88, s{t2}")
        for k in range(89, 96):
            a(f"s_xor_b32 s{t0}, s{k}, s{t2}")
            a(f"s_or_b32 s{t1}, s{t1}, s{t0}")
        a(f"v_mov_b32 v{NV}, s{NONCE}")
        a(f"v_mov_b32 v{NV+1}, s{NONCE+1}")
        a(f"v_mov_b32 v{NV+2}, s{t1}")
        a(f"ds_write_b96 v{T+6}, {vr(NV,3)}")
        a("s_waitcnt lgkmcnt(0)")
    a(f"s_waitcnt vmcnt({6 + NX})")
    stamp(a, "lw6")
    a("s_barrier")
    if LPR: a("s_setprio 0")
    pre2()
    if B2:
        a(f"s_waitcnt vmcnt({NX + 2})")
        a("s_barrier")
    a(f"s_waitcnt vmcnt({NX})")
    a("s_barrier")
    def touch2():
        m2 = ((1 << (4 * PRET2)) - 1) & ~m_
        a(f"s_mov_b32 exec_lo, {m2 & 0xffffffff:#x}")
        a(f"s_mov_b32 exec_hi, {m2 >> 32:#x}")
        a(f"buffer_load_dword v{T+10}, v{PTA}, {S4(rKV)}, s{sWOS} offen sc1")
        a("s_mov_b64 exec, -1")
    if PRET2 and T2POS == "b6": touch2()
    if not SLD: a(f"s_waitcnt vmcnt({NX - 1})")
    nonce("L")
    if PRET2 and T2POS == "late": touch2()
    a("s_setprio 2")
    stamp(a, "lready")
    a("s_branch L_ph2")

    a.lab("L_comp")
    a("s_setprio 3")
    a(f"s_getreg_b32 s{t2}, hwreg(HW_REG_XCC_ID)")
    a(f"s_and_b32 s{t2}, s{t2}, 15")
    a(f"s_lshl_b32 s{t0}, s{sx}, 4")
    a(f"s_or_b32 s{t2}, s{t2}, s{t0}")
    a(f"s_or_b32 s{t2}, s{t2}, 0x80")
    a(f"s_lshl_b32 s{t1}, s{sg4}, 5")
    a(f"s_add_u32 s{t1}, s{t1}, 128")
    a(f"v_mov_b32 v{NV}, s{t2}")
    if not SLD:
        a(f"v_and_b32 v{NA}, 3, v0")
        a(f"v_lshlrev_b32 v{NA}, 3, v{NA}")
        a(f"v_add_u32 v{NA}, s{t1}, v{NA}")
    a(f"s_add_u32 s{t1}, s{t1}, s{sidx}")
    a("v_mov_b32 v238, 0")
    a("v_mov_b32 v239, 0")
    a("s_waitcnt lgkmcnt(0)")
    def ftouch(pairs, wave, tag):
        a(f"s_cmp_lg_u32 s{sw}, {wave}")
        a(f"s_cbranch_scc1 L_ft{tag}")
        a(f"s_add_u32 s{t0}, s{sg4}, 1")
        a(f"s_and_b32 s{t0}, s{t0}, 2")
        a(f"s_cbranch_scc1 L_ft{tag}")
        a(f"s_and_b32 s{t0}, s{sg4}, 1")
        a(f"s_lshl_b32 s{t0}, s{t0}, 5")
        a(f"s_add_u32 s{t0}, s{t0}, s{sidx}")
        a(f"v_and_b32 v{T+6}, 31, v0")
        a(f"v_lshrrev_b32 v{T+7}, 5, v0")
        a(f"v_mul_u32_u24 v{T+8}, 896, v{T+6}")
        a(f"v_lshl_add_u32 v{T+8}, v{T+7}, 7, v{T+8}")
        a(f"v_min_u32 v{T+6}, 20, v{T+6}")
        a(f"v_mul_u32_u24 v{T+7}, 172032, v{T+7}")
        a(f"v_lshl_add_u32 v{T+9}, v{T+6}, 7, v{T+7}")
        a(f"s_mul_i32 s{t3}, s{t0}, {32*896}")
        a(f"s_mul_i32 s{t0}, s{t0}, 2688")
        for pr in pairs:
            c_ = 2 * int(pr) - 1
            a(f"s_add_u32 s{sROT}, s{t0}, {c_*172032}")
            a(f"buffer_load_dword v{T+10}, v{T+9}, {S4(rW)}, s{sROT} offen")
            a(f"buffer_load_dword v{T+11}, v{T+8}, {S4(rX)}, s{t3} offen offset:{c_*128}")
        a.lab(f"L_ft{tag}")
    if FT:
        a(f"s_cmp_eq_u32 s{sb}, 0")
        a(f"s_cselect_b32 s{rX}, s4, s10")
        a(f"s_cselect_b32 s{rX+1}, s5, s11")
        a(f"s_cselect_b32 s{rW}, s6, s12")
        a(f"s_cselect_b32 s{rW+1}, s7, s13")
        a(f"s_mov_b32 s{rX+2}, 1835008")
        a(f"s_mov_b32 s{rX+3}, 0x00020000")
        a(f"s_mov_b32 s{rW+2}, 1204224")
        a(f"s_mov_b32 s{rW+3}, 0x00020000")
        ftouch(FT.split("/")[0], 5, "a")
    dbg_desc()
    if not SLD:
        a(f"s_mul_i32 s{XM}, s{t2}, 0x01010101")
        a(f"s_mov_b32 s{XM+1}, s{XM}")
    a("s_mov_b64 exec, 1")
    if not SLD: a(f"v_mov_b32 v{NA}, s{sDL}")
    a(f"s_cmp_lg_u32 s{sw}, 4")
    a("s_cbranch_scc1 L_noreg")
    a(f"buffer_store_byte v{NV}, off, {S4(rDBG)}, s{t1}")
    if UBY: a(f"buffer_load_ubyte v{T+12}, off, {S4(rDBG)}, s{t1} sc1")
    a(f"s_cmp_lg_u32 s{sidx}, 0")
    a("s_cbranch_scc1 L_noreg")
    a(f"s_or_b32 s{t0}, s{RT}, 1")
    a(f"s_or_b32 s{t2}, s{RT+1}, 1")
    a(f"v_mov_b32 v236, s{t0}")
    a(f"v_mov_b32 v237, s{t2}")
    a(f"buffer_atomic_cmpswap_x2 v[236:239], off, {S4(rDBG)}, s{sDL} sc1")
    a.lab("L_noreg")
    a("s_mov_b64 exec, -1")
    stamp_init()
    a(f"s_and_b32 s{stt}, s{sw}, 1")
    a(f"s_bfe_u32 s{scg}, s{sw}, 0x10001")
    a(f"v_and_b32 v{u0}, 31, v0")
    a(f"v_bfe_u32 v{u1}, v0, 1, 3")
    a(f"v_lshrrev_b32 v{u2}, 5, v0")
    a(f"v_xor_b32 v{u1}, v{u1}, v{u2}")
    a(f"v_lshlrev_b32 v{u1}, 4, v{u1}")
    a(f"v_lshl_add_u32 v{u1}, v{u0}, 7, v{u1}")
    a(f"s_lshl_b32 s{t0}, s{stt}, 13")
    a(f"s_add_u32 s{t0}, s{t0}, {XOFF}")
    for ks in range(4):
        a(f"v_xor_b32 v{XA+ks}, {32*ks}, v{u1}")
        a(f"v_add_u32 v{XA+ks}, s{t0}, v{XA+ks}")
    a(f"v_bfe_u32 v{u0}, v0, 4, 1")
    a(f"v_and_b32 v{u1}, 3, v0")
    a(f"v_lshlrev_b32 v{u1}, 3, v{u1}")
    a(f"v_lshl_add_u32 v{u0}, v{u0}, 5, v{u1}")
    a(f"s_mul_i32 s{t0}, s{scg}, 112")
    a(f"v_add_u32 v{WA1}, s{t0}, v{u0}")
    a(f"v_add_u32 v{WA1+1}, 56, v{WA1}")
    a(f"s_mul_i32 s{t0}, s{scg}, 56")
    a(f"v_add_u32 v{WA1+2}, s{t0}, v{u0}")
    a("s_mov_b32 exec_lo, 0x88880000")
    a("s_mov_b32 exec_hi, 0x88880000")
    a(f"v_or_b32 v{WA1}, 192, v{WA1}")
    a(f"v_or_b32 v{WA1+1}, 192, v{WA1+1}")
    a(f"v_or_b32 v{WA1+2}, 64, v{WA1+2}")
    a("s_mov_b64 exec, -1")
    a(f"v_bfe_u32 v{u1}, v0, 2, 2")
    a(f"v_mul_u32_u24 v{u2}, 3072, v{u2}")
    a(f"v_lshl_add_u32 v{u3}, v{u1}, 8, v{u2}")
    a(f"v_lshlrev_b32 v{u4}, 6, v{u1}")
    for c in range(2):
        a(f"v_xor_b32 v{WA1+c}, v{WA1+c}, v{u4}")
        a(f"v_add_u32 v{WA1+c}, v{WA1+c}, v{u3}")
    a(f"v_lshl_add_u32 v{u3}, v{u1}, 7, v{u2}")
    a(f"v_lshlrev_b32 v{u4}, 5, v{u1}")
    a(f"v_and_b32 v{u4}, 64, v{u4}")
    a(f"v_xor_b32 v{WA1+2}, v{WA1+2}, v{u4}")
    a(f"v_add_u32 v{WA1+2}, v{WA1+2}, v{u3}")
    Z = FR + 60
    for r in range(20): a(f"v_mov_b32 v{Z+r}, 0")
    a(f"v_mov_b32 v{u0}, {GBC}")
    a(f"ds_write_b128 v{u0}, {vr(Z+16,4)}")
    a(f"ds_write_b128 v{u0}, {vr(Z+16,4)} offset:16")
    for t_ in range(6): a(f"v_mfma_f32_32x32x16_bf16 {vr(ACC+16*t_,16)}, {vr(Z+16,4)}, {vr(Z+16,4)}, 0")
    a("s_mov_b32 exec_hi, 0")
    a(f"v_mov_b32 v{Z}, 0x3f80")
    a(f"v_mov_b32 v{Z+4}, 0x3f80")
    a("s_mov_b32 exec_lo, 0x10000000")
    a(f"v_mov_b32 v{Z+8}, 0x3f80")
    a(f"v_mov_b32 v{Z+12}, 0x3f80")
    a("s_mov_b64 exec, -1")
    def capture(f):
        keep = a.l; a.l = []
        f()
        got = [x.strip() for x in a.l]; a.l = keep
        return got
    lateA = capture(lambda: ids2a(1, False)); lateB = capture(lambda: ids2b(1))
    ws_desc()
    a(f"v_lshlrev_b32 v{L16}, 4, v0")
    a(f"v_and_b32 v{u0}, 0x33, v0")
    a(f"v_bfe_u32 v{u1}, v0, 2, 1")
    a(f"v_lshl_add_u32 v{u0}, v{u1}, 3, v{u0}")
    a(f"v_bfe_u32 v{u1}, v0, 3, 1")
    a(f"v_lshl_add_u32 v{u0}, v{u1}, 2, v{u0}")
    a(f"v_lshlrev_b32 v{TAU}, 4, v{u0}")
    sE0, sSC, sDLT, sCNT = sXS, sWS_, sWL, sXL
    a(f"s_lshl_b32 s{t0}, s{scg}, 2")
    a(f"s_lshr_b32 s{t1}, s{srb}, 2")
    a(f"s_add_u32 s{t0}, s{t0}, s{t1}")
    a(f"s_mul_i32 s{sF1O}, s{t0}, {F1SP}")
    a(f"s_lshl_b32 s{t0}, s{shalf}, 2")
    a(f"s_and_b32 s{t1}, s{srb}, 3")
    a(f"s_add_u32 s{t0}, s{t0}, s{t1}")
    a(f"s_lshl_b32 s{t0}, s{t0}, 1")
    a(f"s_add_u32 s{t0}, s{t0}, s{stt}")
    a(f"s_lshl_b32 s{t0}, s{t0}, 3")
    a(f"s_add_u32 s{sF1O}, s{sF1O}, s{t0}")
    a(f"s_add_u32 s{sF1O}, s{sF1O}, {X_F1}")
    if TEAR == 2: a(f"buffer_load_dword v{T+9}, off, {S4(rWS)}, s{sF1O} sc1")
    a(f"s_lshl_b32 s{t0}, s{srb}, 1")
    a(f"s_add_u32 s{t0}, s{t0}, s{stt}")
    a(f"s_lshl_b32 s{t1}, s{scg}, 6")
    a(f"s_add_u32 s{t0}, s{t0}, s{t1}")
    a(f"s_lshl_b32 s{sE0}, s{t0}, 13")
    SE = [sE0, rX, rX + 1, rX + 2]
    for t_, d_ in ((1, 4096), (2, 64 * 4096), (3, 65 * 4096)): a(f"s_add_u32 s{SE[t_]}, s{sE0}, {d_}")
    a(f"s_sub_u32 s{t0}, s{sw}, 4")
    a(f"s_lshl_b32 s{t0}, s{t0}, 12")
    a(f"s_add_u32 s{t0}, s{t0}, {QX}")
    a(f"v_add_u32 v{QW}, s{t0}, v{L16}")
    if SLD:
        a(f"s_lshl_b32 s{t0}, s{sw}, 4")
        a(f"s_add_u32 s{t0}, s{t0}, {NRC - 64}")
        a(f"v_mov_b32 v{PTA}, s{t0}")
    a(f"s_mov_b32 s{sSC}, {CSCALE:#x}")
    a(f"s_mov_b32 s{sCNT}, 0")
    a(f"s_mov_b32 s{sDLT}, 0")
    if FT and FT.split("/")[1]: ftouch(FT.split("/")[1], 6, "b")
    if CPF:
        a(f"s_cmp_lg_u32 s{sw}, 5")
        a("s_cbranch_scc1 L_nocpf")
        a(f"s_sub_u32 s{t0}, s{sidx}, 1")
        a(f"s_cmp_ge_u32 s{t0}, 3")
        a("s_cbranch_scc1 L_nocpf")
        a(f"s_getpc_b64 {S2(NONCE)}")
        a.lab("L_pc")
        a(f"s_lshl_b32 s{t0}, s{t0}, 13")
        a(f"v_lshlrev_b32 v{u0}, 7, v0")
        a(f"v_add_u32 v{u0}, s{t0}, v{u0}")
        a(f"v_min_u32 v{u0}, L_fallback-L_pc, v{u0}")
        a(f"global_load_dword v{T+10}, v{u0}, {S2(NONCE)}")
        a.lab("L_nocpf")
    a(f"s_cmp_lg_u32 s{shalf}, 0")
    a("s_cbranch_scc1 P1_v1")
    def reads(ks):
        b = FR + 20 * ks
        out = [f"ds_read_b128 {vr(b+4*e,4)}, v{XA+ks} offset:{4096*e}" for e in range(2)]
        for c in range(3):
            for h in range(2):
                off = 6144 * ks + (1024 * h if c < 2 else 2048 + 512 * h)
                out.append(f"ds_read_b64_tr_b16 {vr(b+8+4*c+2*h,2)}, v{WA1+c} offset:{off}")
        return [out[0], out[2], out[3], out[1]] + out[4:]
    def mfma1(ks, e, c, ori):
        b = FR + 20 * ks
        x = vr(b + 4 * e, 4); w = vr(b + 8 + 4 * c, 4)
        p, q = (w, x) if ori[c] == 'n' else (x, w)
        d = vr(ACC + 16 * (2 * c + e), 16)
        return f"v_mfma_f32_32x32x16_bf16 {d}, {p}, {q}, {d}"
    tiles = [(0, 0), (1, 0), (0, 1), (1, 1), (0, 2), (1, 2)]
    pend = []; cnt = [0]; ctx = [""]
    def epi(t_):
        e, c = tiles[t_]
        d = ACC + 16 * (2 * c + e)
        P = d
        out = []
        if c == 2: out += [[f"v_mul_f32 v{d+r}, s{sSC}, v{d+r}"] for r in range(16)]
        out += [[f"v_cvt_pk_bf16_f32 v{P+i}, v{d+2*i}, v{d+2*i+1}"] for i in range(8)]
        if c == 2:
            out += [[f"ds_write_b128 v{QW}, {vr(P,4)} offset:{2048*e}"], [f"ds_write_b128 v{QW}, {vr(P+4,4)} offset:{2048*e+1024}"]]
        else:
            out.insert(4, ("st", t_, 0, P)); out.append(("st", t_, 1, P + 4))
        return out
    def emit(x):
        a(x); cnt[0] += 1
    def drain(nmax):
        n_ = 0
        while pend and n_ < nmax and pend[0][0] <= cnt[0]:
            g_ = pend.pop(0)[1]
            if g_[0] == "st": stq.append(g_)
            else:
                for x in g_: emit(x)
                n_ += len(g_)
    stq = []; nm = [0, -99]
    def store():
        if not stq or nm[0] - nm[1] < SP: return 0
        _, t_, f, P = stq.pop(0)
        tag = f"{ctx[0]}{t_}{f}"
        emit(f"s_cbranch_vccz L_wt{tag}")
        emit(f"buffer_store_dwordx4 {vr(P,4)}, v{TAU}, {S4(rWS)}, s{SE[t_]} offen offset:{1024*f} {KVS}")
        a.lab(f"L_st{tag}")
        if f: stamp(a, f"st{t_}")
        tails.append((tag, P, SE[t_], 1024 * f)); nm[1] = nm[0]
        return 2
    def fill(nmax):
        if pend and pend[0][0] > cnt[0]:
            gap = min(nmax - 1, pend[0][0] - cnt[0])
            a(f"s_nop {gap-1}"); cnt[0] += gap
            nmax -= gap
        drain(nmax)
    for v, ori in enumerate(["nnn", "vvn"]):
        a.lab(f"P1_v{v}")
        if v == 1: a(f"v_add_u32 v{TAU}, 2048, v{L16}")
        a("s_waitcnt lgkmcnt(0)")
        stamp(a, "setup")
        mm = [(e, c) for c in range(3) for e in range(2)]
        def cstamps():
            if STAMP or DIAG:
                if len(DIAG) == 2 and DIAG[0] == "c" and DIAG != "c0":
                    a("s_memrealtime s[82:83]")
                    a(f"s_cmp_eq_u32 s{sCNT}, {int(DIAG[1])}")
                    a("s_waitcnt lgkmcnt(0)")
                    a("s_cselect_b32 s80, s82, s80")
                for nm in (STL if STAMP else []):
                    if len(nm) == 2 and nm[0] == "c" and nm != "c0":
                        a(f"s_cmp_eq_u32 s{sCNT}, {int(nm[1])}")
                        a(f"s_cbranch_scc1 L_ns{v}{nm}")
                        a.lab(f"L_nb{v}{nm}")
                        stails.append((f"{v}{nm}", nm))
        a("s_barrier")
        stamp(a, "c0")
        for x in reads(0): a(x)
        if FT and len(FT.split("/")) > 2: ftouch(FT.split("/")[2], 7, f"c{v}")
        a.raw(".p2align 6")
        a.lab(f"P1_loop{v}")
        for ks, rk in ((3, 1), (0, 2), (1, 3)):
            rd = reads(rk)
            if ks != 3: a("s_waitcnt lgkmcnt(8)")
            for j, (e, c) in enumerate(mm):
                a(mfma1(ks, e, c, ori))
                for x in rd[2*j:2*j+2]: a(x)
                if ks == 3 and j == 4:
                    a(f"s_add_u32 s{sCNT}, s{sCNT}, 1")
                    a(f"s_mov_b32 s{sDLT}, {STAGE}")
                if ks == 0 and j == 4:
                    a(f"s_cmp_eq_u32 s{sCNT}, 3")
                    a(f"s_cselect_b32 s{sDLT}, {(-2*STAGE) & 0xffffffff:#x}, s{sDLT}")
                if ks == 1 and j == 4:
                    for i in range(4): a(f"v_add_u32 v{XA+i}, s{sDLT}, v{XA+i}")
                if ks == 1 and j == 5:
                    for i in range(4, 7): a(f"v_add_u32 v{XA+i}, s{sDLT}, v{XA+i}")
        a("s_waitcnt lgkmcnt(8)")
        rd = reads(0)
        for j, (e, c) in enumerate(mm):
            a(mfma1(2, e, c, ori))
            if j == BPOS - 1: a("s_waitcnt lgkmcnt(0)")
            if j == BPOS:
                a("s_barrier")
                cstamps()
            if j > BPOS:
                n_ = -(-8 // (5 - BPOS)) if j < 5 else 8
                for x in rd[:n_]: a(x)
                rd = rd[n_:]
        if BPOS == 5:
            for x in rd: a(x)
        a(f"s_cmp_lt_u32 s{sCNT}, 4")
        a(f"s_cbranch_scc1 P1_loop{v}")
        m4 = mm[:4]
        for ch in (4, 5):
            dl = STAGE if ch == 4 else (-2 * STAGE) & 0xffffffff
            for ks, rk in ((3, 1), (0, 2), (1, 3)):
                rd = reads(rk)[:6]
                if ks != 3: a("s_waitcnt lgkmcnt(6)")
                for j, (e, c) in enumerate(mm if (ch == 4 and ks == 3) else m4):
                    a(mfma1(ks, e, c, ori))
                    for x in rd[2*j:2*j+2]: a(x)
                    if ch == 5 and ks == 3 and j == 0 and not SLD:
                        a(f"buffer_load_dwordx2 {vr(NV,2)}, v{NA}, {S4(rDBG)}, 0 offen sc1")
                    if ks == 0 and j == 3: a(f"s_mov_b32 s{sDLT}, {dl:#x}")
                    if ks == 1 and j == 3:
                        for i in range(4): a(f"v_add_u32 v{XA+i}, s{sDLT}, v{XA+i}")
            a("s_waitcnt lgkmcnt(6)")
            rd = reads(0)[:6]
            a(mfma1(2, *m4[0], ori))
            for i in range(4, 7): a(f"v_add_u32 v{XA+i}, s{sDLT}, v{XA+i}")
            a("s_waitcnt lgkmcnt(0)")
            a(mfma1(2, *m4[1], ori))
            a("s_barrier")
            stamp(a, f"d{ch+1}")
            a(mfma1(2, *m4[2], ori))
            for x in rd[:3]: a(x)
            a(mfma1(2, *m4[3], ori))
            for x in rd[3:]: a(x)
        rd = reads(1)[:6] + reads(2)[:6]
        for j, (e, c) in enumerate(m4):
            a(mfma1(3, e, c, ori))
            for x in rd[3*j:3*j+3]: a(x)
        for x in reads(3)[:4]: a(x)
        ctx[0] = str(v); pend.clear(); cnt[0] = 0; stq.clear(); nm[:] = [0, -99]
        seq = [(0, 0), (0, 1), (1, 0), (1, 1), (2, 0), (2, 1), (3, 0), (3, 1)] + [(k, t_) for t_ in range(2, 4) for k in range(4)]
        for i, (k, t_) in enumerate(seq):
            if i == 0: emit("s_waitcnt lgkmcnt(14)")
            if i == 2: emit("s_waitcnt lgkmcnt(12)")
            if i == 4: emit("s_waitcnt lgkmcnt(6)")
            if i == 6:
                emit("s_waitcnt lgkmcnt(0)" if SLD else "s_waitcnt vmcnt(0) lgkmcnt(0)")
                stamp(a, "last")
            emit(mfma1(k, *tiles[t_], ori))
            first = cnt[0]; nm[0] += 1
            store()
            if i == 0:
                for x in reads(3)[4:6]: emit(x)
            if i == 4 and SLD: emit(f"ds_read_b96 {vr(NV,3)}, v{PTA}")
            if i == 6:
                if SLD:
                    emit(f"v_readfirstlane_b32 s{t0}, v{NV+2}")
                    emit("s_nop 0")
                    emit(f"s_cmp_eq_u32 s{t0}, 0")
                else:
                    emit(f"v_cmp_eq_u64 vcc, {S2(XM)}, {vr(NV,2)}")
                    emit(f"s_and_b32 s{t0}, vcc_lo, 0xf0")
                    emit(f"s_cmp_eq_u32 s{t0}, 0xf0")
                emit(f"s_cselect_b32 s{sLOC}, {1 if LOCAL else 0}, 0")
                if MIX:
                    emit(f"s_and_b32 s{t0}, s{srb}, 3")
                    emit(f"s_cmp_lt_u32 s{t0}, {MIX}")
                    emit(f"s_cselect_b32 s{t0}, s{sLOC}, 0")
                    emit(f"s_cmp_lg_u32 s{t0}, 0")
                emit(f"s_cselect_b64 vcc, {-1 if LOCAL else 0}, 0")
            if k == 3: pend.extend((first + 12, g_) for g_ in epi(t_))
            if i == QB:
                emit("s_barrier")
                stamp(a, "bar7")
                for ks in range(2):
                    for x in reads(ks)[6:]: emit(x)
            elif i == QB + 1:
                for ks in range(2, 4):
                    for x in reads(ks)[6:]: emit(x)
            elif i != 6 and i != 15: fill(6)
        snap = (list(pend), cnt[0], list(stq), list(nm))
        if v == 0 or VIS: a("s_branch P1_done")
    if VIS:
        a.raw(".p2align 12" if VIS == 1 else ".p2align 6")
        a.lab("L_vis")
        a("s_branch L_visb")
    a.lab("P1_done")
    ctx[0] = "c"; pend[:] = snap[0]; cnt[0] = snap[1]; stq[:] = snap[2]; nm[:] = snap[3]
    if QB > 15:
        while pend: fill(99 if pend[0][0] <= cnt[0] else 13)
        emit("s_barrier")
        for ks in range(4):
            for x in reads(ks)[6:]: emit(x)
    def qreads(ks, base):
        b = FR + 20 * ks
        return [f"ds_read_b128 {vr(b,4)}, v{XA+ks} offset:{base}",
                f"ds_read_b64_tr_b16 {vr(b+16,2)}, v{WA1+2} offset:{base + 6144*ks + 2048}",
                f"ds_read_b64_tr_b16 {vr(b+18,2)}, v{WA1+2} offset:{base + 6144*ks + 2560}",
                f"ds_read_b128 {vr(b+4,4)}, v{XA+ks} offset:{base + 4096}"]
    def flag1():
        assert not any(g_[1][0] == "st" for g_ in pend) and not stq
        stamp(a, "prefl")
        nonce("C")
        a("s_mov_b64 exec, 1")
        a(f"s_cmp_eq_u32 s{sLOC}, 0")
        a("s_waitcnt vmcnt(0)")
        a("s_cbranch_scc1 L_f1wt")
        a(f"buffer_store_dwordx2 {vr(NV,2)}, off, {S4(rWS)}, s{sF1O}")
        a.lab("L_f1st")
        a("s_mov_b64 exec, -1")
        stamp(a, "ack1")
        cnt[0] += 10
    def late(nmax):
        q_ = lateB if (not lateA or (nq <= FPOS < 12)) and False else (lateA if lateA else lateB)
        if lateA and len(lateA) == nA and nq <= FPOS < 12: return
        for _ in range(min(nmax, len(q_))): emit(q_.pop(0))
    nA = len(lateA)
    nq = 0
    for rnd in range(3):
        order_ = [(ks, e) for ks in range(4) for e in range(2)] if rnd < 2 else [(0, 0), (0, 1), (1, 0), (2, 0), (3, 0), (1, 1), (2, 1), (3, 1)]
        for j, (ks, e) in enumerate(order_):
            if rnd == 0 and e == 0: emit(f"s_waitcnt lgkmcnt({6 + 2*ks})")
            if rnd == 1 and e == 0: emit("s_waitcnt lgkmcnt(12)")
            if rnd == 2 and e == 0: emit(f"s_waitcnt lgkmcnt({12 - 4*ks})")
            emit(mfma1(ks, e, 2, "nnn"))
            first = cnt[0]; nm[0] += 1
            store()
            nq += 1
            if B2 and rnd == 1 and j == 0: emit("s_barrier")
            if rnd < 2 and e == 1:
                if rnd == 1:
                    emit(f"v_add_u32 v{XA+ks}, {STAGE}, v{XA+ks}")
                    if ks == 0: emit(f"v_add_u32 v{WA1+2}, {STAGE}, v{WA1+2}")
                for x in qreads(ks, STAGE): emit(x)
                drain(2)
                late(2)
            elif nq != FPOS:
                if pend: fill(6)
                else: late(6)
            if rnd == 2 and ks == 3: pend.extend((first + 12, g_) for g_ in epi(4 + e))
            if nq == FPOS:
                if len(lateA) != nA:
                    while lateA: emit(lateA.pop(0))
                flag1()
    a(f"v_mov_b32 v{CA}, {GBC + 4}")
    a(f"v_mov_b32 v{ONE}, 1")
    cnt[0] += 2
    nm[0] += 99; store(); assert not stq
    if FPOS > 24:
        nq0 = len(pend) - 26 if FPOS == 25 else len(pend)
        while len(pend) > (26 if FPOS == 25 else 0): fill(1 if pend[0][0] <= cnt[0] else 13)
        if FPOS == 25:
            while lateA: emit(lateA.pop(0))
            flag1()
    while pend: fill(99 if pend[0][0] <= cnt[0] else 13)
    arrive(a, 4)
    stamp(a, "p1end")
    if FPOS == 26:
        while lateA: emit(lateA.pop(0))
        flag1()
    a("s_setprio 1")
    while lateA: a(lateA.pop(0))
    while lateB: a(lateB.pop(0))
    pre2()
    getq(1)
    a.lab("L_ph2")
    a.vreset()
    if PIPE:
        a("s_mov_b64 exec, 0xffff")
        poll_pipe(a, "L_f1", F1A, rWS, "sc1", [T + 10, T + 14])
        a("s_mov_b64 exec, -1")
        a.vm.append("poll")
    else: poll(a, "L_f1", F1A, rWS, "sc1", 16, SL1)
    stamp(a, "poll1")
    def ldK(kt, f): a.vmem(f"global_load_dwordx4 {vr(KB[kt%4]+4*f,4)}, v{L16}, {S2(KP[kt//2])} offset:{4096*(kt%2)-4096+1024*f} {KVL}", ("K", kt))
    def ldV(kt, f): a.vmem(f"global_load_dwordx4 {vr(VB[kt%4]+4*f,4)}, v{L16}, {S2(KP[kt//2])} offset:{4096*(kt%2)-2048+1024*f} {KVL}", ("V", kt))
    order = [(0, 3), (1, 3), (0, 0), (0, 1), (0, 2), (1, 0), (1, 1), (1, 2)]
    for k in range(2, 14):
        order += [(k, 0), (k, 1), (k, 2)] + ([(k, 3)] if k < 16 - NOWN else [])
    order += [(14, 0), (15, 0), (14, 1), (15, 1), (14, 2), (15, 2)] + [(k, 3) for k in range(16 - NOWN, 16)]
    assert sorted(order) == [(k, i) for k in range(16) for i in range(4)]
    NP = 64
    def qk(p):
        kt, i = order[p]
        s = SB[p % 3]; k = KB[kt % 4]
        return [f"v_mfma_f32_32x32x16_bf16 {vr(s,16)}, {vr(k,4)}, {vr(Q[i],4)}, 0",
                f"v_mfma_f32_32x32x16_bf16 {vr(s,16)}, {vr(k+4,4)}, {vr(Q[i]+4,4)}, {vr(s,16)}"]
    def pv(p):
        kt, i = order[p]
        s = SB[p % 3]; v = VB[kt % 4]
        return [f"v_smfmac_f32_32x32x32_bf16 {vr(O[i],16)}, {vr(v,4)}, {vr(s,8)}, v{IDX}",
                f"v_smfmac_f32_32x32x32_bf16 {vr(O[i],16)}, {vr(v+4,4)}, {vr(s+8,8)}, v{IDX}"]
    ldK(0, 0); ldK(0, 1)
    if not K1L: ldK(1, 0); ldK(1, 1)
    getq2()
    a.vwait(("K", 0))
    a("s_waitcnt lgkmcnt(6)")
    stamp(a, "k0")
    for x in qk(0): a(x)
    if K1L:
        ldK(1, 0); ldK(1, 1); ldV(0, 0); ldV(0, 1)
    else:
        ldV(0, 0); ldV(0, 1); ldV(1, 0); ldV(1, 1)
    a("s_mov_b64 exec, 1")
    a("s_waitcnt lgkmcnt(0)")
    a(f"ds_add_u32 v{T+5}, v{ONE}")
    a("s_mov_b64 exec, -1")
    a("s_nop 3")
    s = SB[0]
    a(f"v_max3_f32 v{T}, v{s}, v{s+1}, v{s+2}")
    a(f"v_max3_f32 v{T+1}, v{s+3}, v{s+4}, v{s+5}")
    for i in range(6, 14, 4):
        a(f"v_max3_f32 v{T}, v{T}, v{s+i}, v{s+i+1}")
        a(f"v_max3_f32 v{T+1}, v{T+1}, v{s+i+2}, v{s+i+3}")
    a(f"v_max3_f32 v{T}, v{T}, v{s+14}, v{s+15}")
    a(f"v_max_f32 v{T}, v{T}, v{T+1}")
    a(f"v_mov_b32 v{T+1}, v{T}")
    a("s_nop 1")
    a(f"v_permlane32_swap_b32 v{T}, v{T+1}")
    a(f"v_max_f32 v{T}, v{T}, v{T+1}")
    if FORCEFB: a(f"v_add_f32 v{T}, 0x43480000, v{T}")
    a(f"v_xor_b32 v{T}, 0x80000000, v{T}")
    a("s_mov_b32 exec_lo, 0")
    a(f"v_lshrrev_b32 v{Q[3]+6}, 16, v{T}")
    a("s_mov_b32 exec_lo, -1")
    a(f"ds_write_b32 v{MW}, v{Q[3]+6}")
    arrive(a)
    for x in qk(0): a(x)
    if K1L: ldV(1, 0); ldV(1, 1)
    a("s_nop 9" if K1L else "s_nop 11")
    stamp(a, "loop0")
    lastK = {k: max(p for p in range(NP) if order[p][0] == k) - 1 for k in range(16)}
    lastV = {k: max(p for p in range(NP) if order[p][0] == k) + 1 for k in range(16)}
    lq = []
    for k in range(2, 16):
        fk = lastK[k - 4] + 1 if k >= 4 else LQ0
        fv = lastV[k - 4] + 1 if k >= 4 else LQ0
        lq += [(lambda k=k: ldK(k, 0), fk), (lambda k=k: ldK(k, 1), fk), (lambda k=k: ldV(k, 0), fv), (lambda k=k: ldV(k, 1), fv)]
    wq = []
    for i in range(3):
        lp = max(p for p in range(NP) if order[p][1] == i) + 1
        for g in range(4):
            wq.append((lambda i=i, g=g: a(f"ds_write_b128 v{PW+i}, {vr(O[i]+4*g,4)} offset:{1024*g}"), 4 * (lp + 1) + 2))
    rq = [lambda i=i: a(f"ds_read_b128 {vr(O[i//4]+4*(i%4),4)}, v{PR} offset:{1024*i}") for i in range(12)]
    state = {"arr": None, "rd": False}
    def mlist(p):
        mq = qk(p + 1) if p + 1 < NP else [None, None]
        mp = pv(p - 1) if p >= 1 else [None, None]
        ms = [("q", x) for x in mq] + [("p", x) for x in mp]
        if p == 0: return ms[4-P0S:] + ms[:4-P0S]
        return ms[2:] + ms[:2] if p == 1 else ms
    def need(p, kind):
        if kind == "q":
            k1 = order[p + 1][0]
            a.vwait(("V", k1) if (k1 >= 2 and sum(1 for t in a.vm if t == ("V", k1)) == 2) else ("K", k1))
        else:
            a.vwait(("V", order[p - 1][0]))
    for p in range(NP):
        s = SB[p % 3]
        stamp(a, f"ph{p}")
        ms = mlist(p)
        if p == 1:
            lcheck(a, "L_m", 4)
            stamp(a, "bq1")
            for i in range(3): a(f"ds_read_b32 v{Q[i]+6}, v{MR+i}")
        if p == 2: a("s_nop 6")
        for g in range(4):
            kind, m = ms[g]
            if m:
                need(p, kind)
                if p == 1 and g == 3: a("s_waitcnt lgkmcnt(0)")
                a(m)
                if p >= 3:
                    np_, ng = (p, g + 1) if g < 3 else (p + 1, 0)
                    if np_ < NP:
                        k2, m2_ = mlist(np_)[ng]
                        if m2_: need(np_, k2)
            slot = 4 * p + g
            if slot == 3: lpre(a)
            if g == 2 and p in LOW:
                a(f"s_cmp_eq_u32 s{sg}, 0")
                a(f"s_cbranch_scc1 L_low{p}")
                a.lab(f"L_lowb{p}")
            if p == PGT and g == 0:
                a.vmem(f"buffer_load_dword v{T+8}, off, {S4(rWO)}, 0", "pg")
                a.vmem(f"buffer_load_dword v{T+9}, off, {S4(rBR)}, s{sF2O} sc1", "pg")
            if p == PGT and g == 1:
                a.vmem(f"buffer_load_dword v{T+10}, off, {S4(rOUT)}, s{sLS}", "pg")
                a(f"s_lshl_b32 s{t0}, s{sLS}, 1")
                a.vmem(f"buffer_load_dword v{T+11}, off, {S4(rOUT)}, s{t0}", "pg")
            if WB[:1] == "p" and p == int(WB[1:]) and g == 3: wbl2(a, "p", 7)
            if WB[:1] == "q" and p == int(WB[1:]) and g == 3: wbl2(a, "p", 3)
            if slot == 26: lpre(a, C0A)
            if slot == 30: lcheck(a, "L_c0", 4, C0A)
            if p == WOT and g == 2: a.vmem(f"buffer_load_dword v{T+8}, v{TAU}, {S4(rWO)}, 0 offen", "wot")
            if lq and lq[0][1] <= p and (g == LG or (g == LG + 1 and (p < 12 or p >= 40))): lq.pop(0)[0]()
            elif wq and wq[0][1] <= slot:
                wq.pop(0)[0]()
                if not wq:
                    arrive(a); state["arr"] = slot
            elif state["arr"] is not None and slot == state["arr"] + 2: lpre(a)
            elif state["arr"] is not None and not state["rd"] and slot >= state["arr"] + 4:
                lcheck(a, "L_p", 8)
                stamp(a, "b1")
                state["rd"] = True
                for _ in range(4): rq.pop(0)()
            elif state["rd"] and rq:
                for _ in range(4): rq.pop(0)()
            for jj in range(4): a(f"v_exp_f32 v{s+4*g+jj}, v{s+4*g+jj}")
    assert not lq and not wq and state["rd"]
    while rq: rq.pop(0)()
    a("s_nop 1")
    for x in pv(63): a(x)
    stamp(a, "loop1")
    OO = O[3]
    a("s_waitcnt lgkmcnt(0)")
    if ARR3 == "early": arrive(a)
    for r in range(16): a(f"v_add_f32 v{O[0]+r}, v{O[0]+r}, v{O[1]+r}")
    for r in range(16): a(f"v_add_f32 v{O[0]+r}, v{O[0]+r}, v{O[2]+r}")
    a(f"v_add_f32 v{OO+12}, v{OO+12}, v{O[0]+12}")
    a(f"v_mov_b32 v{T}, v{OO+12}")
    a(f"v_mov_b32 v{T+1}, v{OO+12}")
    for r in range(0, 4): a(f"v_add_f32 v{OO+r}, v{OO+r}, v{O[0]+r}")
    a(f"v_permlane32_swap_b32 v{T}, v{T+1}")
    for r in range(4, 16):
        if r != 12: a(f"v_add_f32 v{OO+r}, v{OO+r}, v{O[0]+r}")
    a(f"s_mov_b32 s{sFB}, 0")
    a.lab("L_norm")
    a(f"v_rcp_f32 v{T}, v{T+1}")
    if EARLYP == 1: a(f"buffer_load_dwordx2 {vr(T+14,2)}, v{LF}, {S4(rBR)}, 0 offen {PF2}")
    else: a("s_nop 0")
    P = T + 4
    for r in range(8): a(f"v_mul_f32 v{OO+r}, v{OO+r}, v{T}")
    for i in range(4): a(f"v_cvt_pk_bf16_f32 v{P+i}, v{OO+2*i}, v{OO+2*i+1}")
    a(f"buffer_store_dwordx4 {vr(P,4)}, v{L16}, {S4(rBR)}, s{sOO} offen sc1")
    for r in range(8, 16): a(f"v_mul_f32 v{OO+r}, v{OO+r}, v{T}")
    for i in range(4, 8): a(f"v_cvt_pk_bf16_f32 v{P+i}, v{OO+2*i}, v{OO+2*i+1}")
    a("s_mov_b32 exec_hi, 0")
    a(f"buffer_store_dwordx4 {vr(P+4,4)}, v{L16}, {S4(rBR)}, s{sOO} offen offset:1024 sc1")
    a("s_not_b64 exec, exec")
    a(f"buffer_store_dwordx2 {vr(P+4,2)}, v{L8}, {S4(rBR)}, s{sOO} offen offset:1280 sc1")
    a("s_mov_b64 exec, -1")
    if EARLYP == 2: a(f"buffer_load_dwordx2 {vr(T+14,2)}, v{LF}, {S4(rBR)}, 0 offen {PF2}")
    stamp(a, "ost")
    a(f"s_cmp_lg_u32 s{sFB}, 0")
    a("s_cbranch_scc1 L_checked")
    if ARR3 == "late": arrive(a)
    a(f"v_mul_f32 v{T+2}, 0, v{OO}")
    a(f"v_mul_f32 v{T+3}, 0, v{OO+1}")
    for r in range(2, 16): a(f"v_fma_f32 v{T+2+(r&1)}, 0, v{OO+r}, v{T+2+(r&1)}")
    a(f"v_add_f32 v{T+2}, v{T+2}, v{T+3}")
    a(f"v_add_f32 v{T+2}, v{T+2}, v{T+1}")
    a(f"v_cmp_nlt_f32 vcc, 0x35800000, v{T+2}")
    a(f"s_mov_b64 {S2(sROT)}, vcc")
    a(f"v_cmp_ngt_f32 vcc, 0x71800000, v{T+2}")
    a(f"s_or_b64 vcc, vcc, {S2(sROT)}")
    a("s_cbranch_vccnz L_fallback")
    a.lab("L_checked")
    sOS, sOL, sW0 = KT[1], KT[2], KT[3]
    INV = [ORD.index(r_) for r_ in range(4)]
    def wo_round(st):
        a(f"s_xor_b32 s{t0}, s{sPE}, {st}")
        a(f"s_add_u32 s{t0}, s{t0}, s{sW0}")
        a(f"s_mul_i32 s{sWOS}, s{t0}, {28*896}")
        a(f"s_mul_i32 s{sWOL}, s{skq}, {56*256}")
        a(f"s_mov_b32 s{t1}, 0")
        a(f"s_setprio {WPRIO}")
        a.lab(f"L_wo{st}")
        a(f"s_mov_b32 m0, s{sWOL}")
        a(f"s_add_u32 s{t1}, s{t1}, 1")
        a(f"buffer_load_dwordx4 v{WOA}, {S4(rWO)}, s{sWOS} offen {WOF} lds")
        a(f"s_add_u32 s{sWOL}, s{sWOL}, 1024")
        a(f"s_cmp_eq_u32 s{t1}, 7")
        a(f"s_mov_b32 s{t0}, {4*896}")
        a(f"s_cselect_b32 s{t0}, {32*896}, s{t0}")
        a(f"s_add_u32 s{sWOS}, s{sWOS}, s{t0}")
        a(f"s_cmp_lg_u32 s{t1}, 14")
        a(f"s_waitcnt vmcnt({WOFL})")
        a(f"s_cbranch_scc1 L_wo{st}")
        a("s_waitcnt vmcnt(0)")
        a("s_setprio 2")
    a(f"s_cmp_eq_u32 s{sg}, 0")
    a("s_cbranch_scc1 L_wfirst")
    a.lab("L_pub")
    NF = T + 2
    a(f"v_mov_b32 v{NF}, s{NONCE}")
    a(f"v_mov_b32 v{NF+1}, s{NONCE+1}")
    a("s_mov_b64 exec, 1")
    a(f"s_cmp_eq_u32 s{sg}, 0")
    a("s_waitcnt vmcnt(0)")
    a(f"buffer_store_dwordx2 {vr(NF,2)}, off, {S4(rBR)}, s{sF2O} {SF2}")
    a("s_mov_b64 exec, -1")
    stamp(a, "flag2")
    a("s_cbranch_scc1 L_ph3")
    def late_fetch():
        a(f"s_mov_b32 m0, s{sLL}")
        a("s_nop 0")
        for i in range(4): a(f"buffer_load_dwordx4 v{L16}, {S4(rBR)}, s{sLS} offen offset:{1024*i} sc1 lds")
        a(f"s_add_u32 m0, s{sLL}, 4096")
        a("s_nop 0")
        for i in range(3): a(f"buffer_load_dwordx4 v{L16}, {S4(rBR)}, s{sLS2} offen offset:{1024*i} sc1 lds")
        a("s_mov_b64 exec, 1")
        a("s_waitcnt vmcnt(0)")
        a(f"ds_write_b32 v{LM}, v{ONE}")
        a("s_mov_b64 exec, -1")
    a(f"ds_read_b32 v{T+12}, v{LM}")
    lwait(a, "L_wfree", 0, 16, 1, C0A)
    a(f"s_cmp_lg_u32 s{skq}, 3")
    a("s_cbranch_scc1 L_pfree_done")
    lwait(a, "L_pfree", 0, 12, 1)
    a(f"v_readfirstlane_b32 s{t0}, v{T+12}")
    a(f"s_cmp_lg_u32 s{t0}, 0")
    a("s_cbranch_scc1 L_fin")
    if EARLYP:
        a(f"v_cmp_ne_u64 vcc, {S2(NONCE)}, {vr(T+14,2)}")
        a("s_cbranch_vccz L_lready")
    if PW0: a("s_waitcnt vmcnt(0)")
    poll(a, "L_f21", LF, rBR, PF2)
    a.lab("L_lready")
    stamp(a, "poll2")
    late_fetch()
    stamp(a, "oown")
    if WB == "e": wbl2(a, "e", 7)
    a("s_waitcnt lgkmcnt(0)")
    a("s_branch L_fin")
    a.lab("L_ph3")
    if OUTW:
        a("s_mov_b64 exec, 1")
        a(f"buffer_load_dword v{T+8}, v{OUTA}, {S4(rOUT)}, 0 offen")
        a("s_mov_b64 exec, -1")
    WBR = 16
    steps = []
    for q in range(2):
        for j in range(4 * q, 4 * q + 4): steps.append((0, lambda aa, j=j: 28 * j + 8 * aa, ("A", j)))
        for i in range(2 * q, 2 * q + 2): steps.append((1, lambda aa, i=i: 56 * i + 16 + 8 * aa, ("B", 2 * i)))
        steps.append((2, lambda aa, q=q: 28 * (4 * q + aa) + 20, ("C", 4 * q)))
    WA2, TW2 = 8, 11
    MK = TW + 1
    ACC3 = [128, 144]; ACCB = [176, 192]; OB = 208; OE = 176
    def wread(ks):
        t, row, _ = steps[ks]
        return [f"ds_read_b64_tr_b16 {vr(WBR+8*ks+4*j+2*aa,2)}, v{(WA2 if j else WA)+t} offset:{row(aa)*256}" for j in range(2) for aa in range(2)]
    def oread(ks, d, base):
        kind, hd = steps[ks][2]
        if kind == "A": return [f"ds_read_b128 {vr(d,4)}, v{OA} offset:{base+hd*1792}"]
        if kind == "B": return [f"ds_read_b128 {vr(d,4)}, v{OA+1} offset:{base+hd*1792+1024}"]
        return [f"ds_read_b64 {vr(d+2*aa,2)}, v{OA+2} offset:{base+(hd+aa)*1792+1536}" for aa in range(2)]
    for t in range(3): a(f"v_xor_b32 v{WA2+t}, 64, v{WA+t}")
    for k_, x_ in enumerate((16, 64, 80)): a(f"v_xor_b32 v{TW2+k_}, {x_}, v{TW}")
    gbar(a, "L_g4", 4)
    for ks in range(14):
        for x in wread(ks): a(x)
    a("s_waitcnt lgkmcnt(0)")
    gbar(a, "L_g5", 5)
    wo_round(1)
    a(f"s_mul_i32 s{sOS}, s{sRT}, 1792")
    a(f"s_mul_i32 s{sOL}, s{skq}, 7168")
    a(f"s_add_u32 s{sOL}, s{sOL}, {ES}")
    poll(a, "L_f20", F2A, rBR, PF2)
    a(f"s_mov_b32 m0, s{sOL}")
    a(f"s_add_u32 s{t0}, s{sOS}, 4096")
    for i in range(4): a(f"buffer_load_dwordx4 v{L16}, {S4(rBR)}, s{sOS} offen offset:{1024*i} sc1 lds")
    a(f"s_add_u32 m0, s{sOL}, 4096")
    a("s_nop 0")
    for i in range(3): a(f"buffer_load_dwordx4 v{L16}, {S4(rBR)}, s{t0} offen offset:{1024*i} sc1 lds")
    a("s_waitcnt vmcnt(0)")
    gbar(a, "L_g6", 6)
    stamp(a, "aland")
    a(f"s_cmp_eq_u32 s{XM}, 0")
    a("s_cbranch_scc1 L_fin")
    for ks in range(14):
        for x in oread(ks, OE + 4 * ks, 0): a(x)
    a(f"s_add_u32 s{t0}, s{sOUTO}, {8*1792}")
    a(f"s_add_u32 s{t1}, s{sOUTO}, {16*1792}")
    a(f"s_add_u32 s{sOS}, s{sOUTO}, {24*1792}")
    lwait(a, "L_h3", 4, 12, HSL)
    a("s_setprio 0")
    for ks in range(14):
        w_ = wread(ks)
        for j in range(2):
            c = "0" if ks == 0 else vr(ACC3[j], 16)
            a(f"v_mfma_f32_32x32x16_bf16 {vr(ACC3[j],16)}, {vr(WBR+8*ks+4*j,4)}, {vr(OE+4*ks,4)}, {c}")
            for x in w_[2*j:2*j+2]: a(x)
    stamp(a, "tileA")
    def half_block(hf, final):
        lg = []
        for n_ in range(7):
            for x in oread(7 * hf + n_, OB + 4 * n_, LS - ES): a(x); lg.append(n_)
        items = [(n_, j) for j in range(2) for n_ in range(7)] if final else [(n_, j) for n_ in range(7) for j in range(2)]
        seen = -1
        for k_, (n_, j) in enumerate(items):
            if n_ > seen:
                a(f"s_waitcnt lgkmcnt({sum(1 for x in lg if x > n_)})"); seen = n_
            d_ = ACCB[j] if hf else ACC3[j]
            c = "0" if (hf and n_ == 0) else vr(d_, 16)
            a(f"v_mfma_f32_32x32x16_bf16 {vr(d_,16)}, {vr(WBR+8*(7*hf+n_)+4*j,4)}, {vr(OB+4*n_,4)}, {c}")
            if final and k_ in (7, 8): a("s_nop 4")
            if final and 9 <= k_ <= 12:
                i0 = 2 * (k_ - 9)
                for r in range(2 * i0, 2 * i0 + 4): a(f"v_add_f32 v{ACC3[0]+r}, v{ACC3[0]+r}, v{ACCB[0]+r}")
                for i in range(i0, i0 + 2): a(f"v_cvt_pk_bf16_f32 v{ACC3[0]+i}, v{ACC3[0]+2*i}, v{ACC3[0]+2*i+1}")
    a(f"s_mov_b32 s{t3}, {SPIN}")
    a.lab("L_any")
    a(f"ds_read2_b32 {vr(T+8,2)}, v{MK} offset0:0 offset1:2")
    a(f"s_sub_u32 s{t3}, s{t3}, 1")
    a("s_cbranch_scc1 L_end")
    a("s_waitcnt lgkmcnt(0)")
    a(f"v_cmp_ne_u32 vcc, 0, v{T+9}")
    a("s_cbranch_vccnz L_ba")
    a(f"v_cmp_ne_u32 vcc, 0, v{T+8}")
    a("s_cbranch_vccz L_any")
    for first in (0, 1):
        if first: a.lab("L_ba")
        stamp(a, "bland")
        half_block(first, False)
        a(f"s_mov_b32 s{t3}, {SPIN}")
        a.lab(f"L_u{first}")
        a(f"ds_read_b32 v{T+8}, v{MK} offset:{8 - 8*first}")
        a(f"s_sub_u32 s{t3}, s{t3}, 1")
        a("s_cbranch_scc1 L_end")
        a("s_waitcnt lgkmcnt(0)")
        a(f"v_cmp_ne_u32 vcc, 0, v{T+8}")
        a(f"s_cbranch_vccz L_u{first}")
        stamp(a, "oland")
        half_block(1 - first, True)
        if not first: a("s_branch L_out")
    a.lab("L_out")
    stamp(a, "mf3")
    a(f"ds_write_b128 v{TW}, {vr(ACC3[0],4)}")
    a(f"ds_write_b128 v{TW2}, {vr(ACC3[0]+4,4)}")
    a("s_nop 9")
    for r in range(8): a(f"v_add_f32 v{ACC3[1]+r}, v{ACC3[1]+r}, v{ACCB[1]+r}")
    for i in range(4): a(f"v_cvt_pk_bf16_f32 v{ACC3[1]+i}, v{ACC3[1]+2*i}, v{ACC3[1]+2*i+1}")
    a(f"ds_write_b128 v{TW2+1}, {vr(ACC3[1],4)}")
    for r in range(8, 16): a(f"v_add_f32 v{ACC3[1]+r}, v{ACC3[1]+r}, v{ACCB[1]+r}")
    for i in range(4, 8): a(f"v_cvt_pk_bf16_f32 v{ACC3[1]+i}, v{ACC3[1]+2*i}, v{ACC3[1]+2*i+1}")
    a(f"ds_write_b128 v{TW2+2}, {vr(ACC3[1]+4,4)}")
    for i in range(4): a(f"ds_read_b128 {vr(WBR+4*i,4)}, v{TR} offset:{1024*i}")
    for i, so in enumerate((sOUTO, t0, t1, sOS)):
        a(f"s_waitcnt lgkmcnt({3-i})")
        a(f"buffer_store_dwordx4 {vr(WBR+4*i,4)}, v{OUTA}, {S4(rOUT)}, s{so} offen {OUTF}")
    a.lab("L_fin")
    if STAMP:
        a("s_waitcnt vmcnt(0)")
        a("s_memrealtime s[22:23]")
        a("s_memtime s[98:99]")
        a("s_waitcnt lgkmcnt(0)")
        a("s_mov_b64 exec, 1")
        a(f"s_mov_b32 s{rWS}, s2"); a(f"s_mov_b32 s{rWS+1}, s3"); a(f"s_mov_b32 s{rWS+2}, 0x10000000")
        a(f"s_lshl_b32 s{t1}, s{sidx}, 3")
        a(f"s_add_u32 s{t1}, s{t1}, s{sx}")
        a(f"s_lshl_b32 s{t1}, s{t1}, 9")
        a(f"s_add_u32 s{t1}, s{t1}, {64<<20}")
        a(f"s_lshl_b32 s{t0}, s{sw}, 6")
        a(f"s_add_u32 s{t1}, s{t1}, s{t0}")
        for i, r in enumerate([RT, 22, 100, 98] + [80 + 2 * k for k in range(9)] + [sLOC]):
            a(f"v_mov_b32 v1, s{r}")
            a(f"buffer_store_dword v1, off, {S4(rWS)}, s{t1} offset:{4*i}")
    if DIAG:
        a("s_waitcnt vmcnt(0)")
        if DIAG == "end": a("s_memrealtime s[80:81]")
        if DIAG == "none": a(f"s_mov_b32 s80, s{NONCE}")
        a("s_waitcnt lgkmcnt(0)")
        a("s_add_u32 s80, s80, 6000")
        a.lab("L_diag")
        a("s_sleep 2")
        a("s_memrealtime s[82:83]")
        a("s_waitcnt lgkmcnt(0)")
        a("s_sub_u32 s82, s82, s80")
        a("s_cmp_lt_i32 s82, 0")
        a("s_cbranch_scc1 L_diag")
    a.lab("L_end")
    a("s_endpgm")
    a.lab("L_wfirst")
    lwait(a, "L_h2", 12, 4)
    stamp(a, "wo0")
    if WB == "w": wbl2(a, "w", 3)
    a(f"s_lshl_b32 s{t0}, s{skq}, 2")
    a(f"s_lshr_b32 s{t0}, {sum((4*INV[r_]) << (4*r_) for r_ in range(4)):#x}, s{t0}")
    a(f"s_and_b32 s{sW0}, s{t0}, 15")
    wo_round(0)
    a("s_branch L_pub")
    for tag, P_, so, off in tails:
        a.lab(f"L_wt{tag}")
        a(f"buffer_store_dwordx4 {vr(P_,4)}, v{TAU}, {S4(rWS)}, s{so} offen offset:{off} sc1")
        a(f"s_branch L_st{tag}")
    for v in nnt:
        a.lab(f"L_nn{v}")
        a(f"buffer_load_dwordx2 {vr(NV,2)}, v{NA}, {S4(rDBG)}, 0 offen sc1")
        a(f"s_branch L_nnb{v}")
    for tag, nm in stails:
        a.lab(f"L_ns{tag}")
        stamp(a, nm)
        a(f"s_branch L_nb{tag}")
    for name, target, reg in slow:
        a.lab(f"{name}_slow")
        lwait(a, name, 0, target, 1, reg)
        a(f"s_branch {name}_back")
    if LOW[0] >= 0:
        for p, pr in zip(LOW, (0, 2)):
            a.lab(f"L_low{p}")
            a(f"s_setprio {pr}")
            a(f"s_branch L_lowb{p}")
    a.lab("L_f1wt")
    a(f"buffer_store_dwordx2 {vr(NV,2)}, off, {S4(rWS)}, s{sF1O} sc1")
    a("s_branch L_f1st")
    for tag in "LC":
        a.lab(f"L_nonce_retry{tag}")
        a(f"buffer_load_dwordx2 {vr(NV,2)}, off, {S4(rDBG)}, s{sDL} sc1")
        a(f"s_sub_u32 s{t3}, s{t3}, 1")
        a("s_cbranch_scc1 L_end")
        a("s_waitcnt vmcnt(0)")
        a(f"s_branch L_nonce{tag}")
    a.lab("L_fallback")
    QO = Q[3]; S0 = SB[0]; K0 = KB[0]; V0 = VB[0]; M = T + 2
    a("s_waitcnt vmcnt(0)")
    a(f"s_mov_b32 s{sFB}, 1")
    a("s_mov_b32 exec_lo, 0")
    a(f"v_mov_b32 v{QO+6}, 0")
    a("s_mov_b32 exec_lo, -1")
    for r in range(16): a(f"v_mov_b32 v{OO+r}, 0")
    a(f"v_mov_b32 v{M}, 0xff7fffff")
    a(f"s_mov_b32 s{sKVO}, 0")
    a.lab("L_fb_loop")
    a(f"buffer_load_dwordx4 {vr(K0,4)}, v{L16}, {S4(rKV)}, s{sKVO} offen sc1")
    a(f"buffer_load_dwordx4 {vr(K0+4,4)}, v{L16}, {S4(rKV)}, s{sKVO} offen offset:1024 sc1")
    a(f"buffer_load_dwordx4 {vr(V0,4)}, v{L16}, {S4(rKV)}, s{sKVO} offen offset:2048 sc1")
    a(f"buffer_load_dwordx4 {vr(V0+4,4)}, v{L16}, {S4(rKV)}, s{sKVO} offen offset:3072 sc1")
    a("s_waitcnt vmcnt(0)")
    a(f"v_mfma_f32_32x32x16_bf16 {vr(S0,16)}, {vr(K0,4)}, {vr(QO,4)}, 0")
    a(f"v_mfma_f32_32x32x16_bf16 {vr(S0,16)}, {vr(K0+4,4)}, {vr(QO+4,4)}, {vr(S0,16)}")
    a("s_nop 15")
    a(f"v_max3_f32 v{T}, v{M}, v{S0}, v{S0+1}")
    for i in range(2, 16, 2): a(f"v_max3_f32 v{T}, v{T}, v{S0+i}, v{S0+i+1}")
    a(f"v_mov_b32 v{T+1}, v{T}")
    a("s_nop 1")
    a(f"v_permlane32_swap_b32 v{T}, v{T+1}")
    a(f"v_max_f32 v{T}, v{T}, v{T+1}")
    a(f"v_sub_f32 v{T+1}, v{M}, v{T}")
    a(f"v_exp_f32 v{T+1}, v{T+1}")
    a(f"v_mov_b32 v{M}, v{T}")
    for r in range(16): a(f"v_sub_f32 v{S0+r}, v{S0+r}, v{T}")
    for r in range(16): a(f"v_exp_f32 v{S0+r}, v{S0+r}")
    for r in range(16): a(f"v_mul_f32 v{OO+r}, v{OO+r}, v{T+1}")
    a("s_nop 1")
    a(f"v_smfmac_f32_32x32x32_bf16 {vr(OO,16)}, {vr(V0,4)}, {vr(S0,8)}, v{IDX}")
    a(f"v_smfmac_f32_32x32x32_bf16 {vr(OO,16)}, {vr(V0+4,4)}, {vr(S0+8,8)}, v{IDX}")
    a(f"s_add_u32 s{sKVO}, s{sKVO}, 4096")
    a(f"s_cmp_lt_u32 s{sKVO}, 262144")
    a("s_nop 15")
    a("s_cbranch_scc1 L_fb_loop")
    a(f"v_mov_b32 v{T}, v{OO+12}")
    a(f"v_mov_b32 v{T+1}, v{OO+12}")
    a("s_nop 1")
    a(f"v_permlane32_swap_b32 v{T}, v{T+1}")
    a("s_branch L_norm")
    if SCP:
        a.raw(".p2align 12")
        a("s_endpgm")
    kd = f""".section .rodata,"a"
.p2align 6
.amdhsa_kernel {n}
  .amdhsa_next_free_vgpr 256
  .amdhsa_next_free_sgpr 102
  .amdhsa_accum_offset 256
  .amdhsa_group_segment_fixed_size 0
  .amdhsa_kernarg_size 72
  .amdhsa_user_sgpr_count 2
  .amdhsa_user_sgpr_kernarg_segment_ptr 1
  .amdhsa_system_sgpr_workgroup_id_x 1
.end_amdhsa_kernel
"""
    return a.text() + kd

hdr = f"""; Two multi-head attention blocks (S=2048, D=448, H=16, Dh=28), one launch, 256 workgroups of 8 waves, one per CU.
;  1. projection: K and V^T fragments go to ws, Q stays in LDS.  Feature 28 of K is 1 and feature 28 of Q carries -m, so the
;  2. attention: m is the row maximum over the wave's first key tile; the row sum and the outputs are range checked and a
;     q tile that fails is recomputed with the running maximum.  P stays in f32 registers: the sparse MFMA picks the high halves.
; Hand-offs carry a per-launch tag agreed through d_debug.  K/V are stored plainly only when every workgroup of the class has
; registered on this die; otherwise they are written through, so any placement gives the same result.
; @launch grid=(256,1,1) block=(512,1,1) lds={LDS}
.amdgcn_target "amdgcn-amd-amdhsa--gfx950"
.text
"""
open(sys.argv[1] if len(sys.argv) > 1 else "v16.s", "w").write(hdr + gen())
```

```python
import sys, os, struct, math
NAME = "concat_heads__softmax_full_mha__softmax_full_mha__prompt"
def f2u(x): return struct.unpack("<I", struct.pack("<f", x))[0]
CSCALE = f2u(28 ** -0.5 * math.log2(math.e))
E = os.environ.get
STAMP = E("STAMP", "0") in ("1", "3")
RTS = E("STAMP", "0") == "3"
DIAG = E("DIAG", "")
STL = E("STL", "c0,p1end,ack1,poll1,loop0,loop1,flag2,poll2,oland").split(",")
F2SP = int(E("F2SP", "32"))
FORCEFB = E("FORCEFB", "0") == "1"
LOCAL = E("LOCAL", "1") == "1"
PRET = int(E("PRET", "3"))
SLEEP = int(E("SLEEP", "0"))
OUTF = E("OUTF", "sc1").replace("_", " ")
ROTA, ROTB, ROTC, ROTN, ROTS = [int(v) for v in E("ROTP", "1,0,2,7,1").split(",")]
WOFL = int(E("WOFL", "5"))
NOWN = int(E("NOWN", "4"))
NPOS = int(E("NPOS", "5"))
ARR3 = E("ARR3", "late")
OUTW = int(E("OUTW", "0"))
WOT = int(E("WOT", "30"))
HB = int(E("HB", "0"))
BPOS = int(E("BPOS", "2"))
TLBW = int(E("TLBW", "0"))
PROBE = int(E("PROBE", "0"))
WPRIO = int(E("WPRIO", "0"))
PRET2 = int(E("PRET2", "0"))
LG = int(E("LG", "0"))
PF2 = E("PF2", "sc1").replace("_", " ")
SF2 = E("SF2", "sc1").replace("_", " ")
PIPE = int(E("PIPE", "0"))
PW0 = int(E("PW0", "1"))
F1SP = int(E("F1SP", "128"))
K1L = int(E("K1L", "1"))
LQ0 = int(E("LQ0", "0"))
PGA = int(E("PGA", "1"))
FPOS = int(E("FPOS", "22"))
QB = int(E("QB", "12"))
TEAR = int(E("TEAR", "0"))
B2 = int(E("B2", "0"))
LPR = int(E("LPR", "0"))
CPF = int(E("CPF", "0"))
UBY = int(E("UBY", "0"))
SLD = int(E("SLD", "6"))
NRC = 139264
MIX = int(E("MIX", "0"))
WB = E("WB", "q54")
PAD = int(E("PAD", "0"), 0)
VIS = int(E("VIS", "0"))
SCP = int(E("SCP", "0"))
INL = int(E("INL", "1"))
PG3 = int(E("PG3", "0"))
TWO = int(E("TWO", "0"))
STL_ = int(E("STN", "0"))
ST0 = int(E("ST0", "3"))
SGL = E("SGL", "")
PGT = int(E("PGT", "-1"))
SP = int(E("SP", "2"))
WF0 = E("WF0", ""); WF = E("WF", ""); XF0 = E("XF0", ""); XF = E("XF", ""); KVS = E("KVS", ""); WOF = E("WOF", ""); TF = E("TF", "sc1").replace("_", " "); KVL = E("KVL", "sc1").replace("_", " ")
LOW = [int(x) for x in E("LOW", "-1,-1").split(",")]
QFAST = int(E("QFAST", "1"))
FT = E("FT", "")
P0S = int(E("P0S", "1"))
SL1 = int(E("SL1", "0"))
PEX = int(E("PEX", "1"))
EARLYP = int(E("EARLYP", "1"))
GLOOK = int(E("GLOOK", "0"))
LOOK = int(E("LOOK", "16"))
LOOK2 = int(E("LOOK2", "7"))
HSL = int(E("HSL", "4"))
XMAP = E("XMAP", "10542367")
T2POS = E("T2POS", "b6")
SPIN = 1 << 22

X_F1 = 1 << 20
B_BASE = 16 << 20; B_F2 = 1835008
STAGE = 40960; XOFF = 24576
PB0 = 57344; QX = 122880; MX = 106496; PB1 = 113664; TX = 122880; ES = 57344; LS = 86016; LDS = 163840; GBC = 163808

class A:
    def __init__(self):
        self.l = []; self.vm = []; self.done = 0
    def __call__(self, s): self.l.append("    " + s)
    def lab(self, s): self.l.append(s + ":")
    def raw(self, s): self.l.append(s)
    def note(self, s):
        for x in s.strip().split("\n"): self.l.append("; " + x.strip())
    def text(self): return "\n".join(self.l) + "\n"
    def vreset(self): self.vm = []; self.done = 0
    def vmem(self, s, tag=None):
        self(s); self.vm.append(tag)
    def vwait(self, tag):
        idx = [i for i, t in enumerate(self.vm) if t == tag]
        assert idx, tag
        last = idx[-1] + 1
        if last <= self.done: return
        self.done = last
        n = len(self.vm) - last
        assert n < 64
        self(f"s_waitcnt vmcnt({n})")

def vr(b, n): return f"v[{b}:{b+n-1}]"
def S4(b): return f"s[{b}:{b+3}]"
def S2(b): return f"s[{b}:{b+1}]"
JIT = int(E("JIT", "0")); njit = [0]
def stamp(a, name):
    if JIT and (not name.startswith("ph") or int(name[2:]) % 9 == 2):
        import zlib
        njit[0] += 1
        h = zlib.crc32(f"{name}{JIT}".encode())
        a("s_cselect_b32 s96, 1, 0")
        a(f"s_mul_i32 s97, s41, {1 + 2 * (h & 3)}")
        a("s_add_u32 s97, s97, s46")
        a("s_add_u32 s97, s97, s40")
        a(f"s_and_b32 s97, s97, {7 if h & 4 else 3}")
        a(f"s_cmp_lg_u32 s97, {(h >> 4) & 3}")
        a(f"s_cbranch_scc1 L_jit{njit[0]}")
        for _ in range(1 + ((h >> 8) & 3)): a("s_sleep 100")
        a.lab(f"L_jit{njit[0]}")
        a("s_cmp_lg_u32 s96, 0")
    if DIAG == name: a("s_memrealtime s[80:81]")
    if DIAG == name + "@0":
        a("s_cmp_lg_u32 s50, 0")
        a("s_cbranch_scc1 L_dg0")
        a("s_memrealtime s[80:81]")
        a.lab("L_dg0")
    if STAMP and name in STL:
        i = STL.index(name)
        a(f"{'s_memrealtime' if RTS else 's_memtime'} s[{80+2*i}:{81+2*i}]")

rX, rW, rWS, rWO, rOUT, rDBG, rKV, rBR = 24, 28, 32, 36, 64, 68, 72, 12
XM = 4
sLOC, sRT, sOUTO, sQT, sF1O, sPE = 6, 7, 8, 9, 10, 11
sKVO, sWOS, sWOL, sOO, sF2O, sFB = 16, 17, 18, 19, 22, 23
sx, sidx, sb, srb, shalf, sXS, sw, shl, shs, sg4, sg, sWL, sXL, sWS_, stt, scg, skq, su = range(40, 58)
t0, t1, sDL, t2, sROT, t3 = 58, 59, 60, 61, 62, 63
NONCE = 76; RT = 78
KT = [24, 25, 26, 27, 28]
KP = [24, 26, 28, 30, 44, 52, 54, 20]
L16, IDX, CA, F1A, ONE, L8, MW, MR, PW, PR, TAU = 1, 2, 3, 4, 5, 6, 7, 8, 11, 14, 15
T = 240
XD, WD, XA, WA1, QW, NV, NA, PTA = 16, 18, 16, 20, 23, 232, 234, 235
ACC = 32; FR = 128; P1 = 208
Q = [16, 24, 32, 40]; O = [48, 64, 80, 96]; SB = [112, 128, 144]; KB = [176, 184, 192, 200]; VB = [208, 216, 224, 232]
WA, F2B, TW, OA, WOA, F2A, OUTA, TR = 160, 163, 166, 168, 172, 173, 174, 175
ORD = [0, 2, 3, 1]
LF, LM, C0A = 163, 164, 165
sLS, sLL, sLS2 = 43, 51, 57

def lwait(a, name, off, target, sleep=2, reg=None):
    a(f"s_mov_b32 s{t3}, {SPIN}")
    a.lab(f"{name}_spin")
    a(f"ds_read_b32 v{T+13}, v{reg or CA} offset:{off}")
    a(f"s_sub_u32 s{t3}, s{t3}, 1")
    a("s_cbranch_scc1 L_end")
    a("s_waitcnt lgkmcnt(0)")
    a(f"v_readfirstlane_b32 s{t2}, v{T+13}")
    a(f"s_cmp_ge_u32 s{t2}, {target}")
    if sleep:
        a(f"s_cbranch_scc1 {name}_done")
        a(f"s_sleep {sleep}")
        a(f"s_branch {name}_spin")
        a.lab(f"{name}_done")
    else:
        a(f"s_cbranch_scc0 {name}_spin")
def arrive(a, off=0):
    a("s_mov_b64 exec, 1")
    a(f"ds_add_u32 v{CA}, v{ONE} offset:{off}")
    a("s_mov_b64 exec, -1")
slow = []
def lpre(a, reg=None):
    if INL: a(f"s_mov_b32 s{t3}, {SPIN}")
    a(f"ds_read_b32 v{T+13}, v{reg or CA}")
def lcheck(a, name, target, reg=None):
    if INL:
        a.lab(f"{name}_re")
        a("s_waitcnt lgkmcnt(0)")
        a(f"v_readfirstlane_b32 s{t2}, v{T+13}")
        a(f"s_sub_u32 s{t3}, s{t3}, 1")
        a(f"ds_read_b32 v{T+13}, v{reg or CA}")
        a("s_cbranch_scc1 L_end")
        a(f"s_cmp_ge_u32 s{t2}, {target}")
        a(f"s_cbranch_scc0 {name}_re")
        a.lab(f"{name}_back")
        return
    a("s_waitcnt lgkmcnt(0)")
    a(f"v_readfirstlane_b32 s{t2}, v{T+13}")
    a(f"s_cmp_ge_u32 s{t2}, {target}")
    a(f"s_cbranch_scc0 {name}_slow")
    a.lab(f"{name}_back")
    slow.append((name, target, reg))
def gbar(a, name, k):
    arrive(a)
    lwait(a, name, 0, 4 * k)
def poll_pipe(a, name, vaddr, srd, fl, regs):
    n_ = len(regs)
    a(f"s_mov_b32 s{t3}, {SPIN}")
    for r in regs[:-1]:
        a(f"buffer_load_dwordx2 {vr(r,2)}, v{vaddr}, {S4(srd)}, 0 offen {fl}")
        a(f"s_sleep {PIPE}")
    a.lab(f"{name}_spin")
    for i in range(n_):
        a(f"buffer_load_dwordx2 {vr(regs[(i-1)%n_],2)}, v{vaddr}, {S4(srd)}, 0 offen {fl}")
        a(f"s_waitcnt vmcnt({n_-1})")
        a(f"v_cmp_ne_u64 vcc, {S2(NONCE)}, {vr(regs[i],2)}")
        a(f"s_cbranch_vccz {name}_ok")
    a(f"s_sub_u32 s{t3}, s{t3}, 1")
    a(f"s_cbranch_scc0 {name}_spin")
    a("s_branch L_end")
    a.lab(f"{name}_ok")
def poll(a, name, vaddr, srd, fl="sc1", lanes=4, SLEEP=0):
    a(f"s_mov_b32 s{t3}, {SPIN}")
    if PEX: a(f"s_mov_b64 exec, {(1 << lanes) - 1:#x}")
    if SLEEP: a(f"s_branch {name}_first")
    a.lab(f"{name}_spin")
    if SLEEP:
        a(f"s_sleep {SLEEP}")
        a.lab(f"{name}_first")
    a(f"buffer_load_dwordx2 {vr(T+14,2)}, v{vaddr}, {S4(srd)}, 0 offen {fl}")
    a(f"s_sub_u32 s{t3}, s{t3}, 1")
    a("s_cbranch_scc1 L_end")
    a("s_waitcnt vmcnt(0)")
    a(f"v_cmp_ne_u64 vcc, {S2(NONCE)}, {vr(T+14,2)}")
    a(f"s_cbranch_vccnz {name}_spin")
    if PEX: a("s_mov_b64 exec, -1")

def wbl2(a, tag, wave):
    a(f"s_cmp_lg_u32 s{sw}, {wave}")
    a(f"s_cbranch_scc1 L_wb{tag}")
    a(f"s_cmp_lg_u32 s{sidx}, 3")
    a(f"s_cbranch_scc1 L_wb{tag}")
    a("buffer_wbl2 sc1")
    a.lab(f"L_wb{tag}")

def gen():
    a = A(); n = NAME + "_kernel"
    tails = []; stails = []; nnt = []
    u0, u1, u2, u3, u4 = T, T + 1, T + 2, T + 3, T + 4
    a.raw(f".globl {n}\n" + (".p2align 12\n" if PGA else "") + (f".fill {PAD//4}, 4, 0xbf800000\n" if PAD else "") + f".p2align 8\n.type {n},@function")
    a.lab(n)
    a("s_cmp_ge_u32 s2, 256")
    a("s_cbranch_scc1 L_end")
    a("s_load_dwordx16 s[4:19], s[0:1], 0")
    a("s_load_dwordx2 s[20:21], s[0:1], 64")
    a(f"s_memrealtime {S2(RT)}")
    if STAMP and not RTS: a("s_memtime s[100:101]")
    a(f"s_and_b32 s{sx}, s2, 7")
    a(f"s_lshr_b32 s{sidx}, s2, 3")
    a("v_lshrrev_b32 v1, 6, v0")
    a("v_and_b32 v0, 63, v0")
    a(f"v_readfirstlane_b32 s{sw}, v1")
    if XMAP:
        tab = sum(int(c) << (4 * i) for i, c in enumerate(XMAP))
        assert sorted(XMAP) == list("01234567")
        a(f"s_lshl_b32 s{t0}, s{sx}, 2")
        a(f"s_lshr_b32 s{t0}, {tab:#x}, s{t0}")
        a(f"s_bfe_u32 s{sb}, s{t0}, 0x10002")
        a(f"s_and_b32 s{sg4}, s{t0}, 3")
    else:
        a(f"s_lshr_b32 s{sb}, s{sx}, 2")
        a(f"s_and_b32 s{sg4}, s{sx}, 3")
    a(f"s_lshr_b32 s{srb}, s{sidx}, 1")
    a(f"s_and_b32 s{shalf}, s{sidx}, 1")
    if TLBW:
        a(f"s_cmp_lt_u32 s{sw}, 4")
        a("s_cbranch_scc1 L_load")
        a(f"s_mul_i32 s{t0}, s{srb}, {128*896}")
        a(f"s_cmp_eq_u32 s{sb}, 0")
        a(f"v_mov_b32 v{u0}, s{t0}")
        a(f"v_mul_u32_u24 v{u1}, {7*2688}, v0")
        a("s_waitcnt lgkmcnt(0)")
        a(f"s_cselect_b64 {S2(rX)}, s[4:5], s[10:11]")
        a(f"s_cselect_b64 {S2(rW)}, s[6:7], s[12:13]")
        if TLBW == 1: a("s_mov_b64 exec, 1")
        a(f"global_load_dword v{T+10}, v{u0}, {S2(rX)}")
        a(f"global_load_dword v{T+11}, v{u1}, {S2(rW)}")
        a("s_mov_b64 exec, -1")
        a("s_branch L_comp")
        a.lab("L_load")
    else:
        a(f"s_cmp_ge_u32 s{sw}, 4")
        a("s_cbranch_scc1 L_comp")
    def stamp_init():
        if DIAG: a(f"s_mov_b32 s80, s{RT}")
        if STAMP and STL != ["none"]:
            for k in range(9): a(f"s_mov_b32 s{80+2*k}, s{RT if RTS else 100}")
    def dbg_desc():
        a(f"s_mov_b32 s{rDBG}, s18"); a(f"s_mov_b32 s{rDBG+1}, s19"); a(f"s_mov_b32 s{rDBG+2}, 256"); a(f"s_mov_b32 s{rDBG+3}, 0x00020000")
        a(f"s_lshl_b32 s{sDL}, s{sb}, 3")
    def ws_desc():
        a(f"s_lshl_b32 s{t2}, s{sx}, 21")
        a(f"s_add_u32 s{rWS}, s20, s{t2}")
        a(f"s_addc_u32 s{rWS+1}, s21, 0")
        a(f"s_mov_b32 s{rWS+2}, {2<<20}")
        a(f"s_mov_b32 s{rWS+3}, 0x00020000")
    def ids2a(g, ws=True):
        a(f"s_cmp_eq_u32 s{sb}, 0")
        a(f"s_cselect_b32 s{rWO}, s8, s14")
        a(f"s_cselect_b32 s{rWO+1}, s9, s15")
        a(f"s_mov_b32 s{rWO+2}, 401408")
        a(f"s_mov_b32 s{rWO+3}, 0x00020000")
        a(f"s_mov_b32 s{rOUT}, s16"); a(f"s_mov_b32 s{rOUT+1}, s17"); a(f"s_mov_b32 s{rOUT+2}, {2048*896*2}"); a(f"s_mov_b32 s{rOUT+3}, 0x00020000")
        if ws: ws_desc()
        a(f"s_lshl_b32 s{t2}, s{sb}, 21")
        a(f"s_add_u32 s{t2}, s{t2}, {B_BASE}")
        a(f"s_add_u32 s{rBR}, s20, s{t2}")
        a(f"s_addc_u32 s{rBR+1}, s21, 0")
        a(f"s_mov_b32 s{rBR+2}, {2<<20}")
        a(f"s_mov_b32 s{rBR+3}, 0x00020000")
        a(f"s_mov_b32 s{sg}, {g}")
        a(f"s_and_b32 s{shs}, s{srb}, 1")
        if g: a(f"s_xor_b32 s{shs}, s{shs}, 1")
        a(f"s_lshl_b32 s{shl}, s{shalf}, 1")
        a(f"s_add_u32 s{shl}, s{shl}, s{shs}")
        a(f"s_lshl_b32 s{t2}, s{shl}, 18")
        a(f"s_add_u32 s{rKV}, s{rWS}, s{t2}")
        a(f"s_addc_u32 s{rKV+1}, s{rWS+1}, 0")
        a(f"s_mov_b32 s{rKV+2}, 262144")
        a(f"s_mov_b32 s{rKV+3}, 0x00020000")
        a(f"s_and_b32 s{skq}, s{sw}, 3")
        a(f"s_lshl_b32 s{sKVO}, s{skq}, 16")
        a(f"v_and_b32 v{u0}, 15, v0")
        a(f"v_lshlrev_b32 v{u0}, 3, v{u0}")
        a(f"s_lshl_b32 s{t0}, s{shalf}, 2")
        a(f"s_add_u32 s{t0}, s{t0}, s{skq}")
        a(f"s_mul_i32 s{t0}, s{t0}, {F1SP}")
        a(f"s_add_u32 s{t0}, s{t0}, {X_F1}")
        a(f"v_add_u32 v{F1A}, s{t0}, v{u0}")
    def ids2b(g):
        a(f"v_lshlrev_b32 v{L16}, 4, v0")
        a(f"v_lshlrev_b32 v{L8}, 3, v0")
        a(f"v_lshlrev_b32 v{u0}, 2, v0")
        a(f"v_mov_b32 v{IDX}, 0xdddddddd")
        pb = PB1 if g else PB0; mx = MX + 1024 * g
        a(f"s_lshl_b32 s{t1}, s{skq}, 8")
        a(f"s_add_u32 s{t1}, s{t1}, {mx}")
        a(f"v_add_u32 v{MW}, s{t1}, v{u0}")
        a(f"s_mul_i32 s{t1}, s{skq}, 12288")
        a(f"s_add_u32 s{t1}, s{t1}, {pb}")
        a(f"v_add_u32 v{PR}, s{t1}, v{L16}")
        for i in range(3):
            a(f"s_add_u32 s{t0}, s{skq}, {1+i}")
            a(f"s_and_b32 s{t0}, s{t0}, 3")
            a(f"s_lshl_b32 s{t1}, s{t0}, 8")
            a(f"s_add_u32 s{t1}, s{t1}, {mx}")
            a(f"v_add_u32 v{MR+i}, s{t1}, v{u0}")
            a(f"s_mul_i32 s{t1}, s{t0}, 12288")
            a(f"s_add_u32 s{t1}, s{t1}, {pb + 4096*i}")
            a(f"v_add_u32 v{PW+i}, s{t1}, v{L16}")
        a(f"v_mov_b32 v{CA}, {GBC + 4*g}")
        a(f"v_mov_b32 v{ONE}, 1")
        a(f"s_lshl_b32 s{sQT}, s{srb}, 2")
        a(f"s_add_u32 s{sQT}, s{sQT}, s{skq}")
        a(f"s_lshl_b32 s{t0}, s{sg4}, 2")
        a(f"s_lshr_b32 s{t0}, {sum((2*ORD[g_]) << (4*g_) for g_ in range(4)):#x}, s{t0}")
        a(f"s_and_b32 s{t0}, s{t0}, 7")
        a(f"s_add_u32 s{t0}, s{t0}, s{shalf}")
        a(f"s_lshl_b32 s{t1}, s{shs}, 3")
        a(f"s_add_u32 s{t0}, s{t0}, s{t1}")
        a(f"s_lshl_b32 s{t1}, s{sQT}, 4")
        a(f"s_add_u32 s{t1}, s{t1}, s{t0}")
        a(f"s_mul_i32 s{sOO}, s{t1}, 1792")
        a(f"s_mul_i32 s{sF2O}, s{t1}, {F2SP}")
        a(f"s_add_u32 s{sF2O}, s{sF2O}, {B_F2}")
    def late_addr():
        a(f"s_lshl_b32 s{t0}, s{sg4}, 3")
        a(f"s_lshr_b32 s{t1}, s{sidx}, 2")
        a(f"s_add_u32 s{t0}, s{t0}, s{t1}")
        a(f"s_and_b32 s{t1}, s{t0}, 2")
        a(f"s_xor_b32 s{t1}, s{t1}, 2")
        a(f"s_lshl_b32 s{t1}, s{t1}, 2")
        a(f"s_lshl_b32 s{t0}, s{t0}, 5")
        a(f"s_add_u32 s{t0}, s{t0}, s{t1}")
        a(f"s_and_b32 s{t1}, s{skq}, 1")
        a(f"s_mul_i32 s{sLL}, s{t1}, 14336")
        a(f"s_lshl_b32 s{t1}, s{t1}, 4")
        a(f"s_add_u32 s{t0}, s{t0}, s{t1}")
        a(f"s_and_b32 s{t1}, s{skq}, 2")
        a(f"s_lshl_b32 s{t1}, s{t1}, 1")
        a(f"s_add_u32 s{t0}, s{t0}, s{t1}")
        a(f"v_and_b32 v{LF}, 3, v0")
        a(f"v_add_u32 v{LF}, s{t0}, v{LF}")
        a(f"v_mul_u32_u24 v{LF}, {F2SP}, v{LF}")
        a(f"v_add_u32 v{LF}, {B_F2}, v{LF}")
        a(f"s_mul_i32 s{sLS}, s{t0}, 1792")
        a(f"s_add_u32 s{sLS2}, s{sLS}, 4096")
        a(f"s_mul_i32 s{t1}, s{t1}, 1792")
        a(f"s_add_u32 s{sLL}, s{sLL}, s{t1}")
        a(f"s_add_u32 s{sLL}, s{sLL}, {LS}")
        a(f"s_lshl_b32 s{t1}, s{skq}, 2")
        a(f"s_add_u32 s{t1}, s{t1}, {GBC + 16}")
        a(f"v_mov_b32 v{LM}, s{t1}")
        a(f"v_mov_b32 v{C0A}, {GBC}")
    def pre2():
        late_addr()
        for r in range(4): a(f"v_mov_b32 v{SB[0]+r}, 0")
        a("s_nop 1")
        for i in range(4): a(f"v_mfma_f32_32x32x16_bf16 {vr(O[i],16)}, {vr(SB[0],4)}, {vr(SB[0],4)}, 0")
        if STAMP: a("s_mov_b64 s[2:3], s[20:21]")
        a(f"s_add_u32 s{t0}, s{rKV}, s{sKVO}")
        a(f"s_addc_u32 s{t1}, s{rKV+1}, 0")
        for k in range(8):
            a(f"s_add_u32 s{KP[k]}, s{t0}, {8192*k + 4096}")
            a(f"s_addc_u32 s{KP[k]+1}, s{t1}, 0")
        if WOT >= 0:
            a(f"s_lshl_b32 s{t0}, s{sidx}, 2")
            a(f"s_add_u32 s{t0}, s{t0}, s{skq}")
            a(f"s_mul_i32 s{t0}, s{t0}, 25")
            a(f"v_min_u32 v{TAU}, 24, v0")
            a(f"v_add_u32 v{TAU}, s{t0}, v{TAU}")
            a(f"v_lshlrev_b32 v{TAU}, 7, v{TAU}")
    def getq(g):
        a(f"s_lshl_b32 s{t1}, s{shs}, 13")
        a(f"s_add_u32 s{t1}, s{t1}, {QX}")
        for i in range(4):
            a(f"s_add_u32 s{t0}, s{skq}, {1+i}")
            a(f"s_and_b32 s{t0}, s{t0}, 3")
            a(f"s_lshl_b32 s{t0}, s{t0}, 11")
            a(f"s_add_u32 s{t0}, s{t0}, s{t1}")
            a(f"v_add_u32 v{u0+i}, s{t0}, v{L16}")
        a(f"v_mov_b32 v{T+4}, {GBC + 8}")
        a(f"v_mov_b32 v{T+5}, {GBC + 12 if g else GBC - 4}")
    def getq2():
        lwait(a, "L_q", 0, 4, 0 if QFAST else 1, T + 4)
        for i in (3, 0, 1, 2):
            a(f"ds_read_b128 {vr(Q[i],4)}, v{u0+i}")
            a(f"ds_read_b128 {vr(Q[i]+4,4)}, v{u0+i} offset:1024")
    def nonce(tag):
        a(f"s_mov_b32 s{t3}, {SPIN}")
        a.lab(f"L_nonce{tag}")
        a(f"v_readfirstlane_b32 s{NONCE}, v{NV}")
        a(f"v_readfirstlane_b32 s{NONCE+1}, v{NV+1}")
        a(f"s_cmp_lg_u32 s{NONCE}, 0")
        a(f"s_cselect_b32 s{t2}, s{NONCE+1}, 0")
        a(f"s_cmp_lg_u32 s{t2}, 0")
        a(f"s_cbranch_scc0 L_nonce_retry{tag}")
    a(f"v_lshrrev_b32 v{u0}, 3, v0")
    a(f"v_lshrrev_b32 v{u1}, 4, v0")
    a(f"v_and_b32 v{u2}, 7, v0")
    a(f"s_lshl_b32 s{t0}, s{srb}, 7")
    a(f"s_lshl_b32 s{t1}, s{sw}, 5")
    a(f"s_add_u32 s{t0}, s{t0}, s{t1}")
    a(f"v_add_u32 v{u3}, s{t0}, v{u0}")
    a(f"v_mul_u32_u24 v{u3}, 896, v{u3}")
    a(f"v_xor_b32 v{u4}, v{u2}, v{u1}")
    a(f"v_lshl_add_u32 v{XD}, v{u4}, 4, v{u3}")
    a(f"v_xor_b32 v{XD+1}, 64, v{XD}")
    a(f"v_add_u32 v{XD+1}, 7168, v{XD+1}")
    a(f"s_mul_i32 s{t0}, s{sg4}, 224")
    a(f"s_mul_i32 s{t1}, s{sw}, {16*2688}")
    a(f"s_add_u32 s{t0}, s{t0}, s{t1}")
    a(f"s_mul_i32 s{t1}, s{shalf}, 896")
    a(f"s_add_u32 s{t1}, s{t1}, s{t0}")
    a(f"s_add_u32 s{t1}, s{t1}, 896")
    a(f"v_lshlrev_b32 v{u3}, 2, v{u1}")
    a(f"v_and_b32 v{u4}, 15, v0")
    a(f"v_xor_b32 v{u4}, v{u4}, v{u3}")
    a(f"v_cmp_lt_u32 vcc, 13, v{u4}")
    a(f"v_mul_u32_u24 v{u1}, 2688, v{u1}")
    a(f"v_lshl_add_u32 v{u1}, v{u4}, 4, v{u1}")
    a(f"v_add_u32 v{WD}, s{t1}, v{u1}")
    a(f"v_bfrev_b32 v{u4}, 2")
    a(f"v_cndmask_b32 v{WD}, v{WD}, v{u4}, vcc")
    a(f"s_mul_i32 s{t1}, s{shalf}, 112")
    a(f"s_add_u32 s{t1}, s{t1}, s{t0}")
    a(f"v_and_b32 v{u3}, 4, v{u3}")
    a(f"v_xor_b32 v{u2}, v{u2}, v{u3}")
    a(f"v_cmp_lt_u32 vcc, 6, v{u2}")
    a(f"v_mul_u32_u24 v{u0}, 2688, v{u0}")
    a(f"v_lshl_add_u32 v{u0}, v{u2}, 4, v{u0}")
    a(f"v_add_u32 v{WD+1}, s{t1}, v{u0}")
    a(f"v_cndmask_b32 v{WD+1}, v{WD+1}, v{u4}, vcc")
    if ROTN > 1:
        a(f"s_mul_i32 s{sROT}, s{srb}, {ROTA}")
        if ROTB:
            a(f"s_mul_i32 s{t0}, s{shalf}, {ROTB}")
            a(f"s_add_u32 s{sROT}, s{sROT}, s{t0}")
        a(f"s_mul_i32 s{t2}, s{sg4}, {ROTC}")
        a(f"s_add_u32 s{sROT}, s{sROT}, s{t2}")
        if ROTN & (ROTN - 1) == 0:
            a(f"s_and_b32 s{sROT}, s{sROT}, {ROTN-1}")
        else:
            a(f"s_mul_i32 s{t2}, s{sROT}, {(65536 + ROTN - 1)//ROTN}")
            a(f"s_lshr_b32 s{t2}, s{t2}, 16")
            a(f"s_mul_i32 s{t2}, s{t2}, {ROTN}")
            a(f"s_sub_u32 s{sROT}, s{sROT}, s{t2}")
        if ROTS != 1: a(f"s_mul_i32 s{sROT}, s{sROT}, {ROTS}")
    else:
        a(f"s_mov_b32 s{sROT}, 0")
    assert (ROTN - 1) * ROTS < 7
    a(f"s_lshl_b32 s{sXL}, s{sw}, 12")
    a(f"s_add_u32 s{sXL}, s{sXL}, {XOFF}")
    a(f"s_mul_i32 s{sWL}, s{sw}, 6144")
    a(f"s_mov_b32 s{rX+2}, 1835008")
    a(f"s_mov_b32 s{rX+3}, 0x00020000")
    a(f"s_mov_b32 s{rW+2}, 1204224")
    a(f"s_mov_b32 s{rW+3}, 0x00020000")
    a(f"s_cmp_eq_u32 s{sb}, 0")
    a("s_waitcnt lgkmcnt(0)")
    a(f"s_cselect_b32 s{rX}, s4, s10")
    a(f"s_cselect_b32 s{rX+1}, s5, s11")
    a(f"s_cselect_b32 s{rW}, s6, s12")
    a(f"s_cselect_b32 s{rW+1}, s7, s13")
    stamp_init()
    stamp(a, "karg")
    def one(kind, i, wl=sWL, ws=sWS_, add=0, first=False):
        xf, wf = (XF0, WF0) if first else (XF, WF)
        if kind == "x":
            a(f"s_add_u32 m0, s{sXL}, {1024*i}")
            a(f"s_add_u32 s{t0}, s{sXS}, {14336*(i//2)}")
            a(f"buffer_load_dwordx4 v{XD+(i&1)}, {S4(rX)}, s{t0} offen {xf} lds")
        else:
            G, q = divmod(i, 3)
            a(f"s_add_u32 m0, s{wl}, {1024*i + add}")
            a(f"s_add_u32 s{t0}, s{ws}, {(8*G + (4*q if q < 2 else 0))*2688}")
            a(f"buffer_load_dwordx4 v{WD+(q==2)}, {S4(rW)}, s{t0} offen {wf} lds")
    sB4, sB5, sB6 = scg, su, sFB
    def issue(first):
        a(f"s_lshl_b32 s{sXS}, s{sROT}, 7")
        a(f"s_mul_i32 s{sWS_}, s{sROT}, 172032")
        for kind, i in [("x", 0), ("w", 0), ("x", 1), ("w", 1), ("x", 2), ("w", 3), ("x", 3), ("w", 4)]: one(kind, i, first=first)
        if not first:
            a(f"s_mov_b32 s{sB4}, s{sB5}")
            a(f"s_mov_b32 s{sB5}, s{sB6}")
            a(f"s_mov_b32 s{sB6}, s{sWS_}")
            a(f"s_cmp_ge_u32 s{stt}, 4")
            a("s_cbranch_scc1 L_nob")
        one("w", 2, first=first); one("w", 5, first=first)
        if not first:
            a("s_branch L_nobr")
            a.lab("L_nob")
            a("s_waitcnt vmcnt(8)")
            a.lab("L_nobr")
        a(f"s_add_u32 s{sROT}, s{sROT}, 1")
        a(f"s_cmp_eq_u32 s{sROT}, 7")
        a(f"s_cselect_b32 s{sROT}, 0, s{sROT}")
        if first:
            a(f"s_add_u32 s{sWL}, s{sWL}, {STAGE}")
            a(f"s_add_u32 s{sXL}, s{sXL}, {STAGE}")
        else:
            a(f"s_cmp_ge_u32 s{sWL}, {2*STAGE}")
            a(f"s_mov_b32 s{t0}, {STAGE}")
            a(f"s_cselect_b32 s{t0}, {(-2*STAGE) & 0xffffffff:#x}, s{t0}")
            a(f"s_add_u32 s{sWL}, s{sWL}, s{t0}")
            a(f"s_add_u32 s{sXL}, s{sXL}, s{t0}")
    if LPR: a(f"s_setprio {LPR}")
    issue(True)
    stamp(a, "iss0")
    if SCP:
        a("s_getpc_b64 s[0:1]")
        a("s_and_b32 s0, s0, 0xfffff000")
        a(f"s_lshl_b32 s{t0}, s{sidx}, 1")
        a(f"s_and_b32 s{t1}, s{sw}, 1")
        a(f"s_add_u32 s{t0}, s{t0}, s{t1}")
        a(f"s_lshl_b32 s{t0}, s{t0}, 6")
        a(f"s_lshr_b32 s{t1}, s{sw}, 1")
        a(f"s_mul_i32 s{t1}, s{t1}, 12288")
        a(f"s_add_u32 s{t0}, s{t0}, s{t1}")
        a(f"s_add_u32 s0, s0, s{t0}")
        a("s_addc_u32 s1, s1, 0")
        for k in range(3): a(f"s_load_dword s3, s[0:1], {4096*k}")
    if TWO:
        issue(True)
        if TWO == 2:
            a("s_waitcnt vmcnt(10)")
            a("s_barrier")
    a(f"s_mov_b32 s{stt}, {2 if TWO else 1}")
    a(f"s_mov_b32 s{su}, 0")
    a(f"s_mov_b32 s{sFB}, 0")
    dbg_desc()
    ids2a(0)
    a(f"s_lshr_b32 s{t0}, s{srb}, 1")
    a(f"s_lshl_b32 s{t0}, s{t0}, 7")
    a(f"s_add_u32 s{sWOS}, s{t0}, s{sKVO}")
    a(f"v_lshlrev_b32 v{PTA}, 10, v0")
    ids2b(0)
    a(f"v_lshrrev_b32 v{u2}, 5, v0")
    a(f"s_and_b32 s{t1}, s{sidx}, 3")
    a(f"s_cmp_eq_u32 s{t1}, 3")
    a(f"s_cselect_b32 s{t0}, 8, 16")
    a(f"s_lshl_b32 s{t1}, s{t1}, 8")
    a(f"v_lshrrev_b32 v{u0}, 4, v0")
    a(f"v_lshlrev_b32 v{u1}, 2, v{u0}")
    a(f"v_and_b32 v{u3}, 15, v0")
    a(f"v_xor_b32 v{u1}, v{u1}, v{u3}")
    a(f"v_cmp_le_u32 vcc, s{t0}, v{u1}")
    a(f"v_mul_u32_u24 v{u0}, 896, v{u0}")
    a(f"v_lshl_add_u32 v{u0}, v{u1}, 4, v{u0}")
    a(f"v_add_u32 v{WOA}, s{t1}, v{u0}")
    a(f"v_bfrev_b32 v{u0}, 2")
    a(f"v_cndmask_b32 v{WOA}, v{WOA}, v{u0}, vcc")
    a(f"s_lshl_b32 s{t2}, s{skq}, 2")
    a(f"s_cmp_lt_u32 s{t2}, s{t0}")
    a(f"s_cselect_b32 s{XM}, 1, 0")
    a(f"s_mul_i32 s{sOUTO}, s{sb}, 896")
    a(f"s_add_u32 s{sOUTO}, s{sOUTO}, s{t1}")
    a(f"s_and_b32 s{t2}, s{skq}, 2")
    a(f"s_lshl_b32 s{t1}, s{t2}, 6")
    a(f"s_add_u32 s{sOUTO}, s{sOUTO}, s{t1}")
    a(f"s_lshl_b32 s{sRT}, s{sg4}, 3")
    a(f"s_lshr_b32 s{t0}, s{sidx}, 2")
    a(f"s_add_u32 s{sRT}, s{sRT}, s{t0}")
    a(f"s_bfe_u32 s{sPE}, s{sRT}, 0x10001")
    a(f"s_lshl_b32 s{sRT}, s{sRT}, 1")
    a(f"v_bfe_u32 v{u0}, v0, 2, 2")
    a(f"v_xor_b32 v{u1}, s{t2}, v{u0}")
    a(f"v_lshlrev_b32 v{u1}, 6, v{u1}")
    a(f"v_lshl_add_u32 v{u1}, v{u0}, 8, v{u1}")
    a(f"v_and_b32 v{u0}, 1, v0")
    a(f"v_lshl_add_u32 v{u1}, v{u0}, 5, v{u1}")
    a(f"v_bfe_u32 v{u0}, v0, 4, 1")
    a(f"v_lshl_add_u32 v{u1}, v{u0}, 4, v{u1}")
    a(f"v_bfe_u32 v{u0}, v0, 1, 1")
    a(f"v_lshl_add_u32 v{u1}, v{u0}, 3, v{u1}")
    HSTEP = [4, 28, 56]
    for t in range(3):
        a(f"v_mul_u32_u24 v{u0}, {HSTEP[t]*256}, v{u2}")
        a(f"v_add_u32 v{WA+t}, v{u1}, v{u0}")
    a(f"s_and_b32 s{t2}, s{skq}, 1")
    a(f"s_mul_i32 s{t1}, s{t2}, 14336")
    a(f"s_add_u32 s{t1}, s{t1}, {ES}")
    a(f"v_add_u32 v{OA}, s{t1}, v{L16}")
    a(f"v_and_b32 v{u0}, 31, v0")
    a(f"v_mul_u32_u24 v{u1}, 1792, v{u2}")
    a(f"v_lshl_add_u32 v{u1}, v{u0}, 4, v{u1}")
    a(f"v_add_u32 v{OA+1}, s{t1}, v{u1}")
    a(f"v_mul_u32_u24 v{u1}, 3584, v{u2}")
    a(f"v_lshl_add_u32 v{u1}, v{u0}, 3, v{u1}")
    a(f"v_add_u32 v{OA+2}, s{t1}, v{u1}")
    a(f"s_lshl_b32 s{t0}, s{skq}, 12")
    a(f"s_add_u32 s{t0}, s{t0}, {TX}")
    a(f"v_add_u32 v{TR}, s{t0}, v{L16}")
    a(f"v_and_b32 v{u1}, 7, v0")
    a(f"v_lshlrev_b32 v{u3}, 1, v{u2}")
    a(f"v_xor_b32 v{u1}, v{u1}, v{u3}")
    a(f"v_lshlrev_b32 v{u1}, 4, v{u1}")
    a(f"v_lshl_add_u32 v{u1}, v{u0}, 7, v{u1}")
    a(f"v_add_u32 v{TW}, s{t0}, v{u1}")
    a(f"v_lshrrev_b32 v{u0}, 3, v0")
    a(f"v_xor_b32 v{u1}, v{u0}, v0")
    a(f"v_and_b32 v{u1}, 7, v{u1}")
    a(f"s_add_u32 s{t0}, s{sRT}, s{t2}")
    a(f"s_lshl_b32 s{t0}, s{t0}, 5")
    a(f"v_add_u32 v{u0}, s{t0}, v{u0}")
    a(f"v_mul_u32_u24 v{u0}, 1792, v{u0}")
    a(f"v_lshl_add_u32 v{OUTA}, v{u1}, 4, v{u0}")
    a(f"s_lshl_b32 s{t0}, s{t2}, 2")
    a(f"s_add_u32 s{t0}, s{t0}, {GBC + 16}")
    a(f"v_mov_b32 v{TW+1}, s{t0}")
    a(f"s_lshr_b32 s{t1}, s{skq}, 1")
    a(f"s_add_u32 s{t0}, s{sRT}, s{t1}")
    a(f"s_lshl_b32 s{t0}, s{t0}, 4")
    a(f"s_lshl_b32 s{t1}, s{sPE}, 3")
    a(f"s_add_u32 s{t0}, s{t0}, s{t1}")
    a(f"s_and_b32 s{t1}, s{skq}, 1")
    a(f"s_lshl_b32 s{t1}, s{t1}, 1")
    a(f"s_lshl_b32 s{t1}, s{t1}, 1")
    a(f"s_add_u32 s{sRT}, s{t0}, s{t1}")
    a(f"v_and_b32 v{u0}, 3, v0")
    a(f"v_add_u32 v{u0}, s{sRT}, v{u0}")
    a(f"v_mul_u32_u24 v{u0}, {F2SP}, v{u0}")
    a(f"v_add_u32 v{F2A}, {B_F2}, v{u0}")
    getq(0)
    if STL_:
        a(f"s_add_u32 s0, s{rKV}, s{sWOS}")
        a(f"s_addc_u32 s1, s{rKV+1}, 0")
    if VIS:
        a("s_branch L_vis")
        a.lab("L_visb")
    stamp(a, "lsetup")
    if TWO == 1:
        a("s_waitcnt vmcnt(10)")
        a("s_barrier")
    a.lab("L_ld")
    issue(False)
    a(f"s_add_u32 s{stt}, s{stt}, 1")
    if STL_:
        a(f"s_cmp_lt_u32 s{stt}, {ST0}")
        a("s_cbranch_scc1 L_nost")
        for e_ in range(STL_):
            a(f"s_load_dword s3, s[0:1], {1024*e_}")
            a(f"s_load_dword s3, s[0:1], {1024*e_ + 64}")
        a(f"s_add_u32 s0, s0, {1024*STL_}")
        a("s_addc_u32 s1, s1, 0")
        a.lab("L_nost")
    if SLD:
        a(f"s_cmp_lg_u32 s{stt}, {SLD}")
        a("s_cbranch_scc1 L_nosl")
        a(f"s_lshl_b32 s{t0}, s{sg4}, 5")
        a(f"s_add_u32 s{t0}, s{t0}, 128")
        a(f"s_load_dwordx2 {S2(NONCE)}, {S2(rDBG)}, s{sDL} {SGL}")
        a(f"s_load_dwordx8 s[88:95], {S2(rDBG)}, s{t0} {SGL}")
        a.lab("L_nosl")
    a(f"s_cmp_lt_u32 s{stt}, 7")
    a("s_waitcnt vmcnt(10)")
    a("s_barrier")
    a("s_cbranch_scc1 L_ld")
    a(f"s_mul_i32 s{sWL}, s{sw}, 6144")
    for ws, st_ in ((sB6, 0), (sB4, 1), (sB5, 2)):
        one("w", 2, sWL, ws, st_ * STAGE); one("w", 5, sWL, ws, st_ * STAGE)
    if not SLD: a(f"buffer_load_dwordx2 {vr(NV,2)}, off, {S4(rDBG)}, s{sDL} sc1")
    m_ = (1 << max(1, 4 * PRET)) - 1
    def touch():
        a(f"buffer_load_dword v{T+9}, v{F1A}, {S4(rWS)}, 0 offen sc1")
        a(f"s_mov_b32 exec_lo, {m_ & 0xffffffff:#x}")
        a(f"s_mov_b32 exec_hi, {m_ >> 32:#x}")
        a(f"buffer_load_dword v{T+8}, v{PTA}, {S4(rKV)}, s{sWOS} offen {TF}")
        a("s_mov_b64 exec, -1")
    if STL_: a(f"buffer_load_dword v{T+9}, v{F1A}, {S4(rWS)}, 0 offen sc1")
    elif TEAR != 1: touch()
    NX = (2 if STL_ else 1 if TEAR == 1 else 3) - (1 if SLD else 0)
    if SLD:
        a(f"s_getreg_b32 s{t2}, hwreg(HW_REG_XCC_ID)")
        a(f"s_and_b32 s{t2}, s{t2}, 15")
        a(f"s_lshl_b32 s{t0}, s{sx}, 4")
        a(f"s_or_b32 s{t2}, s{t2}, s{t0}")
        a(f"s_or_b32 s{t2}, s{t2}, 0x80")
        a(f"s_mul_i32 s{t2}, s{t2}, 0x01010101")
        a(f"s_lshl_b32 s{t0}, s{sw}, 4")
        a(f"s_add_u32 s{t0}, s{t0}, {NRC}")
        a(f"v_mov_b32 v{T+6}, s{t0}")
        a("s_waitcnt lgkmcnt(0)")
        a(f"s_xor_b32 s{t1}, s88, s{t2}")
        for k in range(89, 96):
            a(f"s_xor_b32 s{t0}, s{k}, s{t2}")
            a(f"s_or_b32 s{t1}, s{t1}, s{t0}")
        a(f"v_mov_b32 v{NV}, s{NONCE}")
        a(f"v_mov_b32 v{NV+1}, s{NONCE+1}")
        a(f"v_mov_b32 v{NV+2}, s{t1}")
        a(f"ds_write_b96 v{T+6}, {vr(NV,3)}")
        a("s_waitcnt lgkmcnt(0)")
    a(f"s_waitcnt vmcnt({6 + NX})")
    stamp(a, "lw6")
    a("s_barrier")
    if LPR: a("s_setprio 0")
    pre2()
    if B2:
        a(f"s_waitcnt vmcnt({NX + 2})")
        a("s_barrier")
    a(f"s_waitcnt vmcnt({NX})")
    a("s_barrier")
    def touch2():
        m2 = ((1 << (4 * PRET2)) - 1) & ~m_
        a(f"s_mov_b32 exec_lo, {m2 & 0xffffffff:#x}")
        a(f"s_mov_b32 exec_hi, {m2 >> 32:#x}")
        a(f"buffer_load_dword v{T+10}, v{PTA}, {S4(rKV)}, s{sWOS} offen sc1")
        a("s_mov_b64 exec, -1")
    if PRET2 and T2POS == "b6": touch2()
    if not SLD: a(f"s_waitcnt vmcnt({NX - 1})")
    nonce("L")
    if PRET2 and T2POS == "late": touch2()
    a("s_setprio 2")
    stamp(a, "lready")
    a("s_branch L_ph2")

    a.lab("L_comp")
    a("s_setprio 3")
    a(f"s_getreg_b32 s{t2}, hwreg(HW_REG_XCC_ID)")
    a(f"s_and_b32 s{t2}, s{t2}, 15")
    a(f"s_lshl_b32 s{t0}, s{sx}, 4")
    a(f"s_or_b32 s{t2}, s{t2}, s{t0}")
    a(f"s_or_b32 s{t2}, s{t2}, 0x80")
    a(f"s_lshl_b32 s{t1}, s{sg4}, 5")
    a(f"s_add_u32 s{t1}, s{t1}, 128")
    a(f"v_mov_b32 v{NV}, s{t2}")
    if not SLD:
        a(f"v_and_b32 v{NA}, 3, v0")
        a(f"v_lshlrev_b32 v{NA}, 3, v{NA}")
        a(f"v_add_u32 v{NA}, s{t1}, v{NA}")
    a(f"s_add_u32 s{t1}, s{t1}, s{sidx}")
    a("v_mov_b32 v238, 0")
    a("v_mov_b32 v239, 0")
    a("s_waitcnt lgkmcnt(0)")
    def ftouch(pairs, wave, tag):
        a(f"s_cmp_lg_u32 s{sw}, {wave}")
        a(f"s_cbranch_scc1 L_ft{tag}")
        a(f"s_add_u32 s{t0}, s{sg4}, 1")
        a(f"s_and_b32 s{t0}, s{t0}, 2")
        a(f"s_cbranch_scc1 L_ft{tag}")
        a(f"s_and_b32 s{t0}, s{sg4}, 1")
        a(f"s_lshl_b32 s{t0}, s{t0}, 5")
        a(f"s_add_u32 s{t0}, s{t0}, s{sidx}")
        a(f"v_and_b32 v{T+6}, 31, v0")
        a(f"v_lshrrev_b32 v{T+7}, 5, v0")
        a(f"v_mul_u32_u24 v{T+8}, 896, v{T+6}")
        a(f"v_lshl_add_u32 v{T+8}, v{T+7}, 7, v{T+8}")
        a(f"v_min_u32 v{T+6}, 20, v{T+6}")
        a(f"v_mul_u32_u24 v{T+7}, 172032, v{T+7}")
        a(f"v_lshl_add_u32 v{T+9}, v{T+6}, 7, v{T+7}")
        a(f"s_mul_i32 s{t3}, s{t0}, {32*896}")
        a(f"s_mul_i32 s{t0}, s{t0}, 2688")
        for pr in pairs:
            c_ = 2 * int(pr) - 1
            a(f"s_add_u32 s{sROT}, s{t0}, {c_*172032}")
            a(f"buffer_load_dword v{T+10}, v{T+9}, {S4(rW)}, s{sROT} offen")
            a(f"buffer_load_dword v{T+11}, v{T+8}, {S4(rX)}, s{t3} offen offset:{c_*128}")
        a.lab(f"L_ft{tag}")
    if FT:
        a(f"s_cmp_eq_u32 s{sb}, 0")
        a(f"s_cselect_b32 s{rX}, s4, s10")
        a(f"s_cselect_b32 s{rX+1}, s5, s11")
        a(f"s_cselect_b32 s{rW}, s6, s12")
        a(f"s_cselect_b32 s{rW+1}, s7, s13")
        a(f"s_mov_b32 s{rX+2}, 1835008")
        a(f"s_mov_b32 s{rX+3}, 0x00020000")
        a(f"s_mov_b32 s{rW+2}, 1204224")
        a(f"s_mov_b32 s{rW+3}, 0x00020000")
        ftouch(FT.split("/")[0], 5, "a")
    dbg_desc()
    if not SLD:
        a(f"s_mul_i32 s{XM}, s{t2}, 0x01010101")
        a(f"s_mov_b32 s{XM+1}, s{XM}")
    a("s_mov_b64 exec, 1")
    if not SLD: a(f"v_mov_b32 v{NA}, s{sDL}")
    a(f"s_cmp_lg_u32 s{sw}, 4")
    a("s_cbranch_scc1 L_noreg")
    a(f"buffer_store_byte v{NV}, off, {S4(rDBG)}, s{t1}")
    if UBY: a(f"buffer_load_ubyte v{T+12}, off, {S4(rDBG)}, s{t1} sc1")
    a(f"s_cmp_lg_u32 s{sidx}, 0")
    a("s_cbranch_scc1 L_noreg")
    a(f"s_or_b32 s{t0}, s{RT}, 1")
    a(f"s_or_b32 s{t2}, s{RT+1}, 1")
    a(f"v_mov_b32 v236, s{t0}")
    a(f"v_mov_b32 v237, s{t2}")
    a(f"buffer_atomic_cmpswap_x2 v[236:239], off, {S4(rDBG)}, s{sDL} sc1")
    a.lab("L_noreg")
    a("s_mov_b64 exec, -1")
    stamp_init()
    a(f"s_and_b32 s{stt}, s{sw}, 1")
    a(f"s_bfe_u32 s{scg}, s{sw}, 0x10001")
    a(f"v_and_b32 v{u0}, 31, v0")
    a(f"v_bfe_u32 v{u1}, v0, 1, 3")
    a(f"v_lshrrev_b32 v{u2}, 5, v0")
    a(f"v_xor_b32 v{u1}, v{u1}, v{u2}")
    a(f"v_lshlrev_b32 v{u1}, 4, v{u1}")
    a(f"v_lshl_add_u32 v{u1}, v{u0}, 7, v{u1}")
    a(f"s_lshl_b32 s{t0}, s{stt}, 13")
    a(f"s_add_u32 s{t0}, s{t0}, {XOFF}")
    for ks in range(4):
        a(f"v_xor_b32 v{XA+ks}, {32*ks}, v{u1}")
        a(f"v_add_u32 v{XA+ks}, s{t0}, v{XA+ks}")
    a(f"v_bfe_u32 v{u0}, v0, 4, 1")
    a(f"v_and_b32 v{u1}, 3, v0")
    a(f"v_lshlrev_b32 v{u1}, 3, v{u1}")
    a(f"v_lshl_add_u32 v{u0}, v{u0}, 5, v{u1}")
    a(f"s_mul_i32 s{t0}, s{scg}, 112")
    a(f"v_add_u32 v{WA1}, s{t0}, v{u0}")
    a(f"v_add_u32 v{WA1+1}, 56, v{WA1}")
    a(f"s_mul_i32 s{t0}, s{scg}, 56")
    a(f"v_add_u32 v{WA1+2}, s{t0}, v{u0}")
    a("s_mov_b32 exec_lo, 0x88880000")
    a("s_mov_b32 exec_hi, 0x88880000")
    a(f"v_or_b32 v{WA1}, 192, v{WA1}")
    a(f"v_or_b32 v{WA1+1}, 192, v{WA1+1}")
    a(f"v_or_b32 v{WA1+2}, 64, v{WA1+2}")
    a("s_mov_b64 exec, -1")
    a(f"v_bfe_u32 v{u1}, v0, 2, 2")
    a(f"v_mul_u32_u24 v{u2}, 3072, v{u2}")
    a(f"v_lshl_add_u32 v{u3}, v{u1}, 8, v{u2}")
    a(f"v_lshlrev_b32 v{u4}, 6, v{u1}")
    for c in range(2):
        a(f"v_xor_b32 v{WA1+c}, v{WA1+c}, v{u4}")
        a(f"v_add_u32 v{WA1+c}, v{WA1+c}, v{u3}")
    a(f"v_lshl_add_u32 v{u3}, v{u1}, 7, v{u2}")
    a(f"v_lshlrev_b32 v{u4}, 5, v{u1}")
    a(f"v_and_b32 v{u4}, 64, v{u4}")
    a(f"v_xor_b32 v{WA1+2}, v{WA1+2}, v{u4}")
    a(f"v_add_u32 v{WA1+2}, v{WA1+2}, v{u3}")
    Z = FR + 60
    for r in range(20): a(f"v_mov_b32 v{Z+r}, 0")
    a(f"v_mov_b32 v{u0}, {GBC}")
    a(f"ds_write_b128 v{u0}, {vr(Z+16,4)}")
    a(f"ds_write_b128 v{u0}, {vr(Z+16,4)} offset:16")
    for t_ in range(6): a(f"v_mfma_f32_32x32x16_bf16 {vr(ACC+16*t_,16)}, {vr(Z+16,4)}, {vr(Z+16,4)}, 0")
    a("s_mov_b32 exec_hi, 0")
    a(f"v_mov_b32 v{Z}, 0x3f80")
    a(f"v_mov_b32 v{Z+4}, 0x3f80")
    a("s_mov_b32 exec_lo, 0x10000000")
    a(f"v_mov_b32 v{Z+8}, 0x3f80")
    a(f"v_mov_b32 v{Z+12}, 0x3f80")
    a("s_mov_b64 exec, -1")
    def capture(f):
        keep = a.l; a.l = []
        f()
        got = [x.strip() for x in a.l]; a.l = keep
        return got
    lateA = capture(lambda: ids2a(1, False)); lateB = capture(lambda: ids2b(1))
    ws_desc()
    a(f"v_lshlrev_b32 v{L16}, 4, v0")
    a(f"v_and_b32 v{u0}, 0x33, v0")
    a(f"v_bfe_u32 v{u1}, v0, 2, 1")
    a(f"v_lshl_add_u32 v{u0}, v{u1}, 3, v{u0}")
    a(f"v_bfe_u32 v{u1}, v0, 3, 1")
    a(f"v_lshl_add_u32 v{u0}, v{u1}, 2, v{u0}")
    a(f"v_lshlrev_b32 v{TAU}, 4, v{u0}")
    sE0, sSC, sDLT, sCNT = sXS, sWS_, sWL, sXL
    a(f"s_lshl_b32 s{t0}, s{scg}, 2")
    a(f"s_lshr_b32 s{t1}, s{srb}, 2")
    a(f"s_add_u32 s{t0}, s{t0}, s{t1}")
    a(f"s_mul_i32 s{sF1O}, s{t0}, {F1SP}")
    a(f"s_lshl_b32 s{t0}, s{shalf}, 2")
    a(f"s_and_b32 s{t1}, s{srb}, 3")
    a(f"s_add_u32 s{t0}, s{t0}, s{t1}")
    a(f"s_lshl_b32 s{t0}, s{t0}, 1")
    a(f"s_add_u32 s{t0}, s{t0}, s{stt}")
    a(f"s_lshl_b32 s{t0}, s{t0}, 3")
    a(f"s_add_u32 s{sF1O}, s{sF1O}, s{t0}")
    a(f"s_add_u32 s{sF1O}, s{sF1O}, {X_F1}")
    if TEAR == 2: a(f"buffer_load_dword v{T+9}, off, {S4(rWS)}, s{sF1O} sc1")
    a(f"s_lshl_b32 s{t0}, s{srb}, 1")
    a(f"s_add_u32 s{t0}, s{t0}, s{stt}")
    a(f"s_lshl_b32 s{t1}, s{scg}, 6")
    a(f"s_add_u32 s{t0}, s{t0}, s{t1}")
    a(f"s_lshl_b32 s{sE0}, s{t0}, 13")
    SE = [sE0, rX, rX + 1, rX + 2]
    for t_, d_ in ((1, 4096), (2, 64 * 4096), (3, 65 * 4096)): a(f"s_add_u32 s{SE[t_]}, s{sE0}, {d_}")
    a(f"s_sub_u32 s{t0}, s{sw}, 4")
    a(f"s_lshl_b32 s{t0}, s{t0}, 12")
    a(f"s_add_u32 s{t0}, s{t0}, {QX}")
    a(f"v_add_u32 v{QW}, s{t0}, v{L16}")
    if SLD:
        a(f"s_lshl_b32 s{t0}, s{sw}, 4")
        a(f"s_add_u32 s{t0}, s{t0}, {NRC - 64}")
        a(f"v_mov_b32 v{PTA}, s{t0}")
    a(f"s_mov_b32 s{sSC}, {CSCALE:#x}")
    a(f"s_mov_b32 s{sCNT}, 0")
    a(f"s_mov_b32 s{sDLT}, 0")
    if FT and FT.split("/")[1]: ftouch(FT.split("/")[1], 6, "b")
    if CPF:
        a(f"s_cmp_lg_u32 s{sw}, 5")
        a("s_cbranch_scc1 L_nocpf")
        a(f"s_sub_u32 s{t0}, s{sidx}, 1")
        a(f"s_cmp_ge_u32 s{t0}, 3")
        a("s_cbranch_scc1 L_nocpf")
        a(f"s_getpc_b64 {S2(NONCE)}")
        a.lab("L_pc")
        a(f"s_lshl_b32 s{t0}, s{t0}, 13")
        a(f"v_lshlrev_b32 v{u0}, 7, v0")
        a(f"v_add_u32 v{u0}, s{t0}, v{u0}")
        a(f"v_min_u32 v{u0}, L_fallback-L_pc, v{u0}")
        a(f"global_load_dword v{T+10}, v{u0}, {S2(NONCE)}")
        a.lab("L_nocpf")
    a(f"s_cmp_lg_u32 s{shalf}, 0")
    a("s_cbranch_scc1 P1_v1")
    def reads(ks):
        b = FR + 20 * ks
        out = [f"ds_read_b128 {vr(b+4*e,4)}, v{XA+ks} offset:{4096*e}" for e in range(2)]
        for c in range(3):
            for h in range(2):
                off = 6144 * ks + (1024 * h if c < 2 else 2048 + 512 * h)
                out.append(f"ds_read_b64_tr_b16 {vr(b+8+4*c+2*h,2)}, v{WA1+c} offset:{off}")
        return [out[0], out[2], out[3], out[1]] + out[4:]
    def mfma1(ks, e, c, ori):
        b = FR + 20 * ks
        x = vr(b + 4 * e, 4); w = vr(b + 8 + 4 * c, 4)
        p, q = (w, x) if ori[c] == 'n' else (x, w)
        d = vr(ACC + 16 * (2 * c + e), 16)
        return f"v_mfma_f32_32x32x16_bf16 {d}, {p}, {q}, {d}"
    tiles = [(0, 0), (1, 0), (0, 1), (1, 1), (0, 2), (1, 2)]
    pend = []; cnt = [0]; ctx = [""]
    def epi(t_):
        e, c = tiles[t_]
        d = ACC + 16 * (2 * c + e)
        P = d
        out = []
        if c == 2: out += [[f"v_mul_f32 v{d+r}, s{sSC}, v{d+r}"] for r in range(16)]
        out += [[f"v_cvt_pk_bf16_f32 v{P+i}, v{d+2*i}, v{d+2*i+1}"] for i in range(8)]
        if c == 2:
            out += [[f"ds_write_b128 v{QW}, {vr(P,4)} offset:{2048*e}"], [f"ds_write_b128 v{QW}, {vr(P+4,4)} offset:{2048*e+1024}"]]
        else:
            out.insert(4, ("st", t_, 0, P)); out.append(("st", t_, 1, P + 4))
        return out
    def emit(x):
        a(x); cnt[0] += 1
    def drain(nmax):
        n_ = 0
        while pend and n_ < nmax and pend[0][0] <= cnt[0]:
            g_ = pend.pop(0)[1]
            if g_[0] == "st": stq.append(g_)
            else:
                for x in g_: emit(x)
                n_ += len(g_)
    stq = []; nm = [0, -99]
    def store():
        if not stq or nm[0] - nm[1] < SP: return 0
        _, t_, f, P = stq.pop(0)
        tag = f"{ctx[0]}{t_}{f}"
        emit(f"s_cbranch_vccz L_wt{tag}")
        emit(f"buffer_store_dwordx4 {vr(P,4)}, v{TAU}, {S4(rWS)}, s{SE[t_]} offen offset:{1024*f} {KVS}")
        a.lab(f"L_st{tag}")
        if f: stamp(a, f"st{t_}")
        tails.append((tag, P, SE[t_], 1024 * f)); nm[1] = nm[0]
        return 2
    def fill(nmax):
        if pend and pend[0][0] > cnt[0]:
            gap = min(nmax - 1, pend[0][0] - cnt[0])
            a(f"s_nop {gap-1}"); cnt[0] += gap
            nmax -= gap
        drain(nmax)
    for v, ori in enumerate(["nnn", "vvn"]):
        a.lab(f"P1_v{v}")
        if v == 1: a(f"v_add_u32 v{TAU}, 2048, v{L16}")
        a("s_waitcnt lgkmcnt(0)")
        stamp(a, "setup")
        mm = [(e, c) for c in range(3) for e in range(2)]
        def cstamps():
            if STAMP or DIAG:
                if len(DIAG) == 2 and DIAG[0] == "c" and DIAG != "c0":
                    a("s_memrealtime s[82:83]")
                    a(f"s_cmp_eq_u32 s{sCNT}, {int(DIAG[1])}")
                    a("s_waitcnt lgkmcnt(0)")
                    a("s_cselect_b32 s80, s82, s80")
                for nm in (STL if STAMP else []):
                    if len(nm) == 2 and nm[0] == "c" and nm != "c0":
                        a(f"s_cmp_eq_u32 s{sCNT}, {int(nm[1])}")
                        a(f"s_cbranch_scc1 L_ns{v}{nm}")
                        a.lab(f"L_nb{v}{nm}")
                        stails.append((f"{v}{nm}", nm))
        a("s_barrier")
        stamp(a, "c0")
        for x in reads(0): a(x)
        if FT and len(FT.split("/")) > 2: ftouch(FT.split("/")[2], 7, f"c{v}")
        a.raw(".p2align 6")
        a.lab(f"P1_loop{v}")
        for ks, rk in ((3, 1), (0, 2), (1, 3)):
            rd = reads(rk)
            if ks != 3: a("s_waitcnt lgkmcnt(8)")
            for j, (e, c) in enumerate(mm):
                a(mfma1(ks, e, c, ori))
                for x in rd[2*j:2*j+2]: a(x)
                if ks == 3 and j == 4:
                    a(f"s_add_u32 s{sCNT}, s{sCNT}, 1")
                    a(f"s_mov_b32 s{sDLT}, {STAGE}")
                if ks == 0 and j == 4:
                    a(f"s_cmp_eq_u32 s{sCNT}, 3")
                    a(f"s_cselect_b32 s{sDLT}, {(-2*STAGE) & 0xffffffff:#x}, s{sDLT}")
                if ks == 1 and j == 4:
                    for i in range(4): a(f"v_add_u32 v{XA+i}, s{sDLT}, v{XA+i}")
                if ks == 1 and j == 5:
                    for i in range(4, 7): a(f"v_add_u32 v{XA+i}, s{sDLT}, v{XA+i}")
        a("s_waitcnt lgkmcnt(8)")
        rd = reads(0)
        for j, (e, c) in enumerate(mm):
            a(mfma1(2, e, c, ori))
            if j == BPOS - 1: a("s_waitcnt lgkmcnt(0)")
            if j == BPOS:
                a("s_barrier")
                cstamps()
            if j > BPOS:
                n_ = -(-8 // (5 - BPOS)) if j < 5 else 8
                for x in rd[:n_]: a(x)
                rd = rd[n_:]
        if BPOS == 5:
            for x in rd: a(x)
        a(f"s_cmp_lt_u32 s{sCNT}, 4")
        a(f"s_cbranch_scc1 P1_loop{v}")
        m4 = mm[:4]
        for ch in (4, 5):
            dl = STAGE if ch == 4 else (-2 * STAGE) & 0xffffffff
            for ks, rk in ((3, 1), (0, 2), (1, 3)):
                rd = reads(rk)[:6]
                if ks != 3: a("s_waitcnt lgkmcnt(6)")
                for j, (e, c) in enumerate(mm if (ch == 4 and ks == 3) else m4):
                    a(mfma1(ks, e, c, ori))
                    for x in rd[2*j:2*j+2]: a(x)
                    if ch == 5 and ks == 3 and j == 0 and not SLD:
                        a(f"buffer_load_dwordx2 {vr(NV,2)}, v{NA}, {S4(rDBG)}, 0 offen sc1")
                    if ks == 0 and j == 3: a(f"s_mov_b32 s{sDLT}, {dl:#x}")
                    if ks == 1 and j == 3:
                        for i in range(4): a(f"v_add_u32 v{XA+i}, s{sDLT}, v{XA+i}")
            a("s_waitcnt lgkmcnt(6)")
            rd = reads(0)[:6]
            a(mfma1(2, *m4[0], ori))
            for i in range(4, 7): a(f"v_add_u32 v{XA+i}, s{sDLT}, v{XA+i}")
            a("s_waitcnt lgkmcnt(0)")
            a(mfma1(2, *m4[1], ori))
            a("s_barrier")
            stamp(a, f"d{ch+1}")
            a(mfma1(2, *m4[2], ori))
            for x in rd[:3]: a(x)
            a(mfma1(2, *m4[3], ori))
            for x in rd[3:]: a(x)
        rd = reads(1)[:6] + reads(2)[:6]
        for j, (e, c) in enumerate(m4):
            a(mfma1(3, e, c, ori))
            for x in rd[3*j:3*j+3]: a(x)
        for x in reads(3)[:4]: a(x)
        ctx[0] = str(v); pend.clear(); cnt[0] = 0; stq.clear(); nm[:] = [0, -99]
        seq = [(0, 0), (0, 1), (1, 0), (1, 1), (2, 0), (2, 1), (3, 0), (3, 1)] + [(k, t_) for t_ in range(2, 4) for k in range(4)]
        for i, (k, t_) in enumerate(seq):
            if i == 0: emit("s_waitcnt lgkmcnt(14)")
            if i == 2: emit("s_waitcnt lgkmcnt(12)")
            if i == 4: emit("s_waitcnt lgkmcnt(6)")
            if i == 6:
                emit("s_waitcnt lgkmcnt(0)" if SLD else "s_waitcnt vmcnt(0) lgkmcnt(0)")
                stamp(a, "last")
            emit(mfma1(k, *tiles[t_], ori))
            first = cnt[0]; nm[0] += 1
            store()
            if i == 0:
                for x in reads(3)[4:6]: emit(x)
            if i == 4 and SLD: emit(f"ds_read_b96 {vr(NV,3)}, v{PTA}")
            if i == 6:
                if SLD:
                    emit(f"v_readfirstlane_b32 s{t0}, v{NV+2}")
                    emit("s_nop 0")
                    emit(f"s_cmp_eq_u32 s{t0}, 0")
                else:
                    emit(f"v_cmp_eq_u64 vcc, {S2(XM)}, {vr(NV,2)}")
                    emit(f"s_and_b32 s{t0}, vcc_lo, 0xf0")
                    emit(f"s_cmp_eq_u32 s{t0}, 0xf0")
                emit(f"s_cselect_b32 s{sLOC}, {1 if LOCAL else 0}, 0")
                if MIX:
                    emit(f"s_and_b32 s{t0}, s{srb}, 3")
                    emit(f"s_cmp_lt_u32 s{t0}, {MIX}")
                    emit(f"s_cselect_b32 s{t0}, s{sLOC}, 0")
                    emit(f"s_cmp_lg_u32 s{t0}, 0")
                emit(f"s_cselect_b64 vcc, {-1 if LOCAL else 0}, 0")
            if k == 3: pend.extend((first + 12, g_) for g_ in epi(t_))
            if i == QB:
                emit("s_barrier")
                stamp(a, "bar7")
                for ks in range(2):
                    for x in reads(ks)[6:]: emit(x)
            elif i == QB + 1:
                for ks in range(2, 4):
                    for x in reads(ks)[6:]: emit(x)
            elif i != 6 and i != 15: fill(6)
        snap = (list(pend), cnt[0], list(stq), list(nm))
        if v == 0 or VIS: a("s_branch P1_done")
    if VIS:
        a.raw(".p2align 12" if VIS == 1 else ".p2align 6")
        a.lab("L_vis")
        a("s_branch L_visb")
    a.lab("P1_done")
    ctx[0] = "c"; pend[:] = snap[0]; cnt[0] = snap[1]; stq[:] = snap[2]; nm[:] = snap[3]
    if QB > 15:
        while pend: fill(99 if pend[0][0] <= cnt[0] else 13)
        emit("s_barrier")
        for ks in range(4):
            for x in reads(ks)[6:]: emit(x)
    def qreads(ks, base):
        b = FR + 20 * ks
        return [f"ds_read_b128 {vr(b,4)}, v{XA+ks} offset:{base}",
                f"ds_read_b64_tr_b16 {vr(b+16,2)}, v{WA1+2} offset:{base + 6144*ks + 2048}",
                f"ds_read_b64_tr_b16 {vr(b+18,2)}, v{WA1+2} offset:{base + 6144*ks + 2560}",
                f"ds_read_b128 {vr(b+4,4)}, v{XA+ks} offset:{base + 4096}"]
    def flag1():
        assert not any(g_[1][0] == "st" for g_ in pend) and not stq
        stamp(a, "prefl")
        nonce("C")
        a("s_mov_b64 exec, 1")
        a(f"s_cmp_eq_u32 s{sLOC}, 0")
        a("s_waitcnt vmcnt(0)")
        a("s_cbranch_scc1 L_f1wt")
        a(f"buffer_store_dwordx2 {vr(NV,2)}, off, {S4(rWS)}, s{sF1O}")
        a.lab("L_f1st")
        a("s_mov_b64 exec, -1")
        stamp(a, "ack1")
        cnt[0] += 10
    def late(nmax):
        q_ = lateB if (not lateA or (nq <= FPOS < 12)) and False else (lateA if lateA else lateB)
        if lateA and len(lateA) == nA and nq <= FPOS < 12: return
        for _ in range(min(nmax, len(q_))): emit(q_.pop(0))
    nA = len(lateA)
    nq = 0
    for rnd in range(3):
        order_ = [(ks, e) for ks in range(4) for e in range(2)] if rnd < 2 else [(0, 0), (0, 1), (1, 0), (2, 0), (3, 0), (1, 1), (2, 1), (3, 1)]
        for j, (ks, e) in enumerate(order_):
            if rnd == 0 and e == 0: emit(f"s_waitcnt lgkmcnt({6 + 2*ks})")
            if rnd == 1 and e == 0: emit("s_waitcnt lgkmcnt(12)")
            if rnd == 2 and e == 0: emit(f"s_waitcnt lgkmcnt({12 - 4*ks})")
            emit(mfma1(ks, e, 2, "nnn"))
            first = cnt[0]; nm[0] += 1
            store()
            nq += 1
            if B2 and rnd == 1 and j == 0: emit("s_barrier")
            if rnd < 2 and e == 1:
                if rnd == 1:
                    emit(f"v_add_u32 v{XA+ks}, {STAGE}, v{XA+ks}")
                    if ks == 0: emit(f"v_add_u32 v{WA1+2}, {STAGE}, v{WA1+2}")
                for x in qreads(ks, STAGE): emit(x)
                drain(2)
                late(2)
            elif nq != FPOS:
                if pend: fill(6)
                else: late(6)
            if rnd == 2 and ks == 3: pend.extend((first + 12, g_) for g_ in epi(4 + e))
            if nq == FPOS:
                if len(lateA) != nA:
                    while lateA: emit(lateA.pop(0))
                flag1()
    a(f"v_mov_b32 v{CA}, {GBC + 4}")
    a(f"v_mov_b32 v{ONE}, 1")
    cnt[0] += 2
    nm[0] += 99; store(); assert not stq
    if FPOS > 24:
        nq0 = len(pend) - 26 if FPOS == 25 else len(pend)
        while len(pend) > (26 if FPOS == 25 else 0): fill(1 if pend[0][0] <= cnt[0] else 13)
        if FPOS == 25:
            while lateA: emit(lateA.pop(0))
            flag1()
    while pend: fill(99 if pend[0][0] <= cnt[0] else 13)
    arrive(a, 4)
    stamp(a, "p1end")
    if FPOS == 26:
        while lateA: emit(lateA.pop(0))
        flag1()
    a("s_setprio 1")
    while lateA: a(lateA.pop(0))
    while lateB: a(lateB.pop(0))
    pre2()
    getq(1)
    a.lab("L_ph2")
    a.vreset()
    if PIPE:
        a("s_mov_b64 exec, 0xffff")
        poll_pipe(a, "L_f1", F1A, rWS, "sc1", [T + 10, T + 14])
        a("s_mov_b64 exec, -1")
        a.vm.append("poll")
    else: poll(a, "L_f1", F1A, rWS, "sc1", 16, SL1)
    stamp(a, "poll1")
    def ldK(kt, f): a.vmem(f"global_load_dwordx4 {vr(KB[kt%4]+4*f,4)}, v{L16}, {S2(KP[kt//2])} offset:{4096*(kt%2)-4096+1024*f} {KVL}", ("K", kt))
    def ldV(kt, f): a.vmem(f"global_load_dwordx4 {vr(VB[kt%4]+4*f,4)}, v{L16}, {S2(KP[kt//2])} offset:{4096*(kt%2)-2048+1024*f} {KVL}", ("V", kt))
    order = [(0, 3), (1, 3), (0, 0), (0, 1), (0, 2), (1, 0), (1, 1), (1, 2)]
    for k in range(2, 14):
        order += [(k, 0), (k, 1), (k, 2)] + ([(k, 3)] if k < 16 - NOWN else [])
    order += [(14, 0), (15, 0), (14, 1), (15, 1), (14, 2), (15, 2)] + [(k, 3) for k in range(16 - NOWN, 16)]
    assert sorted(order) == [(k, i) for k in range(16) for i in range(4)]
    NP = 64
    def qk(p):
        kt, i = order[p]
        s = SB[p % 3]; k = KB[kt % 4]
        return [f"v_mfma_f32_32x32x16_bf16 {vr(s,16)}, {vr(k,4)}, {vr(Q[i],4)}, 0",
                f"v_mfma_f32_32x32x16_bf16 {vr(s,16)}, {vr(k+4,4)}, {vr(Q[i]+4,4)}, {vr(s,16)}"]
    def pv(p):
        kt, i = order[p]
        s = SB[p % 3]; v = VB[kt % 4]
        return [f"v_smfmac_f32_32x32x32_bf16 {vr(O[i],16)}, {vr(v,4)}, {vr(s,8)}, v{IDX}",
                f"v_smfmac_f32_32x32x32_bf16 {vr(O[i],16)}, {vr(v+4,4)}, {vr(s+8,8)}, v{IDX}"]
    ldK(0, 0); ldK(0, 1)
    if not K1L: ldK(1, 0); ldK(1, 1)
    getq2()
    a.vwait(("K", 0))
    a("s_waitcnt lgkmcnt(6)")
    stamp(a, "k0")
    for x in qk(0): a(x)
    if K1L:
        ldK(1, 0); ldK(1, 1); ldV(0, 0); ldV(0, 1)
    else:
        ldV(0, 0); ldV(0, 1); ldV(1, 0); ldV(1, 1)
    a("s_mov_b64 exec, 1")
    a("s_waitcnt lgkmcnt(0)")
    a(f"ds_add_u32 v{T+5}, v{ONE}")
    a("s_mov_b64 exec, -1")
    a("s_nop 3")
    s = SB[0]
    a(f"v_max3_f32 v{T}, v{s}, v{s+1}, v{s+2}")
    a(f"v_max3_f32 v{T+1}, v{s+3}, v{s+4}, v{s+5}")
    for i in range(6, 14, 4):
        a(f"v_max3_f32 v{T}, v{T}, v{s+i}, v{s+i+1}")
        a(f"v_max3_f32 v{T+1}, v{T+1}, v{s+i+2}, v{s+i+3}")
    a(f"v_max3_f32 v{T}, v{T}, v{s+14}, v{s+15}")
    a(f"v_max_f32 v{T}, v{T}, v{T+1}")
    a(f"v_mov_b32 v{T+1}, v{T}")
    a("s_nop 1")
    a(f"v_permlane32_swap_b32 v{T}, v{T+1}")
    a(f"v_max_f32 v{T}, v{T}, v{T+1}")
    if FORCEFB: a(f"v_add_f32 v{T}, 0x43480000, v{T}")
    a(f"v_xor_b32 v{T}, 0x80000000, v{T}")
    a("s_mov_b32 exec_lo, 0")
    a(f"v_lshrrev_b32 v{Q[3]+6}, 16, v{T}")
    a("s_mov_b32 exec_lo, -1")
    a(f"ds_write_b32 v{MW}, v{Q[3]+6}")
    arrive(a)
    for x in qk(0): a(x)
    if K1L: ldV(1, 0); ldV(1, 1)
    a("s_nop 9" if K1L else "s_nop 11")
    stamp(a, "loop0")
    lastK = {k: max(p for p in range(NP) if order[p][0] == k) - 1 for k in range(16)}
    lastV = {k: max(p for p in range(NP) if order[p][0] == k) + 1 for k in range(16)}
    lq = []
    for k in range(2, 16):
        fk = lastK[k - 4] + 1 if k >= 4 else LQ0
        fv = lastV[k - 4] + 1 if k >= 4 else LQ0
        lq += [(lambda k=k: ldK(k, 0), fk), (lambda k=k: ldK(k, 1), fk), (lambda k=k: ldV(k, 0), fv), (lambda k=k: ldV(k, 1), fv)]
    wq = []
    for i in range(3):
        lp = max(p for p in range(NP) if order[p][1] == i) + 1
        for g in range(4):
            wq.append((lambda i=i, g=g: a(f"ds_write_b128 v{PW+i}, {vr(O[i]+4*g,4)} offset:{1024*g}"), 4 * (lp + 1) + 2))
    rq = [lambda i=i: a(f"ds_read_b128 {vr(O[i//4]+4*(i%4),4)}, v{PR} offset:{1024*i}") for i in range(12)]
    state = {"arr": None, "rd": False}
    def mlist(p):
        mq = qk(p + 1) if p + 1 < NP else [None, None]
        mp = pv(p - 1) if p >= 1 else [None, None]
        ms = [("q", x) for x in mq] + [("p", x) for x in mp]
        if p == 0: return ms[4-P0S:] + ms[:4-P0S]
        return ms[2:] + ms[:2] if p == 1 else ms
    def need(p, kind):
        if kind == "q":
            k1 = order[p + 1][0]
            a.vwait(("V", k1) if (k1 >= 2 and sum(1 for t in a.vm if t == ("V", k1)) == 2) else ("K", k1))
        else:
            a.vwait(("V", order[p - 1][0]))
    for p in range(NP):
        s = SB[p % 3]
        stamp(a, f"ph{p}")
        ms = mlist(p)
        if p == 1:
            lcheck(a, "L_m", 4)
            stamp(a, "bq1")
            for i in range(3): a(f"ds_read_b32 v{Q[i]+6}, v{MR+i}")
        if p == 2: a("s_nop 6")
        for g in range(4):
            kind, m = ms[g]
            if m:
                need(p, kind)
                if p == 1 and g == 3: a("s_waitcnt lgkmcnt(0)")
                a(m)
                if p >= 3:
                    np_, ng = (p, g + 1) if g < 3 else (p + 1, 0)
                    if np_ < NP:
                        k2, m2_ = mlist(np_)[ng]
                        if m2_: need(np_, k2)
            slot = 4 * p + g
            if slot == 3: lpre(a)
            if g == 2 and p in LOW:
                a(f"s_cmp_eq_u32 s{sg}, 0")
                a(f"s_cbranch_scc1 L_low{p}")
                a.lab(f"L_lowb{p}")
            if p == PGT and g == 0:
                a.vmem(f"buffer_load_dword v{T+8}, off, {S4(rWO)}, 0", "pg")
                a.vmem(f"buffer_load_dword v{T+9}, off, {S4(rBR)}, s{sF2O} sc1", "pg")
            if p == PGT and g == 1:
                a.vmem(f"buffer_load_dword v{T+10}, off, {S4(rOUT)}, s{sLS}", "pg")
                a(f"s_lshl_b32 s{t0}, s{sLS}, 1")
                a.vmem(f"buffer_load_dword v{T+11}, off, {S4(rOUT)}, s{t0}", "pg")
            if WB[:1] == "p" and p == int(WB[1:]) and g == 3: wbl2(a, "p", 7)
            if WB[:1] == "q" and p == int(WB[1:]) and g == 3: wbl2(a, "p", 3)
            if slot == 26: lpre(a, C0A)
            if slot == 30: lcheck(a, "L_c0", 4, C0A)
            if p == WOT and g == 2: a.vmem(f"buffer_load_dword v{T+8}, v{TAU}, {S4(rWO)}, 0 offen", "wot")
            if lq and lq[0][1] <= p and (g == LG or (g == LG + 1 and (p < 12 or p >= 40))): lq.pop(0)[0]()
            elif wq and wq[0][1] <= slot:
                wq.pop(0)[0]()
                if not wq:
                    arrive(a); state["arr"] = slot
            elif state["arr"] is not None and slot == state["arr"] + 2: lpre(a)
            elif state["arr"] is not None and not state["rd"] and slot >= state["arr"] + 4:
                lcheck(a, "L_p", 8)
                stamp(a, "b1")
                state["rd"] = True
                for _ in range(4): rq.pop(0)()
            elif state["rd"] and rq:
                for _ in range(4): rq.pop(0)()
            for jj in range(4): a(f"v_exp_f32 v{s+4*g+jj}, v{s+4*g+jj}")
    assert not lq and not wq and state["rd"]
    while rq: rq.pop(0)()
    a("s_nop 1")
    for x in pv(63): a(x)
    stamp(a, "loop1")
    OO = O[3]
    a("s_waitcnt lgkmcnt(0)")
    if ARR3 == "early": arrive(a)
    for r in range(16): a(f"v_add_f32 v{O[0]+r}, v{O[0]+r}, v{O[1]+r}")
    for r in range(16): a(f"v_add_f32 v{O[0]+r}, v{O[0]+r}, v{O[2]+r}")
    a(f"v_add_f32 v{OO+12}, v{OO+12}, v{O[0]+12}")
    a(f"v_mov_b32 v{T}, v{OO+12}")
    a(f"v_mov_b32 v{T+1}, v{OO+12}")
    for r in range(0, 4): a(f"v_add_f32 v{OO+r}, v{OO+r}, v{O[0]+r}")
    a(f"v_permlane32_swap_b32 v{T}, v{T+1}")
    for r in range(4, 16):
        if r != 12: a(f"v_add_f32 v{OO+r}, v{OO+r}, v{O[0]+r}")
    a(f"s_mov_b32 s{sFB}, 0")
    a.lab("L_norm")
    a(f"v_rcp_f32 v{T}, v{T+1}")
    if EARLYP == 1: a(f"buffer_load_dwordx2 {vr(T+14,2)}, v{LF}, {S4(rBR)}, 0 offen {PF2}")
    else: a("s_nop 0")
    P = T + 4
    for r in range(8): a(f"v_mul_f32 v{OO+r}, v{OO+r}, v{T}")
    for i in range(4): a(f"v_cvt_pk_bf16_f32 v{P+i}, v{OO+2*i}, v{OO+2*i+1}")
    a(f"buffer_store_dwordx4 {vr(P,4)}, v{L16}, {S4(rBR)}, s{sOO} offen sc1")
    for r in range(8, 16): a(f"v_mul_f32 v{OO+r}, v{OO+r}, v{T}")
    for i in range(4, 8): a(f"v_cvt_pk_bf16_f32 v{P+i}, v{OO+2*i}, v{OO+2*i+1}")
    a("s_mov_b32 exec_hi, 0")
    a(f"buffer_store_dwordx4 {vr(P+4,4)}, v{L16}, {S4(rBR)}, s{sOO} offen offset:1024 sc1")
    a("s_not_b64 exec, exec")
    a(f"buffer_store_dwordx2 {vr(P+4,2)}, v{L8}, {S4(rBR)}, s{sOO} offen offset:1280 sc1")
    a("s_mov_b64 exec, -1")
    if EARLYP == 2: a(f"buffer_load_dwordx2 {vr(T+14,2)}, v{LF}, {S4(rBR)}, 0 offen {PF2}")
    stamp(a, "ost")
    a(f"s_cmp_lg_u32 s{sFB}, 0")
    a("s_cbranch_scc1 L_checked")
    if ARR3 == "late": arrive(a)
    a(f"v_mul_f32 v{T+2}, 0, v{OO}")
    a(f"v_mul_f32 v{T+3}, 0, v{OO+1}")
    for r in range(2, 16): a(f"v_fma_f32 v{T+2+(r&1)}, 0, v{OO+r}, v{T+2+(r&1)}")
    a(f"v_add_f32 v{T+2}, v{T+2}, v{T+3}")
    a(f"v_add_f32 v{T+2}, v{T+2}, v{T+1}")
    a(f"v_cmp_nlt_f32 vcc, 0x35800000, v{T+2}")
    a(f"s_mov_b64 {S2(sROT)}, vcc")
    a(f"v_cmp_ngt_f32 vcc, 0x71800000, v{T+2}")
    a(f"s_or_b64 vcc, vcc, {S2(sROT)}")
    a("s_cbranch_vccnz L_fallback")
    a.lab("L_checked")
    sOS, sOL, sW0 = KT[1], KT[2], KT[3]
    INV = [ORD.index(r_) for r_ in range(4)]
    def wo_round(st):
        a(f"s_xor_b32 s{t0}, s{sPE}, {st}")
        a(f"s_add_u32 s{t0}, s{t0}, s{sW0}")
        a(f"s_mul_i32 s{sWOS}, s{t0}, {28*896}")
        a(f"s_mul_i32 s{sWOL}, s{skq}, {56*256}")
        a(f"s_mov_b32 s{t1}, 0")
        a(f"s_setprio {WPRIO}")
        a.lab(f"L_wo{st}")
        a(f"s_mov_b32 m0, s{sWOL}")
        a(f"s_add_u32 s{t1}, s{t1}, 1")
        a(f"buffer_load_dwordx4 v{WOA}, {S4(rWO)}, s{sWOS} offen {WOF} lds")
        a(f"s_add_u32 s{sWOL}, s{sWOL}, 1024")
        a(f"s_cmp_eq_u32 s{t1}, 7")
        a(f"s_mov_b32 s{t0}, {4*896}")
        a(f"s_cselect_b32 s{t0}, {32*896}, s{t0}")
        a(f"s_add_u32 s{sWOS}, s{sWOS}, s{t0}")
        a(f"s_cmp_lg_u32 s{t1}, 14")
        a(f"s_waitcnt vmcnt({WOFL})")
        a(f"s_cbranch_scc1 L_wo{st}")
        a("s_waitcnt vmcnt(0)")
        a("s_setprio 2")
    a(f"s_cmp_eq_u32 s{sg}, 0")
    a("s_cbranch_scc1 L_wfirst")
    a.lab("L_pub")
    NF = T + 2
    a(f"v_mov_b32 v{NF}, s{NONCE}")
    a(f"v_mov_b32 v{NF+1}, s{NONCE+1}")
    a("s_mov_b64 exec, 1")
    a(f"s_cmp_eq_u32 s{sg}, 0")
    a("s_waitcnt vmcnt(0)")
    a(f"buffer_store_dwordx2 {vr(NF,2)}, off, {S4(rBR)}, s{sF2O} {SF2}")
    a("s_mov_b64 exec, -1")
    stamp(a, "flag2")
    a("s_cbranch_scc1 L_ph3")
    def late_fetch():
        a(f"s_mov_b32 m0, s{sLL}")
        a("s_nop 0")
        for i in range(4): a(f"buffer_load_dwordx4 v{L16}, {S4(rBR)}, s{sLS} offen offset:{1024*i} sc1 lds")
        a(f"s_add_u32 m0, s{sLL}, 4096")
        a("s_nop 0")
        for i in range(3): a(f"buffer_load_dwordx4 v{L16}, {S4(rBR)}, s{sLS2} offen offset:{1024*i} sc1 lds")
        a("s_mov_b64 exec, 1")
        a("s_waitcnt vmcnt(0)")
        a(f"ds_write_b32 v{LM}, v{ONE}")
        a("s_mov_b64 exec, -1")
    a(f"ds_read_b32 v{T+12}, v{LM}")
    lwait(a, "L_wfree", 0, 16, 1, C0A)
    a(f"s_cmp_lg_u32 s{skq}, 3")
    a("s_cbranch_scc1 L_pfree_done")
    lwait(a, "L_pfree", 0, 12, 1)
    a(f"v_readfirstlane_b32 s{t0}, v{T+12}")
    a(f"s_cmp_lg_u32 s{t0}, 0")
    a("s_cbranch_scc1 L_fin")
    if EARLYP:
        a(f"v_cmp_ne_u64 vcc, {S2(NONCE)}, {vr(T+14,2)}")
        a("s_cbranch_vccz L_lready")
    if PW0: a("s_waitcnt vmcnt(0)")
    poll(a, "L_f21", LF, rBR, PF2)
    a.lab("L_lready")
    stamp(a, "poll2")
    late_fetch()
    stamp(a, "oown")
    if WB == "e": wbl2(a, "e", 7)
    a("s_waitcnt lgkmcnt(0)")
    a("s_branch L_fin")
    a.lab("L_ph3")
    if OUTW:
        a("s_mov_b64 exec, 1")
        a(f"buffer_load_dword v{T+8}, v{OUTA}, {S4(rOUT)}, 0 offen")
        a("s_mov_b64 exec, -1")
    WBR = 16
    steps = []
    for q in range(2):
        for j in range(4 * q, 4 * q + 4): steps.append((0, lambda aa, j=j: 28 * j + 8 * aa, ("A", j)))
        for i in range(2 * q, 2 * q + 2): steps.append((1, lambda aa, i=i: 56 * i + 16 + 8 * aa, ("B", 2 * i)))
        steps.append((2, lambda aa, q=q: 28 * (4 * q + aa) + 20, ("C", 4 * q)))
    WA2, TW2 = 8, 11
    MK = TW + 1
    ACC3 = [128, 144]; ACCB = [176, 192]; OB = 208; OE = 176
    def wread(ks):
        t, row, _ = steps[ks]
        return [f"ds_read_b64_tr_b16 {vr(WBR+8*ks+4*j+2*aa,2)}, v{(WA2 if j else WA)+t} offset:{row(aa)*256}" for j in range(2) for aa in range(2)]
    def oread(ks, d, base):
        kind, hd = steps[ks][2]
        if kind == "A": return [f"ds_read_b128 {vr(d,4)}, v{OA} offset:{base+hd*1792}"]
        if kind == "B": return [f"ds_read_b128 {vr(d,4)}, v{OA+1} offset:{base+hd*1792+1024}"]
        return [f"ds_read_b64 {vr(d+2*aa,2)}, v{OA+2} offset:{base+(hd+aa)*1792+1536}" for aa in range(2)]
    for t in range(3): a(f"v_xor_b32 v{WA2+t}, 64, v{WA+t}")
    for k_, x_ in enumerate((16, 64, 80)): a(f"v_xor_b32 v{TW2+k_}, {x_}, v{TW}")
    gbar(a, "L_g4", 4)
    for ks in range(14):
        for x in wread(ks): a(x)
    a("s_waitcnt lgkmcnt(0)")
    gbar(a, "L_g5", 5)
    wo_round(1)
    a(f"s_mul_i32 s{sOS}, s{sRT}, 1792")
    a(f"s_mul_i32 s{sOL}, s{skq}, 7168")
    a(f"s_add_u32 s{sOL}, s{sOL}, {ES}")
    poll(a, "L_f20", F2A, rBR, PF2)
    a(f"s_mov_b32 m0, s{sOL}")
    a(f"s_add_u32 s{t0}, s{sOS}, 4096")
    for i in range(4): a(f"buffer_load_dwordx4 v{L16}, {S4(rBR)}, s{sOS} offen offset:{1024*i} sc1 lds")
    a(f"s_add_u32 m0, s{sOL}, 4096")
    a("s_nop 0")
    for i in range(3): a(f"buffer_load_dwordx4 v{L16}, {S4(rBR)}, s{t0} offen offset:{1024*i} sc1 lds")
    a("s_waitcnt vmcnt(0)")
    gbar(a, "L_g6", 6)
    stamp(a, "aland")
    a(f"s_cmp_eq_u32 s{XM}, 0")
    a("s_cbranch_scc1 L_fin")
    for ks in range(14):
        for x in oread(ks, OE + 4 * ks, 0): a(x)
    a(f"s_add_u32 s{t0}, s{sOUTO}, {8*1792}")
    a(f"s_add_u32 s{t1}, s{sOUTO}, {16*1792}")
    a(f"s_add_u32 s{sOS}, s{sOUTO}, {24*1792}")
    lwait(a, "L_h3", 4, 12, HSL)
    a("s_setprio 0")
    for ks in range(14):
        w_ = wread(ks)
        for j in range(2):
            c = "0" if ks == 0 else vr(ACC3[j], 16)
            a(f"v_mfma_f32_32x32x16_bf16 {vr(ACC3[j],16)}, {vr(WBR+8*ks+4*j,4)}, {vr(OE+4*ks,4)}, {c}")
            for x in w_[2*j:2*j+2]: a(x)
    stamp(a, "tileA")
    def half_block(hf, final):
        lg = []
        for n_ in range(7):
            for x in oread(7 * hf + n_, OB + 4 * n_, LS - ES): a(x); lg.append(n_)
        items = [(n_, j) for j in range(2) for n_ in range(7)] if final else [(n_, j) for n_ in range(7) for j in range(2)]
        seen = -1
        for k_, (n_, j) in enumerate(items):
            if n_ > seen:
                a(f"s_waitcnt lgkmcnt({sum(1 for x in lg if x > n_)})"); seen = n_
            d_ = ACCB[j] if hf else ACC3[j]
            c = "0" if (hf and n_ == 0) else vr(d_, 16)
            a(f"v_mfma_f32_32x32x16_bf16 {vr(d_,16)}, {vr(WBR+8*(7*hf+n_)+4*j,4)}, {vr(OB+4*n_,4)}, {c}")
            if final and k_ in (7, 8): a("s_nop 4")
            if final and 9 <= k_ <= 12:
                i0 = 2 * (k_ - 9)
                for r in range(2 * i0, 2 * i0 + 4): a(f"v_add_f32 v{ACC3[0]+r}, v{ACC3[0]+r}, v{ACCB[0]+r}")
                for i in range(i0, i0 + 2): a(f"v_cvt_pk_bf16_f32 v{ACC3[0]+i}, v{ACC3[0]+2*i}, v{ACC3[0]+2*i+1}")
    a(f"s_mov_b32 s{t3}, {SPIN}")
    a.lab("L_any")
    a(f"ds_read2_b32 {vr(T+8,2)}, v{MK} offset0:0 offset1:2")
    a(f"s_sub_u32 s{t3}, s{t3}, 1")
    a("s_cbranch_scc1 L_end")
    a("s_waitcnt lgkmcnt(0)")
    a(f"v_cmp_ne_u32 vcc, 0, v{T+9}")
    a("s_cbranch_vccnz L_ba")
    a(f"v_cmp_ne_u32 vcc, 0, v{T+8}")
    a("s_cbranch_vccz L_any")
    for first in (0, 1):
        if first: a.lab("L_ba")
        stamp(a, "bland")
        half_block(first, False)
        a(f"s_mov_b32 s{t3}, {SPIN}")
        a.lab(f"L_u{first}")
        a(f"ds_read_b32 v{T+8}, v{MK} offset:{8 - 8*first}")
        a(f"s_sub_u32 s{t3}, s{t3}, 1")
        a("s_cbranch_scc1 L_end")
        a("s_waitcnt lgkmcnt(0)")
        a(f"v_cmp_ne_u32 vcc, 0, v{T+8}")
        a(f"s_cbranch_vccz L_u{first}")
        stamp(a, "oland")
        half_block(1 - first, True)
        if not first: a("s_branch L_out")
    a.lab("L_out")
    stamp(a, "mf3")
    a(f"ds_write_b128 v{TW}, {vr(ACC3[0],4)}")
    a(f"ds_write_b128 v{TW2}, {vr(ACC3[0]+4,4)}")
    a("s_nop 9")
    for r in range(8): a(f"v_add_f32 v{ACC3[1]+r}, v{ACC3[1]+r}, v{ACCB[1]+r}")
    for i in range(4): a(f"v_cvt_pk_bf16_f32 v{ACC3[1]+i}, v{ACC3[1]+2*i}, v{ACC3[1]+2*i+1}")
    a(f"ds_write_b128 v{TW2+1}, {vr(ACC3[1],4)}")
    for r in range(8, 16): a(f"v_add_f32 v{ACC3[1]+r}, v{ACC3[1]+r}, v{ACCB[1]+r}")
    for i in range(4, 8): a(f"v_cvt_pk_bf16_f32 v{ACC3[1]+i}, v{ACC3[1]+2*i}, v{ACC3[1]+2*i+1}")
    a(f"ds_write_b128 v{TW2+2}, {vr(ACC3[1]+4,4)}")
    for i in range(4): a(f"ds_read_b128 {vr(WBR+4*i,4)}, v{TR} offset:{1024*i}")
    for i, so in enumerate((sOUTO, t0, t1, sOS)):
        a(f"s_waitcnt lgkmcnt({3-i})")
        a(f"buffer_store_dwordx4 {vr(WBR+4*i,4)}, v{OUTA}, {S4(rOUT)}, s{so} offen {OUTF}")
    a.lab("L_fin")
    if STAMP:
        a("s_waitcnt vmcnt(0)")
        a("s_memrealtime s[22:23]")
        a("s_memtime s[98:99]")
        a("s_waitcnt lgkmcnt(0)")
        a("s_mov_b64 exec, 1")
        a(f"s_mov_b32 s{rWS}, s2"); a(f"s_mov_b32 s{rWS+1}, s3"); a(f"s_mov_b32 s{rWS+2}, 0x10000000")
        a(f"s_lshl_b32 s{t1}, s{sidx}, 3")
        a(f"s_add_u32 s{t1}, s{t1}, s{sx}")
        a(f"s_lshl_b32 s{t1}, s{t1}, 9")
        a(f"s_add_u32 s{t1}, s{t1}, {64<<20}")
        a(f"s_lshl_b32 s{t0}, s{sw}, 6")
        a(f"s_add_u32 s{t1}, s{t1}, s{t0}")
        for i, r in enumerate([RT, 22, 100, 98] + [80 + 2 * k for k in range(9)] + [sLOC]):
            a(f"v_mov_b32 v1, s{r}")
            a(f"buffer_store_dword v1, off, {S4(rWS)}, s{t1} offset:{4*i}")
    if DIAG:
        a("s_waitcnt vmcnt(0)")
        if DIAG == "end": a("s_memrealtime s[80:81]")
        if DIAG == "none": a(f"s_mov_b32 s80, s{NONCE}")
        if DIAG.startswith("skew"):
            a(f"s_sub_i32 s81, s{RT}, s{NONCE}")
            a("s_mul_i32 s81, s81, 20")
            if DIAG[4] != "A":
                a(f"s_cmp_eq_u32 s{sx}, {DIAG[4]}")
                a("s_cselect_b32 s81, s81, -2000")
            a(f"s_add_u32 s80, s{NONCE}, s81")
        a("s_waitcnt lgkmcnt(0)")
        a("s_add_u32 s80, s80, 6000")
        a.lab("L_diag")
        a("s_sleep 2")
        a("s_memrealtime s[82:83]")
        a("s_waitcnt lgkmcnt(0)")
        a("s_sub_u32 s82, s82, s80")
        a("s_cmp_lt_i32 s82, 0")
        a("s_cbranch_scc1 L_diag")
    a.lab("L_end")
    a("s_endpgm")
    a.lab("L_wfirst")
    lwait(a, "L_h2", 12, 4)
    stamp(a, "wo0")
    if WB == "w": wbl2(a, "w", 3)
    a(f"s_lshl_b32 s{t0}, s{skq}, 2")
    a(f"s_lshr_b32 s{t0}, {sum((4*INV[r_]) << (4*r_) for r_ in range(4)):#x}, s{t0}")
    a(f"s_and_b32 s{sW0}, s{t0}, 15")
    wo_round(0)
    a("s_branch L_pub")
    for tag, P_, so, off in tails:
        a.lab(f"L_wt{tag}")
        a(f"buffer_store_dwordx4 {vr(P_,4)}, v{TAU}, {S4(rWS)}, s{so} offen offset:{off} sc1")
        a(f"s_branch L_st{tag}")
    for v in nnt:
        a.lab(f"L_nn{v}")
        a(f"buffer_load_dwordx2 {vr(NV,2)}, v{NA}, {S4(rDBG)}, 0 offen sc1")
        a(f"s_branch L_nnb{v}")
    for tag, nm in stails:
        a.lab(f"L_ns{tag}")
        stamp(a, nm)
        a(f"s_branch L_nb{tag}")
    for name, target, reg in slow:
        a.lab(f"{name}_slow")
        lwait(a, name, 0, target, 1, reg)
        a(f"s_branch {name}_back")
    if LOW[0] >= 0:
        for p, pr in zip(LOW, (0, 2)):
            a.lab(f"L_low{p}")
            a(f"s_setprio {pr}")
            a(f"s_branch L_lowb{p}")
    a.lab("L_f1wt")
    a(f"buffer_store_dwordx2 {vr(NV,2)}, off, {S4(rWS)}, s{sF1O} sc1")
    a("s_branch L_f1st")
    for tag in "LC":
        a.lab(f"L_nonce_retry{tag}")
        a(f"buffer_load_dwordx2 {vr(NV,2)}, off, {S4(rDBG)}, s{sDL} sc1")
        a(f"s_sub_u32 s{t3}, s{t3}, 1")
        a("s_cbranch_scc1 L_end")
        a("s_waitcnt vmcnt(0)")
        a(f"s_branch L_nonce{tag}")
    a.lab("L_fallback")
    QO = Q[3]; S0 = SB[0]; K0 = KB[0]; V0 = VB[0]; M = T + 2
    a("s_waitcnt vmcnt(0)")
    a(f"s_mov_b32 s{sFB}, 1")
    a("s_mov_b32 exec_lo, 0")
    a(f"v_mov_b32 v{QO+6}, 0")
    a("s_mov_b32 exec_lo, -1")
    for r in range(16): a(f"v_mov_b32 v{OO+r}, 0")
    a(f"v_mov_b32 v{M}, 0xff7fffff")
    a(f"s_mov_b32 s{sKVO}, 0")
    a.lab("L_fb_loop")
    a(f"buffer_load_dwordx4 {vr(K0,4)}, v{L16}, {S4(rKV)}, s{sKVO} offen sc1")
    a(f"buffer_load_dwordx4 {vr(K0+4,4)}, v{L16}, {S4(rKV)}, s{sKVO} offen offset:1024 sc1")
    a(f"buffer_load_dwordx4 {vr(V0,4)}, v{L16}, {S4(rKV)}, s{sKVO} offen offset:2048 sc1")
    a(f"buffer_load_dwordx4 {vr(V0+4,4)}, v{L16}, {S4(rKV)}, s{sKVO} offen offset:3072 sc1")
    a("s_waitcnt vmcnt(0)")
    a(f"v_mfma_f32_32x32x16_bf16 {vr(S0,16)}, {vr(K0,4)}, {vr(QO,4)}, 0")
    a(f"v_mfma_f32_32x32x16_bf16 {vr(S0,16)}, {vr(K0+4,4)}, {vr(QO+4,4)}, {vr(S0,16)}")
    a("s_nop 15")
    a(f"v_max3_f32 v{T}, v{M}, v{S0}, v{S0+1}")
    for i in range(2, 16, 2): a(f"v_max3_f32 v{T}, v{T}, v{S0+i}, v{S0+i+1}")
    a(f"v_mov_b32 v{T+1}, v{T}")
    a("s_nop 1")
    a(f"v_permlane32_swap_b32 v{T}, v{T+1}")
    a(f"v_max_f32 v{T}, v{T}, v{T+1}")
    a(f"v_sub_f32 v{T+1}, v{M}, v{T}")
    a(f"v_exp_f32 v{T+1}, v{T+1}")
    a(f"v_mov_b32 v{M}, v{T}")
    for r in range(16): a(f"v_sub_f32 v{S0+r}, v{S0+r}, v{T}")
    for r in range(16): a(f"v_exp_f32 v{S0+r}, v{S0+r}")
    for r in range(16): a(f"v_mul_f32 v{OO+r}, v{OO+r}, v{T+1}")
    a("s_nop 1")
    a(f"v_smfmac_f32_32x32x32_bf16 {vr(OO,16)}, {vr(V0,4)}, {vr(S0,8)}, v{IDX}")
    a(f"v_smfmac_f32_32x32x32_bf16 {vr(OO,16)}, {vr(V0+4,4)}, {vr(S0+8,8)}, v{IDX}")
    a(f"s_add_u32 s{sKVO}, s{sKVO}, 4096")
    a(f"s_cmp_lt_u32 s{sKVO}, 262144")
    a("s_nop 15")
    a("s_cbranch_scc1 L_fb_loop")
    a(f"v_mov_b32 v{T}, v{OO+12}")
    a(f"v_mov_b32 v{T+1}, v{OO+12}")
    a("s_nop 1")
    a(f"v_permlane32_swap_b32 v{T}, v{T+1}")
    a("s_branch L_norm")
    if SCP:
        a.raw(".p2align 12")
        a("s_endpgm")
    kd = f""".section .rodata,"a"
.p2align 6
.amdhsa_kernel {n}
  .amdhsa_next_free_vgpr 256
  .amdhsa_next_free_sgpr 102
  .amdhsa_accum_offset 256
  .amdhsa_group_segment_fixed_size 0
  .amdhsa_kernarg_size 72
  .amdhsa_user_sgpr_count 2
  .amdhsa_user_sgpr_kernarg_segment_ptr 1
  .amdhsa_system_sgpr_workgroup_id_x 1
.end_amdhsa_kernel
"""
    return a.text() + kd

hdr = f"""; Two multi-head attention blocks (S=2048, D=448, H=16, Dh=28), one launch, 256 workgroups of 8 waves, one per CU.
;  1. projection: K and V^T fragments go to ws, Q stays in LDS.  Feature 28 of K is 1 and feature 28 of Q carries -m, so the
;  2. attention: m is the row maximum over the wave's first key tile; the row sum and the outputs are range checked and a
;     q tile that fails is recomputed with the running maximum.  P stays in f32 registers: the sparse MFMA picks the high halves.
; Hand-offs carry a per-launch tag agreed through d_debug.  K/V are stored plainly only when every workgroup of the class has
; registered on this die; otherwise they are written through, so any placement gives the same result.
; @launch grid=(256,1,1) block=(512,1,1) lds={LDS}
.amdgcn_target "amdgcn-amd-amdhsa--gfx950"
.text
"""
open(sys.argv[1] if len(sys.argv) > 1 else "v16.s", "w").write(hdr + gen())
```

```python
import sys, os, struct, math
NAME = "concat_heads__softmax_full_mha__softmax_full_mha__prompt"
def f2u(x): return struct.unpack("<I", struct.pack("<f", x))[0]
CSCALE = f2u(28 ** -0.5 * math.log2(math.e))
E = os.environ.get
STAMP = E("STAMP", "0") in ("1", "3")
RTS = E("STAMP", "0") == "3"
DIAG = E("DIAG", "")
STL = E("STL", "c0,p1end,ack1,poll1,loop0,loop1,flag2,poll2,oland").split(",")
F2SP = int(E("F2SP", "32"))
FORCEFB = E("FORCEFB", "0") == "1"
LOCAL = E("LOCAL", "1") == "1"
PRET = int(E("PRET", "3"))
SLEEP = int(E("SLEEP", "0"))
OUTF = E("OUTF", "sc1").replace("_", " ")
ROTA, ROTB, ROTC, ROTN, ROTS = [int(v) for v in E("ROTP", "1,0,2,7,1").split(",")]
WOFL = int(E("WOFL", "5"))
NOWN = int(E("NOWN", "4"))
NPOS = int(E("NPOS", "5"))
ARR3 = E("ARR3", "late")
OUTW = int(E("OUTW", "0"))
WOT = int(E("WOT", "30"))
HB = int(E("HB", "0"))
BPOS = int(E("BPOS", "2"))
TLBW = int(E("TLBW", "0"))
PROBE = int(E("PROBE", "0"))
WPRIO = int(E("WPRIO", "0"))
PRET2 = int(E("PRET2", "0"))
LG = int(E("LG", "0"))
PF2 = E("PF2", "sc1").replace("_", " ")
SF2 = E("SF2", "sc1").replace("_", " ")
PIPE = int(E("PIPE", "0"))
PW0 = int(E("PW0", "1"))
F1SP = int(E("F1SP", "128"))
K1L = int(E("K1L", "1"))
LQ0 = int(E("LQ0", "0"))
PGA = int(E("PGA", "1"))
FPOS = int(E("FPOS", "22"))
QB = int(E("QB", "12"))
TEAR = int(E("TEAR", "0"))
B2 = int(E("B2", "0"))
LPR = int(E("LPR", "0"))
CPF = int(E("CPF", "0"))
UBY = int(E("UBY", "0"))
SLD = int(E("SLD", "6"))
NRC = 139264
MIX = int(E("MIX", "0"))
WB = E("WB", "q54")
PAD = int(E("PAD", "0"), 0)
VIS = int(E("VIS", "0"))
SCP = int(E("SCP", "0"))
INL = int(E("INL", "1"))
PG3 = int(E("PG3", "0"))
TWO = int(E("TWO", "0"))
STL_ = int(E("STN", "0"))
ST0 = int(E("ST0", "3"))
SGL = E("SGL", "")
PGT = int(E("PGT", "-1"))
SP = int(E("SP", "2"))
WF0 = E("WF0", ""); WF = E("WF", ""); XF0 = E("XF0", ""); XF = E("XF", ""); KVS = E("KVS", ""); WOF = E("WOF", ""); TF = E("TF", "sc1").replace("_", " "); KVL = E("KVL", "sc1").replace("_", " ")
LOW = [int(x) for x in E("LOW", "-1,-1").split(",")]
QFAST = int(E("QFAST", "1"))
FT = E("FT", "")
P0S = int(E("P0S", "1"))
SL1 = int(E("SL1", "0"))
PEX = int(E("PEX", "1"))
EARLYP = int(E("EARLYP", "1"))
GLOOK = int(E("GLOOK", "0"))
LOOK = int(E("LOOK", "16"))
LOOK2 = int(E("LOOK2", "7"))
HSL = int(E("HSL", "4"))
XMAP = E("XMAP", "01235467")
T2POS = E("T2POS", "b6")
SPIN = 1 << 22

X_F1 = 1 << 20
B_BASE = 16 << 20; B_F2 = 1835008
STAGE = 40960; XOFF = 24576
PB0 = 57344; QX = 122880; MX = 106496; PB1 = 113664; TX = 122880; ES = 57344; LS = 86016; LDS = 163840; GBC = 163808

class A:
    def __init__(self):
        self.l = []; self.vm = []; self.done = 0
    def __call__(self, s): self.l.append("    " + s)
    def lab(self, s): self.l.append(s + ":")
    def raw(self, s): self.l.append(s)
    def note(self, s):
        for x in s.strip().split("\n"): self.l.append("; " + x.strip())
    def text(self): return "\n".join(self.l) + "\n"
    def vreset(self): self.vm = []; self.done = 0
    def vmem(self, s, tag=None):
        self(s); self.vm.append(tag)
    def vwait(self, tag):
        idx = [i for i, t in enumerate(self.vm) if t == tag]
        assert idx, tag
        last = idx[-1] + 1
        if last <= self.done: return
        self.done = last
        n = len(self.vm) - last
        assert n < 64
        self(f"s_waitcnt vmcnt({n})")

def vr(b, n): return f"v[{b}:{b+n-1}]"
def S4(b): return f"s[{b}:{b+3}]"
def S2(b): return f"s[{b}:{b+1}]"
JIT = int(E("JIT", "0")); njit = [0]
def stamp(a, name):
    if JIT and (not name.startswith("ph") or int(name[2:]) % 9 == 2):
        import zlib
        njit[0] += 1
        h = zlib.crc32(f"{name}{JIT}".encode())
        a("s_cselect_b32 s96, 1, 0")
        a(f"s_mul_i32 s97, s41, {1 + 2 * (h & 3)}")
        a("s_add_u32 s97, s97, s46")
        a("s_add_u32 s97, s97, s40")
        a(f"s_and_b32 s97, s97, {7 if h & 4 else 3}")
        a(f"s_cmp_lg_u32 s97, {(h >> 4) & 3}")
        a(f"s_cbranch_scc1 L_jit{njit[0]}")
        for _ in range(1 + ((h >> 8) & 3)): a("s_sleep 100")
        a.lab(f"L_jit{njit[0]}")
        a("s_cmp_lg_u32 s96, 0")
    if DIAG == name: a("s_memrealtime s[80:81]")
    if DIAG == name + "@0":
        a("s_cmp_lg_u32 s50, 0")
        a("s_cbranch_scc1 L_dg0")
        a("s_memrealtime s[80:81]")
        a.lab("L_dg0")
    if STAMP and name in STL:
        i = STL.index(name)
        a(f"{'s_memrealtime' if RTS else 's_memtime'} s[{80+2*i}:{81+2*i}]")

rX, rW, rWS, rWO, rOUT, rDBG, rKV, rBR = 24, 28, 32, 36, 64, 68, 72, 12
XM = 4
sLOC, sRT, sOUTO, sQT, sF1O, sPE = 6, 7, 8, 9, 10, 11
sKVO, sWOS, sWOL, sOO, sF2O, sFB = 16, 17, 18, 19, 22, 23
sx, sidx, sb, srb, shalf, sXS, sw, shl, shs, sg4, sg, sWL, sXL, sWS_, stt, scg, skq, su = range(40, 58)
t0, t1, sDL, t2, sROT, t3 = 58, 59, 60, 61, 62, 63
NONCE = 76; RT = 78
KT = [24, 25, 26, 27, 28]
KP = [24, 26, 28, 30, 44, 52, 54, 20]
L16, IDX, CA, F1A, ONE, L8, MW, MR, PW, PR, TAU = 1, 2, 3, 4, 5, 6, 7, 8, 11, 14, 15
T = 240
XD, WD, XA, WA1, QW, NV, NA, PTA = 16, 18, 16, 20, 23, 232, 234, 235
ACC = 32; FR = 128; P1 = 208
Q = [16, 24, 32, 40]; O = [48, 64, 80, 96]; SB = [112, 128, 144]; KB = [176, 184, 192, 200]; VB = [208, 216, 224, 232]
WA, F2B, TW, OA, WOA, F2A, OUTA, TR = 160, 163, 166, 168, 172, 173, 174, 175
ORD = [0, 2, 3, 1]
LF, LM, C0A = 163, 164, 165
sLS, sLL, sLS2 = 43, 51, 57

def lwait(a, name, off, target, sleep=2, reg=None):
    a(f"s_mov_b32 s{t3}, {SPIN}")
    a.lab(f"{name}_spin")
    a(f"ds_read_b32 v{T+13}, v{reg or CA} offset:{off}")
    a(f"s_sub_u32 s{t3}, s{t3}, 1")
    a("s_cbranch_scc1 L_end")
    a("s_waitcnt lgkmcnt(0)")
    a(f"v_readfirstlane_b32 s{t2}, v{T+13}")
    a(f"s_cmp_ge_u32 s{t2}, {target}")
    if sleep:
        a(f"s_cbranch_scc1 {name}_done")
        a(f"s_sleep {sleep}")
        a(f"s_branch {name}_spin")
        a.lab(f"{name}_done")
    else:
        a(f"s_cbranch_scc0 {name}_spin")
def arrive(a, off=0):
    a("s_mov_b64 exec, 1")
    a(f"ds_add_u32 v{CA}, v{ONE} offset:{off}")
    a("s_mov_b64 exec, -1")
slow = []
def lpre(a, reg=None):
    if INL: a(f"s_mov_b32 s{t3}, {SPIN}")
    a(f"ds_read_b32 v{T+13}, v{reg or CA}")
def lcheck(a, name, target, reg=None):
    if INL:
        a.lab(f"{name}_re")
        a("s_waitcnt lgkmcnt(0)")
        a(f"v_readfirstlane_b32 s{t2}, v{T+13}")
        a(f"s_sub_u32 s{t3}, s{t3}, 1")
        a(f"ds_read_b32 v{T+13}, v{reg or CA}")
        a("s_cbranch_scc1 L_end")
        a(f"s_cmp_ge_u32 s{t2}, {target}")
        a(f"s_cbranch_scc0 {name}_re")
        a.lab(f"{name}_back")
        return
    a("s_waitcnt lgkmcnt(0)")
    a(f"v_readfirstlane_b32 s{t2}, v{T+13}")
    a(f"s_cmp_ge_u32 s{t2}, {target}")
    a(f"s_cbranch_scc0 {name}_slow")
    a.lab(f"{name}_back")
    slow.append((name, target, reg))
def gbar(a, name, k):
    arrive(a)
    lwait(a, name, 0, 4 * k)
def poll_pipe(a, name, vaddr, srd, fl, regs):
    n_ = len(regs)
    a(f"s_mov_b32 s{t3}, {SPIN}")
    for r in regs[:-1]:
        a(f"buffer_load_dwordx2 {vr(r,2)}, v{vaddr}, {S4(srd)}, 0 offen {fl}")
        a(f"s_sleep {PIPE}")
    a.lab(f"{name}_spin")
    for i in range(n_):
        a(f"buffer_load_dwordx2 {vr(regs[(i-1)%n_],2)}, v{vaddr}, {S4(srd)}, 0 offen {fl}")
        a(f"s_waitcnt vmcnt({n_-1})")
        a(f"v_cmp_ne_u64 vcc, {S2(NONCE)}, {vr(regs[i],2)}")
        a(f"s_cbranch_vccz {name}_ok")
    a(f"s_sub_u32 s{t3}, s{t3}, 1")
    a(f"s_cbranch_scc0 {name}_spin")
    a("s_branch L_end")
    a.lab(f"{name}_ok")
def poll(a, name, vaddr, srd, fl="sc1", lanes=4, SLEEP=0):
    a(f"s_mov_b32 s{t3}, {SPIN}")
    if PEX: a(f"s_mov_b64 exec, {(1 << lanes) - 1:#x}")
    if SLEEP: a(f"s_branch {name}_first")
    a.lab(f"{name}_spin")
    if SLEEP:
        a(f"s_sleep {SLEEP}")
        a.lab(f"{name}_first")
    a(f"buffer_load_dwordx2 {vr(T+14,2)}, v{vaddr}, {S4(srd)}, 0 offen {fl}")
    a(f"s_sub_u32 s{t3}, s{t3}, 1")
    a("s_cbranch_scc1 L_end")
    a("s_waitcnt vmcnt(0)")
    a(f"v_cmp_ne_u64 vcc, {S2(NONCE)}, {vr(T+14,2)}")
    a(f"s_cbranch_vccnz {name}_spin")
    if PEX: a("s_mov_b64 exec, -1")

def wbl2(a, tag, wave):
    a(f"s_cmp_lg_u32 s{sw}, {wave}")
    a(f"s_cbranch_scc1 L_wb{tag}")
    a(f"s_cmp_lg_u32 s{sidx}, 3")
    a(f"s_cbranch_scc1 L_wb{tag}")
    a("buffer_wbl2 sc1")
    a.lab(f"L_wb{tag}")

def gen():
    a = A(); n = NAME + "_kernel"
    tails = []; stails = []; nnt = []
    u0, u1, u2, u3, u4 = T, T + 1, T + 2, T + 3, T + 4
    a.raw(f".globl {n}\n" + (".p2align 12\n" if PGA else "") + (f".fill {PAD//4}, 4, 0xbf800000\n" if PAD else "") + f".p2align 8\n.type {n},@function")
    a.lab(n)
    a("s_cmp_ge_u32 s2, 256")
    a("s_cbranch_scc1 L_end")
    a("s_load_dwordx16 s[4:19], s[0:1], 0")
    a("s_load_dwordx2 s[20:21], s[0:1], 64")
    a(f"s_memrealtime {S2(RT)}")
    if STAMP and not RTS: a("s_memtime s[100:101]")
    a(f"s_and_b32 s{sx}, s2, 7")
    a(f"s_lshr_b32 s{sidx}, s2, 3")
    a("v_lshrrev_b32 v1, 6, v0")
    a("v_and_b32 v0, 63, v0")
    a(f"v_readfirstlane_b32 s{sw}, v1")
    if XMAP:
        tab = sum(int(c) << (4 * i) for i, c in enumerate(XMAP))
        assert sorted(XMAP) == list("01234567")
        a(f"s_lshl_b32 s{t0}, s{sx}, 2")
        a(f"s_lshr_b32 s{t0}, {tab:#x}, s{t0}")
        a(f"s_bfe_u32 s{sb}, s{t0}, 0x10002")
        a(f"s_and_b32 s{sg4}, s{t0}, 3")
    else:
        a(f"s_lshr_b32 s{sb}, s{sx}, 2")
        a(f"s_and_b32 s{sg4}, s{sx}, 3")
    a(f"s_lshr_b32 s{srb}, s{sidx}, 1")
    a(f"s_and_b32 s{shalf}, s{sidx}, 1")
    if TLBW:
        a(f"s_cmp_lt_u32 s{sw}, 4")
        a("s_cbranch_scc1 L_load")
        a(f"s_mul_i32 s{t0}, s{srb}, {128*896}")
        a(f"s_cmp_eq_u32 s{sb}, 0")
        a(f"v_mov_b32 v{u0}, s{t0}")
        a(f"v_mul_u32_u24 v{u1}, {7*2688}, v0")
        a("s_waitcnt lgkmcnt(0)")
        a(f"s_cselect_b64 {S2(rX)}, s[4:5], s[10:11]")
        a(f"s_cselect_b64 {S2(rW)}, s[6:7], s[12:13]")
        if TLBW == 1: a("s_mov_b64 exec, 1")
        a(f"global_load_dword v{T+10}, v{u0}, {S2(rX)}")
        a(f"global_load_dword v{T+11}, v{u1}, {S2(rW)}")
        a("s_mov_b64 exec, -1")
        a("s_branch L_comp")
        a.lab("L_load")
    else:
        a(f"s_cmp_ge_u32 s{sw}, 4")
        a("s_cbranch_scc1 L_comp")
    def stamp_init():
        if DIAG: a(f"s_mov_b32 s80, s{RT}")
        if STAMP and STL != ["none"]:
            for k in range(9): a(f"s_mov_b32 s{80+2*k}, s{RT if RTS else 100}")
    def dbg_desc():
        a(f"s_mov_b32 s{rDBG}, s18"); a(f"s_mov_b32 s{rDBG+1}, s19"); a(f"s_mov_b32 s{rDBG+2}, 256"); a(f"s_mov_b32 s{rDBG+3}, 0x00020000")
        a(f"s_lshl_b32 s{sDL}, s{sb}, 3")
    def ws_desc():
        a(f"s_lshl_b32 s{t2}, s{sx}, 21")
        a(f"s_add_u32 s{rWS}, s20, s{t2}")
        a(f"s_addc_u32 s{rWS+1}, s21, 0")
        a(f"s_mov_b32 s{rWS+2}, {2<<20}")
        a(f"s_mov_b32 s{rWS+3}, 0x00020000")
    def ids2a(g, ws=True):
        a(f"s_cmp_eq_u32 s{sb}, 0")
        a(f"s_cselect_b32 s{rWO}, s8, s14")
        a(f"s_cselect_b32 s{rWO+1}, s9, s15")
        a(f"s_mov_b32 s{rWO+2}, 401408")
        a(f"s_mov_b32 s{rWO+3}, 0x00020000")
        a(f"s_mov_b32 s{rOUT}, s16"); a(f"s_mov_b32 s{rOUT+1}, s17"); a(f"s_mov_b32 s{rOUT+2}, {2048*896*2}"); a(f"s_mov_b32 s{rOUT+3}, 0x00020000")
        if ws: ws_desc()
        a(f"s_lshl_b32 s{t2}, s{sb}, 21")
        a(f"s_add_u32 s{t2}, s{t2}, {B_BASE}")
        a(f"s_add_u32 s{rBR}, s20, s{t2}")
        a(f"s_addc_u32 s{rBR+1}, s21, 0")
        a(f"s_mov_b32 s{rBR+2}, {2<<20}")
        a(f"s_mov_b32 s{rBR+3}, 0x00020000")
        a(f"s_mov_b32 s{sg}, {g}")
        a(f"s_and_b32 s{shs}, s{srb}, 1")
        if g: a(f"s_xor_b32 s{shs}, s{shs}, 1")
        a(f"s_lshl_b32 s{shl}, s{shalf}, 1")
        a(f"s_add_u32 s{shl}, s{shl}, s{shs}")
        a(f"s_lshl_b32 s{t2}, s{shl}, 18")
        a(f"s_add_u32 s{rKV}, s{rWS}, s{t2}")
        a(f"s_addc_u32 s{rKV+1}, s{rWS+1}, 0")
        a(f"s_mov_b32 s{rKV+2}, 262144")
        a(f"s_mov_b32 s{rKV+3}, 0x00020000")
        a(f"s_and_b32 s{skq}, s{sw}, 3")
        a(f"s_lshl_b32 s{sKVO}, s{skq}, 16")
        a(f"v_and_b32 v{u0}, 15, v0")
        a(f"v_lshlrev_b32 v{u0}, 3, v{u0}")
        a(f"s_lshl_b32 s{t0}, s{shalf}, 2")
        a(f"s_add_u32 s{t0}, s{t0}, s{skq}")
        a(f"s_mul_i32 s{t0}, s{t0}, {F1SP}")
        a(f"s_add_u32 s{t0}, s{t0}, {X_F1}")
        a(f"v_add_u32 v{F1A}, s{t0}, v{u0}")
    def ids2b(g):
        a(f"v_lshlrev_b32 v{L16}, 4, v0")
        a(f"v_lshlrev_b32 v{L8}, 3, v0")
        a(f"v_lshlrev_b32 v{u0}, 2, v0")
        a(f"v_mov_b32 v{IDX}, 0xdddddddd")
        pb = PB1 if g else PB0; mx = MX + 1024 * g
        a(f"s_lshl_b32 s{t1}, s{skq}, 8")
        a(f"s_add_u32 s{t1}, s{t1}, {mx}")
        a(f"v_add_u32 v{MW}, s{t1}, v{u0}")
        a(f"s_mul_i32 s{t1}, s{skq}, 12288")
        a(f"s_add_u32 s{t1}, s{t1}, {pb}")
        a(f"v_add_u32 v{PR}, s{t1}, v{L16}")
        for i in range(3):
            a(f"s_add_u32 s{t0}, s{skq}, {1+i}")
            a(f"s_and_b32 s{t0}, s{t0}, 3")
            a(f"s_lshl_b32 s{t1}, s{t0}, 8")
            a(f"s_add_u32 s{t1}, s{t1}, {mx}")
            a(f"v_add_u32 v{MR+i}, s{t1}, v{u0}")
            a(f"s_mul_i32 s{t1}, s{t0}, 12288")
            a(f"s_add_u32 s{t1}, s{t1}, {pb + 4096*i}")
            a(f"v_add_u32 v{PW+i}, s{t1}, v{L16}")
        a(f"v_mov_b32 v{CA}, {GBC + 4*g}")
        a(f"v_mov_b32 v{ONE}, 1")
        a(f"s_lshl_b32 s{sQT}, s{srb}, 2")
        a(f"s_add_u32 s{sQT}, s{sQT}, s{skq}")
        a(f"s_lshl_b32 s{t0}, s{sg4}, 2")
        a(f"s_lshr_b32 s{t0}, {sum((2*ORD[g_]) << (4*g_) for g_ in range(4)):#x}, s{t0}")
        a(f"s_and_b32 s{t0}, s{t0}, 7")
        a(f"s_add_u32 s{t0}, s{t0}, s{shalf}")
        a(f"s_lshl_b32 s{t1}, s{shs}, 3")
        a(f"s_add_u32 s{t0}, s{t0}, s{t1}")
        a(f"s_lshl_b32 s{t1}, s{sQT}, 4")
        a(f"s_add_u32 s{t1}, s{t1}, s{t0}")
        a(f"s_mul_i32 s{sOO}, s{t1}, 1792")
        a(f"s_mul_i32 s{sF2O}, s{t1}, {F2SP}")
        a(f"s_add_u32 s{sF2O}, s{sF2O}, {B_F2}")
    def late_addr():
        a(f"s_lshl_b32 s{t0}, s{sg4}, 3")
        a(f"s_lshr_b32 s{t1}, s{sidx}, 2")
        a(f"s_add_u32 s{t0}, s{t0}, s{t1}")
        a(f"s_and_b32 s{t1}, s{t0}, 2")
        a(f"s_xor_b32 s{t1}, s{t1}, 2")
        a(f"s_lshl_b32 s{t1}, s{t1}, 2")
        a(f"s_lshl_b32 s{t0}, s{t0}, 5")
        a(f"s_add_u32 s{t0}, s{t0}, s{t1}")
        a(f"s_and_b32 s{t1}, s{skq}, 1")
        a(f"s_mul_i32 s{sLL}, s{t1}, 14336")
        a(f"s_lshl_b32 s{t1}, s{t1}, 4")
        a(f"s_add_u32 s{t0}, s{t0}, s{t1}")
        a(f"s_and_b32 s{t1}, s{skq}, 2")
        a(f"s_lshl_b32 s{t1}, s{t1}, 1")
        a(f"s_add_u32 s{t0}, s{t0}, s{t1}")
        a(f"v_and_b32 v{LF}, 3, v0")
        a(f"v_add_u32 v{LF}, s{t0}, v{LF}")
        a(f"v_mul_u32_u24 v{LF}, {F2SP}, v{LF}")
        a(f"v_add_u32 v{LF}, {B_F2}, v{LF}")
        a(f"s_mul_i32 s{sLS}, s{t0}, 1792")
        a(f"s_add_u32 s{sLS2}, s{sLS}, 4096")
        a(f"s_mul_i32 s{t1}, s{t1}, 1792")
        a(f"s_add_u32 s{sLL}, s{sLL}, s{t1}")
        a(f"s_add_u32 s{sLL}, s{sLL}, {LS}")
        a(f"s_lshl_b32 s{t1}, s{skq}, 2")
        a(f"s_add_u32 s{t1}, s{t1}, {GBC + 16}")
        a(f"v_mov_b32 v{LM}, s{t1}")
        a(f"v_mov_b32 v{C0A}, {GBC}")
    def pre2():
        late_addr()
        for r in range(4): a(f"v_mov_b32 v{SB[0]+r}, 0")
        a("s_nop 1")
        for i in range(4): a(f"v_mfma_f32_32x32x16_bf16 {vr(O[i],16)}, {vr(SB[0],4)}, {vr(SB[0],4)}, 0")
        if STAMP: a("s_mov_b64 s[2:3], s[20:21]")
        a(f"s_add_u32 s{t0}, s{rKV}, s{sKVO}")
        a(f"s_addc_u32 s{t1}, s{rKV+1}, 0")
        for k in range(8):
            a(f"s_add_u32 s{KP[k]}, s{t0}, {8192*k + 4096}")
            a(f"s_addc_u32 s{KP[k]+1}, s{t1}, 0")
        if WOT >= 0:
            a(f"s_lshl_b32 s{t0}, s{sidx}, 2")
            a(f"s_add_u32 s{t0}, s{t0}, s{skq}")
            a(f"s_mul_i32 s{t0}, s{t0}, 25")
            a(f"v_min_u32 v{TAU}, 24, v0")
            a(f"v_add_u32 v{TAU}, s{t0}, v{TAU}")
            a(f"v_lshlrev_b32 v{TAU}, 7, v{TAU}")
    def getq(g):
        a(f"s_lshl_b32 s{t1}, s{shs}, 13")
        a(f"s_add_u32 s{t1}, s{t1}, {QX}")
        for i in range(4):
            a(f"s_add_u32 s{t0}, s{skq}, {1+i}")
            a(f"s_and_b32 s{t0}, s{t0}, 3")
            a(f"s_lshl_b32 s{t0}, s{t0}, 11")
            a(f"s_add_u32 s{t0}, s{t0}, s{t1}")
            a(f"v_add_u32 v{u0+i}, s{t0}, v{L16}")
        a(f"v_mov_b32 v{T+4}, {GBC + 8}")
        a(f"v_mov_b32 v{T+5}, {GBC + 12 if g else GBC - 4}")
    def getq2():
        lwait(a, "L_q", 0, 4, 0 if QFAST else 1, T + 4)
        for i in (3, 0, 1, 2):
            a(f"ds_read_b128 {vr(Q[i],4)}, v{u0+i}")
            a(f"ds_read_b128 {vr(Q[i]+4,4)}, v{u0+i} offset:1024")
    def nonce(tag):
        a(f"s_mov_b32 s{t3}, {SPIN}")
        a.lab(f"L_nonce{tag}")
        a(f"v_readfirstlane_b32 s{NONCE}, v{NV}")
        a(f"v_readfirstlane_b32 s{NONCE+1}, v{NV+1}")
        a(f"s_cmp_lg_u32 s{NONCE}, 0")
        a(f"s_cselect_b32 s{t2}, s{NONCE+1}, 0")
        a(f"s_cmp_lg_u32 s{t2}, 0")
        a(f"s_cbranch_scc0 L_nonce_retry{tag}")
    a(f"v_lshrrev_b32 v{u0}, 3, v0")
    a(f"v_lshrrev_b32 v{u1}, 4, v0")
    a(f"v_and_b32 v{u2}, 7, v0")
    a(f"s_lshl_b32 s{t0}, s{srb}, 7")
    a(f"s_lshl_b32 s{t1}, s{sw}, 5")
    a(f"s_add_u32 s{t0}, s{t0}, s{t1}")
    a(f"v_add_u32 v{u3}, s{t0}, v{u0}")
    a(f"v_mul_u32_u24 v{u3}, 896, v{u3}")
    a(f"v_xor_b32 v{u4}, v{u2}, v{u1}")
    a(f"v_lshl_add_u32 v{XD}, v{u4}, 4, v{u3}")
    a(f"v_xor_b32 v{XD+1}, 64, v{XD}")
    a(f"v_add_u32 v{XD+1}, {7168 - 1024}, v{XD+1}")
    a(f"s_mul_i32 s{t0}, s{sg4}, 224")
    a(f"s_mul_i32 s{t1}, s{sw}, {16*2688}")
    a(f"s_add_u32 s{t0}, s{t0}, s{t1}")
    a(f"s_mul_i32 s{t1}, s{shalf}, 896")
    a(f"s_add_u32 s{t1}, s{t1}, s{t0}")
    a(f"s_add_u32 s{t1}, s{t1}, 896")
    a(f"v_lshlrev_b32 v{u3}, 2, v{u1}")
    a(f"v_and_b32 v{u4}, 15, v0")
    a(f"v_xor_b32 v{u4}, v{u4}, v{u3}")
    a(f"v_cmp_lt_u32 vcc, 13, v{u4}")
    a(f"v_mul_u32_u24 v{u1}, 2688, v{u1}")
    a(f"v_lshl_add_u32 v{u1}, v{u4}, 4, v{u1}")
    a(f"v_add_u32 v{WD}, s{t1}, v{u1}")
    a(f"v_bfrev_b32 v{u4}, 2")
    a(f"v_cndmask_b32 v{WD}, v{WD}, v{u4}, vcc")
    a(f"s_mul_i32 s{t1}, s{shalf}, 112")
    a(f"s_add_u32 s{t1}, s{t1}, s{t0}")
    a(f"v_and_b32 v{u3}, 4, v{u3}")
    a(f"v_xor_b32 v{u2}, v{u2}, v{u3}")
    a(f"v_cmp_lt_u32 vcc, 6, v{u2}")
    a(f"v_mul_u32_u24 v{u0}, 2688, v{u0}")
    a(f"v_lshl_add_u32 v{u0}, v{u2}, 4, v{u0}")
    a(f"v_add_u32 v{WD+1}, s{t1}, v{u0}")
    a(f"v_cndmask_b32 v{WD+1}, v{WD+1}, v{u4}, vcc")
    if ROTN > 1:
        a(f"s_mul_i32 s{sROT}, s{srb}, {ROTA}")
        if ROTB:
            a(f"s_mul_i32 s{t0}, s{shalf}, {ROTB}")
            a(f"s_add_u32 s{sROT}, s{sROT}, s{t0}")
        a(f"s_mul_i32 s{t2}, s{sg4}, {ROTC}")
        a(f"s_add_u32 s{sROT}, s{sROT}, s{t2}")
        if ROTN & (ROTN - 1) == 0:
            a(f"s_and_b32 s{sROT}, s{sROT}, {ROTN-1}")
        else:
            a(f"s_mul_i32 s{t2}, s{sROT}, {(65536 + ROTN - 1)//ROTN}")
            a(f"s_lshr_b32 s{t2}, s{t2}, 16")
            a(f"s_mul_i32 s{t2}, s{t2}, {ROTN}")
            a(f"s_sub_u32 s{sROT}, s{sROT}, s{t2}")
        if ROTS != 1: a(f"s_mul_i32 s{sROT}, s{sROT}, {ROTS}")
    else:
        a(f"s_mov_b32 s{sROT}, 0")
    assert (ROTN - 1) * ROTS < 7
    a(f"s_lshl_b32 s{sXL}, s{sw}, 12")
    a(f"s_add_u32 s{sXL}, s{sXL}, {XOFF}")
    a(f"s_mul_i32 s{sWL}, s{sw}, 6144")
    a(f"s_mov_b32 s{rX+2}, 1835008")
    a(f"s_mov_b32 s{rX+3}, 0x00020000")
    a(f"s_mov_b32 s{rW+2}, 1204224")
    a(f"s_mov_b32 s{rW+3}, 0x00020000")
    XV = [XD, XD + 1, 20, 21]; AV = [WD, 22, 23, 24]; BV = [WD + 1, 25]
    sB = {4: scg, 5: su, 6: sFB}
    def prep(k):
        ws = sB.get(k, sWS_)
        a(f"s_lshl_b32 s{sXS}, s{sROT}, 7")
        a(f"s_mul_i32 s{ws}, s{sROT}, 172032")
        a(f"s_add_u32 m0, s{sXL}, {(k % 3) * STAGE}")
        a(f"s_add_u32 s{sROT}, s{sROT}, 1")
        a(f"s_cmp_eq_u32 s{sROT}, 7")
        a(f"s_cselect_b32 s{sROT}, 0, s{sROT}")
    def bpart(k):
        a(f"s_add_u32 m0, s{sWL}, {(k % 3) * STAGE + 2048}")
        a("s_nop 0")
        for i in range(2): a(f"buffer_load_dwordx4 v{BV[i]}, {S4(rW)}, s{sB.get(k, sWS_)} offen offset:{3072*i} lds")
    def burst(k, mid=None):
        ws = sB.get(k, sWS_)
        for i in range(4):
            a(f"buffer_load_dwordx4 v{XV[i]}, {S4(rX)}, s{sXS} offen offset:{1024*i} lds")
            if mid and i == 1: mid()
        a(f"s_add_u32 m0, s{sWL}, {(k % 3) * STAGE}")
        a("s_nop 0")
        a(f"buffer_load_dwordx4 v{AV[0]}, {S4(rW)}, s{ws} offen lds")
        a(f"s_add_u32 m0, s{sWL}, {(k % 3) * STAGE + 1024}")
        a("s_nop 0")
        for i, o_ in ((1, 0), (2, 2048), (3, 3072)): a(f"buffer_load_dwordx4 v{AV[i]}, {S4(rW)}, s{ws} offen offset:{o_} lds")
        if k < 4: bpart(k)
    def more_addr():
        a(f"v_add_u32 v{XV[2]}, {14336 - 2048}, v{XV[0]}")
        a(f"v_add_u32 v{XV[3]}, {14336 - 2048}, v{XV[1]}")
        a(f"v_add_u32 v{AV[1]}, {4*2688}, v{AV[0]}")
        a(f"v_add_u32 v{AV[2]}, {8*2688 - 2048}, v{AV[0]}")
        a(f"v_add_u32 v{AV[3]}, {12*2688 - 3072}, v{AV[0]}")
        a(f"v_add_u32 v{BV[1]}, {8*2688 - 3072}, v{BV[0]}")
    prep(0)
    more_addr()
    a(f"s_cmp_eq_u32 s{sb}, 0")
    a("s_waitcnt lgkmcnt(0)")
    a(f"s_cselect_b32 s{rX}, s4, s10")
    a(f"s_cselect_b32 s{rX+1}, s5, s11")
    a(f"s_cselect_b32 s{rW}, s6, s12")
    a(f"s_cselect_b32 s{rW+1}, s7, s13")
    stamp_init()
    stamp(a, "karg")
    burst(0)
    stamp(a, "iss0")
    if SCP:
        a("s_getpc_b64 s[0:1]")
        a("s_and_b32 s0, s0, 0xfffff000")
        a(f"s_lshl_b32 s{t0}, s{sidx}, 1")
        a(f"s_and_b32 s{t1}, s{sw}, 1")
        a(f"s_add_u32 s{t0}, s{t0}, s{t1}")
        a(f"s_lshl_b32 s{t0}, s{t0}, 6")
        a(f"s_lshr_b32 s{t1}, s{sw}, 1")
        a(f"s_mul_i32 s{t1}, s{t1}, 12288")
        a(f"s_add_u32 s{t0}, s{t0}, s{t1}")
        a(f"s_add_u32 s0, s0, s{t0}")
        a("s_addc_u32 s1, s1, 0")
        for k in range(3): a(f"s_load_dword s3, s[0:1], {4096*k}")
    dbg_desc()
    ids2a(0)
    a(f"s_lshr_b32 s{t0}, s{srb}, 1")
    a(f"s_lshl_b32 s{t0}, s{t0}, 7")
    a(f"s_add_u32 s{sWOS}, s{t0}, s{sKVO}")
    a(f"v_lshlrev_b32 v{PTA}, 10, v0")
    ids2b(0)
    a(f"v_lshrrev_b32 v{u2}, 5, v0")
    a(f"s_and_b32 s{t1}, s{sidx}, 3")
    a(f"s_cmp_eq_u32 s{t1}, 3")
    a(f"s_cselect_b32 s{t0}, 8, 16")
    a(f"s_lshl_b32 s{t1}, s{t1}, 8")
    a(f"v_lshrrev_b32 v{u0}, 4, v0")
    a(f"v_lshlrev_b32 v{u1}, 2, v{u0}")
    a(f"v_and_b32 v{u3}, 15, v0")
    a(f"v_xor_b32 v{u1}, v{u1}, v{u3}")
    a(f"v_cmp_le_u32 vcc, s{t0}, v{u1}")
    a(f"v_mul_u32_u24 v{u0}, 896, v{u0}")
    a(f"v_lshl_add_u32 v{u0}, v{u1}, 4, v{u0}")
    a(f"v_add_u32 v{WOA}, s{t1}, v{u0}")
    a(f"v_bfrev_b32 v{u0}, 2")
    a(f"v_cndmask_b32 v{WOA}, v{WOA}, v{u0}, vcc")
    a(f"s_lshl_b32 s{t2}, s{skq}, 2")
    a(f"s_cmp_lt_u32 s{t2}, s{t0}")
    a(f"s_cselect_b32 s{XM}, 1, 0")
    a(f"s_mul_i32 s{sOUTO}, s{sb}, 896")
    a(f"s_add_u32 s{sOUTO}, s{sOUTO}, s{t1}")
    a(f"s_and_b32 s{t2}, s{skq}, 2")
    a(f"s_lshl_b32 s{t1}, s{t2}, 6")
    a(f"s_add_u32 s{sOUTO}, s{sOUTO}, s{t1}")
    a(f"s_lshl_b32 s{sRT}, s{sg4}, 3")
    a(f"s_lshr_b32 s{t0}, s{sidx}, 2")
    a(f"s_add_u32 s{sRT}, s{sRT}, s{t0}")
    a(f"s_bfe_u32 s{sPE}, s{sRT}, 0x10001")
    a(f"s_lshl_b32 s{sRT}, s{sRT}, 1")
    a(f"v_bfe_u32 v{u0}, v0, 2, 2")
    a(f"v_xor_b32 v{u1}, s{t2}, v{u0}")
    a(f"v_lshlrev_b32 v{u1}, 6, v{u1}")
    a(f"v_lshl_add_u32 v{u1}, v{u0}, 8, v{u1}")
    a(f"v_and_b32 v{u0}, 1, v0")
    a(f"v_lshl_add_u32 v{u1}, v{u0}, 5, v{u1}")
    a(f"v_bfe_u32 v{u0}, v0, 4, 1")
    a(f"v_lshl_add_u32 v{u1}, v{u0}, 4, v{u1}")
    a(f"v_bfe_u32 v{u0}, v0, 1, 1")
    a(f"v_lshl_add_u32 v{u1}, v{u0}, 3, v{u1}")
    HSTEP = [4, 28, 56]
    for t in range(3):
        a(f"v_mul_u32_u24 v{u0}, {HSTEP[t]*256}, v{u2}")
        a(f"v_add_u32 v{WA+t}, v{u1}, v{u0}")
    a(f"s_and_b32 s{t2}, s{skq}, 1")
    a(f"s_mul_i32 s{t1}, s{t2}, 14336")
    a(f"s_add_u32 s{t1}, s{t1}, {ES}")
    a(f"v_add_u32 v{OA}, s{t1}, v{L16}")
    a(f"v_and_b32 v{u0}, 31, v0")
    a(f"v_mul_u32_u24 v{u1}, 1792, v{u2}")
    a(f"v_lshl_add_u32 v{u1}, v{u0}, 4, v{u1}")
    a(f"v_add_u32 v{OA+1}, s{t1}, v{u1}")
    a(f"v_mul_u32_u24 v{u1}, 3584, v{u2}")
    a(f"v_lshl_add_u32 v{u1}, v{u0}, 3, v{u1}")
    a(f"v_add_u32 v{OA+2}, s{t1}, v{u1}")
    a(f"s_lshl_b32 s{t0}, s{skq}, 12")
    a(f"s_add_u32 s{t0}, s{t0}, {TX}")
    a(f"v_add_u32 v{TR}, s{t0}, v{L16}")
    a(f"v_and_b32 v{u1}, 7, v0")
    a(f"v_lshlrev_b32 v{u3}, 1, v{u2}")
    a(f"v_xor_b32 v{u1}, v{u1}, v{u3}")
    a(f"v_lshlrev_b32 v{u1}, 4, v{u1}")
    a(f"v_lshl_add_u32 v{u1}, v{u0}, 7, v{u1}")
    a(f"v_add_u32 v{TW}, s{t0}, v{u1}")
    a(f"v_lshrrev_b32 v{u0}, 3, v0")
    a(f"v_xor_b32 v{u1}, v{u0}, v0")
    a(f"v_and_b32 v{u1}, 7, v{u1}")
    a(f"s_add_u32 s{t0}, s{sRT}, s{t2}")
    a(f"s_lshl_b32 s{t0}, s{t0}, 5")
    a(f"v_add_u32 v{u0}, s{t0}, v{u0}")
    a(f"v_mul_u32_u24 v{u0}, 1792, v{u0}")
    a(f"v_lshl_add_u32 v{OUTA}, v{u1}, 4, v{u0}")
    a(f"s_lshl_b32 s{t0}, s{t2}, 2")
    a(f"s_add_u32 s{t0}, s{t0}, {GBC + 16}")
    a(f"v_mov_b32 v{TW+1}, s{t0}")
    a(f"s_lshr_b32 s{t1}, s{skq}, 1")
    a(f"s_add_u32 s{t0}, s{sRT}, s{t1}")
    a(f"s_lshl_b32 s{t0}, s{t0}, 4")
    a(f"s_lshl_b32 s{t1}, s{sPE}, 3")
    a(f"s_add_u32 s{t0}, s{t0}, s{t1}")
    a(f"s_and_b32 s{t1}, s{skq}, 1")
    a(f"s_lshl_b32 s{t1}, s{t1}, 1")
    a(f"s_lshl_b32 s{t1}, s{t1}, 1")
    a(f"s_add_u32 s{sRT}, s{t0}, s{t1}")
    a(f"v_and_b32 v{u0}, 3, v0")
    a(f"v_add_u32 v{u0}, s{sRT}, v{u0}")
    a(f"v_mul_u32_u24 v{u0}, {F2SP}, v{u0}")
    a(f"v_add_u32 v{F2A}, {B_F2}, v{u0}")
    getq(0)
    if STL_:
        a(f"s_add_u32 s0, s{rKV}, s{sWOS}")
        a(f"s_addc_u32 s1, s{rKV+1}, 0")
    if VIS:
        a("s_branch L_vis")
        a.lab("L_visb")
    stamp(a, "lsetup")
    for k in range(1, 7):
        prep(k)
        if k >= 2:
            a(f"s_waitcnt vmcnt({10 if k - 1 < 4 else 8})")
            a("s_barrier")
        burst(k)
        if SLD and k + 1 == SLD:
            a(f"s_lshl_b32 s{t0}, s{sg4}, 5")
            a(f"s_add_u32 s{t0}, s{t0}, 128")
            a(f"s_load_dwordx2 {S2(NONCE)}, {S2(rDBG)}, s{sDL} {SGL}")
            a(f"s_load_dwordx8 s[88:95], {S2(rDBG)}, s{t0} {SGL}")
    BE = int(E("BE", "0"))
    for k in (6, 4, 5)[:BE]: bpart(k)
    a(f"s_waitcnt vmcnt({8 + 2*BE})")
    a("s_barrier")
    for k in (6, 4, 5)[BE:]: bpart(k)
    if not SLD: a(f"buffer_load_dwordx2 {vr(NV,2)}, off, {S4(rDBG)}, s{sDL} sc1")
    m_ = (1 << max(1, 4 * PRET)) - 1
    def touch():
        a(f"buffer_load_dword v{T+9}, v{F1A}, {S4(rWS)}, 0 offen sc1")
        a(f"s_mov_b32 exec_lo, {m_ & 0xffffffff:#x}")
        a(f"s_mov_b32 exec_hi, {m_ >> 32:#x}")
        a(f"buffer_load_dword v{T+8}, v{PTA}, {S4(rKV)}, s{sWOS} offen {TF}")
        a("s_mov_b64 exec, -1")
    if STL_: a(f"buffer_load_dword v{T+9}, v{F1A}, {S4(rWS)}, 0 offen sc1")
    elif TEAR != 1: touch()
    NX = (2 if STL_ else 1 if TEAR == 1 else 3) - (1 if SLD else 0)
    if SLD:
        a(f"s_getreg_b32 s{t2}, hwreg(HW_REG_XCC_ID)")
        a(f"s_and_b32 s{t2}, s{t2}, 15")
        a(f"s_lshl_b32 s{t0}, s{sx}, 4")
        a(f"s_or_b32 s{t2}, s{t2}, s{t0}")
        a(f"s_or_b32 s{t2}, s{t2}, 0x80")
        a(f"s_mul_i32 s{t2}, s{t2}, 0x01010101")
        a(f"s_lshl_b32 s{t0}, s{sw}, 4")
        a(f"s_add_u32 s{t0}, s{t0}, {NRC}")
        a(f"v_mov_b32 v{T+6}, s{t0}")
        a("s_waitcnt lgkmcnt(0)")
        a(f"s_xor_b32 s{t1}, s88, s{t2}")
        for k in range(89, 96):
            a(f"s_xor_b32 s{t0}, s{k}, s{t2}")
            a(f"s_or_b32 s{t1}, s{t1}, s{t0}")
        a(f"v_mov_b32 v{NV}, s{NONCE}")
        a(f"v_mov_b32 v{NV+1}, s{NONCE+1}")
        a(f"v_mov_b32 v{NV+2}, s{t1}")
        a(f"ds_write_b96 v{T+6}, {vr(NV,3)}")
        a("s_waitcnt lgkmcnt(0)")
    a(f"s_waitcnt vmcnt({6 + NX})")
    stamp(a, "lw6")
    a("s_barrier")
    if LPR: a("s_setprio 0")
    pre2()
    if B2:
        a(f"s_waitcnt vmcnt({NX + 2})")
        a("s_barrier")
    a(f"s_waitcnt vmcnt({NX})")
    a("s_barrier")
    def touch2():
        m2 = ((1 << (4 * PRET2)) - 1) & ~m_
        a(f"s_mov_b32 exec_lo, {m2 & 0xffffffff:#x}")
        a(f"s_mov_b32 exec_hi, {m2 >> 32:#x}")
        a(f"buffer_load_dword v{T+10}, v{PTA}, {S4(rKV)}, s{sWOS} offen sc1")
        a("s_mov_b64 exec, -1")
    if PRET2 and T2POS == "b6": touch2()
    if not SLD: a(f"s_waitcnt vmcnt({NX - 1})")
    nonce("L")
    if PRET2 and T2POS == "late": touch2()
    a("s_setprio 2")
    stamp(a, "lready")
    a("s_branch L_ph2")

    a.lab("L_comp")
    a("s_setprio 3")
    a(f"s_getreg_b32 s{t2}, hwreg(HW_REG_XCC_ID)")
    a(f"s_and_b32 s{t2}, s{t2}, 15")
    a(f"s_lshl_b32 s{t0}, s{sx}, 4")
    a(f"s_or_b32 s{t2}, s{t2}, s{t0}")
    a(f"s_or_b32 s{t2}, s{t2}, 0x80")
    a(f"s_lshl_b32 s{t1}, s{sg4}, 5")
    a(f"s_add_u32 s{t1}, s{t1}, 128")
    a(f"v_mov_b32 v{NV}, s{t2}")
    if not SLD:
        a(f"v_and_b32 v{NA}, 3, v0")
        a(f"v_lshlrev_b32 v{NA}, 3, v{NA}")
        a(f"v_add_u32 v{NA}, s{t1}, v{NA}")
    a(f"s_add_u32 s{t1}, s{t1}, s{sidx}")
    a("v_mov_b32 v238, 0")
    a("v_mov_b32 v239, 0")
    a("s_waitcnt lgkmcnt(0)")
    def ftouch(pairs, wave, tag):
        a(f"s_cmp_lg_u32 s{sw}, {wave}")
        a(f"s_cbranch_scc1 L_ft{tag}")
        a(f"s_add_u32 s{t0}, s{sg4}, 1")
        a(f"s_and_b32 s{t0}, s{t0}, 2")
        a(f"s_cbranch_scc1 L_ft{tag}")
        a(f"s_and_b32 s{t0}, s{sg4}, 1")
        a(f"s_lshl_b32 s{t0}, s{t0}, 5")
        a(f"s_add_u32 s{t0}, s{t0}, s{sidx}")
        a(f"v_and_b32 v{T+6}, 31, v0")
        a(f"v_lshrrev_b32 v{T+7}, 5, v0")
        a(f"v_mul_u32_u24 v{T+8}, 896, v{T+6}")
        a(f"v_lshl_add_u32 v{T+8}, v{T+7}, 7, v{T+8}")
        a(f"v_min_u32 v{T+6}, 20, v{T+6}")
        a(f"v_mul_u32_u24 v{T+7}, 172032, v{T+7}")
        a(f"v_lshl_add_u32 v{T+9}, v{T+6}, 7, v{T+7}")
        a(f"s_mul_i32 s{t3}, s{t0}, {32*896}")
        a(f"s_mul_i32 s{t0}, s{t0}, 2688")
        for pr in pairs:
            c_ = 2 * int(pr) - 1
            a(f"s_add_u32 s{sROT}, s{t0}, {c_*172032}")
            a(f"buffer_load_dword v{T+10}, v{T+9}, {S4(rW)}, s{sROT} offen")
            a(f"buffer_load_dword v{T+11}, v{T+8}, {S4(rX)}, s{t3} offen offset:{c_*128}")
        a.lab(f"L_ft{tag}")
    if FT:
        a(f"s_cmp_eq_u32 s{sb}, 0")
        a(f"s_cselect_b32 s{rX}, s4, s10")
        a(f"s_cselect_b32 s{rX+1}, s5, s11")
        a(f"s_cselect_b32 s{rW}, s6, s12")
        a(f"s_cselect_b32 s{rW+1}, s7, s13")
        a(f"s_mov_b32 s{rX+2}, 1835008")
        a(f"s_mov_b32 s{rX+3}, 0x00020000")
        a(f"s_mov_b32 s{rW+2}, 1204224")
        a(f"s_mov_b32 s{rW+3}, 0x00020000")
        ftouch(FT.split("/")[0], 5, "a")
    dbg_desc()
    if not SLD:
        a(f"s_mul_i32 s{XM}, s{t2}, 0x01010101")
        a(f"s_mov_b32 s{XM+1}, s{XM}")
    a("s_mov_b64 exec, 1")
    if not SLD: a(f"v_mov_b32 v{NA}, s{sDL}")
    a(f"s_cmp_lg_u32 s{sw}, 4")
    a("s_cbranch_scc1 L_noreg")
    a(f"buffer_store_byte v{NV}, off, {S4(rDBG)}, s{t1}")
    if UBY: a(f"buffer_load_ubyte v{T+12}, off, {S4(rDBG)}, s{t1} sc1")
    a(f"s_cmp_lg_u32 s{sidx}, 0")
    a("s_cbranch_scc1 L_noreg")
    a(f"s_or_b32 s{t0}, s{RT}, 1")
    a(f"s_or_b32 s{t2}, s{RT+1}, 1")
    a(f"v_mov_b32 v236, s{t0}")
    a(f"v_mov_b32 v237, s{t2}")
    a(f"buffer_atomic_cmpswap_x2 v[236:239], off, {S4(rDBG)}, s{sDL} sc1")
    a.lab("L_noreg")
    a("s_mov_b64 exec, -1")
    stamp_init()
    a(f"s_and_b32 s{stt}, s{sw}, 1")
    a(f"s_bfe_u32 s{scg}, s{sw}, 0x10001")
    a(f"v_and_b32 v{u0}, 31, v0")
    a(f"v_bfe_u32 v{u1}, v0, 1, 3")
    a(f"v_lshrrev_b32 v{u2}, 5, v0")
    a(f"v_xor_b32 v{u1}, v{u1}, v{u2}")
    a(f"v_lshlrev_b32 v{u1}, 4, v{u1}")
    a(f"v_lshl_add_u32 v{u1}, v{u0}, 7, v{u1}")
    a(f"s_lshl_b32 s{t0}, s{stt}, 13")
    a(f"s_add_u32 s{t0}, s{t0}, {XOFF}")
    for ks in range(4):
        a(f"v_xor_b32 v{XA+ks}, {32*ks}, v{u1}")
        a(f"v_add_u32 v{XA+ks}, s{t0}, v{XA+ks}")
    a(f"v_bfe_u32 v{u0}, v0, 4, 1")
    a(f"v_and_b32 v{u1}, 3, v0")
    a(f"v_lshlrev_b32 v{u1}, 3, v{u1}")
    a(f"v_lshl_add_u32 v{u0}, v{u0}, 5, v{u1}")
    a(f"s_mul_i32 s{t0}, s{scg}, 112")
    a(f"v_add_u32 v{WA1}, s{t0}, v{u0}")
    a(f"v_add_u32 v{WA1+1}, 56, v{WA1}")
    a(f"s_mul_i32 s{t0}, s{scg}, 56")
    a(f"v_add_u32 v{WA1+2}, s{t0}, v{u0}")
    a("s_mov_b32 exec_lo, 0x88880000")
    a("s_mov_b32 exec_hi, 0x88880000")
    a(f"v_or_b32 v{WA1}, 192, v{WA1}")
    a(f"v_or_b32 v{WA1+1}, 192, v{WA1+1}")
    a(f"v_or_b32 v{WA1+2}, 64, v{WA1+2}")
    a("s_mov_b64 exec, -1")
    a(f"v_bfe_u32 v{u1}, v0, 2, 2")
    a(f"v_mul_u32_u24 v{u2}, 3072, v{u2}")
    a(f"v_lshl_add_u32 v{u3}, v{u1}, 8, v{u2}")
    a(f"v_lshlrev_b32 v{u4}, 6, v{u1}")
    for c in range(2):
        a(f"v_xor_b32 v{WA1+c}, v{WA1+c}, v{u4}")
        a(f"v_add_u32 v{WA1+c}, v{WA1+c}, v{u3}")
    a(f"v_lshl_add_u32 v{u3}, v{u1}, 7, v{u2}")
    a(f"v_lshlrev_b32 v{u4}, 5, v{u1}")
    a(f"v_and_b32 v{u4}, 64, v{u4}")
    a(f"v_xor_b32 v{WA1+2}, v{WA1+2}, v{u4}")
    a(f"v_add_u32 v{WA1+2}, v{WA1+2}, v{u3}")
    Z = FR + 60
    for r in range(20): a(f"v_mov_b32 v{Z+r}, 0")
    a(f"v_mov_b32 v{u0}, {GBC}")
    a(f"ds_write_b128 v{u0}, {vr(Z+16,4)}")
    a(f"ds_write_b128 v{u0}, {vr(Z+16,4)} offset:16")
    for t_ in range(6): a(f"v_mfma_f32_32x32x16_bf16 {vr(ACC+16*t_,16)}, {vr(Z+16,4)}, {vr(Z+16,4)}, 0")
    a("s_mov_b32 exec_hi, 0")
    a(f"v_mov_b32 v{Z}, 0x3f80")
    a(f"v_mov_b32 v{Z+4}, 0x3f80")
    a("s_mov_b32 exec_lo, 0x10000000")
    a(f"v_mov_b32 v{Z+8}, 0x3f80")
    a(f"v_mov_b32 v{Z+12}, 0x3f80")
    a("s_mov_b64 exec, -1")
    def capture(f):
        keep = a.l; a.l = []
        f()
        got = [x.strip() for x in a.l]; a.l = keep
        return got
    lateA = capture(lambda: ids2a(1, False)); lateB = capture(lambda: ids2b(1))
    ws_desc()
    a(f"v_lshlrev_b32 v{L16}, 4, v0")
    a(f"v_and_b32 v{u0}, 0x33, v0")
    a(f"v_bfe_u32 v{u1}, v0, 2, 1")
    a(f"v_lshl_add_u32 v{u0}, v{u1}, 3, v{u0}")
    a(f"v_bfe_u32 v{u1}, v0, 3, 1")
    a(f"v_lshl_add_u32 v{u0}, v{u1}, 2, v{u0}")
    a(f"v_lshlrev_b32 v{TAU}, 4, v{u0}")
    sE0, sSC, sDLT, sCNT = sXS, sWS_, sWL, sXL
    a(f"s_lshl_b32 s{t0}, s{scg}, 2")
    a(f"s_lshr_b32 s{t1}, s{srb}, 2")
    a(f"s_add_u32 s{t0}, s{t0}, s{t1}")
    a(f"s_mul_i32 s{sF1O}, s{t0}, {F1SP}")
    a(f"s_lshl_b32 s{t0}, s{shalf}, 2")
    a(f"s_and_b32 s{t1}, s{srb}, 3")
    a(f"s_add_u32 s{t0}, s{t0}, s{t1}")
    a(f"s_lshl_b32 s{t0}, s{t0}, 1")
    a(f"s_add_u32 s{t0}, s{t0}, s{stt}")
    a(f"s_lshl_b32 s{t0}, s{t0}, 3")
    a(f"s_add_u32 s{sF1O}, s{sF1O}, s{t0}")
    a(f"s_add_u32 s{sF1O}, s{sF1O}, {X_F1}")
    if TEAR == 2: a(f"buffer_load_dword v{T+9}, off, {S4(rWS)}, s{sF1O} sc1")
    a(f"s_lshl_b32 s{t0}, s{srb}, 1")
    a(f"s_add_u32 s{t0}, s{t0}, s{stt}")
    a(f"s_lshl_b32 s{t1}, s{scg}, 6")
    a(f"s_add_u32 s{t0}, s{t0}, s{t1}")
    a(f"s_lshl_b32 s{sE0}, s{t0}, 13")
    SE = [sE0, rX, rX + 1, rX + 2]
    for t_, d_ in ((1, 4096), (2, 64 * 4096), (3, 65 * 4096)): a(f"s_add_u32 s{SE[t_]}, s{sE0}, {d_}")
    a(f"s_sub_u32 s{t0}, s{sw}, 4")
    a(f"s_lshl_b32 s{t0}, s{t0}, 12")
    a(f"s_add_u32 s{t0}, s{t0}, {QX}")
    a(f"v_add_u32 v{QW}, s{t0}, v{L16}")
    if SLD:
        a(f"s_lshl_b32 s{t0}, s{sw}, 4")
        a(f"s_add_u32 s{t0}, s{t0}, {NRC - 64}")
        a(f"v_mov_b32 v{PTA}, s{t0}")
    a(f"s_mov_b32 s{sSC}, {CSCALE:#x}")
    a(f"s_mov_b32 s{sCNT}, 0")
    a(f"s_mov_b32 s{sDLT}, 0")
    if FT and FT.split("/")[1]: ftouch(FT.split("/")[1], 6, "b")
    if CPF:
        a(f"s_cmp_lg_u32 s{sw}, 5")
        a("s_cbranch_scc1 L_nocpf")
        a(f"s_sub_u32 s{t0}, s{sidx}, 1")
        a(f"s_cmp_ge_u32 s{t0}, 3")
        a("s_cbranch_scc1 L_nocpf")
        a(f"s_getpc_b64 {S2(NONCE)}")
        a.lab("L_pc")
        a(f"s_lshl_b32 s{t0}, s{t0}, 13")
        a(f"v_lshlrev_b32 v{u0}, 7, v0")
        a(f"v_add_u32 v{u0}, s{t0}, v{u0}")
        a(f"v_min_u32 v{u0}, L_fallback-L_pc, v{u0}")
        a(f"global_load_dword v{T+10}, v{u0}, {S2(NONCE)}")
        a.lab("L_nocpf")
    a(f"s_cmp_lg_u32 s{shalf}, 0")
    a("s_cbranch_scc1 P1_v1")
    def reads(ks):
        b = FR + 20 * ks
        out = [f"ds_read_b128 {vr(b+4*e,4)}, v{XA+ks} offset:{4096*e}" for e in range(2)]
        for c in range(3):
            for h in range(2):
                off = 6144 * ks + (1024 * h if c < 2 else 2048 + 512 * h)
                out.append(f"ds_read_b64_tr_b16 {vr(b+8+4*c+2*h,2)}, v{WA1+c} offset:{off}")
        return [out[0], out[2], out[3], out[1]] + out[4:]
    def mfma1(ks, e, c, ori):
        b = FR + 20 * ks
        x = vr(b + 4 * e, 4); w = vr(b + 8 + 4 * c, 4)
        p, q = (w, x) if ori[c] == 'n' else (x, w)
        d = vr(ACC + 16 * (2 * c + e), 16)
        return f"v_mfma_f32_32x32x16_bf16 {d}, {p}, {q}, {d}"
    tiles = [(0, 0), (1, 0), (0, 1), (1, 1), (0, 2), (1, 2)]
    pend = []; cnt = [0]; ctx = [""]
    def epi(t_):
        e, c = tiles[t_]
        d = ACC + 16 * (2 * c + e)
        P = d
        out = []
        if c == 2: out += [[f"v_mul_f32 v{d+r}, s{sSC}, v{d+r}"] for r in range(16)]
        out += [[f"v_cvt_pk_bf16_f32 v{P+i}, v{d+2*i}, v{d+2*i+1}"] for i in range(8)]
        if c == 2:
            out += [[f"ds_write_b128 v{QW}, {vr(P,4)} offset:{2048*e}"], [f"ds_write_b128 v{QW}, {vr(P+4,4)} offset:{2048*e+1024}"]]
        else:
            out.insert(4, ("st", t_, 0, P)); out.append(("st", t_, 1, P + 4))
        return out
    def emit(x):
        a(x); cnt[0] += 1
    def drain(nmax):
        n_ = 0
        while pend and n_ < nmax and pend[0][0] <= cnt[0]:
            g_ = pend.pop(0)[1]
            if g_[0] == "st": stq.append(g_)
            else:
                for x in g_: emit(x)
                n_ += len(g_)
    stq = []; nm = [0, -99]
    def store():
        if not stq or nm[0] - nm[1] < SP: return 0
        _, t_, f, P = stq.pop(0)
        tag = f"{ctx[0]}{t_}{f}"
        emit(f"s_cbranch_vccz L_wt{tag}")
        emit(f"buffer_store_dwordx4 {vr(P,4)}, v{TAU}, {S4(rWS)}, s{SE[t_]} offen offset:{1024*f} {KVS}")
        a.lab(f"L_st{tag}")
        if f: stamp(a, f"st{t_}")
        tails.append((tag, P, SE[t_], 1024 * f)); nm[1] = nm[0]
        return 2
    def fill(nmax):
        if pend and pend[0][0] > cnt[0]:
            gap = min(nmax - 1, pend[0][0] - cnt[0])
            a(f"s_nop {gap-1}"); cnt[0] += gap
            nmax -= gap
        drain(nmax)
    for v, ori in enumerate(["nnn", "vvn"]):
        a.lab(f"P1_v{v}")
        if v == 1: a(f"v_add_u32 v{TAU}, 2048, v{L16}")
        a("s_waitcnt lgkmcnt(0)")
        stamp(a, "setup")
        mm = [(e, c) for c in range(3) for e in range(2)]
        def cstamps():
            if STAMP or DIAG:
                if len(DIAG) == 2 and DIAG[0] == "c" and DIAG != "c0":
                    a("s_memrealtime s[82:83]")
                    a(f"s_cmp_eq_u32 s{sCNT}, {int(DIAG[1])}")
                    a("s_waitcnt lgkmcnt(0)")
                    a("s_cselect_b32 s80, s82, s80")
                for nm in (STL if STAMP else []):
                    if len(nm) == 2 and nm[0] == "c" and nm != "c0":
                        a(f"s_cmp_eq_u32 s{sCNT}, {int(nm[1])}")
                        a(f"s_cbranch_scc1 L_ns{v}{nm}")
                        a.lab(f"L_nb{v}{nm}")
                        stails.append((f"{v}{nm}", nm))
        a("s_barrier")
        stamp(a, "c0")
        for x in reads(0): a(x)
        if FT and len(FT.split("/")) > 2: ftouch(FT.split("/")[2], 7, f"c{v}")
        a.raw(".p2align 6")
        a.lab(f"P1_loop{v}")
        for ks, rk in ((3, 1), (0, 2), (1, 3)):
            rd = reads(rk)
            if ks != 3: a("s_waitcnt lgkmcnt(8)")
            for j, (e, c) in enumerate(mm):
                a(mfma1(ks, e, c, ori))
                for x in rd[2*j:2*j+2]: a(x)
                if ks == 3 and j == 4:
                    a(f"s_add_u32 s{sCNT}, s{sCNT}, 1")
                    a(f"s_mov_b32 s{sDLT}, {STAGE}")
                if ks == 0 and j == 4:
                    a(f"s_cmp_eq_u32 s{sCNT}, 3")
                    a(f"s_cselect_b32 s{sDLT}, {(-2*STAGE) & 0xffffffff:#x}, s{sDLT}")
                if ks == 1 and j == 4:
                    for i in range(4): a(f"v_add_u32 v{XA+i}, s{sDLT}, v{XA+i}")
                if ks == 1 and j == 5:
                    for i in range(4, 7): a(f"v_add_u32 v{XA+i}, s{sDLT}, v{XA+i}")
        a("s_waitcnt lgkmcnt(8)")
        rd = reads(0)
        for j, (e, c) in enumerate(mm):
            a(mfma1(2, e, c, ori))
            if j == BPOS - 1: a("s_waitcnt lgkmcnt(0)")
            if j == BPOS:
                a("s_barrier")
                cstamps()
            if j > BPOS:
                n_ = -(-8 // (5 - BPOS)) if j < 5 else 8
                for x in rd[:n_]: a(x)
                rd = rd[n_:]
        if BPOS == 5:
            for x in rd: a(x)
        a(f"s_cmp_lt_u32 s{sCNT}, 4")
        a(f"s_cbranch_scc1 P1_loop{v}")
        m4 = mm[:4]
        for ch in (4, 5):
            dl = STAGE if ch == 4 else (-2 * STAGE) & 0xffffffff
            for ks, rk in ((3, 1), (0, 2), (1, 3)):
                rd = reads(rk)[:6]
                if ks != 3: a("s_waitcnt lgkmcnt(6)")
                for j, (e, c) in enumerate(mm if (ch == 4 and ks == 3) else m4):
                    a(mfma1(ks, e, c, ori))
                    for x in rd[2*j:2*j+2]: a(x)
                    if ch == 5 and ks == 3 and j == 0 and not SLD:
                        a(f"buffer_load_dwordx2 {vr(NV,2)}, v{NA}, {S4(rDBG)}, 0 offen sc1")
                    if ks == 0 and j == 3: a(f"s_mov_b32 s{sDLT}, {dl:#x}")
                    if ks == 1 and j == 3:
                        for i in range(4): a(f"v_add_u32 v{XA+i}, s{sDLT}, v{XA+i}")
            a("s_waitcnt lgkmcnt(6)")
            rd = reads(0)[:6]
            a(mfma1(2, *m4[0], ori))
            for i in range(4, 7): a(f"v_add_u32 v{XA+i}, s{sDLT}, v{XA+i}")
            a("s_waitcnt lgkmcnt(0)")
            a(mfma1(2, *m4[1], ori))
            a("s_barrier")
            stamp(a, f"d{ch+1}")
            a(mfma1(2, *m4[2], ori))
            for x in rd[:3]: a(x)
            a(mfma1(2, *m4[3], ori))
            for x in rd[3:]: a(x)
        rd = reads(1)[:6] + reads(2)[:6]
        for j, (e, c) in enumerate(m4):
            a(mfma1(3, e, c, ori))
            for x in rd[3*j:3*j+3]: a(x)
        for x in reads(3)[:4]: a(x)
        ctx[0] = str(v); pend.clear(); cnt[0] = 0; stq.clear(); nm[:] = [0, -99]
        seq = [(0, 0), (0, 1), (1, 0), (1, 1), (2, 0), (2, 1), (3, 0), (3, 1)] + [(k, t_) for t_ in range(2, 4) for k in range(4)]
        for i, (k, t_) in enumerate(seq):
            if i == 0: emit("s_waitcnt lgkmcnt(14)")
            if i == 2: emit("s_waitcnt lgkmcnt(12)")
            if i == 4: emit("s_waitcnt lgkmcnt(6)")
            if i == 6:
                emit("s_waitcnt lgkmcnt(0)" if SLD else "s_waitcnt vmcnt(0) lgkmcnt(0)")
                stamp(a, "last")
            emit(mfma1(k, *tiles[t_], ori))
            first = cnt[0]; nm[0] += 1
            store()
            if i == 0:
                for x in reads(3)[4:6]: emit(x)
            if i == 4 and SLD: emit(f"ds_read_b96 {vr(NV,3)}, v{PTA}")
            if i == 6:
                if SLD:
                    emit(f"v_readfirstlane_b32 s{t0}, v{NV+2}")
                    emit("s_nop 0")
                    emit(f"s_cmp_eq_u32 s{t0}, 0")
                else:
                    emit(f"v_cmp_eq_u64 vcc, {S2(XM)}, {vr(NV,2)}")
                    emit(f"s_and_b32 s{t0}, vcc_lo, 0xf0")
                    emit(f"s_cmp_eq_u32 s{t0}, 0xf0")
                emit(f"s_cselect_b32 s{sLOC}, {1 if LOCAL else 0}, 0")
                if MIX:
                    emit(f"s_and_b32 s{t0}, s{srb}, 3")
                    emit(f"s_cmp_lt_u32 s{t0}, {MIX}")
                    emit(f"s_cselect_b32 s{t0}, s{sLOC}, 0")
                    emit(f"s_cmp_lg_u32 s{t0}, 0")
                emit(f"s_cselect_b64 vcc, {-1 if LOCAL else 0}, 0")
            if k == 3: pend.extend((first + 12, g_) for g_ in epi(t_))
            if i == QB:
                emit("s_barrier")
                stamp(a, "bar7")
                for ks in range(2):
                    for x in reads(ks)[6:]: emit(x)
            elif i == QB + 1:
                for ks in range(2, 4):
                    for x in reads(ks)[6:]: emit(x)
            elif i != 6 and i != 15: fill(6)
        snap = (list(pend), cnt[0], list(stq), list(nm))
        if v == 0 or VIS: a("s_branch P1_done")
    if VIS:
        a.raw(".p2align 12" if VIS == 1 else ".p2align 6")
        a.lab("L_vis")
        a("s_branch L_visb")
    a.lab("P1_done")
    ctx[0] = "c"; pend[:] = snap[0]; cnt[0] = snap[1]; stq[:] = snap[2]; nm[:] = snap[3]
    if QB > 15:
        while pend: fill(99 if pend[0][0] <= cnt[0] else 13)
        emit("s_barrier")
        for ks in range(4):
            for x in reads(ks)[6:]: emit(x)
    def qreads(ks, base):
        b = FR + 20 * ks
        return [f"ds_read_b128 {vr(b,4)}, v{XA+ks} offset:{base}",
                f"ds_read_b64_tr_b16 {vr(b+16,2)}, v{WA1+2} offset:{base + 6144*ks + 2048}",
                f"ds_read_b64_tr_b16 {vr(b+18,2)}, v{WA1+2} offset:{base + 6144*ks + 2560}",
                f"ds_read_b128 {vr(b+4,4)}, v{XA+ks} offset:{base + 4096}"]
    def flag1():
        assert not any(g_[1][0] == "st" for g_ in pend) and not stq
        stamp(a, "prefl")
        nonce("C")
        a("s_mov_b64 exec, 1")
        a(f"s_cmp_eq_u32 s{sLOC}, 0")
        a("s_waitcnt vmcnt(0)")
        a("s_cbranch_scc1 L_f1wt")
        a(f"buffer_store_dwordx2 {vr(NV,2)}, off, {S4(rWS)}, s{sF1O}")
        a.lab("L_f1st")
        a("s_mov_b64 exec, -1")
        stamp(a, "ack1")
        cnt[0] += 10
    def late(nmax):
        q_ = lateB if (not lateA or (nq <= FPOS < 12)) and False else (lateA if lateA else lateB)
        if lateA and len(lateA) == nA and nq <= FPOS < 12: return
        for _ in range(min(nmax, len(q_))): emit(q_.pop(0))
    nA = len(lateA)
    nq = 0
    for rnd in range(3):
        order_ = [(ks, e) for ks in range(4) for e in range(2)] if rnd < 2 else [(0, 0), (0, 1), (1, 0), (2, 0), (3, 0), (1, 1), (2, 1), (3, 1)]
        for j, (ks, e) in enumerate(order_):
            if rnd == 0 and e == 0: emit(f"s_waitcnt lgkmcnt({6 + 2*ks})")
            if rnd == 1 and e == 0: emit("s_waitcnt lgkmcnt(12)")
            if rnd == 2 and e == 0: emit(f"s_waitcnt lgkmcnt({12 - 4*ks})")
            emit(mfma1(ks, e, 2, "nnn"))
            first = cnt[0]; nm[0] += 1
            store()
            nq += 1
            if B2 and rnd == 1 and j == 0: emit("s_barrier")
            if rnd < 2 and e == 1:
                if rnd == 1:
                    emit(f"v_add_u32 v{XA+ks}, {STAGE}, v{XA+ks}")
                    if ks == 0: emit(f"v_add_u32 v{WA1+2}, {STAGE}, v{WA1+2}")
                for x in qreads(ks, STAGE): emit(x)
                drain(2)
                late(2)
            elif nq != FPOS:
                if pend: fill(6)
                else: late(6)
            if rnd == 2 and ks == 3: pend.extend((first + 12, g_) for g_ in epi(4 + e))
            if nq == FPOS:
                if len(lateA) != nA:
                    while lateA: emit(lateA.pop(0))
                flag1()
    a(f"v_mov_b32 v{CA}, {GBC + 4}")
    a(f"v_mov_b32 v{ONE}, 1")
    cnt[0] += 2
    nm[0] += 99; store(); assert not stq
    if FPOS > 24:
        nq0 = len(pend) - 26 if FPOS == 25 else len(pend)
        while len(pend) > (26 if FPOS == 25 else 0): fill(1 if pend[0][0] <= cnt[0] else 13)
        if FPOS == 25:
            while lateA: emit(lateA.pop(0))
            flag1()
    while pend: fill(99 if pend[0][0] <= cnt[0] else 13)
    arrive(a, 4)
    stamp(a, "p1end")
    if FPOS == 26:
        while lateA: emit(lateA.pop(0))
        flag1()
    a("s_setprio 1")
    while lateA: a(lateA.pop(0))
    while lateB: a(lateB.pop(0))
    pre2()
    getq(1)
    a.lab("L_ph2")
    a.vreset()
    if PIPE:
        a("s_mov_b64 exec, 0xffff")
        poll_pipe(a, "L_f1", F1A, rWS, "sc1", [T + 10, T + 14])
        a("s_mov_b64 exec, -1")
        a.vm.append("poll")
    else: poll(a, "L_f1", F1A, rWS, "sc1", 16, SL1)
    stamp(a, "poll1")
    def ldK(kt, f): a.vmem(f"global_load_dwordx4 {vr(KB[kt%4]+4*f,4)}, v{L16}, {S2(KP[kt//2])} offset:{4096*(kt%2)-4096+1024*f} {KVL}", ("K", kt))
    def ldV(kt, f): a.vmem(f"global_load_dwordx4 {vr(VB[kt%4]+4*f,4)}, v{L16}, {S2(KP[kt//2])} offset:{4096*(kt%2)-2048+1024*f} {KVL}", ("V", kt))
    order = [(0, 3), (1, 3), (0, 0), (0, 1), (0, 2), (1, 0), (1, 1), (1, 2)]
    for k in range(2, 14):
        order += [(k, 0), (k, 1), (k, 2)] + ([(k, 3)] if k < 16 - NOWN else [])
    order += [(14, 0), (15, 0), (14, 1), (15, 1), (14, 2), (15, 2)] + [(k, 3) for k in range(16 - NOWN, 16)]
    assert sorted(order) == [(k, i) for k in range(16) for i in range(4)]
    NP = 64
    def qk(p):
        kt, i = order[p]
        s = SB[p % 3]; k = KB[kt % 4]
        return [f"v_mfma_f32_32x32x16_bf16 {vr(s,16)}, {vr(k,4)}, {vr(Q[i],4)}, 0",
                f"v_mfma_f32_32x32x16_bf16 {vr(s,16)}, {vr(k+4,4)}, {vr(Q[i]+4,4)}, {vr(s,16)}"]
    def pv(p):
        kt, i = order[p]
        s = SB[p % 3]; v = VB[kt % 4]
        return [f"v_smfmac_f32_32x32x32_bf16 {vr(O[i],16)}, {vr(v,4)}, {vr(s,8)}, v{IDX}",
                f"v_smfmac_f32_32x32x32_bf16 {vr(O[i],16)}, {vr(v+4,4)}, {vr(s+8,8)}, v{IDX}"]
    ldK(0, 0); ldK(0, 1)
    if not K1L: ldK(1, 0); ldK(1, 1)
    getq2()
    a.vwait(("K", 0))
    a("s_waitcnt lgkmcnt(6)")
    stamp(a, "k0")
    for x in qk(0): a(x)
    if K1L:
        ldK(1, 0); ldK(1, 1); ldV(0, 0); ldV(0, 1)
    else:
        ldV(0, 0); ldV(0, 1); ldV(1, 0); ldV(1, 1)
    a("s_mov_b64 exec, 1")
    a("s_waitcnt lgkmcnt(0)")
    a(f"ds_add_u32 v{T+5}, v{ONE}")
    a("s_mov_b64 exec, -1")
    a("s_nop 3")
    s = SB[0]
    a(f"v_max3_f32 v{T}, v{s}, v{s+1}, v{s+2}")
    a(f"v_max3_f32 v{T+1}, v{s+3}, v{s+4}, v{s+5}")
    for i in range(6, 14, 4):
        a(f"v_max3_f32 v{T}, v{T}, v{s+i}, v{s+i+1}")
        a(f"v_max3_f32 v{T+1}, v{T+1}, v{s+i+2}, v{s+i+3}")
    a(f"v_max3_f32 v{T}, v{T}, v{s+14}, v{s+15}")
    a(f"v_max_f32 v{T}, v{T}, v{T+1}")
    a(f"v_mov_b32 v{T+1}, v{T}")
    a("s_nop 1")
    a(f"v_permlane32_swap_b32 v{T}, v{T+1}")
    a(f"v_max_f32 v{T}, v{T}, v{T+1}")
    if FORCEFB: a(f"v_add_f32 v{T}, 0x43480000, v{T}")
    a(f"v_xor_b32 v{T}, 0x80000000, v{T}")
    a("s_mov_b32 exec_lo, 0")
    a(f"v_lshrrev_b32 v{Q[3]+6}, 16, v{T}")
    a("s_mov_b32 exec_lo, -1")
    a(f"ds_write_b32 v{MW}, v{Q[3]+6}")
    arrive(a)
    for x in qk(0): a(x)
    if K1L: ldV(1, 0); ldV(1, 1)
    a("s_nop 9" if K1L else "s_nop 11")
    stamp(a, "loop0")
    lastK = {k: max(p for p in range(NP) if order[p][0] == k) - 1 for k in range(16)}
    lastV = {k: max(p for p in range(NP) if order[p][0] == k) + 1 for k in range(16)}
    lq = []
    for k in range(2, 16):
        fk = lastK[k - 4] + 1 if k >= 4 else LQ0
        fv = lastV[k - 4] + 1 if k >= 4 else LQ0
        lq += [(lambda k=k: ldK(k, 0), fk), (lambda k=k: ldK(k, 1), fk), (lambda k=k: ldV(k, 0), fv), (lambda k=k: ldV(k, 1), fv)]
    wq = []
    for i in range(3):
        lp = max(p for p in range(NP) if order[p][1] == i) + 1
        for g in range(4):
            wq.append((lambda i=i, g=g: a(f"ds_write_b128 v{PW+i}, {vr(O[i]+4*g,4)} offset:{1024*g}"), 4 * (lp + 1) + 2))
    rq = [lambda i=i: a(f"ds_read_b128 {vr(O[i//4]+4*(i%4),4)}, v{PR} offset:{1024*i}") for i in range(12)]
    state = {"arr": None, "rd": False}
    def mlist(p):
        mq = qk(p + 1) if p + 1 < NP else [None, None]
        mp = pv(p - 1) if p >= 1 else [None, None]
        ms = [("q", x) for x in mq] + [("p", x) for x in mp]
        if p == 0: return ms[4-P0S:] + ms[:4-P0S]
        return ms[2:] + ms[:2] if p == 1 else ms
    def need(p, kind):
        if kind == "q":
            k1 = order[p + 1][0]
            a.vwait(("V", k1) if (k1 >= 2 and sum(1 for t in a.vm if t == ("V", k1)) == 2) else ("K", k1))
        else:
            a.vwait(("V", order[p - 1][0]))
    for p in range(NP):
        s = SB[p % 3]
        stamp(a, f"ph{p}")
        ms = mlist(p)
        if p == 1:
            lcheck(a, "L_m", 4)
            stamp(a, "bq1")
            for i in range(3): a(f"ds_read_b32 v{Q[i]+6}, v{MR+i}")
        if p == 2: a("s_nop 6")
        for g in range(4):
            kind, m = ms[g]
            if m:
                need(p, kind)
                if p == 1 and g == 3: a("s_waitcnt lgkmcnt(0)")
                a(m)
                if p >= 3:
                    np_, ng = (p, g + 1) if g < 3 else (p + 1, 0)
                    if np_ < NP:
                        k2, m2_ = mlist(np_)[ng]
                        if m2_: need(np_, k2)
            slot = 4 * p + g
            if slot == 3: lpre(a)
            if g == 2 and p in LOW:
                a(f"s_cmp_eq_u32 s{sg}, 0")
                a(f"s_cbranch_scc1 L_low{p}")
                a.lab(f"L_lowb{p}")
            if p == PGT and g == 0:
                a.vmem(f"buffer_load_dword v{T+8}, off, {S4(rWO)}, 0", "pg")
                a.vmem(f"buffer_load_dword v{T+9}, off, {S4(rBR)}, s{sF2O} sc1", "pg")
            if p == PGT and g == 1:
                a.vmem(f"buffer_load_dword v{T+10}, off, {S4(rOUT)}, s{sLS}", "pg")
                a(f"s_lshl_b32 s{t0}, s{sLS}, 1")
                a.vmem(f"buffer_load_dword v{T+11}, off, {S4(rOUT)}, s{t0}", "pg")
            if WB[:1] == "p" and p == int(WB[1:]) and g == 3: wbl2(a, "p", 7)
            if WB[:1] == "q" and p == int(WB[1:]) and g == 3: wbl2(a, "p", 3)
            if slot == 26: lpre(a, C0A)
            if slot == 30: lcheck(a, "L_c0", 4, C0A)
            if p == WOT and g == 2: a.vmem(f"buffer_load_dword v{T+8}, v{TAU}, {S4(rWO)}, 0 offen", "wot")
            if lq and lq[0][1] <= p and (g == LG or (g == LG + 1 and (p < 12 or p >= 40))): lq.pop(0)[0]()
            elif wq and wq[0][1] <= slot:
                wq.pop(0)[0]()
                if not wq:
                    arrive(a); state["arr"] = slot
            elif state["arr"] is not None and slot == state["arr"] + 2: lpre(a)
            elif state["arr"] is not None and not state["rd"] and slot >= state["arr"] + 4:
                lcheck(a, "L_p", 8)
                stamp(a, "b1")
                state["rd"] = True
                for _ in range(4): rq.pop(0)()
            elif state["rd"] and rq:
                for _ in range(4): rq.pop(0)()
            for jj in range(4): a(f"v_exp_f32 v{s+4*g+jj}, v{s+4*g+jj}")
    assert not lq and not wq and state["rd"]
    while rq: rq.pop(0)()
    a("s_nop 1")
    for x in pv(63): a(x)
    stamp(a, "loop1")
    OO = O[3]
    a("s_waitcnt lgkmcnt(0)")
    if ARR3 == "early": arrive(a)
    for r in range(16): a(f"v_add_f32 v{O[0]+r}, v{O[0]+r}, v{O[1]+r}")
    for r in range(16): a(f"v_add_f32 v{O[0]+r}, v{O[0]+r}, v{O[2]+r}")
    a(f"v_add_f32 v{OO+12}, v{OO+12}, v{O[0]+12}")
    a(f"v_mov_b32 v{T}, v{OO+12}")
    a(f"v_mov_b32 v{T+1}, v{OO+12}")
    for r in range(0, 4): a(f"v_add_f32 v{OO+r}, v{OO+r}, v{O[0]+r}")
    a(f"v_permlane32_swap_b32 v{T}, v{T+1}")
    for r in range(4, 16):
        if r != 12: a(f"v_add_f32 v{OO+r}, v{OO+r}, v{O[0]+r}")
    a(f"s_mov_b32 s{sFB}, 0")
    a.lab("L_norm")
    a(f"v_rcp_f32 v{T}, v{T+1}")
    if EARLYP == 1: a(f"buffer_load_dwordx2 {vr(T+14,2)}, v{LF}, {S4(rBR)}, 0 offen {PF2}")
    else: a("s_nop 0")
    P = T + 4
    for r in range(8): a(f"v_mul_f32 v{OO+r}, v{OO+r}, v{T}")
    for i in range(4): a(f"v_cvt_pk_bf16_f32 v{P+i}, v{OO+2*i}, v{OO+2*i+1}")
    a(f"buffer_store_dwordx4 {vr(P,4)}, v{L16}, {S4(rBR)}, s{sOO} offen sc1")
    for r in range(8, 16): a(f"v_mul_f32 v{OO+r}, v{OO+r}, v{T}")
    for i in range(4, 8): a(f"v_cvt_pk_bf16_f32 v{P+i}, v{OO+2*i}, v{OO+2*i+1}")
    a("s_mov_b32 exec_hi, 0")
    a(f"buffer_store_dwordx4 {vr(P+4,4)}, v{L16}, {S4(rBR)}, s{sOO} offen offset:1024 sc1")
    a("s_not_b64 exec, exec")
    a(f"buffer_store_dwordx2 {vr(P+4,2)}, v{L8}, {S4(rBR)}, s{sOO} offen offset:1280 sc1")
    a("s_mov_b64 exec, -1")
    if EARLYP == 2: a(f"buffer_load_dwordx2 {vr(T+14,2)}, v{LF}, {S4(rBR)}, 0 offen {PF2}")
    stamp(a, "ost")
    a(f"s_cmp_lg_u32 s{sFB}, 0")
    a("s_cbranch_scc1 L_checked")
    if ARR3 == "late": arrive(a)
    a(f"v_mul_f32 v{T+2}, 0, v{OO}")
    a(f"v_mul_f32 v{T+3}, 0, v{OO+1}")
    for r in range(2, 16): a(f"v_fma_f32 v{T+2+(r&1)}, 0, v{OO+r}, v{T+2+(r&1)}")
    a(f"v_add_f32 v{T+2}, v{T+2}, v{T+3}")
    a(f"v_add_f32 v{T+2}, v{T+2}, v{T+1}")
    a(f"v_cmp_nlt_f32 vcc, 0x35800000, v{T+2}")
    a(f"s_mov_b64 {S2(sROT)}, vcc")
    a(f"v_cmp_ngt_f32 vcc, 0x71800000, v{T+2}")
    a(f"s_or_b64 vcc, vcc, {S2(sROT)}")
    a("s_cbranch_vccnz L_fallback")
    a.lab("L_checked")
    sOS, sOL, sW0 = KT[1], KT[2], KT[3]
    INV = [ORD.index(r_) for r_ in range(4)]
    def wo_round(st):
        a(f"s_xor_b32 s{t0}, s{sPE}, {st}")
        a(f"s_add_u32 s{t0}, s{t0}, s{sW0}")
        a(f"s_mul_i32 s{sWOS}, s{t0}, {28*896}")
        a(f"s_mul_i32 s{sWOL}, s{skq}, {56*256}")
        a(f"s_mov_b32 s{t1}, 0")
        a(f"s_setprio {WPRIO}")
        a.lab(f"L_wo{st}")
        a(f"s_mov_b32 m0, s{sWOL}")
        a(f"s_add_u32 s{t1}, s{t1}, 1")
        a(f"buffer_load_dwordx4 v{WOA}, {S4(rWO)}, s{sWOS} offen {WOF} lds")
        a(f"s_add_u32 s{sWOL}, s{sWOL}, 1024")
        a(f"s_cmp_eq_u32 s{t1}, 7")
        a(f"s_mov_b32 s{t0}, {4*896}")
        a(f"s_cselect_b32 s{t0}, {32*896}, s{t0}")
        a(f"s_add_u32 s{sWOS}, s{sWOS}, s{t0}")
        a(f"s_cmp_lg_u32 s{t1}, 14")
        a(f"s_waitcnt vmcnt({WOFL})")
        a(f"s_cbranch_scc1 L_wo{st}")
        a("s_waitcnt vmcnt(0)")
        a("s_setprio 2")
    a(f"s_cmp_eq_u32 s{sg}, 0")
    a("s_cbranch_scc1 L_wfirst")
    a.lab("L_pub")
    NF = T + 2
    a(f"v_mov_b32 v{NF}, s{NONCE}")
    a(f"v_mov_b32 v{NF+1}, s{NONCE+1}")
    a("s_mov_b64 exec, 1")
    a(f"s_cmp_eq_u32 s{sg}, 0")
    a("s_waitcnt vmcnt(0)")
    a(f"buffer_store_dwordx2 {vr(NF,2)}, off, {S4(rBR)}, s{sF2O} {SF2}")
    a("s_mov_b64 exec, -1")
    stamp(a, "flag2")
    a("s_cbranch_scc1 L_ph3")
    def late_fetch():
        a(f"s_mov_b32 m0, s{sLL}")
        a("s_nop 0")
        for i in range(4): a(f"buffer_load_dwordx4 v{L16}, {S4(rBR)}, s{sLS} offen offset:{1024*i} sc1 lds")
        a(f"s_add_u32 m0, s{sLL}, 4096")
        a("s_nop 0")
        for i in range(3): a(f"buffer_load_dwordx4 v{L16}, {S4(rBR)}, s{sLS2} offen offset:{1024*i} sc1 lds")
        a("s_mov_b64 exec, 1")
        a("s_waitcnt vmcnt(0)")
        a(f"ds_write_b32 v{LM}, v{ONE}")
        a("s_mov_b64 exec, -1")
    a(f"ds_read_b32 v{T+12}, v{LM}")
    lwait(a, "L_wfree", 0, 16, 1, C0A)
    a(f"s_cmp_lg_u32 s{skq}, 3")
    a("s_cbranch_scc1 L_pfree_done")
    lwait(a, "L_pfree", 0, 12, 1)
    a(f"v_readfirstlane_b32 s{t0}, v{T+12}")
    a(f"s_cmp_lg_u32 s{t0}, 0")
    a("s_cbranch_scc1 L_fin")
    if EARLYP:
        a(f"v_cmp_ne_u64 vcc, {S2(NONCE)}, {vr(T+14,2)}")
        a("s_cbranch_vccz L_lready")
    if PW0: a("s_waitcnt vmcnt(0)")
    poll(a, "L_f21", LF, rBR, PF2)
    a.lab("L_lready")
    stamp(a, "poll2")
    late_fetch()
    stamp(a, "oown")
    if WB == "e": wbl2(a, "e", 7)
    a("s_waitcnt lgkmcnt(0)")
    a("s_branch L_fin")
    a.lab("L_ph3")
    if OUTW:
        a("s_mov_b64 exec, 1")
        a(f"buffer_load_dword v{T+8}, v{OUTA}, {S4(rOUT)}, 0 offen")
        a("s_mov_b64 exec, -1")
    WBR = 16
    steps = []
    for q in range(2):
        for j in range(4 * q, 4 * q + 4): steps.append((0, lambda aa, j=j: 28 * j + 8 * aa, ("A", j)))
        for i in range(2 * q, 2 * q + 2): steps.append((1, lambda aa, i=i: 56 * i + 16 + 8 * aa, ("B", 2 * i)))
        steps.append((2, lambda aa, q=q: 28 * (4 * q + aa) + 20, ("C", 4 * q)))
    WA2, TW2 = 8, 11
    MK = TW + 1
    ACC3 = [128, 144]; ACCB = [176, 192]; OB = 208; OE = 176
    def wread(ks):
        t, row, _ = steps[ks]
        return [f"ds_read_b64_tr_b16 {vr(WBR+8*ks+4*j+2*aa,2)}, v{(WA2 if j else WA)+t} offset:{row(aa)*256}" for j in range(2) for aa in range(2)]
    def oread(ks, d, base):
        kind, hd = steps[ks][2]
        if kind == "A": return [f"ds_read_b128 {vr(d,4)}, v{OA} offset:{base+hd*1792}"]
        if kind == "B": return [f"ds_read_b128 {vr(d,4)}, v{OA+1} offset:{base+hd*1792+1024}"]
        return [f"ds_read_b64 {vr(d+2*aa,2)}, v{OA+2} offset:{base+(hd+aa)*1792+1536}" for aa in range(2)]
    for t in range(3): a(f"v_xor_b32 v{WA2+t}, 64, v{WA+t}")
    for k_, x_ in enumerate((16, 64, 80)): a(f"v_xor_b32 v{TW2+k_}, {x_}, v{TW}")
    gbar(a, "L_g4", 4)
    for ks in range(14):
        for x in wread(ks): a(x)
    a("s_waitcnt lgkmcnt(0)")
    gbar(a, "L_g5", 5)
    wo_round(1)
    a(f"s_mul_i32 s{sOS}, s{sRT}, 1792")
    a(f"s_mul_i32 s{sOL}, s{skq}, 7168")
    a(f"s_add_u32 s{sOL}, s{sOL}, {ES}")
    poll(a, "L_f20", F2A, rBR, PF2)
    a(f"s_mov_b32 m0, s{sOL}")
    a(f"s_add_u32 s{t0}, s{sOS}, 4096")
    for i in range(4): a(f"buffer_load_dwordx4 v{L16}, {S4(rBR)}, s{sOS} offen offset:{1024*i} sc1 lds")
    a(f"s_add_u32 m0, s{sOL}, 4096")
    a("s_nop 0")
    for i in range(3): a(f"buffer_load_dwordx4 v{L16}, {S4(rBR)}, s{t0} offen offset:{1024*i} sc1 lds")
    a("s_waitcnt vmcnt(0)")
    gbar(a, "L_g6", 6)
    stamp(a, "aland")
    a(f"s_cmp_eq_u32 s{XM}, 0")
    a("s_cbranch_scc1 L_fin")
    for ks in range(14):
        for x in oread(ks, OE + 4 * ks, 0): a(x)
    a(f"s_add_u32 s{t0}, s{sOUTO}, {8*1792}")
    a(f"s_add_u32 s{t1}, s{sOUTO}, {16*1792}")
    a(f"s_add_u32 s{sOS}, s{sOUTO}, {24*1792}")
    lwait(a, "L_h3", 4, 12, HSL)
    a("s_setprio 0")
    for ks in range(14):
        w_ = wread(ks)
        for j in range(2):
            c = "0" if ks == 0 else vr(ACC3[j], 16)
            a(f"v_mfma_f32_32x32x16_bf16 {vr(ACC3[j],16)}, {vr(WBR+8*ks+4*j,4)}, {vr(OE+4*ks,4)}, {c}")
            for x in w_[2*j:2*j+2]: a(x)
    stamp(a, "tileA")
    def half_block(hf, final):
        lg = []
        for n_ in range(7):
            for x in oread(7 * hf + n_, OB + 4 * n_, LS - ES): a(x); lg.append(n_)
        items = [(n_, j) for j in range(2) for n_ in range(7)] if final else [(n_, j) for n_ in range(7) for j in range(2)]
        seen = -1
        for k_, (n_, j) in enumerate(items):
            if n_ > seen:
                a(f"s_waitcnt lgkmcnt({sum(1 for x in lg if x > n_)})"); seen = n_
            d_ = ACCB[j] if hf else ACC3[j]
            c = "0" if (hf and n_ == 0) else vr(d_, 16)
            a(f"v_mfma_f32_32x32x16_bf16 {vr(d_,16)}, {vr(WBR+8*(7*hf+n_)+4*j,4)}, {vr(OB+4*n_,4)}, {c}")
            if final and k_ in (7, 8): a("s_nop 4")
            if final and 9 <= k_ <= 12:
                i0 = 2 * (k_ - 9)
                for r in range(2 * i0, 2 * i0 + 4): a(f"v_add_f32 v{ACC3[0]+r}, v{ACC3[0]+r}, v{ACCB[0]+r}")
                for i in range(i0, i0 + 2): a(f"v_cvt_pk_bf16_f32 v{ACC3[0]+i}, v{ACC3[0]+2*i}, v{ACC3[0]+2*i+1}")
    a(f"s_mov_b32 s{t3}, {SPIN}")
    a.lab("L_any")
    a(f"ds_read2_b32 {vr(T+8,2)}, v{MK} offset0:0 offset1:2")
    a(f"s_sub_u32 s{t3}, s{t3}, 1")
    a("s_cbranch_scc1 L_end")
    a("s_waitcnt lgkmcnt(0)")
    a(f"v_cmp_ne_u32 vcc, 0, v{T+9}")
    a("s_cbranch_vccnz L_ba")
    a(f"v_cmp_ne_u32 vcc, 0, v{T+8}")
    a("s_cbranch_vccz L_any")
    for first in (0, 1):
        if first: a.lab("L_ba")
        stamp(a, "bland")
        half_block(first, False)
        a(f"s_mov_b32 s{t3}, {SPIN}")
        a.lab(f"L_u{first}")
        a(f"ds_read_b32 v{T+8}, v{MK} offset:{8 - 8*first}")
        a(f"s_sub_u32 s{t3}, s{t3}, 1")
        a("s_cbranch_scc1 L_end")
        a("s_waitcnt lgkmcnt(0)")
        a(f"v_cmp_ne_u32 vcc, 0, v{T+8}")
        a(f"s_cbranch_vccz L_u{first}")
        stamp(a, "oland")
        half_block(1 - first, True)
        if not first: a("s_branch L_out")
    a.lab("L_out")
    stamp(a, "mf3")
    a(f"ds_write_b128 v{TW}, {vr(ACC3[0],4)}")
    a(f"ds_write_b128 v{TW2}, {vr(ACC3[0]+4,4)}")
    a("s_nop 9")
    for r in range(8): a(f"v_add_f32 v{ACC3[1]+r}, v{ACC3[1]+r}, v{ACCB[1]+r}")
    for i in range(4): a(f"v_cvt_pk_bf16_f32 v{ACC3[1]+i}, v{ACC3[1]+2*i}, v{ACC3[1]+2*i+1}")
    a(f"ds_write_b128 v{TW2+1}, {vr(ACC3[1],4)}")
    for r in range(8, 16): a(f"v_add_f32 v{ACC3[1]+r}, v{ACC3[1]+r}, v{ACCB[1]+r}")
    for i in range(4, 8): a(f"v_cvt_pk_bf16_f32 v{ACC3[1]+i}, v{ACC3[1]+2*i}, v{ACC3[1]+2*i+1}")
    a(f"ds_write_b128 v{TW2+2}, {vr(ACC3[1]+4,4)}")
    for i in range(4): a(f"ds_read_b128 {vr(WBR+4*i,4)}, v{TR} offset:{1024*i}")
    for i, so in enumerate((sOUTO, t0, t1, sOS)):
        a(f"s_waitcnt lgkmcnt({3-i})")
        a(f"buffer_store_dwordx4 {vr(WBR+4*i,4)}, v{OUTA}, {S4(rOUT)}, s{so} offen {OUTF}")
    a.lab("L_fin")
    if STAMP:
        a("s_waitcnt vmcnt(0)")
        a("s_memrealtime s[22:23]")
        a("s_memtime s[98:99]")
        a("s_waitcnt lgkmcnt(0)")
        a("s_mov_b64 exec, 1")
        a(f"s_mov_b32 s{rWS}, s2"); a(f"s_mov_b32 s{rWS+1}, s3"); a(f"s_mov_b32 s{rWS+2}, 0x10000000")
        a(f"s_lshl_b32 s{t1}, s{sidx}, 3")
        a(f"s_add_u32 s{t1}, s{t1}, s{sx}")
        a(f"s_lshl_b32 s{t1}, s{t1}, 9")
        a(f"s_add_u32 s{t1}, s{t1}, {64<<20}")
        a(f"s_lshl_b32 s{t0}, s{sw}, 6")
        a(f"s_add_u32 s{t1}, s{t1}, s{t0}")
        for i, r in enumerate([RT, 22, 100, 98] + [80 + 2 * k for k in range(9)] + [sLOC]):
            a(f"v_mov_b32 v1, s{r}")
            a(f"buffer_store_dword v1, off, {S4(rWS)}, s{t1} offset:{4*i}")
    if DIAG:
        a("s_waitcnt vmcnt(0)")
        if DIAG == "end": a("s_memrealtime s[80:81]")
        if DIAG == "none": a(f"s_mov_b32 s80, s{NONCE}")
        if DIAG.startswith("skew"):
            a(f"s_sub_i32 s81, s{RT}, s{NONCE}")
            a("s_mul_i32 s81, s81, 20")
            if DIAG[4] != "A":
                a(f"s_cmp_eq_u32 s{sx}, {DIAG[4]}")
                a("s_cselect_b32 s81, s81, -2000")
            a(f"s_add_u32 s80, s{NONCE}, s81")
        a("s_waitcnt lgkmcnt(0)")
        a("s_add_u32 s80, s80, 6000")
        a.lab("L_diag")
        a("s_sleep 2")
        a("s_memrealtime s[82:83]")
        a("s_waitcnt lgkmcnt(0)")
        a("s_sub_u32 s82, s82, s80")
        a("s_cmp_lt_i32 s82, 0")
        a("s_cbranch_scc1 L_diag")
    a.lab("L_end")
    a("s_endpgm")
    a.lab("L_wfirst")
    lwait(a, "L_h2", 12, 4)
    stamp(a, "wo0")
    if WB == "w": wbl2(a, "w", 3)
    a(f"s_lshl_b32 s{t0}, s{skq}, 2")
    a(f"s_lshr_b32 s{t0}, {sum((4*INV[r_]) << (4*r_) for r_ in range(4)):#x}, s{t0}")
    a(f"s_and_b32 s{sW0}, s{t0}, 15")
    wo_round(0)
    a("s_branch L_pub")
    for tag, P_, so, off in tails:
        a.lab(f"L_wt{tag}")
        a(f"buffer_store_dwordx4 {vr(P_,4)}, v{TAU}, {S4(rWS)}, s{so} offen offset:{off} sc1")
        a(f"s_branch L_st{tag}")
    for v in nnt:
        a.lab(f"L_nn{v}")
        a(f"buffer_load_dwordx2 {vr(NV,2)}, v{NA}, {S4(rDBG)}, 0 offen sc1")
        a(f"s_branch L_nnb{v}")
    for tag, nm in stails:
        a.lab(f"L_ns{tag}")
        stamp(a, nm)
        a(f"s_branch L_nb{tag}")
    for name, target, reg in slow:
        a.lab(f"{name}_slow")
        lwait(a, name, 0, target, 1, reg)
        a(f"s_branch {name}_back")
    if LOW[0] >= 0:
        for p, pr in zip(LOW, (0, 2)):
            a.lab(f"L_low{p}")
            a(f"s_setprio {pr}")
            a(f"s_branch L_lowb{p}")
    a.lab("L_f1wt")
    a(f"buffer_store_dwordx2 {vr(NV,2)}, off, {S4(rWS)}, s{sF1O} sc1")
    a("s_branch L_f1st")
    for tag in "LC":
        a.lab(f"L_nonce_retry{tag}")
        a(f"buffer_load_dwordx2 {vr(NV,2)}, off, {S4(rDBG)}, s{sDL} sc1")
        a(f"s_sub_u32 s{t3}, s{t3}, 1")
        a("s_cbranch_scc1 L_end")
        a("s_waitcnt vmcnt(0)")
        a(f"s_branch L_nonce{tag}")
    a.lab("L_fallback")
    QO = Q[3]; S0 = SB[0]; K0 = KB[0]; V0 = VB[0]; M = T + 2
    a("s_waitcnt vmcnt(0)")
    a(f"s_mov_b32 s{sFB}, 1")
    a("s_mov_b32 exec_lo, 0")
    a(f"v_mov_b32 v{QO+6}, 0")
    a("s_mov_b32 exec_lo, -1")
    for r in range(16): a(f"v_mov_b32 v{OO+r}, 0")
    a(f"v_mov_b32 v{M}, 0xff7fffff")
    a(f"s_mov_b32 s{sKVO}, 0")
    a.lab("L_fb_loop")
    a(f"buffer_load_dwordx4 {vr(K0,4)}, v{L16}, {S4(rKV)}, s{sKVO} offen sc1")
    a(f"buffer_load_dwordx4 {vr(K0+4,4)}, v{L16}, {S4(rKV)}, s{sKVO} offen offset:1024 sc1")
    a(f"buffer_load_dwordx4 {vr(V0,4)}, v{L16}, {S4(rKV)}, s{sKVO} offen offset:2048 sc1")
    a(f"buffer_load_dwordx4 {vr(V0+4,4)}, v{L16}, {S4(rKV)}, s{sKVO} offen offset:3072 sc1")
    a("s_waitcnt vmcnt(0)")
    a(f"v_mfma_f32_32x32x16_bf16 {vr(S0,16)}, {vr(K0,4)}, {vr(QO,4)}, 0")
    a(f"v_mfma_f32_32x32x16_bf16 {vr(S0,16)}, {vr(K0+4,4)}, {vr(QO+4,4)}, {vr(S0,16)}")
    a("s_nop 15")
    a(f"v_max3_f32 v{T}, v{M}, v{S0}, v{S0+1}")
    for i in range(2, 16, 2): a(f"v_max3_f32 v{T}, v{T}, v{S0+i}, v{S0+i+1}")
    a(f"v_mov_b32 v{T+1}, v{T}")
    a("s_nop 1")
    a(f"v_permlane32_swap_b32 v{T}, v{T+1}")
    a(f"v_max_f32 v{T}, v{T}, v{T+1}")
    a(f"v_sub_f32 v{T+1}, v{M}, v{T}")
    a(f"v_exp_f32 v{T+1}, v{T+1}")
    a(f"v_mov_b32 v{M}, v{T}")
    for r in range(16): a(f"v_sub_f32 v{S0+r}, v{S0+r}, v{T}")
    for r in range(16): a(f"v_exp_f32 v{S0+r}, v{S0+r}")
    for r in range(16): a(f"v_mul_f32 v{OO+r}, v{OO+r}, v{T+1}")
    a("s_nop 1")
    a(f"v_smfmac_f32_32x32x32_bf16 {vr(OO,16)}, {vr(V0,4)}, {vr(S0,8)}, v{IDX}")
    a(f"v_smfmac_f32_32x32x32_bf16 {vr(OO,16)}, {vr(V0+4,4)}, {vr(S0+8,8)}, v{IDX}")
    a(f"s_add_u32 s{sKVO}, s{sKVO}, 4096")
    a(f"s_cmp_lt_u32 s{sKVO}, 262144")
    a("s_nop 15")
    a("s_cbranch_scc1 L_fb_loop")
    a(f"v_mov_b32 v{T}, v{OO+12}")
    a(f"v_mov_b32 v{T+1}, v{OO+12}")
    a("s_nop 1")
    a(f"v_permlane32_swap_b32 v{T}, v{T+1}")
    a("s_branch L_norm")
    if SCP:
        a.raw(".p2align 12")
        a("s_endpgm")
    kd = f""".section .rodata,"a"
.p2align 6
.amdhsa_kernel {n}
  .amdhsa_next_free_vgpr 256
  .amdhsa_next_free_sgpr 102
  .amdhsa_accum_offset 256
  .amdhsa_group_segment_fixed_size 0
  .amdhsa_kernarg_size 72
  .amdhsa_user_sgpr_count 2
  .amdhsa_user_sgpr_kernarg_segment_ptr 1
  .amdhsa_system_sgpr_workgroup_id_x 1
.end_amdhsa_kernel
"""
    return a.text() + kd

hdr = f"""; Two multi-head attention blocks (S=2048, D=448, H=16, Dh=28), one launch, 256 workgroups of 8 waves, one per CU.
;  1. projection: K and V^T fragments go to ws, Q stays in LDS.  Feature 28 of K is 1 and feature 28 of Q carries -m, so the
;  2. attention: m is the row maximum over the wave's first key tile; the row sum and the outputs are range checked and a
;     q tile that fails is recomputed with the running maximum.  P stays in f32 registers: the sparse MFMA picks the high halves.
; Hand-offs carry a per-launch tag agreed through d_debug.  K/V are stored plainly only when every workgroup of the class has
; registered on this die; otherwise they are written through, so any placement gives the same result.
; @launch grid=(256,1,1) block=(512,1,1) lds={LDS}
.amdgcn_target "amdgcn-amd-amdhsa--gfx950"
.text
"""
open(sys.argv[1] if len(sys.argv) > 1 else "v17.s", "w").write(hdr + gen())
```

```python
import sys, os, struct, math
NAME = "concat_heads__softmax_full_mha__softmax_full_mha__prompt"
def f2u(x): return struct.unpack("<I", struct.pack("<f", x))[0]
CSCALE = f2u(28 ** -0.5 * math.log2(math.e))
E = os.environ.get
STAMP = E("STAMP", "0") in ("1", "3")
RTS = E("STAMP", "0") == "3"
DIAG = E("DIAG", "")
STL = E("STL", "c0,p1end,ack1,poll1,loop0,loop1,flag2,poll2,oland").split(",")
F2SP = int(E("F2SP", "32"))
FORCEFB = E("FORCEFB", "0") == "1"
LOCAL = E("LOCAL", "1") == "1"
PRET = int(E("PRET", "3"))
SLEEP = int(E("SLEEP", "0"))
OUTF = E("OUTF", "sc1").replace("_", " ")
ROTA, ROTB, ROTC, ROTN, ROTS = [int(v) for v in E("ROTP", "1,0,2,7,1").split(",")]
WOFL = int(E("WOFL", "5"))
NOWN = int(E("NOWN", "4"))
NPOS = int(E("NPOS", "5"))
ARR3 = E("ARR3", "late")
OUTW = int(E("OUTW", "0"))
WOT = int(E("WOT", "30"))
HB = int(E("HB", "0"))
BPOS = int(E("BPOS", "2"))
TLBW = int(E("TLBW", "0"))
PROBE = int(E("PROBE", "0"))
WPRIO = int(E("WPRIO", "0"))
PRET2 = int(E("PRET2", "0"))
LG = int(E("LG", "0"))
PF2 = E("PF2", "sc1").replace("_", " ")
SF2 = E("SF2", "sc1").replace("_", " ")
PIPE = int(E("PIPE", "0"))
PW0 = int(E("PW0", "1"))
F1SP = int(E("F1SP", "128"))
K1L = int(E("K1L", "1"))
LQ0 = int(E("LQ0", "0"))
PGA = int(E("PGA", "1"))
FPOS = int(E("FPOS", "22"))
QB = int(E("QB", "12"))
TEAR = int(E("TEAR", "0"))
B2 = int(E("B2", "0"))
LPR = int(E("LPR", "0"))
CPF = int(E("CPF", "0"))
UBY = int(E("UBY", "0"))
SLD = int(E("SLD", "6"))
NRC = 139264
MIX = int(E("MIX", "0"))
WB = E("WB", "q54")
PAD = int(E("PAD", "0"), 0)
VIS = int(E("VIS", "0"))
SCP = int(E("SCP", "0"))
INL = int(E("INL", "1"))
PG3 = int(E("PG3", "0"))
TWO = int(E("TWO", "0"))
STL_ = int(E("STN", "0"))
ST0 = int(E("ST0", "3"))
SGL = E("SGL", "")
PGT = int(E("PGT", "-1"))
SP = int(E("SP", "2"))
WF0 = E("WF0", ""); WF = E("WF", ""); XF0 = E("XF0", ""); XF = E("XF", ""); KVS = E("KVS", ""); WOF = E("WOF", ""); TF = E("TF", "sc1").replace("_", " "); KVL = E("KVL", "sc1").replace("_", " ")
LOW = [int(x) for x in E("LOW", "-1,-1").split(",")]
QFAST = int(E("QFAST", "1"))
FT = E("FT", "")
P0S = int(E("P0S", "1"))
SL1 = int(E("SL1", "0"))
PEX = int(E("PEX", "1"))
EARLYP = int(E("EARLYP", "1"))
GLOOK = int(E("GLOOK", "0"))
LOOK = int(E("LOOK", "16"))
LOOK2 = int(E("LOOK2", "7"))
HSL = int(E("HSL", "4"))
XMAP = E("XMAP", "01235467")
T2POS = E("T2POS", "b6")
SPIN = 1 << 22

X_F1 = 1 << 20
B_BASE = 16 << 20; B_F2 = 1835008
STAGE = 40960; XOFF = 24576
PB0 = 57344; QX = 122880; MX = 106496; PB1 = 113664; TX = 122880; ES = 57344; LS = 86016; LDS = 163840; GBC = 163808

class A:
    def __init__(self):
        self.l = []; self.vm = []; self.done = 0
    def __call__(self, s): self.l.append("    " + s)
    def lab(self, s): self.l.append(s + ":")
    def raw(self, s): self.l.append(s)
    def note(self, s):
        for x in s.strip().split("\n"): self.l.append("; " + x.strip())
    def text(self): return "\n".join(self.l) + "\n"
    def vreset(self): self.vm = []; self.done = 0
    def vmem(self, s, tag=None):
        self(s); self.vm.append(tag)
    def vwait(self, tag):
        idx = [i for i, t in enumerate(self.vm) if t == tag]
        assert idx, tag
        last = idx[-1] + 1
        if last <= self.done: return
        self.done = last
        n = len(self.vm) - last
        assert n < 64
        self(f"s_waitcnt vmcnt({n})")

def vr(b, n): return f"v[{b}:{b+n-1}]"
def S4(b): return f"s[{b}:{b+3}]"
def S2(b): return f"s[{b}:{b+1}]"
JIT = int(E("JIT", "0")); njit = [0]
def stamp(a, name):
    if JIT and (not name.startswith("ph") or int(name[2:]) % 9 == 2):
        import zlib
        njit[0] += 1
        h = zlib.crc32(f"{name}{JIT}".encode())
        a("s_cselect_b32 s96, 1, 0")
        a(f"s_mul_i32 s97, s41, {1 + 2 * (h & 3)}")
        a("s_add_u32 s97, s97, s46")
        a("s_add_u32 s97, s97, s40")
        a(f"s_and_b32 s97, s97, {7 if h & 4 else 3}")
        a(f"s_cmp_lg_u32 s97, {(h >> 4) & 3}")
        a(f"s_cbranch_scc1 L_jit{njit[0]}")
        for _ in range(1 + ((h >> 8) & 3)): a("s_sleep 100")
        a.lab(f"L_jit{njit[0]}")
        a("s_cmp_lg_u32 s96, 0")
    if DIAG == name: a("s_memrealtime s[80:81]")
    if DIAG == name + "@0":
        a("s_cmp_lg_u32 s50, 0")
        a("s_cbranch_scc1 L_dg0")
        a("s_memrealtime s[80:81]")
        a.lab("L_dg0")
    if STAMP and name in STL:
        i = STL.index(name)
        a(f"{'s_memrealtime' if RTS else 's_memtime'} s[{80+2*i}:{81+2*i}]")

rX, rW, rWS, rWO, rOUT, rDBG, rKV, rBR = 24, 28, 32, 36, 64, 68, 72, 12
XM = 4
sLOC, sRT, sOUTO, sQT, sF1O, sPE = 6, 7, 8, 9, 10, 11
sKVO, sWOS, sWOL, sOO, sF2O, sFB = 16, 17, 18, 19, 22, 23
sx, sidx, sb, srb, shalf, sXS, sw, shl, shs, sg4, sg, sWL, sXL, sWS_, stt, scg, skq, su = range(40, 58)
t0, t1, sDL, t2, sROT, t3 = 58, 59, 60, 61, 62, 63
NONCE = 76; RT = 78
KT = [24, 25, 26, 27, 28]
KP = [24, 26, 28, 30, 44, 52, 54, 20]
L16, IDX, CA, F1A, ONE, L8, MW, MR, PW, PR, TAU = 1, 2, 3, 4, 5, 6, 7, 8, 11, 14, 15
T = 240
XD, WD, XA, WA1, QW, NV, NA, PTA = 16, 18, 16, 20, 23, 232, 234, 235
ACC = 32; FR = 128; P1 = 208
Q = [16, 24, 32, 40]; O = [48, 64, 80, 96]; SB = [112, 128, 144]; KB = [176, 184, 192, 200]; VB = [208, 216, 224, 232]
WA, F2B, TW, OA, WOA, F2A, OUTA, TR = 160, 163, 166, 168, 172, 173, 174, 175
ORD = [0, 2, 3, 1]
LF, LM, C0A = 163, 164, 165
sLS, sLL, sLS2 = 43, 51, 57

def lwait(a, name, off, target, sleep=2, reg=None):
    a(f"s_mov_b32 s{t3}, {SPIN}")
    a.lab(f"{name}_spin")
    a(f"ds_read_b32 v{T+13}, v{reg or CA} offset:{off}")
    a(f"s_sub_u32 s{t3}, s{t3}, 1")
    a("s_cbranch_scc1 L_end")
    a("s_waitcnt lgkmcnt(0)")
    a(f"v_readfirstlane_b32 s{t2}, v{T+13}")
    a(f"s_cmp_ge_u32 s{t2}, {target}")
    if sleep:
        a(f"s_cbranch_scc1 {name}_done")
        a(f"s_sleep {sleep}")
        a(f"s_branch {name}_spin")
        a.lab(f"{name}_done")
    else:
        a(f"s_cbranch_scc0 {name}_spin")
def arrive(a, off=0):
    a("s_mov_b64 exec, 1")
    a(f"ds_add_u32 v{CA}, v{ONE} offset:{off}")
    a("s_mov_b64 exec, -1")
slow = []
def lpre(a, reg=None):
    if INL: a(f"s_mov_b32 s{t3}, {SPIN}")
    a(f"ds_read_b32 v{T+13}, v{reg or CA}")
def lcheck(a, name, target, reg=None):
    if INL:
        a.lab(f"{name}_re")
        a("s_waitcnt lgkmcnt(0)")
        a(f"v_readfirstlane_b32 s{t2}, v{T+13}")
        a(f"s_sub_u32 s{t3}, s{t3}, 1")
        a(f"ds_read_b32 v{T+13}, v{reg or CA}")
        a("s_cbranch_scc1 L_end")
        a(f"s_cmp_ge_u32 s{t2}, {target}")
        a(f"s_cbranch_scc0 {name}_re")
        a.lab(f"{name}_back")
        return
    a("s_waitcnt lgkmcnt(0)")
    a(f"v_readfirstlane_b32 s{t2}, v{T+13}")
    a(f"s_cmp_ge_u32 s{t2}, {target}")
    a(f"s_cbranch_scc0 {name}_slow")
    a.lab(f"{name}_back")
    slow.append((name, target, reg))
def gbar(a, name, k):
    arrive(a)
    lwait(a, name, 0, 4 * k)
def poll_pipe(a, name, vaddr, srd, fl, regs):
    n_ = len(regs)
    a(f"s_mov_b32 s{t3}, {SPIN}")
    for r in regs[:-1]:
        a(f"buffer_load_dwordx2 {vr(r,2)}, v{vaddr}, {S4(srd)}, 0 offen {fl}")
        a(f"s_sleep {PIPE}")
    a.lab(f"{name}_spin")
    for i in range(n_):
        a(f"buffer_load_dwordx2 {vr(regs[(i-1)%n_],2)}, v{vaddr}, {S4(srd)}, 0 offen {fl}")
        a(f"s_waitcnt vmcnt({n_-1})")
        a(f"v_cmp_ne_u64 vcc, {S2(NONCE)}, {vr(regs[i],2)}")
        a(f"s_cbranch_vccz {name}_ok")
    a(f"s_sub_u32 s{t3}, s{t3}, 1")
    a(f"s_cbranch_scc0 {name}_spin")
    a("s_branch L_end")
    a.lab(f"{name}_ok")
def poll(a, name, vaddr, srd, fl="sc1", lanes=4, SLEEP=0):
    a(f"s_mov_b32 s{t3}, {SPIN}")
    if PEX: a(f"s_mov_b64 exec, {(1 << lanes) - 1:#x}")
    if SLEEP: a(f"s_branch {name}_first")
    a.lab(f"{name}_spin")
    if SLEEP:
        a(f"s_sleep {SLEEP}")
        a.lab(f"{name}_first")
    a(f"buffer_load_dwordx2 {vr(T+14,2)}, v{vaddr}, {S4(srd)}, 0 offen {fl}")
    a(f"s_sub_u32 s{t3}, s{t3}, 1")
    a("s_cbranch_scc1 L_end")
    a("s_waitcnt vmcnt(0)")
    a(f"v_cmp_ne_u64 vcc, {S2(NONCE)}, {vr(T+14,2)}")
    a(f"s_cbranch_vccnz {name}_spin")
    if PEX: a("s_mov_b64 exec, -1")

def wbl2(a, tag, wave):
    a(f"s_cmp_lg_u32 s{sw}, {wave}")
    a(f"s_cbranch_scc1 L_wb{tag}")
    a(f"s_cmp_lg_u32 s{sidx}, 3")
    a(f"s_cbranch_scc1 L_wb{tag}")
    a("buffer_wbl2 sc1")
    a.lab(f"L_wb{tag}")

def gen():
    a = A(); n = NAME + "_kernel"
    tails = []; stails = []; nnt = []
    u0, u1, u2, u3, u4 = T, T + 1, T + 2, T + 3, T + 4
    a.raw(f".globl {n}\n" + (".p2align 12\n" if PGA else "") + (f".fill {PAD//4}, 4, 0xbf800000\n" if PAD else "") + f".p2align 8\n.type {n},@function")
    a.lab(n)
    a("s_cmp_ge_u32 s2, 256")
    a("s_cbranch_scc1 L_end")
    a("s_load_dwordx16 s[4:19], s[0:1], 0")
    a("s_load_dwordx2 s[20:21], s[0:1], 64")
    a(f"s_memrealtime {S2(RT)}")
    if STAMP and not RTS: a("s_memtime s[100:101]")
    a(f"s_and_b32 s{sx}, s2, 7")
    a(f"s_lshr_b32 s{sidx}, s2, 3")
    a("v_lshrrev_b32 v1, 6, v0")
    a("v_and_b32 v0, 63, v0")
    a(f"v_readfirstlane_b32 s{sw}, v1")
    if XMAP:
        tab = sum(int(c) << (4 * i) for i, c in enumerate(XMAP))
        assert sorted(XMAP) == list("01234567")
        a(f"s_lshl_b32 s{t0}, s{sx}, 2")
        a(f"s_lshr_b32 s{t0}, {tab:#x}, s{t0}")
        a(f"s_bfe_u32 s{sb}, s{t0}, 0x10002")
        a(f"s_and_b32 s{sg4}, s{t0}, 3")
    else:
        a(f"s_lshr_b32 s{sb}, s{sx}, 2")
        a(f"s_and_b32 s{sg4}, s{sx}, 3")
    a(f"s_lshr_b32 s{srb}, s{sidx}, 1")
    a(f"s_and_b32 s{shalf}, s{sidx}, 1")
    if TLBW:
        a(f"s_cmp_lt_u32 s{sw}, 4")
        a("s_cbranch_scc1 L_load")
        a(f"s_mul_i32 s{t0}, s{srb}, {128*896}")
        a(f"s_cmp_eq_u32 s{sb}, 0")
        a(f"v_mov_b32 v{u0}, s{t0}")
        a(f"v_mul_u32_u24 v{u1}, {7*2688}, v0")
        a("s_waitcnt lgkmcnt(0)")
        a(f"s_cselect_b64 {S2(rX)}, s[4:5], s[10:11]")
        a(f"s_cselect_b64 {S2(rW)}, s[6:7], s[12:13]")
        if TLBW == 1: a("s_mov_b64 exec, 1")
        a(f"global_load_dword v{T+10}, v{u0}, {S2(rX)}")
        a(f"global_load_dword v{T+11}, v{u1}, {S2(rW)}")
        a("s_mov_b64 exec, -1")
        a("s_branch L_comp")
        a.lab("L_load")
    else:
        a(f"s_cmp_ge_u32 s{sw}, 4")
        a("s_cbranch_scc1 L_comp")
    def stamp_init():
        if DIAG: a(f"s_mov_b32 s80, s{RT}")
        if STAMP and STL != ["none"]:
            for k in range(9): a(f"s_mov_b32 s{80+2*k}, s{RT if RTS else 100}")
    def dbg_desc():
        a(f"s_mov_b32 s{rDBG}, s18"); a(f"s_mov_b32 s{rDBG+1}, s19"); a(f"s_mov_b32 s{rDBG+2}, 256"); a(f"s_mov_b32 s{rDBG+3}, 0x00020000")
        a(f"s_lshl_b32 s{sDL}, s{sb}, 3")
    def ws_desc():
        a(f"s_lshl_b32 s{t2}, s{sx}, 21")
        a(f"s_add_u32 s{rWS}, s20, s{t2}")
        a(f"s_addc_u32 s{rWS+1}, s21, 0")
        a(f"s_mov_b32 s{rWS+2}, {2<<20}")
        a(f"s_mov_b32 s{rWS+3}, 0x00020000")
    def ids2a(g, ws=True):
        a(f"s_cmp_eq_u32 s{sb}, 0")
        a(f"s_cselect_b32 s{rWO}, s8, s14")
        a(f"s_cselect_b32 s{rWO+1}, s9, s15")
        a(f"s_mov_b32 s{rWO+2}, 401408")
        a(f"s_mov_b32 s{rWO+3}, 0x00020000")
        a(f"s_mov_b32 s{rOUT}, s16"); a(f"s_mov_b32 s{rOUT+1}, s17"); a(f"s_mov_b32 s{rOUT+2}, {2048*896*2}"); a(f"s_mov_b32 s{rOUT+3}, 0x00020000")
        if ws: ws_desc()
        a(f"s_lshl_b32 s{t2}, s{sb}, 21")
        a(f"s_add_u32 s{t2}, s{t2}, {B_BASE}")
        a(f"s_add_u32 s{rBR}, s20, s{t2}")
        a(f"s_addc_u32 s{rBR+1}, s21, 0")
        a(f"s_mov_b32 s{rBR+2}, {2<<20}")
        a(f"s_mov_b32 s{rBR+3}, 0x00020000")
        a(f"s_mov_b32 s{sg}, {g}")
        a(f"s_and_b32 s{shs}, s{srb}, 1")
        if g: a(f"s_xor_b32 s{shs}, s{shs}, 1")
        a(f"s_lshl_b32 s{shl}, s{shalf}, 1")
        a(f"s_add_u32 s{shl}, s{shl}, s{shs}")
        a(f"s_lshl_b32 s{t2}, s{shl}, 18")
        a(f"s_add_u32 s{rKV}, s{rWS}, s{t2}")
        a(f"s_addc_u32 s{rKV+1}, s{rWS+1}, 0")
        a(f"s_mov_b32 s{rKV+2}, 262144")
        a(f"s_mov_b32 s{rKV+3}, 0x00020000")
        a(f"s_and_b32 s{skq}, s{sw}, 3")
        a(f"s_lshl_b32 s{sKVO}, s{skq}, 16")
        a(f"v_and_b32 v{u0}, 15, v0")
        a(f"v_lshlrev_b32 v{u0}, 3, v{u0}")
        a(f"s_lshl_b32 s{t0}, s{shalf}, 2")
        a(f"s_add_u32 s{t0}, s{t0}, s{skq}")
        a(f"s_mul_i32 s{t0}, s{t0}, {F1SP}")
        a(f"s_add_u32 s{t0}, s{t0}, {X_F1}")
        a(f"v_add_u32 v{F1A}, s{t0}, v{u0}")
    def ids2b(g):
        a(f"v_lshlrev_b32 v{L16}, 4, v0")
        a(f"v_lshlrev_b32 v{L8}, 3, v0")
        a(f"v_lshlrev_b32 v{u0}, 2, v0")
        a(f"v_mov_b32 v{IDX}, 0xdddddddd")
        pb = PB1 if g else PB0; mx = MX + 1024 * g
        a(f"s_lshl_b32 s{t1}, s{skq}, 8")
        a(f"s_add_u32 s{t1}, s{t1}, {mx}")
        a(f"v_add_u32 v{MW}, s{t1}, v{u0}")
        a(f"s_mul_i32 s{t1}, s{skq}, 12288")
        a(f"s_add_u32 s{t1}, s{t1}, {pb}")
        a(f"v_add_u32 v{PR}, s{t1}, v{L16}")
        for i in range(3):
            a(f"s_add_u32 s{t0}, s{skq}, {1+i}")
            a(f"s_and_b32 s{t0}, s{t0}, 3")
            a(f"s_lshl_b32 s{t1}, s{t0}, 8")
            a(f"s_add_u32 s{t1}, s{t1}, {mx}")
            a(f"v_add_u32 v{MR+i}, s{t1}, v{u0}")
            a(f"s_mul_i32 s{t1}, s{t0}, 12288")
            a(f"s_add_u32 s{t1}, s{t1}, {pb + 4096*i}")
            a(f"v_add_u32 v{PW+i}, s{t1}, v{L16}")
        a(f"v_mov_b32 v{CA}, {GBC + 4*g}")
        a(f"v_mov_b32 v{ONE}, 1")
        a(f"s_lshl_b32 s{sQT}, s{srb}, 2")
        a(f"s_add_u32 s{sQT}, s{sQT}, s{skq}")
        a(f"s_lshl_b32 s{t0}, s{sg4}, 2")
        a(f"s_lshr_b32 s{t0}, {sum((2*ORD[g_]) << (4*g_) for g_ in range(4)):#x}, s{t0}")
        a(f"s_and_b32 s{t0}, s{t0}, 7")
        a(f"s_add_u32 s{t0}, s{t0}, s{shalf}")
        a(f"s_lshl_b32 s{t1}, s{shs}, 3")
        a(f"s_add_u32 s{t0}, s{t0}, s{t1}")
        a(f"s_lshl_b32 s{t1}, s{sQT}, 4")
        a(f"s_add_u32 s{t1}, s{t1}, s{t0}")
        a(f"s_mul_i32 s{sOO}, s{t1}, 1792")
        a(f"s_mul_i32 s{sF2O}, s{t1}, {F2SP}")
        a(f"s_add_u32 s{sF2O}, s{sF2O}, {B_F2}")
    def late_addr():
        a(f"s_lshl_b32 s{t0}, s{sg4}, 3")
        a(f"s_lshr_b32 s{t1}, s{sidx}, 2")
        a(f"s_add_u32 s{t0}, s{t0}, s{t1}")
        a(f"s_and_b32 s{t1}, s{t0}, 2")
        a(f"s_xor_b32 s{t1}, s{t1}, 2")
        a(f"s_lshl_b32 s{t1}, s{t1}, 2")
        a(f"s_lshl_b32 s{t0}, s{t0}, 5")
        a(f"s_add_u32 s{t0}, s{t0}, s{t1}")
        a(f"s_and_b32 s{t1}, s{skq}, 1")
        a(f"s_mul_i32 s{sLL}, s{t1}, 14336")
        a(f"s_lshl_b32 s{t1}, s{t1}, 4")
        a(f"s_add_u32 s{t0}, s{t0}, s{t1}")
        a(f"s_and_b32 s{t1}, s{skq}, 2")
        a(f"s_lshl_b32 s{t1}, s{t1}, 1")
        a(f"s_add_u32 s{t0}, s{t0}, s{t1}")
        a(f"v_and_b32 v{LF}, 3, v0")
        a(f"v_add_u32 v{LF}, s{t0}, v{LF}")
        a(f"v_mul_u32_u24 v{LF}, {F2SP}, v{LF}")
        a(f"v_add_u32 v{LF}, {B_F2}, v{LF}")
        a(f"s_mul_i32 s{sLS}, s{t0}, 1792")
        a(f"s_add_u32 s{sLS2}, s{sLS}, 4096")
        a(f"s_mul_i32 s{t1}, s{t1}, 1792")
        a(f"s_add_u32 s{sLL}, s{sLL}, s{t1}")
        a(f"s_add_u32 s{sLL}, s{sLL}, {LS}")
        a(f"s_lshl_b32 s{t1}, s{skq}, 2")
        a(f"s_add_u32 s{t1}, s{t1}, {GBC + 16}")
        a(f"v_mov_b32 v{LM}, s{t1}")
        a(f"v_mov_b32 v{C0A}, {GBC}")
    def pre2():
        late_addr()
        for r in range(4): a(f"v_mov_b32 v{SB[0]+r}, 0")
        a("s_nop 1")
        for i in range(4): a(f"v_mfma_f32_32x32x16_bf16 {vr(O[i],16)}, {vr(SB[0],4)}, {vr(SB[0],4)}, 0")
        if STAMP: a("s_mov_b64 s[2:3], s[20:21]")
        a(f"s_add_u32 s{t0}, s{rKV}, s{sKVO}")
        a(f"s_addc_u32 s{t1}, s{rKV+1}, 0")
        for k in range(8):
            a(f"s_add_u32 s{KP[k]}, s{t0}, {8192*k + 4096}")
            a(f"s_addc_u32 s{KP[k]+1}, s{t1}, 0")
        if WOT >= 0:
            a(f"s_lshl_b32 s{t0}, s{sidx}, 2")
            a(f"s_add_u32 s{t0}, s{t0}, s{skq}")
            a(f"s_mul_i32 s{t0}, s{t0}, 25")
            a(f"v_min_u32 v{TAU}, 24, v0")
            a(f"v_add_u32 v{TAU}, s{t0}, v{TAU}")
            a(f"v_lshlrev_b32 v{TAU}, 7, v{TAU}")
    def getq(g):
        a(f"s_lshl_b32 s{t1}, s{shs}, 13")
        a(f"s_add_u32 s{t1}, s{t1}, {QX}")
        for i in range(4):
            a(f"s_add_u32 s{t0}, s{skq}, {1+i}")
            a(f"s_and_b32 s{t0}, s{t0}, 3")
            a(f"s_lshl_b32 s{t0}, s{t0}, 11")
            a(f"s_add_u32 s{t0}, s{t0}, s{t1}")
            a(f"v_add_u32 v{u0+i}, s{t0}, v{L16}")
        a(f"v_mov_b32 v{T+4}, {GBC + 8}")
        a(f"v_mov_b32 v{T+5}, {GBC + 12 if g else GBC - 4}")
    def getq2():
        lwait(a, "L_q", 0, 4, 0 if QFAST else 1, T + 4)
        for i in (3, 0, 1, 2):
            a(f"ds_read_b128 {vr(Q[i],4)}, v{u0+i}")
            a(f"ds_read_b128 {vr(Q[i]+4,4)}, v{u0+i} offset:1024")
    def nonce(tag):
        a(f"s_mov_b32 s{t3}, {SPIN}")
        a.lab(f"L_nonce{tag}")
        a(f"v_readfirstlane_b32 s{NONCE}, v{NV}")
        a(f"v_readfirstlane_b32 s{NONCE+1}, v{NV+1}")
        a(f"s_cmp_lg_u32 s{NONCE}, 0")
        a(f"s_cselect_b32 s{t2}, s{NONCE+1}, 0")
        a(f"s_cmp_lg_u32 s{t2}, 0")
        a(f"s_cbranch_scc0 L_nonce_retry{tag}")
    a(f"v_lshrrev_b32 v{u0}, 3, v0")
    a(f"v_lshrrev_b32 v{u1}, 4, v0")
    a(f"v_and_b32 v{u2}, 7, v0")
    a(f"s_lshl_b32 s{t0}, s{srb}, 7")
    a(f"s_lshl_b32 s{t1}, s{sw}, 5")
    a(f"s_add_u32 s{t0}, s{t0}, s{t1}")
    a(f"v_add_u32 v{u3}, s{t0}, v{u0}")
    a(f"v_mul_u32_u24 v{u3}, 896, v{u3}")
    a(f"v_xor_b32 v{u4}, v{u2}, v{u1}")
    a(f"v_lshl_add_u32 v{XD}, v{u4}, 4, v{u3}")
    a(f"v_xor_b32 v{XD+1}, 64, v{XD}")
    a(f"v_add_u32 v{XD+1}, {7168 - 1024}, v{XD+1}")
    a(f"s_mul_i32 s{t0}, s{sg4}, 224")
    a(f"s_mul_i32 s{t1}, s{sw}, {16*2688}")
    a(f"s_add_u32 s{t0}, s{t0}, s{t1}")
    a(f"s_mul_i32 s{t1}, s{shalf}, 896")
    a(f"s_add_u32 s{t1}, s{t1}, s{t0}")
    a(f"s_add_u32 s{t1}, s{t1}, 896")
    a(f"v_lshlrev_b32 v{u3}, 2, v{u1}")
    a(f"v_and_b32 v{u4}, 15, v0")
    a(f"v_xor_b32 v{u4}, v{u4}, v{u3}")
    a(f"v_cmp_lt_u32 vcc, 13, v{u4}")
    a(f"v_mul_u32_u24 v{u1}, 2688, v{u1}")
    a(f"v_lshl_add_u32 v{u1}, v{u4}, 4, v{u1}")
    a(f"v_add_u32 v{WD}, s{t1}, v{u1}")
    a(f"v_bfrev_b32 v{u4}, 2")
    a(f"v_cndmask_b32 v{WD}, v{WD}, v{u4}, vcc")
    a(f"s_mul_i32 s{t1}, s{shalf}, 112")
    a(f"s_add_u32 s{t1}, s{t1}, s{t0}")
    a(f"v_and_b32 v{u3}, 4, v{u3}")
    a(f"v_xor_b32 v{u2}, v{u2}, v{u3}")
    a(f"v_cmp_lt_u32 vcc, 6, v{u2}")
    a(f"v_mul_u32_u24 v{u0}, 2688, v{u0}")
    a(f"v_lshl_add_u32 v{u0}, v{u2}, 4, v{u0}")
    a(f"v_add_u32 v{WD+1}, s{t1}, v{u0}")
    a(f"v_cndmask_b32 v{WD+1}, v{WD+1}, v{u4}, vcc")
    if ROTN > 1:
        a(f"s_mul_i32 s{sROT}, s{srb}, {ROTA}")
        if ROTB:
            a(f"s_mul_i32 s{t0}, s{shalf}, {ROTB}")
            a(f"s_add_u32 s{sROT}, s{sROT}, s{t0}")
        a(f"s_mul_i32 s{t2}, s{sg4}, {ROTC}")
        a(f"s_add_u32 s{sROT}, s{sROT}, s{t2}")
        if ROTN & (ROTN - 1) == 0:
            a(f"s_and_b32 s{sROT}, s{sROT}, {ROTN-1}")
        else:
            a(f"s_mul_i32 s{t2}, s{sROT}, {(65536 + ROTN - 1)//ROTN}")
            a(f"s_lshr_b32 s{t2}, s{t2}, 16")
            a(f"s_mul_i32 s{t2}, s{t2}, {ROTN}")
            a(f"s_sub_u32 s{sROT}, s{sROT}, s{t2}")
        if ROTS != 1: a(f"s_mul_i32 s{sROT}, s{sROT}, {ROTS}")
    else:
        a(f"s_mov_b32 s{sROT}, 0")
    assert (ROTN - 1) * ROTS < 7
    a(f"s_lshl_b32 s{sXL}, s{sw}, 12")
    a(f"s_add_u32 s{sXL}, s{sXL}, {XOFF}")
    a(f"s_mul_i32 s{sWL}, s{sw}, 6144")
    a(f"s_mov_b32 s{rX+2}, 1835008")
    a(f"s_mov_b32 s{rX+3}, 0x00020000")
    a(f"s_mov_b32 s{rW+2}, 1204224")
    a(f"s_mov_b32 s{rW+3}, 0x00020000")
    XV = [XD, XD + 1, 20, 21]; AV = [WD, 22, 23, 24]; BV = [WD + 1, 25]
    sB = {4: scg, 5: su, 6: sFB}
    def prep(k):
        ws = sB.get(k, sWS_)
        a(f"s_lshl_b32 s{sXS}, s{sROT}, 7")
        a(f"s_mul_i32 s{ws}, s{sROT}, 172032")
        a(f"s_add_u32 m0, s{sXL}, {(k % 3) * STAGE}")
        a(f"s_add_u32 s{sROT}, s{sROT}, 1")
        a(f"s_cmp_eq_u32 s{sROT}, 7")
        a(f"s_cselect_b32 s{sROT}, 0, s{sROT}")
    def bpart(k):
        a(f"s_add_u32 m0, s{sWL}, {(k % 3) * STAGE + 2048}")
        a("s_nop 0")
        for i in range(2): a(f"buffer_load_dwordx4 v{BV[i]}, {S4(rW)}, s{sB.get(k, sWS_)} offen offset:{3072*i} lds")
    def burst(k, mid=None):
        ws = sB.get(k, sWS_)
        for i in range(4):
            a(f"buffer_load_dwordx4 v{XV[i]}, {S4(rX)}, s{sXS} offen offset:{1024*i} lds")
            if mid and i == 1: mid()
        a(f"s_add_u32 m0, s{sWL}, {(k % 3) * STAGE}")
        a("s_nop 0")
        a(f"buffer_load_dwordx4 v{AV[0]}, {S4(rW)}, s{ws} offen lds")
        a(f"s_add_u32 m0, s{sWL}, {(k % 3) * STAGE + 1024}")
        a("s_nop 0")
        for i, o_ in ((1, 0), (2, 2048), (3, 3072)): a(f"buffer_load_dwordx4 v{AV[i]}, {S4(rW)}, s{ws} offen offset:{o_} lds")
        if k < 4: bpart(k)
    def more_addr():
        a(f"v_add_u32 v{XV[2]}, {14336 - 2048}, v{XV[0]}")
        a(f"v_add_u32 v{XV[3]}, {14336 - 2048}, v{XV[1]}")
        a(f"v_add_u32 v{AV[1]}, {4*2688}, v{AV[0]}")
        a(f"v_add_u32 v{AV[2]}, {8*2688 - 2048}, v{AV[0]}")
        a(f"v_add_u32 v{AV[3]}, {12*2688 - 3072}, v{AV[0]}")
        a(f"v_add_u32 v{BV[1]}, {8*2688 - 3072}, v{BV[0]}")
    prep(0)
    more_addr()
    a(f"s_cmp_eq_u32 s{sb}, 0")
    a("s_waitcnt lgkmcnt(0)")
    a(f"s_cselect_b32 s{rX}, s4, s10")
    a(f"s_cselect_b32 s{rX+1}, s5, s11")
    a(f"s_cselect_b32 s{rW}, s6, s12")
    a(f"s_cselect_b32 s{rW+1}, s7, s13")
    stamp_init()
    stamp(a, "karg")
    burst(0)
    stamp(a, "iss0")
    if SCP:
        a("s_getpc_b64 s[0:1]")
        a("s_and_b32 s0, s0, 0xfffff000")
        a(f"s_lshl_b32 s{t0}, s{sidx}, 1")
        a(f"s_and_b32 s{t1}, s{sw}, 1")
        a(f"s_add_u32 s{t0}, s{t0}, s{t1}")
        a(f"s_lshl_b32 s{t0}, s{t0}, 6")
        a(f"s_lshr_b32 s{t1}, s{sw}, 1")
        a(f"s_mul_i32 s{t1}, s{t1}, 12288")
        a(f"s_add_u32 s{t0}, s{t0}, s{t1}")
        a(f"s_add_u32 s0, s0, s{t0}")
        a("s_addc_u32 s1, s1, 0")
        for k in range(3): a(f"s_load_dword s3, s[0:1], {4096*k}")
    dbg_desc()
    ids2a(0)
    a(f"s_lshr_b32 s{t0}, s{srb}, 1")
    a(f"s_lshl_b32 s{t0}, s{t0}, 7")
    a(f"s_add_u32 s{sWOS}, s{t0}, s{sKVO}")
    a(f"v_lshlrev_b32 v{PTA}, 10, v0")
    ids2b(0)
    a(f"v_lshrrev_b32 v{u2}, 5, v0")
    a(f"s_and_b32 s{t1}, s{sidx}, 3")
    a(f"s_cmp_eq_u32 s{t1}, 3")
    a(f"s_cselect_b32 s{t0}, 8, 16")
    a(f"s_lshl_b32 s{t1}, s{t1}, 8")
    a(f"v_lshrrev_b32 v{u0}, 4, v0")
    a(f"v_lshlrev_b32 v{u1}, 2, v{u0}")
    a(f"v_and_b32 v{u3}, 15, v0")
    a(f"v_xor_b32 v{u1}, v{u1}, v{u3}")
    a(f"v_cmp_le_u32 vcc, s{t0}, v{u1}")
    a(f"v_mul_u32_u24 v{u0}, 896, v{u0}")
    a(f"v_lshl_add_u32 v{u0}, v{u1}, 4, v{u0}")
    a(f"v_add_u32 v{WOA}, s{t1}, v{u0}")
    a(f"v_bfrev_b32 v{u0}, 2")
    a(f"v_cndmask_b32 v{WOA}, v{WOA}, v{u0}, vcc")
    a(f"s_lshl_b32 s{t2}, s{skq}, 2")
    a(f"s_cmp_lt_u32 s{t2}, s{t0}")
    a(f"s_cselect_b32 s{XM}, 1, 0")
    a(f"s_mul_i32 s{sOUTO}, s{sb}, 896")
    a(f"s_add_u32 s{sOUTO}, s{sOUTO}, s{t1}")
    a(f"s_and_b32 s{t2}, s{skq}, 2")
    a(f"s_lshl_b32 s{t1}, s{t2}, 6")
    a(f"s_add_u32 s{sOUTO}, s{sOUTO}, s{t1}")
    a(f"s_lshl_b32 s{sRT}, s{sg4}, 3")
    a(f"s_lshr_b32 s{t0}, s{sidx}, 2")
    a(f"s_add_u32 s{sRT}, s{sRT}, s{t0}")
    a(f"s_bfe_u32 s{sPE}, s{sRT}, 0x10001")
    a(f"s_lshl_b32 s{sRT}, s{sRT}, 1")
    a(f"v_bfe_u32 v{u0}, v0, 2, 2")
    a(f"v_xor_b32 v{u1}, s{t2}, v{u0}")
    a(f"v_lshlrev_b32 v{u1}, 6, v{u1}")
    a(f"v_lshl_add_u32 v{u1}, v{u0}, 8, v{u1}")
    a(f"v_and_b32 v{u0}, 1, v0")
    a(f"v_lshl_add_u32 v{u1}, v{u0}, 5, v{u1}")
    a(f"v_bfe_u32 v{u0}, v0, 4, 1")
    a(f"v_lshl_add_u32 v{u1}, v{u0}, 4, v{u1}")
    a(f"v_bfe_u32 v{u0}, v0, 1, 1")
    a(f"v_lshl_add_u32 v{u1}, v{u0}, 3, v{u1}")
    HSTEP = [4, 28, 56]
    for t in range(3):
        a(f"v_mul_u32_u24 v{u0}, {HSTEP[t]*256}, v{u2}")
        a(f"v_add_u32 v{WA+t}, v{u1}, v{u0}")
    a(f"s_and_b32 s{t2}, s{skq}, 1")
    a(f"s_mul_i32 s{t1}, s{t2}, 14336")
    a(f"s_add_u32 s{t1}, s{t1}, {ES}")
    a(f"v_add_u32 v{OA}, s{t1}, v{L16}")
    a(f"v_and_b32 v{u0}, 31, v0")
    a(f"v_mul_u32_u24 v{u1}, 1792, v{u2}")
    a(f"v_lshl_add_u32 v{u1}, v{u0}, 4, v{u1}")
    a(f"v_add_u32 v{OA+1}, s{t1}, v{u1}")
    a(f"v_mul_u32_u24 v{u1}, 3584, v{u2}")
    a(f"v_lshl_add_u32 v{u1}, v{u0}, 3, v{u1}")
    a(f"v_add_u32 v{OA+2}, s{t1}, v{u1}")
    a(f"s_lshl_b32 s{t0}, s{skq}, 12")
    a(f"s_add_u32 s{t0}, s{t0}, {TX}")
    a(f"v_add_u32 v{TR}, s{t0}, v{L16}")
    a(f"v_and_b32 v{u1}, 7, v0")
    a(f"v_lshlrev_b32 v{u3}, 1, v{u2}")
    a(f"v_xor_b32 v{u1}, v{u1}, v{u3}")
    a(f"v_lshlrev_b32 v{u1}, 4, v{u1}")
    a(f"v_lshl_add_u32 v{u1}, v{u0}, 7, v{u1}")
    a(f"v_add_u32 v{TW}, s{t0}, v{u1}")
    a(f"v_lshrrev_b32 v{u0}, 3, v0")
    a(f"v_xor_b32 v{u1}, v{u0}, v0")
    a(f"v_and_b32 v{u1}, 7, v{u1}")
    a(f"s_add_u32 s{t0}, s{sRT}, s{t2}")
    a(f"s_lshl_b32 s{t0}, s{t0}, 5")
    a(f"v_add_u32 v{u0}, s{t0}, v{u0}")
    a(f"v_mul_u32_u24 v{u0}, 1792, v{u0}")
    a(f"v_lshl_add_u32 v{OUTA}, v{u1}, 4, v{u0}")
    a(f"s_lshl_b32 s{t0}, s{t2}, 2")
    a(f"s_add_u32 s{t0}, s{t0}, {GBC + 16}")
    a(f"v_mov_b32 v{TW+1}, s{t0}")
    a(f"s_lshr_b32 s{t1}, s{skq}, 1")
    a(f"s_add_u32 s{t0}, s{sRT}, s{t1}")
    a(f"s_lshl_b32 s{t0}, s{t0}, 4")
    a(f"s_lshl_b32 s{t1}, s{sPE}, 3")
    a(f"s_add_u32 s{t0}, s{t0}, s{t1}")
    a(f"s_and_b32 s{t1}, s{skq}, 1")
    a(f"s_lshl_b32 s{t1}, s{t1}, 1")
    a(f"s_lshl_b32 s{t1}, s{t1}, 1")
    a(f"s_add_u32 s{sRT}, s{t0}, s{t1}")
    a(f"v_and_b32 v{u0}, 3, v0")
    a(f"v_add_u32 v{u0}, s{sRT}, v{u0}")
    a(f"v_mul_u32_u24 v{u0}, {F2SP}, v{u0}")
    a(f"v_add_u32 v{F2A}, {B_F2}, v{u0}")
    getq(0)
    if STL_:
        a(f"s_add_u32 s0, s{rKV}, s{sWOS}")
        a(f"s_addc_u32 s1, s{rKV+1}, 0")
    if VIS:
        a("s_branch L_vis")
        a.lab("L_visb")
    stamp(a, "lsetup")
    for k in range(1, 7):
        prep(k)
        if k >= 2:
            a(f"s_waitcnt vmcnt({10 if k - 1 < 4 else 8})")
            a("s_barrier")
        burst(k)
        if SLD and k + 1 == SLD:
            a(f"s_lshl_b32 s{t0}, s{sg4}, 5")
            a(f"s_add_u32 s{t0}, s{t0}, 128")
            a(f"s_load_dwordx2 {S2(NONCE)}, {S2(rDBG)}, s{sDL} {SGL}")
            a(f"s_load_dwordx8 s[88:95], {S2(rDBG)}, s{t0} {SGL}")
    BE = int(E("BE", "0"))
    for k in (6, 4, 5)[:BE]: bpart(k)
    a(f"s_waitcnt vmcnt({8 + 2*BE})")
    a("s_barrier")
    for k in (6, 4, 5)[BE:]: bpart(k)
    if not SLD: a(f"buffer_load_dwordx2 {vr(NV,2)}, off, {S4(rDBG)}, s{sDL} sc1")
    m_ = (1 << max(1, 4 * PRET)) - 1
    def touch():
        a(f"buffer_load_dword v{T+9}, v{F1A}, {S4(rWS)}, 0 offen sc1")
        a(f"s_mov_b32 exec_lo, {m_ & 0xffffffff:#x}")
        a(f"s_mov_b32 exec_hi, {m_ >> 32:#x}")
        a(f"buffer_load_dword v{T+8}, v{PTA}, {S4(rKV)}, s{sWOS} offen {TF}")
        a("s_mov_b64 exec, -1")
    if STL_: a(f"buffer_load_dword v{T+9}, v{F1A}, {S4(rWS)}, 0 offen sc1")
    elif TEAR != 1: touch()
    NX = (2 if STL_ else 1 if TEAR == 1 else 3) - (1 if SLD else 0)
    if SLD:
        a(f"s_getreg_b32 s{t2}, hwreg(HW_REG_XCC_ID)")
        a(f"s_and_b32 s{t2}, s{t2}, 15")
        a(f"s_lshl_b32 s{t0}, s{sx}, 4")
        a(f"s_or_b32 s{t2}, s{t2}, s{t0}")
        a(f"s_or_b32 s{t2}, s{t2}, 0x80")
        a(f"s_mul_i32 s{t2}, s{t2}, 0x01010101")
        a(f"s_lshl_b32 s{t0}, s{sw}, 4")
        a(f"s_add_u32 s{t0}, s{t0}, {NRC}")
        a(f"v_mov_b32 v{T+6}, s{t0}")
        a("s_waitcnt lgkmcnt(0)")
        a(f"s_xor_b32 s{t1}, s88, s{t2}")
        for k in range(89, 96):
            a(f"s_xor_b32 s{t0}, s{k}, s{t2}")
            a(f"s_or_b32 s{t1}, s{t1}, s{t0}")
        a(f"v_mov_b32 v{NV}, s{NONCE}")
        a(f"v_mov_b32 v{NV+1}, s{NONCE+1}")
        a(f"v_mov_b32 v{NV+2}, s{t1}")
        a(f"ds_write_b96 v{T+6}, {vr(NV,3)}")
        a("s_waitcnt lgkmcnt(0)")
    a(f"s_waitcnt vmcnt({6 + NX})")
    stamp(a, "lw6")
    a("s_barrier")
    if LPR: a("s_setprio 0")
    pre2()
    if B2:
        a(f"s_waitcnt vmcnt({NX + 2})")
        a("s_barrier")
    a(f"s_waitcnt vmcnt({NX})")
    a("s_barrier")
    def touch2():
        m2 = ((1 << (4 * PRET2)) - 1) & ~m_
        a(f"s_mov_b32 exec_lo, {m2 & 0xffffffff:#x}")
        a(f"s_mov_b32 exec_hi, {m2 >> 32:#x}")
        a(f"buffer_load_dword v{T+10}, v{PTA}, {S4(rKV)}, s{sWOS} offen sc1")
        a("s_mov_b64 exec, -1")
    if PRET2 and T2POS == "b6": touch2()
    if not SLD: a(f"s_waitcnt vmcnt({NX - 1})")
    nonce("L")
    if PRET2 and T2POS == "late": touch2()
    a("s_setprio 2")
    stamp(a, "lready")
    a("s_branch L_ph2")

    a.lab("L_comp")
    a("s_setprio 3")
    a(f"s_getreg_b32 s{t2}, hwreg(HW_REG_XCC_ID)")
    a(f"s_and_b32 s{t2}, s{t2}, 15")
    a(f"s_lshl_b32 s{t0}, s{sx}, 4")
    a(f"s_or_b32 s{t2}, s{t2}, s{t0}")
    a(f"s_or_b32 s{t2}, s{t2}, 0x80")
    a(f"s_lshl_b32 s{t1}, s{sg4}, 5")
    a(f"s_add_u32 s{t1}, s{t1}, 128")
    a(f"v_mov_b32 v{NV}, s{t2}")
    if not SLD:
        a(f"v_and_b32 v{NA}, 3, v0")
        a(f"v_lshlrev_b32 v{NA}, 3, v{NA}")
        a(f"v_add_u32 v{NA}, s{t1}, v{NA}")
    a(f"s_add_u32 s{t1}, s{t1}, s{sidx}")
    a("v_mov_b32 v238, 0")
    a("v_mov_b32 v239, 0")
    a("s_waitcnt lgkmcnt(0)")
    def ftouch(pairs, wave, tag):
        a(f"s_cmp_lg_u32 s{sw}, {wave}")
        a(f"s_cbranch_scc1 L_ft{tag}")
        a(f"s_add_u32 s{t0}, s{sg4}, 1")
        a(f"s_and_b32 s{t0}, s{t0}, 2")
        a(f"s_cbranch_scc1 L_ft{tag}")
        a(f"s_and_b32 s{t0}, s{sg4}, 1")
        a(f"s_lshl_b32 s{t0}, s{t0}, 5")
        a(f"s_add_u32 s{t0}, s{t0}, s{sidx}")
        a(f"v_and_b32 v{T+6}, 31, v0")
        a(f"v_lshrrev_b32 v{T+7}, 5, v0")
        a(f"v_mul_u32_u24 v{T+8}, 896, v{T+6}")
        a(f"v_lshl_add_u32 v{T+8}, v{T+7}, 7, v{T+8}")
        a(f"v_min_u32 v{T+6}, 20, v{T+6}")
        a(f"v_mul_u32_u24 v{T+7}, 172032, v{T+7}")
        a(f"v_lshl_add_u32 v{T+9}, v{T+6}, 7, v{T+7}")
        a(f"s_mul_i32 s{t3}, s{t0}, {32*896}")
        a(f"s_mul_i32 s{t0}, s{t0}, 2688")
        for pr in pairs:
            c_ = 2 * int(pr) - 1
            a(f"s_add_u32 s{sROT}, s{t0}, {c_*172032}")
            a(f"buffer_load_dword v{T+10}, v{T+9}, {S4(rW)}, s{sROT} offen")
            a(f"buffer_load_dword v{T+11}, v{T+8}, {S4(rX)}, s{t3} offen offset:{c_*128}")
        a.lab(f"L_ft{tag}")
    if FT:
        a(f"s_cmp_eq_u32 s{sb}, 0")
        a(f"s_cselect_b32 s{rX}, s4, s10")
        a(f"s_cselect_b32 s{rX+1}, s5, s11")
        a(f"s_cselect_b32 s{rW}, s6, s12")
        a(f"s_cselect_b32 s{rW+1}, s7, s13")
        a(f"s_mov_b32 s{rX+2}, 1835008")
        a(f"s_mov_b32 s{rX+3}, 0x00020000")
        a(f"s_mov_b32 s{rW+2}, 1204224")
        a(f"s_mov_b32 s{rW+3}, 0x00020000")
        ftouch(FT.split("/")[0], 5, "a")
    dbg_desc()
    if not SLD:
        a(f"s_mul_i32 s{XM}, s{t2}, 0x01010101")
        a(f"s_mov_b32 s{XM+1}, s{XM}")
    a("s_mov_b64 exec, 1")
    if not SLD: a(f"v_mov_b32 v{NA}, s{sDL}")
    a(f"s_cmp_lg_u32 s{sw}, 4")
    a("s_cbranch_scc1 L_noreg")
    a(f"buffer_store_byte v{NV}, off, {S4(rDBG)}, s{t1}")
    if UBY: a(f"buffer_load_ubyte v{T+12}, off, {S4(rDBG)}, s{t1} sc1")
    a(f"s_cmp_lg_u32 s{sidx}, 0")
    a("s_cbranch_scc1 L_noreg")
    a(f"s_or_b32 s{t0}, s{RT}, 1")
    a(f"s_or_b32 s{t2}, s{RT+1}, 1")
    a(f"v_mov_b32 v236, s{t0}")
    a(f"v_mov_b32 v237, s{t2}")
    a(f"buffer_atomic_cmpswap_x2 v[236:239], off, {S4(rDBG)}, s{sDL} sc1")
    a.lab("L_noreg")
    a("s_mov_b64 exec, -1")
    stamp_init()
    a(f"s_and_b32 s{stt}, s{sw}, 1")
    a(f"s_bfe_u32 s{scg}, s{sw}, 0x10001")
    a(f"v_and_b32 v{u0}, 31, v0")
    a(f"v_bfe_u32 v{u1}, v0, 1, 3")
    a(f"v_lshrrev_b32 v{u2}, 5, v0")
    a(f"v_xor_b32 v{u1}, v{u1}, v{u2}")
    a(f"v_lshlrev_b32 v{u1}, 4, v{u1}")
    a(f"v_lshl_add_u32 v{u1}, v{u0}, 7, v{u1}")
    a(f"s_lshl_b32 s{t0}, s{stt}, 13")
    a(f"s_add_u32 s{t0}, s{t0}, {XOFF}")
    for ks in range(4):
        a(f"v_xor_b32 v{XA+ks}, {32*ks}, v{u1}")
        a(f"v_add_u32 v{XA+ks}, s{t0}, v{XA+ks}")
    a(f"v_bfe_u32 v{u0}, v0, 4, 1")
    a(f"v_and_b32 v{u1}, 3, v0")
    a(f"v_lshlrev_b32 v{u1}, 3, v{u1}")
    a(f"v_lshl_add_u32 v{u0}, v{u0}, 5, v{u1}")
    a(f"s_mul_i32 s{t0}, s{scg}, 112")
    a(f"v_add_u32 v{WA1}, s{t0}, v{u0}")
    a(f"v_add_u32 v{WA1+1}, 56, v{WA1}")
    a(f"s_mul_i32 s{t0}, s{scg}, 56")
    a(f"v_add_u32 v{WA1+2}, s{t0}, v{u0}")
    a("s_mov_b32 exec_lo, 0x88880000")
    a("s_mov_b32 exec_hi, 0x88880000")
    a(f"v_or_b32 v{WA1}, 192, v{WA1}")
    a(f"v_or_b32 v{WA1+1}, 192, v{WA1+1}")
    a(f"v_or_b32 v{WA1+2}, 64, v{WA1+2}")
    a("s_mov_b64 exec, -1")
    a(f"v_bfe_u32 v{u1}, v0, 2, 2")
    a(f"v_mul_u32_u24 v{u2}, 3072, v{u2}")
    a(f"v_lshl_add_u32 v{u3}, v{u1}, 8, v{u2}")
    a(f"v_lshlrev_b32 v{u4}, 6, v{u1}")
    for c in range(2):
        a(f"v_xor_b32 v{WA1+c}, v{WA1+c}, v{u4}")
        a(f"v_add_u32 v{WA1+c}, v{WA1+c}, v{u3}")
    a(f"v_lshl_add_u32 v{u3}, v{u1}, 7, v{u2}")
    a(f"v_lshlrev_b32 v{u4}, 5, v{u1}")
    a(f"v_and_b32 v{u4}, 64, v{u4}")
    a(f"v_xor_b32 v{WA1+2}, v{WA1+2}, v{u4}")
    a(f"v_add_u32 v{WA1+2}, v{WA1+2}, v{u3}")
    Z = FR + 60
    for r in range(20): a(f"v_mov_b32 v{Z+r}, 0")
    a(f"v_mov_b32 v{u0}, {GBC}")
    a(f"ds_write_b128 v{u0}, {vr(Z+16,4)}")
    a(f"ds_write_b128 v{u0}, {vr(Z+16,4)} offset:16")
    for t_ in range(6): a(f"v_mfma_f32_32x32x16_bf16 {vr(ACC+16*t_,16)}, {vr(Z+16,4)}, {vr(Z+16,4)}, 0")
    a("s_mov_b32 exec_hi, 0")
    a(f"v_mov_b32 v{Z}, 0x3f80")
    a(f"v_mov_b32 v{Z+4}, 0x3f80")
    a("s_mov_b32 exec_lo, 0x10000000")
    a(f"v_mov_b32 v{Z+8}, 0x3f80")
    a(f"v_mov_b32 v{Z+12}, 0x3f80")
    a("s_mov_b64 exec, -1")
    def capture(f):
        keep = a.l; a.l = []
        f()
        got = [x.strip() for x in a.l]; a.l = keep
        return got
    lateA = capture(lambda: ids2a(1, False)); lateB = capture(lambda: ids2b(1))
    ws_desc()
    a(f"v_lshlrev_b32 v{L16}, 4, v0")
    a(f"v_and_b32 v{u0}, 0x33, v0")
    a(f"v_bfe_u32 v{u1}, v0, 2, 1")
    a(f"v_lshl_add_u32 v{u0}, v{u1}, 3, v{u0}")
    a(f"v_bfe_u32 v{u1}, v0, 3, 1")
    a(f"v_lshl_add_u32 v{u0}, v{u1}, 2, v{u0}")
    a(f"v_lshlrev_b32 v{TAU}, 4, v{u0}")
    sE0, sSC, sDLT, sCNT = sXS, sWS_, sWL, sXL
    a(f"s_lshl_b32 s{t0}, s{scg}, 2")
    a(f"s_lshr_b32 s{t1}, s{srb}, 2")
    a(f"s_add_u32 s{t0}, s{t0}, s{t1}")
    a(f"s_mul_i32 s{sF1O}, s{t0}, {F1SP}")
    a(f"s_lshl_b32 s{t0}, s{shalf}, 2")
    a(f"s_and_b32 s{t1}, s{srb}, 3")
    a(f"s_add_u32 s{t0}, s{t0}, s{t1}")
    a(f"s_lshl_b32 s{t0}, s{t0}, 1")
    a(f"s_add_u32 s{t0}, s{t0}, s{stt}")
    a(f"s_lshl_b32 s{t0}, s{t0}, 3")
    a(f"s_add_u32 s{sF1O}, s{sF1O}, s{t0}")
    a(f"s_add_u32 s{sF1O}, s{sF1O}, {X_F1}")
    if TEAR == 2: a(f"buffer_load_dword v{T+9}, off, {S4(rWS)}, s{sF1O} sc1")
    a(f"s_lshl_b32 s{t0}, s{srb}, 1")
    a(f"s_add_u32 s{t0}, s{t0}, s{stt}")
    a(f"s_lshl_b32 s{t1}, s{scg}, 6")
    a(f"s_add_u32 s{t0}, s{t0}, s{t1}")
    a(f"s_lshl_b32 s{sE0}, s{t0}, 13")
    SE = [sE0, rX, rX + 1, rX + 2]
    for t_, d_ in ((1, 4096), (2, 64 * 4096), (3, 65 * 4096)): a(f"s_add_u32 s{SE[t_]}, s{sE0}, {d_}")
    a(f"s_sub_u32 s{t0}, s{sw}, 4")
    a(f"s_lshl_b32 s{t0}, s{t0}, 12")
    a(f"s_add_u32 s{t0}, s{t0}, {QX}")
    a(f"v_add_u32 v{QW}, s{t0}, v{L16}")
    if SLD:
        a(f"s_lshl_b32 s{t0}, s{sw}, 4")
        a(f"s_add_u32 s{t0}, s{t0}, {NRC - 64}")
        a(f"v_mov_b32 v{PTA}, s{t0}")
    a(f"s_mov_b32 s{sSC}, {CSCALE:#x}")
    a(f"s_mov_b32 s{sCNT}, 0")
    a(f"s_mov_b32 s{sDLT}, 0")
    if FT and FT.split("/")[1]: ftouch(FT.split("/")[1], 6, "b")
    if CPF:
        a(f"s_cmp_lg_u32 s{sw}, 5")
        a("s_cbranch_scc1 L_nocpf")
        a(f"s_sub_u32 s{t0}, s{sidx}, 1")
        a(f"s_cmp_ge_u32 s{t0}, 3")
        a("s_cbranch_scc1 L_nocpf")
        a(f"s_getpc_b64 {S2(NONCE)}")
        a.lab("L_pc")
        a(f"s_lshl_b32 s{t0}, s{t0}, 13")
        a(f"v_lshlrev_b32 v{u0}, 7, v0")
        a(f"v_add_u32 v{u0}, s{t0}, v{u0}")
        a(f"v_min_u32 v{u0}, L_fallback-L_pc, v{u0}")
        a(f"global_load_dword v{T+10}, v{u0}, {S2(NONCE)}")
        a.lab("L_nocpf")
    a(f"s_cmp_lg_u32 s{shalf}, 0")
    a("s_cbranch_scc1 P1_v1")
    def reads(ks):
        b = FR + 20 * ks
        out = [f"ds_read_b128 {vr(b+4*e,4)}, v{XA+ks} offset:{4096*e}" for e in range(2)]
        for c in range(3):
            for h in range(2):
                off = 6144 * ks + (1024 * h if c < 2 else 2048 + 512 * h)
                out.append(f"ds_read_b64_tr_b16 {vr(b+8+4*c+2*h,2)}, v{WA1+c} offset:{off}")
        return [out[0], out[2], out[3], out[1]] + out[4:]
    def mfma1(ks, e, c, ori):
        b = FR + 20 * ks
        x = vr(b + 4 * e, 4); w = vr(b + 8 + 4 * c, 4)
        p, q = (w, x) if ori[c] == 'n' else (x, w)
        d = vr(ACC + 16 * (2 * c + e), 16)
        return f"v_mfma_f32_32x32x16_bf16 {d}, {p}, {q}, {d}"
    tiles = [(0, 0), (1, 0), (0, 1), (1, 1), (0, 2), (1, 2)]
    pend = []; cnt = [0]; ctx = [""]
    def epi(t_):
        e, c = tiles[t_]
        d = ACC + 16 * (2 * c + e)
        P = d
        out = []
        if c == 2: out += [[f"v_mul_f32 v{d+r}, s{sSC}, v{d+r}"] for r in range(16)]
        out += [[f"v_cvt_pk_bf16_f32 v{P+i}, v{d+2*i}, v{d+2*i+1}"] for i in range(8)]
        if c == 2:
            out += [[f"ds_write_b128 v{QW}, {vr(P,4)} offset:{2048*e}"], [f"ds_write_b128 v{QW}, {vr(P+4,4)} offset:{2048*e+1024}"]]
        else:
            out.insert(4, ("st", t_, 0, P)); out.append(("st", t_, 1, P + 4))
        return out
    def emit(x):
        a(x); cnt[0] += 1
    def drain(nmax):
        n_ = 0
        while pend and n_ < nmax and pend[0][0] <= cnt[0]:
            g_ = pend.pop(0)[1]
            if g_[0] == "st": stq.append(g_)
            else:
                for x in g_: emit(x)
                n_ += len(g_)
    stq = []; nm = [0, -99]
    def store():
        if not stq or nm[0] - nm[1] < SP: return 0
        _, t_, f, P = stq.pop(0)
        tag = f"{ctx[0]}{t_}{f}"
        emit(f"s_cbranch_vccz L_wt{tag}")
        emit(f"buffer_store_dwordx4 {vr(P,4)}, v{TAU}, {S4(rWS)}, s{SE[t_]} offen offset:{1024*f} {KVS}")
        a.lab(f"L_st{tag}")
        if f: stamp(a, f"st{t_}")
        tails.append((tag, P, SE[t_], 1024 * f)); nm[1] = nm[0]
        return 2
    def fill(nmax):
        if pend and pend[0][0] > cnt[0]:
            gap = min(nmax - 1, pend[0][0] - cnt[0])
            a(f"s_nop {gap-1}"); cnt[0] += gap
            nmax -= gap
        drain(nmax)
    for v, ori in enumerate(["nnn", "vvn"]):
        a.lab(f"P1_v{v}")
        if v == 1: a(f"v_add_u32 v{TAU}, 2048, v{L16}")
        a("s_waitcnt lgkmcnt(0)")
        stamp(a, "setup")
        mm = [(e, c) for c in range(3) for e in range(2)]
        def cstamps():
            if STAMP or DIAG:
                if len(DIAG) == 2 and DIAG[0] == "c" and DIAG != "c0":
                    a("s_memrealtime s[82:83]")
                    a(f"s_cmp_eq_u32 s{sCNT}, {int(DIAG[1])}")
                    a("s_waitcnt lgkmcnt(0)")
                    a("s_cselect_b32 s80, s82, s80")
                for nm in (STL if STAMP else []):
                    if len(nm) == 2 and nm[0] == "c" and nm != "c0":
                        a(f"s_cmp_eq_u32 s{sCNT}, {int(nm[1])}")
                        a(f"s_cbranch_scc1 L_ns{v}{nm}")
                        a.lab(f"L_nb{v}{nm}")
                        stails.append((f"{v}{nm}", nm))
        a("s_barrier")
        stamp(a, "c0")
        for x in reads(0): a(x)
        if FT and len(FT.split("/")) > 2: ftouch(FT.split("/")[2], 7, f"c{v}")
        a.raw(".p2align 6")
        a.lab(f"P1_loop{v}")
        for ks, rk in ((3, 1), (0, 2), (1, 3)):
            rd = reads(rk)
            if ks != 3: a("s_waitcnt lgkmcnt(8)")
            for j, (e, c) in enumerate(mm):
                a(mfma1(ks, e, c, ori))
                for x in rd[2*j:2*j+2]: a(x)
                if ks == 3 and j == 4:
                    a(f"s_add_u32 s{sCNT}, s{sCNT}, 1")
                    a(f"s_mov_b32 s{sDLT}, {STAGE}")
                if ks == 0 and j == 4:
                    a(f"s_cmp_eq_u32 s{sCNT}, 3")
                    a(f"s_cselect_b32 s{sDLT}, {(-2*STAGE) & 0xffffffff:#x}, s{sDLT}")
                if ks == 1 and j == 4:
                    for i in range(4): a(f"v_add_u32 v{XA+i}, s{sDLT}, v{XA+i}")
                if ks == 1 and j == 5:
                    for i in range(4, 7): a(f"v_add_u32 v{XA+i}, s{sDLT}, v{XA+i}")
        a("s_waitcnt lgkmcnt(8)")
        rd = reads(0)
        for j, (e, c) in enumerate(mm):
            a(mfma1(2, e, c, ori))
            if j == BPOS - 1: a("s_waitcnt lgkmcnt(0)")
            if j == BPOS:
                a("s_barrier")
                cstamps()
            if j > BPOS:
                n_ = -(-8 // (5 - BPOS)) if j < 5 else 8
                for x in rd[:n_]: a(x)
                rd = rd[n_:]
        if BPOS == 5:
            for x in rd: a(x)
        a(f"s_cmp_lt_u32 s{sCNT}, 4")
        a(f"s_cbranch_scc1 P1_loop{v}")
        m4 = mm[:4]
        for ch in (4, 5):
            dl = STAGE if ch == 4 else (-2 * STAGE) & 0xffffffff
            for ks, rk in ((3, 1), (0, 2), (1, 3)):
                rd = reads(rk)[:6]
                if ks != 3: a("s_waitcnt lgkmcnt(6)")
                for j, (e, c) in enumerate(mm if (ch == 4 and ks == 3) else m4):
                    a(mfma1(ks, e, c, ori))
                    for x in rd[2*j:2*j+2]: a(x)
                    if ch == 5 and ks == 3 and j == 0 and not SLD:
                        a(f"buffer_load_dwordx2 {vr(NV,2)}, v{NA}, {S4(rDBG)}, 0 offen sc1")
                    if ks == 0 and j == 3: a(f"s_mov_b32 s{sDLT}, {dl:#x}")
                    if ks == 1 and j == 3:
                        for i in range(4): a(f"v_add_u32 v{XA+i}, s{sDLT}, v{XA+i}")
            a("s_waitcnt lgkmcnt(6)")
            rd = reads(0)[:6]
            a(mfma1(2, *m4[0], ori))
            for i in range(4, 7): a(f"v_add_u32 v{XA+i}, s{sDLT}, v{XA+i}")
            a("s_waitcnt lgkmcnt(0)")
            a(mfma1(2, *m4[1], ori))
            a("s_barrier")
            stamp(a, f"d{ch+1}")
            a(mfma1(2, *m4[2], ori))
            for x in rd[:3]: a(x)
            a(mfma1(2, *m4[3], ori))
            for x in rd[3:]: a(x)
        rd = reads(1)[:6] + reads(2)[:6]
        for j, (e, c) in enumerate(m4):
            a(mfma1(3, e, c, ori))
            for x in rd[3*j:3*j+3]: a(x)
        for x in reads(3)[:4]: a(x)
        ctx[0] = str(v); pend.clear(); cnt[0] = 0; stq.clear(); nm[:] = [0, -99]
        seq = [(0, 0), (0, 1), (1, 0), (1, 1), (2, 0), (2, 1), (3, 0), (3, 1)] + [(k, t_) for t_ in range(2, 4) for k in range(4)]
        for i, (k, t_) in enumerate(seq):
            if i == 0: emit("s_waitcnt lgkmcnt(14)")
            if i == 2: emit("s_waitcnt lgkmcnt(12)")
            if i == 4: emit("s_waitcnt lgkmcnt(6)")
            if i == 6:
                emit("s_waitcnt lgkmcnt(0)" if SLD else "s_waitcnt vmcnt(0) lgkmcnt(0)")
                stamp(a, "last")
            emit(mfma1(k, *tiles[t_], ori))
            first = cnt[0]; nm[0] += 1
            store()
            if i == 0:
                for x in reads(3)[4:6]: emit(x)
            if i == 4 and SLD: emit(f"ds_read_b96 {vr(NV,3)}, v{PTA}")
            if i == 6:
                if SLD:
                    emit(f"v_readfirstlane_b32 s{t0}, v{NV+2}")
                    emit("s_nop 0")
                    emit(f"s_cmp_eq_u32 s{t0}, 0")
                else:
                    emit(f"v_cmp_eq_u64 vcc, {S2(XM)}, {vr(NV,2)}")
                    emit(f"s_and_b32 s{t0}, vcc_lo, 0xf0")
                    emit(f"s_cmp_eq_u32 s{t0}, 0xf0")
                emit(f"s_cselect_b32 s{sLOC}, {1 if LOCAL else 0}, 0")
                if MIX:
                    emit(f"s_and_b32 s{t0}, s{srb}, 3")
                    emit(f"s_cmp_lt_u32 s{t0}, {MIX}")
                    emit(f"s_cselect_b32 s{t0}, s{sLOC}, 0")
                    emit(f"s_cmp_lg_u32 s{t0}, 0")
                emit(f"s_cselect_b64 vcc, {-1 if LOCAL else 0}, 0")
            if k == 3: pend.extend((first + 12, g_) for g_ in epi(t_))
            if i == QB:
                emit("s_barrier")
                stamp(a, "bar7")
                for ks in range(2):
                    for x in reads(ks)[6:]: emit(x)
            elif i == QB + 1:
                for ks in range(2, 4):
                    for x in reads(ks)[6:]: emit(x)
            elif i != 6 and i != 15: fill(6)
        snap = (list(pend), cnt[0], list(stq), list(nm))
        if v == 0 or VIS: a("s_branch P1_done")
    if VIS:
        a.raw(".p2align 12" if VIS == 1 else ".p2align 6")
        a.lab("L_vis")
        a("s_branch L_visb")
    a.lab("P1_done")
    ctx[0] = "c"; pend[:] = snap[0]; cnt[0] = snap[1]; stq[:] = snap[2]; nm[:] = snap[3]
    if QB > 15:
        while pend: fill(99 if pend[0][0] <= cnt[0] else 13)
        emit("s_barrier")
        for ks in range(4):
            for x in reads(ks)[6:]: emit(x)
    def qreads(ks, base):
        b = FR + 20 * ks
        return [f"ds_read_b128 {vr(b,4)}, v{XA+ks} offset:{base}",
                f"ds_read_b64_tr_b16 {vr(b+16,2)}, v{WA1+2} offset:{base + 6144*ks + 2048}",
                f"ds_read_b64_tr_b16 {vr(b+18,2)}, v{WA1+2} offset:{base + 6144*ks + 2560}",
                f"ds_read_b128 {vr(b+4,4)}, v{XA+ks} offset:{base + 4096}"]
    def flag1():
        assert not any(g_[1][0] == "st" for g_ in pend) and not stq
        stamp(a, "prefl")
        nonce("C")
        a("s_mov_b64 exec, 1")
        a(f"s_cmp_eq_u32 s{sLOC}, 0")
        a("s_waitcnt vmcnt(0)")
        a("s_cbranch_scc1 L_f1wt")
        a(f"buffer_store_dwordx2 {vr(NV,2)}, off, {S4(rWS)}, s{sF1O}")
        a.lab("L_f1st")
        a("s_mov_b64 exec, -1")
        stamp(a, "ack1")
        cnt[0] += 10
    def late(nmax):
        q_ = lateB if (not lateA or (nq <= FPOS < 12)) and False else (lateA if lateA else lateB)
        if lateA and len(lateA) == nA and nq <= FPOS < 12: return
        for _ in range(min(nmax, len(q_))): emit(q_.pop(0))
    nA = len(lateA)
    nq = 0
    for rnd in range(3):
        order_ = [(ks, e) for ks in range(4) for e in range(2)] if rnd < 2 else [(0, 0), (0, 1), (1, 0), (2, 0), (3, 0), (1, 1), (2, 1), (3, 1)]
        for j, (ks, e) in enumerate(order_):
            if rnd == 0 and e == 0: emit(f"s_waitcnt lgkmcnt({6 + 2*ks})")
            if rnd == 1 and e == 0: emit("s_waitcnt lgkmcnt(12)")
            if rnd == 2 and e == 0: emit(f"s_waitcnt lgkmcnt({12 - 4*ks})")
            emit(mfma1(ks, e, 2, "nnn"))
            first = cnt[0]; nm[0] += 1
            store()
            nq += 1
            if B2 and rnd == 1 and j == 0: emit("s_barrier")
            if rnd < 2 and e == 1:
                if rnd == 1:
                    emit(f"v_add_u32 v{XA+ks}, {STAGE}, v{XA+ks}")
                    if ks == 0: emit(f"v_add_u32 v{WA1+2}, {STAGE}, v{WA1+2}")
                for x in qreads(ks, STAGE): emit(x)
                drain(2)
                late(2)
            elif nq != FPOS:
                if pend: fill(6)
                else: late(6)
            if rnd == 2 and ks == 3: pend.extend((first + 12, g_) for g_ in epi(4 + e))
            if nq == FPOS:
                if len(lateA) != nA:
                    while lateA: emit(lateA.pop(0))
                flag1()
    a(f"v_mov_b32 v{CA}, {GBC + 4}")
    a(f"v_mov_b32 v{ONE}, 1")
    cnt[0] += 2
    nm[0] += 99; store(); assert not stq
    if FPOS > 24:
        nq0 = len(pend) - 26 if FPOS == 25 else len(pend)
        while len(pend) > (26 if FPOS == 25 else 0): fill(1 if pend[0][0] <= cnt[0] else 13)
        if FPOS == 25:
            while lateA: emit(lateA.pop(0))
            flag1()
    while pend: fill(99 if pend[0][0] <= cnt[0] else 13)
    arrive(a, 4)
    stamp(a, "p1end")
    if FPOS == 26:
        while lateA: emit(lateA.pop(0))
        flag1()
    a("s_setprio 1")
    while lateA: a(lateA.pop(0))
    while lateB: a(lateB.pop(0))
    pre2()
    getq(1)
    a.lab("L_ph2")
    a.vreset()
    if PIPE:
        a("s_mov_b64 exec, 0xffff")
        poll_pipe(a, "L_f1", F1A, rWS, "sc1", [T + 10, T + 14])
        a("s_mov_b64 exec, -1")
        a.vm.append("poll")
    else: poll(a, "L_f1", F1A, rWS, "sc1", 16, SL1)
    stamp(a, "poll1")
    def ldK(kt, f): a.vmem(f"global_load_dwordx4 {vr(KB[kt%4]+4*f,4)}, v{L16}, {S2(KP[kt//2])} offset:{4096*(kt%2)-4096+1024*f} {KVL}", ("K", kt))
    def ldV(kt, f): a.vmem(f"global_load_dwordx4 {vr(VB[kt%4]+4*f,4)}, v{L16}, {S2(KP[kt//2])} offset:{4096*(kt%2)-2048+1024*f} {KVL}", ("V", kt))
    order = [(0, 3), (1, 3), (0, 0), (0, 1), (0, 2), (1, 0), (1, 1), (1, 2)]
    for k in range(2, 14):
        order += [(k, 0), (k, 1), (k, 2)] + ([(k, 3)] if k < 16 - NOWN else [])
    order += [(14, 0), (15, 0), (14, 1), (15, 1), (14, 2), (15, 2)] + [(k, 3) for k in range(16 - NOWN, 16)]
    assert sorted(order) == [(k, i) for k in range(16) for i in range(4)]
    NP = 64
    def qk(p):
        kt, i = order[p]
        s = SB[p % 3]; k = KB[kt % 4]
        return [f"v_mfma_f32_32x32x16_bf16 {vr(s,16)}, {vr(k,4)}, {vr(Q[i],4)}, 0",
                f"v_mfma_f32_32x32x16_bf16 {vr(s,16)}, {vr(k+4,4)}, {vr(Q[i]+4,4)}, {vr(s,16)}"]
    def pv(p):
        kt, i = order[p]
        s = SB[p % 3]; v = VB[kt % 4]
        return [f"v_smfmac_f32_32x32x32_bf16 {vr(O[i],16)}, {vr(v,4)}, {vr(s,8)}, v{IDX}",
                f"v_smfmac_f32_32x32x32_bf16 {vr(O[i],16)}, {vr(v+4,4)}, {vr(s+8,8)}, v{IDX}"]
    ldK(0, 0); ldK(0, 1)
    if not K1L: ldK(1, 0); ldK(1, 1)
    getq2()
    a.vwait(("K", 0))
    a("s_waitcnt lgkmcnt(6)")
    stamp(a, "k0")
    for x in qk(0): a(x)
    if K1L:
        ldK(1, 0); ldK(1, 1); ldV(0, 0); ldV(0, 1)
    else:
        ldV(0, 0); ldV(0, 1); ldV(1, 0); ldV(1, 1)
    a("s_mov_b64 exec, 1")
    a("s_waitcnt lgkmcnt(0)")
    a(f"ds_add_u32 v{T+5}, v{ONE}")
    a("s_mov_b64 exec, -1")
    a("s_nop 3")
    s = SB[0]
    a(f"v_max3_f32 v{T}, v{s}, v{s+1}, v{s+2}")
    a(f"v_max3_f32 v{T+1}, v{s+3}, v{s+4}, v{s+5}")
    for i in range(6, 14, 4):
        a(f"v_max3_f32 v{T}, v{T}, v{s+i}, v{s+i+1}")
        a(f"v_max3_f32 v{T+1}, v{T+1}, v{s+i+2}, v{s+i+3}")
    a(f"v_max3_f32 v{T}, v{T}, v{s+14}, v{s+15}")
    a(f"v_max_f32 v{T}, v{T}, v{T+1}")
    a(f"v_mov_b32 v{T+1}, v{T}")
    a("s_nop 1")
    a(f"v_permlane32_swap_b32 v{T}, v{T+1}")
    a(f"v_max_f32 v{T}, v{T}, v{T+1}")
    if FORCEFB: a(f"v_add_f32 v{T}, 0x43480000, v{T}")
    a(f"v_xor_b32 v{T}, 0x80000000, v{T}")
    a("s_mov_b32 exec_lo, 0")
    a(f"v_lshrrev_b32 v{Q[3]+6}, 16, v{T}")
    a("s_mov_b32 exec_lo, -1")
    a(f"ds_write_b32 v{MW}, v{Q[3]+6}")
    arrive(a)
    for x in qk(0): a(x)
    if K1L: ldV(1, 0); ldV(1, 1)
    a("s_nop 9" if K1L else "s_nop 11")
    stamp(a, "loop0")
    lastK = {k: max(p for p in range(NP) if order[p][0] == k) - 1 for k in range(16)}
    lastV = {k: max(p for p in range(NP) if order[p][0] == k) + 1 for k in range(16)}
    lq = []
    for k in range(2, 16):
        fk = lastK[k - 4] + 1 if k >= 4 else LQ0
        fv = lastV[k - 4] + 1 if k >= 4 else LQ0
        lq += [(lambda k=k: ldK(k, 0), fk), (lambda k=k: ldK(k, 1), fk), (lambda k=k: ldV(k, 0), fv), (lambda k=k: ldV(k, 1), fv)]
    wq = []
    for i in range(3):
        lp = max(p for p in range(NP) if order[p][1] == i) + 1
        for g in range(4):
            wq.append((lambda i=i, g=g: a(f"ds_write_b128 v{PW+i}, {vr(O[i]+4*g,4)} offset:{1024*g}"), 4 * (lp + 1) + 2))
    rq = [lambda i=i: a(f"ds_read_b128 {vr(O[i//4]+4*(i%4),4)}, v{PR} offset:{1024*i}") for i in range(12)]
    state = {"arr": None, "rd": False}
    def mlist(p):
        mq = qk(p + 1) if p + 1 < NP else [None, None]
        mp = pv(p - 1) if p >= 1 else [None, None]
        ms = [("q", x) for x in mq] + [("p", x) for x in mp]
        if p == 0: return ms[4-P0S:] + ms[:4-P0S]
        return ms[2:] + ms[:2] if p == 1 else ms
    def need(p, kind):
        if kind == "q":
            k1 = order[p + 1][0]
            a.vwait(("V", k1) if (k1 >= 2 and sum(1 for t in a.vm if t == ("V", k1)) == 2) else ("K", k1))
        else:
            a.vwait(("V", order[p - 1][0]))
    for p in range(NP):
        s = SB[p % 3]
        stamp(a, f"ph{p}")
        ms = mlist(p)
        if p == 1:
            lcheck(a, "L_m", 4)
            stamp(a, "bq1")
            for i in range(3): a(f"ds_read_b32 v{Q[i]+6}, v{MR+i}")
        if p == 2: a("s_nop 6")
        for g in range(4):
            kind, m = ms[g]
            if m:
                need(p, kind)
                if p == 1 and g == 3: a("s_waitcnt lgkmcnt(0)")
                a(m)
                if p >= 3:
                    np_, ng = (p, g + 1) if g < 3 else (p + 1, 0)
                    if np_ < NP:
                        k2, m2_ = mlist(np_)[ng]
                        if m2_: need(np_, k2)
            slot = 4 * p + g
            if slot == 3: lpre(a)
            if g == 2 and p in LOW:
                a(f"s_cmp_eq_u32 s{sg}, 0")
                a(f"s_cbranch_scc1 L_low{p}")
                a.lab(f"L_lowb{p}")
            if p == PGT and g == 2:
                a(f"s_lshl_b32 s{t0}, s{sLS}, 1")
                a.vmem(f"buffer_load_dword v{MW}, off, {S4(rOUT)}, s{t0}", "pg")
            if WB[:1] == "p" and p == int(WB[1:]) and g == 3: wbl2(a, "p", 7)
            if WB[:1] == "q" and p == int(WB[1:]) and g == 3: wbl2(a, "p", 3)
            if slot == 26: lpre(a, C0A)
            if slot == 30: lcheck(a, "L_c0", 4, C0A)
            if p == WOT and g == 2: a.vmem(f"buffer_load_dword v{T+8}, v{TAU}, {S4(rWO)}, 0 offen", "wot")
            if lq and lq[0][1] <= p and (g == LG or (g == LG + 1 and (p < 12 or p >= 40))): lq.pop(0)[0]()
            elif wq and wq[0][1] <= slot:
                wq.pop(0)[0]()
                if not wq:
                    arrive(a); state["arr"] = slot
            elif state["arr"] is not None and slot == state["arr"] + 2: lpre(a)
            elif state["arr"] is not None and not state["rd"] and slot >= state["arr"] + 4:
                lcheck(a, "L_p", 8)
                stamp(a, "b1")
                state["rd"] = True
                for _ in range(4): rq.pop(0)()
            elif state["rd"] and rq:
                for _ in range(4): rq.pop(0)()
            for jj in range(4): a(f"v_exp_f32 v{s+4*g+jj}, v{s+4*g+jj}")
    assert not lq and not wq and state["rd"]
    while rq: rq.pop(0)()
    a("s_nop 1")
    for x in pv(63): a(x)
    stamp(a, "loop1")
    OO = O[3]
    a("s_waitcnt lgkmcnt(0)")
    if ARR3 == "early": arrive(a)
    for r in range(16): a(f"v_add_f32 v{O[0]+r}, v{O[0]+r}, v{O[1]+r}")
    for r in range(16): a(f"v_add_f32 v{O[0]+r}, v{O[0]+r}, v{O[2]+r}")
    a(f"v_add_f32 v{OO+12}, v{OO+12}, v{O[0]+12}")
    a(f"v_mov_b32 v{T}, v{OO+12}")
    a(f"v_mov_b32 v{T+1}, v{OO+12}")
    for r in range(0, 4): a(f"v_add_f32 v{OO+r}, v{OO+r}, v{O[0]+r}")
    a(f"v_permlane32_swap_b32 v{T}, v{T+1}")
    for r in range(4, 16):
        if r != 12: a(f"v_add_f32 v{OO+r}, v{OO+r}, v{O[0]+r}")
    a(f"s_mov_b32 s{sFB}, 0")
    a.lab("L_norm")
    a(f"v_rcp_f32 v{T}, v{T+1}")
    if EARLYP == 1: a(f"buffer_load_dwordx2 {vr(T+14,2)}, v{LF}, {S4(rBR)}, 0 offen {PF2}")
    else: a("s_nop 0")
    P = T + 4
    for r in range(8): a(f"v_mul_f32 v{OO+r}, v{OO+r}, v{T}")
    for i in range(4): a(f"v_cvt_pk_bf16_f32 v{P+i}, v{OO+2*i}, v{OO+2*i+1}")
    a(f"buffer_store_dwordx4 {vr(P,4)}, v{L16}, {S4(rBR)}, s{sOO} offen sc1")
    for r in range(8, 16): a(f"v_mul_f32 v{OO+r}, v{OO+r}, v{T}")
    for i in range(4, 8): a(f"v_cvt_pk_bf16_f32 v{P+i}, v{OO+2*i}, v{OO+2*i+1}")
    a("s_mov_b32 exec_hi, 0")
    a(f"buffer_store_dwordx4 {vr(P+4,4)}, v{L16}, {S4(rBR)}, s{sOO} offen offset:1024 sc1")
    a("s_not_b64 exec, exec")
    a(f"buffer_store_dwordx2 {vr(P+4,2)}, v{L8}, {S4(rBR)}, s{sOO} offen offset:1280 sc1")
    a("s_mov_b64 exec, -1")
    if EARLYP == 2: a(f"buffer_load_dwordx2 {vr(T+14,2)}, v{LF}, {S4(rBR)}, 0 offen {PF2}")
    stamp(a, "ost")
    a(f"s_cmp_lg_u32 s{sFB}, 0")
    a("s_cbranch_scc1 L_checked")
    if ARR3 == "late": arrive(a)
    a(f"v_mul_f32 v{T+2}, 0, v{OO}")
    a(f"v_mul_f32 v{T+3}, 0, v{OO+1}")
    for r in range(2, 16): a(f"v_fma_f32 v{T+2+(r&1)}, 0, v{OO+r}, v{T+2+(r&1)}")
    a(f"v_add_f32 v{T+2}, v{T+2}, v{T+3}")
    a(f"v_add_f32 v{T+2}, v{T+2}, v{T+1}")
    a(f"v_cmp_nlt_f32 vcc, 0x35800000, v{T+2}")
    a(f"s_mov_b64 {S2(sROT)}, vcc")
    a(f"v_cmp_ngt_f32 vcc, 0x71800000, v{T+2}")
    a(f"s_or_b64 vcc, vcc, {S2(sROT)}")
    a("s_cbranch_vccnz L_fallback")
    a.lab("L_checked")
    sOS, sOL, sW0 = KT[1], KT[2], KT[3]
    INV = [ORD.index(r_) for r_ in range(4)]
    def wo_round(st):
        a(f"s_xor_b32 s{t0}, s{sPE}, {st}")
        a(f"s_add_u32 s{t0}, s{t0}, s{sW0}")
        a(f"s_mul_i32 s{sWOS}, s{t0}, {28*896}")
        a(f"s_mul_i32 s{sWOL}, s{skq}, {56*256}")
        a(f"s_mov_b32 s{t1}, 0")
        a(f"s_setprio {WPRIO}")
        a.lab(f"L_wo{st}")
        a(f"s_mov_b32 m0, s{sWOL}")
        a(f"s_add_u32 s{t1}, s{t1}, 1")
        a(f"buffer_load_dwordx4 v{WOA}, {S4(rWO)}, s{sWOS} offen {WOF} lds")
        a(f"s_add_u32 s{sWOL}, s{sWOL}, 1024")
        a(f"s_cmp_eq_u32 s{t1}, 7")
        a(f"s_mov_b32 s{t0}, {4*896}")
        a(f"s_cselect_b32 s{t0}, {32*896}, s{t0}")
        a(f"s_add_u32 s{sWOS}, s{sWOS}, s{t0}")
        a(f"s_cmp_lg_u32 s{t1}, 14")
        a(f"s_waitcnt vmcnt({WOFL})")
        a(f"s_cbranch_scc1 L_wo{st}")
        a("s_waitcnt vmcnt(0)")
        a("s_setprio 2")
    a(f"s_cmp_eq_u32 s{sg}, 0")
    a("s_cbranch_scc1 L_wfirst")
    a.lab("L_pub")
    NF = T + 2
    a(f"v_mov_b32 v{NF}, s{NONCE}")
    a(f"v_mov_b32 v{NF+1}, s{NONCE+1}")
    a("s_mov_b64 exec, 1")
    a(f"s_cmp_eq_u32 s{sg}, 0")
    a("s_waitcnt vmcnt(0)")
    a(f"buffer_store_dwordx2 {vr(NF,2)}, off, {S4(rBR)}, s{sF2O} {SF2}")
    a("s_mov_b64 exec, -1")
    stamp(a, "flag2")
    a("s_cbranch_scc1 L_ph3")
    def late_fetch():
        a(f"s_mov_b32 m0, s{sLL}")
        a("s_nop 0")
        for i in range(4): a(f"buffer_load_dwordx4 v{L16}, {S4(rBR)}, s{sLS} offen offset:{1024*i} sc1 lds")
        a(f"s_add_u32 m0, s{sLL}, 4096")
        a("s_nop 0")
        for i in range(3): a(f"buffer_load_dwordx4 v{L16}, {S4(rBR)}, s{sLS2} offen offset:{1024*i} sc1 lds")
        a("s_mov_b64 exec, 1")
        a("s_waitcnt vmcnt(0)")
        a(f"ds_write_b32 v{LM}, v{ONE}")
        a("s_mov_b64 exec, -1")
    a(f"ds_read_b32 v{T+12}, v{LM}")
    lwait(a, "L_wfree", 0, 16, 1, C0A)
    a(f"s_cmp_lg_u32 s{skq}, 3")
    a("s_cbranch_scc1 L_pfree_done")
    lwait(a, "L_pfree", 0, 12, 1)
    a(f"v_readfirstlane_b32 s{t0}, v{T+12}")
    a(f"s_cmp_lg_u32 s{t0}, 0")
    a("s_cbranch_scc1 L_fin")
    if EARLYP:
        a(f"v_cmp_ne_u64 vcc, {S2(NONCE)}, {vr(T+14,2)}")
        a("s_cbranch_vccz L_lready")
    if PW0: a("s_waitcnt vmcnt(0)")
    poll(a, "L_f21", LF, rBR, PF2)
    a.lab("L_lready")
    stamp(a, "poll2")
    late_fetch()
    stamp(a, "oown")
    if WB == "e": wbl2(a, "e", 7)
    a("s_waitcnt lgkmcnt(0)")
    a("s_branch L_fin")
    a.lab("L_ph3")
    if OUTW:
        a("s_mov_b64 exec, 1")
        a(f"buffer_load_dword v{T+8}, v{OUTA}, {S4(rOUT)}, 0 offen")
        a("s_mov_b64 exec, -1")
    WBR = 16
    steps = []
    for q in range(2):
        for j in range(4 * q, 4 * q + 4): steps.append((0, lambda aa, j=j: 28 * j + 8 * aa, ("A", j)))
        for i in range(2 * q, 2 * q + 2): steps.append((1, lambda aa, i=i: 56 * i + 16 + 8 * aa, ("B", 2 * i)))
        steps.append((2, lambda aa, q=q: 28 * (4 * q + aa) + 20, ("C", 4 * q)))
    WA2, TW2 = 8, 11
    MK = TW + 1
    ACC3 = [128, 144]; ACCB = [176, 192]; OB = 208; OE = 176
    def wread(ks):
        t, row, _ = steps[ks]
        return [f"ds_read_b64_tr_b16 {vr(WBR+8*ks+4*j+2*aa,2)}, v{(WA2 if j else WA)+t} offset:{row(aa)*256}" for j in range(2) for aa in range(2)]
    def oread(ks, d, base):
        kind, hd = steps[ks][2]
        if kind == "A": return [f"ds_read_b128 {vr(d,4)}, v{OA} offset:{base+hd*1792}"]
        if kind == "B": return [f"ds_read_b128 {vr(d,4)}, v{OA+1} offset:{base+hd*1792+1024}"]
        return [f"ds_read_b64 {vr(d+2*aa,2)}, v{OA+2} offset:{base+(hd+aa)*1792+1536}" for aa in range(2)]
    for t in range(3): a(f"v_xor_b32 v{WA2+t}, 64, v{WA+t}")
    for k_, x_ in enumerate((16, 64, 80)): a(f"v_xor_b32 v{TW2+k_}, {x_}, v{TW}")
    gbar(a, "L_g4", 4)
    for ks in range(14):
        for x in wread(ks): a(x)
    a("s_waitcnt lgkmcnt(0)")
    gbar(a, "L_g5", 5)
    wo_round(1)
    a(f"s_mul_i32 s{sOS}, s{sRT}, 1792")
    a(f"s_mul_i32 s{sOL}, s{skq}, 7168")
    a(f"s_add_u32 s{sOL}, s{sOL}, {ES}")
    poll(a, "L_f20", F2A, rBR, PF2)
    a(f"s_mov_b32 m0, s{sOL}")
    a(f"s_add_u32 s{t0}, s{sOS}, 4096")
    for i in range(4): a(f"buffer_load_dwordx4 v{L16}, {S4(rBR)}, s{sOS} offen offset:{1024*i} sc1 lds")
    a(f"s_add_u32 m0, s{sOL}, 4096")
    a("s_nop 0")
    for i in range(3): a(f"buffer_load_dwordx4 v{L16}, {S4(rBR)}, s{t0} offen offset:{1024*i} sc1 lds")
    a("s_waitcnt vmcnt(0)")
    gbar(a, "L_g6", 6)
    stamp(a, "aland")
    a(f"s_cmp_eq_u32 s{XM}, 0")
    a("s_cbranch_scc1 L_fin")
    for ks in range(14):
        for x in oread(ks, OE + 4 * ks, 0): a(x)
    a(f"s_add_u32 s{t0}, s{sOUTO}, {8*1792}")
    a(f"s_add_u32 s{t1}, s{sOUTO}, {16*1792}")
    a(f"s_add_u32 s{sOS}, s{sOUTO}, {24*1792}")
    lwait(a, "L_h3", 4, 12, HSL)
    a("s_setprio 0")
    for ks in range(14):
        w_ = wread(ks)
        for j in range(2):
            c = "0" if ks == 0 else vr(ACC3[j], 16)
            a(f"v_mfma_f32_32x32x16_bf16 {vr(ACC3[j],16)}, {vr(WBR+8*ks+4*j,4)}, {vr(OE+4*ks,4)}, {c}")
            for x in w_[2*j:2*j+2]: a(x)
    stamp(a, "tileA")
    def half_block(hf, final):
        lg = []
        for n_ in range(7):
            for x in oread(7 * hf + n_, OB + 4 * n_, LS - ES): a(x); lg.append(n_)
        items = [(n_, j) for j in range(2) for n_ in range(7)] if final else [(n_, j) for n_ in range(7) for j in range(2)]
        seen = -1
        for k_, (n_, j) in enumerate(items):
            if n_ > seen:
                a(f"s_waitcnt lgkmcnt({sum(1 for x in lg if x > n_)})"); seen = n_
            d_ = ACCB[j] if hf else ACC3[j]
            c = "0" if (hf and n_ == 0) else vr(d_, 16)
            a(f"v_mfma_f32_32x32x16_bf16 {vr(d_,16)}, {vr(WBR+8*(7*hf+n_)+4*j,4)}, {vr(OB+4*n_,4)}, {c}")
            if final and k_ in (7, 8): a("s_nop 4")
            if final and 9 <= k_ <= 12:
                i0 = 2 * (k_ - 9)
                for r in range(2 * i0, 2 * i0 + 4): a(f"v_add_f32 v{ACC3[0]+r}, v{ACC3[0]+r}, v{ACCB[0]+r}")
                for i in range(i0, i0 + 2): a(f"v_cvt_pk_bf16_f32 v{ACC3[0]+i}, v{ACC3[0]+2*i}, v{ACC3[0]+2*i+1}")
    a(f"s_mov_b32 s{t3}, {SPIN}")
    a.lab("L_any")
    a(f"ds_read2_b32 {vr(T+8,2)}, v{MK} offset0:0 offset1:2")
    a(f"s_sub_u32 s{t3}, s{t3}, 1")
    a("s_cbranch_scc1 L_end")
    a("s_waitcnt lgkmcnt(0)")
    a(f"v_cmp_ne_u32 vcc, 0, v{T+9}")
    a("s_cbranch_vccnz L_ba")
    a(f"v_cmp_ne_u32 vcc, 0, v{T+8}")
    a("s_cbranch_vccz L_any")
    for first in (0, 1):
        if first: a.lab("L_ba")
        stamp(a, "bland")
        half_block(first, False)
        a(f"s_mov_b32 s{t3}, {SPIN}")
        a.lab(f"L_u{first}")
        a(f"ds_read_b32 v{T+8}, v{MK} offset:{8 - 8*first}")
        a(f"s_sub_u32 s{t3}, s{t3}, 1")
        a("s_cbranch_scc1 L_end")
        a("s_waitcnt lgkmcnt(0)")
        a(f"v_cmp_ne_u32 vcc, 0, v{T+8}")
        a(f"s_cbranch_vccz L_u{first}")
        stamp(a, "oland")
        half_block(1 - first, True)
        if not first: a("s_branch L_out")
    a.lab("L_out")
    stamp(a, "mf3")
    a(f"ds_write_b128 v{TW}, {vr(ACC3[0],4)}")
    a(f"ds_write_b128 v{TW2}, {vr(ACC3[0]+4,4)}")
    a("s_nop 9")
    for r in range(8): a(f"v_add_f32 v{ACC3[1]+r}, v{ACC3[1]+r}, v{ACCB[1]+r}")
    for i in range(4): a(f"v_cvt_pk_bf16_f32 v{ACC3[1]+i}, v{ACC3[1]+2*i}, v{ACC3[1]+2*i+1}")
    a(f"ds_write_b128 v{TW2+1}, {vr(ACC3[1],4)}")
    for r in range(8, 16): a(f"v_add_f32 v{ACC3[1]+r}, v{ACC3[1]+r}, v{ACCB[1]+r}")
    for i in range(4, 8): a(f"v_cvt_pk_bf16_f32 v{ACC3[1]+i}, v{ACC3[1]+2*i}, v{ACC3[1]+2*i+1}")
    a(f"ds_write_b128 v{TW2+2}, {vr(ACC3[1]+4,4)}")
    for i in range(4): a(f"ds_read_b128 {vr(WBR+4*i,4)}, v{TR} offset:{1024*i}")
    for i, so in enumerate((sOUTO, t0, t1, sOS)):
        a(f"s_waitcnt lgkmcnt({3-i})")
        a(f"buffer_store_dwordx4 {vr(WBR+4*i,4)}, v{OUTA}, {S4(rOUT)}, s{so} offen {OUTF}")
    a.lab("L_fin")
    if STAMP:
        a("s_waitcnt vmcnt(0)")
        a("s_memrealtime s[22:23]")
        a("s_memtime s[98:99]")
        a("s_waitcnt lgkmcnt(0)")
        a("s_mov_b64 exec, 1")
        a(f"s_mov_b32 s{rWS}, s2"); a(f"s_mov_b32 s{rWS+1}, s3"); a(f"s_mov_b32 s{rWS+2}, 0x10000000")
        a(f"s_lshl_b32 s{t1}, s{sidx}, 3")
        a(f"s_add_u32 s{t1}, s{t1}, s{sx}")
        a(f"s_lshl_b32 s{t1}, s{t1}, 9")
        a(f"s_add_u32 s{t1}, s{t1}, {64<<20}")
        a(f"s_lshl_b32 s{t0}, s{sw}, 6")
        a(f"s_add_u32 s{t1}, s{t1}, s{t0}")
        for i, r in enumerate([RT, 22, 100, 98] + [80 + 2 * k for k in range(9)] + [sLOC]):
            a(f"v_mov_b32 v1, s{r}")
            a(f"buffer_store_dword v1, off, {S4(rWS)}, s{t1} offset:{4*i}")
    if DIAG:
        a("s_waitcnt vmcnt(0)")
        if DIAG == "end": a("s_memrealtime s[80:81]")
        if DIAG == "none": a(f"s_mov_b32 s80, s{NONCE}")
        a("s_waitcnt lgkmcnt(0)")
        if E("AMP"):
            a(f"s_sub_u32 s81, s80, s{RT}")
            a(f"s_mul_i32 s81, s81, {int(E('AMP'))}")
            a(f"s_add_u32 s80, s{RT}, s81")
            a("s_sub_u32 s80, s80, 6000")
        a("s_add_u32 s80, s80, 6000")
        a.lab("L_diag")
        a("s_sleep 2")
        a("s_memrealtime s[82:83]")
        a("s_waitcnt lgkmcnt(0)")
        a("s_sub_u32 s82, s82, s80")
        a("s_cmp_lt_i32 s82, 0")
        a("s_cbranch_scc1 L_diag")
    a.lab("L_end")
    a("s_endpgm")
    a.lab("L_wfirst")
    lwait(a, "L_h2", 12, 4)
    stamp(a, "wo0")
    if WB == "w": wbl2(a, "w", 3)
    a(f"s_lshl_b32 s{t0}, s{skq}, 2")
    a(f"s_lshr_b32 s{t0}, {sum((4*INV[r_]) << (4*r_) for r_ in range(4)):#x}, s{t0}")
    a(f"s_and_b32 s{sW0}, s{t0}, 15")
    wo_round(0)
    a("s_branch L_pub")
    for tag, P_, so, off in tails:
        a.lab(f"L_wt{tag}")
        a(f"buffer_store_dwordx4 {vr(P_,4)}, v{TAU}, {S4(rWS)}, s{so} offen offset:{off} sc1")
        a(f"s_branch L_st{tag}")
    for v in nnt:
        a.lab(f"L_nn{v}")
        a(f"buffer_load_dwordx2 {vr(NV,2)}, v{NA}, {S4(rDBG)}, 0 offen sc1")
        a(f"s_branch L_nnb{v}")
    for tag, nm in stails:
        a.lab(f"L_ns{tag}")
        stamp(a, nm)
        a(f"s_branch L_nb{tag}")
    for name, target, reg in slow:
        a.lab(f"{name}_slow")
        lwait(a, name, 0, target, 1, reg)
        a(f"s_branch {name}_back")
    if LOW[0] >= 0:
        for p, pr in zip(LOW, (0, 2)):
            a.lab(f"L_low{p}")
            a(f"s_setprio {pr}")
            a(f"s_branch L_lowb{p}")
    a.lab("L_f1wt")
    a(f"buffer_store_dwordx2 {vr(NV,2)}, off, {S4(rWS)}, s{sF1O} sc1")
    a("s_branch L_f1st")
    for tag in "LC":
        a.lab(f"L_nonce_retry{tag}")
        a(f"buffer_load_dwordx2 {vr(NV,2)}, off, {S4(rDBG)}, s{sDL} sc1")
        a(f"s_sub_u32 s{t3}, s{t3}, 1")
        a("s_cbranch_scc1 L_end")
        a("s_waitcnt vmcnt(0)")
        a(f"s_branch L_nonce{tag}")
    a.lab("L_fallback")
    QO = Q[3]; S0 = SB[0]; K0 = KB[0]; V0 = VB[0]; M = T + 2
    a("s_waitcnt vmcnt(0)")
    a(f"s_mov_b32 s{sFB}, 1")
    a("s_mov_b32 exec_lo, 0")
    a(f"v_mov_b32 v{QO+6}, 0")
    a("s_mov_b32 exec_lo, -1")
    for r in range(16): a(f"v_mov_b32 v{OO+r}, 0")
    a(f"v_mov_b32 v{M}, 0xff7fffff")
    a(f"s_mov_b32 s{sKVO}, 0")
    a.lab("L_fb_loop")
    a(f"buffer_load_dwordx4 {vr(K0,4)}, v{L16}, {S4(rKV)}, s{sKVO} offen sc1")
    a(f"buffer_load_dwordx4 {vr(K0+4,4)}, v{L16}, {S4(rKV)}, s{sKVO} offen offset:1024 sc1")
    a(f"buffer_load_dwordx4 {vr(V0,4)}, v{L16}, {S4(rKV)}, s{sKVO} offen offset:2048 sc1")
    a(f"buffer_load_dwordx4 {vr(V0+4,4)}, v{L16}, {S4(rKV)}, s{sKVO} offen offset:3072 sc1")
    a("s_waitcnt vmcnt(0)")
    a(f"v_mfma_f32_32x32x16_bf16 {vr(S0,16)}, {vr(K0,4)}, {vr(QO,4)}, 0")
    a(f"v_mfma_f32_32x32x16_bf16 {vr(S0,16)}, {vr(K0+4,4)}, {vr(QO+4,4)}, {vr(S0,16)}")
    a("s_nop 15")
    a(f"v_max3_f32 v{T}, v{M}, v{S0}, v{S0+1}")
    for i in range(2, 16, 2): a(f"v_max3_f32 v{T}, v{T}, v{S0+i}, v{S0+i+1}")
    a(f"v_mov_b32 v{T+1}, v{T}")
    a("s_nop 1")
    a(f"v_permlane32_swap_b32 v{T}, v{T+1}")
    a(f"v_max_f32 v{T}, v{T}, v{T+1}")
    a(f"v_sub_f32 v{T+1}, v{M}, v{T}")
    a(f"v_exp_f32 v{T+1}, v{T+1}")
    a(f"v_mov_b32 v{M}, v{T}")
    for r in range(16): a(f"v_sub_f32 v{S0+r}, v{S0+r}, v{T}")
    for r in range(16): a(f"v_exp_f32 v{S0+r}, v{S0+r}")
    for r in range(16): a(f"v_mul_f32 v{OO+r}, v{OO+r}, v{T+1}")
    a("s_nop 1")
    a(f"v_smfmac_f32_32x32x32_bf16 {vr(OO,16)}, {vr(V0,4)}, {vr(S0,8)}, v{IDX}")
    a(f"v_smfmac_f32_32x32x32_bf16 {vr(OO,16)}, {vr(V0+4,4)}, {vr(S0+8,8)}, v{IDX}")
    a(f"s_add_u32 s{sKVO}, s{sKVO}, 4096")
    a(f"s_cmp_lt_u32 s{sKVO}, 262144")
    a("s_nop 15")
    a("s_cbranch_scc1 L_fb_loop")
    a(f"v_mov_b32 v{T}, v{OO+12}")
    a(f"v_mov_b32 v{T+1}, v{OO+12}")
    a("s_nop 1")
    a(f"v_permlane32_swap_b32 v{T}, v{T+1}")
    a("s_branch L_norm")
    if SCP:
        a.raw(".p2align 12")
        a("s_endpgm")
    kd = f""".section .rodata,"a"
.p2align 6
.amdhsa_kernel {n}
  .amdhsa_next_free_vgpr 256
  .amdhsa_next_free_sgpr 102
  .amdhsa_accum_offset 256
  .amdhsa_group_segment_fixed_size 0
  .amdhsa_kernarg_size 72
  .amdhsa_user_sgpr_count 2
  .amdhsa_user_sgpr_kernarg_segment_ptr 1
  .amdhsa_system_sgpr_workgroup_id_x 1
.end_amdhsa_kernel
"""
    return a.text() + kd

hdr = f"""; Two multi-head attention blocks (S=2048, D=448, H=16, Dh=28), one launch, 256 workgroups of 8 waves, one per CU.
;  1. projection: K and V^T fragments go to ws, Q stays in LDS.  Feature 28 of K is 1 and feature 28 of Q carries -m, so the
;  2. attention: m is the row maximum over the wave's first key tile; the row sum and the outputs are range checked and a
;     q tile that fails is recomputed with the running maximum.  P stays in f32 registers: the sparse MFMA picks the high halves.
; Hand-offs carry a per-launch tag agreed through d_debug.  K/V are stored plainly only when every workgroup of the class has
; registered on this die; otherwise they are written through, so any placement gives the same result.
; @launch grid=(256,1,1) block=(512,1,1) lds={LDS}
.amdgcn_target "amdgcn-amd-amdhsa--gfx950"
.text
"""
open(sys.argv[1] if len(sys.argv) > 1 else "v17.s", "w").write(hdr + gen())
```

```python
import sys, os, subprocess, struct, ctypes, time
sys.path.insert(0, "cdna_kernels")
import numpy as np
from cdna_launch import AsmKernel, DeviceBuffer, with_harness_metadata, pack_ptr_kernargs, _hip, hip_check

TEMPLATE = """; @launch grid=({grid},1,1) block=({block},1,1) lds={lds}
.amdgcn_target "amdgcn-amd-amdhsa--gfx950"
.text
.globl mb_kernel
.p2align 8
.type mb_kernel,@function
mb_kernel:
    s_load_dwordx2 s[4:5], s[0:1], 0
    s_load_dwordx2 s[6:7], s[0:1], 8
    s_waitcnt lgkmcnt(0)
    s_mov_b32 s8, s4
    s_mov_b32 s9, s5
    s_mov_b32 s10, 0x1000000
    s_mov_b32 s11, 0x00020000
    s_mov_b32 s12, s6
    s_mov_b32 s13, s7
    s_mov_b32 s14, 0x1000000
    s_mov_b32 s15, 0x00020000
    v_mov_b32 v255, v0
{init}
    s_barrier
    s_mov_b32 s20, {iters}
    s_memtime s[16:17]
    s_memrealtime s[22:23]
    s_waitcnt lgkmcnt(0)
.p2align 6
L_loop:
{body}
    s_sub_u32 s20, s20, 1
    s_cmp_lg_u32 s20, 0
    s_cbranch_scc1 L_loop
    s_nop 15
    s_memtime s[18:19]
    s_memrealtime s[24:25]
    s_waitcnt lgkmcnt(0)
    s_sub_u32 s18, s18, s16
    s_sub_u32 s24, s24, s22
    v_mov_b32 v1, s18
    v_mov_b32 v2, s24
    v_lshrrev_b32 v3, 6, v255
    s_lshl_b32 s3, s2, 4
    v_add_u32 v3, s3, v3
    v_lshlrev_b32 v3, 3, v3
    buffer_store_dwordx2 v[1:2], v3, s[12:15], 0 offen
    s_waitcnt vmcnt(0)
    s_endpgm
.section .rodata,"a"
.p2align 6
.amdhsa_kernel mb_kernel
  .amdhsa_next_free_vgpr {nvgpr}
  .amdhsa_next_free_sgpr 102
  .amdhsa_accum_offset {accum}
  .amdhsa_group_segment_fixed_size 0
  .amdhsa_kernarg_size 16
  .amdhsa_user_sgpr_count 2
  .amdhsa_user_sgpr_kernarg_segment_ptr 1
  .amdhsa_system_sgpr_workgroup_id_x 1
.end_amdhsa_kernel
"""

def build(name, body, init="", grid=256, block=256, lds=0, iters=1000, nvgpr=128):
    t = TEMPLATE.replace("v255", "v%d" % (min(nvgpr,256)-1)).replace("v[1:2]", "v[2:3]").replace("v_mov_b32 v1, s18\n    v_mov_b32 v2, s24\n    v_lshrrev_b32 v3,", "v_mov_b32 v2, s18\n    v_mov_b32 v3, s24\n    v_lshrrev_b32 v4,").replace("v_add_u32 v3, s3, v3\n    v_lshlrev_b32 v3, 3, v3\n    buffer_store_dwordx2 v[2:3], v3,", "v_add_u32 v4, s3, v4\n    v_lshlrev_b32 v4, 3, v4\n    buffer_store_dwordx2 v[2:3], v4,")
    asm = t.format(grid=grid, block=block, lds=lds, init=init, body=body, iters=iters, nvgpr=nvgpr, accum=min(nvgpr,256))
    asm = with_harness_metadata(asm, "mb_kernel", 2)
    s = f"mb/{name}.s"; co = f"mb/{name}.co"
    open(s, "w").write(asm)
    r = subprocess.run(["clang", "-x", "assembler", "-target", "amdgcn-amd-amdhsa", "-mcpu=gfx950", s, "-o", co], capture_output=True, text=True)
    if r.returncode != 0:
        print(r.stderr); raise SystemExit(1)
    return co

_inbuf = None; _outbuf = None
def run(name, body, init="", grid=256, block=256, lds=0, iters=200, nvgpr=128, reps=3, unroll=16):
    global _inbuf, _outbuf
    body = "\n".join([body]*unroll)
    co = build(name, body, init, grid, block, lds, iters, nvgpr)
    if not os.path.exists('/dev/kfd'):
        print(name, "assembled"); return
    if _inbuf is None:
        rng = np.random.default_rng(0)
        a = (rng.standard_normal(1<<22).astype(np.float32))
        _inbuf = DeviceBuffer.from_numpy(a)
        _outbuf = DeviceBuffer.from_numpy(np.zeros(1<<22, dtype=np.uint32))
    k = AsmKernel(co, "mb_kernel")
    ka = pack_ptr_kernargs([_inbuf.ptr, _outbuf.ptr])
    for r in range(reps):
        k.launch((grid,1,1), (block,1,1), ka, lds)
        hip_check(_hip.hipDeviceSynchronize())
    o = _outbuf.to_numpy(np.uint32, (1<<22,))
    nw = block//64
    o = o[:grid*32].reshape(grid,16,2)[:, :nw, :]
    cyc = o[:,:,0].astype(np.float64); rt = o[:,:,1].astype(np.float64)
    n = iters*unroll
    wgmax = np.median(cyc.max(axis=1))
    print(f"{name:40s} w/simd={nw/4:.1f} cyc/body: min={cyc.min()/n:8.2f} wgmax={wgmax/n:8.2f}  => per wave-body on simd={wgmax/n/max(1,nw/4):8.2f} clk={np.median(cyc/rt)*100:.0f}MHz")
    k.unload()
```
